```python
import torch

def _softmax(x, axis=-1):
    return torch.softmax(x, dim=axis)
def _gelu(x):
    return torch.nn.functional.gelu(x, approximate="tanh")
def _silu(x):
    return torch.nn.functional.silu(x)
def _sigmoid(x):
    return torch.sigmoid(x)
def _layernorm(x, axis=-1, eps=1e-5):
    m = x.mean(dim=axis, keepdim=True)
    v = x.var(dim=axis, keepdim=True, unbiased=False)
    return (x - m) / torch.sqrt(v + eps)
def _scatter_add(tgt, idx, src, axis=0):
    return tgt.clone().index_add_(axis, idx, src)
def _segment_sum(src, seg, n):
    out = torch.zeros((n,) + src.shape[1:], dtype=src.dtype)
    return out.index_add_(0, seg, src)
def _pad(x, pw):
    flat = tuple(v for pair in reversed(pw) for v in pair)
    return torch.nn.functional.pad(x, flat)

kernel_name = 'standalone__mha_block_cached__near_ridge'

def setup_inputs():

    _w = (lambda a: (lambda t: t.to(torch.bfloat16) if t.is_floating_point() else t)(torch.as_tensor(a)))
    B, Sq, D = 8, 240, 640
    H, Sk, Dh = 32, 1024, 128
    return {
        "x": _w((lambda *s: torch.randn(*s, dtype=torch.bfloat16) * 0.8)(B, Sq, D)),
        "k_cache": _w((lambda *s: torch.randn(*s, dtype=torch.bfloat16) * 0.8)(B, H, Sk, Dh)),
        "v_cache": _w((lambda *s: torch.randn(*s, dtype=torch.bfloat16) * 0.05)(B, H, Sk, Dh)),
        "wq": _w((lambda *s: torch.randn(*s, dtype=torch.bfloat16) * 0.8)(D, H * Dh) * (D ** -0.5)),
        "wo": _w((lambda *s: torch.randn(*s, dtype=torch.bfloat16) * 0.05)(H * Dh, D) * ((H * Dh) ** -0.5)),
    }

def reference(x, k_cache, v_cache, wq, wo):
    B, Sq, D = x.shape
    H, Dh = 32, 128
    q = (lambda x, *d: x.permute(*d))((x @ wq).reshape(B, Sq, H, Dh), 0, 2, 1, 3)
    scores = torch.einsum("bhqd,bhkd->bhqk", q, k_cache) * (Dh ** -0.5)
    p = _softmax(scores, axis=-1)
    o = torch.einsum("bhqk,bhkd->bhqd", p, v_cache)
    return (lambda x, *d: x.permute(*d))(o, 0, 2, 1, 3).reshape(B, Sq, H * Dh) @ wo
```

```python
import re

class Asm:
    def __init__(self):
        self.l = []
    def __call__(self, s):
        for x in s.split("\n"):
            x = x.strip()
            if x:
                self.l.append(x)
    def ext(self, lst):
        for x in lst:
            self(x)
    def text(self):
        out = []
        for x in self.l:
            if x.endswith(":") or x.startswith("."):
                out.append(x)
            else:
                out.append("  " + x)
        return "\n".join(out) + "\n"

def vr(base, n=1, f="v"):
    return f"{f}{base}" if n == 1 else f"{f}[{base}:{base+n-1}]"
def ar(base, n=1):
    return vr(base, n, "a")
def sr(base, n=1):
    return vr(base, n, "s")

def kind(x):
    op = x.split()[0]
    if op.startswith("v_mfma"): return "mfma"
    if op.startswith("ds_"): return "ds"
    if op.startswith("buffer_") or op.startswith("global_"): return "vm"
    if op.startswith("v_"): return "valu"
    return "s"

def emit_gaps(a, mfmas, gaps, pre=None):
    for m, g in zip(mfmas, gaps):
        if m: a(m)
        tail = [x[1:] for x in g if x.startswith("!")]
        g = [x for x in g if not x.startswith("!")]
        first = [x for x in g if kind(x) != "valu"]
        rest = [x for x in g if kind(x) == "valu"]
        a.ext(first + rest + tail)

_reg = re.compile(r"\b([vas])(?:(\d+)|\[(\d+):(\d+)\])")
def regs(tok):
    out = set()
    for m in _reg.finditer(tok):
        f = m.group(1)
        if m.group(2) is not None:
            out.add((f, int(m.group(2))))
        else:
            for i in range(int(m.group(3)), int(m.group(4)) + 1):
                out.add((f, i))
    if re.search(r"\bvcc\b", tok): out.add(("s", "vcc"))
    if re.search(r"\bexec\b", tok): out.add(("s", "exec"))
    if re.search(r"\bm0\b", tok): out.add(("s", "m0"))
    return out

TRANS = ("v_exp_", "v_log_", "v_rcp_", "v_rsq_", "v_sqrt_", "v_sin_", "v_cos_")
def parse(x):
    op, _, rest = x.partition(" ")
    ops = [t.strip() for t in rest.split(",")] if rest else []
    k = kind(x)
    rd, wr = set(), set()
    info = dict(op=op, k=k, text=x)
    if k == "mfma":
        wr = regs(ops[0]); info["A"] = regs(ops[1]); info["B"] = regs(ops[2]); info["C"] = regs(ops[3])
        info["D"] = wr; info["Dtok"] = ops[0]; info["Ctok"] = ops[3].split()[0]
        rd = info["A"] | info["B"] | info["C"]
        info["passes"] = 8 if "32x32" in op else (2 if "4x4x4" in op else 4)
    elif k == "ds":
        if "read" in op or "permute" in op or "swizzle" in op or "rtn" in op:
            wr = regs(ops[0]); rd = set().union(*[regs(t) for t in ops[1:]])
        else:
            rd = set().union(*[regs(t) for t in ops])
    elif k == "vm":
        if op in ("buffer_wbl2", "buffer_inv"):
            pass
        elif " lds" in x or "_lds_" in op:
            rd = set().union(*[regs(t) for t in ops]) | {("s", "m0")}
            info["ldsdma"] = True
        elif "load" in op:
            wr = regs(ops[0]); rd = set().union(*[regs(t) for t in ops[1:]])
        elif "atomic" in op and "sc0" in x and op.startswith("global"):
            wr = regs(ops[0]); rd = set().union(*[regs(t) for t in ops[1:]])
        else:
            rd = set().union(*[regs(t) for t in ops])
            if "store" in op and ("x4" in op or "x3" in op):
                info["wide_store"] = regs(ops[0]) if op.startswith("buffer") else regs(ops[1])
    elif k == "valu":
        if op.startswith("v_cmp"):
            wr = regs(ops[0]); rd = set().union(*[regs(t) for t in ops[1:]])
            if op.startswith("v_cmpx"): wr |= {("s", "exec")}
        elif "permlane" in op and "swap" in op:
            wr = regs(ops[0]) | regs(ops[1]); rd = set(wr); info["permlane"] = True
        elif op.startswith("v_readfirstlane") or op.startswith("v_readlane"):
            wr = regs(ops[0]); rd = set().union(*[regs(t) for t in ops[1:]]); info["readlane"] = True
        elif "_co_" in op:
            wr = regs(ops[0]) | regs(ops[1]); rd = set().union(*[regs(t) for t in ops[2:]])
        else:
            wr = regs(ops[0]); rd = set().union(*[regs(t) for t in ops[1:]]) if len(ops) > 1 else set()
            if op.startswith("v_fmac") or op.startswith("v_dot2c") or op.startswith("v_writelane"): rd |= wr
        info["trans"] = op.startswith(TRANS)
        info["dpp"] = "dpp" in x or "row_" in x or "quad_perm" in x
    else:
        if op.startswith("s_cmp") or op.startswith("s_cbranch") or op in ("s_waitcnt", "s_barrier", "s_nop", "s_branch", "s_endpgm", "s_sleep", "s_setprio", "s_setpc_b64"):
            rd = set().union(*[regs(t) for t in ops]) if ops else set()
        else:
            wr = regs(ops[0]) if ops else set()
            rd = set().union(*[regs(t) for t in ops[1:]]) if len(ops) > 1 else set()
            if "saveexec" in op: wr |= {("s", "exec")}
    info["rd"], info["wr"] = rd, wr
    info["ws"] = int(ops[0]) + 1 if op == "s_nop" else 1
    return info

def need(p, c):
    n = 0
    pk, ck = p["k"], c["k"]
    vw = {r for r in p["wr"] if r[0] in "va"}
    sw = {r for r in p["wr"] if r[0] == "s"}
    if pk == "valu":
        if ck == "mfma" and vw & c["rd"]: n = max(n, 2)
        if ck == "mfma" and ("s", "exec") in sw: n = max(n, 4)
        if ck == "valu":
            if p.get("trans") and vw & c["rd"]: n = max(n, 1)
            if c.get("permlane") and vw & c["rd"]: n = max(n, 2)
            if c.get("dpp") and vw & c["rd"]: n = max(n, 2)
            if c.get("readlane") and vw & c["rd"]: n = max(n, 1)
            if sw & c["rd"]: n = max(n, 4 if c.get("readlane") else 2)
            if ("s", "exec") in sw and (c.get("readlane") or c.get("permlane")): n = max(n, 4)
            if ("s", "exec") in sw and c.get("dpp"): n = max(n, 5)
        if ck == "vm" and sw & c["rd"]: n = max(n, 5)
    if pk == "s" and ("s", "m0") in sw and c.get("ldsdma"): n = max(n, 1)
    if p.get("wide_store") and ck in ("valu", "mfma") and p["wide_store"] & c["wr"]: n = max(n, 2)
    if p.get("wide_store") and ck in ("ds", "vm") and p["wide_store"] & c["wr"]: n = max(n, 1)
    if pk == "mfma":
        ps = p["passes"]
        idx = {2: 0, 4: 1, 8: 2}[ps]
        if ck == "mfma":
            if p["D"] & c["C"]:
                if p["Dtok"] == c["Ctok"] and c["passes"] == ps: n = max(n, (2, 0, 0)[idx])
                else: n = max(n, (4, 6, 10)[idx])
            if p["D"] & (c["A"] | c["B"]): n = max(n, (5, 8, 12)[idx])
            if p["D"] & c["D"] and not (p["D"] & c["C"]): n = max(n, (4, 6, 10)[idx])
        else:
            if p["D"] & (c["rd"] | c["wr"]) and ck in ("valu", "ds", "vm"): n = max(n, (5, 8, 12)[idx])
            if ck == "valu" and p["C"] & c["wr"]: n = max(n, (1, 3, 7)[idx])
    return n

def check(lines, name="", follow=None):
    ins = [parse(x) for x in lines if not (x.endswith(":") or x.startswith(".") or x.startswith(";"))]
    bad = 0
    for j, c in enumerate(ins):
        dist = 0
        for i in range(j - 1, max(-1, j - 24), -1):
            p = ins[i]
            n = need(p, c)
            if n > dist:
                print(f"HAZARD[{name}] need {n} have {dist}:\n    {p['text']}\n    {c['text']}")
                bad += 1
            dist += p["ws"]
            if dist >= 20: break
    return bad
```

```python
import sys, math, struct
from asmlib import *

NAME = "standalone__mha_block_cached__near_ridge"
def f32(x): return struct.unpack("<I", struct.pack("<f", x))[0]
MF = "v_mfma_f32_16x16x32_bf16"

class Cfg:
    mapping = "4x8"
    kvflags = "nt"
    oflags = ""
    xflags = ""
    bflags = ""
    orflags = ""
    stamps = False
    qspread = 4
    lthr = 2.0 ** 40
    force_fb = False

O_ = lambda u, dt: 32 + 32 * u + 4 * dt
S_ = lambda u, kt: 160 + 8 * u + 4 * kt
P_ = lambda u: 192 + 4 * u
NM = lambda u: 208 + 4 * u
KRA, VRA, KDA, VDA, MTR = 224, 228, 236, 240, 242
XDA, WDA, XRA, WRA = 160, 168, 172, 178
Q_ = lambda u, m: 16 * u + 4 * m
KF = lambda b, kt, ks: 64 + 32 * b + 16 * kt + 4 * ks
VF = lambda b, dt: 128 + 32 * b + 4 * dt
L_ = lambda u: 192 + 4 * u
ONES = 208
WF = lambda b, dt: 64 + 32 * b + 4 * dt
XF = lambda b, u: 128 + 16 * b + 4 * u
SX, SW, SK, SV, SO, SD = 8, 12, 16, 20, 24, 44
KVBYTES = 262144
XBASE = [(131072, 147456), (65536, 16384), (32768, 49152)]
WWIN = 81920
WOFF = [32768, 0, 16384]

def stamp(a, cfg, i):
    if cfg.stamps:
        a(f"s_memtime s[{60+4*i}:{61+4*i}]")
        a(f"s_memrealtime s[{62+4*i}:{63+4*i}]")

def stamps_out(a, cfg, n, wsoff, lanereg="v1"):
    if not cfg.stamps: return
    a("s_waitcnt lgkmcnt(0)")
    a("s_load_dwordx2 s[48:49], s[0:1], 56")
    a("s_waitcnt lgkmcnt(0)")
    a(f"s_add_u32 s48, s48, {wsoff}")
    a("s_addc_u32 s49, s49, 0")
    a("s_mov_b32 s50, 0x100000")
    a("s_mov_b32 s51, 0x20000")
    a("s_lshl_b32 s52, s2, 2")
    a("s_add_u32 s52, s52, s3")
    a("s_lshl_b32 s52, s52, 7")
    a("v_mov_b32 v6, s52")
    a(f"v_cmp_eq_u32 vcc, 0, {lanereg}")
    a("s_and_saveexec_b64 s[54:55], vcc")
    for i in range(n):
        a(f"v_mov_b32 v4, s{60+4*i}")
        a(f"v_mov_b32 v5, s{62+4*i}")
        a(f"buffer_store_dwordx2 v[4:5], v6, s[48:51], 0 offen offset:{8*i}")
        a("s_nop 1")
    a("s_getreg_b32 s53, hwreg(HW_REG_XCC_ID)")
    a("v_mov_b32 v4, s53")
    a(f"buffer_store_dword v4, v6, s[48:51], 0 offen offset:120")
    a("s_mov_b64 exec, s[54:55]")

def srd(a, s, plo, off_s, size):
    if off_s is None:
        a(f"s_mov_b32 s{s}, s{plo}")
        a(f"s_mov_b32 s{s+1}, s{plo+1}")
    else:
        a(f"s_add_u32 s{s}, s{plo}, {off_s}")
        a(f"s_addc_u32 s{s+1}, s{plo+1}, 0")
    a(f"s_mov_b32 s{s+2}, {size}")
    a(f"s_mov_b32 s{s+3}, 0x20000")

def dma(vaddr, sdesc, soff, imm, flags=""):
    o = f" offset:{imm}" if imm else ""
    f = f" {flags}" if flags else ""
    return f"buffer_load_dwordx4 v{vaddr}, s[{sdesc}:{sdesc+3}], {soff} offen{o}{f} lds"

def kdma(cfg, slot):
    return [f"s_add_u32 m0, s40, {16384*slot}"] + [dma(KDA + pp, SK, "s33", 1024 * pp, cfg.kvflags) for pp in range(4)]
def vdma(cfg, slot):
    return [f"s_add_u32 m0, s40, {65536+16384*slot}"] + [dma(VDA + (pp & 1), SV, "s33", 1024 * pp, cfg.kvflags) for pp in range(4)]
def kv_advance():
    return ["s_add_u32 s33, s33, 16384", f"s_cmp_lt_u32 s33, {KVBYTES}", f"s_cselect_b32 s{SK+2}, {KVBYTES}, 0", f"s_mov_b32 s{SV+2}, s{SK+2}"]
def kread(buf, slot, th, kt, ks):
    return f"ds_read_b128 {ar(KF(buf,kt,ks),4)}, v{KRA+ks} offset:{16384*slot+8192*th+4096*kt}"
def vread(buf, slot, th, dt, e):
    return f"ds_read_b64_tr_b16 {ar(VF(buf,dt)+2*e,2)}, v{VRA+dt} offset:{16384*slot+8192*th+4096*e}"

def qk(u, kb, czero=False):
    m = []
    for kt in range(2):
        d = vr(S_(u, kt), 4)
        for ks in range(4):
            c = ("0" if czero else vr(NM(u), 4)) if ks == 0 else d
            m.append(f"{MF} {d}, {ar(KF(kb,kt,ks),4)}, {ar(Q_(u,ks),4)}, {c}")
    return m
def pv(u, vb, czero=False):
    m = []
    for dt in range(8):
        d = vr(O_(u, dt), 4)
        m.append(f"{MF} {d}, {ar(VF(vb,dt),4)}, {vr(P_(u),4)}, {'0' if czero else d}")
    d = ar(L_(u), 4)
    m.append(f"{MF} {d}, {ar(ONES,4)}, {vr(P_(u),4)}, {'0' if czero else d}")
    return m
def sm_half(gaps, g0, u, kt):
    s = S_(u, kt)
    for r in range(4):
        gaps[g0 + 2 * r].append(f"v_exp_f32 v{s+r}, v{s+r}")
        if r & 1:
            gaps[g0 + 2 * r + 1].append(f"v_cvt_pk_bf16_f32 v{P_(u)+2*kt+r//2}, v{s+r-1}, v{s+r}")

def attn_tile(cfg, j):
    kb = vb = j & 1
    slot, th = (j >> 1) & 3, j & 1
    nslot, nth = ((j + 1) >> 1) & 3, (j + 1) & 1
    groups = [qk(0, kb), pv(2, vb ^ 1), qk(1, kb), pv(3, vb ^ 1), qk(2, kb), pv(0, vb), qk(3, kb), pv(1, vb)]
    st = [0]
    for g in groups: st.append(st[-1] + len(g))
    mf = sum(groups, [])
    gaps = [[] for _ in mf]
    sm_half(gaps, st[0], 3, 1)
    for u in range(3):
        sm_half(gaps, st[2 * u + 1], u, 0)
        sm_half(gaps, st[2 * u + 2], u, 1)
    sm_half(gaps, st[7], 3, 0)
    vr_ = [vread(vb, slot, th, dt, e) for dt in range(8) for e in range(2)]
    pos = []
    for g in range(3):
        pos += [st[g] + 1, st[g] + 1, st[g] + 3, st[g] + 5, st[g] + 5, st[g] + 7]
        if g & 1: pos += [st[g] + 8]
    pos = pos[:16]
    for p, r in zip(pos, vr_): gaps[p].append(r)
    mid = st[4] - 1
    if j & 1:
        gaps[mid] += ["s_waitcnt vmcnt(16) lgkmcnt(0)", "s_barrier"]
    else:
        gaps[mid] += ["s_waitcnt lgkmcnt(0)"]
    kr_ = [kread(kb ^ 1, nslot, nth, kt, ks) for kt in range(2) for ks in range(4)]
    pos = [st[4] + 1, st[4] + 3, st[4] + 5, st[4] + 7, st[5] + 3, st[5] + 7, st[5] + 8, st[6] + 3]
    for p, r in zip(pos, kr_): gaps[p].append(r)
    gaps[st[8] - 2].append("s_waitcnt lgkmcnt(0)")
    if j & 1:
        d = kdma(cfg, slot)
        gaps[st[4]].append(d[0])
        for p, x in zip([st[5] + 1, st[5] + 5, st[6] + 1, st[6] + 5], d[1:]): gaps[p].append(x)
    else:
        d = vdma(cfg, (slot - 1) & 3)
        gaps[st[3]].append(d[0])
        for p, x in zip([st[3] + 1, st[3] + 5, st[5] + 1, st[5] + 5], d[1:]): gaps[p].append(x)
        adv = kv_advance()
        for p, x in zip([st[6], st[6] + 2, st[6] + 4, st[6] + 6], adv): gaps[p].append(x)
    return mf, gaps

def rowmax(a, t, t2):
    a(f"v_mov_b32 v{t2}, v{t}")
    a("s_nop 1")
    a(f"v_permlane32_swap_b32 v{t}, v{t2}")
    a(f"v_max_f32 v{t}, v{t}, v{t2}")
    a(f"v_mov_b32 v{t2}, v{t}")
    a("s_nop 1")
    a(f"v_permlane16_swap_b32 v{t}, v{t2}")
    a(f"v_max_f32 v{t}, v{t}, v{t2}")

def gen_attn(cfg, name):
    a = Asm()
    a(f"s_cmp_ge_u32 s2, 256")
    a("s_cbranch_scc1 L_a_end")
    stamp(a, cfg, 0)
    a("s_load_dwordx4 s[4:7], s[0:1], 0")
    a("s_load_dwordx4 s[44:47], s[0:1], 16")
    a("s_load_dwordx2 s[48:49], s[0:1], 56")
    a("v_and_b32 v1, 63, v0")
    a("v_lshrrev_b32 v2, 6, v0")
    a("s_and_b32 s50, s2, 7")
    a("v_readfirstlane_b32 s3, v2")
    a("s_lshr_b32 s51, s2, 3")
    if cfg.mapping == "4x8":
        a("s_and_b32 s28, s50, 1")
        a("s_lshl_b32 s28, s28, 2")
        a("s_and_b32 s52, s51, 3")
        a("s_add_u32 s28, s28, s52")
        a("s_lshr_b32 s29, s50, 1")
        a("s_lshl_b32 s29, s29, 3")
        a("s_lshr_b32 s53, s51, 2")
        a("s_add_u32 s29, s29, s53")
        a("s_mul_i32 s52, s52, 5")
        a("s_lshr_b32 s52, s52, 1")
        a("s_add_u32 s32, s52, s53")
    else:
        a("s_mov_b32 s28, s50")
        a("s_mov_b32 s29, s51")
        a("s_mul_i32 s52, s50, 5")
        a("s_lshr_b32 s52, s52, 2")
        a("s_and_b32 s53, s51, 3")
        a("s_add_u32 s32, s52, s53")
    a("s_cmp_ge_u32 s32, 10")
    a("s_cselect_b32 s52, 10, 0")
    a("s_sub_u32 s32, s32, s52")
    a("s_lshl_b32 s30, s32, 7")
    a("s_lshl_b32 s31, s32, 19")
    a("s_lshl_b32 s40, s3, 12")
    a("s_mov_b32 s33, s40")
    a("s_add_u32 s39, s40, %d" % WWIN)
    a("s_and_b32 s52, s3, 1")
    a("s_lshl_b32 s52, s52, 13")
    a("s_cmp_ge_u32 s3, 2")
    for bf in range(3):
        a(f"s_mov_b32 s53, {XBASE[bf][0]}")
        a(f"s_cselect_b32 s{36+bf}, {XBASE[bf][1]}, s53")
    for bf in range(3):
        a(f"s_add_u32 s{36+bf}, s{36+bf}, s52")
    a("s_mov_b32 s35, 0")
    a("v_and_b32 v2, 15, v1")
    a("v_lshrrev_b32 v3, 4, v1")
    a("v_lshrrev_b32 v4, 3, v1")
    a("v_and_b32 v5, 7, v1")
    a("v_bfe_u32 v6, v1, 2, 2")
    a("v_and_b32 v7, 3, v1")
    a("s_mul_i32 s52, s3, %d" % (64 * 1280))
    for pp in range(8):
        a(f"v_add_u32 v8, {8*pp}, v4")
        a("v_bfe_u32 v9, v8, 1, 3")
        a("v_xor_b32 v9, v9, v5")
        a("v_lshlrev_b32 v9, 4, v9")
        a("v_mul_u32_u24 v8, 1280, v8")
        a("v_add3_u32 v8, v8, v9, s52")
        a(f"v_subrev_u32 v{XDA+pp}, {1024*(pp&3)}, v8")
    a("s_lshl_b32 s52, s3, 17")
    for pp in range(4):
        a(f"v_or_b32 v9, {4*(pp>>1)}, v3")
        a("v_lshlrev_b32 v9, 1, v9")
        a("v_xor_b32 v9, v9, v2")
        a("v_lshlrev_b32 v9, 4, v9")
        a(f"v_add_u32 v8, {4*pp}, v3")
        a("v_lshlrev_b32 v8, 13, v8")
        a("v_add3_u32 v8, v8, v9, s52")
        a(f"v_subrev_u32 v{WDA+pp}, {1024*pp}, v8")
    a("v_lshlrev_b32 v10, 8, v3")
    for pp in range(4):
        a(f"v_add_u32 v9, {4*pp}, v3")
        a("v_xor_b32 v9, v9, v2")
        a(f"v_lshl_add_u32 v{KDA+pp}, v9, 4, v10")
    for pp in range(2):
        a(f"v_add_u32 v9, {4*pp}, v3")
        a("v_lshlrev_b32 v9, 1, v9")
        a("v_xor_b32 v9, v9, v2")
        a(f"v_lshl_add_u32 v{VDA+pp}, v9, 4, v10")
    a("s_waitcnt lgkmcnt(0)")
    a("s_mul_i32 s52, s28, 307200")
    srd(a, SX, 4, "s52", 307200)
    a("s_lshl_b32 s52, s29, 8")
    srd(a, SW, 46, "s52", 640 * 8192 - 31 * 256)
    a("s_lshl_b32 s52, s28, 5")
    a("s_add_u32 s52, s52, s29")
    a("s_lshl_b32 s52, s52, 18")
    srd(a, SK, 6, "s52", KVBYTES)
    srd(a, SV, 44, "s52", KVBYTES)
    a("s_mul_i32 s52, s28, %d" % (15 * 131072))
    srd(a, SO, 48, "s52", 15 * 131072)

    def qstage(bf):
        o = [f"s_mov_b32 m0, s{36+bf}"]
        o += [dma(XDA + pp, SX, "s30", 1024 * pp, cfg.xflags) for pp in range(4)]
        o += [f"s_add_u32 m0, s{36+bf}, 4096"]
        o += [dma(XDA + 4 + pp, SX, "s30", 1024 * pp, cfg.xflags) for pp in range(4)]
        o += [f"s_add_u32 m0, s39, {WOFF[bf]}"]
        o += [dma(WDA + pp, SW, "s31", 1024 * pp, cfg.xflags) for pp in range(4)]
        o += ["s_add_u32 s32, s32, 1", "s_cmp_eq_u32 s32, 10", "s_cselect_b32 s32, 0, s32", "s_lshl_b32 s30, s32, 7", "s_lshl_b32 s31, s32, 19"]
        return o
    def with_nop(lst):
        o = []
        for x in lst:
            o.append(x)
            if "m0," in x: o.append("s_nop 0")
        return o
    for bf in range(3):
        a.ext(with_nop(qstage(bf)))
    a.ext(with_nop(kdma(cfg, 0)))
    a("v_lshrrev_b32 v9, 1, v2")
    for s in range(2):
        a(f"v_or_b32 v8, {4*s}, v3")
        a("v_xor_b32 v8, v8, v9")
        a("v_lshlrev_b32 v8, 4, v8")
        a("v_lshl_add_u32 v8, v2, 7, v8")
        for bf in range(3):
            a(f"v_add_u32 v{XRA+2*bf+s}, s{36+bf}, v8")
    a("v_and_b32 v9, 1, v3")
    a("v_lshl_or_b32 v9, v9, 2, v6")
    a("v_lshlrev_b32 v9, 1, v9")
    a("v_lshrrev_b32 v11, 1, v7")
    a("v_and_b32 v12, 1, v7")
    a("v_lshlrev_b32 v12, 3, v12")
    a("v_lshl_add_u32 v13, v3, 3, v6")
    a("v_lshl_add_u32 v13, v13, 8, v12")
    a(f"v_add_u32 v13, {WWIN}, v13")
    a("v_lshl_add_u32 v14, v3, 2, v6")
    a("v_lshl_add_u32 v14, v14, 8, v12")
    a(f"v_add_u32 v14, 65536, v14")
    for dt in range(8):
        a(f"v_xor_b32 v8, {2*dt}, v9")
        a("v_or_b32 v8, v8, v11")
        a(f"v_lshl_add_u32 v{WRA+dt}, v8, 4, v13")
        a(f"v_lshl_add_u32 v{VRA+dt}, v8, 4, v14")
    for ks in range(4):
        a(f"v_or_b32 v8, {4*ks}, v3")
        a("v_xor_b32 v8, v8, v2")
        a("v_lshlrev_b32 v8, 4, v8")
        a(f"v_lshl_add_u32 v{KRA+ks}, v2, 8, v8")
    a("v_mov_b32 v8, 0x3f803f80")
    for i in range(4):
        a(f"v_accvgpr_write_b32 a{ONES+i}, v8")
        a(f"v_mov_b32 v{MTR+i}, 0xff800000")
    a("v_lshlrev_b32 v15, 4, v1")

    def qreads(t):
        c, s = t >> 1, t & 1
        bf, rb = c % 3, t & 1
        o = []
        for u in range(4):
            o.append(f"ds_read_b128 {ar(XF(rb,u),4)}, v{XRA+2*bf+s} offset:{2048*u}")
            for dt in (2 * u, 2 * u + 1):
                for e in range(2):
                    o.append(f"ds_read_b64_tr_b16 {ar(WF(rb,dt)+2*e,2)}, v{WRA+dt} offset:{WOFF[bf]+8192*s+1024*e}")
        return o
    a("s_waitcnt vmcnt(28)")
    a("s_barrier")
    stamp(a, cfg, 1)
    a.ext(qreads(0))
    a("s_waitcnt lgkmcnt(0)")
    pend = []
    for t in range(20):
        rb = t & 1
        mf = []
        for u in range(4):
            for dt in range(8):
                d = vr(O_(u, dt), 4)
                mf.append(f"{MF} {d}, {ar(WF(rb,dt),4)}, {ar(XF(rb,u),4)}, {'0' if t == 0 else d}")
        gaps = [[] for _ in mf]
        if t < 19:
            for i, r in enumerate(qreads(t + 1)): gaps[i + 1].append(r)
        if t & 1:
            c = t >> 1
            assert not pend
            if c + 3 < 10: pend = qstage(c % 3)
            elif c == 7: pend = vdma(cfg, 0) + ["s_add_u32 s33, s33, 16384"] + kdma(cfg, 1) + vdma(cfg, 1) + ["s_add_u32 s33, s33, 16384"]
            elif c == 8: pend = kdma(cfg, 2) + vdma(cfg, 2) + ["s_add_u32 s33, s33, 16384"]
        g = 0
        while pend and g < 30:
            x = pend.pop(0)
            gaps[g].append(x)
            if kind(x) == "vm": g += cfg.qspread - (1 if pend and kind(pend[0]) == "s" else 0)
            else: g += 1
        if t == 19: assert not pend
        if t < 19:
            if t & 1:
                gaps[31].append("s_waitcnt lgkmcnt(0)")
            else:
                assert not pend, t
                c = t >> 1
                if c + 1 < 10:
                    n = 16 if c + 1 in (1, 2) else 12
                    gaps[31] += [f"s_waitcnt vmcnt({n}) lgkmcnt(0)", "s_barrier"]
                else:
                    gaps[31].append("s_waitcnt lgkmcnt(0)")
        emit_gaps(a, mf, gaps)
    stamp(a, cfg, 2)
    sc = f32(math.log2(math.e) / math.sqrt(128.0))
    a(f"s_mov_b32 s52, {sc}")
    a(f"s_mov_b32 s53, {sc}")
    a("s_nop 4")
    for u in range(4):
        for m in range(4):
            t = 16 + 4 * (m & 1)
            b0 = O_(u, 2 * m)
            for i in range(4):
                a(f"v_pk_mul_f32 {vr(b0+2*i,2)}, {vr(b0+2*i,2)}, s[52:53]")
            for i in range(4):
                a(f"v_cvt_pk_bf16_f32 v{t+i}, v{b0+2*i}, v{b0+2*i+1}")
            a("s_nop 0")
            a(f"v_permlane32_swap_b32 v{t}, v{t+2}")
            a(f"v_permlane32_swap_b32 v{t+1}, v{t+3}")
            a("s_nop 0")
            a(f"v_permlane16_swap_b32 v{t}, v{t+2}")
            a(f"v_permlane16_swap_b32 v{t+1}, v{t+3}")
            for i in range(4):
                a(f"v_accvgpr_write_b32 a{Q_(u,m)+i}, v{t+i}")
    a("L_attn:")
    a("s_waitcnt vmcnt(16)")
    a("s_barrier")
    stamp(a, cfg, 3)
    for kt in range(2):
        for ks in range(4): a(kread(0, 0, 0, kt, ks))
    for dt in range(8):
        for e in range(2): a(vread(0, 0, 0, dt, e))
    a.ext(with_nop(kdma(cfg, 3) + vdma(cfg, 3)) + kv_advance())
    for u in (2, 3):
        for i in range(32): a(f"v_mov_b32 v{O_(u,0)+i}, 0")
        for i in range(4): a(f"v_accvgpr_write_b32 a{L_(u)+i}, 0")
    a("s_waitcnt lgkmcnt(0)")
    kr1 = [kread(1, 0, 1, kt, ks) for kt in range(2) for ks in range(4)]
    mf = sum([qk(u, 0, True) for u in range(4)], [])
    gaps = [[] for _ in mf]
    for i, r in enumerate(kr1): gaps[2 * i].append(r)
    emit_gaps(a, mf, gaps)
    for u in range(4):
        s0 = S_(u, 0)
        if u == 3: pass
        a(f"v_max3_f32 v16, v{s0}, v{s0+1}, v{s0+2}")
        a(f"v_max3_f32 v16, v16, v{s0+3}, v{s0+4}")
        a(f"v_max3_f32 v16, v16, v{s0+5}, v{s0+6}")
        a(f"v_max3_f32 v16, v16, v{s0+7}, v{MTR+u}")
        rowmax(a, 16, 17)
        for i in range(4): a(f"v_sub_f32 v{NM(u)+i}, 0, v16")
        nexp = 8 if u < 3 else 4
        for r in range(8): a(f"v_sub_f32 v{s0+r}, v{s0+r}, v16")
        for r in range(nexp): a(f"v_exp_f32 v{s0+r}, v{s0+r}")
        a("s_nop 0")
        for r in range(0, nexp, 2): a(f"v_cvt_pk_bf16_f32 v{P_(u)+r//2}, v{s0+r}, v{s0+r+1}")
        if u < 2:
            a("s_nop 1")
            a.ext(pv(u, 0, True))
    a("s_waitcnt lgkmcnt(0)")
    a("s_mov_b32 s34, 4")
    a(".p2align 6")
    a("L_loop:")
    body0 = len(a.l)
    for j in range(1, 9):
        mf, gaps = attn_tile(cfg, j)
        if j == 7:
            gaps[-3].append("s_sub_u32 s34, s34, 1")
            gaps[-1] += ["s_cmp_eq_u32 s34, 0", "s_cbranch_scc1 L_done"]
        if j == 8:
            gaps[-1].append("s_branch L_loop")
        emit_gaps(a, mf, gaps)
        if j == 7: cut7 = len(a.l)
    body = a.l[body0:]
    a("L_done:")
    tail0 = len(a.l)
    stamp(a, cfg, 4)
    mf = pv(2, 1)
    gaps = [[] for _ in mf]
    sm_half(gaps, 0, 3, 1)
    emit_gaps(a, mf, gaps)
    a("s_nop 1")
    a.ext(pv(3, 1))
    a(f"s_mov_b32 s52, {f32(cfg.lthr)}")
    a("s_mov_b64 s[54:55], 0")
    a("s_lshl_b32 s56, s3, 19")
    a("s_lshl_b32 s57, s29, 12")
    a("s_add_u32 s56, s56, s57")
    for u in range(4):
        if u == 3: a("s_nop 7")
        a(f"v_accvgpr_read_b32 v16, a{L_(u)}")
        a("s_nop 0")
        a(f"v_cmp_nlt_f32 vcc, v16, s52" if False else f"v_cmp_ngt_f32 vcc, s52, v16")
        a("v_rcp_f32 v16, v16")
        a("s_or_b64 s[54:55], s[54:55], vcc")
        a("v_mov_b32 v17, v16")
        for m in range(4):
            t = 20 + 4 * (m & 1)
            b0 = O_(u, 2 * m)
            for i in range(4):
                a(f"v_pk_mul_f32 {vr(b0+2*i,2)}, {vr(b0+2*i,2)}, v[16:17]")
            for i in range(4):
                a(f"v_cvt_pk_bf16_f32 v{t+i}, v{b0+2*i}, v{b0+2*i+1}")
            a(f"buffer_store_dwordx4 {vr(t,4)}, v15, s[{SO}:{SO+3}], s56 offen offset:{1024*m} {cfg.oflags}".rstrip())
        a("s_add_u32 s56, s56, 131072")
    if cfg.force_fb:
        a("s_mov_b64 s[54:55], -1")
    a("s_cmp_lg_u64 s[54:55], 0")
    a("s_cselect_b32 s52, 1, 0")
    a("s_lshl_b32 s53, s3, 2")
    a("s_add_u32 s53, s53, 131072")
    a("v_mov_b32 v16, s52")
    a("v_mov_b32 v17, s53")
    a("v_mov_b32 v18, 131072")
    a("ds_write_b32 v17, v16")
    a("s_waitcnt lgkmcnt(0)")
    a("s_barrier")
    a("ds_read_b128 v[20:23], v18")
    a("s_waitcnt lgkmcnt(0)")
    a("v_or3_b32 v20, v20, v21, v22")
    a("v_or_b32 v20, v20, v23")
    a("s_nop 0")
    a("v_readfirstlane_b32 s52, v20")
    a("s_nop 3")
    a("s_andn2_b32 s52, s52, s35")
    a("s_cmp_lg_u32 s52, 0")
    a("s_cbranch_scc1 L_exact")
    stamp(a, cfg, 5)
    if cfg.stamps:
        a("s_waitcnt vmcnt(0)")
        stamp(a, cfg, 6)
        stamps_out(a, cfg, 7, 64 << 20)
    a("L_a_end:")
    a("s_endpgm")
    tail = a.l[tail0:]
    a("L_exact:")
    ex0 = len(a.l)
    a("s_mov_b32 s35, 1")
    a(f"s_mov_b32 s{SK+2}, {KVBYTES}")
    a(f"s_mov_b32 s{SV+2}, {KVBYTES}")
    a("s_mov_b32 s33, s40")
    a("s_waitcnt vmcnt(0)")
    a("L_exact_loop:")
    a("s_barrier")
    a.ext(with_nop(kdma(cfg, 0)))
    a("s_add_u32 s33, s33, 16384")
    a("s_waitcnt vmcnt(0)")
    a("s_barrier")
    for th in range(2):
        for kt in range(2):
            for ks in range(4): a(kread(0, 0, th, kt, ks))
        a("s_waitcnt lgkmcnt(0)")
        for u in range(4): a.ext(qk(u, 0, True))
        a("s_nop 7")
        for u in range(4):
            s0 = S_(u, 0)
            for r in range(0, 8, 2):
                a(f"v_max3_f32 v{MTR+u}, v{MTR+u}, v{s0+r}, v{s0+r+1}")
    a(f"s_cmp_lt_u32 s33, {KVBYTES}")
    a("s_cbranch_scc1 L_exact_loop")
    a("s_barrier")
    a("s_mov_b32 s33, s40")
    for sg in range(3):
        a.ext(with_nop(kdma(cfg, sg) + vdma(cfg, sg)))
        a("s_add_u32 s33, s33, 16384")
    a("s_branch L_attn")
    bad = check(a.l[:body0] + body[:], "attn-main") + check(body + body, "attn-loop") + check(body[:cut7 - body0] + tail, "attn-tail") + check(a.l[ex0:] + a.l[ex0:], "exact")
    assert bad == 0
    return a

def gen_oproj(cfg, name):
    a = Asm()
    ACC = lambda i, nt: 16 + 16 * i + 4 * nt
    OF = lambda sl, i: 20 * sl + 4 * i
    WF2 = lambda b, nt: 160 + 16 * b + 4 * nt
    WD, WR = 96, 100
    DEPTH = 6
    a("s_cmp_ge_u32 s2, 240")
    a("s_cbranch_scc1 L_b_end")
    stamp(a, cfg, 0)
    a("s_load_dwordx4 s[4:7], s[0:1], 32")
    a("s_load_dwordx2 s[48:49], s[0:1], 56")
    a("v_and_b32 v1, 63, v0")
    a("v_lshrrev_b32 v2, 6, v0")
    a("s_and_b32 s28, s2, 7")
    a("v_readfirstlane_b32 s3, v2")
    a("s_lshr_b32 s51, s2, 3")
    a("s_mul_i32 s29, s51, 26")
    a("s_lshr_b32 s29, s29, 8")
    a("s_mul_i32 s52, s29, 10")
    a("s_sub_u32 s30, s51, s52")
    a("v_and_b32 v2, 15, v1")
    a("v_lshrrev_b32 v3, 4, v1")
    a("v_lshrrev_b32 v4, 3, v1")
    a("v_and_b32 v5, 7, v1")
    a("v_bfe_u32 v6, v1, 2, 2")
    a("v_and_b32 v7, 3, v1")
    a("v_lshlrev_b32 v9, 1, v3")
    a("v_xor_b32 v9, v9, v5")
    a("v_lshlrev_b32 v9, 4, v9")
    a("v_mul_u32_u24 v8, 1280, v4")
    a("v_add_u32 v8, v8, v9")
    for pp in range(4):
        a(f"v_add_u32 v{WD+pp}, {pp*9216}, v8")
    a("s_mul_i32 s40, s3, 40960")
    a("v_lshl_add_u32 v10, v3, 2, v6")
    a("v_bfe_u32 v9, v10, 1, 2")
    a("v_lshlrev_b32 v9, 1, v9")
    a("v_lshrrev_b32 v11, 1, v7")
    a("v_and_b32 v12, 1, v7")
    a("v_lshlrev_b32 v12, 3, v12")
    a("v_lshl_add_u32 v12, v10, 7, v12")
    a("v_add_u32 v12, s40, v12")
    for nt in range(4):
        a(f"v_xor_b32 v8, {2*nt}, v9")
        a("v_or_b32 v8, v8, v11")
        a(f"v_lshl_add_u32 v{WR+nt}, v8, 4, v12")
    a("v_lshlrev_b32 v15, 4, v1")
    for i in range(5):
        a(f"v_add_u32 v{104+i}, {131072*i}, v15")
    a("s_waitcnt lgkmcnt(0)")
    a("s_mul_i32 s52, s3, %d" % (1024 * 1280))
    a("s_lshl_b32 s53, s30, 7")
    a("s_add_u32 s52, s52, s53")
    srd(a, 8, 4, "s52", 1024 * 1280 - 9 * 128)
    a("s_mul_i32 s52, s28, 15")
    a("s_mul_i32 s53, s29, 5")
    a("s_add_u32 s52, s52, s53")
    a("s_lshl_b32 s52, s52, 17")
    a("s_lshl_b32 s53, s3, 15")
    a("s_add_u32 s52, s52, s53")
    srd(a, 12, 48, "s52", 4 * 131072 + 32768)
    a("s_mul_i32 s52, s28, 240")
    a("s_mul_i32 s53, s29, 80")
    a("s_add_u32 s52, s52, s53")
    a("s_mul_i32 s52, s52, 1280")
    a("s_lshl_b32 s53, s30, 7")
    a("s_add_u32 s52, s52, s53")
    srd(a, 16, 6, "s52", 79 * 1280 + 128)
    a("s_mov_b32 s33, 0")
    a("s_mov_b32 s34, 0")
    def stage(sl):
        o = [f"s_add_u32 m0, s40, {4096*sl}", "s_nop 0"]
        o += [dma(WD + pp, 8, "s33", 1024 * pp, cfg.bflags) for pp in range(4)]
        o += [f"buffer_load_dwordx4 {ar(OF(sl,i),4)}, v{104+i}, s[12:15], s34 offen {cfg.orflags}".rstrip() for i in range(5)]
        o += ["s_add_u32 s33, s33, 40960", "s_add_u32 s34, s34, 1024", "s_cmp_lt_u32 s34, 32768", f"s_cselect_b32 s10, {1024*1280-9*128}, 0", f"s_cselect_b32 s14, {4*131072+32768}, 0"]
        return o
    def wreads(sl, b):
        return [f"ds_read_b64_tr_b16 {ar(WF2(b,nt)+2*e,2)}, v{WR+nt} offset:{4096*sl+2048*e}" for nt in range(4) for e in range(2)]
    for sl in range(DEPTH + 1):
        a.ext(stage(sl))
    for i in range(80): a(f"v_mov_b32 v{16+i}, 0")
    a(f"s_waitcnt vmcnt({9*DEPTH})")
    stamp(a, cfg, 1)
    a.ext(wreads(0, 0))
    a("s_mov_b32 s35, 4")
    a(".p2align 6")
    a("L_b_loop:")
    b0 = len(a.l)
    for t in range(8):
        mf = []
        for i in range(5):
            for nt in range(4):
                d = vr(ACC(i, nt), 4)
                mf.append(f"{MF} {d}, {ar(WF2(t&1,nt),4)}, {ar(OF(t,i),4)}, {d}")
        gaps = [[] for _ in mf]
        a(f"s_waitcnt vmcnt({9*(DEPTH-1)}) lgkmcnt(0)")
        for i, r in enumerate(wreads((t + 1) & 7, (t + 1) & 1)): gaps[i].append(r)
        st = [x for x in stage((t + DEPTH + 1) & 7) if x != "s_nop 0"]
        g = 4
        for x in st:
            gaps[g].append(x)
            g += 1
        if t == 7:
            gaps[19] += ["s_sub_u32 s35, s35, 1", "s_cmp_lg_u32 s35, 0", "s_cbranch_scc1 L_b_loop"]
        emit_gaps(a, mf, gaps)
    body = a.l[b0:]
    stamp(a, cfg, 2)
    a("s_waitcnt vmcnt(0) lgkmcnt(0)")
    a("s_barrier")
    a("s_mul_i32 s52, s3, 20480")
    a("v_add_u32 v8, s52, v15")
    for i in range(5):
        for nt in range(4):
            a(f"ds_write_b128 v8, {vr(ACC(i,nt),4)} offset:{1024*(4*i+nt)}")
    a("s_lshl_b32 s52, s3, 10")
    a("v_add_u32 v8, s52, v15")
    a("v_add_u32 v9, 40960, v8")
    a("s_waitcnt lgkmcnt(0)")
    a("s_barrier")
    for i in range(5):
        for w in range(4):
            a(f"ds_read_b128 {vr(16+16*i+4*w,4)}, v{8+(w>>1)} offset:{20480*(w&1)+4096*i}")
    a("v_mul_u32_u24 v10, 1280, v2")
    a("v_lshl_add_u32 v10, v3, 3, v10")
    a("s_lshl_b32 s52, s3, 5")
    for i in range(5):
        a(f"s_waitcnt lgkmcnt({min(15, 4*(4-i))})")
        b = 16 + 16 * i
        for r in range(0, 4, 2):
            a(f"v_pk_add_f32 {vr(b+r,2)}, {vr(b+r,2)}, {vr(b+4+r,2)}")
            a(f"v_pk_add_f32 {vr(b+8+r,2)}, {vr(b+8+r,2)}, {vr(b+12+r,2)}")
        for r in range(0, 4, 2):
            a(f"v_pk_add_f32 {vr(b+r,2)}, {vr(b+r,2)}, {vr(b+8+r,2)}")
        a(f"v_cvt_pk_bf16_f32 v{b}, v{b}, v{b+1}")
        a(f"v_cvt_pk_bf16_f32 v{b+1}, v{b+2}, v{b+3}")
        a(f"buffer_store_dwordx2 {vr(b,2)}, v10, s[16:19], s52 offen")
        a("s_add_u32 s52, s52, %d" % (16 * 1280))
    if cfg.stamps:
        a("s_waitcnt vmcnt(0)")
        stamp(a, cfg, 3)
        stamps_out(a, cfg, 4, 65 << 20)
    a("L_b_end:")
    a("s_endpgm")
    bad = check(a.l, "oproj") + check(body + body, "oproj-loop")
    assert bad == 0
    return a

HEAD = open(__file__.replace("gen.py", "../cdna_kernels/" + NAME + ".s.ref")).read().split("; Override launch")[0] if False else None

def kd(name, vg=512, acc=256):
    return f""".amdhsa_kernel {name}
  .amdhsa_next_free_vgpr {vg}
  .amdhsa_next_free_sgpr 102
  .amdhsa_accum_offset {acc}
  .amdhsa_group_segment_fixed_size 0
  .amdhsa_kernarg_size 64
  .amdhsa_user_sgpr_count 2
  .amdhsa_user_sgpr_kernarg_segment_ptr 1
  .amdhsa_system_sgpr_workgroup_id_x 1
.end_amdhsa_kernel
"""

def build(cfg):
    k1, k2 = NAME + "_kernel", "oproj_kernel"
    out = []
    out.append(f"; @launch kernel={k1} grid=(256,1,1) block=(256,1,1) lds=163840")
    out.append(f"; @launch kernel={k2} grid=(240,1,1) block=(256,1,1) lds=163840")
    out.append('.amdgcn_target "amdgcn-amd-amdhsa--gfx950"')
    out.append(".text")
    for k, g in ((k1, gen_attn), (k2, gen_oproj)):
        out.append(f".globl {k}\n.p2align 8\n.type {k},@function\n{k}:")
        out.append(g(cfg, k).text())
    out.append('.section .rodata,"a"')
    for k in (k1, k2):
        out.append(".p2align 6\n" + kd(k))
    return "\n".join(out)

if __name__ == "__main__":
    cfg = Cfg()
    path = sys.argv[1]
    for kv in sys.argv[2:]:
        k, v = kv.split("=", 1)
        old = getattr(cfg, k)
        setattr(cfg, k, type(old)(eval(v)) if isinstance(old, (bool, int, float)) else v)
    open(path, "w").write(build(cfg))
```

```python
import sys, math, struct
from asmlib import *

NAME = "standalone__mha_block_cached__near_ridge"
def f32(x): return struct.unpack("<I", struct.pack("<f", x))[0]
MF = "v_mfma_f32_16x16x32_bf16"

class Cfg:
    mapping = "4x8"
    kvflags = "nt"
    oflags = ""
    xflags = ""
    bflags = ""
    orflags = ""
    stamps = False
    qspread = 4
    lthr = 2.0 ** 40
    force_fb = False
    calib = 0

O_ = lambda u, dt: 32 + 32 * u + 4 * dt
S_ = lambda u, kt: 160 + 8 * u + 4 * kt
P_ = lambda u: 192 + 4 * u
NM = lambda u: 208 + 4 * u
KRA, VRA, KDA, VDA, MTR = 224, 228, 236, 240, 242
XDA, WDA, XRA, WRA = 160, 168, 172, 178
Q_ = lambda u, m: 16 * u + 4 * m
KF = lambda b, kt, ks: 64 + 32 * b + 16 * kt + 4 * ks
VF = lambda b, dt: 128 + 32 * b + 4 * dt
L_ = lambda u: 192 + 4 * u
ONES = 208
WF = lambda b, dt: 64 + 32 * b + 4 * dt
XF = lambda b, u: 128 + 16 * b + 4 * u
SX, SW, SK, SV, SO, SD = 8, 12, 16, 20, 24, 44
KVBYTES = 262144
XBASE = [(131072, 147456), (65536, 16384), (32768, 49152)]
WWIN = 81920
WOFF = [32768, 0, 16384]

def stamp(a, cfg, i):
    if cfg.stamps:
        a(f"s_memtime s[{60+4*i}:{61+4*i}]")
        a(f"s_memrealtime s[{62+4*i}:{63+4*i}]")

def stamps_out(a, cfg, n, wsoff, lanereg="v1"):
    if not cfg.stamps: return
    a("s_waitcnt lgkmcnt(0)")
    a("s_load_dwordx2 s[48:49], s[0:1], 56")
    a("s_waitcnt lgkmcnt(0)")
    a(f"s_add_u32 s48, s48, {wsoff}")
    a("s_addc_u32 s49, s49, 0")
    a("s_mov_b32 s50, 0x100000")
    a("s_mov_b32 s51, 0x20000")
    a("s_lshl_b32 s52, s2, 2")
    a("s_add_u32 s52, s52, s3")
    a("s_lshl_b32 s52, s52, 7")
    a("v_mov_b32 v6, s52")
    a(f"v_cmp_eq_u32 vcc, 0, {lanereg}")
    a("s_and_saveexec_b64 s[54:55], vcc")
    for i in range(n):
        a(f"v_mov_b32 v4, s{60+4*i}")
        a(f"v_mov_b32 v5, s{62+4*i}")
        a(f"buffer_store_dwordx2 v[4:5], v6, s[48:51], 0 offen offset:{8*i}")
        a("s_nop 1")
    a("s_getreg_b32 s53, hwreg(HW_REG_XCC_ID)")
    a("v_mov_b32 v4, s53")
    a(f"buffer_store_dword v4, v6, s[48:51], 0 offen offset:120")
    a("v_mov_b32 v4, 0x5157")
    a(f"v_mov_b32 v5, {n}")
    a(f"buffer_store_dwordx2 v[4:5], v6, s[48:51], 0 offen offset:112")
    a("s_mov_b64 exec, s[54:55]")

def srd(a, s, plo, off_s, size):
    if off_s is None:
        a(f"s_mov_b32 s{s}, s{plo}")
        a(f"s_mov_b32 s{s+1}, s{plo+1}")
    else:
        a(f"s_add_u32 s{s}, s{plo}, {off_s}")
        a(f"s_addc_u32 s{s+1}, s{plo+1}, 0")
    a(f"s_mov_b32 s{s+2}, {size}")
    a(f"s_mov_b32 s{s+3}, 0x20000")

def dma(vaddr, sdesc, soff, imm, flags=""):
    o = f" offset:{imm}" if imm else ""
    f = f" {flags}" if flags else ""
    return f"buffer_load_dwordx4 v{vaddr}, s[{sdesc}:{sdesc+3}], {soff} offen{o}{f} lds"

def kdma(cfg, slot):
    return [f"s_add_u32 m0, s40, {16384*slot}"] + [dma(KDA + pp, SK, "s33", 1024 * pp, cfg.kvflags) for pp in range(4)]
def vdma(cfg, slot):
    return [f"s_add_u32 m0, s40, {65536+16384*slot}"] + [dma(VDA + (pp & 1), SV, "s33", 1024 * pp, cfg.kvflags) for pp in range(4)]
def kv_advance():
    return ["s_add_u32 s33, s33, 16384", f"s_cmp_lt_u32 s33, {KVBYTES}", f"s_cselect_b32 s{SK+2}, {KVBYTES}, 0", f"s_mov_b32 s{SV+2}, s{SK+2}"]
def kread(buf, slot, th, kt, ks):
    return f"ds_read_b128 {ar(KF(buf,kt,ks),4)}, v{KRA+ks} offset:{16384*slot+8192*th+4096*kt}"
def vread(buf, slot, th, dt, e):
    return f"ds_read_b64_tr_b16 {ar(VF(buf,dt)+2*e,2)}, v{VRA+dt} offset:{16384*slot+8192*th+4096*e}"

def qk(u, kb, czero=False):
    m = []
    for kt in range(2):
        d = vr(S_(u, kt), 4)
        for ks in range(4):
            c = ("0" if czero else vr(NM(u), 4)) if ks == 0 else d
            m.append(f"{MF} {d}, {ar(KF(kb,kt,ks),4)}, {ar(Q_(u,ks),4)}, {c}")
    return m
def pv(u, vb, czero=False):
    m = []
    for dt in range(8):
        d = vr(O_(u, dt), 4)
        m.append(f"{MF} {d}, {ar(VF(vb,dt),4)}, {vr(P_(u),4)}, {'0' if czero else d}")
    d = ar(L_(u), 4)
    m.append(f"{MF} {d}, {ar(ONES,4)}, {vr(P_(u),4)}, {'0' if czero else d}")
    return m
def sm_half(gaps, g0, u, kt):
    s = S_(u, kt)
    for r in range(4):
        gaps[g0 + 2 * r].append(f"v_exp_f32 v{s+r}, v{s+r}")
        if r & 1:
            gaps[g0 + 2 * r + 1].append(f"v_cvt_pk_bf16_f32 v{P_(u)+2*kt+r//2}, v{s+r-1}, v{s+r}")

def attn_tile(cfg, j):
    kb = vb = j & 1
    slot, th = (j >> 1) & 3, j & 1
    nslot, nth = ((j + 1) >> 1) & 3, (j + 1) & 1
    groups = [qk(0, kb), pv(2, vb ^ 1), qk(1, kb), pv(3, vb ^ 1), qk(2, kb), pv(0, vb), qk(3, kb), pv(1, vb)]
    st = [0]
    for g in groups: st.append(st[-1] + len(g))
    mf = sum(groups, [])
    gaps = [[] for _ in mf]
    sm_half(gaps, st[0], 3, 1)
    for u in range(3):
        sm_half(gaps, st[2 * u + 1], u, 0)
        sm_half(gaps, st[2 * u + 2], u, 1)
    sm_half(gaps, st[7], 3, 0)
    vr_ = [vread(vb, slot, th, dt, e) for dt in range(8) for e in range(2)]
    pos = []
    for g in range(3):
        pos += [st[g] + 1, st[g] + 1, st[g] + 3, st[g] + 5, st[g] + 5, st[g] + 7]
        if g & 1: pos += [st[g] + 8]
    pos = pos[:16]
    for p, r in zip(pos, vr_): gaps[p].append(r)
    mid = st[4] - 1
    if j & 1:
        gaps[mid] += ["s_waitcnt vmcnt(16) lgkmcnt(0)", "s_barrier"]
    else:
        gaps[mid] += ["s_waitcnt lgkmcnt(0)"]
    kr_ = [kread(kb ^ 1, nslot, nth, kt, ks) for kt in range(2) for ks in range(4)]
    pos = [st[4] + 1, st[4] + 3, st[4] + 5, st[4] + 7, st[5] + 3, st[5] + 7, st[5] + 8, st[6] + 3]
    for p, r in zip(pos, kr_): gaps[p].append(r)
    gaps[st[8] - 2].append("s_waitcnt lgkmcnt(0)")
    if j & 1:
        d = kdma(cfg, slot)
        gaps[st[4]].append(d[0])
        for p, x in zip([st[5] + 1, st[5] + 5, st[6] + 1, st[6] + 5], d[1:]): gaps[p].append(x)
    else:
        d = vdma(cfg, (slot - 1) & 3)
        gaps[st[3]].append(d[0])
        for p, x in zip([st[3] + 1, st[3] + 5, st[5] + 1, st[5] + 5], d[1:]): gaps[p].append(x)
        adv = kv_advance()
        for p, x in zip([st[6], st[6] + 2, st[6] + 4, st[6] + 6], adv): gaps[p].append(x)
    return mf, gaps

def rowmax(a, t, t2):
    a(f"v_mov_b32 v{t2}, v{t}")
    a("s_nop 1")
    a(f"v_permlane32_swap_b32 v{t}, v{t2}")
    a(f"v_max_f32 v{t}, v{t}, v{t2}")
    a(f"v_mov_b32 v{t2}, v{t}")
    a("s_nop 1")
    a(f"v_permlane16_swap_b32 v{t}, v{t2}")
    a(f"v_max_f32 v{t}, v{t}, v{t2}")

def gen_attn(cfg, name):
    a = Asm()
    a(f"s_cmp_ge_u32 s2, 256")
    a("s_cbranch_scc1 L_a_end")
    stamp(a, cfg, 0)
    a("s_load_dwordx4 s[4:7], s[0:1], 0")
    a("s_load_dwordx4 s[44:47], s[0:1], 16")
    a("s_load_dwordx2 s[48:49], s[0:1], 56")
    a("v_and_b32 v1, 63, v0")
    a("v_lshrrev_b32 v2, 6, v0")
    a("s_and_b32 s50, s2, 7")
    a("v_readfirstlane_b32 s3, v2")
    a("s_lshr_b32 s51, s2, 3")
    if cfg.mapping == "4x8":
        a("s_and_b32 s28, s50, 1")
        a("s_lshl_b32 s28, s28, 2")
        a("s_and_b32 s52, s51, 3")
        a("s_add_u32 s28, s28, s52")
        a("s_lshr_b32 s29, s50, 1")
        a("s_lshl_b32 s29, s29, 3")
        a("s_lshr_b32 s53, s51, 2")
        a("s_add_u32 s29, s29, s53")
        a("s_mul_i32 s52, s52, 5")
        a("s_lshr_b32 s52, s52, 1")
        a("s_add_u32 s32, s52, s53")
    else:
        a("s_mov_b32 s28, s50")
        a("s_mov_b32 s29, s51")
        a("s_mul_i32 s52, s50, 5")
        a("s_lshr_b32 s52, s52, 2")
        a("s_and_b32 s53, s51, 3")
        a("s_add_u32 s32, s52, s53")
    a("s_cmp_ge_u32 s32, 10")
    a("s_cselect_b32 s52, 10, 0")
    a("s_sub_u32 s32, s32, s52")
    a("s_lshl_b32 s30, s32, 7")
    a("s_lshl_b32 s31, s32, 19")
    a("s_lshl_b32 s40, s3, 12")
    a("s_mov_b32 s33, s40")
    a("s_add_u32 s39, s40, %d" % WWIN)
    a("s_and_b32 s52, s3, 1")
    a("s_lshl_b32 s52, s52, 13")
    a("s_cmp_ge_u32 s3, 2")
    for bf in range(3):
        a(f"s_mov_b32 s53, {XBASE[bf][0]}")
        a(f"s_cselect_b32 s{36+bf}, {XBASE[bf][1]}, s53")
    for bf in range(3):
        a(f"s_add_u32 s{36+bf}, s{36+bf}, s52")
    a("s_mov_b32 s35, 0")
    a("v_and_b32 v2, 15, v1")
    a("v_lshrrev_b32 v3, 4, v1")
    a("v_lshrrev_b32 v4, 3, v1")
    a("v_and_b32 v5, 7, v1")
    a("v_bfe_u32 v6, v1, 2, 2")
    a("v_and_b32 v7, 3, v1")
    a("s_mul_i32 s52, s3, %d" % (64 * 1280))
    for pp in range(8):
        a(f"v_add_u32 v8, {8*pp}, v4")
        a("v_bfe_u32 v9, v8, 1, 3")
        a("v_xor_b32 v9, v9, v5")
        a("v_lshlrev_b32 v9, 4, v9")
        a("v_mul_u32_u24 v8, 1280, v8")
        a("v_add3_u32 v8, v8, v9, s52")
        a(f"v_subrev_u32 v{XDA+pp}, {1024*(pp&3)}, v8")
    a("s_lshl_b32 s52, s3, 17")
    for pp in range(4):
        a(f"v_or_b32 v9, {4*(pp>>1)}, v3")
        a("v_lshlrev_b32 v9, 1, v9")
        a("v_xor_b32 v9, v9, v2")
        a("v_lshlrev_b32 v9, 4, v9")
        a(f"v_add_u32 v8, {4*pp}, v3")
        a("v_lshlrev_b32 v8, 13, v8")
        a("v_add3_u32 v8, v8, v9, s52")
        a(f"v_subrev_u32 v{WDA+pp}, {1024*pp}, v8")
    a("v_lshlrev_b32 v10, 8, v3")
    for pp in range(4):
        a(f"v_add_u32 v9, {4*pp}, v3")
        a("v_xor_b32 v9, v9, v2")
        a(f"v_lshl_add_u32 v{KDA+pp}, v9, 4, v10")
    for pp in range(2):
        a(f"v_add_u32 v9, {4*pp}, v3")
        a("v_lshlrev_b32 v9, 1, v9")
        a("v_xor_b32 v9, v9, v2")
        a(f"v_lshl_add_u32 v{VDA+pp}, v9, 4, v10")
    a("s_waitcnt lgkmcnt(0)")
    if cfg.calib:
        a("s_memrealtime s[56:57]")
        a("s_waitcnt lgkmcnt(0)")
        a("s_or_b32 s58, s2, s3")
        a("s_cmp_lg_u32 s58, 0")
        a("s_cbranch_scc1 L_nocal")
        a("v_mov_b32 v8, s56")
        a("v_mov_b32 v9, 0x4000000")
        a("global_store_dword v9, v8, s[48:49] sc0 sc1")
        a("s_waitcnt vmcnt(0)")
        a("L_nocal:")
    a("s_mul_i32 s52, s28, 307200")
    srd(a, SX, 4, "s52", 307200)
    a("s_lshl_b32 s52, s29, 8")
    srd(a, SW, 46, "s52", 640 * 8192 - 31 * 256)
    a("s_lshl_b32 s52, s28, 5")
    a("s_add_u32 s52, s52, s29")
    a("s_lshl_b32 s52, s52, 18")
    srd(a, SK, 6, "s52", KVBYTES)
    srd(a, SV, 44, "s52", KVBYTES)
    a("s_mul_i32 s52, s28, %d" % (15 * 131072))
    srd(a, SO, 48, "s52", 15 * 131072)

    def qstage(bf):
        o = [f"s_mov_b32 m0, s{36+bf}"]
        o += [dma(XDA + pp, SX, "s30", 1024 * pp, cfg.xflags) for pp in range(4)]
        o += [f"s_add_u32 m0, s{36+bf}, 4096"]
        o += [dma(XDA + 4 + pp, SX, "s30", 1024 * pp, cfg.xflags) for pp in range(4)]
        o += [f"s_add_u32 m0, s39, {WOFF[bf]}"]
        o += [dma(WDA + pp, SW, "s31", 1024 * pp, cfg.xflags) for pp in range(4)]
        o += ["s_add_u32 s32, s32, 1", "s_cmp_eq_u32 s32, 10", "s_cselect_b32 s32, 0, s32", "s_lshl_b32 s30, s32, 7", "s_lshl_b32 s31, s32, 19"]
        return o
    def with_nop(lst):
        o = []
        for x in lst:
            o.append(x)
            if "m0," in x: o.append("s_nop 0")
        return o
    for bf in range(3):
        a.ext(with_nop(qstage(bf)))
    a.ext(with_nop(kdma(cfg, 0)))
    a("v_lshrrev_b32 v9, 1, v2")
    for s in range(2):
        a(f"v_or_b32 v8, {4*s}, v3")
        a("v_xor_b32 v8, v8, v9")
        a("v_lshlrev_b32 v8, 4, v8")
        a("v_lshl_add_u32 v8, v2, 7, v8")
        for bf in range(3):
            a(f"v_add_u32 v{XRA+2*bf+s}, s{36+bf}, v8")
    a("v_and_b32 v9, 1, v3")
    a("v_lshl_or_b32 v9, v9, 2, v6")
    a("v_lshlrev_b32 v9, 1, v9")
    a("v_lshrrev_b32 v11, 1, v7")
    a("v_and_b32 v12, 1, v7")
    a("v_lshlrev_b32 v12, 3, v12")
    a("v_lshl_add_u32 v13, v3, 3, v6")
    a("v_lshl_add_u32 v13, v13, 8, v12")
    a(f"v_add_u32 v13, {WWIN}, v13")
    a("v_lshl_add_u32 v14, v3, 2, v6")
    a("v_lshl_add_u32 v14, v14, 8, v12")
    a(f"v_add_u32 v14, 65536, v14")
    for dt in range(8):
        a(f"v_xor_b32 v8, {2*dt}, v9")
        a("v_or_b32 v8, v8, v11")
        a(f"v_lshl_add_u32 v{WRA+dt}, v8, 4, v13")
        a(f"v_lshl_add_u32 v{VRA+dt}, v8, 4, v14")
    for ks in range(4):
        a(f"v_or_b32 v8, {4*ks}, v3")
        a("v_xor_b32 v8, v8, v2")
        a("v_lshlrev_b32 v8, 4, v8")
        a(f"v_lshl_add_u32 v{KRA+ks}, v2, 8, v8")
    a("v_mov_b32 v8, 0x3f803f80")
    for i in range(4):
        a(f"v_accvgpr_write_b32 a{ONES+i}, v8")
        a(f"v_mov_b32 v{MTR+i}, 0xff800000")
    a("v_lshlrev_b32 v15, 4, v1")

    def qreads(t):
        c, s = t >> 1, t & 1
        bf, rb = c % 3, t & 1
        o = []
        for u in range(4):
            o.append(f"ds_read_b128 {ar(XF(rb,u),4)}, v{XRA+2*bf+s} offset:{2048*u}")
            for dt in (2 * u, 2 * u + 1):
                for e in range(2):
                    o.append(f"ds_read_b64_tr_b16 {ar(WF(rb,dt)+2*e,2)}, v{WRA+dt} offset:{WOFF[bf]+8192*s+1024*e}")
        return o
    a("s_waitcnt vmcnt(28)")
    a("s_barrier")
    stamp(a, cfg, 1)
    a.ext(qreads(0))
    a("s_waitcnt lgkmcnt(0)")
    pend = []
    for t in range(20):
        rb = t & 1
        mf = []
        for u in range(4):
            for dt in range(8):
                d = vr(O_(u, dt), 4)
                mf.append(f"{MF} {d}, {ar(WF(rb,dt),4)}, {ar(XF(rb,u),4)}, {'0' if t == 0 else d}")
        gaps = [[] for _ in mf]
        if t < 19:
            for i, r in enumerate(qreads(t + 1)): gaps[i + 1].append(r)
        if t & 1:
            c = t >> 1
            assert not pend
            if c + 3 < 10: pend = qstage(c % 3)
            elif c == 7: pend = vdma(cfg, 0) + ["s_add_u32 s33, s33, 16384"] + kdma(cfg, 1) + vdma(cfg, 1) + ["s_add_u32 s33, s33, 16384"]
            elif c == 8: pend = kdma(cfg, 2) + vdma(cfg, 2) + ["s_add_u32 s33, s33, 16384"]
        g = 0
        while pend and g < 30:
            x = pend.pop(0)
            gaps[g].append(x)
            if kind(x) == "vm": g += cfg.qspread - (1 if pend and kind(pend[0]) == "s" else 0)
            else: g += 1
        if t == 19: assert not pend
        if t < 19:
            if t & 1:
                gaps[31].append("s_waitcnt lgkmcnt(0)")
            else:
                assert not pend, t
                c = t >> 1
                if c + 1 < 10:
                    n = 16 if c + 1 in (1, 2) else 12
                    gaps[31] += [f"s_waitcnt vmcnt({n}) lgkmcnt(0)", "s_barrier"]
                else:
                    gaps[31].append("s_waitcnt lgkmcnt(0)")
        emit_gaps(a, mf, gaps)
    stamp(a, cfg, 2)
    sc = f32(math.log2(math.e) / math.sqrt(128.0))
    a(f"s_mov_b32 s52, {sc}")
    a(f"s_mov_b32 s53, {sc}")
    a("s_nop 4")
    for u in range(4):
        for m in range(4):
            t = 16 + 4 * (m & 1)
            b0 = O_(u, 2 * m)
            for i in range(4):
                a(f"v_pk_mul_f32 {vr(b0+2*i,2)}, {vr(b0+2*i,2)}, s[52:53]")
            for i in range(4):
                a(f"v_cvt_pk_bf16_f32 v{t+i}, v{b0+2*i}, v{b0+2*i+1}")
            a("s_nop 0")
            a(f"v_permlane32_swap_b32 v{t}, v{t+2}")
            a(f"v_permlane32_swap_b32 v{t+1}, v{t+3}")
            a("s_nop 0")
            a(f"v_permlane16_swap_b32 v{t}, v{t+2}")
            a(f"v_permlane16_swap_b32 v{t+1}, v{t+3}")
            for i in range(4):
                a(f"v_accvgpr_write_b32 a{Q_(u,m)+i}, v{t+i}")
    a("L_attn:")
    a("s_waitcnt vmcnt(16)")
    a("s_barrier")
    stamp(a, cfg, 3)
    for kt in range(2):
        for ks in range(4): a(kread(0, 0, 0, kt, ks))
    for dt in range(8):
        for e in range(2): a(vread(0, 0, 0, dt, e))
    a.ext(with_nop(kdma(cfg, 3) + vdma(cfg, 3)) + kv_advance())
    for u in (2, 3):
        for i in range(32): a(f"v_mov_b32 v{O_(u,0)+i}, 0")
        for i in range(4): a(f"v_accvgpr_write_b32 a{L_(u)+i}, 0")
    a("s_waitcnt lgkmcnt(0)")
    kr1 = [kread(1, 0, 1, kt, ks) for kt in range(2) for ks in range(4)]
    mf = sum([qk(u, 0, True) for u in range(4)], [])
    gaps = [[] for _ in mf]
    for i, r in enumerate(kr1): gaps[2 * i].append(r)
    emit_gaps(a, mf, gaps)
    for u in range(4):
        s0 = S_(u, 0)
        if u == 3: pass
        a(f"v_max3_f32 v16, v{s0}, v{s0+1}, v{s0+2}")
        a(f"v_max3_f32 v16, v16, v{s0+3}, v{s0+4}")
        a(f"v_max3_f32 v16, v16, v{s0+5}, v{s0+6}")
        a(f"v_max3_f32 v16, v16, v{s0+7}, v{MTR+u}")
        rowmax(a, 16, 17)
        for i in range(4): a(f"v_sub_f32 v{NM(u)+i}, 0, v16")
        nexp = 8 if u < 3 else 4
        for r in range(8): a(f"v_sub_f32 v{s0+r}, v{s0+r}, v16")
        for r in range(nexp): a(f"v_exp_f32 v{s0+r}, v{s0+r}")
        a("s_nop 0")
        for r in range(0, nexp, 2): a(f"v_cvt_pk_bf16_f32 v{P_(u)+r//2}, v{s0+r}, v{s0+r+1}")
        if u < 2:
            a("s_nop 1")
            a.ext(pv(u, 0, True))
    a("s_waitcnt lgkmcnt(0)")
    a("s_mov_b32 s34, 4")
    a(".p2align 6")
    a("L_loop:")
    body0 = len(a.l)
    for j in range(1, 9):
        mf, gaps = attn_tile(cfg, j)
        if j == 7:
            gaps[-3].append("s_sub_u32 s34, s34, 1")
            gaps[-1] += ["s_cmp_eq_u32 s34, 0", "s_cbranch_scc1 L_done"]
        if j == 8:
            gaps[-1].append("s_branch L_loop")
        emit_gaps(a, mf, gaps)
        if j == 7: cut7 = len(a.l)
    body = a.l[body0:]
    a("L_done:")
    tail0 = len(a.l)
    stamp(a, cfg, 4)
    mf = pv(2, 1)
    gaps = [[] for _ in mf]
    sm_half(gaps, 0, 3, 1)
    emit_gaps(a, mf, gaps)
    a("s_nop 1")
    a.ext(pv(3, 1))
    a(f"s_mov_b32 s52, {f32(cfg.lthr)}")
    a("s_mov_b64 s[54:55], 0")
    a("s_lshl_b32 s56, s3, 19")
    a("s_lshl_b32 s57, s29, 12")
    a("s_add_u32 s56, s56, s57")
    for u in range(4):
        if u == 3: a("s_nop 7")
        a(f"v_accvgpr_read_b32 v16, a{L_(u)}")
        a("s_nop 0")
        a(f"v_cmp_nlt_f32 vcc, v16, s52" if False else f"v_cmp_ngt_f32 vcc, s52, v16")
        a("v_rcp_f32 v16, v16")
        a("s_or_b64 s[54:55], s[54:55], vcc")
        a("v_mov_b32 v17, v16")
        for m in range(4):
            t = 20 + 4 * (m & 1)
            b0 = O_(u, 2 * m)
            for i in range(4):
                a(f"v_pk_mul_f32 {vr(b0+2*i,2)}, {vr(b0+2*i,2)}, v[16:17]")
            for i in range(4):
                a(f"v_cvt_pk_bf16_f32 v{t+i}, v{b0+2*i}, v{b0+2*i+1}")
            a(f"buffer_store_dwordx4 {vr(t,4)}, v15, s[{SO}:{SO+3}], s56 offen offset:{1024*m} {cfg.oflags}".rstrip())
        a("s_add_u32 s56, s56, 131072")
    if cfg.force_fb:
        a("s_mov_b64 s[54:55], -1")
    a("s_cmp_lg_u64 s[54:55], 0")
    a("s_cselect_b32 s52, 1, 0")
    a("s_lshl_b32 s53, s3, 2")
    a("s_add_u32 s53, s53, 131072")
    a("v_mov_b32 v16, s52")
    a("v_mov_b32 v17, s53")
    a("v_mov_b32 v18, 131072")
    a("ds_write_b32 v17, v16")
    a("s_waitcnt lgkmcnt(0)")
    a("s_barrier")
    a("ds_read_b128 v[20:23], v18")
    a("s_waitcnt lgkmcnt(0)")
    a("v_or3_b32 v20, v20, v21, v22")
    a("v_or_b32 v20, v20, v23")
    a("s_nop 0")
    a("v_readfirstlane_b32 s52, v20")
    a("s_nop 3")
    a("s_andn2_b32 s52, s52, s35")
    a("s_cmp_lg_u32 s52, 0")
    a("s_cbranch_scc1 L_exact")
    stamp(a, cfg, 5)
    if cfg.stamps:
        a("s_waitcnt vmcnt(0)")
        stamp(a, cfg, 6)
        stamps_out(a, cfg, 7, 64 << 20)
    a("L_a_end:")
    a("s_endpgm")
    tail = a.l[tail0:]
    a("L_exact:")
    ex0 = len(a.l)
    a("s_mov_b32 s35, 1")
    a(f"s_mov_b32 s{SK+2}, {KVBYTES}")
    a(f"s_mov_b32 s{SV+2}, {KVBYTES}")
    a("s_mov_b32 s33, s40")
    a("s_waitcnt vmcnt(0)")
    a("L_exact_loop:")
    a("s_barrier")
    a.ext(with_nop(kdma(cfg, 0)))
    a("s_add_u32 s33, s33, 16384")
    a("s_waitcnt vmcnt(0)")
    a("s_barrier")
    for th in range(2):
        for kt in range(2):
            for ks in range(4): a(kread(0, 0, th, kt, ks))
        a("s_waitcnt lgkmcnt(0)")
        for u in range(4): a.ext(qk(u, 0, True))
        a("s_nop 7")
        for u in range(4):
            s0 = S_(u, 0)
            for r in range(0, 8, 2):
                a(f"v_max3_f32 v{MTR+u}, v{MTR+u}, v{s0+r}, v{s0+r+1}")
    a(f"s_cmp_lt_u32 s33, {KVBYTES}")
    a("s_cbranch_scc1 L_exact_loop")
    a("s_barrier")
    a("s_mov_b32 s33, s40")
    for sg in range(3):
        a.ext(with_nop(kdma(cfg, sg) + vdma(cfg, sg)))
        a("s_add_u32 s33, s33, 16384")
    a("s_branch L_attn")
    bad = check(a.l[:body0] + body[:], "attn-main") + check(body + body, "attn-loop") + check(body[:cut7 - body0] + tail, "attn-tail") + check(a.l[ex0:] + a.l[ex0:], "exact")
    assert bad == 0
    return a

def gen_oproj(cfg, name):
    a = Asm()
    ACC = lambda i, nt: 16 + 16 * i + 4 * nt
    OF = lambda sl, i: 20 * sl + 4 * i
    WF2 = lambda b, nt: 160 + 16 * b + 4 * nt
    WD, WR = 96, 100
    DEPTH = 6
    a("s_cmp_ge_u32 s2, 240")
    a("s_cbranch_scc1 L_b_end")
    stamp(a, cfg, 0)
    a("s_load_dwordx4 s[4:7], s[0:1], 32")
    a("s_load_dwordx2 s[48:49], s[0:1], 56")
    a("v_and_b32 v1, 63, v0")
    a("v_lshrrev_b32 v2, 6, v0")
    a("s_and_b32 s28, s2, 7")
    a("v_readfirstlane_b32 s3, v2")
    a("s_lshr_b32 s51, s2, 3")
    a("s_mul_i32 s29, s51, 26")
    a("s_lshr_b32 s29, s29, 8")
    a("s_mul_i32 s52, s29, 10")
    a("s_sub_u32 s30, s51, s52")
    a("v_and_b32 v2, 15, v1")
    a("v_lshrrev_b32 v3, 4, v1")
    a("v_lshrrev_b32 v4, 3, v1")
    a("v_and_b32 v5, 7, v1")
    a("v_bfe_u32 v6, v1, 2, 2")
    a("v_and_b32 v7, 3, v1")
    a("v_lshlrev_b32 v9, 1, v3")
    a("v_xor_b32 v9, v9, v5")
    a("v_lshlrev_b32 v9, 4, v9")
    a("v_mul_u32_u24 v8, 1280, v4")
    a("v_add_u32 v8, v8, v9")
    for pp in range(4):
        a(f"v_add_u32 v{WD+pp}, {pp*9216}, v8")
    a("s_mul_i32 s40, s3, 40960")
    a("v_lshl_add_u32 v10, v3, 2, v6")
    a("v_bfe_u32 v9, v10, 1, 2")
    a("v_lshlrev_b32 v9, 1, v9")
    a("v_lshrrev_b32 v11, 1, v7")
    a("v_and_b32 v12, 1, v7")
    a("v_lshlrev_b32 v12, 3, v12")
    a("v_lshl_add_u32 v12, v10, 7, v12")
    a("v_add_u32 v12, s40, v12")
    for nt in range(4):
        a(f"v_xor_b32 v8, {2*nt}, v9")
        a("v_or_b32 v8, v8, v11")
        a(f"v_lshl_add_u32 v{WR+nt}, v8, 4, v12")
    a("v_lshlrev_b32 v15, 4, v1")
    for i in range(5):
        a(f"v_add_u32 v{104+i}, {131072*i}, v15")
    a("s_waitcnt lgkmcnt(0)")
    a("s_mul_i32 s52, s3, %d" % (1024 * 1280))
    a("s_lshl_b32 s53, s30, 7")
    a("s_add_u32 s52, s52, s53")
    srd(a, 8, 4, "s52", 1024 * 1280 - 9 * 128)
    a("s_mul_i32 s52, s28, 15")
    a("s_mul_i32 s53, s29, 5")
    a("s_add_u32 s52, s52, s53")
    a("s_lshl_b32 s52, s52, 17")
    a("s_lshl_b32 s53, s3, 15")
    a("s_add_u32 s52, s52, s53")
    srd(a, 12, 48, "s52", 4 * 131072 + 32768)
    a("s_mul_i32 s52, s28, 240")
    a("s_mul_i32 s53, s29, 80")
    a("s_add_u32 s52, s52, s53")
    a("s_mul_i32 s52, s52, 1280")
    a("s_lshl_b32 s53, s30, 7")
    a("s_add_u32 s52, s52, s53")
    srd(a, 16, 6, "s52", 79 * 1280 + 128)
    a("s_mov_b32 s33, 0")
    a("s_mov_b32 s34, 0")
    def stage(sl):
        o = [f"s_add_u32 m0, s40, {4096*sl}", "s_nop 0"]
        o += [dma(WD + pp, 8, "s33", 1024 * pp, cfg.bflags) for pp in range(4)]
        o += [f"buffer_load_dwordx4 {ar(OF(sl,i),4)}, v{104+i}, s[12:15], s34 offen {cfg.orflags}".rstrip() for i in range(5)]
        o += ["s_add_u32 s33, s33, 40960", "s_add_u32 s34, s34, 1024", "s_cmp_lt_u32 s34, 32768", f"s_cselect_b32 s10, {1024*1280-9*128}, 0", f"s_cselect_b32 s14, {4*131072+32768}, 0"]
        return o
    def wreads(sl, b):
        return [f"ds_read_b64_tr_b16 {ar(WF2(b,nt)+2*e,2)}, v{WR+nt} offset:{4096*sl+2048*e}" for nt in range(4) for e in range(2)]
    for sl in range(DEPTH + 1):
        a.ext(stage(sl))
    for i in range(80): a(f"v_mov_b32 v{16+i}, 0")
    a(f"s_waitcnt vmcnt({9*DEPTH})")
    stamp(a, cfg, 1)
    a.ext(wreads(0, 0))
    a("s_mov_b32 s35, 4")
    a(".p2align 6")
    a("L_b_loop:")
    b0 = len(a.l)
    for t in range(8):
        mf = []
        for i in range(5):
            for nt in range(4):
                d = vr(ACC(i, nt), 4)
                mf.append(f"{MF} {d}, {ar(WF2(t&1,nt),4)}, {ar(OF(t,i),4)}, {d}")
        gaps = [[] for _ in mf]
        a(f"s_waitcnt vmcnt({9*(DEPTH-1)}) lgkmcnt(0)")
        for i, r in enumerate(wreads((t + 1) & 7, (t + 1) & 1)): gaps[i].append(r)
        st = [x for x in stage((t + DEPTH + 1) & 7) if x != "s_nop 0"]
        g = 4
        for x in st:
            gaps[g].append(x)
            g += 1
        if t == 7:
            gaps[19] += ["s_sub_u32 s35, s35, 1", "s_cmp_lg_u32 s35, 0", "s_cbranch_scc1 L_b_loop"]
        emit_gaps(a, mf, gaps)
    body = a.l[b0:]
    stamp(a, cfg, 2)
    a("s_waitcnt vmcnt(0) lgkmcnt(0)")
    a("s_barrier")
    a("s_mul_i32 s52, s3, 20480")
    a("v_add_u32 v8, s52, v15")
    for i in range(5):
        for nt in range(4):
            a(f"ds_write_b128 v8, {vr(ACC(i,nt),4)} offset:{1024*(4*i+nt)}")
    a("s_lshl_b32 s52, s3, 10")
    a("v_add_u32 v8, s52, v15")
    a("v_add_u32 v9, 40960, v8")
    a("s_waitcnt lgkmcnt(0)")
    a("s_barrier")
    for i in range(5):
        for w in range(4):
            a(f"ds_read_b128 {vr(16+16*i+4*w,4)}, v{8+(w>>1)} offset:{20480*(w&1)+4096*i}")
    a("v_mul_u32_u24 v10, 1280, v2")
    a("v_lshl_add_u32 v10, v3, 3, v10")
    a("s_lshl_b32 s52, s3, 5")
    for i in range(5):
        a(f"s_waitcnt lgkmcnt({min(15, 4*(4-i))})")
        b = 16 + 16 * i
        for r in range(0, 4, 2):
            a(f"v_pk_add_f32 {vr(b+r,2)}, {vr(b+r,2)}, {vr(b+4+r,2)}")
            a(f"v_pk_add_f32 {vr(b+8+r,2)}, {vr(b+8+r,2)}, {vr(b+12+r,2)}")
        for r in range(0, 4, 2):
            a(f"v_pk_add_f32 {vr(b+r,2)}, {vr(b+r,2)}, {vr(b+8+r,2)}")
        a(f"v_cvt_pk_bf16_f32 v{b}, v{b}, v{b+1}")
        a(f"v_cvt_pk_bf16_f32 v{b+1}, v{b+2}, v{b+3}")
        a(f"buffer_store_dwordx2 {vr(b,2)}, v10, s[16:19], s52 offen")
        a("s_add_u32 s52, s52, %d" % (16 * 1280))
    if cfg.stamps:
        a("s_waitcnt vmcnt(0)")
        stamp(a, cfg, 3)
        stamps_out(a, cfg, 4, 65 << 20)
    if cfg.calib:
        a("s_or_b32 s58, s2, s3")
        a("s_cmp_lg_u32 s58, 0")
        a("s_cbranch_scc1 L_b_end")
        a("v_mov_b32 v9, 0x4000000")
        a("global_load_dword v8, v9, s[48:49] sc0 sc1")
        a("s_waitcnt vmcnt(0)")
        a("v_readfirstlane_b32 s58, v8")
        a("L_spin:")
        a("s_memrealtime s[56:57]")
        a("s_waitcnt lgkmcnt(0)")
        a("s_sub_u32 s56, s56, s58")
        a(f"s_cmp_lt_u32 s56, {cfg.calib*100}")
        a("s_cbranch_scc1 L_spin")
    a("L_b_end:")
    a("s_endpgm")
    bad = check(a.l, "oproj") + check(body + body, "oproj-loop")
    assert bad == 0
    return a

HEAD = open(__file__.replace("gen.py", "../cdna_kernels/" + NAME + ".s.ref")).read().split("; Override launch")[0] if False else None

def kd(name, vg=512, acc=256):
    return f""".amdhsa_kernel {name}
  .amdhsa_next_free_vgpr {vg}
  .amdhsa_next_free_sgpr 102
  .amdhsa_accum_offset {acc}
  .amdhsa_group_segment_fixed_size 0
  .amdhsa_kernarg_size 64
  .amdhsa_user_sgpr_count 2
  .amdhsa_user_sgpr_kernarg_segment_ptr 1
  .amdhsa_system_sgpr_workgroup_id_x 1
.end_amdhsa_kernel
"""

def build(cfg):
    k1, k2 = NAME + "_kernel", "oproj_kernel"
    out = []
    out.append(f"; @launch kernel={k1} grid=(256,1,1) block=(256,1,1) lds=163840")
    out.append(f"; @launch kernel={k2} grid=(240,1,1) block=(256,1,1) lds=163840")
    out.append('.amdgcn_target "amdgcn-amd-amdhsa--gfx950"')
    out.append(".text")
    for k, g in ((k1, gen_attn), (k2, gen_oproj)):
        out.append(f".globl {k}\n.p2align 8\n.type {k},@function\n{k}:")
        out.append(g(cfg, k).text())
    out.append('.section .rodata,"a"')
    for k in (k1, k2):
        out.append(".p2align 6\n" + kd(k))
    return "\n".join(out)

if __name__ == "__main__":
    cfg = Cfg()
    path = sys.argv[1]
    for kv in sys.argv[2:]:
        k, v = kv.split("=", 1)
        old = getattr(cfg, k)
        setattr(cfg, k, type(old)(eval(v)) if isinstance(old, (bool, int, float)) else v)
    open(path, "w").write(build(cfg))
```

```python
import sys, math, struct
from asmlib import *

NAME = "standalone__mha_block_cached__near_ridge"
def f32(x): return struct.unpack("<I", struct.pack("<f", x))[0]
MF = "v_mfma_f32_16x16x32_bf16"

class Cfg:
    mapping = "4x8"
    kvflags = "nt"
    oflags = ""
    xflags = ""
    bflags = ""
    orflags = ""
    stamps = False
    qspread = 4
    lthr = 2.0 ** 40
    force_fb = False
    cal_i = 0
    cal_j = 0
    calib = 0

O_ = lambda u, dt: 32 + 32 * u + 4 * dt
S_ = lambda u, kt: 160 + 8 * u + 4 * kt
P_ = lambda u: 192 + 4 * u
NM = lambda u: 208 + 4 * u
KRA, VRA, KDA, VDA, MTR = 224, 228, 236, 240, 242
XDA, WDA, XRA, WRA = 160, 168, 172, 178
Q_ = lambda u, m: 16 * u + 4 * m
KF = lambda b, kt, ks: 64 + 32 * b + 16 * kt + 4 * ks
VF = lambda b, dt: 128 + 32 * b + 4 * dt
L_ = lambda u: 192 + 4 * u
ONES = 208
WF = lambda b, dt: 64 + 32 * b + 4 * dt
XF = lambda b, u: 128 + 16 * b + 4 * u
SX, SW, SK, SV, SO, SD = 8, 12, 16, 20, 24, 44
KVBYTES = 262144
XBASE = [(131072, 147456), (65536, 16384), (32768, 49152)]
WWIN = 81920
WOFF = [32768, 0, 16384]

def stamp(a, cfg, i):
    if cfg.stamps or cfg.calib:
        a(f"s_memtime s[{60+4*i}:{61+4*i}]")
        a(f"s_memrealtime s[{62+4*i}:{63+4*i}]")

def stamps_out(a, cfg, n, wsoff, lanereg="v1"):
    if not cfg.stamps: return
    a("s_waitcnt lgkmcnt(0)")
    a("s_load_dwordx2 s[48:49], s[0:1], 56")
    a("s_waitcnt lgkmcnt(0)")
    a(f"s_add_u32 s48, s48, {wsoff}")
    a("s_addc_u32 s49, s49, 0")
    a("s_mov_b32 s50, 0x100000")
    a("s_mov_b32 s51, 0x20000")
    a("s_lshl_b32 s52, s2, 2")
    a("s_add_u32 s52, s52, s3")
    a("s_lshl_b32 s52, s52, 7")
    a("v_mov_b32 v6, s52")
    a(f"v_cmp_eq_u32 vcc, 0, {lanereg}")
    a("s_and_saveexec_b64 s[54:55], vcc")
    for i in range(n):
        a(f"v_mov_b32 v4, s{60+4*i}")
        a(f"v_mov_b32 v5, s{62+4*i}")
        a(f"buffer_store_dwordx2 v[4:5], v6, s[48:51], 0 offen offset:{8*i}")
        a("s_nop 1")
    a("s_getreg_b32 s53, hwreg(HW_REG_XCC_ID)")
    a("v_mov_b32 v4, s53")
    a(f"buffer_store_dword v4, v6, s[48:51], 0 offen offset:120")
    a("v_mov_b32 v4, 0x5157")
    a(f"v_mov_b32 v5, {n}")
    a(f"buffer_store_dwordx2 v[4:5], v6, s[48:51], 0 offen offset:112")
    a("s_mov_b64 exec, s[54:55]")

def srd(a, s, plo, off_s, size):
    if off_s is None:
        a(f"s_mov_b32 s{s}, s{plo}")
        a(f"s_mov_b32 s{s+1}, s{plo+1}")
    else:
        a(f"s_add_u32 s{s}, s{plo}, {off_s}")
        a(f"s_addc_u32 s{s+1}, s{plo+1}, 0")
    a(f"s_mov_b32 s{s+2}, {size}")
    a(f"s_mov_b32 s{s+3}, 0x20000")

def dma(vaddr, sdesc, soff, imm, flags=""):
    o = f" offset:{imm}" if imm else ""
    f = f" {flags}" if flags else ""
    return f"buffer_load_dwordx4 v{vaddr}, s[{sdesc}:{sdesc+3}], {soff} offen{o}{f} lds"

def kdma(cfg, slot):
    return [f"s_add_u32 m0, s40, {16384*slot}"] + [dma(KDA + pp, SK, "s33", 1024 * pp, cfg.kvflags) for pp in range(4)]
def vdma(cfg, slot):
    return [f"s_add_u32 m0, s40, {65536+16384*slot}"] + [dma(VDA + (pp & 1), SV, "s33", 1024 * pp, cfg.kvflags) for pp in range(4)]
def kv_advance():
    return ["s_add_u32 s33, s33, 16384", f"s_cmp_lt_u32 s33, {KVBYTES}", f"s_cselect_b32 s{SK+2}, {KVBYTES}, 0", f"s_mov_b32 s{SV+2}, s{SK+2}"]
def kread(buf, slot, th, kt, ks):
    return f"ds_read_b128 {ar(KF(buf,kt,ks),4)}, v{KRA+ks} offset:{16384*slot+8192*th+4096*kt}"
def vread(buf, slot, th, dt, e):
    return f"ds_read_b64_tr_b16 {ar(VF(buf,dt)+2*e,2)}, v{VRA+dt} offset:{16384*slot+8192*th+4096*e}"

def qk(u, kb, czero=False):
    m = []
    for kt in range(2):
        d = vr(S_(u, kt), 4)
        for ks in range(4):
            c = ("0" if czero else vr(NM(u), 4)) if ks == 0 else d
            m.append(f"{MF} {d}, {ar(KF(kb,kt,ks),4)}, {ar(Q_(u,ks),4)}, {c}")
    return m
def pv(u, vb, czero=False):
    m = []
    for dt in range(8):
        d = vr(O_(u, dt), 4)
        m.append(f"{MF} {d}, {ar(VF(vb,dt),4)}, {vr(P_(u),4)}, {'0' if czero else d}")
    d = ar(L_(u), 4)
    m.append(f"{MF} {d}, {ar(ONES,4)}, {vr(P_(u),4)}, {'0' if czero else d}")
    return m
def sm_half(gaps, g0, u, kt):
    s = S_(u, kt)
    for r in range(4):
        gaps[g0 + 2 * r].append(f"v_exp_f32 v{s+r}, v{s+r}")
        if r & 1:
            gaps[g0 + 2 * r + 1].append(f"v_cvt_pk_bf16_f32 v{P_(u)+2*kt+r//2}, v{s+r-1}, v{s+r}")

def attn_tile(cfg, j):
    kb = vb = j & 1
    slot, th = (j >> 1) & 3, j & 1
    nslot, nth = ((j + 1) >> 1) & 3, (j + 1) & 1
    groups = [qk(0, kb), pv(2, vb ^ 1), qk(1, kb), pv(3, vb ^ 1), qk(2, kb), pv(0, vb), qk(3, kb), pv(1, vb)]
    st = [0]
    for g in groups: st.append(st[-1] + len(g))
    mf = sum(groups, [])
    gaps = [[] for _ in mf]
    sm_half(gaps, st[0], 3, 1)
    for u in range(3):
        sm_half(gaps, st[2 * u + 1], u, 0)
        sm_half(gaps, st[2 * u + 2], u, 1)
    sm_half(gaps, st[7], 3, 0)
    vr_ = [vread(vb, slot, th, dt, e) for dt in range(8) for e in range(2)]
    pos = []
    for g in range(3):
        pos += [st[g] + 1, st[g] + 1, st[g] + 3, st[g] + 5, st[g] + 5, st[g] + 7]
        if g & 1: pos += [st[g] + 8]
    pos = pos[:16]
    for p, r in zip(pos, vr_): gaps[p].append(r)
    mid = st[4] - 1
    if j & 1:
        gaps[mid] += ["s_waitcnt vmcnt(16) lgkmcnt(0)", "s_barrier"]
    else:
        gaps[mid] += ["s_waitcnt lgkmcnt(0)"]
    kr_ = [kread(kb ^ 1, nslot, nth, kt, ks) for kt in range(2) for ks in range(4)]
    pos = [st[4] + 1, st[4] + 3, st[4] + 5, st[4] + 7, st[5] + 3, st[5] + 7, st[5] + 8, st[6] + 3]
    for p, r in zip(pos, kr_): gaps[p].append(r)
    gaps[st[8] - 2].append("s_waitcnt lgkmcnt(0)")
    if j & 1:
        d = kdma(cfg, slot)
        gaps[st[4]].append(d[0])
        for p, x in zip([st[5] + 1, st[5] + 5, st[6] + 1, st[6] + 5], d[1:]): gaps[p].append(x)
    else:
        d = vdma(cfg, (slot - 1) & 3)
        gaps[st[3]].append(d[0])
        for p, x in zip([st[3] + 1, st[3] + 5, st[5] + 1, st[5] + 5], d[1:]): gaps[p].append(x)
        adv = kv_advance()
        for p, x in zip([st[6], st[6] + 2, st[6] + 4, st[6] + 6], adv): gaps[p].append(x)
    return mf, gaps

def rowmax(a, t, t2):
    a(f"v_mov_b32 v{t2}, v{t}")
    a("s_nop 1")
    a(f"v_permlane32_swap_b32 v{t}, v{t2}")
    a(f"v_max_f32 v{t}, v{t}, v{t2}")
    a(f"v_mov_b32 v{t2}, v{t}")
    a("s_nop 1")
    a(f"v_permlane16_swap_b32 v{t}, v{t2}")
    a(f"v_max_f32 v{t}, v{t}, v{t2}")

def gen_attn(cfg, name):
    a = Asm()
    a(f"s_cmp_ge_u32 s2, 256")
    a("s_cbranch_scc1 L_a_end")
    stamp(a, cfg, 0)
    a("s_load_dwordx4 s[4:7], s[0:1], 0")
    a("s_load_dwordx4 s[44:47], s[0:1], 16")
    a("s_load_dwordx2 s[48:49], s[0:1], 56")
    a("v_and_b32 v1, 63, v0")
    a("v_lshrrev_b32 v2, 6, v0")
    a("s_and_b32 s50, s2, 7")
    a("v_readfirstlane_b32 s3, v2")
    a("s_lshr_b32 s51, s2, 3")
    if cfg.mapping == "4x8":
        a("s_and_b32 s28, s50, 1")
        a("s_lshl_b32 s28, s28, 2")
        a("s_and_b32 s52, s51, 3")
        a("s_add_u32 s28, s28, s52")
        a("s_lshr_b32 s29, s50, 1")
        a("s_lshl_b32 s29, s29, 3")
        a("s_lshr_b32 s53, s51, 2")
        a("s_add_u32 s29, s29, s53")
        a("s_mul_i32 s52, s52, 5")
        a("s_lshr_b32 s52, s52, 1")
        a("s_add_u32 s32, s52, s53")
    else:
        a("s_mov_b32 s28, s50")
        a("s_mov_b32 s29, s51")
        a("s_mul_i32 s52, s50, 5")
        a("s_lshr_b32 s52, s52, 2")
        a("s_and_b32 s53, s51, 3")
        a("s_add_u32 s32, s52, s53")
    a("s_cmp_ge_u32 s32, 10")
    a("s_cselect_b32 s52, 10, 0")
    a("s_sub_u32 s32, s32, s52")
    a("s_lshl_b32 s30, s32, 7")
    a("s_lshl_b32 s31, s32, 19")
    a("s_lshl_b32 s40, s3, 12")
    a("s_mov_b32 s33, s40")
    a("s_add_u32 s39, s40, %d" % WWIN)
    a("s_and_b32 s52, s3, 1")
    a("s_lshl_b32 s52, s52, 13")
    a("s_cmp_ge_u32 s3, 2")
    for bf in range(3):
        a(f"s_mov_b32 s53, {XBASE[bf][0]}")
        a(f"s_cselect_b32 s{36+bf}, {XBASE[bf][1]}, s53")
    for bf in range(3):
        a(f"s_add_u32 s{36+bf}, s{36+bf}, s52")
    a("s_mov_b32 s35, 0")
    a("v_and_b32 v2, 15, v1")
    a("v_lshrrev_b32 v3, 4, v1")
    a("v_lshrrev_b32 v4, 3, v1")
    a("v_and_b32 v5, 7, v1")
    a("v_bfe_u32 v6, v1, 2, 2")
    a("v_and_b32 v7, 3, v1")
    a("s_mul_i32 s52, s3, %d" % (64 * 1280))
    for pp in range(8):
        a(f"v_add_u32 v8, {8*pp}, v4")
        a("v_bfe_u32 v9, v8, 1, 3")
        a("v_xor_b32 v9, v9, v5")
        a("v_lshlrev_b32 v9, 4, v9")
        a("v_mul_u32_u24 v8, 1280, v8")
        a("v_add3_u32 v8, v8, v9, s52")
        a(f"v_subrev_u32 v{XDA+pp}, {1024*(pp&3)}, v8")
    a("s_lshl_b32 s52, s3, 17")
    for pp in range(4):
        a(f"v_or_b32 v9, {4*(pp>>1)}, v3")
        a("v_lshlrev_b32 v9, 1, v9")
        a("v_xor_b32 v9, v9, v2")
        a("v_lshlrev_b32 v9, 4, v9")
        a(f"v_add_u32 v8, {4*pp}, v3")
        a("v_lshlrev_b32 v8, 13, v8")
        a("v_add3_u32 v8, v8, v9, s52")
        a(f"v_subrev_u32 v{WDA+pp}, {1024*pp}, v8")
    a("v_lshlrev_b32 v10, 8, v3")
    for pp in range(4):
        a(f"v_add_u32 v9, {4*pp}, v3")
        a("v_xor_b32 v9, v9, v2")
        a(f"v_lshl_add_u32 v{KDA+pp}, v9, 4, v10")
    for pp in range(2):
        a(f"v_add_u32 v9, {4*pp}, v3")
        a("v_lshlrev_b32 v9, 1, v9")
        a("v_xor_b32 v9, v9, v2")
        a(f"v_lshl_add_u32 v{VDA+pp}, v9, 4, v10")
    a("s_waitcnt lgkmcnt(0)")
    a("s_mul_i32 s52, s28, 307200")
    srd(a, SX, 4, "s52", 307200)
    a("s_lshl_b32 s52, s29, 8")
    srd(a, SW, 46, "s52", 640 * 8192 - 31 * 256)
    a("s_lshl_b32 s52, s28, 5")
    a("s_add_u32 s52, s52, s29")
    a("s_lshl_b32 s52, s52, 18")
    srd(a, SK, 6, "s52", KVBYTES)
    srd(a, SV, 44, "s52", KVBYTES)
    a("s_mul_i32 s52, s28, %d" % (15 * 131072))
    srd(a, SO, 48, "s52", 15 * 131072)

    def qstage(bf):
        o = [f"s_mov_b32 m0, s{36+bf}"]
        o += [dma(XDA + pp, SX, "s30", 1024 * pp, cfg.xflags) for pp in range(4)]
        o += [f"s_add_u32 m0, s{36+bf}, 4096"]
        o += [dma(XDA + 4 + pp, SX, "s30", 1024 * pp, cfg.xflags) for pp in range(4)]
        o += [f"s_add_u32 m0, s39, {WOFF[bf]}"]
        o += [dma(WDA + pp, SW, "s31", 1024 * pp, cfg.xflags) for pp in range(4)]
        o += ["s_add_u32 s32, s32, 1", "s_cmp_eq_u32 s32, 10", "s_cselect_b32 s32, 0, s32", "s_lshl_b32 s30, s32, 7", "s_lshl_b32 s31, s32, 19"]
        return o
    def with_nop(lst):
        o = []
        for x in lst:
            o.append(x)
            if "m0," in x: o.append("s_nop 0")
        return o
    for bf in range(3):
        a.ext(with_nop(qstage(bf)))
    a.ext(with_nop(kdma(cfg, 0)))
    a("v_lshrrev_b32 v9, 1, v2")
    for s in range(2):
        a(f"v_or_b32 v8, {4*s}, v3")
        a("v_xor_b32 v8, v8, v9")
        a("v_lshlrev_b32 v8, 4, v8")
        a("v_lshl_add_u32 v8, v2, 7, v8")
        for bf in range(3):
            a(f"v_add_u32 v{XRA+2*bf+s}, s{36+bf}, v8")
    a("v_and_b32 v9, 1, v3")
    a("v_lshl_or_b32 v9, v9, 2, v6")
    a("v_lshlrev_b32 v9, 1, v9")
    a("v_lshrrev_b32 v11, 1, v7")
    a("v_and_b32 v12, 1, v7")
    a("v_lshlrev_b32 v12, 3, v12")
    a("v_lshl_add_u32 v13, v3, 3, v6")
    a("v_lshl_add_u32 v13, v13, 8, v12")
    a(f"v_add_u32 v13, {WWIN}, v13")
    a("v_lshl_add_u32 v14, v3, 2, v6")
    a("v_lshl_add_u32 v14, v14, 8, v12")
    a(f"v_add_u32 v14, 65536, v14")
    for dt in range(8):
        a(f"v_xor_b32 v8, {2*dt}, v9")
        a("v_or_b32 v8, v8, v11")
        a(f"v_lshl_add_u32 v{WRA+dt}, v8, 4, v13")
        a(f"v_lshl_add_u32 v{VRA+dt}, v8, 4, v14")
    for ks in range(4):
        a(f"v_or_b32 v8, {4*ks}, v3")
        a("v_xor_b32 v8, v8, v2")
        a("v_lshlrev_b32 v8, 4, v8")
        a(f"v_lshl_add_u32 v{KRA+ks}, v2, 8, v8")
    a("v_mov_b32 v8, 0x3f803f80")
    for i in range(4):
        a(f"v_accvgpr_write_b32 a{ONES+i}, v8")
        a(f"v_mov_b32 v{MTR+i}, 0xff800000")
    a("v_lshlrev_b32 v15, 4, v1")

    def qreads(t):
        c, s = t >> 1, t & 1
        bf, rb = c % 3, t & 1
        o = []
        for u in range(4):
            o.append(f"ds_read_b128 {ar(XF(rb,u),4)}, v{XRA+2*bf+s} offset:{2048*u}")
            for dt in (2 * u, 2 * u + 1):
                for e in range(2):
                    o.append(f"ds_read_b64_tr_b16 {ar(WF(rb,dt)+2*e,2)}, v{WRA+dt} offset:{WOFF[bf]+8192*s+1024*e}")
        return o
    a("s_waitcnt vmcnt(28)")
    a("s_barrier")
    stamp(a, cfg, 1)
    a.ext(qreads(0))
    a("s_waitcnt lgkmcnt(0)")
    pend = []
    for t in range(20):
        rb = t & 1
        mf = []
        for u in range(4):
            for dt in range(8):
                d = vr(O_(u, dt), 4)
                mf.append(f"{MF} {d}, {ar(WF(rb,dt),4)}, {ar(XF(rb,u),4)}, {'0' if t == 0 else d}")
        gaps = [[] for _ in mf]
        if t < 19:
            for i, r in enumerate(qreads(t + 1)): gaps[i + 1].append(r)
        if t & 1:
            c = t >> 1
            assert not pend
            if c + 3 < 10: pend = qstage(c % 3)
            elif c == 7: pend = vdma(cfg, 0) + ["s_add_u32 s33, s33, 16384"] + kdma(cfg, 1) + vdma(cfg, 1) + ["s_add_u32 s33, s33, 16384"]
            elif c == 8: pend = kdma(cfg, 2) + vdma(cfg, 2) + ["s_add_u32 s33, s33, 16384"]
        g = 0
        while pend and g < 30:
            x = pend.pop(0)
            gaps[g].append(x)
            if kind(x) == "vm": g += cfg.qspread - (1 if pend and kind(pend[0]) == "s" else 0)
            else: g += 1
        if t == 19: assert not pend
        if t < 19:
            if t & 1:
                gaps[31].append("s_waitcnt lgkmcnt(0)")
            else:
                assert not pend, t
                c = t >> 1
                if c + 1 < 10:
                    n = 16 if c + 1 in (1, 2) else 12
                    gaps[31] += [f"s_waitcnt vmcnt({n}) lgkmcnt(0)", "s_barrier"]
                else:
                    gaps[31].append("s_waitcnt lgkmcnt(0)")
        emit_gaps(a, mf, gaps)
    stamp(a, cfg, 2)
    sc = f32(math.log2(math.e) / math.sqrt(128.0))
    a(f"s_mov_b32 s52, {sc}")
    a(f"s_mov_b32 s53, {sc}")
    a("s_nop 4")
    for u in range(4):
        for m in range(4):
            t = 16 + 4 * (m & 1)
            b0 = O_(u, 2 * m)
            for i in range(4):
                a(f"v_pk_mul_f32 {vr(b0+2*i,2)}, {vr(b0+2*i,2)}, s[52:53]")
            for i in range(4):
                a(f"v_cvt_pk_bf16_f32 v{t+i}, v{b0+2*i}, v{b0+2*i+1}")
            a("s_nop 0")
            a(f"v_permlane32_swap_b32 v{t}, v{t+2}")
            a(f"v_permlane32_swap_b32 v{t+1}, v{t+3}")
            a("s_nop 0")
            a(f"v_permlane16_swap_b32 v{t}, v{t+2}")
            a(f"v_permlane16_swap_b32 v{t+1}, v{t+3}")
            for i in range(4):
                a(f"v_accvgpr_write_b32 a{Q_(u,m)+i}, v{t+i}")
    a("L_attn:")
    a("s_waitcnt vmcnt(16)")
    a("s_barrier")
    stamp(a, cfg, 3)
    for kt in range(2):
        for ks in range(4): a(kread(0, 0, 0, kt, ks))
    for dt in range(8):
        for e in range(2): a(vread(0, 0, 0, dt, e))
    a.ext(with_nop(kdma(cfg, 3) + vdma(cfg, 3)) + kv_advance())
    for u in (2, 3):
        for i in range(32): a(f"v_mov_b32 v{O_(u,0)+i}, 0")
        for i in range(4): a(f"v_accvgpr_write_b32 a{L_(u)+i}, 0")
    a("s_waitcnt lgkmcnt(0)")
    kr1 = [kread(1, 0, 1, kt, ks) for kt in range(2) for ks in range(4)]
    mf = sum([qk(u, 0, True) for u in range(4)], [])
    gaps = [[] for _ in mf]
    for i, r in enumerate(kr1): gaps[2 * i].append(r)
    emit_gaps(a, mf, gaps)
    for u in range(4):
        s0 = S_(u, 0)
        if u == 3: pass
        a(f"v_max3_f32 v16, v{s0}, v{s0+1}, v{s0+2}")
        a(f"v_max3_f32 v16, v16, v{s0+3}, v{s0+4}")
        a(f"v_max3_f32 v16, v16, v{s0+5}, v{s0+6}")
        a(f"v_max3_f32 v16, v16, v{s0+7}, v{MTR+u}")
        rowmax(a, 16, 17)
        for i in range(4): a(f"v_sub_f32 v{NM(u)+i}, 0, v16")
        nexp = 8 if u < 3 else 4
        for r in range(8): a(f"v_sub_f32 v{s0+r}, v{s0+r}, v16")
        for r in range(nexp): a(f"v_exp_f32 v{s0+r}, v{s0+r}")
        a("s_nop 0")
        for r in range(0, nexp, 2): a(f"v_cvt_pk_bf16_f32 v{P_(u)+r//2}, v{s0+r}, v{s0+r+1}")
        if u < 2:
            a("s_nop 1")
            a.ext(pv(u, 0, True))
    a("s_waitcnt lgkmcnt(0)")
    a("s_mov_b32 s34, 4")
    a(".p2align 6")
    a("L_loop:")
    body0 = len(a.l)
    for j in range(1, 9):
        mf, gaps = attn_tile(cfg, j)
        if j == 7:
            gaps[-3].append("s_sub_u32 s34, s34, 1")
            gaps[-1] += ["s_cmp_eq_u32 s34, 0", "s_cbranch_scc1 L_done"]
        if j == 8:
            gaps[-1].append("s_branch L_loop")
        emit_gaps(a, mf, gaps)
        if j == 7: cut7 = len(a.l)
    body = a.l[body0:]
    a("L_done:")
    tail0 = len(a.l)
    stamp(a, cfg, 4)
    mf = pv(2, 1)
    gaps = [[] for _ in mf]
    sm_half(gaps, 0, 3, 1)
    emit_gaps(a, mf, gaps)
    a("s_nop 1")
    a.ext(pv(3, 1))
    a(f"s_mov_b32 s52, {f32(cfg.lthr)}")
    a("s_mov_b64 s[54:55], 0")
    a("s_lshl_b32 s56, s3, 19")
    a("s_lshl_b32 s57, s29, 12")
    a("s_add_u32 s56, s56, s57")
    for u in range(4):
        if u == 3: a("s_nop 7")
        a(f"v_accvgpr_read_b32 v16, a{L_(u)}")
        a("s_nop 0")
        a(f"v_cmp_nlt_f32 vcc, v16, s52" if False else f"v_cmp_ngt_f32 vcc, s52, v16")
        a("v_rcp_f32 v16, v16")
        a("s_or_b64 s[54:55], s[54:55], vcc")
        a("v_mov_b32 v17, v16")
        for m in range(4):
            t = 20 + 4 * (m & 1)
            b0 = O_(u, 2 * m)
            for i in range(4):
                a(f"v_pk_mul_f32 {vr(b0+2*i,2)}, {vr(b0+2*i,2)}, v[16:17]")
            for i in range(4):
                a(f"v_cvt_pk_bf16_f32 v{t+i}, v{b0+2*i}, v{b0+2*i+1}")
            a(f"buffer_store_dwordx4 {vr(t,4)}, v15, s[{SO}:{SO+3}], s56 offen offset:{1024*m} {cfg.oflags}".rstrip())
        a("s_add_u32 s56, s56, 131072")
    if cfg.force_fb:
        a("s_mov_b64 s[54:55], -1")
    a("s_cmp_lg_u64 s[54:55], 0")
    a("s_cselect_b32 s52, 1, 0")
    a("s_lshl_b32 s53, s3, 2")
    a("s_add_u32 s53, s53, 131072")
    a("v_mov_b32 v16, s52")
    a("v_mov_b32 v17, s53")
    a("v_mov_b32 v18, 131072")
    a("ds_write_b32 v17, v16")
    a("s_waitcnt lgkmcnt(0)")
    a("s_barrier")
    a("ds_read_b128 v[20:23], v18")
    a("s_waitcnt lgkmcnt(0)")
    a("v_or3_b32 v20, v20, v21, v22")
    a("v_or_b32 v20, v20, v23")
    a("s_nop 0")
    a("v_readfirstlane_b32 s52, v20")
    a("s_nop 3")
    a("s_andn2_b32 s52, s52, s35")
    a("s_cmp_lg_u32 s52, 0")
    a("s_cbranch_scc1 L_exact")
    stamp(a, cfg, 5)
    if cfg.stamps or cfg.calib:
        a("s_waitcnt vmcnt(0)")
        stamp(a, cfg, 6)
        stamps_out(a, cfg, 7, 64 << 20)
    if cfg.calib:
        a("s_waitcnt lgkmcnt(0)")
        a("s_or_b32 s58, s2, s3")
        a("s_cmp_lg_u32 s58, 0")
        a("s_cbranch_scc1 L_a_end")
        a(f"s_sub_u32 s58, s{62+4*cfg.cal_j}, s{62+4*cfg.cal_i}")
        a("s_lshl_b32 s58, s58, 2")
        a("s_add_u32 s58, s58, s62")
        a("v_mov_b32 v8, s58")
        a("v_mov_b32 v9, 0x4000000")
        a("global_store_dword v9, v8, s[48:49] sc0 sc1")
        a("s_waitcnt vmcnt(0)")
    a("L_a_end:")
    a("s_endpgm")
    tail = a.l[tail0:]
    a("L_exact:")
    ex0 = len(a.l)
    a("s_mov_b32 s35, 1")
    a(f"s_mov_b32 s{SK+2}, {KVBYTES}")
    a(f"s_mov_b32 s{SV+2}, {KVBYTES}")
    a("s_mov_b32 s33, s40")
    a("s_waitcnt vmcnt(0)")
    a("L_exact_loop:")
    a("s_barrier")
    a.ext(with_nop(kdma(cfg, 0)))
    a("s_add_u32 s33, s33, 16384")
    a("s_waitcnt vmcnt(0)")
    a("s_barrier")
    for th in range(2):
        for kt in range(2):
            for ks in range(4): a(kread(0, 0, th, kt, ks))
        a("s_waitcnt lgkmcnt(0)")
        for u in range(4): a.ext(qk(u, 0, True))
        a("s_nop 7")
        for u in range(4):
            s0 = S_(u, 0)
            for r in range(0, 8, 2):
                a(f"v_max3_f32 v{MTR+u}, v{MTR+u}, v{s0+r}, v{s0+r+1}")
    a(f"s_cmp_lt_u32 s33, {KVBYTES}")
    a("s_cbranch_scc1 L_exact_loop")
    a("s_barrier")
    a("s_mov_b32 s33, s40")
    for sg in range(3):
        a.ext(with_nop(kdma(cfg, sg) + vdma(cfg, sg)))
        a("s_add_u32 s33, s33, 16384")
    a("s_branch L_attn")
    bad = check(a.l[:body0] + body[:], "attn-main") + check(body + body, "attn-loop") + check(body[:cut7 - body0] + tail, "attn-tail") + check(a.l[ex0:] + a.l[ex0:], "exact")
    assert bad == 0
    return a

def gen_oproj(cfg, name):
    a = Asm()
    ACC = lambda i, nt: 16 + 16 * i + 4 * nt
    OF = lambda sl, i: 20 * sl + 4 * i
    WF2 = lambda b, nt: 160 + 16 * b + 4 * nt
    WD, WR = 96, 100
    DEPTH = 6
    a("s_cmp_ge_u32 s2, 240")
    a("s_cbranch_scc1 L_b_end")
    stamp(a, cfg, 0)
    a("s_load_dwordx4 s[4:7], s[0:1], 32")
    a("s_load_dwordx2 s[48:49], s[0:1], 56")
    a("v_and_b32 v1, 63, v0")
    a("v_lshrrev_b32 v2, 6, v0")
    a("s_and_b32 s28, s2, 7")
    a("v_readfirstlane_b32 s3, v2")
    a("s_lshr_b32 s51, s2, 3")
    a("s_mul_i32 s29, s51, 26")
    a("s_lshr_b32 s29, s29, 8")
    a("s_mul_i32 s52, s29, 10")
    a("s_sub_u32 s30, s51, s52")
    a("v_and_b32 v2, 15, v1")
    a("v_lshrrev_b32 v3, 4, v1")
    a("v_lshrrev_b32 v4, 3, v1")
    a("v_and_b32 v5, 7, v1")
    a("v_bfe_u32 v6, v1, 2, 2")
    a("v_and_b32 v7, 3, v1")
    a("v_lshlrev_b32 v9, 1, v3")
    a("v_xor_b32 v9, v9, v5")
    a("v_lshlrev_b32 v9, 4, v9")
    a("v_mul_u32_u24 v8, 1280, v4")
    a("v_add_u32 v8, v8, v9")
    for pp in range(4):
        a(f"v_add_u32 v{WD+pp}, {pp*9216}, v8")
    a("s_mul_i32 s40, s3, 40960")
    a("v_lshl_add_u32 v10, v3, 2, v6")
    a("v_bfe_u32 v9, v10, 1, 2")
    a("v_lshlrev_b32 v9, 1, v9")
    a("v_lshrrev_b32 v11, 1, v7")
    a("v_and_b32 v12, 1, v7")
    a("v_lshlrev_b32 v12, 3, v12")
    a("v_lshl_add_u32 v12, v10, 7, v12")
    a("v_add_u32 v12, s40, v12")
    for nt in range(4):
        a(f"v_xor_b32 v8, {2*nt}, v9")
        a("v_or_b32 v8, v8, v11")
        a(f"v_lshl_add_u32 v{WR+nt}, v8, 4, v12")
    a("v_lshlrev_b32 v15, 4, v1")
    for i in range(5):
        a(f"v_add_u32 v{104+i}, {131072*i}, v15")
    a("s_waitcnt lgkmcnt(0)")
    a("s_mul_i32 s52, s3, %d" % (1024 * 1280))
    a("s_lshl_b32 s53, s30, 7")
    a("s_add_u32 s52, s52, s53")
    srd(a, 8, 4, "s52", 1024 * 1280 - 9 * 128)
    a("s_mul_i32 s52, s28, 15")
    a("s_mul_i32 s53, s29, 5")
    a("s_add_u32 s52, s52, s53")
    a("s_lshl_b32 s52, s52, 17")
    a("s_lshl_b32 s53, s3, 15")
    a("s_add_u32 s52, s52, s53")
    srd(a, 12, 48, "s52", 4 * 131072 + 32768)
    a("s_mul_i32 s52, s28, 240")
    a("s_mul_i32 s53, s29, 80")
    a("s_add_u32 s52, s52, s53")
    a("s_mul_i32 s52, s52, 1280")
    a("s_lshl_b32 s53, s30, 7")
    a("s_add_u32 s52, s52, s53")
    srd(a, 16, 6, "s52", 79 * 1280 + 128)
    a("s_mov_b32 s33, 0")
    a("s_mov_b32 s34, 0")
    def stage(sl):
        o = [f"s_add_u32 m0, s40, {4096*sl}", "s_nop 0"]
        o += [dma(WD + pp, 8, "s33", 1024 * pp, cfg.bflags) for pp in range(4)]
        o += [f"buffer_load_dwordx4 {ar(OF(sl,i),4)}, v{104+i}, s[12:15], s34 offen {cfg.orflags}".rstrip() for i in range(5)]
        o += ["s_add_u32 s33, s33, 40960", "s_add_u32 s34, s34, 1024", "s_cmp_lt_u32 s34, 32768", f"s_cselect_b32 s10, {1024*1280-9*128}, 0", f"s_cselect_b32 s14, {4*131072+32768}, 0"]
        return o
    def wreads(sl, b):
        return [f"ds_read_b64_tr_b16 {ar(WF2(b,nt)+2*e,2)}, v{WR+nt} offset:{4096*sl+2048*e}" for nt in range(4) for e in range(2)]
    for sl in range(DEPTH + 1):
        a.ext(stage(sl))
    for i in range(80): a(f"v_mov_b32 v{16+i}, 0")
    a(f"s_waitcnt vmcnt({9*DEPTH})")
    stamp(a, cfg, 1)
    a.ext(wreads(0, 0))
    a("s_mov_b32 s35, 4")
    a(".p2align 6")
    a("L_b_loop:")
    b0 = len(a.l)
    for t in range(8):
        mf = []
        for i in range(5):
            for nt in range(4):
                d = vr(ACC(i, nt), 4)
                mf.append(f"{MF} {d}, {ar(WF2(t&1,nt),4)}, {ar(OF(t,i),4)}, {d}")
        gaps = [[] for _ in mf]
        a(f"s_waitcnt vmcnt({9*(DEPTH-1)}) lgkmcnt(0)")
        for i, r in enumerate(wreads((t + 1) & 7, (t + 1) & 1)): gaps[i].append(r)
        st = [x for x in stage((t + DEPTH + 1) & 7) if x != "s_nop 0"]
        g = 4
        for x in st:
            gaps[g].append(x)
            g += 1
        if t == 7:
            gaps[19] += ["s_sub_u32 s35, s35, 1", "s_cmp_lg_u32 s35, 0", "s_cbranch_scc1 L_b_loop"]
        emit_gaps(a, mf, gaps)
    body = a.l[b0:]
    stamp(a, cfg, 2)
    a("s_waitcnt vmcnt(0) lgkmcnt(0)")
    a("s_barrier")
    a("s_mul_i32 s52, s3, 20480")
    a("v_add_u32 v8, s52, v15")
    for i in range(5):
        for nt in range(4):
            a(f"ds_write_b128 v8, {vr(ACC(i,nt),4)} offset:{1024*(4*i+nt)}")
    a("s_lshl_b32 s52, s3, 10")
    a("v_add_u32 v8, s52, v15")
    a("v_add_u32 v9, 40960, v8")
    a("s_waitcnt lgkmcnt(0)")
    a("s_barrier")
    for i in range(5):
        for w in range(4):
            a(f"ds_read_b128 {vr(16+16*i+4*w,4)}, v{8+(w>>1)} offset:{20480*(w&1)+4096*i}")
    a("v_mul_u32_u24 v10, 1280, v2")
    a("v_lshl_add_u32 v10, v3, 3, v10")
    a("s_lshl_b32 s52, s3, 5")
    for i in range(5):
        a(f"s_waitcnt lgkmcnt({min(15, 4*(4-i))})")
        b = 16 + 16 * i
        for r in range(0, 4, 2):
            a(f"v_pk_add_f32 {vr(b+r,2)}, {vr(b+r,2)}, {vr(b+4+r,2)}")
            a(f"v_pk_add_f32 {vr(b+8+r,2)}, {vr(b+8+r,2)}, {vr(b+12+r,2)}")
        for r in range(0, 4, 2):
            a(f"v_pk_add_f32 {vr(b+r,2)}, {vr(b+r,2)}, {vr(b+8+r,2)}")
        a(f"v_cvt_pk_bf16_f32 v{b}, v{b}, v{b+1}")
        a(f"v_cvt_pk_bf16_f32 v{b+1}, v{b+2}, v{b+3}")
        a(f"buffer_store_dwordx2 {vr(b,2)}, v10, s[16:19], s52 offen")
        a("s_add_u32 s52, s52, %d" % (16 * 1280))
    if cfg.stamps:
        a("s_waitcnt vmcnt(0)")
        stamp(a, cfg, 3)
        stamps_out(a, cfg, 4, 65 << 20)
    if cfg.calib:
        a("s_or_b32 s58, s2, s3")
        a("s_cmp_lg_u32 s58, 0")
        a("s_cbranch_scc1 L_b_end")
        a("v_mov_b32 v9, 0x4000000")
        a("global_load_dword v8, v9, s[48:49] sc0 sc1")
        a("s_waitcnt vmcnt(0)")
        a("v_readfirstlane_b32 s58, v8")
        a("L_spin:")
        a("s_memrealtime s[56:57]")
        a("s_waitcnt lgkmcnt(0)")
        a("s_sub_u32 s56, s56, s58")
        a(f"s_cmp_lt_i32 s56, {cfg.calib*100}")
        a("s_cbranch_scc1 L_spin")
    a("L_b_end:")
    a("s_endpgm")
    bad = check(a.l, "oproj") + check(body + body, "oproj-loop")
    assert bad == 0
    return a

HEAD = open(__file__.replace("gen.py", "../cdna_kernels/" + NAME + ".s.ref")).read().split("; Override launch")[0] if False else None

def kd(name, vg=512, acc=256):
    return f""".amdhsa_kernel {name}
  .amdhsa_next_free_vgpr {vg}
  .amdhsa_next_free_sgpr 102
  .amdhsa_accum_offset {acc}
  .amdhsa_group_segment_fixed_size 0
  .amdhsa_kernarg_size 64
  .amdhsa_user_sgpr_count 2
  .amdhsa_user_sgpr_kernarg_segment_ptr 1
  .amdhsa_system_sgpr_workgroup_id_x 1
.end_amdhsa_kernel
"""

def build(cfg):
    k1, k2 = NAME + "_kernel", "oproj_kernel"
    out = []
    out.append(f"; @launch kernel={k1} grid=(256,1,1) block=(256,1,1) lds=163840")
    out.append(f"; @launch kernel={k2} grid=(240,1,1) block=(256,1,1) lds=163840")
    out.append('.amdgcn_target "amdgcn-amd-amdhsa--gfx950"')
    out.append(".text")
    for k, g in ((k1, gen_attn), (k2, gen_oproj)):
        out.append(f".globl {k}\n.p2align 8\n.type {k},@function\n{k}:")
        out.append(g(cfg, k).text())
    out.append('.section .rodata,"a"')
    for k in (k1, k2):
        out.append(".p2align 6\n" + kd(k))
    return "\n".join(out)

if __name__ == "__main__":
    cfg = Cfg()
    path = sys.argv[1]
    for kv in sys.argv[2:]:
        k, v = kv.split("=", 1)
        old = getattr(cfg, k)
        setattr(cfg, k, type(old)(eval(v)) if isinstance(old, (bool, int, float)) else v)
    open(path, "w").write(build(cfg))
```

```python
import re

class Asm:
    def __init__(self):
        self.l = []
        self.stamps = []
    def __call__(self, s):
        for x in s.split("\n"):
            x = x.strip()
            if x:
                self.l.append(x)
    def ext(self, lst):
        for x in lst:
            self(x)
    def text(self):
        out = []
        for x in self.l:
            if x.endswith(":") or x.startswith("."):
                out.append(x)
            else:
                out.append("  " + x)
        return "\n".join(out) + "\n"

def vr(base, n=1, f="v"):
    return f"{f}{base}" if n == 1 else f"{f}[{base}:{base+n-1}]"
def ar(base, n=1):
    return vr(base, n, "a")
def sr(base, n=1):
    return vr(base, n, "s")

def kind(x):
    op = x.split()[0]
    if op.startswith("v_mfma"): return "mfma"
    if op.startswith("ds_"): return "ds"
    if op.startswith("buffer_") or op.startswith("global_"): return "vm"
    if op.startswith("v_"): return "valu"
    return "s"

def emit_gaps(a, mfmas, gaps, pre=None):
    for m, g in zip(mfmas, gaps):
        if m: a(m)
        tail = [x[1:] for x in g if x.startswith("!")]
        g = [x for x in g if not x.startswith("!")]
        first = [x for x in g if kind(x) != "valu"]
        rest = [x for x in g if kind(x) == "valu"]
        a.ext(first + rest + tail)

_reg = re.compile(r"\b([vas])(?:(\d+)|\[(\d+):(\d+)\])")
def regs(tok):
    out = set()
    for m in _reg.finditer(tok):
        f = m.group(1)
        if m.group(2) is not None:
            out.add((f, int(m.group(2))))
        else:
            for i in range(int(m.group(3)), int(m.group(4)) + 1):
                out.add((f, i))
    if re.search(r"\bvcc\b", tok): out.add(("s", "vcc"))
    if re.search(r"\bexec\b", tok): out.add(("s", "exec"))
    if re.search(r"\bm0\b", tok): out.add(("s", "m0"))
    return out

TRANS = ("v_exp_", "v_log_", "v_rcp_", "v_rsq_", "v_sqrt_", "v_sin_", "v_cos_")
def parse(x):
    op, _, rest = x.partition(" ")
    ops = [t.strip() for t in rest.split(",")] if rest else []
    k = kind(x)
    rd, wr = set(), set()
    info = dict(op=op, k=k, text=x)
    if k == "mfma":
        wr = regs(ops[0]); info["A"] = regs(ops[1]); info["B"] = regs(ops[2]); info["C"] = regs(ops[3])
        info["D"] = wr; info["Dtok"] = ops[0]; info["Ctok"] = ops[3].split()[0]
        rd = info["A"] | info["B"] | info["C"]
        info["passes"] = 8 if "32x32" in op else (2 if "4x4x4" in op else 4)
    elif k == "ds":
        if "read" in op or "permute" in op or "swizzle" in op or "rtn" in op:
            wr = regs(ops[0]); rd = set().union(*[regs(t) for t in ops[1:]])
        else:
            rd = set().union(*[regs(t) for t in ops])
    elif k == "vm":
        if op in ("buffer_wbl2", "buffer_inv"):
            pass
        elif " lds" in x or "_lds_" in op:
            rd = set().union(*[regs(t) for t in ops]) | {("s", "m0")}
            info["ldsdma"] = True
        elif "load" in op:
            wr = regs(ops[0]); rd = set().union(*[regs(t) for t in ops[1:]])
        elif "atomic" in op and "sc0" in x and op.startswith("global"):
            wr = regs(ops[0]); rd = set().union(*[regs(t) for t in ops[1:]])
        else:
            rd = set().union(*[regs(t) for t in ops])
            if "store" in op and ("x4" in op or "x3" in op):
                info["wide_store"] = regs(ops[0]) if op.startswith("buffer") else regs(ops[1])
    elif k == "valu":
        if op.startswith("v_cmp"):
            wr = regs(ops[0]); rd = set().union(*[regs(t) for t in ops[1:]])
            if op.startswith("v_cmpx"): wr |= {("s", "exec")}
        elif "permlane" in op and "swap" in op:
            wr = regs(ops[0]) | regs(ops[1]); rd = set(wr); info["permlane"] = True
        elif op.startswith("v_readfirstlane") or op.startswith("v_readlane"):
            wr = regs(ops[0]); rd = set().union(*[regs(t) for t in ops[1:]]); info["readlane"] = True
        elif "_co_" in op:
            wr = regs(ops[0]) | regs(ops[1]); rd = set().union(*[regs(t) for t in ops[2:]])
        else:
            wr = regs(ops[0]); rd = set().union(*[regs(t) for t in ops[1:]]) if len(ops) > 1 else set()
            if op.startswith("v_fmac") or op.startswith("v_dot2c") or op.startswith("v_writelane"): rd |= wr
        info["trans"] = op.startswith(TRANS)
        info["dpp"] = "dpp" in x or "row_" in x or "quad_perm" in x
    else:
        if op.startswith("s_cmp") or op.startswith("s_cbranch") or op in ("s_waitcnt", "s_barrier", "s_nop", "s_branch", "s_endpgm", "s_sleep", "s_setprio", "s_setpc_b64"):
            rd = set().union(*[regs(t) for t in ops]) if ops else set()
        else:
            wr = regs(ops[0]) if ops else set()
            rd = set().union(*[regs(t) for t in ops[1:]]) if len(ops) > 1 else set()
            if "saveexec" in op: wr |= {("s", "exec")}
    info["rd"], info["wr"] = rd, wr
    info["ws"] = int(ops[0]) + 1 if op == "s_nop" else 1
    return info

def need(p, c):
    n = 0
    pk, ck = p["k"], c["k"]
    vw = {r for r in p["wr"] if r[0] in "va"}
    sw = {r for r in p["wr"] if r[0] == "s"}
    if pk == "valu":
        if ck == "mfma" and vw & c["rd"]: n = max(n, 2)
        if ck == "mfma" and ("s", "exec") in sw: n = max(n, 4)
        if ck == "valu":
            if p.get("trans") and vw & c["rd"]: n = max(n, 1)
            if c.get("permlane") and vw & c["rd"]: n = max(n, 2)
            if c.get("dpp") and vw & c["rd"]: n = max(n, 2)
            if c.get("readlane") and vw & c["rd"]: n = max(n, 1)
            if sw & c["rd"]: n = max(n, 4 if c.get("readlane") else 2)
            if ("s", "exec") in sw and (c.get("readlane") or c.get("permlane")): n = max(n, 4)
            if ("s", "exec") in sw and c.get("dpp"): n = max(n, 5)
        if ck == "vm" and sw & c["rd"]: n = max(n, 5)
    if pk == "s" and ("s", "m0") in sw and c.get("ldsdma"): n = max(n, 1)
    if p.get("wide_store") and ck in ("valu", "mfma") and p["wide_store"] & c["wr"]: n = max(n, 2)
    if p.get("wide_store") and ck in ("ds", "vm") and p["wide_store"] & c["wr"]: n = max(n, 1)
    if pk == "mfma":
        ps = p["passes"]
        idx = {2: 0, 4: 1, 8: 2}[ps]
        if ck == "mfma":
            if p["D"] & c["C"]:
                if p["Dtok"] == c["Ctok"] and c["passes"] == ps: n = max(n, (2, 0, 0)[idx])
                else: n = max(n, (4, 6, 10)[idx])
            if p["D"] & (c["A"] | c["B"]): n = max(n, (5, 8, 12)[idx])
            if p["D"] & c["D"] and not (p["D"] & c["C"]): n = max(n, (4, 6, 10)[idx])
        else:
            if p["D"] & (c["rd"] | c["wr"]) and ck in ("valu", "ds", "vm"): n = max(n, (5, 8, 12)[idx])
            if ck == "valu" and p["C"] & c["wr"]: n = max(n, (1, 3, 7)[idx])
    return n

def check(lines, name="", follow=None):
    ins = [parse(x) for x in lines if not (x.endswith(":") or x.startswith(".") or x.startswith(";"))]
    bad = 0
    for j, c in enumerate(ins):
        dist = 0
        for i in range(j - 1, max(-1, j - 24), -1):
            p = ins[i]
            n = need(p, c)
            if n > dist:
                print(f"HAZARD[{name}] need {n} have {dist}:\n    {p['text']}\n    {c['text']}")
                bad += 1
            dist += p["ws"]
            if dist >= 20: break
    return bad

def fix(lines):
    out = []; hist = []
    for x in lines:
        if x.endswith(":") or x.startswith(".") or x.startswith(";"):
            out.append(x); continue
        c = parse(x)
        dist = 0; add = 0
        for p in reversed(hist[-24:]):
            add = max(add, need(p, c) - dist)
            dist += p["ws"]
            if dist >= 20: break
        if add > 0:
            n = f"s_nop {add-1}"
            out.append(n); hist.append(parse(n))
        out.append(x); hist.append(c)
    return out

def merge(*lists):
    lists = [l for l in lists if l]
    n = max(len(l) for l in lists)
    items = []
    for k, l in enumerate(lists):
        for i, x in enumerate(l): items.append(((i + 0.5) / len(l), k, x))
    items.sort(key=lambda t: (t[0], t[1]))
    return [x for _, _, x in items]
```

```python
import sys, math, struct
from asmlib import *

NAME = "standalone__mha_block_cached__near_ridge"
def f32(x): return struct.unpack("<I", struct.pack("<f", x))[0]
MF = "v_mfma_f32_16x16x32_bf16"

class Cfg:
    kvflags = "nt"
    oflags = "sc1"
    orflags = "sc1"
    xflags = ""
    bflags = ""
    stamps = False
    only = ""
    qspread = 4
    kvpace = 10.0
    lthr = 2.0 ** 40
    force_fb = False
    rot = 4
    rA = 0
    DO = 5
    NL = 3
    dmode = "even"
    xs = (0, 0, 0, 0, 0)
    k0at = 0
    X = 26
    wev = 1.0
    ncap = 3
    sig = "atomic"
    pkmul = True
    qord = 0
    exp = ""
    calib = 0
    cal_i = 0
    cal_j = 0

O_ = lambda u, dt: 32 + 32 * u + 4 * dt
S_ = lambda u, kt: 160 + 8 * u + 4 * kt
P_ = lambda u: 192 + 4 * u
NM = lambda u: 208 + 4 * u
KRA, VRA, KDA, VDA, MTR = 224, 228, 236, 240, 242
WD = 246
XDA, WDA, XRA, WRA = 192, 200, 204, 210
Q_ = lambda u, m: 16 * u + 4 * m
KF = lambda b, kt, ks: 64 + 32 * b + 16 * kt + 4 * ks
VF = lambda b, dt: 128 + 32 * b + 4 * dt
L_ = lambda u: 192 + 4 * u
ONES = 208
WF = lambda b, s, dt: 160 * b + 32 * s + 4 * dt
XF = lambda b, s, u: 160 * b + 64 + 16 * s + 4 * u
SX, SW, SK, SV, SO = 8, 12, 16, 20, 24
SWO, SOR, SOUT = 8, 12, 16
KVBYTES = 262144
XBASE = [(131072, 147456), (65536, 16384), (32768, 49152)]
WWIN = 81920
WOFF = [32768, 0, 16384]
UNIT = [0, 4, 8, 9, 1, 5, 2, 6, 3, 7]
WRL = [[28, 29, 30, 31], [250, 251, 252, 253], [7, 8, 9, 10]]
OAL = [4, 5, 13, 14, 254]
WBLK = [224, 240, 64, 80, 96, 112, 128, 144, 160, 176, 208, 192, 0, 16, 32, 48]
WS = lambda t, nt: WBLK[t % 16] + 4 * nt
def wreads(t):
    u_ = UNIT[t % 10]
    return [f"ds_read_b64_tr_b16 {ar(WS(t,nt)+2*e,2)}, v{WRL[u_>>2][nt]} offset:{16384*(u_&3)+2048*e}" for nt in range(4) for e in range(2)]
WOSZ = 1024 * 1280 - 9 * 128
ORSZ = 4 * 131072 + 32768

class Seq:
    def __init__(self): self.m = []; self.g = []
    def add(self, mfmas):
        n = len(self.m); self.m += mfmas; self.g += [[] for _ in mfmas]; return n
    def raw(self, lines):
        self.m.append(None); self.g.append(["!" + x for x in lines]); return len(self.m) - 1
    def put(self, i, x): self.g[i].append(x)
    def slots(self, i):
        n = 0
        for x in self.g[i]:
            k = kind(x.lstrip("!"))
            if k in ("ds", "vm", "valu"): n += 2 if x.lstrip("!").startswith(TRANS) else 1
        return n
    def place(self, lst, vmpos):
        vmpos = list(vmpos); pend = []; last = None
        for x in lst:
            if kind(x) == "vm":
                p = vmpos.pop(0)
                for k, s in enumerate(reversed(pend)): self.g[p - 1 - k].insert(0, s)
                pend = []; self.g[p].append(x); last = p
            else: pend.append(x)
        for k, s in enumerate(pend): self.g[last + 1 + k].insert(0, s)
    def stream(self, lst, start, cap=2, end=None):
        i = start
        for x in lst:
            c = 2 if x.startswith(TRANS) else (0 if kind(x) == "s" else 1)
            while self.slots(i) + c > cap and (end is None or i < end) and i + 1 < len(self.m): i += 1
            self.g[i].append("!" + x)
        return i
    def emit(self, a): emit_gaps(a, self.m, self.g)

def stamp_l(a, cfg, name):
    if (cfg.stamps or cfg.calib) and (cfg.only == "" or name in cfg.only.split(",") or name in ("start", "end")):
        i = len(a.stamps); a.stamps.append(name)
        assert i < 10
        return [f"s_memtime s[{60+4*i}:{61+4*i}]", f"s_memrealtime s[{62+4*i}:{63+4*i}]"]
    return []
def stamp(a, cfg, name): a.ext(stamp_l(a, cfg, name))

def stamps_out(a, cfg, wsoff):
    n = len(a.stamps)
    a.l.insert(0, "; stamps " + str(wsoff >> 20) + " " + " ".join(a.stamps))
    a("s_waitcnt lgkmcnt(0)")
    a(f"s_add_u32 s48, s48, {wsoff}")
    a("s_addc_u32 s49, s49, 0")
    a("s_mov_b32 s50, 0x100000")
    a("s_mov_b32 s51, 0x20000")
    a("s_lshl_b32 s52, s2, 2")
    a("s_add_u32 s52, s52, s3")
    a("s_lshl_b32 s52, s52, 7")
    a("v_mov_b32 v6, s52")
    a("v_cmp_eq_u32 vcc, 0, v1")
    a("s_and_saveexec_b64 s[54:55], vcc")
    for i in range(n):
        a(f"v_mov_b32 v4, s{60+4*i}")
        a(f"v_mov_b32 v5, s{62+4*i}")
        a(f"buffer_store_dwordx2 v[4:5], v6, s[48:51], 0 offen offset:{8*i}")
        a("s_nop 1")
    a("s_getreg_b32 s53, hwreg(HW_REG_XCC_ID)")
    a("v_mov_b32 v4, s53")
    a("buffer_store_dword v4, v6, s[48:51], 0 offen offset:120")
    a("v_mov_b32 v4, 0x5157")
    a(f"v_mov_b32 v5, {n}")
    a("buffer_store_dwordx2 v[4:5], v6, s[48:51], 0 offen offset:112")
    a("s_mov_b64 exec, s[54:55]")

def srd(s, plo, off_s, size):
    return [f"s_add_u32 s{s}, s{plo}, {off_s}", f"s_addc_u32 s{s+1}, s{plo+1}, 0", f"s_mov_b32 s{s+2}, {size}", f"s_mov_b32 s{s+3}, 0x20000"]
def dma(vaddr, sdesc, soff, imm, flags=""):
    o = f" offset:{imm}" if imm else ""
    f = f" {flags}" if flags else ""
    return f"buffer_load_dwordx4 v{vaddr}, s[{sdesc}:{sdesc+3}], {soff} offen{o}{f} lds"
def tag(lst, t):
    return [x + f" ;@{t}" if kind(x) == "vm" else x for x in lst]
def with_nop(lst):
    o = []
    for x in lst:
        o.append(x)
        if " m0," in x: o.append("s_nop 0")
    return o

def resolve_waits(lines):
    out = []; seq = []
    for x in lines:
        if x.startswith("WAITVM"):
            p = x.split(None, 2)
            idx = max(i for i, t in enumerate(seq) if t == p[1])
            n = min(len(seq) - 1 - idx, 63)
            out.append(f"s_waitcnt vmcnt({n})" + (" " + p[2] if len(p) > 2 else ""))
            continue
        if not (x.endswith(":") or x.startswith(".") or x.startswith(";")) and kind(x) == "vm" and not x.endswith(";@skip"):
            seq.append(x.split(";@")[1] if ";@" in x else "")
        if not x.startswith("buffer_dummy"): out.append(x.split(" ;@")[0])
    return out

def kdma(cfg, slot, so="s33"):
    return [f"s_add_u32 m0, s40, {16384*slot}"] + [dma(KDA + pp, SK, so, 1024 * pp, cfg.kvflags) for pp in range(4)]
def vdma(cfg, slot, so="s33"):
    return [f"s_add_u32 m0, s40, {65536+16384*slot}"] + [dma(VDA + (pp & 1), SV, so, 1024 * pp, cfg.kvflags) for pp in range(4)]
ADV = "s_add_u32 s33, s33, 16384"
def wdma(cfg, t):
    return [f"s_add_u32 s42, s41, {t}", "s_bfe_u32 s42, s42, 0x50000", "s_xor_b32 s42, s42, s37", "s_mul_i32 s42, s42, 40960", f"s_add_u32 m0, s40, {16384*UNIT[t%10]}"] + \
        tag([dma(WD + pp, SWO, "s42", 1024 * pp, cfg.bflags) for pp in range(4)], f"w{t}")
def kread(buf, slot, th, kt, ks):
    return f"ds_read_b128 {ar(KF(buf,kt,ks),4)}, v{KRA+ks} offset:{16384*slot+8192*th+4096*kt}"
def vread(buf, slot, th, dt, e):
    return f"ds_read_b64_tr_b16 {ar(VF(buf,dt)+2*e,2)}, v{VRA+dt} offset:{16384*slot+8192*th+4096*e}"

def qk(u, kb, czero=False, sl=None):
    m = []
    for kt in range(2):
        d = vr(S_(u if sl is None else sl, kt), 4)
        for ks in range(4):
            c = ("0" if czero else vr(NM(u), 4)) if ks == 0 else d
            m.append(f"{MF} {d}, {ar(KF(kb,kt,ks),4)}, {ar(Q_(u,ks),4)}, {c}")
    return m
def pv(u, vb, czero=False, sl=None):
    m = []
    p = vr(P_(u if sl is None else sl), 4)
    for dt in range(8):
        d = vr(O_(u, dt), 4)
        m.append(f"{MF} {d}, {ar(VF(vb,dt),4)}, {p}, {'0' if czero else d}")
    d = ar(L_(u), 4)
    m.append(f"{MF} {d}, {ar(ONES,4)}, {p}, {'0' if czero else d}")
    return m
def sm_half(q, g0, u, kt):
    s = S_(u, kt)
    for r in range(4):
        q.put(g0 + 2 * r, f"v_exp_f32 v{s+r}, v{s+r}")
        if r & 1: q.put(g0 + 2 * r + 1, f"v_cvt_pk_bf16_f32 v{P_(u)+2*kt+r//2}, v{s+r-1}, v{s+r}")

def attn_tile(cfg, q, j, mode="loop"):
    kb = vb = j & 1
    slot, th = (j >> 1) & 3, j & 1
    nslot, nth = ((j + 1) >> 1) & 3, (j + 1) & 1
    z = mode == "first"
    groups = [qk(0, kb), pv(2, vb ^ 1, z), qk(1, kb), pv(3, vb ^ 1, z), qk(2, kb), pv(0, vb), qk(3, kb), pv(1, vb)]
    st = [q.add(g) for g in groups]; st.append(len(q.m))
    sm_half(q, st[0], 3, 1)
    for u in range(3):
        sm_half(q, st[2 * u + 1], u, 0)
        sm_half(q, st[2 * u + 2], u, 1)
    sm_half(q, st[7], 3, 0)
    vr_ = [vread(vb, slot, th, dt, e) for dt in range(8) for e in range(2)]
    pos = [st[0] + k for k in (1, 3, 5, 5, 7)] + [st[1] + k for k in (1, 1, 3, 5, 5, 7, 8)] + [st[2] + k for k in (1, 3, 5, 5)]
    for p, r in zip(pos, vr_): q.put(p, r)
    mid = st[4] - 1
    if j & 1:
        if mode == "loop": q.put(mid, "s_waitcnt vmcnt(16) lgkmcnt(0)")
        else: q.put(mid, f"WAITVM seg{(j+1)//2} lgkmcnt(0)")
        q.put(mid, "s_barrier")
    else:
        q.put(mid, "s_waitcnt lgkmcnt(0)")
    kr_ = [kread(kb ^ 1, nslot, nth, kt, ks) for kt in range(2) for ks in range(4)]
    pos = [st[4] + k for k in (1, 3, 5, 7)] + [st[5] + k for k in (1, 3, 5, 7)]
    for p, r in zip(pos, kr_): q.put(p, r)
    q.put(st[8] - 2 if j != 29 else st[7], "s_waitcnt lgkmcnt(0)")
    dpos = [st[0] + 1, st[2] + 1, st[4] + 1, st[6] + 1]
    adv = [ADV, f"s_cmp_lt_u32 s33, {KVBYTES}", f"s_cselect_b32 s{SK+2}, {KVBYTES}, 0", f"s_mov_b32 s{SV+2}, s{SK+2}"]
    if mode != "final" and cfg.dmode == "even":
        if j & 1:
            pv_, k_ = vdma(cfg, (slot - 1) & 3), tag(kdma(cfg, slot), "seg4")
            if mode == "loop": q.place(pv_[3:] + adv[:3], dpos[:2])
            q.place(k_[:3], dpos[2:])
        else:
            k_, v_ = kdma(cfg, (slot - 1) & 3), vdma(cfg, (slot - 1) & 3)
            q.place(k_[3:], dpos[:2])
            q.place(v_[:3], dpos[2:])
    elif mode != "final" and cfg.dmode == "burst":
        if j & 1:
            q.place(tag(kdma(cfg, slot) + vdma(cfg, slot), "seg4"), [st[4] + 1, st[4] + 5, st[5] + 1, st[5] + 5, st[5] + 8, st[6] + 3, st[6] + 7, st[7] + 3])
        else:
            for k, x in enumerate(adv): q.g[st[0] + 2 * k].insert(0, x)
    elif mode != "final" and cfg.dmode == "half":
        if j & 1:
            q.place(tag(kdma(cfg, slot), "seg4"), [st[4] + 1, st[5] + 1, st[6] + 1, st[7] + 1])
        else:
            q.place(vdma(cfg, (slot - 1) & 3) + adv[:3], [st[0] + 1, st[1] + 3, st[2] + 1, st[3] + 1])
    return st

def rowmax_l(t, t2):
    return [f"v_mov_b32 v{t2}, v{t}", "s_nop 1", f"v_permlane32_swap_b32 v{t}, v{t2}", f"v_max_f32 v{t}, v{t}, v{t2}",
            f"v_mov_b32 v{t2}, v{t}", "s_nop 1", f"v_permlane16_swap_b32 v{t}, v{t2}", f"v_max_f32 v{t}, v{t}, v{t2}"]

def scale_pack(cfg, b0, t, mul, pk):
    o = []
    if pk: o += [f"v_pk_mul_f32 {vr(b0+2*i,2)}, {vr(b0+2*i,2)}, {mul[1]}" for i in range(4)]
    else: o += [f"v_mul_f32 v{b0+i}, {mul[0]}, v{b0+i}" for i in range(8)]
    o += [f"v_cvt_pk_bf16_f32 v{t+i}, v{b0+2*i}, v{b0+2*i+1}" for i in range(4)]
    return o

def gen(cfg):
    a = Asm()
    a("s_cmp_ge_u32 s2, 256")
    a("s_cbranch_scc1 L_end")
    stamp(a, cfg, "start")
    a("s_load_dwordx4 s[4:7], s[0:1], 0")
    a("s_load_dwordx4 s[44:47], s[0:1], 16")
    a("s_load_dwordx2 s[48:49], s[0:1], 56")
    a("v_and_b32 v1, 63, v0")
    a("v_lshrrev_b32 v2, 6, v0")
    a("s_and_b32 s50, s2, 7")
    a("v_readfirstlane_b32 s3, v2")
    a("s_lshr_b32 s51, s2, 3")
    a("s_and_b32 s28, s50, 1")
    a("s_lshl_b32 s28, s28, 2")
    a("s_and_b32 s52, s51, 3")
    a("s_add_u32 s28, s28, s52")
    a("s_lshr_b32 s29, s50, 1")
    a("s_lshl_b32 s29, s29, 3")
    a("s_lshr_b32 s53, s51, 2")
    a("s_add_u32 s29, s29, s53")
    if cfg.rot == 4:
        a("s_add_u32 s52, s52, s53")
        a("s_and_b32 s52, s52, 3")
        a("s_mul_i32 s52, s52, 5")
        a("s_lshr_b32 s32, s52, 1")
    elif cfg.rot == 2:
        a("s_mul_i32 s52, s52, 5")
        a("s_lshr_b32 s52, s52, 1")
        a("s_add_u32 s32, s52, s53")
        a("s_cmp_ge_u32 s32, 10")
        a("s_cselect_b32 s52, 10, 0")
        a("s_sub_u32 s32, s32, s52")
    elif cfg.rot == 3:
        a("s_add_u32 s52, s52, s53")
        a("s_and_b32 s52, s52, 1")
        a("s_mul_i32 s32, s52, 5")
    else:
        a("s_mov_b32 s32, 0")
    a("s_lshl_b32 s30, s32, 7")
    a("s_lshl_b32 s31, s32, 19")
    a("s_lshl_b32 s40, s3, 12")
    a("s_mov_b32 s33, s40")
    a("s_add_u32 s39, s40, %d" % WWIN)
    a("s_and_b32 s52, s3, 1")
    a("s_lshl_b32 s52, s52, 13")
    a("s_cmp_ge_u32 s3, 2")
    for bf in range(3):
        a(f"s_mov_b32 s53, {XBASE[bf][0]}")
        a(f"s_cselect_b32 s{36+bf}, {XBASE[bf][1]}, s53")
    for bf in range(3):
        a(f"s_add_u32 s{36+bf}, s{36+bf}, s52")
    a("s_mov_b32 s35, 0")
    a("v_and_b32 v2, 15, v1")
    a("v_lshrrev_b32 v3, 4, v1")
    a("v_lshrrev_b32 v4, 3, v1")
    a("v_and_b32 v5, 7, v1")
    a("v_bfe_u32 v6, v1, 2, 2")
    a("v_and_b32 v7, 3, v1")
    a("s_mul_i32 s52, s3, %d" % (64 * 1280))
    a("v_mul_u32_u24 v8, 1280, v4")
    a("v_add_u32 v8, s52, v8")
    for par in range(2):
        a(f"v_or_b32 v9, {4*par}, v3")
        a("v_xor_b32 v9, v9, v5")
        a(f"v_lshl_add_u32 v{16+par}, v9, 4, v8")
    for pp in range(8):
        a(f"v_add_u32 v{XDA+pp}, {10240*pp-1024*(pp&3)}, v{16+(pp&1)}")
    a("s_lshl_b32 s52, s3, 17")
    a("v_lshlrev_b32 v8, 13, v3")
    a("v_add_u32 v8, s52, v8")
    a("v_and_b32 v9, 1, v3")
    a("v_lshrrev_b32 v10, 1, v3")
    a("v_lshl_or_b32 v9, v10, 2, v9")
    a("v_xor_b32 v9, v9, v2")
    a("v_lshl_add_u32 v16, v9, 4, v8")
    a("v_xor_b32 v17, 128, v16")
    for pp in range(4):
        a(f"v_add_u32 v{WDA+pp}, {32768*pp-1024*pp}, v{16+(pp>>1)}")
    a("s_waitcnt lgkmcnt(0)")
    stamp(a, cfg, "kernarg")
    a("s_mul_i32 s52, s28, 307200")
    a.ext(srd(SX, 4, "s52", 307200))
    a("s_lshl_b32 s52, s29, 8")
    a.ext(srd(SW, 46, "s52", 640 * 8192 - 31 * 256))

    def qstage(c):
        bf = c % 3
        o = [f"s_mov_b32 m0, s{36+bf}"]
        o += [dma(XDA + pp, SX, "s30", 1024 * pp, cfg.xflags) for pp in range(4)]
        o += [f"s_add_u32 m0, s{36+bf}, 4096"]
        o += [dma(XDA + 4 + pp, SX, "s30", 1024 * pp, cfg.xflags) for pp in range(4)]
        o += [f"s_add_u32 m0, s39, {WOFF[bf]}"]
        o += [dma(WDA + pp, SW, "s31", 1024 * pp, cfg.xflags) for pp in range(4)]
        o += ["s_add_u32 s32, s32, 1", "s_cmp_eq_u32 s32, 10", "s_cselect_b32 s32, 0, s32", "s_lshl_b32 s30, s32, 7", "s_lshl_b32 s31, s32, 19"]
        return tag(o, f"c{c}")
    a.ext(with_nop(qstage(0)))
    a("s_load_dwordx4 s[56:59], s[0:1], 32")
    a("s_lshl_b32 s52, s28, 5")
    a("s_add_u32 s52, s52, s29")
    a("s_lshl_b32 s52, s52, 18")
    a.ext(srd(SK, 6, "s52", KVBYTES))
    a.ext(srd(SV, 44, "s52", KVBYTES))
    a("s_mul_i32 s52, s28, %d" % (15 * 131072))
    a.ext(srd(SO, 48, "s52", 15 * 131072))
    a("s_load_dwordx2 s[46:47], s[0:1], 48")
    a("v_lshlrev_b32 v10, 8, v3")
    for pp in range(4):
        a(f"v_add_u32 v9, {4*pp}, v3")
        a("v_xor_b32 v9, v9, v2")
        a(f"v_lshl_add_u32 v{KDA+pp}, v9, 4, v10")
    for pp in range(2):
        a(f"v_add_u32 v9, {4*pp}, v3")
        a("v_lshlrev_b32 v9, 1, v9")
        a("v_xor_b32 v9, v9, v2")
        a(f"v_lshl_add_u32 v{VDA+pp}, v9, 4, v10")
    a("v_lshrrev_b32 v9, 1, v2")
    for s in range(2):
        a(f"v_or_b32 v8, {4*s}, v3")
        a("v_xor_b32 v8, v8, v9")
        a("v_lshlrev_b32 v8, 4, v8")
        a("v_lshl_add_u32 v8, v2, 7, v8")
        for bf in range(3):
            a(f"v_add_u32 v{XRA+2*bf+s}, s{36+bf}, v8")
    a("v_lshrrev_b32 v11, 1, v7")
    a("v_and_b32 v12, 1, v7")
    a("v_lshlrev_b32 v12, 3, v12")
    a("v_and_b32 v9, 1, v6")
    a("v_lshrrev_b32 v10, 1, v6")
    a("v_lshl_or_b32 v9, v10, 2, v9")
    a("v_and_b32 v10, 1, v3")
    a("v_lshl_or_b32 v9, v10, 3, v9")
    a("v_lshl_or_b32 v9, v11, 1, v9")
    a("v_lshl_add_u32 v13, v3, 3, v6")
    a("v_lshl_add_u32 v13, v13, 8, v12")
    a(f"v_add_u32 v13, {WWIN}, v13")
    for dt in range(8):
        a(f"v_xor_b32 v8, {4*(dt>>1)+(dt&1)}, v9")
        a(f"v_lshl_add_u32 v{WRA+dt}, v8, 4, v13")
    a("v_lshl_or_b32 v9, v10, 2, v6")
    a("v_lshl_or_b32 v9, v9, 1, v11")
    a("v_lshl_add_u32 v14, v3, 2, v6")
    a("v_lshl_add_u32 v14, v14, 8, v12")
    a("v_add_u32 v14, 65536, v14")
    for dt in range(8):
        a(f"v_xor_b32 v8, {2*dt}, v9")
        a(f"v_lshl_add_u32 v{VRA+dt}, v8, 4, v14")
    for ks in range(4):
        a(f"v_or_b32 v8, {4*ks}, v3")
        a("v_xor_b32 v8, v8, v2")
        a("v_lshlrev_b32 v8, 4, v8")
        a(f"v_lshl_add_u32 v{KRA+ks}, v2, 8, v8")
    for i in range(4):
        a(f"v_mov_b32 v{MTR+i}, 0xff800000")
    a("v_lshlrev_b32 v15, 4, v1")
    a("v_lshlrev_b32 v9, 1, v3")
    a("v_xor_b32 v9, v9, v5")
    a("v_lshlrev_b32 v9, 4, v9")
    a("v_mul_u32_u24 v8, 1280, v4")
    a("v_add_u32 v8, v8, v9")
    for pp in range(4):
        a(f"v_add_u32 v{WD+pp}, {pp*9216}, v8")
    a("v_lshl_add_u32 v14, v3, 2, v6")
    a("v_bfe_u32 v13, v14, 1, 2")
    a("v_lshl_or_b32 v13, v13, 1, v11")
    a("v_lshl_add_u32 v14, v14, 7, v12")
    a("v_add_u32 v14, s40, v14")
    for nt in range(4):
        a(f"s_add_u32 s53, s3, {nt}")
        a("s_and_b32 s53, s53, 3")
        a("s_lshl_b32 s53, s53, 1")
        a("v_xor_b32 v16, s53, v13")
        a(f"v_lshl_add_u32 v{WRL[0][nt]}, v16, 4, v14")
        a(f"v_add_u32 v{WRL[1][nt]}, 65536, v{WRL[0][nt]}")
        a(f"v_add_u32 v{WRL[2][nt]}, 131072, v{WRL[0][nt]}")
    for i in range(5): a(f"v_add_u32 v{OAL[i]}, {131072*i}, v15")
    a("s_min_u32 s51, s51, 29")
    a("s_cmp_ge_u32 s51, 15")
    a("s_cselect_b32 s52, 1, 0")
    a("s_cselect_b32 s53, 15, 0")
    a("s_sub_u32 s53, s51, s53")
    a("s_and_b32 s43, s50, 6")
    a("s_add_u32 s43, s43, s52")
    a("s_mul_i32 s54, s53, 52")
    a("s_lshr_b32 s54, s54, 8")
    a("s_mul_i32 s41, s54, 5")
    a("s_sub_u32 s53, s53, s41")
    a("s_lshl_b32 s34, s53, 2")
    a("s_and_b32 s55, s50, 1")
    a("s_mul_i32 s55, s55, 5")
    a("s_add_u32 s55, s55, s53")
    a("s_mul_i32 s52, s52, 15")
    a("s_add_u32 s41, s41, s52")
    if cfg.rA:
        a(f"s_mul_i32 s53, s53, {cfg.rA}")
        a("s_add_u32 s41, s41, s53")
    a("s_and_b32 s41, s41, 31")
    sc = f32(math.log2(math.e) / math.sqrt(128.0))
    a(f"s_mov_b32 s44, {sc}")
    a(f"s_mov_b32 s45, {sc}")
    a.ext(with_nop(qstage(1)))
    stamp(a, cfg, "issued")

    def qreads(c):
        bf, rb = c % 3, c & 1
        o = []
        for s in range(2):
            o.append(f"ds_read_b128 {ar(XF(rb,s,0),4)}, v{XRA+2*bf+s}")
        for dt in range(8):
            for s in range(2):
                for e in range(2):
                    o.append(f"ds_read_b64_tr_b16 {ar(WF(rb,s,dt)+2*e,2)}, v{WRA+dt} offset:{WOFF[bf]+8192*s+1024*e}")
        for u in range(1, 4):
            for s in range(2):
                o.append(f"ds_read_b128 {ar(XF(rb,s,u),4)}, v{XRA+2*bf+s} offset:{2048*u}")
        return o
    a("WAITVM c0 lgkmcnt(0)")
    a("s_barrier")
    stamp(a, cfg, "landed")
    a.ext(qreads(0))
    a.ext(with_nop(qstage(2)))
    a("s_waitcnt lgkmcnt(0)")
    q = Seq()
    per = []
    for c in range(10):
        rb = c & 1
        mf = []
        order = [(u, dt, s) for u in range(4) for dt in range(8) for s in range(2)]
        if cfg.qord == 1: order.sort(key=lambda x: (x[0], x[2], x[1]))
        if cfg.qord == 2 and c < 9: order.sort(key=lambda x: (x[1], x[2], x[0]))
        if cfg.qord == 3 and c < 9: order.sort(key=lambda x: (x[2], x[0], x[1]))
        for u, dt, s in order:
            d = vr(O_(u, dt), 4)
            mf.append(f"{MF} {d}, {ar(WF(rb,s,dt),4)}, {ar(XF(rb,s,u),4)}, {'0' if c == 0 and s == 0 else d}")
        p0 = q.add(mf); per.append(p0)
        if c == 0:
            q.put(p0 + 20, "WAITVM c1"); q.put(p0 + 20, "s_barrier")
            for i, r in enumerate(qreads(1)): q.put(p0 + 21 + (i * 3) // 4, r)
            q.place(qstage(3), [p0 + 23 + 3 * i for i in range(12)])
        elif c < 9:
            for i, r in enumerate(qreads(c + 1)): q.put(p0 + (i * 5) // 4, r)
        if 0 < c < 7:
            q.place(qstage(c + 3), [p0 + 1 + cfg.qspread * i for i in range(12)])
        if c < 8:
            q.put(p0 + 63, f"WAITVM c{c+2} lgkmcnt(0)"); q.put(p0 + 63, "s_barrier")
        elif c == 8:
            q.put(p0 + 63, "s_waitcnt lgkmcnt(0)"); q.put(p0 + 63, "s_barrier")
        for x in stamp_l(a, cfg, f"q{c+1}"): q.put(p0 + 63, "!" + x)
    sw = [f"s_mov_b32 s52, {sum(v << (4*k) for k, v in enumerate(cfg.xs))}", "s_lshr_b32 s52, s52, s34", "s_and_b32 s37, s52, 15"]
    sw += ["s_mul_i32 s52, s3, %d" % (1024 * 1280), "s_lshl_b32 s53, s55, 7", "s_add_u32 s52, s52, s53"] + srd(SWO, 56, "s52", WOSZ) + \
         ["s_mul_i32 s52, s43, 15", "s_mul_i32 s53, s54, 5", "s_add_u32 s52, s52, s53", "s_lshl_b32 s52, s52, 17", "s_lshl_b32 s53, s3, 15",
          "s_add_u32 s52, s52, s53"] + srd(SOR, 48, "s52", ORSZ)
    i = per[8] + 2
    k = 0
    while k < len(sw):
        n = 2 if "s_addc" in sw[min(k + 1, len(sw) - 1)] else 1
        for x in sw[k:k + n]: q.put(i, x)
        k += n; i += 2
    p9 = per[9]
    def qepi(u):
        o = []
        for m in range(4):
            t = 16 + 4 * (m & 1)
            o += scale_pack(cfg, O_(u, 2 * m), t, ("s44", "s[44:45]"), cfg.pkmul)
            if m:
                tp = 16 + 4 * ((m - 1) & 1)
                o += [f"v_accvgpr_write_b32 a{Q_(u,m-1)+i}, v{tp+i}" for i in range(4)]
            o += [f"v_permlane16_swap_b32 v{t}, v{t+2}", f"v_permlane16_swap_b32 v{t+1}, v{t+3}"]
        o += [f"v_accvgpr_write_b32 a{Q_(u,3)+i}, v{20+i}" for i in range(4)]
        return o
    q.put(p9 + 31, "WAITVM seg0"); q.put(p9 + 31, "s_barrier")
    for x in stamp_l(a, cfg, "b0"): q.put(p9 + 31, "!" + x)
    k0r = [kread(0, 0, 0, kt, ks) for kt in range(2) for ks in range(4)]
    for i, r in enumerate(k0r): q.put(p9 + 32 + 2 * i, r)
    e = q.stream(qepi(0), p9 + 16 + 4, cap=4)
    e = q.stream(qepi(1), max(e, p9 + 32 + 4), cap=4)
    e = q.stream(qepi(2), max(e, p9 + 48 + 4), cap=4)
    q.put(p9 + 62, "s_waitcnt lgkmcnt(0)")
    lab = q.raw([])
    for x in stamp_l(a, cfg, "g0"): q.put(len(q.m) - 1, "!" + x)
    g0 = q.add(qk(0, 0, True))
    g1 = q.add(qk(1, 0, True))
    g2 = q.add(qk(2, 0, True))
    v0r = [vread(0, 0, 0, dt, e_) for dt in range(8) for e_ in range(2)]
    k1r = [kread(1, 0, 1, kt, ks) for kt in range(2) for ks in range(4)]
    for i, r in enumerate(v0r + k1r): q.put(g0 + i, r)
    e = q.stream(qepi(3), max(e, g0), cap=4)
    def fmax(u):
        s0 = S_(u, 0); t = NM(u)
        o = [f"v_max3_f32 v{t}, v{s0}, v{s0+1}, v{s0+2}", f"v_max3_f32 v{t+1}, v{s0+3}, v{s0+4}, v{s0+5}",
             f"v_max3_f32 v{t}, v{t}, v{s0+6}, v{s0+7}", f"v_max3_f32 v{t}, v{t}, v{t+1}, v{MTR+u}"]
        return o + [x for x in rowmax_l(t, t + 1) if "s_nop" not in x]
    def fexp(u, nexp):
        s0 = S_(u, 0); t = NM(u)
        o = [f"v_sub_f32 v{s0+r}, v{s0+r}, v{t}" for r in range(8)]
        o += [f"v_exp_f32 v{s0+r}, v{s0+r}" for r in range(nexp)]
        o += [f"v_sub_f32 v{NM(u)+i}, 0, v{t}" for i in (1, 2, 3, 0)]
        o += [f"v_cvt_pk_bf16_f32 v{P_(u)+r//2}, v{s0+r}, v{s0+r+1}" for r in range(0, nexp, 2)]
        return o
    ones = ["v_mov_b32 v27, 0x3f803f80"] + [f"v_accvgpr_write_b32 a{ONES+i}, v27" for i in range(4)]
    e = q.stream(merge(fmax(0), fmax(1), ones), max(e, g2 + 1), cap=4)
    for x in stamp_l(a, cfg, "g3"): q.put(len(q.m) - 1, "!" + x)
    g3 = q.add(qk(3, 0, True))
    e = q.stream(merge(fexp(0, 8), fmax(2)), g3, cap=6)
    q.raw(["s_waitcnt lgkmcnt(0)"])
    for x in stamp_l(a, cfg, "g4"): q.put(len(q.m) - 1, "!" + x)
    g4 = q.add(pv(0, 0, True))
    e = q.stream(merge(fexp(1, 8), fmax(3)), g4, cap=5)
    for x in stamp_l(a, cfg, "g5"): q.put(len(q.m) - 1, "!" + x)
    g5 = q.add(pv(1, 0, True))
    e = q.stream(merge(fexp(2, 8), fexp(3, 4)), g5, cap=7)
    for x in stamp_l(a, cfg, "tile1"): q.raw([x])
    st1 = attn_tile(cfg, q, 1, "first")
    kv = []
    for sg in range(4): kv += tag(kdma(cfg, sg) + vdma(cfg, sg), f"seg{sg}") + [ADV]
    pos = [per[cfg.k0at] + 50 + 3 * k for k in range(4)] if cfg.k0at else []
    i = per[7] + 1; acc = cfg.kvpace
    free_at = [per[7], per[7], per[7], per[7], per[8], per[8], per[8], per[9]]
    while len(pos) < 32:
        ok = q.m[i] and q.m[i - 1] and q.m[i + 1] and (q.slots(i) < 2 or i > p9 + 16) and i > free_at[len(pos) // 4]
        if ok and acc >= cfg.kvpace:
            pos.append(i); acc = 0
        acc += max(4, 2 + q.slots(i)) / 4
        i += 1
    assert pos[7] < p9 + 31 and pos[-1] < st1[4] - 2, (pos, p9, st1)
    if "nokv23" in cfg.exp: kv = [("buffer_dummy ;@" + x.split(";@")[1]) if (x.endswith("seg2") or x.endswith("seg3")) else x for x in kv]
    q.place(kv, pos)
    q.emit(a)
    a.l = fix(resolve_waits(a.l))
    a("s_mov_b32 s34, 3")
    a(".p2align 6")
    a("L_loop:")
    body0 = len(a.l)
    q = Seq()
    for j in range(2, 10): attn_tile(cfg, q, j)
    q.put(-3, "s_sub_u32 s34, s34, 1")
    q.put(-1, "s_cmp_lg_u32 s34, 0"); q.put(-1, "s_cbranch_scc1 L_loop")
    q.emit(a)
    a.l = a.l[:body0] + [x.split(" ;@")[0] for x in a.l[body0:]]
    body = a.l[body0:]
    b = Asm(); b.stamps = a.stamps
    for t_ in ["seg14"] * 8 + ["seg15"] * 8 + ["null"] * {"even": 2, "burst": 8, "half": 4}[cfg.dmode]: b(f"buffer_dummy ;@{t_}")
    q = Seq()
    sts = {j: attn_tile(cfg, q, j, "final") for j in range(26, 30)}
    def wpos(st, half):
        return [st[4*half] + 1, st[4*half+1] + 8 if half == 0 else st[5] + 1, st[4*half+2] + (7 if half == 0 else 1), st[4*half+3] + 1]
    for j, (t0, t1) in {26: (0, 1), 27: (2, 3), 28: (4, 5), 29: (10, 6)}.items():
        st = sts[j]
        q.place(wdma(cfg, t0), [st[1] + 8, st[2] + 7, st[3] + 1, st[3] + 5])
        q.place(wdma(cfg, t1), [st[5] + 8, st[6] + 1, st[6] + 5, st[7] + 5])
    st = sts[28]
    q.g[st[5] + 8].insert(0, "WAITVM w1")
    for p, r in zip([st[5] + 8, st[6] + 1, st[6] + 3, st[6] + 5, st[6] + 7, st[7] + 1, st[7] + 1, st[7] + 3], wreads(0)): q.put(p, r)
    k = q.g[st[8] - 2].index("s_waitcnt lgkmcnt(0)"); q.g[st[8] - 2][k] = "s_waitcnt lgkmcnt(8)"
    st = sts[29]
    q.put(st[1] + 7, "s_waitcnt lgkmcnt(10)")
    for p, r in zip([st[4] + 1, st[4] + 5, st[5] + 1, st[5] + 5, st[5] + 8, st[6] + 1, st[6] + 3, st[6] + 5], wreads(1)): q.put(p, r)
    k = q.g[st[7]].index("s_waitcnt lgkmcnt(0)"); q.g[st[7]][k] = "s_waitcnt lgkmcnt(4)"
    st = sts[29]
    for p, r in zip([st[7] + k for k in (1, 1, 3, 5, 7, 8, 8)] + [st[8]], [kread(1, 3, 1, kt, ks) for kt in range(2) for ks in range(4)]):
        if p < st[8]: q.put(p, r)
        else: lastk = r
    for x in stamp_l(b, cfg, "t30"): q.put(len(q.m) - 1, "!" + x)
    job = lambda k: (k >> 1, k & 1, k & 3)
    F = []
    for k in range(8):
        u, tb, sl = job(k)
        F.append(q.add(qk(u, tb, sl=sl)))
        if k < 2: F.append(q.add(pv(2 + k, 1)))
        else:
            u, tb, sl = job(k - 2); F.append(q.add(pv(u, tb, sl=sl)))
    for k in (6, 7):
        u, tb, sl = job(k); F.append(q.add(pv(u, tb, sl=sl)))
    F.append(len(q.m))
    sm_half(q, F[0], 3, 1)
    for k in range(8):
        sm_half(q, F[2 * k + 1], k & 3, 0); sm_half(q, F[2 * k + 2], k & 3, 1)
    q.put(F[0] + 1, lastk)
    v30 = [vread(0, 3, 0, dt, e) for dt in range(8) for e in range(2)]
    v31 = [vread(1, 3, 1, dt, e) for dt in range(8) for e in range(2)]
    for p, r in zip([F[0] + k for k in (1, 3, 5, 5, 7)] + [F[1] + k for k in (1, 1, 3, 5, 5, 7)] + [F[2] + k for k in (1, 1, 3, 5, 5)], v30): q.put(p, r)
    q.put(F[1] + 8, "s_waitcnt lgkmcnt(10)")
    for p, r in zip([F[4] + k for k in (1, 1, 3, 5, 5, 7)] + [F[5] + k for k in (1, 1, 3, 5, 5, 7, 8, 8)] + [F[6] + k for k in (1, 1)], v31): q.put(p, r)
    q.put(F[4], "s_waitcnt lgkmcnt(0)")
    q.put(F[7] - 1, "s_waitcnt lgkmcnt(0)"); q.put(F[7] - 1, "s_barrier")
    q.place(wdma(cfg, 11), [F[2] + 7, F[3] + 1, F[3] + 3, F[3] + 5])
    q.place(wdma(cfg, 7), [F[5] + 3, F[5] + 7, F[6] + 3, F[6] + 5])
    q.place(wdma(cfg, 8), [F[7] + 5, F[7] + 7, F[7] + 8, F[8] + 1])
    q.place(wdma(cfg, 9), [F[8] + 7, F[9] + 1, F[9] + 3, F[9] + 5])
    def onorm(u):
        o = [f"v_accvgpr_read_b32 v16, a{L_(u)}", "v_cmp_ngt_f32 vcc, s36, v16", "v_rcp_f32 v16, v16", "s_or_b64 s[50:51], s[50:51], vcc", "v_mov_b32 v17, v16"]
        for m in range(4):
            t = 20 + 4 * (m & 1)
            o += scale_pack(cfg, O_(u, 2 * m), t, ("v16", "v[16:17]"), True)
            o += [f"buffer_store_dwordx4 {vr(t,4)}, v15, s[{SO}:{SO+3}], s30 offen offset:{1024*m} {cfg.oflags}".rstrip() + " ;@ost"]
        o += ["s_add_u32 s30, s30, 131072"]
        return o
    for k, x in enumerate([f"s_mov_b32 s36, {f32(cfg.lthr)}", "s_mov_b64 s[50:51], 0", "s_lshl_b32 s30, s3, 19", "s_lshl_b32 s31, s29, 12", "s_add_u32 s30, s30, s31"]):
        q.g[F[4] + 2 + k].insert(0, x)
    e = q.stream(onorm(0), F[8] + 4, cap=cfg.ncap)
    e = q.stream(onorm(1), max(e, F[12] + 4), cap=cfg.ncap)
    e = q.stream(onorm(2), max(e, F[16] + 4), cap=cfg.ncap + 2)
    q.emit(b)
    stamp(b, cfg, "loopend")
    def park(t): return [f"WAITVM w{t}"] + wreads(t)
    def refill(t): return with_nop(wdma(cfg, t + 10))
    b.ext(park(2) + park(3))
    b.ext(onorm(3))
    stamp(b, cfg, "stored")
    if cfg.force_fb: b("s_mov_b64 s[50:51], -1")
    b("s_cmp_lg_u64 s[50:51], 0")
    b("s_cselect_b32 s52, 1, 0")
    b(f"s_add_u32 s53, s40, {16384*UNIT[2]}")
    b("v_mov_b32 v16, s52")
    b("v_mov_b32 v17, s53")
    b("v_and_b32 v18, 3, v1")
    b("v_lshlrev_b32 v18, 12, v18")
    b(f"v_add_u32 v18, {16384*UNIT[2]}, v18")
    b("s_waitcnt lgkmcnt(0)")
    b("ds_write_b32 v17, v16")
    b.ext(refill(3) + park(4) + park(5))
    b("s_waitcnt lgkmcnt(0)")
    b("s_barrier")
    b("ds_read_b32 v20, v18")
    b.ext(refill(4) + park(6) + park(7))
    b("s_waitcnt lgkmcnt(0)")
    b("v_cmp_ne_u32 vcc, 0, v20")
    b("s_cmp_eq_u32 s35, 0")
    b("s_cselect_b64 s[52:53], vcc, 0")
    b("s_cmp_lg_u64 s[52:53], 0")
    b("s_cbranch_scc1 L_exact")
    b.ext(park(8) + park(9) + park(10) + park(11))
    b("WAITVM ost")
    b("s_barrier")
    b("s_cmp_lg_u32 s3, 0")
    b("s_cbranch_scc1 L_nosig")
    b("s_mov_b64 exec, 1")
    if cfg.sig == "atomic":
        b("s_lshl_b32 s52, s28, 2")
        b("s_lshr_b32 s53, s29, 3")
        b("s_add_u32 s52, s52, s53")
        b("s_lshl_b32 s52, s52, 3")
        b("v_mov_b32 v16, s52")
        b("v_mov_b32 v17, 1")
        b("global_atomic_add v16, v17, s[46:47] sc1 ;@skip")
    else:
        b("s_lshl_b32 s52, s28, 5")
        b("s_add_u32 s52, s52, s29")
        b("v_mov_b32 v16, s52")
        b("v_mov_b32 v17, 1")
        b("global_store_byte v16, v17, s[46:47] sc1 ;@skip")
    b("s_mov_b64 exec, -1")
    b("L_nosig:")
    stamp(b, cfg, "signaled")
    b("s_lshr_b32 s52, s2, 3")
    b("s_cmp_ge_u32 s52, 30")
    b("s_cbranch_scc1 L_fin")
    b("s_waitcnt lgkmcnt(0)")
    b.ext(refill(2))
    for t in range(5, 12): b.ext(refill(t))
    prev = None
    for t in range(12, 16):
        b.ext(park(t))
        if prev is not None and prev + 10 < cfg.X:
            b("s_waitcnt lgkmcnt(8)")
            b.ext(refill(prev))
        prev = t
    b("s_waitcnt lgkmcnt(0)")
    if prev + 10 < cfg.X: b.ext(refill(prev))
    stamp(b, cfg, "parked")
    b("s_lshl_b32 s52, s43, 2")
    b("s_add_u32 s52, s52, s3")
    b("s_lshl_b32 s52, s52, 3")
    b("v_mov_b32 v16, s52")
    b("s_mov_b32 s34, 0x100000")
    b("L_poll:")
    if cfg.sig == "atomic":
        b("global_load_dword v17, v16, s[46:47] sc1")
        b("s_waitcnt vmcnt(0)")
        b("v_readfirstlane_b32 s52, v17")
        b("s_sub_u32 s34, s34, 1")
        b("s_cselect_b32 s52, 8, s52")
        b("s_cmp_lt_u32 s52, 8")
    else:
        b("global_load_dwordx2 v[18:19], v16, s[46:47] sc1")
        b("s_waitcnt vmcnt(0)")
        b("v_and_b32 v17, v18, v19")
        b("s_nop 0")
        b("v_readfirstlane_b32 s52, v17")
        b("s_sub_u32 s34, s34, 1")
        b("s_cselect_b32 s52, 0x01010101, s52")
        b("s_cmp_lg_u32 s52, 0x01010101")
    b("s_cbranch_scc1 L_poll")
    stamp(b, cfg, "polled")
    a.l += fix(resolve_waits(b.l))
    c = Asm(); c.stamps = a.stamps
    for t in range(cfg.X): c(f"buffer_dummy ;@w{t}")
    ACC = lambda i, nt: 32 + 16 * i + 4 * nt
    OFB = [112, 132, 152, 172, 192]
    OF = lambda t, i: OFB[t % cfg.DO] + 4 * i
    def oload(t):
        return [f"s_add_u32 s30, s41, {t}", "s_xor_b32 s30, s30, s37", "s_lshl_b32 s30, s30, 10", "s_and_b32 s30, s30, 0x7fff"] + \
            tag([f"buffer_load_dwordx4 {vr(OF(t,i),4)}, v{OAL[i]}, s[{SOR}:{SOR+3}], s30 offen {cfg.orflags}".rstrip() for i in range(5)], f"o{t}")
    for t in range(cfg.DO - 1): c.ext(oload(t))
    c("s_mul_i32 s52, s43, 240")
    c("s_mul_i32 s53, s54, 80")
    c("s_add_u32 s52, s52, s53")
    c("s_mul_i32 s52, s52, 1280")
    c("s_lshl_b32 s53, s55, 7")
    c("s_add_u32 s52, s52, s53")
    c.ext(srd(SOUT, 58, "s52", 79 * 1280 + 128))
    for j in range(1, 4):
        c(f"s_add_u32 s52, s3, {j}")
        c("s_and_b32 s52, s52, 3")
        c("s_mul_i32 s52, s52, 15360")
        c(f"v_add_u32 v{240+j}, s52, v15")
    c("s_mul_i32 s52, s3, 15360")
    c("v_add_u32 v240, s52, v15")
    c("v_mul_u32_u24 v244, 1280, v2")
    c("v_lshl_add_u32 v244, v3, 3, v244")
    nextw = cfg.X
    q = Seq()
    NL = cfg.NL
    for t in range(32 - NL):
        mf = []
        for i in range(5):
            for nt in range(4):
                d = vr(ACC(i, nt), 4)
                mf.append(f"{MF} {d}, {ar(WS(t,nt),4)}, {vr(OF(t,i),4)}, {'0' if t == 0 else d}")
        q.raw([f"WAITVM o{t} lgkmcnt(0)"] + (stamp_l(c, cfg, f"p{t}") if t in (1, 4, 8, 16, 24) else []))
        g = q.add(mf)
        if t + cfg.DO - 1 < 32: q.place(oload(t + cfg.DO - 1), [g + 4, g + 6, g + 9, g + 12, g + 15])
        tr = t + 15
        if t >= 1 and tr < 32:
            q.g[g].insert(0, f"WAITVM w{tr}")
            for k, r in enumerate(wreads(tr)): q.put(g + 1 + k, r)
        if nextw < 32 and nextw - 10 <= t + 14 and (nextw - cfg.X) * cfg.wev <= t:
            q.place(wdma(cfg, nextw), [g + 10, g + 13, g + 16, g + 18])
            nextw += 1
        if t == 20: q.put(g + 19, "s_barrier")
    assert nextw == 32
    q.raw([f"WAITVM o{32-NL} lgkmcnt(0)"])
    wr = lambda i, j: f"ds_write_b128 v{240+j}, {vr(ACC(i,j),4)} offset:{5120*(j-1)+1024*i}"
    for i in range(5):
        mf = []
        for j in (1, 2, 3, 0):
            d = vr(ACC(i, j), 4)
            for t in range(32 - NL, 32):
                mf.append(f"{MF} {d}, {ar(WS(t,j),4)}, {vr(OF(t,i),4)}, {d}")
        g = q.add(mf)
        if i == 0:
            for k in range(1, NL): q.g[g + k - 1].append(f"!WAITVM o{32-NL+k}")
        else:
            for j in range(1, 4): q.put(g + 2 + NL * (j - 1), wr(i - 1, j))
    q.raw(stamp_l(c, cfg, "projdone") + ["s_nop 1", wr(4, 1), wr(4, 2), "s_nop 1", wr(4, 3)])
    q.emit(c)
    c("s_waitcnt lgkmcnt(0)")
    c("s_barrier")
    for i in range(5):
        for j in range(3):
            c(f"ds_read_b128 {vr(112+12*i+4*j,4)}, v240 offset:{5120*j+1024*i}")
    c("s_lshl_b32 s52, s3, 5")
    for i in range(5):
        c(f"s_waitcnt lgkmcnt({3*(4-i)})")
        bb = 112 + 12 * i; ac = ACC(i, 0)
        for r in range(0, 4, 2):
            c(f"v_pk_add_f32 {vr(ac+r,2)}, {vr(ac+r,2)}, {vr(bb+r,2)}")
            c(f"v_pk_add_f32 {vr(bb+4+r,2)}, {vr(bb+4+r,2)}, {vr(bb+8+r,2)}")
        for r in range(0, 4, 2):
            c(f"v_pk_add_f32 {vr(ac+r,2)}, {vr(ac+r,2)}, {vr(bb+4+r,2)}")
        c(f"v_cvt_pk_bf16_f32 v{ac}, v{ac}, v{ac+1}")
        c(f"v_cvt_pk_bf16_f32 v{ac+1}, v{ac+2}, v{ac+3}")
        c(f"buffer_store_dwordx2 {vr(ac,2)}, v244, s[{SOUT}:{SOUT+3}], s52 offen")
        c("s_add_u32 s52, s52, %d" % (16 * 1280))
    a.l += resolve_waits(c.l)
    a("L_fin:")
    if cfg.stamps or cfg.calib:
        a("s_waitcnt vmcnt(0)")
        stamp(a, cfg, "end")
    if cfg.calib:
        a("s_waitcnt lgkmcnt(0)")
        a("s_or_b32 s52, s2, s3")
        a("s_cmp_lg_u32 s52, 0")
        a("s_cbranch_scc1 L_end")
        a(f"s_sub_u32 s52, s{62+4*cfg.cal_j}, s{62+4*cfg.cal_i}")
        a("s_lshl_b32 s52, s52, 2")
        a("s_add_u32 s52, s52, s62")
        a("L_spin:")
        a("s_memrealtime s[56:57]")
        a("s_waitcnt lgkmcnt(0)")
        a("s_sub_u32 s56, s56, s52")
        a(f"s_cmp_lt_i32 s56, {cfg.calib*100}")
        a("s_cbranch_scc1 L_spin")
    if cfg.stamps:
        stamps_out(a, cfg, 64 << 20)
    a("L_end:")
    a("s_endpgm")
    a("L_exact:")
    ex0 = len(a.l)
    a("s_mov_b32 s35, 1")
    a(f"s_mov_b32 s{SK+2}, {KVBYTES}")
    a(f"s_mov_b32 s{SV+2}, {KVBYTES}")
    a("s_mov_b32 s33, s40")
    a("s_waitcnt vmcnt(0) lgkmcnt(0)")
    a("L_exact_loop:")
    a("s_barrier")
    a.ext(with_nop(kdma(cfg, 0)))
    a(ADV)
    a("s_waitcnt vmcnt(0)")
    a("s_barrier")
    for th in range(2):
        for kt in range(2):
            for ks in range(4): a(kread(0, 0, th, kt, ks))
        a("s_waitcnt lgkmcnt(0)")
        for u in range(4): a.ext(qk(u, 0, True))
        a("s_nop 7")
        for u in range(4):
            s0 = S_(u, 0)
            for r in range(0, 8, 2):
                a(f"v_max3_f32 v{MTR+u}, v{MTR+u}, v{s0+r}, v{s0+r+1}")
    a(f"s_cmp_lt_u32 s33, {KVBYTES}")
    a("s_cbranch_scc1 L_exact_loop")
    a("s_barrier")
    a("s_mov_b32 s33, s40")
    for sg in range(4):
        a.ext(with_nop(kdma(cfg, sg) + vdma(cfg, sg)))
        a(ADV)
    a("s_waitcnt vmcnt(0)")
    a("s_barrier")
    a.ext(k0r + v0r)
    a("s_waitcnt lgkmcnt(0)")
    a.ext(k1r)
    for u in range(4): a.ext(qk(u, 0, True))
    a.ext(ones)
    a("s_nop 7")
    a.ext(fix(merge(*[fmax(u) for u in range(4)]) + merge(*[fexp(u, 8 if u < 3 else 4) for u in range(4)])))
    a("s_nop 1")
    a.ext(pv(0, 0, True) + pv(1, 0, True))
    a("s_waitcnt lgkmcnt(0)")
    q = Seq(); attn_tile(cfg, q, 1, "first")
    x1 = Asm()
    for t_ in ["seg1"]: x1("buffer_dummy ;@seg1")
    q.emit(x1)
    a.l += resolve_waits(x1.l)
    a("s_mov_b32 s34, 3")
    a("s_branch L_loop")
    bad = check(a.l[:ex0], "main") + check(body + body, "attn-loop") + check(a.l[ex0:] + body, "exact")
    assert bad == 0
    return a

def build(cfg):
    k = NAME + "_kernel"
    out = []
    out.append("; @launch grid=(256,1,1) block=(256,1,1) lds=163840")
    out.append('.amdgcn_target "amdgcn-amd-amdhsa--gfx950"')
    out.append(".text")
    out.append(f".globl {k}\n.p2align 8\n.type {k},@function\n{k}:")
    out.append(gen(cfg).text())
    out.append('.section .rodata,"a"')
    out.append(f""".p2align 6
.amdhsa_kernel {k}
  .amdhsa_next_free_vgpr 512
  .amdhsa_next_free_sgpr 102
  .amdhsa_accum_offset 256
  .amdhsa_group_segment_fixed_size 0
  .amdhsa_kernarg_size 64
  .amdhsa_user_sgpr_count 2
  .amdhsa_user_sgpr_kernarg_segment_ptr 1
  .amdhsa_system_sgpr_workgroup_id_x 1
.end_amdhsa_kernel
""")
    return "\n".join(out)

if __name__ == "__main__":
    cfg = Cfg()
    path = sys.argv[1]
    for kv in sys.argv[2:]:
        k, v = kv.split("=", 1)
        old = getattr(cfg, k)
        setattr(cfg, k, type(old)(eval(v)) if isinstance(old, (bool, int, float, tuple)) else v)
    open(path, "w").write(build(cfg))
```

```python
import sys, math, struct
from asmlib import *

NAME = "standalone__mha_block_cached__near_ridge"
def f32(x): return struct.unpack("<I", struct.pack("<f", x))[0]
MF = "v_mfma_f32_16x16x32_bf16"

class Cfg:
    kvflags = "nt"
    oflags = "sc1"
    orflags = "sc1"
    xflags = ""
    bflags = ""
    stamps = False
    only = ""
    qspread = 4
    kvpace = 11.5
    lthr = 2.0 ** 40
    force_fb = False
    rot = 4
    rA = 0
    DO = 5
    NL = 3
    outflags = ""
    wpull = 0
    epoll = 0
    touch = ()
    tpos = 52
    tl = 16
    tflags = ""
    tkv = "v"
    dmode = "even"
    xs = (0, 0, 0, 0, 0)
    k0at = 5
    X = 26
    wev = 1.0
    ncap = 3
    sig = "atomic"
    pkmul = True
    qord = 0
    exp = ""
    calib = 0
    cal_i = 0
    cal_j = 0

O_ = lambda u, dt: 32 + 32 * u + 4 * dt
S_ = lambda u, kt: 160 + 8 * u + 4 * kt
P_ = lambda u: 192 + 4 * u
NM = lambda u: 208 + 4 * u
KRA, VRA, KDA, VDA, MTR = 224, 228, 236, 240, 242
WD = 246
XDA, WDA, XRA, WRA = 192, 200, 204, 210
Q_ = lambda u, m: 16 * u + 4 * m
KF = lambda b, kt, ks: 64 + 32 * b + 16 * kt + 4 * ks
VF = lambda b, dt: 128 + 32 * b + 4 * dt
L_ = lambda u: 192 + 4 * u
ONES = 208
WF = lambda b, s, dt: 160 * b + 32 * s + 4 * dt
XF = lambda b, s, u: 160 * b + 64 + 16 * s + 4 * u
SX, SW, SK, SV, SO = 8, 12, 16, 20, 24
SWO, SOR, SOUT = 8, 12, 16
KVBYTES = 262144
XBASE = [(131072, 147456), (65536, 16384), (32768, 49152)]
WWIN = 81920
WOFF = [32768, 0, 16384]
UNIT = [0, 4, 8, 9, 1, 5, 2, 6, 3, 7]
WRL = [[28, 29, 30, 31], [250, 251, 252, 253], [7, 8, 9, 10]]
OAL = [4, 5, 13, 14, 254]
WBLK = [224, 240, 64, 80, 96, 112, 128, 144, 160, 176, 208, 192, 0, 16, 32, 48]
WS = lambda t, nt: WBLK[t % 16] + 4 * nt
def wreads(t):
    u_ = UNIT[t % 10]
    return [f"ds_read_b64_tr_b16 {ar(WS(t,nt)+2*e,2)}, v{WRL[u_>>2][nt]} offset:{16384*(u_&3)+2048*e}" for nt in range(4) for e in range(2)]
WOSZ = 1024 * 1280 - 9 * 128
ORSZ = 4 * 131072 + 32768

class Seq:
    def __init__(self): self.m = []; self.g = []
    def add(self, mfmas):
        n = len(self.m); self.m += mfmas; self.g += [[] for _ in mfmas]; return n
    def raw(self, lines):
        self.m.append(None); self.g.append(["!" + x for x in lines]); return len(self.m) - 1
    def put(self, i, x): self.g[i].append(x)
    def slots(self, i):
        n = 0
        for x in self.g[i]:
            k = kind(x.lstrip("!"))
            if k in ("ds", "vm", "valu"): n += 2 if x.lstrip("!").startswith(TRANS) else 1
        return n
    def place(self, lst, vmpos):
        vmpos = list(vmpos); pend = []; last = None
        for x in lst:
            if kind(x) == "vm":
                p = vmpos.pop(0)
                for k, s in enumerate(reversed(pend)): self.g[p - 1 - k].insert(0, s)
                pend = []; self.g[p].append(x); last = p
            else: pend.append(x)
        for k, s in enumerate(pend): self.g[last + 1 + k].insert(0, s)
    def stream(self, lst, start, cap=2, end=None):
        i = start
        for x in lst:
            c = 2 if x.startswith(TRANS) else (0 if kind(x) == "s" else 1)
            while self.slots(i) + c > cap and (end is None or i < end) and i + 1 < len(self.m): i += 1
            self.g[i].append("!" + x)
        return i
    def emit(self, a): emit_gaps(a, self.m, self.g)

def stamp_l(a, cfg, name):
    if (cfg.stamps or cfg.calib) and (cfg.only == "" or name in cfg.only.split(",") or name in ("start", "end")):
        i = len(a.stamps); a.stamps.append(name)
        assert i < 10
        return [f"s_memtime s[{60+4*i}:{61+4*i}]", f"s_memrealtime s[{62+4*i}:{63+4*i}]"]
    return []
def stamp(a, cfg, name): a.ext(stamp_l(a, cfg, name))

def stamps_out(a, cfg, wsoff):
    n = len(a.stamps)
    a.l.insert(0, "; stamps " + str(wsoff >> 20) + " " + " ".join(a.stamps))
    a("s_waitcnt lgkmcnt(0)")
    a(f"s_add_u32 s48, s48, {wsoff}")
    a("s_addc_u32 s49, s49, 0")
    a("s_mov_b32 s50, 0x100000")
    a("s_mov_b32 s51, 0x20000")
    a("s_lshl_b32 s52, s2, 2")
    a("s_add_u32 s52, s52, s3")
    a("s_lshl_b32 s52, s52, 7")
    a("v_mov_b32 v6, s52")
    a("v_cmp_eq_u32 vcc, 0, v1")
    a("s_and_saveexec_b64 s[54:55], vcc")
    for i in range(n):
        a(f"v_mov_b32 v4, s{60+4*i}")
        a(f"v_mov_b32 v5, s{62+4*i}")
        a(f"buffer_store_dwordx2 v[4:5], v6, s[48:51], 0 offen offset:{8*i}")
        a("s_nop 1")
    a("s_getreg_b32 s53, hwreg(HW_REG_XCC_ID)")
    a("v_mov_b32 v4, s53")
    a("buffer_store_dword v4, v6, s[48:51], 0 offen offset:120")
    a("v_mov_b32 v4, 0x5157")
    a(f"v_mov_b32 v5, {n}")
    a("buffer_store_dwordx2 v[4:5], v6, s[48:51], 0 offen offset:112")
    a("s_mov_b64 exec, s[54:55]")

def srd(s, plo, off_s, size):
    return [f"s_add_u32 s{s}, s{plo}, {off_s}", f"s_addc_u32 s{s+1}, s{plo+1}, 0", f"s_mov_b32 s{s+2}, {size}", f"s_mov_b32 s{s+3}, 0x20000"]
def dma(vaddr, sdesc, soff, imm, flags=""):
    o = f" offset:{imm}" if imm else ""
    f = f" {flags}" if flags else ""
    return f"buffer_load_dwordx4 v{vaddr}, s[{sdesc}:{sdesc+3}], {soff} offen{o}{f} lds"
def tag(lst, t):
    return [x + f" ;@{t}" if kind(x) == "vm" else x for x in lst]
def with_nop(lst):
    o = []
    for x in lst:
        o.append(x)
        if " m0," in x: o.append("s_nop 0")
    return o

def resolve_waits(lines):
    out = []; seq = []
    for x in lines:
        if x.startswith("WAITVM"):
            p = x.split(None, 2)
            idx = max(i for i, t in enumerate(seq) if t == p[1])
            n = min(len(seq) - 1 - idx, 63)
            out.append(f"s_waitcnt vmcnt({n})" + (" " + p[2] if len(p) > 2 else ""))
            continue
        if not (x.endswith(":") or x.startswith(".") or x.startswith(";")) and kind(x) == "vm" and not x.endswith(";@skip"):
            seq.append(x.split(";@")[1] if ";@" in x else "")
        if not x.startswith("buffer_dummy"): out.append(x.split(" ;@")[0])
    return out

def kdma(cfg, slot, so="s33"):
    return [f"s_add_u32 m0, s40, {16384*slot}"] + [dma(KDA + pp, SK, so, 1024 * pp, cfg.kvflags) for pp in range(4)]
def vdma(cfg, slot, so="s33"):
    return [f"s_add_u32 m0, s40, {65536+16384*slot}"] + [dma(VDA + (pp & 1), SV, so, 1024 * pp, cfg.kvflags) for pp in range(4)]
ADV = "s_add_u32 s33, s33, 16384"
def wdma(cfg, t):
    return [f"s_add_u32 s42, s41, {t}", "s_bfe_u32 s42, s42, 0x50000", "s_xor_b32 s42, s42, s37", "s_mul_i32 s42, s42, 40960", f"s_add_u32 m0, s40, {16384*UNIT[t%10]}"] + \
        tag([dma(WD + pp, SWO, "s42", 1024 * pp, cfg.bflags) for pp in range(4)], f"w{t}")
def kread(buf, slot, th, kt, ks):
    return f"ds_read_b128 {ar(KF(buf,kt,ks),4)}, v{KRA+ks} offset:{16384*slot+8192*th+4096*kt}"
def vread(buf, slot, th, dt, e):
    return f"ds_read_b64_tr_b16 {ar(VF(buf,dt)+2*e,2)}, v{VRA+dt} offset:{16384*slot+8192*th+4096*e}"

def qk(u, kb, czero=False, sl=None):
    m = []
    for kt in range(2):
        d = vr(S_(u if sl is None else sl, kt), 4)
        for ks in range(4):
            c = ("0" if czero else vr(NM(u), 4)) if ks == 0 else d
            m.append(f"{MF} {d}, {ar(KF(kb,kt,ks),4)}, {ar(Q_(u,ks),4)}, {c}")
    return m
def pv(u, vb, czero=False, sl=None):
    m = []
    p = vr(P_(u if sl is None else sl), 4)
    for dt in range(8):
        d = vr(O_(u, dt), 4)
        m.append(f"{MF} {d}, {ar(VF(vb,dt),4)}, {p}, {'0' if czero else d}")
    d = ar(L_(u), 4)
    m.append(f"{MF} {d}, {ar(ONES,4)}, {p}, {'0' if czero else d}")
    return m
def sm_half(q, g0, u, kt):
    s = S_(u, kt)
    for r in range(4):
        q.put(g0 + 2 * r, f"v_exp_f32 v{s+r}, v{s+r}")
        if r & 1: q.put(g0 + 2 * r + 1, f"v_cvt_pk_bf16_f32 v{P_(u)+2*kt+r//2}, v{s+r-1}, v{s+r}")

def attn_tile(cfg, q, j, mode="loop"):
    kb = vb = j & 1
    slot, th = (j >> 1) & 3, j & 1
    nslot, nth = ((j + 1) >> 1) & 3, (j + 1) & 1
    z = mode == "first"
    groups = [qk(0, kb), pv(2, vb ^ 1, z), qk(1, kb), pv(3, vb ^ 1, z), qk(2, kb), pv(0, vb), qk(3, kb), pv(1, vb)]
    st = [q.add(g) for g in groups]; st.append(len(q.m))
    sm_half(q, st[0], 3, 1)
    for u in range(3):
        sm_half(q, st[2 * u + 1], u, 0)
        sm_half(q, st[2 * u + 2], u, 1)
    sm_half(q, st[7], 3, 0)
    vr_ = [vread(vb, slot, th, dt, e) for dt in range(8) for e in range(2)]
    pos = [st[0] + k for k in (1, 3, 5, 5, 7)] + [st[1] + k for k in (1, 1, 3, 5, 5, 7, 8)] + [st[2] + k for k in (1, 3, 5, 5)]
    for p, r in zip(pos, vr_): q.put(p, r)
    mid = st[4] - 1
    if j & 1:
        if mode == "loop": q.put(mid, "s_waitcnt vmcnt(16) lgkmcnt(0)")
        else: q.put(mid, f"WAITVM seg{(j+1)//2} lgkmcnt(0)")
        q.put(mid, "s_barrier")
    else:
        q.put(mid, "s_waitcnt lgkmcnt(0)")
    kr_ = [kread(kb ^ 1, nslot, nth, kt, ks) for kt in range(2) for ks in range(4)]
    pos = [st[4] + k for k in (1, 3, 5, 7)] + [st[5] + k for k in (1, 3, 5, 7)]
    for p, r in zip(pos, kr_): q.put(p, r)
    q.put(st[8] - 2 if j != 29 else st[7], "s_waitcnt lgkmcnt(0)")
    dpos = [st[0] + 1, st[2] + 1, st[4] + 1, st[6] + 1]
    adv = [ADV, f"s_cmp_lt_u32 s33, {KVBYTES}", f"s_cselect_b32 s{SK+2}, {KVBYTES}, 0", f"s_mov_b32 s{SV+2}, s{SK+2}"]
    if mode != "final" and cfg.dmode == "even":
        if j & 1:
            pv_, k_ = vdma(cfg, (slot - 1) & 3), tag(kdma(cfg, slot), "seg4")
            if mode == "loop": q.place(pv_[3:] + adv[:3], dpos[:2])
            q.place(k_[:3], dpos[2:])
        else:
            k_, v_ = kdma(cfg, (slot - 1) & 3), vdma(cfg, (slot - 1) & 3)
            q.place(k_[3:], dpos[:2])
            q.place(v_[:3], dpos[2:])
    elif mode != "final" and cfg.dmode == "burst":
        if j & 1:
            q.place(tag(kdma(cfg, slot) + vdma(cfg, slot), "seg4"), [st[4] + 1, st[4] + 5, st[5] + 1, st[5] + 5, st[5] + 8, st[6] + 3, st[6] + 7, st[7] + 3])
        else:
            for k, x in enumerate(adv): q.g[st[0] + 2 * k].insert(0, x)
    elif mode != "final" and cfg.dmode == "half":
        if j & 1:
            q.place(tag(kdma(cfg, slot), "seg4"), [st[4] + 1, st[5] + 1, st[6] + 1, st[7] + 1])
        else:
            q.place(vdma(cfg, (slot - 1) & 3) + adv[:3], [st[0] + 1, st[1] + 3, st[2] + 1, st[3] + 1])
    return st

def rowmax_l(t, t2):
    return [f"v_mov_b32 v{t2}, v{t}", "s_nop 1", f"v_permlane32_swap_b32 v{t}, v{t2}", f"v_max_f32 v{t}, v{t}, v{t2}",
            f"v_mov_b32 v{t2}, v{t}", "s_nop 1", f"v_permlane16_swap_b32 v{t}, v{t2}", f"v_max_f32 v{t}, v{t}, v{t2}"]

def scale_pack(cfg, b0, t, mul, pk):
    o = []
    if pk: o += [f"v_pk_mul_f32 {vr(b0+2*i,2)}, {vr(b0+2*i,2)}, {mul[1]}" for i in range(4)]
    else: o += [f"v_mul_f32 v{b0+i}, {mul[0]}, v{b0+i}" for i in range(8)]
    o += [f"v_cvt_pk_bf16_f32 v{t+i}, v{b0+2*i}, v{b0+2*i+1}" for i in range(4)]
    return o

def gen(cfg):
    a = Asm()
    a("s_cmp_ge_u32 s2, 256")
    a("s_cbranch_scc1 L_end")
    stamp(a, cfg, "start")
    a("s_load_dwordx4 s[4:7], s[0:1], 0")
    a("s_load_dwordx4 s[44:47], s[0:1], 16")
    a("s_load_dwordx2 s[48:49], s[0:1], 56")
    a("v_and_b32 v1, 63, v0")
    a("v_lshrrev_b32 v2, 6, v0")
    a("s_and_b32 s50, s2, 7")
    a("v_readfirstlane_b32 s3, v2")
    a("s_lshr_b32 s51, s2, 3")
    a("s_and_b32 s28, s50, 1")
    a("s_lshl_b32 s28, s28, 2")
    a("s_and_b32 s52, s51, 3")
    a("s_add_u32 s28, s28, s52")
    a("s_lshr_b32 s29, s50, 1")
    a("s_lshl_b32 s29, s29, 3")
    a("s_lshr_b32 s53, s51, 2")
    a("s_add_u32 s29, s29, s53")
    if cfg.rot == 4:
        a("s_add_u32 s52, s52, s53")
        a("s_and_b32 s52, s52, 3")
        a("s_mul_i32 s52, s52, 5")
        a("s_lshr_b32 s32, s52, 1")
    elif cfg.rot == 2:
        a("s_mul_i32 s52, s52, 5")
        a("s_lshr_b32 s52, s52, 1")
        a("s_add_u32 s32, s52, s53")
        a("s_cmp_ge_u32 s32, 10")
        a("s_cselect_b32 s52, 10, 0")
        a("s_sub_u32 s32, s32, s52")
    elif cfg.rot == 3:
        a("s_add_u32 s52, s52, s53")
        a("s_and_b32 s52, s52, 1")
        a("s_mul_i32 s32, s52, 5")
    else:
        a("s_mov_b32 s32, 0")
    a("s_lshl_b32 s30, s32, 7")
    a("s_lshl_b32 s31, s32, 19")
    a("s_lshl_b32 s40, s3, 12")
    a("s_mov_b32 s33, s40")
    a("s_add_u32 s39, s40, %d" % WWIN)
    a("s_and_b32 s52, s3, 1")
    a("s_lshl_b32 s52, s52, 13")
    a("s_cmp_ge_u32 s3, 2")
    for bf in range(3):
        a(f"s_mov_b32 s53, {XBASE[bf][0]}")
        a(f"s_cselect_b32 s{36+bf}, {XBASE[bf][1]}, s53")
    for bf in range(3):
        a(f"s_add_u32 s{36+bf}, s{36+bf}, s52")
    a("s_mov_b32 s35, 0")
    a("v_and_b32 v2, 15, v1")
    a("v_lshrrev_b32 v3, 4, v1")
    a("v_lshrrev_b32 v4, 3, v1")
    a("v_and_b32 v5, 7, v1")
    a("v_bfe_u32 v6, v1, 2, 2")
    a("v_and_b32 v7, 3, v1")
    a("s_mul_i32 s52, s3, %d" % (64 * 1280))
    a("v_mul_u32_u24 v8, 1280, v4")
    a("v_add_u32 v8, s52, v8")
    for par in range(2):
        a(f"v_or_b32 v9, {4*par}, v3")
        a("v_xor_b32 v9, v9, v5")
        a(f"v_lshl_add_u32 v{16+par}, v9, 4, v8")
    for pp in range(8):
        a(f"v_add_u32 v{XDA+pp}, {10240*pp-1024*(pp&3)}, v{16+(pp&1)}")
    a("s_lshl_b32 s52, s3, 17")
    a("v_lshlrev_b32 v8, 13, v3")
    a("v_add_u32 v8, s52, v8")
    a("v_and_b32 v9, 1, v3")
    a("v_lshrrev_b32 v10, 1, v3")
    a("v_lshl_or_b32 v9, v10, 2, v9")
    a("v_xor_b32 v9, v9, v2")
    a("v_lshl_add_u32 v16, v9, 4, v8")
    a("v_xor_b32 v17, 128, v16")
    for pp in range(4):
        a(f"v_add_u32 v{WDA+pp}, {32768*pp-1024*pp}, v{16+(pp>>1)}")
    a("s_waitcnt lgkmcnt(0)")
    stamp(a, cfg, "kernarg")
    a("s_mul_i32 s52, s28, 307200")
    a.ext(srd(SX, 4, "s52", 307200))
    a("s_lshl_b32 s52, s29, 8")
    a.ext(srd(SW, 46, "s52", 640 * 8192 - 31 * 256))

    def qstage(c):
        bf = c % 3
        o = [f"s_mov_b32 m0, s{36+bf}"]
        o += [dma(XDA + pp, SX, "s30", 1024 * pp, cfg.xflags) for pp in range(4)]
        o += [f"s_add_u32 m0, s{36+bf}, 4096"]
        o += [dma(XDA + 4 + pp, SX, "s30", 1024 * pp, cfg.xflags) for pp in range(4)]
        o += [f"s_add_u32 m0, s39, {WOFF[bf]}"]
        o += [dma(WDA + pp, SW, "s31", 1024 * pp, cfg.xflags) for pp in range(4)]
        o += ["s_add_u32 s32, s32, 1", "s_cmp_eq_u32 s32, 10", "s_cselect_b32 s32, 0, s32", "s_lshl_b32 s30, s32, 7", "s_lshl_b32 s31, s32, 19"]
        return tag(o, f"c{c}")
    a.ext(with_nop(qstage(0)))
    a("s_load_dwordx4 s[56:59], s[0:1], 32")
    a("s_lshl_b32 s52, s28, 5")
    a("s_add_u32 s52, s52, s29")
    a("s_lshl_b32 s52, s52, 18")
    a.ext(srd(SK, 6, "s52", KVBYTES))
    a.ext(srd(SV, 44, "s52", KVBYTES))
    a("s_mul_i32 s52, s28, %d" % (15 * 131072))
    a.ext(srd(SO, 48, "s52", 15 * 131072))
    a("s_load_dwordx2 s[46:47], s[0:1], 48")
    a("v_lshlrev_b32 v10, 8, v3")
    for pp in range(4):
        a(f"v_add_u32 v9, {4*pp}, v3")
        a("v_xor_b32 v9, v9, v2")
        a(f"v_lshl_add_u32 v{KDA+pp}, v9, 4, v10")
    for pp in range(2):
        a(f"v_add_u32 v9, {4*pp}, v3")
        a("v_lshlrev_b32 v9, 1, v9")
        a("v_xor_b32 v9, v9, v2")
        a(f"v_lshl_add_u32 v{VDA+pp}, v9, 4, v10")
    a("v_lshrrev_b32 v9, 1, v2")
    for s in range(2):
        a(f"v_or_b32 v8, {4*s}, v3")
        a("v_xor_b32 v8, v8, v9")
        a("v_lshlrev_b32 v8, 4, v8")
        a("v_lshl_add_u32 v8, v2, 7, v8")
        for bf in range(3):
            a(f"v_add_u32 v{XRA+2*bf+s}, s{36+bf}, v8")
    a("v_lshrrev_b32 v11, 1, v7")
    a("v_and_b32 v12, 1, v7")
    a("v_lshlrev_b32 v12, 3, v12")
    a("v_and_b32 v9, 1, v6")
    a("v_lshrrev_b32 v10, 1, v6")
    a("v_lshl_or_b32 v9, v10, 2, v9")
    a("v_and_b32 v10, 1, v3")
    a("v_lshl_or_b32 v9, v10, 3, v9")
    a("v_lshl_or_b32 v9, v11, 1, v9")
    a("v_lshl_add_u32 v13, v3, 3, v6")
    a("v_lshl_add_u32 v13, v13, 8, v12")
    a(f"v_add_u32 v13, {WWIN}, v13")
    for dt in range(8):
        a(f"v_xor_b32 v8, {4*(dt>>1)+(dt&1)}, v9")
        a(f"v_lshl_add_u32 v{WRA+dt}, v8, 4, v13")
    a("v_lshl_or_b32 v9, v10, 2, v6")
    a("v_lshl_or_b32 v9, v9, 1, v11")
    a("v_lshl_add_u32 v14, v3, 2, v6")
    a("v_lshl_add_u32 v14, v14, 8, v12")
    a("v_add_u32 v14, 65536, v14")
    for dt in range(8):
        a(f"v_xor_b32 v8, {2*dt}, v9")
        a(f"v_lshl_add_u32 v{VRA+dt}, v8, 4, v14")
    for ks in range(4):
        a(f"v_or_b32 v8, {4*ks}, v3")
        a("v_xor_b32 v8, v8, v2")
        a("v_lshlrev_b32 v8, 4, v8")
        a(f"v_lshl_add_u32 v{KRA+ks}, v2, 8, v8")
    for i in range(4):
        a(f"v_mov_b32 v{MTR+i}, 0xff800000")
    a("v_lshlrev_b32 v15, 4, v1")
    a(f"v_and_b32 v8, {cfg.tl-1}, v1")
    a(f"v_lshrrev_b32 v9, {int(math.log2(cfg.tl))}, v1")
    a("v_lshlrev_b32 v9, 14, v9")
    a("v_lshl_add_u32 v219, v8, 7, v9")
    a("v_lshlrev_b32 v9, 1, v3")
    a("v_xor_b32 v9, v9, v5")
    a("v_lshlrev_b32 v9, 4, v9")
    a("v_mul_u32_u24 v8, 1280, v4")
    a("v_add_u32 v8, v8, v9")
    for pp in range(4):
        a(f"v_add_u32 v{WD+pp}, {pp*9216}, v8")
    a("v_lshl_add_u32 v14, v3, 2, v6")
    a("v_bfe_u32 v13, v14, 1, 2")
    a("v_lshl_or_b32 v13, v13, 1, v11")
    a("v_lshl_add_u32 v14, v14, 7, v12")
    a("v_add_u32 v14, s40, v14")
    for nt in range(4):
        a(f"s_add_u32 s53, s3, {nt}")
        a("s_and_b32 s53, s53, 3")
        a("s_lshl_b32 s53, s53, 1")
        a("v_xor_b32 v16, s53, v13")
        a(f"v_lshl_add_u32 v{WRL[0][nt]}, v16, 4, v14")
        a(f"v_add_u32 v{WRL[1][nt]}, 65536, v{WRL[0][nt]}")
        a(f"v_add_u32 v{WRL[2][nt]}, 131072, v{WRL[0][nt]}")
    for i in range(5): a(f"v_add_u32 v{OAL[i]}, {131072*i}, v15")
    a("s_min_u32 s51, s51, 29")
    a("s_cmp_ge_u32 s51, 15")
    a("s_cselect_b32 s52, 1, 0")
    a("s_cselect_b32 s53, 15, 0")
    a("s_sub_u32 s53, s51, s53")
    a("s_and_b32 s43, s50, 6")
    a("s_add_u32 s43, s43, s52")
    a("s_mul_i32 s54, s53, 52")
    a("s_lshr_b32 s54, s54, 8")
    a("s_mul_i32 s41, s54, 5")
    a("s_sub_u32 s53, s53, s41")
    a("s_lshl_b32 s34, s53, 2")
    a("s_and_b32 s55, s50, 1")
    a("s_mul_i32 s55, s55, 5")
    a("s_add_u32 s55, s55, s53")
    a("s_mul_i32 s52, s52, 15")
    a("s_add_u32 s41, s41, s52")
    if cfg.rA:
        a(f"s_mul_i32 s53, s53, {cfg.rA}")
        a("s_add_u32 s41, s41, s53")
    a("s_and_b32 s41, s41, 31")
    sc = f32(math.log2(math.e) / math.sqrt(128.0))
    if cfg.wpull:
        a("s_mul_i32 s52, s2, 160")
        a("s_mul_i32 s53, s3, 14")
        a("s_add_u32 s52, s52, s53")
        a("v_add_u32 v218, s52, v1")
        a("v_lshlrev_b32 v218, 7, v218")
        a("v_mov_b32 v16, 0x7fffff80")
        a("v_cmp_gt_u32 vcc, 14, v1")
        a("v_cndmask_b32 v255, v16, v218, vcc")
    a(f"s_mov_b32 s44, {sc}")
    a(f"s_mov_b32 s45, {sc}")
    a.ext(with_nop(qstage(1)))
    stamp(a, cfg, "issued")

    def qreads(c):
        bf, rb = c % 3, c & 1
        o = []
        for s in range(2):
            o.append(f"ds_read_b128 {ar(XF(rb,s,0),4)}, v{XRA+2*bf+s}")
        for dt in range(8):
            for s in range(2):
                for e in range(2):
                    o.append(f"ds_read_b64_tr_b16 {ar(WF(rb,s,dt)+2*e,2)}, v{WRA+dt} offset:{WOFF[bf]+8192*s+1024*e}")
        for u in range(1, 4):
            for s in range(2):
                o.append(f"ds_read_b128 {ar(XF(rb,s,u),4)}, v{XRA+2*bf+s} offset:{2048*u}")
        return o
    a("WAITVM c0 lgkmcnt(0)")
    a("s_barrier")
    stamp(a, cfg, "landed")
    a.ext(qreads(0))
    a.ext(with_nop(qstage(2)))
    a("s_waitcnt lgkmcnt(0)")
    q = Seq()
    per = []
    for c in range(10):
        rb = c & 1
        mf = []
        order = [(u, dt, s) for u in range(4) for dt in range(8) for s in range(2)]
        if cfg.qord == 1: order.sort(key=lambda x: (x[0], x[2], x[1]))
        if cfg.qord == 2 and c < 9: order.sort(key=lambda x: (x[1], x[2], x[0]))
        if cfg.qord == 3 and c < 9: order.sort(key=lambda x: (x[2], x[0], x[1]))
        for u, dt, s in order:
            d = vr(O_(u, dt), 4)
            mf.append(f"{MF} {d}, {ar(WF(rb,s,dt),4)}, {ar(XF(rb,s,u),4)}, {'0' if c == 0 and s == 0 else d}")
        p0 = q.add(mf); per.append(p0)
        if c == 0:
            q.put(p0 + 20, "WAITVM c1"); q.put(p0 + 20, "s_barrier")
            for i, r in enumerate(qreads(1)): q.put(p0 + 21 + (i * 3) // 4, r)
            q.place(qstage(3), [p0 + 23 + 3 * i for i in range(12)])
        elif c < 9:
            for i, r in enumerate(qreads(c + 1)): q.put(p0 + (i * 5) // 4, r)
        if 0 < c < 7:
            q.place(qstage(c + 3), [p0 + 1 + cfg.qspread * i for i in range(12)])
        if c < 8:
            q.put(p0 + 63, f"WAITVM c{c+2} lgkmcnt(0)"); q.put(p0 + 63, "s_barrier")
        elif c == 8:
            q.put(p0 + 63, "s_waitcnt lgkmcnt(0)"); q.put(p0 + 63, "s_barrier")
        for x in stamp_l(a, cfg, f"q{c+1}"): q.put(p0 + 63, "!" + x)
    sw = [f"s_mov_b32 s52, {sum(v << (4*k) for k, v in enumerate(cfg.xs))}", "s_lshr_b32 s52, s52, s34", "s_and_b32 s37, s52, 15"]
    sw += ["s_mul_i32 s52, s3, %d" % (1024 * 1280), "s_lshl_b32 s53, s55, 7", "s_add_u32 s52, s52, s53"] + srd(SWO, 56, "s52", WOSZ) + \
         ["s_mul_i32 s52, s43, 15", "s_mul_i32 s53, s54, 5", "s_add_u32 s52, s52, s53", "s_lshl_b32 s52, s52, 17", "s_lshl_b32 s53, s3, 15",
          "s_add_u32 s52, s52, s53"] + srd(SOR, 48, "s52", ORSZ)
    if cfg.wpull: sw += ["s_mov_b32 s4, s56", "s_mov_b32 s5, s57", f"s_mov_b32 s6, {4096*1280}", "s_mov_b32 s7, 0x20000", "s_mov_b32 s38, 0"]
    i = per[8] + 2
    k = 0
    while k < len(sw):
        n = 2 if "s_addc" in sw[min(k + 1, len(sw) - 1)] else 1
        for x in sw[k:k + n]: q.put(i, x)
        k += n; i += 2
    p9 = per[9]
    def qepi(u):
        o = []
        for m in range(4):
            t = 16 + 4 * (m & 1)
            o += scale_pack(cfg, O_(u, 2 * m), t, ("s44", "s[44:45]"), cfg.pkmul)
            if m:
                tp = 16 + 4 * ((m - 1) & 1)
                o += [f"v_accvgpr_write_b32 a{Q_(u,m-1)+i}, v{tp+i}" for i in range(4)]
            o += [f"v_permlane16_swap_b32 v{t}, v{t+2}", f"v_permlane16_swap_b32 v{t+1}, v{t+3}"]
        o += [f"v_accvgpr_write_b32 a{Q_(u,3)+i}, v{20+i}" for i in range(4)]
        return o
    q.put(p9 + 31, "WAITVM seg0"); q.put(p9 + 31, "s_barrier")
    for x in stamp_l(a, cfg, "b0"): q.put(p9 + 31, "!" + x)
    k0r = [kread(0, 0, 0, kt, ks) for kt in range(2) for ks in range(4)]
    for i, r in enumerate(k0r): q.put(p9 + 32 + 2 * i, r)
    e = q.stream(qepi(0), p9 + 16 + 4, cap=4)
    e = q.stream(qepi(1), max(e, p9 + 32 + 4), cap=4)
    e = q.stream(qepi(2), max(e, p9 + 48 + 4), cap=4)
    q.put(p9 + 62, "s_waitcnt lgkmcnt(0)")
    lab = q.raw([])
    for x in stamp_l(a, cfg, "g0"): q.put(len(q.m) - 1, "!" + x)
    g0 = q.add(qk(0, 0, True))
    g1 = q.add(qk(1, 0, True))
    g2 = q.add(qk(2, 0, True))
    v0r = [vread(0, 0, 0, dt, e_) for dt in range(8) for e_ in range(2)]
    k1r = [kread(1, 0, 1, kt, ks) for kt in range(2) for ks in range(4)]
    for i, r in enumerate(v0r + k1r): q.put(g0 + i, r)
    e = q.stream(qepi(3), max(e, g0), cap=4)
    def fmax(u):
        s0 = S_(u, 0); t = NM(u)
        o = [f"v_max3_f32 v{t}, v{s0}, v{s0+1}, v{s0+2}", f"v_max3_f32 v{t+1}, v{s0+3}, v{s0+4}, v{s0+5}",
             f"v_max3_f32 v{t}, v{t}, v{s0+6}, v{s0+7}", f"v_max3_f32 v{t}, v{t}, v{t+1}, v{MTR+u}"]
        return o + [x for x in rowmax_l(t, t + 1) if "s_nop" not in x]
    def fexp(u, nexp):
        s0 = S_(u, 0); t = NM(u)
        o = [f"v_sub_f32 v{s0+r}, v{s0+r}, v{t}" for r in range(8)]
        o += [f"v_exp_f32 v{s0+r}, v{s0+r}" for r in range(nexp)]
        o += [f"v_sub_f32 v{NM(u)+i}, 0, v{t}" for i in (1, 2, 3, 0)]
        o += [f"v_cvt_pk_bf16_f32 v{P_(u)+r//2}, v{s0+r}, v{s0+r+1}" for r in range(0, nexp, 2)]
        return o
    ones = ["v_mov_b32 v27, 0x3f803f80"] + [f"v_accvgpr_write_b32 a{ONES+i}, v27" for i in range(4)]
    e = q.stream(merge(fmax(0), fmax(1), ones), max(e, g2 + 1), cap=4)
    for x in stamp_l(a, cfg, "g3"): q.put(len(q.m) - 1, "!" + x)
    g3 = q.add(qk(3, 0, True))
    e = q.stream(merge(fexp(0, 8), fmax(2)), g3, cap=6)
    q.raw(["s_waitcnt lgkmcnt(0)"])
    for x in stamp_l(a, cfg, "g4"): q.put(len(q.m) - 1, "!" + x)
    g4 = q.add(pv(0, 0, True))
    e = q.stream(merge(fexp(1, 8), fmax(3)), g4, cap=5)
    for x in stamp_l(a, cfg, "g5"): q.put(len(q.m) - 1, "!" + x)
    g5 = q.add(pv(1, 0, True))
    e = q.stream(merge(fexp(2, 8), fexp(3, 4)), g5, cap=7)
    for x in stamp_l(a, cfg, "tile1"): q.raw([x])
    st1 = attn_tile(cfg, q, 1, "first")
    kv = []
    for sg in range(4): kv += tag(kdma(cfg, sg) + vdma(cfg, sg), f"seg{sg}") + [ADV]
    pos = [per[cfg.k0at] + 50 + 3 * k for k in range(4)] if cfg.k0at else []
    i = per[7] + 1; acc = cfg.kvpace
    free_at = [per[7], per[7], per[7], per[7], per[8], per[8], per[8], per[9]]
    while len(pos) < 32:
        ok = q.m[i] and q.m[i - 1] and q.m[i + 1] and (q.slots(i) < 2 or i > p9 + 16) and i > free_at[len(pos) // 4]
        if ok and acc >= cfg.kvpace:
            pos.append(i); acc = 0
        acc += max(4, 2 + q.slots(i)) / 4
        i += 1
    assert pos[7] < p9 + 31 and pos[-1] < st1[4] - 2, (pos, p9, st1)
    if "nokv23" in cfg.exp: kv = [("buffer_dummy ;@" + x.split(";@")[1]) if (x.endswith("seg2") or x.endswith("seg3")) else x for x in kv]
    for k, (c, sg) in enumerate(cfg.touch):
        q.put(per[c] + cfg.tpos - 1, f"s_add_u32 s53, s40, {16384*sg}")
        q.put(per[c] + cfg.tpos, f"buffer_load_dword v255, v219, s[{SV if cfg.tkv[k % len(cfg.tkv)] == 'v' else SK}:{(SV if cfg.tkv[k % len(cfg.tkv)] == 'v' else SK)+3}], s53 offen {cfg.tflags}".rstrip())
    q.place(kv, pos)
    q.emit(a)
    a.l = fix(resolve_waits(a.l))
    a("s_mov_b32 s34, 3")
    a(".p2align 6")
    a("L_loop:")
    body0 = len(a.l)
    q = Seq()
    for j in range(2, 10):
        st = attn_tile(cfg, q, j)
        if cfg.wpull and j == 4:
            q.put(st[3] + 1, "buffer_load_dword v16, v255, s[4:7], s38 offen")
            q.put(st[3] + 2, f"s_add_u32 s38, s38, {56*128}")
        if j in (5, 7):
            for x in reversed(stamp_l(a, cfg, f"w{j}a")): q.g[st[4] - 1].insert(0, x)
            for x in stamp_l(a, cfg, f"w{j}b"): q.put(st[4] - 1, x)
        if j == 6:
            for x in reversed(stamp_l(a, cfg, f"d{j}a")): q.g[st[2] + 1].insert(0, x)
            for x in stamp_l(a, cfg, f"d{j}b"): q.put(st[2] + 1, "!" + x)
    q.put(-3, "s_sub_u32 s34, s34, 1")
    q.put(-1, "s_cmp_lg_u32 s34, 0"); q.put(-1, "s_cbranch_scc1 L_loop")
    q.emit(a)
    a.l = a.l[:body0] + [x.split(" ;@")[0] for x in a.l[body0:]]
    body = a.l[body0:]
    b = Asm(); b.stamps = a.stamps
    for t_ in ["seg14"] * 8 + ["seg15"] * 8 + ["null"] * {"even": 2, "burst": 8, "half": 4}[cfg.dmode]: b(f"buffer_dummy ;@{t_}")
    q = Seq()
    for x in stamp_l(b, cfg, "t26"): b(x)
    sts = {j: attn_tile(cfg, q, j, "final") for j in range(26, 30)}
    def wpos(st, half):
        return [st[4*half] + 1, st[4*half+1] + 8 if half == 0 else st[5] + 1, st[4*half+2] + (7 if half == 0 else 1), st[4*half+3] + 1]
    for j, (t0, t1) in {26: (0, 1), 27: (2, 3), 28: (4, 5), 29: (10, 6)}.items():
        st = sts[j]
        q.place(wdma(cfg, t0), [st[1] + 8, st[2] + 7, st[3] + 1, st[3] + 5])
        q.place(wdma(cfg, t1), [st[5] + 8, st[6] + 1, st[6] + 5, st[7] + 5])
    st = sts[28]
    q.g[st[5] + 8].insert(0, "WAITVM w1")
    for p, r in zip([st[5] + 8, st[6] + 1, st[6] + 3, st[6] + 5, st[6] + 7, st[7] + 1, st[7] + 1, st[7] + 3], wreads(0)): q.put(p, r)
    k = q.g[st[8] - 2].index("s_waitcnt lgkmcnt(0)"); q.g[st[8] - 2][k] = "s_waitcnt lgkmcnt(8)"
    st = sts[29]
    q.put(st[1] + 7, "s_waitcnt lgkmcnt(10)")
    for p, r in zip([st[4] + 1, st[4] + 5, st[5] + 1, st[5] + 5, st[5] + 8, st[6] + 1, st[6] + 3, st[6] + 5], wreads(1)): q.put(p, r)
    k = q.g[st[7]].index("s_waitcnt lgkmcnt(0)"); q.g[st[7]][k] = "s_waitcnt lgkmcnt(4)"
    st = sts[29]
    for p, r in zip([st[7] + k for k in (1, 1, 3, 5, 7, 8, 8)] + [st[8]], [kread(1, 3, 1, kt, ks) for kt in range(2) for ks in range(4)]):
        if p < st[8]: q.put(p, r)
        else: lastk = r
    for x in stamp_l(b, cfg, "t30"): q.put(len(q.m) - 1, "!" + x)
    job = lambda k: (k >> 1, k & 1, k & 3)
    F = []
    for k in range(8):
        u, tb, sl = job(k)
        F.append(q.add(qk(u, tb, sl=sl)))
        if k < 2: F.append(q.add(pv(2 + k, 1)))
        else:
            u, tb, sl = job(k - 2); F.append(q.add(pv(u, tb, sl=sl)))
    for k in (6, 7):
        u, tb, sl = job(k); F.append(q.add(pv(u, tb, sl=sl)))
    F.append(len(q.m))
    sm_half(q, F[0], 3, 1)
    for k in range(8):
        sm_half(q, F[2 * k + 1], k & 3, 0); sm_half(q, F[2 * k + 2], k & 3, 1)
    q.put(F[0] + 1, lastk)
    v30 = [vread(0, 3, 0, dt, e) for dt in range(8) for e in range(2)]
    v31 = [vread(1, 3, 1, dt, e) for dt in range(8) for e in range(2)]
    for p, r in zip([F[0] + k for k in (1, 3, 5, 5, 7)] + [F[1] + k for k in (1, 1, 3, 5, 5, 7)] + [F[2] + k for k in (1, 1, 3, 5, 5)], v30): q.put(p, r)
    q.put(F[1] + 8, "s_waitcnt lgkmcnt(10)")
    for p, r in zip([F[4] + k for k in (1, 1, 3, 5, 5, 7)] + [F[5] + k for k in (1, 1, 3, 5, 5, 7, 8, 8)] + [F[6] + k for k in (1, 1)], v31): q.put(p, r)
    q.put(F[4], "s_waitcnt lgkmcnt(0)")
    q.put(F[7] - 1, "s_waitcnt lgkmcnt(0)"); q.put(F[7] - 1, "s_barrier")
    q.place(wdma(cfg, 11), [F[2] + 7, F[3] + 1, F[3] + 3, F[3] + 5])
    q.place(wdma(cfg, 7), [F[5] + 3, F[5] + 7, F[6] + 3, F[6] + 5])
    q.place(wdma(cfg, 8), [F[7] + 5, F[7] + 7, F[7] + 8, F[8] + 1])
    q.place(wdma(cfg, 9), [F[8] + 7, F[9] + 1, F[9] + 3, F[9] + 5])
    def onorm(u):
        o = [f"v_accvgpr_read_b32 v16, a{L_(u)}", "v_cmp_ngt_f32 vcc, s36, v16", "v_rcp_f32 v16, v16", "s_or_b64 s[50:51], s[50:51], vcc", "v_mov_b32 v17, v16"]
        for m in range(4):
            t = 20 + 4 * (m & 1)
            o += scale_pack(cfg, O_(u, 2 * m), t, ("v16", "v[16:17]"), True)
            o += [f"buffer_store_dwordx4 {vr(t,4)}, v15, s[{SO}:{SO+3}], s30 offen offset:{1024*m} {cfg.oflags}".rstrip() + " ;@ost"]
        o += ["s_add_u32 s30, s30, 131072"]
        return o
    for k, x in enumerate([f"s_mov_b32 s36, {f32(cfg.lthr)}", "s_mov_b64 s[50:51], 0", "s_lshl_b32 s30, s3, 19", "s_lshl_b32 s31, s29, 12", "s_add_u32 s30, s30, s31"]):
        q.g[F[4] + 2 + k].insert(0, x)
    for x in stamp_l(b, cfg, "F8"): q.put(F[8] - 1, "!" + x)
    e = q.stream(onorm(0), F[8] + 4, cap=cfg.ncap)
    e = q.stream(onorm(1), max(e, F[12] + 4), cap=cfg.ncap)
    e = q.stream(onorm(2), max(e, F[16] + 4), cap=cfg.ncap + 2)
    q.emit(b)
    stamp(b, cfg, "loopend")
    def park(t): return [f"WAITVM w{t}"] + wreads(t)
    def refill(t): return with_nop(wdma(cfg, t + 10))
    b.ext(park(2) + park(3))
    b.ext(onorm(3))
    stamp(b, cfg, "stored")
    if cfg.force_fb: b("s_mov_b64 s[50:51], -1")
    b("s_cmp_lg_u64 s[50:51], 0")
    b("s_cselect_b32 s52, 1, 0")
    b(f"s_add_u32 s53, s40, {16384*UNIT[2]}")
    b("v_mov_b32 v16, s52")
    b("v_mov_b32 v17, s53")
    b("v_and_b32 v18, 3, v1")
    b("v_lshlrev_b32 v18, 12, v18")
    b(f"v_add_u32 v18, {16384*UNIT[2]}, v18")
    b("s_waitcnt lgkmcnt(0)")
    b("ds_write_b32 v17, v16")
    b.ext(refill(3) + park(4) + park(5))
    b("s_waitcnt lgkmcnt(0)")
    b("s_barrier")
    b("ds_read_b32 v20, v18")
    b.ext(refill(4) + park(6) + park(7))
    b("s_waitcnt lgkmcnt(0)")
    b("v_cmp_ne_u32 vcc, 0, v20")
    b("s_cmp_eq_u32 s35, 0")
    b("s_cselect_b64 s[52:53], vcc, 0")
    b("s_cmp_lg_u64 s[52:53], 0")
    b("s_cbranch_scc1 L_exact")
    b.ext(park(8) + park(9) + park(10) + park(11))
    b("WAITVM ost")
    b("s_barrier")
    b("s_cmp_lg_u32 s3, 0")
    b("s_cbranch_scc1 L_nosig")
    b("s_mov_b64 exec, 1")
    if cfg.sig == "atomic":
        b("s_lshl_b32 s52, s28, 2")
        b("s_lshr_b32 s53, s29, 3")
        b("s_add_u32 s52, s52, s53")
        b("s_lshl_b32 s52, s52, 3")
        b("v_mov_b32 v16, s52")
        b("v_mov_b32 v17, 1")
        b("global_atomic_add v16, v17, s[46:47] sc1 ;@skip")
    else:
        b("s_lshl_b32 s52, s28, 5")
        b("s_add_u32 s52, s52, s29")
        b("v_mov_b32 v16, s52")
        b("v_mov_b32 v17, 1")
        b("global_store_byte v16, v17, s[46:47] sc1 ;@skip")
    b("s_mov_b64 exec, -1")
    b("L_nosig:")
    stamp(b, cfg, "signaled")
    b("s_lshr_b32 s52, s2, 3")
    b("s_cmp_ge_u32 s52, 30")
    b("s_cbranch_scc1 L_fin")
    b("s_waitcnt lgkmcnt(0)")
    b.ext(refill(2))
    for t in range(5, 12): b.ext(refill(t))
    b("s_lshl_b32 s52, s43, 2")
    b("s_add_u32 s52, s52, s3")
    b("s_lshl_b32 s52, s52, 3")
    b("v_mov_b32 v16, s52")
    prev = None
    for t in range(12, 16):
        if cfg.epoll and t == cfg.epoll: b("global_load_dword v17, v16, s[46:47] sc1 ;@ep")
        b.ext(park(t))
        if prev is not None and prev + 10 < cfg.X:
            b("s_waitcnt lgkmcnt(8)")
            b.ext(refill(prev))
        prev = t
    b("s_waitcnt lgkmcnt(0)")
    if prev + 10 < cfg.X: b.ext(refill(prev))
    stamp(b, cfg, "parked")
    b("s_mov_b32 s34, 0x100000")
    if cfg.epoll:
        b("WAITVM ep")
        b("v_readfirstlane_b32 s52, v17")
        b("s_cmp_ge_u32 s52, 8")
        b("s_cbranch_scc1 L_ready")
    b("L_poll:")
    if cfg.sig == "atomic":
        b("global_load_dword v17, v16, s[46:47] sc1")
        b("s_waitcnt vmcnt(0)")
        b("v_readfirstlane_b32 s52, v17")
        b("s_sub_u32 s34, s34, 1")
        b("s_cselect_b32 s52, 8, s52")
        b("s_cmp_lt_u32 s52, 8")
    else:
        b("global_load_dwordx2 v[18:19], v16, s[46:47] sc1")
        b("s_waitcnt vmcnt(0)")
        b("v_and_b32 v17, v18, v19")
        b("s_nop 0")
        b("v_readfirstlane_b32 s52, v17")
        b("s_sub_u32 s34, s34, 1")
        b("s_cselect_b32 s52, 0x01010101, s52")
        b("s_cmp_lg_u32 s52, 0x01010101")
    b("s_cbranch_scc1 L_poll")
    b("L_ready:")
    stamp(b, cfg, "polled")
    worder = [x.split(";@")[1] for x in b.l if ";@w" in x]
    a.l += fix(resolve_waits(b.l))
    c = Asm(); c.stamps = a.stamps
    for t_ in worder: c(f"buffer_dummy ;@{t_}")
    ACC = lambda i, nt: 32 + 16 * i + 4 * nt
    OFB = [112, 132, 152, 172, 192]
    OF = lambda t, i: OFB[t % cfg.DO] + 4 * i
    def oload(t):
        return [f"s_add_u32 s30, s41, {t}", "s_xor_b32 s30, s30, s37", "s_lshl_b32 s30, s30, 10", "s_and_b32 s30, s30, 0x7fff"] + \
            tag([f"buffer_load_dwordx4 {vr(OF(t,i),4)}, v{OAL[i]}, s[{SOR}:{SOR+3}], s30 offen {cfg.orflags}".rstrip() for i in range(5)], f"o{t}")
    for t in range(cfg.DO - 1): c.ext(oload(t))
    c("s_mul_i32 s52, s43, 240")
    c("s_mul_i32 s53, s54, 80")
    c("s_add_u32 s52, s52, s53")
    c("s_mul_i32 s52, s52, 1280")
    c("s_lshl_b32 s53, s55, 7")
    c("s_add_u32 s52, s52, s53")
    c.ext(srd(SOUT, 58, "s52", 79 * 1280 + 128))
    for j in range(1, 4):
        c(f"s_add_u32 s52, s3, {j}")
        c("s_and_b32 s52, s52, 3")
        c("s_mul_i32 s52, s52, 15360")
        c(f"v_add_u32 v{240+j}, s52, v15")
    c("s_mul_i32 s52, s3, 15360")
    c("v_add_u32 v240, s52, v15")
    c("v_mul_u32_u24 v244, 1280, v2")
    c("v_lshl_add_u32 v244, v3, 3, v244")
    nextw = cfg.X
    q = Seq()
    NL = cfg.NL
    for t in range(32 - NL):
        mf = []
        for i in range(5):
            for nt in range(4):
                d = vr(ACC(i, nt), 4)
                mf.append(f"{MF} {d}, {ar(WS(t,nt),4)}, {vr(OF(t,i),4)}, {'0' if t == 0 else d}")
        q.raw([f"WAITVM o{t} lgkmcnt(0)"] + (stamp_l(c, cfg, f"p{t}") if t in (1, 4, 8, 16, 24) else []))
        g = q.add(mf)
        if t + cfg.DO - 1 < 32: q.place(oload(t + cfg.DO - 1), [g + 4, g + 6, g + 9, g + 12, g + 15])
        tr = t + 15
        if t >= 1 and tr < 32:
            q.g[g].insert(0, f"WAITVM w{tr}")
            for k, r in enumerate(wreads(tr)): q.put(g + 1 + k, r)
        if nextw < 32 and nextw - 10 <= t + 14 and (nextw - cfg.X) * cfg.wev <= t:
            q.place(wdma(cfg, nextw), [g + 10, g + 13, g + 16, g + 18])
            nextw += 1
        if t == 20: q.put(g + 19, "s_barrier")
    assert nextw == 32
    q.raw([f"WAITVM o{32-NL} lgkmcnt(0)"])
    wr = lambda i, j: f"ds_write_b128 v{240+j}, {vr(ACC(i,j),4)} offset:{5120*(j-1)+1024*i}"
    for i in range(5):
        mf = []
        for j in (1, 2, 3, 0):
            d = vr(ACC(i, j), 4)
            for t in range(32 - NL, 32):
                mf.append(f"{MF} {d}, {ar(WS(t,j),4)}, {vr(OF(t,i),4)}, {d}")
        g = q.add(mf)
        if i == 0:
            for k in range(1, NL): q.g[g + k - 1].append(f"!WAITVM o{32-NL+k}")
        else:
            for j in range(1, 4): q.put(g + 2 + NL * (j - 1), wr(i - 1, j))
    q.raw(stamp_l(c, cfg, "projdone") + ["s_nop 1", wr(4, 1), wr(4, 2), "s_nop 1", wr(4, 3)])
    q.emit(c)
    c("s_waitcnt lgkmcnt(0)")
    c("s_barrier")
    for i in range(5):
        for j in range(3):
            c(f"ds_read_b128 {vr(112+12*i+4*j,4)}, v240 offset:{5120*j+1024*i}")
    c("s_lshl_b32 s52, s3, 5")
    for i in range(5):
        c(f"s_waitcnt lgkmcnt({3*(4-i)})")
        bb = 112 + 12 * i; ac = ACC(i, 0)
        for r in range(0, 4, 2):
            c(f"v_pk_add_f32 {vr(ac+r,2)}, {vr(ac+r,2)}, {vr(bb+r,2)}")
            c(f"v_pk_add_f32 {vr(bb+4+r,2)}, {vr(bb+4+r,2)}, {vr(bb+8+r,2)}")
        for r in range(0, 4, 2):
            c(f"v_pk_add_f32 {vr(ac+r,2)}, {vr(ac+r,2)}, {vr(bb+4+r,2)}")
        c(f"v_cvt_pk_bf16_f32 v{ac}, v{ac}, v{ac+1}")
        c(f"v_cvt_pk_bf16_f32 v{ac+1}, v{ac+2}, v{ac+3}")
        c(f"buffer_store_dwordx2 {vr(ac,2)}, v244, s[{SOUT}:{SOUT+3}], s52 offen {cfg.outflags}".rstrip())
        c("s_add_u32 s52, s52, %d" % (16 * 1280))
    a.l += resolve_waits(c.l)
    a("L_fin:")
    if cfg.stamps or cfg.calib:
        a("s_waitcnt vmcnt(0)")
        stamp(a, cfg, "end")
    if cfg.calib:
        a("s_waitcnt lgkmcnt(0)")
        a("s_or_b32 s52, s2, s3")
        a("s_cmp_lg_u32 s52, 0")
        a("s_cbranch_scc1 L_end")
        a(f"s_sub_u32 s52, s{62+4*cfg.cal_j}, s{62+4*cfg.cal_i}")
        a("s_lshl_b32 s52, s52, 2")
        a("s_add_u32 s52, s52, s62")
        a("L_spin:")
        a("s_memrealtime s[56:57]")
        a("s_waitcnt lgkmcnt(0)")
        a("s_sub_u32 s56, s56, s52")
        a(f"s_cmp_lt_i32 s56, {cfg.calib*100}")
        a("s_cbranch_scc1 L_spin")
    if cfg.stamps:
        stamps_out(a, cfg, 64 << 20)
    a("L_end:")
    a("s_endpgm")
    a("L_exact:")
    ex0 = len(a.l)
    a("s_mov_b32 s35, 1")
    a(f"s_mov_b32 s{SK+2}, {KVBYTES}")
    a(f"s_mov_b32 s{SV+2}, {KVBYTES}")
    a("s_mov_b32 s33, s40")
    a("s_waitcnt vmcnt(0) lgkmcnt(0)")
    a("L_exact_loop:")
    a("s_barrier")
    a.ext(with_nop(kdma(cfg, 0)))
    a(ADV)
    a("s_waitcnt vmcnt(0)")
    a("s_barrier")
    for th in range(2):
        for kt in range(2):
            for ks in range(4): a(kread(0, 0, th, kt, ks))
        a("s_waitcnt lgkmcnt(0)")
        for u in range(4): a.ext(qk(u, 0, True))
        a("s_nop 7")
        for u in range(4):
            s0 = S_(u, 0)
            for r in range(0, 8, 2):
                a(f"v_max3_f32 v{MTR+u}, v{MTR+u}, v{s0+r}, v{s0+r+1}")
    a(f"s_cmp_lt_u32 s33, {KVBYTES}")
    a("s_cbranch_scc1 L_exact_loop")
    a("s_barrier")
    a("s_mov_b32 s33, s40")
    for sg in range(4):
        a.ext(with_nop(kdma(cfg, sg) + vdma(cfg, sg)))
        a(ADV)
    a("s_waitcnt vmcnt(0)")
    a("s_barrier")
    a.ext(k0r + v0r)
    a("s_waitcnt lgkmcnt(0)")
    a.ext(k1r)
    for u in range(4): a.ext(qk(u, 0, True))
    a.ext(ones)
    a("s_nop 7")
    a.ext(fix(merge(*[fmax(u) for u in range(4)]) + merge(*[fexp(u, 8 if u < 3 else 4) for u in range(4)])))
    a("s_nop 1")
    a.ext(pv(0, 0, True) + pv(1, 0, True))
    a("s_waitcnt lgkmcnt(0)")
    q = Seq(); attn_tile(cfg, q, 1, "first")
    x1 = Asm()
    for t_ in ["seg1"]: x1("buffer_dummy ;@seg1")
    q.emit(x1)
    a.l += resolve_waits(x1.l)
    a("s_mov_b32 s34, 3")
    a("s_branch L_loop")
    bad = check(a.l[:ex0], "main") + check(body + body, "attn-loop") + check(a.l[ex0:] + body, "exact")
    assert bad == 0
    return a

def build(cfg):
    k = NAME + "_kernel"
    out = []
    out.append("; @launch grid=(256,1,1) block=(256,1,1) lds=163840")
    out.append('.amdgcn_target "amdgcn-amd-amdhsa--gfx950"')
    out.append(".text")
    out.append(f".globl {k}\n.p2align 8\n.type {k},@function\n{k}:")
    out.append(gen(cfg).text())
    out.append('.section .rodata,"a"')
    out.append(f""".p2align 6
.amdhsa_kernel {k}
  .amdhsa_next_free_vgpr 512
  .amdhsa_next_free_sgpr 102
  .amdhsa_accum_offset 256
  .amdhsa_group_segment_fixed_size 0
  .amdhsa_kernarg_size 64
  .amdhsa_user_sgpr_count 2
  .amdhsa_user_sgpr_kernarg_segment_ptr 1
  .amdhsa_system_sgpr_workgroup_id_x 1
.end_amdhsa_kernel
""")
    return "\n".join(out)

if __name__ == "__main__":
    cfg = Cfg()
    path = sys.argv[1]
    for kv in sys.argv[2:]:
        k, v = kv.split("=", 1)
        old = getattr(cfg, k)
        setattr(cfg, k, type(old)(eval(v)) if isinstance(old, (bool, int, float, tuple)) else v)
    open(path, "w").write(build(cfg))
```

```python
import sys, math, struct
from asmlib import *

NAME = "standalone__mha_block_cached__near_ridge"
def f32(x): return struct.unpack("<I", struct.pack("<f", x))[0]
MF = "v_mfma_f32_16x16x32_bf16"

class Cfg:
    kvflags = "nt"
    oflags = "sc1"
    orflags = "sc1"
    xflags = ""
    bflags = ""
    stamps = False
    only = ""
    qspread = 4
    kvpace = 11.5
    lthr = 2.0 ** 40
    force_fb = False
    rot = 5
    rA = 0
    DO = 5
    NL = 3
    cwarm = 1
    wl2 = 0
    wl2f = ""
    lag = 0
    split0 = 0
    wsched = 0
    b1 = 20
    bsp = 52
    split15 = 1
    sigfirst = 1
    outflags = ""
    wpull = 0
    epoll = 14
    touch = ()
    tpos = 52
    tl = 16
    tflags = ""
    tkv = "v"
    dmode = "even"
    xs = (0, 0, 0, 0, 0)
    k0at = 5
    X = 26
    wev = 1.0
    ncap = 3
    sig = "atomic"
    pkmul = True
    qord = 0
    exp = ""
    calib = 0
    cal_i = 0
    cal_j = 0

O_ = lambda u, dt: 32 + 32 * u + 4 * dt
S_ = lambda u, kt: 160 + 8 * u + 4 * kt
P_ = lambda u: 192 + 4 * u
NM = lambda u: 208 + 4 * u
KRA, VRA, KDA, VDA, MTR = 224, 228, 236, 240, 242
WD = 246
XDA, WDA, XRA, WRA = 192, 200, 204, 210
Q_ = lambda u, m: 16 * u + 4 * m
KF = lambda b, kt, ks: 64 + 32 * b + 16 * kt + 4 * ks
VF = lambda b, dt: 128 + 32 * b + 4 * dt
L_ = lambda u: 192 + 4 * u
ONES = 208
WF = lambda b, s, dt: ar([160, 0, 96][b] + 32 * s + 4 * dt, 4)
WF2 = lambda b, s, dt, e: ar([160, 0, 96][b] + 32 * s + 4 * dt + 2 * e, 2)
XF = lambda b, s, u: vr([224, 64, 160][b] + 16 * s + 4 * u, 4, "aav"[b])
SX, SW, SK, SV, SO = 8, 12, 16, 20, 24
SWO, SOR, SOUT = 8, 12, 16
KVBYTES = 262144
XBASE = [(131072, 147456), (65536, 16384), (32768, 49152)]
WWIN = 81920
WOFF = [32768, 0, 16384]
UNIT = [0, 4, 8, 9, 1, 5, 2, 6, 3, 7]
WRL = [[28, 29, 30, 31], [250, 251, 252, 253], [7, 8, 9, 10]]
OAL = [4, 5, 13, 14, 254]
WBLK = [224, 240, 64, 80, 96, 112, 128, 144, 160, 176, 208, 192, 0, 16, 32, 48]
WS = lambda t, nt: WBLK[t % 16] + 4 * nt
def wreads(t):
    u_ = UNIT[t % 10]
    return [f"ds_read_b64_tr_b16 {ar(WS(t,nt)+2*e,2)}, v{WRL[u_>>2][nt]} offset:{16384*(u_&3)+2048*e}" for nt in range(4) for e in range(2)]
WOSZ = 1024 * 1280 - 9 * 128
ORSZ = 4 * 131072 + 32768

class Seq:
    def __init__(self): self.m = []; self.g = []
    def add(self, mfmas):
        n = len(self.m); self.m += mfmas; self.g += [[] for _ in mfmas]; return n
    def raw(self, lines):
        self.m.append(None); self.g.append(["!" + x for x in lines]); return len(self.m) - 1
    def put(self, i, x): self.g[i].append(x)
    def slots(self, i):
        n = 0
        for x in self.g[i]:
            k = kind(x.lstrip("!"))
            if k in ("ds", "vm", "valu"): n += 2 if x.lstrip("!").startswith(TRANS) else 1
        return n
    def place(self, lst, vmpos):
        vmpos = list(vmpos); pend = []; last = None
        for x in lst:
            if kind(x) == "vm":
                p = vmpos.pop(0)
                for k, s in enumerate(reversed(pend)): self.g[p - 1 - k].insert(0, s)
                pend = []; self.g[p].append(x); last = p
            else: pend.append(x)
        for k, s in enumerate(pend): self.g[last + 1 + k].insert(0, s)
    def stream(self, lst, start, cap=2, end=None):
        i = start
        for x in lst:
            c = 2 if x.startswith(TRANS) else (0 if kind(x) == "s" else 1)
            while self.slots(i) + c > cap and (end is None or i < end) and i + 1 < len(self.m): i += 1
            self.g[i].append("!" + x)
        return i
    def emit(self, a): emit_gaps(a, self.m, self.g)

def stamp_l(a, cfg, name):
    if (cfg.stamps or cfg.calib) and (cfg.only == "" or name in cfg.only.split(",") or name in ("start", "end")):
        i = len(a.stamps); a.stamps.append(name)
        assert i < 10
        return [f"s_memtime s[{60+4*i}:{61+4*i}]", f"s_memrealtime s[{62+4*i}:{63+4*i}]"]
    return []
def stamp(a, cfg, name): a.ext(stamp_l(a, cfg, name))

def stamps_out(a, cfg, wsoff):
    n = len(a.stamps)
    a.l.insert(0, "; stamps " + str(wsoff >> 20) + " " + " ".join(a.stamps))
    a("s_waitcnt lgkmcnt(0)")
    a(f"s_add_u32 s48, s48, {wsoff}")
    a("s_addc_u32 s49, s49, 0")
    a("s_mov_b32 s50, 0x100000")
    a("s_mov_b32 s51, 0x20000")
    a("s_lshl_b32 s52, s2, 2")
    a("s_add_u32 s52, s52, s3")
    a("s_lshl_b32 s52, s52, 7")
    a("v_mov_b32 v6, s52")
    a("v_cmp_eq_u32 vcc, 0, v1")
    a("s_and_saveexec_b64 s[54:55], vcc")
    for i in range(n):
        a(f"v_mov_b32 v4, s{60+4*i}")
        a(f"v_mov_b32 v5, s{62+4*i}")
        a(f"buffer_store_dwordx2 v[4:5], v6, s[48:51], 0 offen offset:{8*i}")
        a("s_nop 1")
    a("s_getreg_b32 s53, hwreg(HW_REG_XCC_ID)")
    a("v_mov_b32 v4, s53")
    a("buffer_store_dword v4, v6, s[48:51], 0 offen offset:120")
    a("v_mov_b32 v4, 0x5157")
    a(f"v_mov_b32 v5, {n}")
    a("buffer_store_dwordx2 v[4:5], v6, s[48:51], 0 offen offset:112")
    a("s_mov_b64 exec, s[54:55]")

def srd(s, plo, off_s, size):
    return [f"s_add_u32 s{s}, s{plo}, {off_s}", f"s_addc_u32 s{s+1}, s{plo+1}, 0", f"s_mov_b32 s{s+2}, {size}", f"s_mov_b32 s{s+3}, 0x20000"]
def dma(vaddr, sdesc, soff, imm, flags=""):
    o = f" offset:{imm}" if imm else ""
    f = f" {flags}" if flags else ""
    return f"buffer_load_dwordx4 v{vaddr}, s[{sdesc}:{sdesc+3}], {soff} offen{o}{f} lds"
def tag(lst, t):
    return [x + f" ;@{t}" if kind(x) == "vm" else x for x in lst]
def with_nop(lst):
    o = []
    for x in lst:
        o.append(x)
        if " m0," in x: o.append("s_nop 0")
    return o

def resolve_waits(lines):
    out = []; seq = []
    for x in lines:
        if x.startswith("WAITVM"):
            p = x.split(None, 2)
            idx = max(i for i, t in enumerate(seq) if t == p[1])
            n = min(len(seq) - 1 - idx, 63)
            out.append(f"s_waitcnt vmcnt({n})" + (" " + p[2] if len(p) > 2 else ""))
            continue
        if not (x.endswith(":") or x.startswith(".") or x.startswith(";")) and kind(x) == "vm" and not x.endswith(";@skip"):
            seq.append(x.split(";@")[1] if ";@" in x else "")
        if not x.startswith("buffer_dummy"): out.append(x.split(" ;@")[0])
    return out

def kdma(cfg, slot, so="s33"):
    return [f"s_add_u32 m0, s40, {16384*slot}"] + [dma(KDA + pp, SK, so, 1024 * pp, cfg.kvflags) for pp in range(4)]
def vdma(cfg, slot, so="s33"):
    return [f"s_add_u32 m0, s40, {65536+16384*slot}"] + [dma(VDA + (pp & 1), SV, so, 1024 * pp, cfg.kvflags) for pp in range(4)]
ADV = "s_add_u32 s33, s33, 16384"
def piece(cfg, gp, setm0, guard=False):
    sg, kv, pp = gp // 8, (gp % 8) // 4, gp % 4
    grp = (vdma if kv else kdma)(cfg, sg & 3)
    o = ([grp[0]] if pp == 0 or setm0 else []) + tag([grp[1 + pp]], f"seg{sg}" + ("k" if kv == 0 else ""))
    if gp % 8 == 7:
        o += [ADV]
        if guard: o += [f"s_cmp_lt_u32 s33, {KVBYTES}", f"s_cselect_b32 s{SK+2}, {KVBYTES}, 0"]
    return o
def wdma(cfg, t):
    return [f"s_add_u32 s42, s41, {t}", "s_bfe_u32 s42, s42, 0x50000", "s_xor_b32 s42, s42, s37", "s_mul_i32 s42, s42, 40960", f"s_add_u32 m0, s40, {16384*UNIT[t%10]}"] + \
        tag([dma(WD + pp, SWO, "s42", 1024 * pp, cfg.bflags) for pp in range(4)], f"w{t}")
def kread(buf, slot, th, kt, ks):
    return f"ds_read_b128 {ar(KF(buf,kt,ks),4)}, v{KRA+ks} offset:{16384*slot+8192*th+4096*kt}"
def vread(buf, slot, th, dt, e):
    return f"ds_read_b64_tr_b16 {ar(VF(buf,dt)+2*e,2)}, v{VRA+dt} offset:{16384*slot+8192*th+4096*e}"

def qk(u, kb, czero=False, sl=None):
    m = []
    for kt in range(2):
        d = vr(S_(u if sl is None else sl, kt), 4)
        for ks in range(4):
            c = ("0" if czero else vr(NM(u), 4)) if ks == 0 else d
            m.append(f"{MF} {d}, {ar(KF(kb,kt,ks),4)}, {ar(Q_(u,ks),4)}, {c}")
    return m
def pv(u, vb, czero=False, sl=None):
    m = []
    p = vr(P_(u if sl is None else sl), 4)
    for dt in range(8):
        d = vr(O_(u, dt), 4)
        m.append(f"{MF} {d}, {ar(VF(vb,dt),4)}, {p}, {'0' if czero else d}")
    d = ar(L_(u), 4)
    m.append(f"{MF} {d}, {ar(ONES,4)}, {p}, {'0' if czero else d}")
    return m
def sm_half(q, g0, u, kt):
    s = S_(u, kt)
    for r in range(4):
        q.put(g0 + 2 * r, f"v_exp_f32 v{s+r}, v{s+r}")
        if r & 1: q.put(g0 + 2 * r + 1, f"v_cvt_pk_bf16_f32 v{P_(u)+2*kt+r//2}, v{s+r-1}, v{s+r}")

def attn_tile(cfg, q, j, mode="loop"):
    kb = vb = j & 1
    slot, th = (j >> 1) & 3, j & 1
    nslot, nth = ((j + 1) >> 1) & 3, (j + 1) & 1
    z = mode == "first"
    groups = [qk(0, kb), pv(2, vb ^ 1, z), qk(1, kb), pv(3, vb ^ 1, z), qk(2, kb), pv(0, vb), qk(3, kb), pv(1, vb)]
    st = [q.add(g) for g in groups]; st.append(len(q.m))
    sm_half(q, st[0], 3, 1)
    for u in range(3):
        sm_half(q, st[2 * u + 1], u, 0)
        sm_half(q, st[2 * u + 2], u, 1)
    sm_half(q, st[7], 3, 0)
    vr_ = [vread(vb, slot, th, dt, e) for dt in range(8) for e in range(2)]
    pos = [st[0] + k for k in (1, 3, 5, 5, 7)] + [st[1] + k for k in (1, 1, 3, 5, 5, 7, 8)] + [st[2] + k for k in (1, 3, 5, 5)]
    for p, r in zip(pos, vr_): q.put(p, r)
    mid = st[4] - 1
    if j & 1:
        if mode == "loop": q.put(mid, f"s_waitcnt vmcnt({16-cfg.lag}) lgkmcnt(0)")
        else: q.put(mid, f"WAITVM seg{(j+1)//2}{'k' if j == 29 and cfg.split15 else ''} lgkmcnt(0)")
        q.put(mid, "s_barrier")
    else:
        q.put(mid, "s_waitcnt lgkmcnt(0)")
    kr_ = [kread(kb ^ 1, nslot, nth, kt, ks) for kt in range(2) for ks in range(4)]
    pos = [st[4] + k for k in (1, 3, 5, 7)] + [st[5] + k for k in (1, 3, 5, 7)]
    for p, r in zip(pos, kr_): q.put(p, r)
    q.put(st[8] - 2 if j != 29 else st[7], "s_waitcnt lgkmcnt(0)")
    dpos = [st[0] + 1, st[2] + 1, st[4] + 1, st[6] + 1]
    for k in range(4):
        gp = 4 * j + 26 + k - cfg.lag
        if mode == "first" and k < 2: continue
        if mode == "final":
            if gp < 128: q.place(piece(cfg, gp, True), [[st[0] + 1, st[0] + 5, st[1] + 1, st[1] + 3][k] if cfg.wsched == 0 else dpos[k]])
            continue
        q.place(piece(cfg, gp, False, cfg.lag < 2), [dpos[k]])
    return st

def rowmax_l(t, t2):
    return [f"v_mov_b32 v{t2}, v{t}", "s_nop 1", f"v_permlane32_swap_b32 v{t}, v{t2}", f"v_max_f32 v{t}, v{t}, v{t2}",
            f"v_mov_b32 v{t2}, v{t}", "s_nop 1", f"v_permlane16_swap_b32 v{t}, v{t2}", f"v_max_f32 v{t}, v{t}, v{t2}"]

def scale_pack(cfg, b0, t, mul, pk):
    o = []
    if pk: o += [f"v_pk_mul_f32 {vr(b0+2*i,2)}, {vr(b0+2*i,2)}, {mul[1]}" for i in range(4)]
    else: o += [f"v_mul_f32 v{b0+i}, {mul[0]}, v{b0+i}" for i in range(8)]
    o += [f"v_cvt_pk_bf16_f32 v{t+i}, v{b0+2*i}, v{b0+2*i+1}" for i in range(4)]
    return o

def gen(cfg):
    a = Asm()
    a("s_cmp_ge_u32 s2, 256")
    a("s_cbranch_scc1 L_end")
    stamp(a, cfg, "start")
    a("s_load_dwordx4 s[4:7], s[0:1], 0")
    a("s_load_dwordx4 s[44:47], s[0:1], 16")
    a("s_load_dwordx2 s[48:49], s[0:1], 56")
    a("v_and_b32 v1, 63, v0")
    a("v_lshrrev_b32 v2, 6, v0")
    a("s_and_b32 s50, s2, 7")
    a("v_readfirstlane_b32 s3, v2")
    a("s_lshr_b32 s51, s2, 3")
    a("s_and_b32 s28, s50, 1")
    a("s_lshl_b32 s28, s28, 2")
    a("s_and_b32 s52, s51, 3")
    a("s_add_u32 s28, s28, s52")
    a("s_lshr_b32 s29, s50, 1")
    a("s_lshl_b32 s29, s29, 3")
    a("s_lshr_b32 s53, s51, 2")
    a("s_add_u32 s29, s29, s53")
    if cfg.rot == 4:
        a("s_add_u32 s52, s52, s53")
        a("s_and_b32 s52, s52, 3")
        a("s_mul_i32 s52, s52, 5")
        a("s_lshr_b32 s32, s52, 1")
    elif cfg.rot == 2:
        a("s_mul_i32 s52, s52, 5")
        a("s_lshr_b32 s52, s52, 1")
        a("s_add_u32 s32, s52, s53")
        a("s_cmp_ge_u32 s32, 10")
        a("s_cselect_b32 s52, 10, 0")
        a("s_sub_u32 s32, s32, s52")
    elif cfg.rot == 5:
        a("s_add_u32 s52, s52, s53")
        a("s_and_b32 s52, s52, 1")
        a("s_mul_i32 s32, s52, 5")
        a("s_lshr_b32 s52, s50, 1")
        a("s_add_u32 s52, s52, s50")
        a("s_and_b32 s52, s52, 1")
        a("s_lshl_b32 s52, s52, 1")
        a("s_add_u32 s32, s32, s52")
    elif cfg.rot == 6:
        a("s_and_b32 s52, s50, 1")
        a("s_mul_i32 s32, s52, 5")
        a("s_lshr_b32 s52, s50, 1")
        a("s_mul_i32 s52, s52, 5")
        a("s_lshr_b32 s52, s52, 1")
        a("s_add_u32 s32, s32, s52")
        a("s_cmp_ge_u32 s32, 10")
        a("s_cselect_b32 s52, 10, 0")
        a("s_sub_u32 s32, s32, s52")
    elif cfg.rot == 3:
        a("s_add_u32 s52, s52, s53")
        a("s_and_b32 s52, s52, 1")
        a("s_mul_i32 s32, s52, 5")
    else:
        a("s_mov_b32 s32, 0")
    a("s_lshl_b32 s30, s32, 7")
    a("s_lshl_b32 s31, s32, 19")
    a("s_lshl_b32 s40, s3, 12")
    a("s_mov_b32 s33, s40")
    a("s_add_u32 s39, s40, %d" % WWIN)
    a("s_and_b32 s52, s3, 1")
    a("s_lshl_b32 s52, s52, 13")
    a("s_cmp_ge_u32 s3, 2")
    for bf in range(3):
        a(f"s_mov_b32 s53, {XBASE[bf][0]}")
        a(f"s_cselect_b32 s{36+bf}, {XBASE[bf][1]}, s53")
    for bf in range(3):
        a(f"s_add_u32 s{36+bf}, s{36+bf}, s52")
    a("s_mov_b32 s35, 0")
    a("v_and_b32 v2, 15, v1")
    a("v_lshrrev_b32 v3, 4, v1")
    a("v_lshrrev_b32 v4, 3, v1")
    a("v_and_b32 v5, 7, v1")
    a("v_bfe_u32 v6, v1, 2, 2")
    a("v_and_b32 v7, 3, v1")
    a("s_mul_i32 s52, s3, %d" % (64 * 1280))
    a("v_mul_u32_u24 v8, 1280, v4")
    a("v_add_u32 v8, s52, v8")
    for par in range(2):
        a(f"v_or_b32 v9, {4*par}, v3")
        a("v_xor_b32 v9, v9, v5")
        a(f"v_lshl_add_u32 v{16+par}, v9, 4, v8")
    for pp in range(8):
        a(f"v_add_u32 v{XDA+pp}, {10240*pp-1024*(pp&3)}, v{16+(pp&1)}")
    a("s_lshl_b32 s52, s3, 17")
    a("v_lshlrev_b32 v8, 13, v3")
    a("v_add_u32 v8, s52, v8")
    a("v_and_b32 v9, 1, v3")
    a("v_lshrrev_b32 v10, 1, v3")
    a("v_lshl_or_b32 v9, v10, 2, v9")
    a("v_xor_b32 v9, v9, v2")
    a("v_lshl_add_u32 v16, v9, 4, v8")
    a("v_xor_b32 v17, 128, v16")
    for pp in range(4):
        a(f"v_add_u32 v{WDA+pp}, {32768*pp-1024*pp}, v{16+(pp>>1)}")
    if cfg.cwarm:
        a("s_getpc_b64 s[54:55]")
        a("L_cbase:")
        a("s_lshl_b32 s52, s51, 2")
        a("s_add_u32 s52, s52, s3")
        a("s_mul_i32 s52, s52, 3")
        a("v_min_u32 v18, 2, v1")
        a("v_add_u32 v18, s52, v18")
        a("v_lshlrev_b32 v18, 7, v18")
        a("v_min_u32 v18, L_exact-L_cbase, v18")
        a("v_mov_b32 v19, s55")
        a("v_add_co_u32 v18, vcc, s54, v18")
        a("v_addc_co_u32 v19, vcc, 0, v19, vcc")
        a("global_load_dword v20, v[18:19], off")
    a("s_waitcnt lgkmcnt(0)")
    stamp(a, cfg, "kernarg")
    a("s_mul_i32 s52, s28, 307200")
    a.ext(srd(SX, 4, "s52", 307200))
    a("s_lshl_b32 s52, s29, 8")
    a.ext(srd(SW, 46, "s52", 640 * 8192 - 31 * 256))

    def qstage(c):
        bf = c % 3
        o = [f"s_mov_b32 m0, s{36+bf}"]
        o += [dma(XDA + pp, SX, "s30", 1024 * pp, cfg.xflags) for pp in range(4)]
        o += [f"s_add_u32 m0, s{36+bf}, 4096"]
        o += [dma(XDA + 4 + pp, SX, "s30", 1024 * pp, cfg.xflags) for pp in range(4)]
        o += [f"s_add_u32 m0, s39, {WOFF[bf]}"]
        o += [dma(WDA + pp, SW, "s31", 1024 * pp, cfg.xflags) for pp in range(4)]
        o += ["s_add_u32 s32, s32, 1", "s_cmp_eq_u32 s32, 10", "s_cselect_b32 s32, 0, s32", "s_lshl_b32 s30, s32, 7", "s_lshl_b32 s31, s32, 19"]
        return tag(o, f"c{c}")
    a.ext(with_nop(qstage(0)))
    a("s_load_dwordx4 s[56:59], s[0:1], 32")
    a("s_lshl_b32 s52, s28, 5")
    a("s_add_u32 s52, s52, s29")
    a("s_lshl_b32 s52, s52, 18")
    a.ext(srd(SK, 6, "s52", KVBYTES))
    a.ext(srd(SV, 44, "s52", KVBYTES))
    a("s_mul_i32 s52, s28, %d" % (15 * 131072))
    a.ext(srd(SO, 48, "s52", 15 * 131072))
    a("s_load_dwordx2 s[46:47], s[0:1], 48")
    a("v_lshlrev_b32 v10, 8, v3")
    for pp in range(4):
        a(f"v_add_u32 v9, {4*pp}, v3")
        a("v_xor_b32 v9, v9, v2")
        a(f"v_lshl_add_u32 v{KDA+pp}, v9, 4, v10")
    for pp in range(2):
        a(f"v_add_u32 v9, {4*pp}, v3")
        a("v_lshlrev_b32 v9, 1, v9")
        a("v_xor_b32 v9, v9, v2")
        a(f"v_lshl_add_u32 v{VDA+pp}, v9, 4, v10")
    a("v_lshrrev_b32 v9, 1, v2")
    for s in range(2):
        a(f"v_or_b32 v8, {4*s}, v3")
        a("v_xor_b32 v8, v8, v9")
        a("v_lshlrev_b32 v8, 4, v8")
        a("v_lshl_add_u32 v8, v2, 7, v8")
        for bf in range(3):
            a(f"v_add_u32 v{XRA+2*bf+s}, s{36+bf}, v8")
    a("v_lshrrev_b32 v11, 1, v7")
    a("v_and_b32 v12, 1, v7")
    a("v_lshlrev_b32 v12, 3, v12")
    a("v_and_b32 v9, 1, v6")
    a("v_lshrrev_b32 v10, 1, v6")
    a("v_lshl_or_b32 v9, v10, 2, v9")
    a("v_and_b32 v10, 1, v3")
    a("v_lshl_or_b32 v9, v10, 3, v9")
    a("v_lshl_or_b32 v9, v11, 1, v9")
    a("v_lshl_add_u32 v13, v3, 3, v6")
    a("v_lshl_add_u32 v13, v13, 8, v12")
    a(f"v_add_u32 v13, {WWIN}, v13")
    for dt in range(8):
        a(f"v_xor_b32 v8, {4*(dt>>1)+(dt&1)}, v9")
        a(f"v_lshl_add_u32 v{WRA+dt}, v8, 4, v13")
    a("v_lshl_or_b32 v9, v10, 2, v6")
    a("v_lshl_or_b32 v9, v9, 1, v11")
    a("v_lshl_add_u32 v14, v3, 2, v6")
    a("v_lshl_add_u32 v14, v14, 8, v12")
    a("v_add_u32 v14, 65536, v14")
    for dt in range(8):
        a(f"v_xor_b32 v8, {2*dt}, v9")
        a(f"v_lshl_add_u32 v{VRA+dt}, v8, 4, v14")
    for ks in range(4):
        a(f"v_or_b32 v8, {4*ks}, v3")
        a("v_xor_b32 v8, v8, v2")
        a("v_lshlrev_b32 v8, 4, v8")
        a(f"v_lshl_add_u32 v{KRA+ks}, v2, 8, v8")
    for i in range(4):
        a(f"v_mov_b32 v{MTR+i}, 0xff800000")
    a("v_lshlrev_b32 v15, 4, v1")
    a(f"v_and_b32 v8, {cfg.tl-1}, v1")
    a(f"v_lshrrev_b32 v9, {int(math.log2(cfg.tl))}, v1")
    a("v_lshlrev_b32 v9, 14, v9")
    a("v_lshl_add_u32 v219, v8, 7, v9")
    a("v_lshlrev_b32 v9, 1, v3")
    a("v_xor_b32 v9, v9, v5")
    a("v_lshlrev_b32 v9, 4, v9")
    a("v_mul_u32_u24 v8, 1280, v4")
    a("v_add_u32 v8, v8, v9")
    for pp in range(4):
        a(f"v_add_u32 v{WD+pp}, {pp*9216}, v8")
    a("v_lshl_add_u32 v14, v3, 2, v6")
    a("v_bfe_u32 v13, v14, 1, 2")
    a("v_lshl_or_b32 v13, v13, 1, v11")
    a("v_lshl_add_u32 v14, v14, 7, v12")
    a("v_add_u32 v14, s40, v14")
    for nt in range(4):
        a(f"s_add_u32 s53, s3, {nt}")
        a("s_and_b32 s53, s53, 3")
        a("s_lshl_b32 s53, s53, 1")
        a("v_xor_b32 v16, s53, v13")
        a(f"v_lshl_add_u32 v{WRL[0][nt]}, v16, 4, v14")
        a(f"v_add_u32 v{WRL[1][nt]}, 65536, v{WRL[0][nt]}")
        a(f"v_add_u32 v{WRL[2][nt]}, 131072, v{WRL[0][nt]}")
    for i in range(5): a(f"v_add_u32 v{OAL[i]}, {131072*i}, v15")
    a("s_min_u32 s51, s51, 29")
    a("s_cmp_ge_u32 s51, 15")
    a("s_cselect_b32 s52, 1, 0")
    a("s_cselect_b32 s53, 15, 0")
    a("s_sub_u32 s53, s51, s53")
    a("s_and_b32 s43, s50, 6")
    a("s_add_u32 s43, s43, s52")
    a("s_mul_i32 s54, s53, 52")
    a("s_lshr_b32 s54, s54, 8")
    a("s_mul_i32 s41, s54, 5")
    a("s_sub_u32 s53, s53, s41")
    a("s_lshl_b32 s34, s53, 2")
    a("s_and_b32 s55, s50, 1")
    a("s_mul_i32 s55, s55, 5")
    a("s_add_u32 s55, s55, s53")
    a("s_mul_i32 s52, s52, 15")
    a("s_add_u32 s41, s41, s52")
    if cfg.rA:
        a(f"s_mul_i32 s53, s53, {cfg.rA}")
        a("s_add_u32 s41, s41, s53")
    a("s_and_b32 s41, s41, 31")
    sc = f32(math.log2(math.e) / math.sqrt(128.0))
    if cfg.wpull:
        a("s_mul_i32 s52, s2, 160")
        a(f"s_mul_i32 s53, s3, {14 if cfg.wpull == 1 else 40}")
        a("s_add_u32 s52, s52, s53")
        a("v_add_u32 v218, s52, v1")
        a("v_lshlrev_b32 v218, 7, v218")
        a("v_mov_b32 v16, 0x7fffff80")
        a(f"v_cmp_gt_u32 vcc, {14 if cfg.wpull == 1 else 40}, v1")
        a("v_cndmask_b32 v255, v16, v218, vcc")
    if cfg.wl2:
        a("s_lshr_b32 s52, s2, 3")
        a("s_lshl_b32 s52, s52, 2")
        a("s_add_u32 s52, s52, s3")
        a("s_mul_i32 s52, s52, %d" % (32 * 1280))
        a("s_and_b32 s53, s50, 1")
        a("s_mul_i32 s53, s53, 640")
        a("s_add_u32 s52, s52, s53")
        a("v_mul_u32_u24 v16, 52, v1")
        a("v_lshrrev_b32 v16, 8, v16")
        a("v_mul_u32_u24 v17, 5, v16")
        a("v_sub_u32 v17, v1, v17")
        a("v_mul_u32_u24 v16, 1280, v16")
        a("v_lshl_add_u32 v16, v17, 7, v16")
        a("v_add_u32 v16, s52, v16")
        a("v_mov_b32 v17, 0x7fffff80")
        a("v_cmp_gt_u32 vcc, 15, v1")
        a("v_cndmask_b32 v255, v17, v16, vcc")
    a(f"s_mov_b32 s44, {sc}")
    a(f"s_mov_b32 s45, {sc}")
    a.ext(with_nop(qstage(1)))
    stamp(a, cfg, "issued")

    def qreads(c):
        bf = rb = c % 3
        o = []
        for s in range(2):
            o.append(f"ds_read_b128 {XF(rb,s,0)}, v{XRA+2*bf+s}")
        for dt in range(8):
            for s in range(2):
                for e in range(2):
                    o.append(f"ds_read_b64_tr_b16 {WF2(rb,s,dt,e)}, v{WRA+dt} offset:{WOFF[bf]+8192*s+1024*e}")
        for u in range(1, 4):
            for s in range(2):
                o.append(f"ds_read_b128 {XF(rb,s,u)}, v{XRA+2*bf+s} offset:{2048*u}")
        return o
    a("WAITVM c0 lgkmcnt(0)")
    a("s_barrier")
    stamp(a, cfg, "landed")
    a.ext(qreads(0))
    a.ext(with_nop(qstage(2)))
    wp = ["s_mov_b32 s4, s56", "s_mov_b32 s5, s57", f"s_mov_b32 s6, {4096*1280}", "s_mov_b32 s7, 0x20000", "buffer_load_dword v218, v255, s[4:7], 0 offen"]
    if cfg.wpull == 2: a.ext(wp)
    a("s_waitcnt lgkmcnt(0)")
    q = Seq()
    per = []
    for c in range(10):
        rb = c % 3
        mf = []
        for u in range(4):
            for dt in range(8):
                d = vr(O_(u, dt), 4)
                for s in range(2):
                    mf.append(f"{MF} {d}, {WF(rb,s,dt)}, {XF(rb,s,u)}, {'0' if c == 0 and s == 0 else d}")
        p0 = q.add(mf); per.append(p0)
        for x in stamp_l(a, cfg, f"q{c+1}"): q.put(p0 + 63, "!" + x)
    BQ = {n: max(cfg.b1 + cfg.bsp * (n - 1), 64 * (n - 2)) for n in range(1, 10)}
    BQ[10] = BQ[9] + 44
    for n in range(1, 11):
        p = BQ[n]
        q.put(p, f"WAITVM c{n} lgkmcnt(0)" if n < 10 else "s_waitcnt lgkmcnt(0)"); q.put(p, "s_barrier")
        if n < 10:
            for i, r in enumerate(qreads(n)): q.put(p + 1 + (i * 3) // 4, r)
        if n + 2 < 10:
            q.place(qstage(n + 2), [p + 2 + (cfg.bsp * i) // 12 for i in range(12)])
        assert n == 1 or n == 10 or BQ[n + 1] < 64 * n, n
    q.put(63, "s_waitcnt lgkmcnt(0)")
    if cfg.wpull >= 3: q.place(wp, [per[cfg.wpull - 3] + 60])
    sw = [f"s_mov_b32 s52, {sum(v << (4*k) for k, v in enumerate(cfg.xs))}", "s_lshr_b32 s52, s52, s34", "s_and_b32 s37, s52, 15"]
    sw += ["s_mul_i32 s52, s3, %d" % (1024 * 1280), "s_lshl_b32 s53, s55, 7", "s_add_u32 s52, s52, s53"] + srd(SWO, 56, "s52", WOSZ) + \
         ["s_mul_i32 s52, s43, 15", "s_mul_i32 s53, s54, 5", "s_add_u32 s52, s52, s53", "s_lshl_b32 s52, s52, 17", "s_lshl_b32 s53, s3, 15",
          "s_add_u32 s52, s52, s53"] + srd(SOR, 48, "s52", ORSZ)
    if cfg.wpull == 1 or cfg.wl2: sw += ["s_mov_b32 s4, s56", "s_mov_b32 s5, s57", f"s_mov_b32 s6, {4096*1280}", "s_mov_b32 s7, 0x20000", "s_mov_b32 s38, 0"]
    i = per[8] + 2
    k = 0
    while k < len(sw):
        n = 2 if "s_addc" in sw[min(k + 1, len(sw) - 1)] else 1
        for x in sw[k:k + n]: q.put(i, x)
        k += n; i += 2
    p9 = per[9]
    def qepi(u):
        o = []
        for m in range(4):
            t = 16 + 4 * (m & 1)
            o += scale_pack(cfg, O_(u, 2 * m), t, ("s44", "s[44:45]"), cfg.pkmul)
            if m:
                tp = 16 + 4 * ((m - 1) & 1)
                o += [f"v_accvgpr_write_b32 a{Q_(u,m-1)+i}, v{tp+i}" for i in range(4)]
            o += [f"v_permlane16_swap_b32 v{t}, v{t+2}", f"v_permlane16_swap_b32 v{t+1}, v{t+3}"]
        o += [f"v_accvgpr_write_b32 a{Q_(u,3)+i}, v{20+i}" for i in range(4)]
        return o
    q.put(p9 + 31, "WAITVM seg0k" if cfg.split0 else "WAITVM seg0"); q.put(p9 + 31, "s_barrier")
    for x in stamp_l(a, cfg, "b0"): q.put(p9 + 31, "!" + x)
    k0r = [kread(0, 0, 0, kt, ks) for kt in range(2) for ks in range(4)]
    for i, r in enumerate(k0r): q.put(p9 + 32 + 2 * i, r)
    e = q.stream(qepi(0), p9 + 16 + 4, cap=4)
    e = q.stream(qepi(1), max(e, p9 + 32 + 4), cap=4)
    e = q.stream(qepi(2), max(e, p9 + 48 + 4), cap=4)
    q.put(p9 + 62, "s_waitcnt lgkmcnt(0)")
    lab = q.raw([])
    for x in stamp_l(a, cfg, "g0"): q.put(len(q.m) - 1, "!" + x)
    g0 = q.add(qk(0, 0, True))
    g1 = q.add(qk(1, 0, True))
    g2 = q.add(qk(2, 0, True))
    v0r = [vread(0, 0, 0, dt, e_) for dt in range(8) for e_ in range(2)]
    k1r = [kread(1, 0, 1, kt, ks) for kt in range(2) for ks in range(4)]
    if cfg.split0:
        for i, r in enumerate(k1r): q.put(g0 + i, r)
        q.put(g1 - 1, "!WAITVM seg0"); q.put(g1 - 1, "!s_barrier")
        for i, r in enumerate(v0r): q.put(g1 + i, r)
    else:
        for i, r in enumerate(v0r + k1r): q.put(g0 + i, r)
    e = q.stream(qepi(3), max(e, g0), cap=4)
    def fmax(u):
        s0 = S_(u, 0); t = NM(u)
        o = [f"v_max3_f32 v{t}, v{s0}, v{s0+1}, v{s0+2}", f"v_max3_f32 v{t+1}, v{s0+3}, v{s0+4}, v{s0+5}",
             f"v_max3_f32 v{t}, v{t}, v{s0+6}, v{s0+7}", f"v_max3_f32 v{t}, v{t}, v{t+1}, v{MTR+u}"]
        return o + [x for x in rowmax_l(t, t + 1) if "s_nop" not in x]
    def fexp(u, nexp):
        s0 = S_(u, 0); t = NM(u)
        o = [f"v_sub_f32 v{s0+r}, v{s0+r}, v{t}" for r in range(8)]
        o += [f"v_exp_f32 v{s0+r}, v{s0+r}" for r in range(nexp)]
        o += [f"v_sub_f32 v{NM(u)+i}, 0, v{t}" for i in (1, 2, 3, 0)]
        o += [f"v_cvt_pk_bf16_f32 v{P_(u)+r//2}, v{s0+r}, v{s0+r+1}" for r in range(0, nexp, 2)]
        return o
    ones = ["v_mov_b32 v27, 0x3f803f80"] + [f"v_accvgpr_write_b32 a{ONES+i}, v27" for i in range(4)]
    e = q.stream(merge(fmax(0), fmax(1), ones), max(e, g2 + 1), cap=4)
    for x in stamp_l(a, cfg, "g3"): q.put(len(q.m) - 1, "!" + x)
    g3 = q.add(qk(3, 0, True))
    e = q.stream(merge(fexp(0, 8), fmax(2)), g3, cap=6)
    q.raw(["s_waitcnt lgkmcnt(0)"])
    for x in stamp_l(a, cfg, "g4"): q.put(len(q.m) - 1, "!" + x)
    g4 = q.add(pv(0, 0, True))
    e = q.stream(merge(fexp(1, 8), fmax(3)), g4, cap=5)
    for x in stamp_l(a, cfg, "g5"): q.put(len(q.m) - 1, "!" + x)
    g5 = q.add(pv(1, 0, True))
    e = q.stream(merge(fexp(2, 8), fexp(3, 4)), g5, cap=7)
    for x in stamp_l(a, cfg, "tile1"): q.raw([x])
    st1 = attn_tile(cfg, q, 1, "first")
    kv = []
    NP = 32 - cfg.lag
    for gp in range(NP): kv += piece(cfg, gp, False)
    pos = []
    i = BQ[7] + cfg.bsp + 3; acc = cfg.kvpace
    free_at = [0, BQ[8], BQ[8], BQ[8], BQ[9], BQ[9], BQ[9], BQ[10]]
    while len(pos) < NP:
        ok = q.m[i] and q.m[i - 1] and q.m[i + 1] and (q.slots(i) < 2 or i > p9 + 16) and i > free_at[len(pos) // 4]
        if ok and acc >= cfg.kvpace:
            pos.append(i); acc = 0
        acc += max(4, 2 + q.slots(i)) / 4
        i += 1
    assert pos[3 if cfg.split0 else 7] < p9 + 31 and pos[7] < g1 - 2 and pos[-1] < st1[4] - 2, (pos, p9, st1)
    if "nokv23" in cfg.exp: kv = [("buffer_dummy ;@" + x.split(";@")[1]) if (x.endswith("seg2") or x.endswith("seg3")) else x for x in kv]
    for k, (c, sg) in enumerate(cfg.touch):
        q.put(per[c] + cfg.tpos - 1, f"s_add_u32 s53, s40, {16384*sg}")
        q.put(per[c] + cfg.tpos, f"buffer_load_dword v255, v219, s[{SV if cfg.tkv[k % len(cfg.tkv)] == 'v' else SK}:{(SV if cfg.tkv[k % len(cfg.tkv)] == 'v' else SK)+3}], s53 offen {cfg.tflags}".rstrip())
    q.place(kv, pos)
    q.emit(a)
    a.l = fix(resolve_waits(a.l))
    a("s_mov_b32 s34, 3")
    a(".p2align 6")
    a("L_loop:")
    body0 = len(a.l)
    q = Seq()
    def loopstamp(q, p, pre):
        if cfg.stamps and pre in cfg.only.split(","):
            o = ["s_memtime s[4:5]", "s_memrealtime s[6:7]", "s_waitcnt lgkmcnt(0)"]
            for it in range(3):
                i = len(a.stamps); a.stamps.append(f"{pre}{it}")
                o += [f"s_cmp_eq_u32 s34, {3-it}", f"s_cselect_b32 s{60+4*i}, s4, s{60+4*i}", f"s_cselect_b32 s{62+4*i}, s6, s{62+4*i}"]
            for x in o: q.put(p, x)
    for j in range(2, 10):
        st = attn_tile(cfg, q, j)
        if j == 2: loopstamp(q, st[4] - 1, "ia")
        if j == 6: loopstamp(q, st[4] - 1, "ib")
        if cfg.wl2 and j % 2 == 0:
            q.put(st[3] + 1, f"buffer_load_dword v16, v255, s[4:7], s38 offen {cfg.wl2f}".rstrip())
            q.put(st[3] + 2, f"s_add_u32 s38, s38, {3*1280}")
        if cfg.wpull == 1 and j == 4:
            q.put(st[3] + 1, "buffer_load_dword v16, v255, s[4:7], s38 offen")
            q.put(st[3] + 2, f"s_add_u32 s38, s38, {56*128}")
        if j in (5, 7):
            for x in reversed(stamp_l(a, cfg, f"w{j}a")): q.g[st[4] - 1].insert(0, x)
            for x in stamp_l(a, cfg, f"w{j}b"): q.put(st[4] - 1, x)
        if j == 6:
            for x in reversed(stamp_l(a, cfg, f"d{j}a")): q.g[st[2] + 1].insert(0, x)
            for x in stamp_l(a, cfg, f"d{j}b"): q.put(st[2] + 1, "!" + x)
    q.put(-3, "s_sub_u32 s34, s34, 1")
    q.put(-1, "s_cmp_lg_u32 s34, 0"); q.put(-1, "s_cbranch_scc1 L_loop")
    q.emit(a)
    a.l = a.l[:body0] + [x.split(" ;@")[0] for x in a.l[body0:]]
    body = a.l[body0:]
    b = Asm(); b.stamps = a.stamps
    for gp in range(104, 130 - cfg.lag): b(f"buffer_dummy ;@seg{gp//8}" + ("k" if gp % 8 < 4 else ""))
    q = Seq()
    if "nowo" in cfg.exp: b(f"s_mov_b32 s{SWO+2}, 0")
    for x in stamp_l(b, cfg, "t26"): b(x)
    sts = {j: attn_tile(cfg, q, j, "final") for j in range(26, 30)}
    def wpos(st, half):
        return [st[4*half] + 1, st[4*half+1] + 8 if half == 0 else st[5] + 1, st[4*half+2] + (7 if half == 0 else 1), st[4*half+3] + 1]
    if cfg.wsched == 0:
        for j, (t0, t1) in {26: (0, 1), 27: (2, 3), 28: (4, 5), 29: (10, 6)}.items():
            st = sts[j]
            q.place(wdma(cfg, t0), [st[1] + 8, st[2] + 7, st[3] + 1, st[3] + 5])
            q.place(wdma(cfg, t1), [st[5] + 8, st[6] + 1, st[6] + 5, st[7] + 5])
    else:
        st = sts[27]
        q.place(wdma(cfg, 0), [st[5] + 8, st[6] + 1, st[6] + 5, st[7] + 5])
        st = sts[28]
        q.place(wdma(cfg, 1), [st[0] + 5, st[0] + 7, st[1] + 1, st[1] + 3])
        q.place(wdma(cfg, 2), [st[2] + 1, st[2] + 7, st[3] + 1, st[3] + 5])
        q.place(wdma(cfg, 3), [st[5] + 8, st[6] + 1, st[6] + 5, st[7] + 5])
        st = sts[29]
        q.place(wdma(cfg, 4), [st[0] + 5, st[0] + 7, st[1] + 1, st[1] + 3])
        q.place(wdma(cfg, 5), [st[2] + 1, st[2] + 3, st[2] + 5, st[2] + 7])
        q.place(wdma(cfg, 10), [st[3] + 5, st[3] + 7, st[4] + 1, st[4] + 3])
        q.place(wdma(cfg, 6), [st[5] + 8, st[6] + 1, st[6] + 5, st[7] + 5])
    st = sts[28]
    q.g[st[5] + 8].insert(0, "WAITVM w0")
    q.g[sts[29][4]].insert(0, "WAITVM w1")
    for p, r in zip([st[5] + 8, st[6] + 1, st[6] + 3, st[6] + 5, st[6] + 7, st[7] + 1, st[7] + 1, st[7] + 3], wreads(0)): q.put(p, r)
    k = q.g[st[8] - 2].index("s_waitcnt lgkmcnt(0)"); q.g[st[8] - 2][k] = "s_waitcnt lgkmcnt(8)"
    st = sts[29]
    q.put(st[1] + 7, "s_waitcnt lgkmcnt(10)")
    for p, r in zip([st[4] + 1, st[4] + 5, st[5] + 1, st[5] + 5, st[5] + 8, st[6] + 1, st[6] + 3, st[6] + 5], wreads(1)): q.put(p, r)
    k = q.g[st[7]].index("s_waitcnt lgkmcnt(0)"); q.g[st[7]][k] = "s_waitcnt lgkmcnt(4)"
    st = sts[29]
    for p, r in zip([st[7] + k for k in (1, 1, 3, 5, 7, 8, 8)] + [st[8]], [kread(1, 3, 1, kt, ks) for kt in range(2) for ks in range(4)]):
        if p < st[8]: q.put(p, r)
        else: lastk = r
    for x in stamp_l(b, cfg, "t30"): q.put(len(q.m) - 1, "!" + x)
    job = lambda k: (k >> 1, k & 1, k & 3)
    F = []
    for k in range(8):
        u, tb, sl = job(k)
        F.append(q.add(qk(u, tb, sl=sl)))
        if k < 2: F.append(q.add(pv(2 + k, 1)))
        else:
            u, tb, sl = job(k - 2); F.append(q.add(pv(u, tb, sl=sl)))
    for k in (6, 7):
        u, tb, sl = job(k); F.append(q.add(pv(u, tb, sl=sl)))
    F.append(len(q.m))
    sm_half(q, F[0], 3, 1)
    for k in range(8):
        sm_half(q, F[2 * k + 1], k & 3, 0); sm_half(q, F[2 * k + 2], k & 3, 1)
    q.put(F[0] + 1, lastk)
    v30 = [vread(0, 3, 0, dt, e) for dt in range(8) for e in range(2)]
    v31 = [vread(1, 3, 1, dt, e) for dt in range(8) for e in range(2)]
    if not cfg.split15:
        for p, r in zip([F[0] + k for k in (1, 3, 5, 5, 7)] + [F[1] + k for k in (1, 1, 3, 5, 5, 7)] + [F[2] + k for k in (1, 1, 3, 5, 5)], v30): q.put(p, r)
        q.put(F[1] + 8, "s_waitcnt lgkmcnt(10)")
        for p, r in zip([F[4] + k for k in (1, 1, 3, 5, 5, 7)] + [F[5] + k for k in (1, 1, 3, 5, 5, 7, 8, 8)] + [F[6] + k for k in (1, 1)], v31): q.put(p, r)
        q.put(F[4], "s_waitcnt lgkmcnt(0)")
        q.place(wdma(cfg, 11), [F[2] + 7, F[3] + 1, F[3] + 3, F[3] + 5])
        q.place(wdma(cfg, 7), [F[5] + 3, F[5] + 7, F[6] + 3, F[6] + 5])
    else:
        q.put(F[1] + 8, "WAITVM seg15 lgkmcnt(0)"); q.put(F[1] + 8, "s_barrier")
        for p, r in zip([F[2] + k for k in (1, 1, 3, 5, 5, 7)] + [F[3] + k for k in (1, 1, 3, 5, 5, 7, 8, 8)] + [F[4] + k for k in (1, 1)], v30): q.put(p, r)
        for p, r in zip([F[4] + k for k in (3, 5, 5, 7)] + [F[5] + k for k in (1, 1, 3, 5, 5, 7, 8, 8)] + [F[6] + k for k in (1, 1, 3, 3)], v31): q.put(p, r)
        q.put(F[5] - 1, "s_waitcnt lgkmcnt(3)")
        q.place(wdma(cfg, 11), [F[0] + 5, F[0] + 7, F[1] + 1, F[1] + 3])
        q.place(wdma(cfg, 7), [F[2], F[2] + 4, F[3] + 2, F[3] + 6])
    q.put(F[7] - 1, "s_waitcnt lgkmcnt(0)"); q.put(F[7] - 1, "s_barrier")
    q.place(wdma(cfg, 8), [F[7] + 5, F[7] + 7, F[7] + 8, F[8] + 1])
    q.place(wdma(cfg, 9), [F[8] + 7, F[9] + 1, F[9] + 3, F[9] + 5])
    if "nost" in cfg.exp: q.g[F[4]].insert(0, f"s_mov_b32 s{SO+2}, 0")
    def onorm(u):
        o = [f"v_accvgpr_read_b32 v16, a{L_(u)}", "v_cmp_ngt_f32 vcc, s36, v16", "v_rcp_f32 v16, v16", "s_or_b64 s[50:51], s[50:51], vcc", "v_mov_b32 v17, v16"]
        for m in range(4):
            t = 20 + 4 * (m & 1)
            o += scale_pack(cfg, O_(u, 2 * m), t, ("v16", "v[16:17]"), True)
            o += [f"buffer_store_dwordx4 {vr(t,4)}, v15, s[{SO}:{SO+3}], s30 offen offset:{1024*m} {cfg.oflags}".rstrip() + " ;@ost"]
        o += ["s_add_u32 s30, s30, 131072"]
        return o
    for k, x in enumerate([f"s_mov_b32 s36, {f32(cfg.lthr)}", "s_mov_b64 s[50:51], 0", "s_lshl_b32 s30, s3, 19", "s_lshl_b32 s31, s29, 12", "s_add_u32 s30, s30, s31"]):
        q.g[F[4] + 2 + k].insert(0, x)
    for x in stamp_l(b, cfg, "F8"): q.put(F[8] - 1, "!" + x)
    e = q.stream(onorm(0), F[8] + 4, cap=cfg.ncap)
    e = q.stream(onorm(1), max(e, F[12] + 4), cap=cfg.ncap)
    e = q.stream(onorm(2), max(e, F[16] + 4), cap=cfg.ncap + 2)
    q.emit(b)
    stamp(b, cfg, "loopend")
    if "nowo" in cfg.exp: b(f"s_mov_b32 s{SWO+2}, {WOSZ}")
    def park(t): return [f"WAITVM w{t}"] + wreads(t)
    def refill(t): return with_nop(wdma(cfg, t + 10))
    b.ext(park(2) + park(3))
    b.ext(onorm(3))
    stamp(b, cfg, "stored")
    if cfg.force_fb: b("s_mov_b64 s[50:51], -1")
    b("s_cmp_lg_u64 s[50:51], 0")
    b("s_cselect_b32 s52, 1, 0")
    b(f"s_add_u32 s53, s40, {16384*UNIT[2]}")
    b("v_mov_b32 v16, s52")
    b("v_mov_b32 v17, s53")
    b("v_and_b32 v18, 3, v1")
    b("v_lshlrev_b32 v18, 12, v18")
    b(f"v_add_u32 v18, {16384*UNIT[2]}, v18")
    b("s_waitcnt lgkmcnt(0)")
    b("ds_write_b32 v17, v16")
    b.ext(refill(3) + park(4) + park(5))
    b("s_waitcnt lgkmcnt(0)")
    b("s_barrier")
    b("ds_read_b32 v20, v18")
    b.ext(refill(4) + park(6) + park(7))
    b("s_waitcnt lgkmcnt(0)")
    b("v_cmp_ne_u32 vcc, 0, v20")
    b("s_cmp_eq_u32 s35, 0")
    b("s_cselect_b64 s[52:53], vcc, 0")
    b("s_cmp_lg_u64 s[52:53], 0")
    b("s_cbranch_scc1 L_exact")
    if not cfg.sigfirst: b.ext(park(8) + park(9) + park(10) + park(11))
    b("WAITVM ost")
    b("s_barrier")
    b("s_cmp_lg_u32 s3, 0")
    b("s_cbranch_scc1 L_nosig")
    b("s_mov_b64 exec, 1")
    if cfg.sig == "atomic":
        b("s_lshl_b32 s52, s28, 2")
        b("s_lshr_b32 s53, s29, 3")
        b("s_add_u32 s52, s52, s53")
        b("s_lshl_b32 s52, s52, 3")
        b("v_mov_b32 v16, s52")
        b("v_mov_b32 v17, 1")
        b("global_atomic_add v16, v17, s[46:47] sc1 ;@skip")
    else:
        b("s_lshl_b32 s52, s28, 5")
        b("s_add_u32 s52, s52, s29")
        b("v_mov_b32 v16, s52")
        b("v_mov_b32 v17, 1")
        b("global_store_byte v16, v17, s[46:47] sc1 ;@skip")
    b("s_mov_b64 exec, -1")
    b("L_nosig:")
    stamp(b, cfg, "signaled")
    b("s_lshr_b32 s52, s2, 3")
    b("s_cmp_ge_u32 s52, 30")
    b("s_cbranch_scc1 L_fin")
    if cfg.sigfirst:
        b.ext(refill(2) + refill(5) + park(8) + park(9) + refill(6) + park(10) + park(11) + refill(7))
        b("s_waitcnt lgkmcnt(0)")
        for t in range(8, 12): b.ext(refill(t))
    else:
        b("s_waitcnt lgkmcnt(0)")
        b.ext(refill(2))
        for t in range(5, 12): b.ext(refill(t))
    b("s_lshl_b32 s52, s43, 2")
    b("s_add_u32 s52, s52, s3")
    b("s_lshl_b32 s52, s52, 3")
    b("v_mov_b32 v16, s52")
    prev = None
    for t in range(12, 16):
        if cfg.epoll and t == cfg.epoll: b("global_load_dword v17, v16, s[46:47] sc1 ;@ep")
        b.ext(park(t))
        if prev is not None and prev + 10 < cfg.X:
            b("s_waitcnt lgkmcnt(8)")
            b.ext(refill(prev))
        prev = t
    b("s_waitcnt lgkmcnt(0)")
    if prev + 10 < cfg.X: b.ext(refill(prev))
    stamp(b, cfg, "parked")
    b("s_mov_b32 s34, 0x100000")
    if cfg.epoll:
        b("WAITVM ep")
        b("v_readfirstlane_b32 s52, v17")
        b("s_cmp_ge_u32 s52, 8")
        b("s_cbranch_scc1 L_ready")
    b("L_poll:")
    if cfg.sig == "atomic":
        b("global_load_dword v17, v16, s[46:47] sc1")
        b("s_waitcnt vmcnt(0)")
        b("v_readfirstlane_b32 s52, v17")
        b("s_sub_u32 s34, s34, 1")
        b("s_cselect_b32 s52, 8, s52")
        b("s_cmp_lt_u32 s52, 8")
    else:
        b("global_load_dwordx2 v[18:19], v16, s[46:47] sc1")
        b("s_waitcnt vmcnt(0)")
        b("v_and_b32 v17, v18, v19")
        b("s_nop 0")
        b("v_readfirstlane_b32 s52, v17")
        b("s_sub_u32 s34, s34, 1")
        b("s_cselect_b32 s52, 0x01010101, s52")
        b("s_cmp_lg_u32 s52, 0x01010101")
    b("s_cbranch_scc1 L_poll")
    b("L_ready:")
    stamp(b, cfg, "polled")
    worder = [x.split(";@")[1] for x in b.l if ";@w" in x]
    a.l += fix(resolve_waits(b.l))
    c = Asm(); c.stamps = a.stamps
    for t_ in worder: c(f"buffer_dummy ;@{t_}")
    ACC = lambda i, nt: 32 + 16 * i + 4 * nt
    OFB = [112, 132, 152, 172, 192]
    OF = lambda t, i: OFB[t % cfg.DO] + 4 * i
    def oload(t):
        return [f"s_add_u32 s30, s41, {t}", "s_xor_b32 s30, s30, s37", "s_lshl_b32 s30, s30, 10", "s_and_b32 s30, s30, 0x7fff"] + \
            tag([f"buffer_load_dwordx4 {vr(OF(t,i),4)}, v{OAL[i]}, s[{SOR}:{SOR+3}], s30 offen {cfg.orflags}".rstrip() for i in range(5)], f"o{t}")
    for t in range(cfg.DO - 1): c.ext(oload(t))
    c("s_mul_i32 s52, s43, 240")
    c("s_mul_i32 s53, s54, 80")
    c("s_add_u32 s52, s52, s53")
    c("s_mul_i32 s52, s52, 1280")
    c("s_lshl_b32 s53, s55, 7")
    c("s_add_u32 s52, s52, s53")
    c.ext(srd(SOUT, 58, "s52", 79 * 1280 + 128))
    for j in range(1, 4):
        c(f"s_add_u32 s52, s3, {j}")
        c("s_and_b32 s52, s52, 3")
        c("s_mul_i32 s52, s52, 15360")
        c(f"v_add_u32 v{240+j}, s52, v15")
    c("s_mul_i32 s52, s3, 15360")
    c("v_add_u32 v240, s52, v15")
    c("v_mul_u32_u24 v244, 1280, v2")
    c("v_lshl_add_u32 v244, v3, 3, v244")
    nextw = cfg.X
    q = Seq()
    NL = cfg.NL
    for t in range(32 - NL):
        mf = []
        for i in range(5):
            for nt in range(4):
                d = vr(ACC(i, nt), 4)
                mf.append(f"{MF} {d}, {ar(WS(t,nt),4)}, {vr(OF(t,i),4)}, {'0' if t == 0 else d}")
        q.raw([f"WAITVM o{t} lgkmcnt(0)"] + (stamp_l(c, cfg, f"p{t}") if t in (1, 4, 8, 16, 24) else []))
        g = q.add(mf)
        if t + cfg.DO - 1 < 32: q.place(oload(t + cfg.DO - 1), [g + 4, g + 6, g + 9, g + 12, g + 15])
        tr = t + 15
        if t >= 1 and tr < 32:
            q.g[g].insert(0, f"WAITVM w{tr}")
            for k, r in enumerate(wreads(tr)): q.put(g + 1 + k, r)
        if nextw < 32 and nextw - 10 <= t + 14 and (nextw - cfg.X) * cfg.wev <= t:
            q.place(wdma(cfg, nextw), [g + 10, g + 13, g + 16, g + 18])
            nextw += 1
        if t == 20: q.put(g + 19, "s_barrier")
    assert nextw == 32
    q.raw([f"WAITVM o{32-NL} lgkmcnt(0)"])
    wr = lambda i, j: f"ds_write_b128 v{240+j}, {vr(ACC(i,j),4)} offset:{5120*(j-1)+1024*i}"
    for i in range(5):
        mf = []
        for j in (1, 2, 3, 0):
            d = vr(ACC(i, j), 4)
            for t in range(32 - NL, 32):
                mf.append(f"{MF} {d}, {ar(WS(t,j),4)}, {vr(OF(t,i),4)}, {d}")
        g = q.add(mf)
        if i == 0:
            for k in range(1, NL): q.g[g + k - 1].append(f"!WAITVM o{32-NL+k}")
        else:
            for j in range(1, 4): q.put(g + 2 + NL * (j - 1), wr(i - 1, j))
    q.raw(stamp_l(c, cfg, "projdone") + ["s_nop 1", wr(4, 1), wr(4, 2), "s_nop 1", wr(4, 3)])
    q.emit(c)
    c("s_waitcnt lgkmcnt(0)")
    c("s_barrier")
    for i in range(5):
        for j in range(3):
            c(f"ds_read_b128 {vr(112+12*i+4*j,4)}, v240 offset:{5120*j+1024*i}")
    c("s_lshl_b32 s52, s3, 5")
    for i in range(5):
        c(f"s_waitcnt lgkmcnt({3*(4-i)})")
        bb = 112 + 12 * i; ac = ACC(i, 0)
        for r in range(0, 4, 2):
            c(f"v_pk_add_f32 {vr(ac+r,2)}, {vr(ac+r,2)}, {vr(bb+r,2)}")
            c(f"v_pk_add_f32 {vr(bb+4+r,2)}, {vr(bb+4+r,2)}, {vr(bb+8+r,2)}")
        for r in range(0, 4, 2):
            c(f"v_pk_add_f32 {vr(ac+r,2)}, {vr(ac+r,2)}, {vr(bb+4+r,2)}")
        c(f"v_cvt_pk_bf16_f32 v{ac}, v{ac}, v{ac+1}")
        c(f"v_cvt_pk_bf16_f32 v{ac+1}, v{ac+2}, v{ac+3}")
        c(f"buffer_store_dwordx2 {vr(ac,2)}, v244, s[{SOUT}:{SOUT+3}], s52 offen {cfg.outflags}".rstrip())
        c("s_add_u32 s52, s52, %d" % (16 * 1280))
    a.l += resolve_waits(c.l)
    a("L_fin:")
    if cfg.stamps or cfg.calib:
        a("s_waitcnt vmcnt(0)")
        stamp(a, cfg, "end")
    if cfg.calib:
        a("s_waitcnt lgkmcnt(0)")
        a("s_or_b32 s52, s2, s3")
        a("s_cmp_lg_u32 s52, 0")
        a("s_cbranch_scc1 L_end")
        a(f"s_sub_u32 s52, s{62+4*cfg.cal_j}, s{62+4*cfg.cal_i}")
        a("s_lshl_b32 s52, s52, 2")
        a("s_add_u32 s52, s52, s62")
        a("L_spin:")
        a("s_memrealtime s[56:57]")
        a("s_waitcnt lgkmcnt(0)")
        a("s_sub_u32 s56, s56, s52")
        a(f"s_cmp_lt_i32 s56, {cfg.calib*100}")
        a("s_cbranch_scc1 L_spin")
    if cfg.stamps:
        stamps_out(a, cfg, 64 << 20)
    a("L_end:")
    a("s_endpgm")
    a("L_exact:")
    ex0 = len(a.l)
    a("s_mov_b32 s35, 1")
    a(f"s_mov_b32 s{SK+2}, {KVBYTES}")
    a(f"s_mov_b32 s{SV+2}, {KVBYTES}")
    a("s_mov_b32 s33, s40")
    a("s_waitcnt vmcnt(0) lgkmcnt(0)")
    a("L_exact_loop:")
    a("s_barrier")
    a.ext(with_nop(kdma(cfg, 0)))
    a(ADV)
    a("s_waitcnt vmcnt(0)")
    a("s_barrier")
    for th in range(2):
        for kt in range(2):
            for ks in range(4): a(kread(0, 0, th, kt, ks))
        a("s_waitcnt lgkmcnt(0)")
        for u in range(4): a.ext(qk(u, 0, True))
        a("s_nop 7")
        for u in range(4):
            s0 = S_(u, 0)
            for r in range(0, 8, 2):
                a(f"v_max3_f32 v{MTR+u}, v{MTR+u}, v{s0+r}, v{s0+r+1}")
    a(f"s_cmp_lt_u32 s33, {KVBYTES}")
    a("s_cbranch_scc1 L_exact_loop")
    a("s_barrier")
    a("s_mov_b32 s33, s40")
    a.ext([x.split(" ;@")[0] for x in with_nop(sum([piece(cfg, gp, False) for gp in range(NP)], []))])
    a("s_waitcnt vmcnt(0)")
    a("s_barrier")
    a.ext(k0r + v0r)
    a("s_waitcnt lgkmcnt(0)")
    a.ext(k1r)
    for u in range(4): a.ext(qk(u, 0, True))
    a.ext(ones)
    a("s_nop 7")
    a.ext(fix(merge(*[fmax(u) for u in range(4)]) + merge(*[fexp(u, 8 if u < 3 else 4) for u in range(4)])))
    a("s_nop 1")
    a.ext(pv(0, 0, True) + pv(1, 0, True))
    a("s_waitcnt lgkmcnt(0)")
    q = Seq(); attn_tile(cfg, q, 1, "first")
    x1 = Asm()
    for t_ in ["seg1"]: x1("buffer_dummy ;@seg1")
    q.emit(x1)
    a.l += resolve_waits(x1.l)
    a("s_mov_b32 s34, 3")
    a("s_branch L_loop")
    bad = check(a.l[:ex0], "main") + check(body + body, "attn-loop") + check(a.l[ex0:] + body, "exact")
    assert bad == 0
    return a

def build(cfg):
    k = NAME + "_kernel"
    out = []
    out.append("; @launch grid=(256,1,1) block=(256,1,1) lds=163840")
    out.append('.amdgcn_target "amdgcn-amd-amdhsa--gfx950"')
    out.append(".text")
    out.append(f".globl {k}\n.p2align 8\n.type {k},@function\n{k}:")
    out.append(gen(cfg).text())
    out.append('.section .rodata,"a"')
    out.append(f""".p2align 6
.amdhsa_kernel {k}
  .amdhsa_next_free_vgpr 512
  .amdhsa_next_free_sgpr 102
  .amdhsa_accum_offset 256
  .amdhsa_group_segment_fixed_size 0
  .amdhsa_kernarg_size 64
  .amdhsa_user_sgpr_count 2
  .amdhsa_user_sgpr_kernarg_segment_ptr 1
  .amdhsa_system_sgpr_workgroup_id_x 1
.end_amdhsa_kernel
""")
    return "\n".join(out)

if __name__ == "__main__":
    cfg = Cfg()
    path = sys.argv[1]
    for kv in sys.argv[2:]:
        k, v = kv.split("=", 1)
        old = getattr(cfg, k)
        setattr(cfg, k, type(old)(eval(v)) if isinstance(old, (bool, int, float, tuple)) else v)
    open(path, "w").write(build(cfg))
```

```python
import sys, math, struct
from asmlib import *

NAME = "standalone__mha_block_cached__near_ridge"
def f32(x): return struct.unpack("<I", struct.pack("<f", x))[0]
MF = "v_mfma_f32_16x16x32_bf16"

class Cfg:
    kvflags = "nt"
    oflags = "sc1"
    orflags = "sc1"
    xflags = ""
    bflags = ""
    stamps = False
    only = ""
    qspread = 4
    kvpace = 13.5
    lthr = 2.0 ** 40
    force_fb = False
    rot = 5
    rA = 0
    DO = 5
    NL = 3
    tlb = 0
    fast0 = 1
    c1first = 0
    pre5 = 1
    early = 1
    cwarm = 1
    wl2 = 0
    wl2f = ""
    lag = 4
    split0 = 0
    wsched = 2
    b1 = 24
    bsp = 50
    split15 = 1
    sigfirst = 1
    outflags = ""
    wpull = 0
    epoll = 12
    touch = ()
    tpos = 52
    tl = 16
    tflags = ""
    tkv = "v"
    dmode = "even"
    xs = (0, 0, 0, 0, 0)
    k0at = 5
    X = 26
    wev = 1.0
    ncap = 3
    sig = "line"
    pkmul = True
    qord = 0
    exp = ""
    calib = 0
    cal_i = 0
    cal_j = 0

O_ = lambda u, dt: 32 + 32 * u + 4 * dt
S_ = lambda u, kt: 160 + 8 * u + 4 * kt
P_ = lambda u: 192 + 4 * u
NM = lambda u: 208 + 4 * u
KRA, VRA, KDA, VDA, MTR = 224, 228, 236, 240, 242
WD = 246
XDA, WDA, XRA, WRA = 192, 200, 204, 210
Q_ = lambda u, m: 16 * u + 4 * m
KF = lambda b, kt, ks: 64 + 32 * b + 16 * kt + 4 * ks
VF = lambda b, dt: 128 + 32 * b + 4 * dt
L_ = lambda u: 192 + 4 * u
ONES = 208
WF = lambda b, s, dt: ar([160, 0, 96][b] + 32 * s + 4 * dt, 4)
WF2 = lambda b, s, dt, e: ar([160, 0, 96][b] + 32 * s + 4 * dt + 2 * e, 2)
XF = lambda b, s, u: vr([224, 64, 160][b] + 16 * s + 4 * u, 4, "aav"[b])
SX, SW, SK, SV, SO = 8, 12, 16, 20, 24
SWO, SOR, SOUT = 8, 12, 4
KVBYTES = 262144
XBASE = [(131072, 147456), (65536, 16384), (32768, 49152)]
WWIN = 81920
WOFF = [32768, 0, 16384]
UNIT = [0, 4, 8, 9, 1, 5, 2, 6, 3, 7]
UNIT2 = [0, 4, 9, 5, 6, 8, 1, 2, 3, 7]
WRL = [[28, 29, 30, 31], [250, 251, 252, 253], [7, 8, 9, 10]]
OAL = [4, 5, 13, 14, 254]
WBLK = [224, 240, 64, 80, 96, 112, 128, 144, 160, 176, 208, 192, 0, 16, 32, 48]
WS = lambda t, nt: WBLK[t % 16] + 4 * nt
def wreads(t):
    u_ = UNIT[t % 10]
    return [f"ds_read_b64_tr_b16 {ar(WS(t,nt)+2*e,2)}, v{WRL[u_>>2][nt]} offset:{16384*(u_&3)+2048*e}" for nt in range(4) for e in range(2)]
FOFF = 24 << 20
WOSZ = 1024 * 1280 - 9 * 128
ORSZ = 4 * 131072 + 32768

class Seq:
    def __init__(self): self.m = []; self.g = []
    def add(self, mfmas):
        n = len(self.m); self.m += mfmas; self.g += [[] for _ in mfmas]; return n
    def raw(self, lines):
        self.m.append(None); self.g.append(["!" + x for x in lines]); return len(self.m) - 1
    def put(self, i, x): self.g[i].append(x)
    def slots(self, i):
        n = 0
        for x in self.g[i]:
            k = kind(x.lstrip("!"))
            if k in ("ds", "vm", "valu"): n += 2 if x.lstrip("!").startswith(TRANS) else 1
        return n
    def place(self, lst, vmpos):
        vmpos = list(vmpos); pend = []; last = None
        for x in lst:
            if kind(x) == "vm":
                p = vmpos.pop(0)
                assert not pend or last is None or p - len(pend) > last, (lst, p, last)
                for k, s in enumerate(reversed(pend)): self.g[p - 1 - k].insert(0, s)
                pend = []; self.g[p].append(x); last = p
            else: pend.append(x)
        for k, s in enumerate(pend): self.g[last + 1 + k].insert(0, s)
    def stream(self, lst, start, cap=2, end=None):
        i = start
        for x in lst:
            c = 2 if x.startswith(TRANS) else (0 if kind(x) == "s" else 1)
            while self.slots(i) + c > cap and (end is None or i < end) and i + 1 < len(self.m): i += 1
            self.g[i].append("!" + x)
        return i
    def emit(self, a): emit_gaps(a, self.m, self.g)

def stamp_l(a, cfg, name):
    if (cfg.stamps or cfg.calib) and (cfg.only == "" or name in cfg.only.split(",") or name in ("start", "end")):
        i = len(a.stamps); a.stamps.append(name)
        assert i < 10
        return [f"s_memtime s[{60+4*i}:{61+4*i}]", f"s_memrealtime s[{62+4*i}:{63+4*i}]"]
    return []
def stamp(a, cfg, name): a.ext(stamp_l(a, cfg, name))

def stamps_out(a, cfg, wsoff):
    n = len(a.stamps)
    a.l.insert(0, "; stamps " + str(wsoff >> 20) + " " + " ".join(a.stamps))
    a("s_waitcnt lgkmcnt(0)")
    a(f"s_add_u32 s48, s48, {wsoff}")
    a("s_addc_u32 s49, s49, 0")
    a("s_mov_b32 s50, 0x100000")
    a("s_mov_b32 s51, 0x20000")
    a("s_lshl_b32 s52, s2, 2")
    a("s_add_u32 s52, s52, s3")
    a("s_lshl_b32 s52, s52, 7")
    a("v_mov_b32 v6, s52")
    a("v_cmp_eq_u32 vcc, 0, v1")
    a("s_and_saveexec_b64 s[54:55], vcc")
    for i in range(n):
        a(f"v_mov_b32 v4, s{60+4*i}")
        a(f"v_mov_b32 v5, s{62+4*i}")
        a(f"buffer_store_dwordx2 v[4:5], v6, s[48:51], 0 offen offset:{8*i}")
        a("s_nop 1")
    a("s_getreg_b32 s53, hwreg(HW_REG_XCC_ID)")
    a("v_mov_b32 v4, s53")
    a("buffer_store_dword v4, v6, s[48:51], 0 offen offset:120")
    a("v_mov_b32 v4, 0x5157")
    a(f"v_mov_b32 v5, {n}")
    a("buffer_store_dwordx2 v[4:5], v6, s[48:51], 0 offen offset:112")
    a("s_mov_b64 exec, s[54:55]")

def srd(s, plo, off_s, size):
    return [f"s_add_u32 s{s}, s{plo}, {off_s}", f"s_addc_u32 s{s+1}, s{plo+1}, 0", f"s_mov_b32 s{s+2}, {size}", f"s_mov_b32 s{s+3}, 0x20000"]
def dma(vaddr, sdesc, soff, imm, flags=""):
    o = f" offset:{imm}" if imm else ""
    f = f" {flags}" if flags else ""
    return f"buffer_load_dwordx4 v{vaddr}, s[{sdesc}:{sdesc+3}], {soff} offen{o}{f} lds"
def tag(lst, t):
    return [x + f" ;@{t}" if kind(x) == "vm" else x for x in lst]
def with_nop(lst):
    o = []
    for x in lst:
        o.append(x)
        if " m0," in x: o.append("s_nop 0")
    return o

def resolve_waits(lines):
    out = []; seq = []
    for x in lines:
        if x.startswith("WAITVM"):
            p = x.split(None, 2)
            idx = max(i for i, t in enumerate(seq) if t == p[1])
            n = min(len(seq) - 1 - idx, 63)
            out.append(f"s_waitcnt vmcnt({n})" + (" " + p[2] if len(p) > 2 else ""))
            continue
        if not (x.endswith(":") or x.startswith(".") or x.startswith(";")) and kind(x) == "vm" and not x.endswith(";@skip"):
            seq.append(x.split(";@")[1] if ";@" in x else "")
        if not x.startswith("buffer_dummy"): out.append(x.split(" ;@")[0])
    return out

def kdma(cfg, slot, so="s33"):
    return [f"s_add_u32 m0, s40, {16384*slot}"] + [dma(KDA + pp, SK, so, 1024 * pp, cfg.kvflags) for pp in range(4)]
def vdma(cfg, slot, so="s33"):
    return [f"s_add_u32 m0, s40, {65536+16384*slot}"] + [dma(VDA + (pp & 1), SV, so, 1024 * pp, cfg.kvflags) for pp in range(4)]
ADV = "s_add_u32 s33, s33, 16384"
def piece(cfg, gp, setm0, guard=False):
    sg, kv, pp = gp // 8, (gp % 8) // 4, gp % 4
    grp = (vdma if kv else kdma)(cfg, sg & 3)
    o = ([grp[0]] if pp == 0 or setm0 else []) + tag([grp[1 + pp]], f"seg{sg}" + ("k" if kv == 0 else ""))
    if gp % 8 == 7:
        o += [ADV]
        if guard: o += [f"s_cmp_lt_u32 s33, {KVBYTES}", f"s_cselect_b32 s{SK+2}, {KVBYTES}, 0"]
    return o
def wdma(cfg, t):
    return [f"s_add_u32 s42, s41, {t}", "s_bfe_u32 s42, s42, 0x50000", "s_xor_b32 s42, s42, s37", "s_mul_i32 s42, s42, 40960", f"s_add_u32 m0, s40, {16384*UNIT[t%10]}"] + \
        tag([dma(WD + pp, SWO, "s42", 1024 * pp, cfg.bflags) for pp in range(4)], f"w{t}")
def kread(buf, slot, th, kt, ks):
    return f"ds_read_b128 {ar(KF(buf,kt,ks),4)}, v{KRA+ks} offset:{16384*slot+8192*th+4096*kt}"
def vread(buf, slot, th, dt, e):
    return f"ds_read_b64_tr_b16 {ar(VF(buf,dt)+2*e,2)}, v{VRA+dt} offset:{16384*slot+8192*th+4096*e}"

def qk(u, kb, czero=False, sl=None):
    m = []
    for kt in range(2):
        d = vr(S_(u if sl is None else sl, kt), 4)
        for ks in range(4):
            c = ("0" if czero else vr(NM(u), 4)) if ks == 0 else d
            m.append(f"{MF} {d}, {ar(KF(kb,kt,ks),4)}, {ar(Q_(u,ks),4)}, {c}")
    return m
def pv(u, vb, czero=False, sl=None):
    m = []
    p = vr(P_(u if sl is None else sl), 4)
    for dt in range(8):
        d = vr(O_(u, dt), 4)
        m.append(f"{MF} {d}, {ar(VF(vb,dt),4)}, {p}, {'0' if czero else d}")
    d = ar(L_(u), 4)
    m.append(f"{MF} {d}, {ar(ONES,4)}, {p}, {'0' if czero else d}")
    return m
def sm_half(q, g0, u, kt):
    s = S_(u, kt)
    for r in range(4):
        q.put(g0 + 2 * r, f"v_exp_f32 v{s+r}, v{s+r}")
        if r & 1: q.put(g0 + 2 * r + 1, f"v_cvt_pk_bf16_f32 v{P_(u)+2*kt+r//2}, v{s+r-1}, v{s+r}")

def attn_tile(cfg, q, j, mode="loop"):
    kb = vb = j & 1
    slot, th = (j >> 1) & 3, j & 1
    nslot, nth = ((j + 1) >> 1) & 3, (j + 1) & 1
    z = mode == "first"
    groups = [qk(0, kb), pv(2, vb ^ 1, z), qk(1, kb), pv(3, vb ^ 1, z), qk(2, kb), pv(0, vb), qk(3, kb), pv(1, vb)]
    st = [q.add(g) for g in groups]; st.append(len(q.m))
    sm_half(q, st[0], 3, 1)
    for u in range(3):
        sm_half(q, st[2 * u + 1], u, 0)
        sm_half(q, st[2 * u + 2], u, 1)
    sm_half(q, st[7], 3, 0)
    vr_ = [vread(vb, slot, th, dt, e) for dt in range(8) for e in range(2)]
    pos = [st[0] + k for k in (1, 3, 5, 5, 7)] + [st[1] + k for k in (1, 1, 3, 5, 5, 7, 8)] + [st[2] + k for k in (1, 3, 5, 5)]
    for p, r in zip(pos, vr_): q.put(p, r)
    mid = st[4] - 1
    if j & 1:
        if mode == "loop": q.put(mid, f"s_waitcnt vmcnt({16-cfg.lag}) lgkmcnt(0)")
        else: q.put(mid, f"WAITVM seg{(j+1)//2}{'k' if j == 29 and cfg.split15 else ''} lgkmcnt(0)")
        q.put(mid, "s_barrier")
    else:
        q.put(mid, "s_waitcnt lgkmcnt(0)")
    kr_ = [kread(kb ^ 1, nslot, nth, kt, ks) for kt in range(2) for ks in range(4)]
    pos = [st[4] + k for k in (1, 3, 5, 7)] + [st[5] + k for k in (1, 3, 5, 7)]
    for p, r in zip(pos, kr_): q.put(p, r)
    q.put(st[8] - 2 if j != 29 else st[7], "s_waitcnt lgkmcnt(0)")
    dpos = [st[0] + 1, st[2] + 1, st[4] + 1, st[6] + 1]
    for k in range(4):
        gp = 4 * j + 26 + k - cfg.lag
        if mode == "first" and k < 2: continue
        if mode == "final":
            if gp < 128: q.place(piece(cfg, gp, True), [[st[0] + 1, st[0] + 5, st[1] + 1, st[1] + 3][k] if cfg.wsched != 1 else dpos[k]])
            continue
        q.place(piece(cfg, gp, False, cfg.lag < 2), [dpos[k]])
    return st

def rowmax_l(t, t2):
    return [f"v_mov_b32 v{t2}, v{t}", "s_nop 1", f"v_permlane32_swap_b32 v{t}, v{t2}", f"v_max_f32 v{t}, v{t}, v{t2}",
            f"v_mov_b32 v{t2}, v{t}", "s_nop 1", f"v_permlane16_swap_b32 v{t}, v{t2}", f"v_max_f32 v{t}, v{t}, v{t2}"]

def scale_pack(cfg, b0, t, mul, pk):
    o = []
    if pk: o += [f"v_pk_mul_f32 {vr(b0+2*i,2)}, {vr(b0+2*i,2)}, {mul[1]}" for i in range(4)]
    else: o += [f"v_mul_f32 v{b0+i}, {mul[0]}, v{b0+i}" for i in range(8)]
    o += [f"v_cvt_pk_bf16_f32 v{t+i}, v{b0+2*i}, v{b0+2*i+1}" for i in range(4)]
    return o

def gen(cfg):
    if cfg.wsched == 2: UNIT[:] = UNIT2
    a = Asm()
    a("s_cmp_ge_u32 s2, 256")
    a("s_cbranch_scc1 L_end")
    stamp(a, cfg, "start")
    a("s_load_dwordx4 s[4:7], s[0:1], 0")
    a("s_load_dwordx4 s[44:47], s[0:1], 16")
    a("v_lshrrev_b32 v2, 6, v0")
    a("v_and_b32 v1, 63, v0")
    a("v_readfirstlane_b32 s3, v2")
    a("s_and_b32 s50, s2, 7")
    a("s_lshr_b32 s51, s2, 3")
    a("s_and_b32 s52, s51, 3")
    a("s_lshr_b32 s53, s51, 2")
    a("s_bfe_u32 s28, s2, 0x10000")
    a("s_lshl2_add_u32 s28, s28, s52")
    a("s_lshr_b32 s54, s50, 1")
    a("s_lshl3_add_u32 s29, s54, s53")
    a("s_add_u32 s52, s52, s53")
    a("s_and_b32 s52, s52, 1")
    a("s_mul_i32 s32, s52, 5")
    a("s_add_u32 s54, s54, s50")
    a("s_and_b32 s54, s54, 1")
    a("s_lshl1_add_u32 s32, s54, s32")
    a("s_lshl_b32 s30, s32, 7")
    a("s_lshl_b32 s31, s32, 19")
    a("s_lshl_b32 s40, s3, 12")
    a("s_lshl1_add_u32 s36, s40, %d" % XBASE[0][0])
    a("s_add_u32 s39, s40, %d" % WWIN)
    a("v_lshrrev_b32 v3, 4, v1")
    a("v_lshrrev_b32 v4, 3, v1")
    a("v_and_b32 v5, 7, v1")
    a("v_and_b32 v2, 15, v1")
    a("s_mul_i32 s52, s3, %d" % (64 * 1280))
    a("v_mul_u32_u24 v8, 1280, v4")
    a("v_xor_b32 v9, v3, v5")
    a("v_lshlrev_b32 v9, 4, v9")
    a(f"v_add3_u32 v{XDA}, v9, s52, v8")
    a(f"v_xor_b32 v17, 64, v{XDA}")
    for pp in range(1, 8):
        a(f"v_add_u32 v{XDA+pp}, {10240*pp-1024*(pp&3)}, v{17 if pp & 1 else XDA}")
    a("s_lshl_b32 s52, s3, 17")
    a("v_lshlrev_b32 v8, 13, v3")
    a("v_and_b32 v9, 1, v3")
    a("v_lshrrev_b32 v10, 1, v3")
    a("v_lshl_or_b32 v9, v10, 2, v9")
    a("v_xor_b32 v9, v9, v2")
    a("v_lshlrev_b32 v9, 4, v9")
    a(f"v_add3_u32 v{WDA}, v9, s52, v8")
    a(f"v_xor_b32 v17, 128, v{WDA}")
    for pp in range(1, 4):
        a(f"v_add_u32 v{WDA+pp}, {32768*pp-1024*pp}, v{17 if pp >> 1 else WDA}")
    a("s_mul_i32 s52, s28, 307200")
    a("s_lshl_b32 s53, s29, 8")
    a.ext(srd(SX, 4, "s52", 307200)[2:] + srd(SW, 46, "s53", 640 * 8192 - 31 * 256)[2:])
    a("s_waitcnt lgkmcnt(0)")
    stamp(a, cfg, "kernarg")
    a.ext(srd(SX, 4, "s52", 307200)[:2] + srd(SW, 46, "s53", 0)[:2])

    def qstage(c):
        bf = c % 3
        o = [f"s_mov_b32 m0, s{36+bf}"]
        o += [dma(XDA + pp, SX, "s30", 1024 * pp, cfg.xflags) for pp in range(4)]
        o += [f"s_add_u32 m0, s{36+bf}, 4096"]
        o += [dma(XDA + 4 + pp, SX, "s30", 1024 * pp, cfg.xflags) for pp in range(4)]
        o += [f"s_add_u32 m0, s39, {WOFF[bf]}"]
        o += [dma(WDA + pp, SW, "s31", 1024 * pp, cfg.xflags) for pp in range(4)]
        o += ["s_add_u32 s32, s32, 1", "s_cmp_eq_u32 s32, 10", "s_cselect_b32 s32, 0, s32", "s_lshl_b32 s30, s32, 7", "s_lshl_b32 s31, s32, 19"]
        return tag(o, f"c{c}")
    a.ext(with_nop(qstage(0)))
    a("s_load_dwordx2 s[48:49], s[0:1], 56")
    if cfg.cwarm:
        a("s_getpc_b64 s[54:55]")
        a("L_cbase:")
        a("s_lshl2_add_u32 s52, s51, s3")
        a("s_mul_i32 s52, s52, 3")
        a("v_min_u32 v18, 2, v1")
        a("v_add_u32 v18, s52, v18")
        a("v_lshlrev_b32 v18, 7, v18")
        a("v_min_u32 v18, L_exact-L_cbase, v18")
        a("v_mov_b32 v19, s55")
        a("v_add_co_u32 v18, vcc, s54, v18")
        a("v_addc_co_u32 v19, vcc, 0, v19, vcc")
        a("global_load_dword v20, v[18:19], off")
    a("s_mov_b32 s33, s40")
    a("s_and_b32 s52, s3, 1")
    a("s_lshl_b32 s52, s52, 13")
    a("s_cmp_ge_u32 s3, 2")
    for bf in range(1, 3):
        a(f"s_mov_b32 s53, {XBASE[bf][0]}")
        a(f"s_cselect_b32 s{36+bf}, {XBASE[bf][1]}, s53")
    for bf in range(1, 3):
        a(f"s_add_u32 s{36+bf}, s{36+bf}, s52")
    a("s_mov_b32 s35, 0")
    a("v_bfe_u32 v6, v1, 2, 2")
    a("v_and_b32 v7, 3, v1")
    if cfg.c1first: a.ext(with_nop(qstage(1)))
    a("s_waitcnt lgkmcnt(0)")
    if cfg.sig == "line":
        a("s_lshl_b32 s52, s28, 5")
        a("s_add_u32 s52, s52, s29")
        a("s_lshl_b32 s52, s52, 7")
        a(f"s_add_u32 s52, s52, {FOFF}")
        a("v_mov_b32 v18, s52")
        a("v_mov_b32 v19, 0")
        a("s_mov_b64 exec, 1")
        a("global_store_dword v18, v19, s[48:49] sc1")
        a("s_mov_b64 exec, -1")
        a("v_and_b32 v0, 31, v1")
        a("v_lshlrev_b32 v0, 3, v0")
    a("s_load_dwordx4 s[56:59], s[0:1], 32")
    a("s_lshl_b32 s52, s28, 5")
    a("s_add_u32 s52, s52, s29")
    a("s_lshl_b32 s52, s52, 18")
    a.ext(srd(SK, 6, "s52", KVBYTES))
    a.ext(srd(SV, 44, "s52", KVBYTES))
    a("s_mul_i32 s52, s28, %d" % (15 * 131072))
    a.ext(srd(SO, 48, "s52", 15 * 131072))
    a("s_load_dwordx2 s[46:47], s[0:1], 48")
    a("v_lshlrev_b32 v10, 8, v3")
    for pp in range(4):
        a(f"v_add_u32 v9, {4*pp}, v3")
        a("v_xor_b32 v9, v9, v2")
        a(f"v_lshl_add_u32 v{KDA+pp}, v9, 4, v10")
    for pp in range(2):
        a(f"v_add_u32 v9, {4*pp}, v3")
        a("v_lshlrev_b32 v9, 1, v9")
        a("v_xor_b32 v9, v9, v2")
        a(f"v_lshl_add_u32 v{VDA+pp}, v9, 4, v10")
    a("v_lshrrev_b32 v9, 1, v2")
    for s in range(2):
        a(f"v_or_b32 v8, {4*s}, v3")
        a("v_xor_b32 v8, v8, v9")
        a("v_lshlrev_b32 v8, 4, v8")
        a("v_lshl_add_u32 v8, v2, 7, v8")
        for bf in range(3):
            a(f"v_add_u32 v{XRA+2*bf+s}, s{36+bf}, v8")
    a("v_lshrrev_b32 v11, 1, v7")
    a("v_and_b32 v12, 1, v7")
    a("v_lshlrev_b32 v12, 3, v12")
    a("v_and_b32 v9, 1, v6")
    a("v_lshrrev_b32 v10, 1, v6")
    a("v_lshl_or_b32 v9, v10, 2, v9")
    a("v_and_b32 v10, 1, v3")
    a("v_lshl_or_b32 v9, v10, 3, v9")
    a("v_lshl_or_b32 v9, v11, 1, v9")
    a("v_lshl_add_u32 v13, v3, 3, v6")
    a("v_lshl_add_u32 v13, v13, 8, v12")
    a(f"v_add_u32 v13, {WWIN}, v13")
    for dt in range(8):
        a(f"v_xor_b32 v8, {4*(dt>>1)+(dt&1)}, v9")
        a(f"v_lshl_add_u32 v{WRA+dt}, v8, 4, v13")
    a("v_lshl_or_b32 v9, v10, 2, v6")
    a("v_lshl_or_b32 v9, v9, 1, v11")
    a("v_lshl_add_u32 v14, v3, 2, v6")
    a("v_lshl_add_u32 v14, v14, 8, v12")
    a("v_add_u32 v14, 65536, v14")
    for dt in range(8):
        a(f"v_xor_b32 v8, {2*dt}, v9")
        a(f"v_lshl_add_u32 v{VRA+dt}, v8, 4, v14")
    for ks in range(4):
        a(f"v_or_b32 v8, {4*ks}, v3")
        a("v_xor_b32 v8, v8, v2")
        a("v_lshlrev_b32 v8, 4, v8")
        a(f"v_lshl_add_u32 v{KRA+ks}, v2, 8, v8")
    for i in range(4):
        a(f"v_mov_b32 v{MTR+i}, 0xff800000")
    a("v_lshlrev_b32 v15, 4, v1")
    a(f"v_and_b32 v8, {cfg.tl-1}, v1")
    a(f"v_lshrrev_b32 v9, {int(math.log2(cfg.tl))}, v1")
    a("v_lshlrev_b32 v9, 14, v9")
    a("v_lshl_add_u32 v219, v8, 7, v9")
    a("v_lshlrev_b32 v9, 1, v3")
    a("v_xor_b32 v9, v9, v5")
    a("v_lshlrev_b32 v9, 4, v9")
    a("v_mul_u32_u24 v8, 1280, v4")
    a("v_add_u32 v8, v8, v9")
    for pp in range(4):
        a(f"v_add_u32 v{WD+pp}, {pp*9216}, v8")
    a("v_lshl_add_u32 v14, v3, 2, v6")
    a("v_bfe_u32 v13, v14, 1, 2")
    a("v_lshl_or_b32 v13, v13, 1, v11")
    a("v_lshl_add_u32 v14, v14, 7, v12")
    a("v_add_u32 v14, s40, v14")
    for nt in range(4):
        a(f"s_add_u32 s53, s3, {nt}")
        a("s_and_b32 s53, s53, 3")
        a("s_lshl_b32 s53, s53, 1")
        a("v_xor_b32 v16, s53, v13")
        a(f"v_lshl_add_u32 v{WRL[0][nt]}, v16, 4, v14")
        a(f"v_add_u32 v{WRL[1][nt]}, 65536, v{WRL[0][nt]}")
        a(f"v_add_u32 v{WRL[2][nt]}, 131072, v{WRL[0][nt]}")
    for i in range(5): a(f"v_add_u32 v{OAL[i]}, {131072*i}, v15")
    a("s_min_u32 s51, s51, 29")
    a("s_cmp_ge_u32 s51, 15")
    a("s_cselect_b32 s52, 1, 0")
    a("s_cselect_b32 s53, 15, 0")
    a("s_sub_u32 s53, s51, s53")
    a("s_and_b32 s43, s50, 6")
    a("s_add_u32 s43, s43, s52")
    a("s_mul_i32 s54, s53, 52")
    a("s_lshr_b32 s54, s54, 8")
    a("s_mul_i32 s41, s54, 5")
    a("s_sub_u32 s53, s53, s41")
    a("s_lshl_b32 s34, s53, 2")
    a("s_and_b32 s55, s50, 1")
    a("s_mul_i32 s55, s55, 5")
    a("s_add_u32 s55, s55, s53")
    a("s_mul_i32 s52, s52, 15")
    a("s_add_u32 s41, s41, s52")
    if cfg.rA:
        a(f"s_mul_i32 s53, s53, {cfg.rA}")
        a("s_add_u32 s41, s41, s53")
    a("s_and_b32 s41, s41, 31")
    sc = f32(math.log2(math.e) / math.sqrt(128.0))
    if cfg.wpull:
        a("s_mul_i32 s52, s2, 160")
        a(f"s_mul_i32 s53, s3, {14 if cfg.wpull == 1 else 40}")
        a("s_add_u32 s52, s52, s53")
        a("v_add_u32 v218, s52, v1")
        a("v_lshlrev_b32 v218, 7, v218")
        a("v_mov_b32 v16, 0x7fffff80")
        a(f"v_cmp_gt_u32 vcc, {14 if cfg.wpull == 1 else 40}, v1")
        a("v_cndmask_b32 v255, v16, v218, vcc")
    if cfg.wl2:
        a("s_lshr_b32 s52, s2, 3")
        a("s_lshl_b32 s52, s52, 2")
        a("s_add_u32 s52, s52, s3")
        a("s_mul_i32 s52, s52, %d" % (32 * 1280))
        a("s_and_b32 s53, s50, 1")
        a("s_mul_i32 s53, s53, 640")
        a("s_add_u32 s52, s52, s53")
        a("v_mul_u32_u24 v16, 52, v1")
        a("v_lshrrev_b32 v16, 8, v16")
        a("v_mul_u32_u24 v17, 5, v16")
        a("v_sub_u32 v17, v1, v17")
        a("v_mul_u32_u24 v16, 1280, v16")
        a("v_lshl_add_u32 v16, v17, 7, v16")
        a("v_add_u32 v16, s52, v16")
        a("v_mov_b32 v17, 0x7fffff80")
        a("v_cmp_gt_u32 vcc, 15, v1")
        a("v_cndmask_b32 v255, v17, v16, vcc")
    a(f"s_mov_b32 s44, {sc}")
    a(f"s_mov_b32 s45, {sc}")
    if not cfg.c1first: a.ext(with_nop(qstage(1)))
    stamp(a, cfg, "issued")

    def qreads(c):
        bf = rb = c % 3
        o = []
        for s in range(2):
            o.append(f"ds_read_b128 {XF(rb,s,0)}, v{XRA+2*bf+s}")
        for dt in range(8):
            for s in range(2):
                for e in range(2):
                    o.append(f"ds_read_b64_tr_b16 {WF2(rb,s,dt,e)}, v{WRA+dt} offset:{WOFF[bf]+8192*s+1024*e}")
        for u in range(1, 4):
            for s in range(2):
                o.append(f"ds_read_b128 {XF(rb,s,u)}, v{XRA+2*bf+s} offset:{2048*u}")
        return o
    a("WAITVM c0 lgkmcnt(0)")
    a("s_barrier")
    stamp(a, cfg, "landed")
    r0 = qreads(0)
    if cfg.fast0: a.ext(r0[:14])
    else:
        a.ext(r0)
        a.ext(with_nop(qstage(2)))
    wp = ["s_mov_b32 s4, s56", "s_mov_b32 s5, s57", f"s_mov_b32 s6, {4096*1280}", "s_mov_b32 s7, 0x20000", "buffer_load_dword v218, v255, s[4:7], 0 offen"]
    if cfg.wpull == 2: a.ext(wp)
    a("s_waitcnt lgkmcnt(8)" if cfg.fast0 else "s_waitcnt lgkmcnt(0)")
    q = Seq()
    per = []
    for c in range(10):
        rb = c % 3
        mf = []
        for u in range(4):
            for dt in range(8):
                d = vr(O_(u, dt), 4)
                for s in range(2):
                    mf.append(f"{MF} {d}, {WF(rb,s,dt)}, {XF(rb,s,u)}, {'0' if c == 0 and s == 0 else d}")
        p0 = q.add(mf); per.append(p0)
        for x in stamp_l(a, cfg, f"q{c+1}"): q.put(p0 + 63, "!" + x)
    BQ = {n: max(cfg.b1 + cfg.bsp * (n - 1), 64 * (n - 2)) for n in range(1, 10)}
    BQ[10] = BQ[9] + 44
    for n in range(1, 11):
        p = BQ[n]
        q.put(p, f"WAITVM c{n} lgkmcnt(0)" if n < 10 else "s_waitcnt lgkmcnt(0)"); q.put(p, "s_barrier")
        if n < 10:
            for i, r in enumerate(qreads(n)): q.put(p + 1 + (i * 3) // 4, r)
        if n + 2 < 10:
            q.place(qstage(n + 2), [p + 2 + (cfg.bsp * i) // 12 for i in range(12)])
        assert n == 1 or n == 10 or BQ[n + 1] < 64 * n, n
    q.put(63, "s_waitcnt lgkmcnt(0)")
    if cfg.fast0:
        for i, r in enumerate(r0[14:]): q.put(i // 2, r)
        for dt in range(1, 8):
            issued = min(40, 14 + 2 * (2 * dt - 1)); needed = 2 + 4 * (dt + 1)
            q.g[2 * dt - 1].insert(0, f"s_waitcnt lgkmcnt({min(15, issued - needed)})")
        q.g[15].insert(0, "s_waitcnt lgkmcnt(0)")
        q.place(qstage(2), [4 + i + i // 4 for i in range(12)])
    if cfg.wpull >= 3: q.place(wp, [per[cfg.wpull - 3] + 60])
    sw = [f"s_mov_b32 s52, {sum(v << (4*k) for k, v in enumerate(cfg.xs))}", "s_lshr_b32 s52, s52, s34", "s_and_b32 s37, s52, 15"]
    sw += ["s_mul_i32 s52, s3, %d" % (1024 * 1280), "s_lshl_b32 s53, s55, 7", "s_add_u32 s52, s52, s53"] + srd(SWO, 56, "s52", WOSZ) + \
         ["s_mul_i32 s52, s43, 15", "s_mul_i32 s53, s54, 5", "s_add_u32 s52, s52, s53", "s_lshl_b32 s52, s52, 17", "s_lshl_b32 s53, s3, 15",
          "s_add_u32 s52, s52, s53"] + srd(SOR, 48, "s52", ORSZ)
    if cfg.wpull == 1 or cfg.wl2: sw += ["s_mov_b32 s4, s56", "s_mov_b32 s5, s57", f"s_mov_b32 s6, {4096*1280}", "s_mov_b32 s7, 0x20000", "s_mov_b32 s38, 0"]
    i = per[8] + 2
    k = 0
    while k < len(sw):
        n = 2 if "s_addc" in sw[min(k + 1, len(sw) - 1)] else 1
        for x in sw[k:k + n]: q.put(i, x)
        k += n; i += 2
    p9 = per[9]
    def qepi(u):
        o = []
        for m in range(4):
            t = 16 + 4 * (m & 1)
            o += scale_pack(cfg, O_(u, 2 * m), t, ("s44", "s[44:45]"), cfg.pkmul)
            if m:
                tp = 16 + 4 * ((m - 1) & 1)
                o += [f"v_accvgpr_write_b32 a{Q_(u,m-1)+i}, v{tp+i}" for i in range(4)]
            o += [f"v_permlane16_swap_b32 v{t}, v{t+2}", f"v_permlane16_swap_b32 v{t+1}, v{t+3}"]
        o += [f"v_accvgpr_write_b32 a{Q_(u,3)+i}, v{20+i}" for i in range(4)]
        return o
    q.put(p9 + 31, "WAITVM seg0k" if cfg.split0 else "WAITVM seg0"); q.put(p9 + 31, "s_barrier")
    for x in stamp_l(a, cfg, "b0"): q.put(p9 + 31, "!" + x)
    k0r = [kread(0, 0, 0, kt, ks) for kt in range(2) for ks in range(4)]
    for i, r in enumerate(k0r): q.put(p9 + 32 + 2 * i, r)
    e = q.stream(qepi(0), p9 + 16 + 4, cap=4)
    e = q.stream(qepi(1), max(e, p9 + 32 + 4), cap=4)
    e = q.stream(qepi(2), max(e, p9 + 48 + 4), cap=4)
    q.put(p9 + 62, "s_waitcnt lgkmcnt(0)")
    lab = q.raw([])
    for x in stamp_l(a, cfg, "g0"): q.put(len(q.m) - 1, "!" + x)
    g0 = q.add(qk(0, 0, True))
    g1 = q.add(qk(1, 0, True))
    g2 = q.add(qk(2, 0, True))
    v0r = [vread(0, 0, 0, dt, e_) for dt in range(8) for e_ in range(2)]
    k1r = [kread(1, 0, 1, kt, ks) for kt in range(2) for ks in range(4)]
    if cfg.split0:
        for i, r in enumerate(k1r): q.put(g0 + i, r)
        q.put(g1 - 1, "!WAITVM seg0"); q.put(g1 - 1, "!s_barrier")
        for i, r in enumerate(v0r): q.put(g1 + i, r)
    else:
        for i, r in enumerate(v0r + k1r): q.put(g0 + i, r)
    e = q.stream(qepi(3), max(e, g0), cap=4)
    def fmax(u):
        s0 = S_(u, 0); t = NM(u)
        o = [f"v_max3_f32 v{t}, v{s0}, v{s0+1}, v{s0+2}", f"v_max3_f32 v{t+1}, v{s0+3}, v{s0+4}, v{s0+5}",
             f"v_max3_f32 v{t}, v{t}, v{s0+6}, v{s0+7}", f"v_max3_f32 v{t}, v{t}, v{t+1}, v{MTR+u}"]
        return o + [x for x in rowmax_l(t, t + 1) if "s_nop" not in x]
    def fexp(u, nexp):
        s0 = S_(u, 0); t = NM(u)
        o = [f"v_sub_f32 v{s0+r}, v{s0+r}, v{t}" for r in range(8)]
        o += [f"v_exp_f32 v{s0+r}, v{s0+r}" for r in range(nexp)]
        o += [f"v_sub_f32 v{NM(u)+i}, 0, v{t}" for i in (1, 2, 3, 0)]
        o += [f"v_cvt_pk_bf16_f32 v{P_(u)+r//2}, v{s0+r}, v{s0+r+1}" for r in range(0, nexp, 2)]
        return o
    ones = ["v_mov_b32 v27, 0x3f803f80"] + [f"v_accvgpr_write_b32 a{ONES+i}, v27" for i in range(4)]
    e = q.stream(merge(fmax(0), fmax(1), ones), max(e, g2 + 1), cap=4)
    for x in stamp_l(a, cfg, "g3"): q.put(len(q.m) - 1, "!" + x)
    g3 = q.add(qk(3, 0, True))
    e = q.stream(merge(fexp(0, 8), fmax(2)), g3, cap=6)
    q.raw(["s_waitcnt lgkmcnt(0)"])
    for x in stamp_l(a, cfg, "g4"): q.put(len(q.m) - 1, "!" + x)
    g4 = q.add(pv(0, 0, True))
    e = q.stream(merge(fexp(1, 8), fmax(3)), g4, cap=5)
    for x in stamp_l(a, cfg, "g5"): q.put(len(q.m) - 1, "!" + x)
    g5 = q.add(pv(1, 0, True))
    e = q.stream(merge(fexp(2, 8), fexp(3, 4)), g5, cap=7)
    for x in stamp_l(a, cfg, "tile1"): q.raw([x])
    st1 = attn_tile(cfg, q, 1, "first")
    if cfg.sig == "line":
        arr = ["s_and_b32 s52, s2, 31", "s_lshl_b32 s52, s52, 3", "v_mov_b32 v16, s52", "v_mov_b32 v17, 1", "s_cmp_lg_u32 s3, 0", "s_cbranch_scc1 L_noarr",
               "s_mov_b64 exec, 1", "global_atomic_add v16, v17, s[46:47] sc1 ;@skip", "s_mov_b64 exec, -1", "L_noarr:"]
        for x in arr: q.put(st1[8] - 1, "!" + x)
    kv = []
    NP = 32 - cfg.lag
    for gp in range(NP): kv += piece(cfg, gp, False)
    pos = []
    i = BQ[7] + cfg.bsp + 3; acc = cfg.kvpace
    free_at = [0, BQ[8], BQ[8], BQ[8], BQ[9], BQ[9], BQ[9], BQ[10]]
    while len(pos) < NP:
        ok = q.m[i] and q.m[i - 1] and q.m[i + 1] and (q.slots(i) < 2 or i > p9 + 16) and i > free_at[len(pos) // 4]
        if ok and acc >= cfg.kvpace:
            pos.append(i); acc = 0
        acc += max(4, 2 + q.slots(i)) / 4
        i += 1
    assert pos[3 if cfg.split0 else 7] < p9 + 31 and pos[7] < g1 - 2 and pos[-1] < st1[4] - 2, (pos, p9, st1)
    if "nokv23" in cfg.exp: kv = [("buffer_dummy ;@" + x.split(";@")[1]) if (x.endswith("seg2") or x.endswith("seg3")) else x for x in kv]
    for k, (c, sg) in enumerate(cfg.touch):
        q.put(per[c] + cfg.tpos - 1, f"s_add_u32 s53, s40, {16384*sg}")
        q.put(per[c] + cfg.tpos, f"buffer_load_dword v255, v219, s[{SV if cfg.tkv[k % len(cfg.tkv)] == 'v' else SK}:{(SV if cfg.tkv[k % len(cfg.tkv)] == 'v' else SK)+3}], s53 offen {cfg.tflags}".rstrip())
    q.place(kv, pos)
    q.emit(a)
    a.l = fix(resolve_waits(a.l))
    a("s_mov_b32 s34, 3")
    a(".p2align 6")
    a("L_loop:")
    body0 = len(a.l)
    q = Seq()
    def loopstamp(q, p, pre):
        if cfg.stamps and pre in cfg.only.split(","):
            o = ["s_memtime s[4:5]", "s_memrealtime s[6:7]", "s_waitcnt lgkmcnt(0)"]
            for it in range(3):
                i = len(a.stamps); a.stamps.append(f"{pre}{it}")
                o += [f"s_cmp_eq_u32 s34, {3-it}", f"s_cselect_b32 s{60+4*i}, s4, s{60+4*i}", f"s_cselect_b32 s{62+4*i}, s6, s{62+4*i}"]
            for x in o: q.put(p, x)
    for j in range(2, 10):
        st = attn_tile(cfg, q, j)
        if j == 2: loopstamp(q, st[4] - 1, "ia")
        if j == 6: loopstamp(q, st[4] - 1, "ib")
        if cfg.wl2 and j % 2 == 0:
            q.put(st[3] + 1, f"buffer_load_dword v16, v255, s[4:7], s38 offen {cfg.wl2f}".rstrip())
            q.put(st[3] + 2, f"s_add_u32 s38, s38, {3*1280}")
        if cfg.wpull == 1 and j == 4:
            q.put(st[3] + 1, "buffer_load_dword v16, v255, s[4:7], s38 offen")
            q.put(st[3] + 2, f"s_add_u32 s38, s38, {56*128}")
        if j in (5, 7):
            for x in reversed(stamp_l(a, cfg, f"w{j}a")): q.g[st[4] - 1].insert(0, x)
            for x in stamp_l(a, cfg, f"w{j}b"): q.put(st[4] - 1, x)
        if j == 6:
            for x in reversed(stamp_l(a, cfg, f"d{j}a")): q.g[st[2] + 1].insert(0, x)
            for x in stamp_l(a, cfg, f"d{j}b"): q.put(st[2] + 1, "!" + x)
    if "lnobar" in cfg.exp: q.g = [[x for x in gp if x != "s_barrier"] for gp in q.g]
    if "lnodma" in cfg.exp: q.g = [[x for x in gp if kind(x.lstrip("!")) != "vm"] for gp in q.g]
    if "lnods" in cfg.exp: q.g = [[x for x in gp if kind(x.lstrip("!")) != "ds"] for gp in q.g]
    if "lnowait" in cfg.exp: q.g = [[x for x in gp if not (x.startswith("s_waitcnt") and "s_cmp_eq_u32 s34, 3" not in gp)] for gp in q.g]
    if "lnocvt" in cfg.exp: q.g = [[x for x in gp if not x.startswith("v_cvt")] for gp in q.g]
    q.put(-3, "s_sub_u32 s34, s34, 1")
    q.put(-1, "s_cmp_lg_u32 s34, 0"); q.put(-1, "s_cbranch_scc1 L_loop")
    q.emit(a)
    a.l = a.l[:body0] + [x.split(" ;@")[0] for x in a.l[body0:]]
    body = a.l[body0:]
    b = Asm(); b.stamps = a.stamps
    for gp in range(104, 130 - cfg.lag): b(f"buffer_dummy ;@seg{gp//8}" + ("k" if gp % 8 < 4 else ""))
    q = Seq()
    if "nowo" in cfg.exp: b(f"s_mov_b32 s{SWO+2}, 0")
    for x in stamp_l(b, cfg, "t26"): b(x)
    sts = {j: attn_tile(cfg, q, j, "final") for j in range(26, 30)}
    def wpos(st, half):
        return [st[4*half] + 1, st[4*half+1] + 8 if half == 0 else st[5] + 1, st[4*half+2] + (7 if half == 0 else 1), st[4*half+3] + 1]
    if cfg.wsched == 0:
        for j, (t0, t1) in {26: (0, 1), 27: (2, 3), 28: (4, 5), 29: (10, 6)}.items():
            st = sts[j]
            q.place(wdma(cfg, t0), [st[1] + 8, st[2] + 7, st[3] + 1, st[3] + 5])
            q.place(wdma(cfg, t1), [st[5] + 8, st[6] + 1, st[6] + 5, st[7] + 5])
    elif cfg.wsched == 2:
        st = sts[26]
        q.place(wdma(cfg, 0), [st[2] + 7, st[4] + 1, st[5] + 8, st[7] + 1])
        for j, (t0, t1) in {27: (1, 5), 28: (2, 6), 29: (3, 7)}.items():
            st = sts[j]
            q.place(wdma(cfg, t0), [st[0] + 5, st[1] + 8, st[2] + 7, st[3] + 5])
            q.place(wdma(cfg, t1), [st[5] + 8, st[6] + 1, st[6] + 5, st[7] + 5])
    else:
        st = sts[27]
        q.place(wdma(cfg, 0), [st[5] + 8, st[6] + 1, st[6] + 5, st[7] + 5])
        st = sts[28]
        q.place(wdma(cfg, 1), [st[0] + 5, st[0] + 7, st[1] + 1, st[1] + 3])
        q.place(wdma(cfg, 2), [st[2] + 1, st[2] + 7, st[3] + 1, st[3] + 5])
        q.place(wdma(cfg, 3), [st[5] + 8, st[6] + 1, st[6] + 5, st[7] + 5])
        st = sts[29]
        q.place(wdma(cfg, 4), [st[0] + 5, st[0] + 7, st[1] + 1, st[1] + 3])
        q.place(wdma(cfg, 5), [st[2] + 1, st[2] + 3, st[2] + 5, st[2] + 7])
        q.place(wdma(cfg, 10), [st[3] + 5, st[3] + 7, st[4] + 1, st[4] + 3])
        q.place(wdma(cfg, 6), [st[5] + 8, st[6] + 1, st[6] + 5, st[7] + 5])
    if cfg.sig == "line": q.put(sts[26][3] + 1, "global_load_dword v255, v0, s[46:47] sc1 ;@arr")
    if cfg.tlb:
        so = ["s_mul_i32 s52, s43, 240", "s_mul_i32 s53, s54, 80", "s_add_u32 s52, s52, s53", "s_mul_i32 s52, s52, 1280", "s_lshl_b32 s53, s55, 7", "s_add_u32 s52, s52, s53"]
        st = sts[27]
        for k, x in enumerate(so): q.g[st[4] + 2 + k].insert(0, x)
        sd = srd(SOUT, 58, "s52", 79 * 1280 + 128)
        q.g[st[4] + 8][0:0] = sd[:2]; q.g[st[5]][0:0] = sd[2:]
        q.put(st[5] + 1, f"buffer_load_dword v16, off, s[{SOUT}:{SOUT+3}], 0")
        q.put(st[5] + 3, f"buffer_load_dword v16, off, s[{SO}:{SO+3}], 0")
        q.put(st[5] + 5, f"buffer_load_dword v16, off, s[{SOR}:{SOR+3}], 0")
    st = sts[28]
    q.g[st[5] + 8].insert(0, "WAITVM w0")
    q.g[sts[29][4]].insert(0, "WAITVM w1")
    for p, r in zip([st[5] + 8, st[6] + 1, st[6] + 3, st[6] + 5, st[6] + 7, st[7] + 1, st[7] + 1, st[7] + 3], wreads(0)): q.put(p, r)
    k = q.g[st[8] - 2].index("s_waitcnt lgkmcnt(0)"); q.g[st[8] - 2][k] = "s_waitcnt lgkmcnt(8)"
    st = sts[29]
    q.put(st[1] + 7, "s_waitcnt lgkmcnt(10)")
    for p, r in zip([st[4] + 1, st[4] + 5, st[5] + 1, st[5] + 5, st[5] + 8, st[6] + 1, st[6] + 3, st[6] + 5], wreads(1)): q.put(p, r)
    k = q.g[st[7]].index("s_waitcnt lgkmcnt(0)"); q.g[st[7]][k] = "s_waitcnt lgkmcnt(4)"
    st = sts[29]
    for p, r in zip([st[7] + k for k in (1, 1, 3, 5, 7, 8, 8)] + [st[8]], [kread(1, 3, 1, kt, ks) for kt in range(2) for ks in range(4)]):
        if p < st[8]: q.put(p, r)
        else: lastk = r
    for x in stamp_l(b, cfg, "t30"): q.put(len(q.m) - 1, "!" + x)
    job = lambda k: (k >> 1, k & 1, k & 3)
    F = []
    for k in range(8):
        u, tb, sl = job(k)
        F.append(q.add(qk(u, tb, sl=sl)))
        if k < 2: F.append(q.add(pv(2 + k, 1)))
        else:
            u, tb, sl = job(k - 2); F.append(q.add(pv(u, tb, sl=sl)))
    for k in (6, 7):
        u, tb, sl = job(k); F.append(q.add(pv(u, tb, sl=sl)))
    F.append(len(q.m))
    sm_half(q, F[0], 3, 1)
    for k in range(8):
        sm_half(q, F[2 * k + 1], k & 3, 0); sm_half(q, F[2 * k + 2], k & 3, 1)
    q.put(F[0] + 1, lastk)
    v30 = [vread(0, 3, 0, dt, e) for dt in range(8) for e in range(2)]
    v31 = [vread(1, 3, 1, dt, e) for dt in range(8) for e in range(2)]
    if not cfg.split15:
        for p, r in zip([F[0] + k for k in (1, 3, 5, 5, 7)] + [F[1] + k for k in (1, 1, 3, 5, 5, 7)] + [F[2] + k for k in (1, 1, 3, 5, 5)], v30): q.put(p, r)
        q.put(F[1] + 8, "s_waitcnt lgkmcnt(10)")
        for p, r in zip([F[4] + k for k in (1, 1, 3, 5, 5, 7)] + [F[5] + k for k in (1, 1, 3, 5, 5, 7, 8, 8)] + [F[6] + k for k in (1, 1)], v31): q.put(p, r)
        q.put(F[4], "s_waitcnt lgkmcnt(0)")
        q.place(wdma(cfg, 11), [F[2] + 7, F[3] + 1, F[3] + 3, F[3] + 5])
        q.place(wdma(cfg, 7), [F[5] + 3, F[5] + 7, F[6] + 3, F[6] + 5])
    else:
        q.put(F[1] + 8, "WAITVM seg15 lgkmcnt(0)"); q.put(F[1] + 8, "s_barrier")
        for p, r in zip([F[2] + k for k in (1, 1, 3, 5, 5, 7)] + [F[3] + k for k in (1, 1, 3, 5, 5, 7, 8, 8)] + [F[4] + k for k in (1, 1)], v30): q.put(p, r)
        for p, r in zip([F[4] + k for k in (3, 5, 5, 7)] + [F[5] + k for k in (1, 1, 3, 5, 5, 7, 8, 8)] + [F[6] + k for k in (1, 1, 3, 3)], v31): q.put(p, r)
        q.put(F[5] - 1, "s_waitcnt lgkmcnt(3)")
        if cfg.wsched == 2:
            q.place(wdma(cfg, 4), [F[0] + 5, F[0] + 7, F[1] + 3, F[1] + 7])
            q.place(wdma(cfg, 10), [F[2] + 4, F[2] + 6, F[3], F[3] + 2])
            q.place(wdma(cfg, 11), [F[4], F[4] + 2, F[4] + 4, F[4] + 6])
        else:
            q.place(wdma(cfg, 11), [F[0] + 5, F[0] + 7, F[1] + 1, F[1] + 3])
            q.place(wdma(cfg, 7), [F[2], F[2] + 4, F[3] + 2, F[3] + 6])
    q.put(F[7] - 1, "s_waitcnt lgkmcnt(0)"); q.put(F[7] - 1, "s_barrier")
    q.place(wdma(cfg, 8), [F[7] + 5, F[7] + 7, F[7] + 8, F[8] + 1])
    q.place(wdma(cfg, 9), [F[8] + 7, F[9] + 1, F[9] + 3, F[9] + 5])
    if "nost" in cfg.exp: q.g[F[4]].insert(0, f"s_mov_b32 s{SO+2}, 0")
    def onorm(u):
        o = [f"v_accvgpr_read_b32 v16, a{L_(u)}", "v_cmp_ngt_f32 vcc, s36, v16", "v_rcp_f32 v16, v16", "s_or_b64 s[50:51], s[50:51], vcc", "v_mov_b32 v17, v16"]
        for m in range(4):
            t = 20 + 4 * (m & 1)
            o += scale_pack(cfg, O_(u, 2 * m), t, ("v16", "v[16:17]"), True)
            o += [f"buffer_store_dwordx4 {vr(t,4)}, v15, s[{SO}:{SO+3}], s30 offen offset:{1024*m} {cfg.oflags}".rstrip() + " ;@ost"]
        o += ["s_add_u32 s30, s30, 131072"]
        return o
    for k, x in enumerate([f"s_mov_b32 s36, {f32(cfg.lthr)}", "s_mov_b64 s[50:51], 0", "s_lshl_b32 s30, s3, 19", "s_lshl_b32 s31, s29, 12", "s_add_u32 s30, s30, s31"]):
        q.g[F[4] + 2 + k].insert(0, x)
    for k in (2, 4, 6, 8, 10, 12, 14, 16):
        for x in stamp_l(b, cfg, f"F{k}"): q.put(F[k] - 1, "!" + x)
    if cfg.early:
        e = q.stream(onorm(0), F[8] + 4, cap=cfg.ncap)
        e = q.stream(onorm(1), max(e, F[12] + 4), cap=cfg.ncap)
        e = q.stream(onorm(2), max(e, F[16] + 4), cap=cfg.ncap + 2)
    q.emit(b)
    if not cfg.early: b.ext(onorm(0) + onorm(1) + onorm(2))
    stamp(b, cfg, "loopend")
    if "nowo" in cfg.exp: b(f"s_mov_b32 s{SWO+2}, {WOSZ}")
    def park(t): return [f"WAITVM w{t}"] + wreads(t)
    def refill(t): return with_nop(wdma(cfg, t + 10))
    b.ext(park(2) + park(3))
    b.ext(onorm(3))
    stamp(b, cfg, "stored")
    if cfg.force_fb: b("s_mov_b64 s[50:51], -1")
    b("s_cmp_lg_u64 s[50:51], 0")
    b("s_cselect_b32 s52, 1, 0")
    b(f"s_add_u32 s53, s40, {16384*UNIT[2]}")
    b("v_mov_b32 v16, s52")
    b("v_mov_b32 v17, s53")
    b("v_and_b32 v18, 3, v1")
    b("v_lshlrev_b32 v18, 12, v18")
    b(f"v_add_u32 v18, {16384*UNIT[2]}, v18")
    b("s_waitcnt lgkmcnt(0)")
    b("ds_write_b32 v17, v16")
    b.ext(refill(3) + park(4) + park(5))
    b("s_waitcnt lgkmcnt(0)")
    b("s_barrier")
    b("ds_read_b32 v20, v18")
    b.ext(refill(4) + park(6) + park(7))
    b("s_waitcnt lgkmcnt(0)")
    b("v_cmp_ne_u32 vcc, 0, v20")
    b("s_cmp_eq_u32 s35, 0")
    b("s_cselect_b64 s[52:53], vcc, 0")
    b("s_cmp_lg_u64 s[52:53], 0")
    b("s_cbranch_scc1 L_exact")
    if not cfg.sigfirst: b.ext(park(8) + park(9) + park(10) + park(11))
    if cfg.sig == "line":
        b("s_lshl_b32 s52, s28, 5")
        b("s_add_u32 s52, s52, s29")
        b("s_lshl_b32 s52, s52, 7")
        b(f"s_add_u32 s52, s52, {FOFF}")
    else:
        b("s_lshl_b32 s52, s28, 2")
        b("s_lshr_b32 s53, s29, 3")
        b("s_add_u32 s52, s52, s53")
        b("s_lshl_b32 s52, s52, 3")
    b("v_mov_b32 v16, s52")
    b("v_mov_b32 v17, 1")
    if cfg.pre5: b.ext(refill(5))
    b("WAITVM ost")
    b("s_barrier")
    b("s_cmp_lg_u32 s3, 0")
    b("s_cbranch_scc1 L_nosig")
    b("s_mov_b64 exec, 1")
    if cfg.sig == "line": b("global_store_dword v16, v17, s[48:49] sc1 ;@skip")
    else: b("global_atomic_add v16, v17, s[46:47] sc1 ;@skip")
    b("s_mov_b64 exec, -1")
    b("L_nosig:")
    stamp(b, cfg, "signaled")
    b("s_lshr_b32 s52, s2, 3")
    b("s_cmp_ge_u32 s52, 30")
    b("s_cbranch_scc1 L_fin")
    if cfg.sigfirst:
        b.ext(refill(2) + ([] if cfg.pre5 else refill(5)) + park(8) + park(9) + refill(6) + park(10) + park(11) + refill(7))
        b("s_waitcnt lgkmcnt(0)")
        for t in range(8, 12): b.ext(refill(t))
    else:
        b("s_waitcnt lgkmcnt(0)")
        b.ext(refill(2))
        for t in range(5, 12): b.ext(refill(t))
    b("s_lshl_b32 s52, s43, 2")
    b("s_add_u32 s52, s52, s3")
    if cfg.sig == "line":
        b("s_lshl_b32 s52, s52, 10")
        b(f"s_add_u32 s52, s52, {FOFF}")
        b("v_and_b32 v16, 7, v1")
        b("v_lshlrev_b32 v16, 7, v16")
        b("v_add_u32 v16, s52, v16")
        pbase = "s[48:49]"
    else:
        b("s_lshl_b32 s52, s52, 3")
        b("v_mov_b32 v16, s52")
        pbase = "s[46:47]"
    prev = None
    for t in range(12, 16):
        if cfg.epoll and t == cfg.epoll: b(f"global_load_dword v17, v16, {pbase} sc1 ;@ep")
        b.ext(park(t))
        if prev is not None and prev + 10 < cfg.X:
            b("s_waitcnt lgkmcnt(8)")
            b.ext(refill(prev))
        prev = t
    b("s_waitcnt lgkmcnt(0)")
    if prev + 10 < cfg.X: b.ext(refill(prev))
    stamp(b, cfg, "parked")
    b("s_mov_b32 s34, 0x100000")
    want = 1 if cfg.sig == "line" else 8
    cmpi = "v_cmp_ne_u32 vcc, 1, v17" if cfg.sig == "line" else "v_cmp_gt_u32 vcc, 8, v17"
    if cfg.sig == "line":
        b("WAITVM arr")
        b("v_cmp_gt_u32 vcc, 8, v255")
        b("s_cbranch_vccz L_cleared")
        b("L_wclr:")
        b("global_load_dword v255, v0, s[46:47] sc1 ;@skip")
        b("s_waitcnt vmcnt(0)")
        b("v_cmp_gt_u32 vcc, 8, v255")
        b("s_sub_u32 s34, s34, 1")
        b("s_cselect_b64 vcc, 0, vcc")
        b("s_cbranch_vccnz L_wclr")
        b("s_branch L_poll")
        b("L_cleared:")
    if cfg.epoll:
        b("WAITVM ep")
        b(cmpi)
        b("s_cbranch_vccz L_ready")
    b("L_poll:")
    b(f"global_load_dword v17, v16, {pbase} sc1")
    b("s_waitcnt vmcnt(0)")
    b(cmpi)
    b("s_sub_u32 s34, s34, 1")
    b("s_cselect_b64 vcc, 0, vcc")
    b("s_cbranch_vccnz L_poll")
    b("L_ready:")
    stamp(b, cfg, "polled")
    worder = [x.split(";@")[1] for x in b.l if ";@w" in x]
    a.l += fix(resolve_waits(b.l))
    c = Asm(); c.stamps = a.stamps
    for t_ in worder: c(f"buffer_dummy ;@{t_}")
    ACC = lambda i, nt: 32 + 16 * i + 4 * nt
    OFB = [112, 132, 152, 172, 192]
    OF = lambda t, i: OFB[t % cfg.DO] + 4 * i
    def oload(t):
        return [f"s_add_u32 s30, s41, {t}", "s_xor_b32 s30, s30, s37", "s_lshl_b32 s30, s30, 10", "s_and_b32 s30, s30, 0x7fff"] + \
            tag([f"buffer_load_dwordx4 {vr(OF(t,i),4)}, v{OAL[i]}, s[{SOR}:{SOR+3}], s30 offen {cfg.orflags}".rstrip() for i in range(5)], f"o{t}")
    for t in range(cfg.DO - 1): c.ext(oload(t))
    if not cfg.tlb:
        c("s_mul_i32 s52, s43, 240")
        c("s_mul_i32 s53, s54, 80")
        c("s_add_u32 s52, s52, s53")
        c("s_mul_i32 s52, s52, 1280")
        c("s_lshl_b32 s53, s55, 7")
        c("s_add_u32 s52, s52, s53")
        c.ext(srd(SOUT, 58, "s52", 79 * 1280 + 128))
    for j in range(1, 4):
        c(f"s_add_u32 s52, s3, {j}")
        c("s_and_b32 s52, s52, 3")
        c("s_mul_i32 s52, s52, 15360")
        c(f"v_add_u32 v{240+j}, s52, v15")
    c("s_mul_i32 s52, s3, 15360")
    c("v_add_u32 v240, s52, v15")
    c("v_mul_u32_u24 v244, 1280, v2")
    c("v_lshl_add_u32 v244, v3, 3, v244")
    nextw = cfg.X
    q = Seq()
    NL = cfg.NL
    for t in range(32 - NL):
        mf = []
        for i in range(5):
            for nt in range(4):
                d = vr(ACC(i, nt), 4)
                mf.append(f"{MF} {d}, {ar(WS(t,nt),4)}, {vr(OF(t,i),4)}, {'0' if t == 0 else d}")
        q.raw([f"WAITVM o{t} lgkmcnt(0)"] + (stamp_l(c, cfg, f"p{t}") if t in (1, 4, 8, 16, 24) else []))
        g = q.add(mf)
        if t + cfg.DO - 1 < 32: q.place(oload(t + cfg.DO - 1), [g + 4, g + 6, g + 9, g + 12, g + 15])
        tr = t + 15
        if t >= 1 and tr < 32:
            q.g[g].insert(0, f"WAITVM w{tr}")
            for k, r in enumerate(wreads(tr)): q.put(g + 1 + k, r)
        if nextw < 32 and nextw - 10 <= t + 14 and (nextw - cfg.X) * cfg.wev <= t:
            q.place(wdma(cfg, nextw), [g + 10, g + 13, g + 16, g + 18])
            nextw += 1
        if t == 20: q.put(g + 19, "s_barrier")
    assert nextw == 32
    q.raw([f"WAITVM o{32-NL} lgkmcnt(0)"])
    wr = lambda i, j: f"ds_write_b128 v{240+j}, {vr(ACC(i,j),4)} offset:{5120*(j-1)+1024*i}"
    for i in range(5):
        mf = []
        for j in (1, 2, 3, 0):
            d = vr(ACC(i, j), 4)
            for t in range(32 - NL, 32):
                mf.append(f"{MF} {d}, {ar(WS(t,j),4)}, {vr(OF(t,i),4)}, {d}")
        g = q.add(mf)
        if i == 0:
            for k in range(1, NL): q.g[g + k - 1].append(f"!WAITVM o{32-NL+k}")
        else:
            for j in range(1, 4): q.put(g + 2 + NL * (j - 1), wr(i - 1, j))
    q.raw(stamp_l(c, cfg, "projdone") + ["s_nop 1", wr(4, 1), wr(4, 2), "s_nop 1", wr(4, 3)])
    q.emit(c)
    c("s_waitcnt lgkmcnt(0)")
    c("s_barrier")
    for i in range(5):
        for j in range(3):
            c(f"ds_read_b128 {vr(112+12*i+4*j,4)}, v240 offset:{5120*j+1024*i}")
    c("s_lshl_b32 s52, s3, 5")
    for i in range(5):
        c(f"s_waitcnt lgkmcnt({3*(4-i)})")
        bb = 112 + 12 * i; ac = ACC(i, 0)
        for r in range(0, 4, 2):
            c(f"v_pk_add_f32 {vr(ac+r,2)}, {vr(ac+r,2)}, {vr(bb+r,2)}")
            c(f"v_pk_add_f32 {vr(bb+4+r,2)}, {vr(bb+4+r,2)}, {vr(bb+8+r,2)}")
        for r in range(0, 4, 2):
            c(f"v_pk_add_f32 {vr(ac+r,2)}, {vr(ac+r,2)}, {vr(bb+4+r,2)}")
        c(f"v_cvt_pk_bf16_f32 v{ac}, v{ac}, v{ac+1}")
        c(f"v_cvt_pk_bf16_f32 v{ac+1}, v{ac+2}, v{ac+3}")
        c(f"buffer_store_dwordx2 {vr(ac,2)}, v244, s[{SOUT}:{SOUT+3}], s52 offen {cfg.outflags}".rstrip())
        c("s_add_u32 s52, s52, %d" % (16 * 1280))
    a.l += resolve_waits(c.l)
    a("L_fin:")
    if cfg.stamps or cfg.calib:
        a("s_waitcnt vmcnt(0)")
        stamp(a, cfg, "end")
    if cfg.calib:
        a("s_waitcnt lgkmcnt(0)")
        a("s_or_b32 s52, s2, s3")
        a("s_cmp_lg_u32 s52, 0")
        a("s_cbranch_scc1 L_end")
        a(f"s_sub_u32 s52, s{62+4*cfg.cal_j}, s{62+4*cfg.cal_i}")
        a("s_lshl_b32 s52, s52, 2")
        a("s_add_u32 s52, s52, s62")
        a("L_spin:")
        a("s_memrealtime s[56:57]")
        a("s_waitcnt lgkmcnt(0)")
        a("s_sub_u32 s56, s56, s52")
        a(f"s_cmp_lt_i32 s56, {cfg.calib*100}")
        a("s_cbranch_scc1 L_spin")
    if cfg.stamps:
        stamps_out(a, cfg, 64 << 20)
    a("L_end:")
    a("s_endpgm")
    a("L_exact:")
    ex0 = len(a.l)
    a("s_mov_b32 s35, 1")
    a(f"s_mov_b32 s{SK+2}, {KVBYTES}")
    a(f"s_mov_b32 s{SV+2}, {KVBYTES}")
    a("s_mov_b32 s33, s40")
    a("s_waitcnt vmcnt(0) lgkmcnt(0)")
    a("L_exact_loop:")
    a("s_barrier")
    a.ext(with_nop(kdma(cfg, 0)))
    a(ADV)
    a("s_waitcnt vmcnt(0)")
    a("s_barrier")
    for th in range(2):
        for kt in range(2):
            for ks in range(4): a(kread(0, 0, th, kt, ks))
        a("s_waitcnt lgkmcnt(0)")
        for u in range(4): a.ext(qk(u, 0, True))
        a("s_nop 7")
        for u in range(4):
            s0 = S_(u, 0)
            for r in range(0, 8, 2):
                a(f"v_max3_f32 v{MTR+u}, v{MTR+u}, v{s0+r}, v{s0+r+1}")
    a(f"s_cmp_lt_u32 s33, {KVBYTES}")
    a("s_cbranch_scc1 L_exact_loop")
    a("s_barrier")
    a("s_mov_b32 s33, s40")
    a.ext([x.split(" ;@")[0] for x in with_nop(sum([piece(cfg, gp, False) for gp in range(NP)], []))])
    a("s_waitcnt vmcnt(0)")
    a("s_barrier")
    a.ext(k0r + v0r)
    a("s_waitcnt lgkmcnt(0)")
    a.ext(k1r)
    for u in range(4): a.ext(qk(u, 0, True))
    a.ext(ones)
    a("s_nop 7")
    a.ext(fix(merge(*[fmax(u) for u in range(4)]) + merge(*[fexp(u, 8 if u < 3 else 4) for u in range(4)])))
    a("s_nop 1")
    a.ext(pv(0, 0, True) + pv(1, 0, True))
    a("s_waitcnt lgkmcnt(0)")
    q = Seq(); attn_tile(cfg, q, 1, "first")
    x1 = Asm()
    for t_ in ["seg1"]: x1("buffer_dummy ;@seg1")
    q.emit(x1)
    a.l += resolve_waits(x1.l)
    a("s_mov_b32 s34, 3")
    a("s_branch L_loop")
    bad = check(a.l[:ex0], "main") + check(body + body, "attn-loop") + check(a.l[ex0:] + body, "exact")
    assert bad == 0
    return a

def build(cfg):
    k = NAME + "_kernel"
    out = []
    out.append("; @launch grid=(256,1,1) block=(256,1,1) lds=163840")
    out.append('.amdgcn_target "amdgcn-amd-amdhsa--gfx950"')
    out.append(".text")
    out.append(f".globl {k}\n.p2align 8\n.type {k},@function\n{k}:")
    out.append(gen(cfg).text())
    out.append('.section .rodata,"a"')
    out.append(f""".p2align 6
.amdhsa_kernel {k}
  .amdhsa_next_free_vgpr 512
  .amdhsa_next_free_sgpr 102
  .amdhsa_accum_offset 256
  .amdhsa_group_segment_fixed_size 0
  .amdhsa_kernarg_size 64
  .amdhsa_user_sgpr_count 2
  .amdhsa_user_sgpr_kernarg_segment_ptr 1
  .amdhsa_system_sgpr_workgroup_id_x 1
.end_amdhsa_kernel
""")
    return "\n".join(out)

if __name__ == "__main__":
    cfg = Cfg()
    path = sys.argv[1]
    for kv in sys.argv[2:]:
        k, v = kv.split("=", 1)
        old = getattr(cfg, k)
        setattr(cfg, k, type(old)(eval(v)) if isinstance(old, (bool, int, float, tuple)) else v)
    txt = build(cfg)
    open(path, "w").write(txt)
```

```python
import sys, math, struct
from asmlib import *

NAME = "standalone__mha_block_cached__near_ridge"
def f32(x): return struct.unpack("<I", struct.pack("<f", x))[0]
MF = "v_mfma_f32_16x16x32_bf16"

class Cfg:
    kvflags = "nt"
    oflags = "sc1"
    orflags = "sc1"
    xflags = ""
    bflags = ""
    stamps = False
    only = ""
    qspread = 4
    kvpace = 13.5
    lthr = 2.0 ** 40
    force_fb = False
    rot = 5
    rA = 0
    DO = 4
    NL = 2
    w3 = 1
    wn = 10
    wp = 17
    wp2 = 4
    wdelay = 0
    R = 19
    epark = 0
    addu = ()
    tlb = 0
    fast0 = 1
    c1first = 0
    pre5 = 1
    early = 1
    cwarm = 1
    wl2 = 0
    wl2f = ""
    lag = 4
    split0 = 0
    wsched = 2
    b1 = 24
    bsp = 50
    split15 = 1
    sigfirst = 1
    outflags = ""
    wpull = 0
    epoll = 15
    touch = ()
    tpos = 52
    tl = 16
    tflags = ""
    tkv = "v"
    dmode = "even"
    xs = (0, 0, 0, 0, 0)
    k0at = 5
    X = 29
    wev = 1.0
    ncap = 3
    sig = "line"
    pkmul = True
    qord = 0
    exp = ""
    calib = 0
    cal_i = 0
    cal_j = 0

O_ = lambda u, dt: 32 + 32 * u + 4 * dt
S_ = lambda u, kt: 160 + 8 * u + 4 * kt
P_ = lambda u: 192 + 4 * u
NM = lambda u: 208 + 4 * u
KRA, VRA, KDA, VDA, MTR = 224, 228, 236, 240, 242
WD = 246
XDA, WDA, XRA, WRA = 192, 200, 204, 210
Q_ = lambda u, m: 16 * u + 4 * m
KF = lambda b, kt, ks: 64 + 32 * b + 16 * kt + 4 * ks
VF = lambda b, dt: 128 + 32 * b + 4 * dt
L_ = lambda u: 192 + 4 * u
ONES = 208
WF = lambda b, s, dt: ar([160, 0, 96][b] + 32 * s + 4 * dt, 4)
WF2 = lambda b, s, dt, e: ar([160, 0, 96][b] + 32 * s + 4 * dt + 2 * e, 2)
XF = lambda b, s, u: vr([224, 64, 160][b] + 16 * s + 4 * u, 4, "aav"[b])
SX, SW, SK, SV, SO = 8, 12, 16, 20, 24
SWO, SOR, SOUT = 8, 12, 4
KVBYTES = 262144
XBASE = [(131072, 147456), (65536, 16384), (32768, 49152)]
WWIN = 81920
WOFF = [32768, 0, 16384]
UNIT = [0, 4, 8, 9, 1, 5, 2, 6, 3, 7]
UNIT2 = [0, 4, 9, 5, 6, 8, 1, 2, 3, 7]
WRL = [[28, 29, 30, 31], [250, 251, 252, 253], [7, 8, 9, 10]]
OAL = [4, 5, 13, 14, 254]
WBLK = [224, 240, 64, 80, 96, 112, 128, 144, 160, 176, 208, 192, 0, 16, 32, 48]
WBLK2 = [224, 240, 0, 16, 48, 32, 64, 80, 96, 112, 128, 144, 160, 176, 208, 192]
def WS(t, nt, e=None):
    b = WBLK[t % len(WBLK)]
    f = "a" if b >= 0 else "v"
    return vr(abs(b) + 4 * nt, 4, f) if e is None else vr(abs(b) + 4 * nt + 2 * e, 2, f)
def wreads(t):
    u_ = UNIT[t % 10]
    return [f"ds_read_b64_tr_b16 {WS(t,nt,e)}, v{WRL[u_>>2][nt]} offset:{16384*(u_&3)+2048*e} ;@p{t}" for nt in range(4) for e in range(2)]
FOFF = 24 << 20
WOSZ = 1024 * 1280 - 9 * 128
ORSZ = 4 * 131072 + 32768

class Seq:
    def __init__(self): self.m = []; self.g = []
    def add(self, mfmas):
        n = len(self.m); self.m += mfmas; self.g += [[] for _ in mfmas]; return n
    def raw(self, lines):
        self.m.append(None); self.g.append(["!" + x for x in lines]); return len(self.m) - 1
    def put(self, i, x): self.g[i].append(x)
    def slots(self, i):
        n = 0
        for x in self.g[i]:
            k = kind(x.lstrip("!"))
            if k in ("ds", "vm", "valu"): n += 2 if x.lstrip("!").startswith(TRANS) else 1
        return n
    def place(self, lst, vmpos):
        vmpos = list(vmpos); pend = []; last = None
        for x in lst:
            if kind(x) == "vm":
                p = vmpos.pop(0)
                assert not pend or last is None or p - len(pend) > last, (lst, p, last)
                for k, s in enumerate(reversed(pend)): self.g[p - 1 - k].insert(0, s)
                pend = []; self.g[p].append(x); last = p
            else: pend.append(x)
        for k, s in enumerate(pend): self.g[last + 1 + k].insert(0, s)
    def stream(self, lst, start, cap=2, end=None):
        i = start
        for x in lst:
            c = 2 if x.startswith(TRANS) else (0 if kind(x) == "s" else 1)
            while self.slots(i) + c > cap and (end is None or i < end) and i + 1 < len(self.m): i += 1
            self.g[i].append("!" + x)
        return i
    def emit(self, a): emit_gaps(a, self.m, self.g)

def stamp_l(a, cfg, name):
    if (cfg.stamps or cfg.calib) and (cfg.only == "" or name in cfg.only.split(",") or name in ("start", "end")):
        i = len(a.stamps); a.stamps.append(name)
        assert i < 10
        return [f"s_memtime s[{60+4*i}:{61+4*i}]", f"s_memrealtime s[{62+4*i}:{63+4*i}]"]
    return []
def stamp(a, cfg, name): a.ext(stamp_l(a, cfg, name))

def stamps_out(a, cfg, wsoff):
    n = len(a.stamps)
    a.l.insert(0, "; stamps " + str(wsoff >> 20) + " " + " ".join(a.stamps))
    a("s_waitcnt lgkmcnt(0)")
    a(f"s_add_u32 s48, s48, {wsoff}")
    a("s_addc_u32 s49, s49, 0")
    a("s_mov_b32 s50, 0x100000")
    a("s_mov_b32 s51, 0x20000")
    a("s_lshl_b32 s52, s2, 2")
    a("s_add_u32 s52, s52, s3")
    a("s_lshl_b32 s52, s52, 7")
    a("v_mov_b32 v6, s52")
    a("v_cmp_eq_u32 vcc, 0, v1")
    a("s_and_saveexec_b64 s[54:55], vcc")
    for i in range(n):
        a(f"v_mov_b32 v4, s{60+4*i}")
        a(f"v_mov_b32 v5, s{62+4*i}")
        a(f"buffer_store_dwordx2 v[4:5], v6, s[48:51], 0 offen offset:{8*i}")
        a("s_nop 1")
    a("s_getreg_b32 s53, hwreg(HW_REG_XCC_ID)")
    a("v_mov_b32 v4, s53")
    a("buffer_store_dword v4, v6, s[48:51], 0 offen offset:120")
    a("v_mov_b32 v4, 0x5157")
    a(f"v_mov_b32 v5, {n}")
    a("buffer_store_dwordx2 v[4:5], v6, s[48:51], 0 offen offset:112")
    a("s_mov_b64 exec, s[54:55]")

def srd(s, plo, off_s, size):
    return [f"s_add_u32 s{s}, s{plo}, {off_s}", f"s_addc_u32 s{s+1}, s{plo+1}, 0", f"s_mov_b32 s{s+2}, {size}", f"s_mov_b32 s{s+3}, 0x20000"]
def dma(vaddr, sdesc, soff, imm, flags=""):
    o = f" offset:{imm}" if imm else ""
    f = f" {flags}" if flags else ""
    return f"buffer_load_dwordx4 v{vaddr}, s[{sdesc}:{sdesc+3}], {soff} offen{o}{f} lds"
def tag(lst, t):
    return [x + f" ;@{t}" if kind(x) == "vm" else x for x in lst]
def check_setup(lines, name):
    last = {}
    for x in lines:
        if ";@" not in x:
            if kind(x) == "s" and not x.endswith(":") and len(x.split()) > 1 and x.split()[1].rstrip(",") in ("m0", "s42", "s30"): last[x.split()[1].rstrip(",")] = None
            continue
        t = x.split(";@")[1]
        if kind(x) == "s": last[x.split()[1].rstrip(",")] = t
        elif t[0] == "w" and t[1:].isdigit() and not x.startswith("buffer_dummy"):
            assert last.get("m0") == t and last.get("s42") == t, (name, x, last)
        elif t[0] == "o" and t[1:].isdigit() and not x.startswith("buffer_dummy"):
            assert last.get("s30") == t, (name, x, last)
def with_nop(lst):
    o = []
    for x in lst:
        o.append(x)
        if " m0," in x: o.append("s_nop 0")
    return o

def resolve_waits(lines):
    out = []; seq = []; lseq = []
    for x in lines:
        if x.startswith("WAITLG"):
            t = x.split()[1]
            idx = max(i for i, v in enumerate(lseq) if v == t)
            out.append(f"s_waitcnt lgkmcnt({min(len(lseq) - 1 - idx, 15)})")
            continue
        if x.startswith("ds_"): lseq.append(x.split(";@")[1] if ";@" in x else "")
        if x.startswith("WAITVM"):
            p = x.split(None, 2)
            idx = max(i for i, t in enumerate(seq) if t == p[1])
            n = min(len(seq) - 1 - idx, 63)
            out.append(f"s_waitcnt vmcnt({n})" + (" " + p[2] if len(p) > 2 else ""))
            continue
        if not (x.endswith(":") or x.startswith(".") or x.startswith(";")) and kind(x) == "vm" and not x.endswith(";@skip"):
            seq.append(x.split(";@")[1] if ";@" in x else "")
        if not x.startswith("buffer_dummy"): out.append(x.split(" ;@")[0])
    return out

def kdma(cfg, slot, so="s33"):
    return [f"s_add_u32 m0, s40, {16384*slot}"] + [dma(KDA + pp, SK, so, 1024 * pp, cfg.kvflags) for pp in range(4)]
def vdma(cfg, slot, so="s33"):
    return [f"s_add_u32 m0, s40, {65536+16384*slot}"] + [dma(VDA + (pp & 1), SV, so, 1024 * pp, cfg.kvflags) for pp in range(4)]
ADV = "s_add_u32 s33, s33, 16384"
def piece(cfg, gp, setm0, guard=False):
    sg, kv, pp = gp // 8, (gp % 8) // 4, gp % 4
    grp = (vdma if kv else kdma)(cfg, sg & 3)
    o = ([grp[0]] if pp == 0 or setm0 else []) + tag([grp[1 + pp]], f"seg{sg}" + ("k" if kv == 0 else ""))
    if gp % 8 == 7:
        o += [ADV]
        if guard: o += [f"s_cmp_lt_u32 s33, {KVBYTES}", f"s_cselect_b32 s{SK+2}, {KVBYTES}, 0"]
    return o
def wdma(cfg, t):
    return [x + f" ;@w{t}" for x in [f"s_add_u32 s42, s41, {t}", "s_bfe_u32 s42, s42, 0x50000", "s_xor_b32 s42, s42, s37", "s_mul_i32 s42, s42, 40960", f"s_add_u32 m0, s40, {16384*UNIT[t%10]}"]] + \
        tag([dma(WD + pp, SWO, "s42", 1024 * pp, cfg.bflags) for pp in range(4)], f"w{t}")
def kread(buf, slot, th, kt, ks):
    return f"ds_read_b128 {ar(KF(buf,kt,ks),4)}, v{KRA+ks} offset:{16384*slot+8192*th+4096*kt}"
def vread(buf, slot, th, dt, e):
    return f"ds_read_b64_tr_b16 {ar(VF(buf,dt)+2*e,2)}, v{VRA+dt} offset:{16384*slot+8192*th+4096*e}"

def qk(u, kb, czero=False, sl=None):
    m = []
    for kt in range(2):
        d = vr(S_(u if sl is None else sl, kt), 4)
        for ks in range(4):
            c = ("0" if czero else vr(NM(u), 4)) if ks == 0 else d
            m.append(f"{MF} {d}, {ar(KF(kb,kt,ks),4)}, {ar(Q_(u,ks),4)}, {c}")
    return m
LA = {0: 18, 1: 19}
def pv(u, vb, czero=False, sl=None, lsum=True):
    m = []
    p = vr(P_(u if sl is None else sl), 4)
    for dt in range(8):
        d = vr(O_(u, dt), 4)
        m.append(f"{MF} {d}, {ar(VF(vb,dt),4)}, {p}, {'0' if czero else d}")
    d = ar(L_(u), 4)
    if lsum: m.append(f"{MF} {d}, {ar(ONES,4)}, {p}, {'0' if czero else d}")
    return m
def sm_half(q, g0, u, kt, add=False):
    s = S_(u, kt)
    for r in range(4):
        if add: q.put(g0 + 2 * r + 1, f"v_add_f32 v{LA[u]}, v{LA[u]}, v{s+r}")
        q.put(g0 + 2 * r, f"v_exp_f32 v{s+r}, v{s+r}")
        if r & 1: q.put(g0 + 2 * r + 1, f"v_cvt_pk_bf16_f32 v{P_(u)+2*kt+r//2}, v{s+r-1}, v{s+r}")

def attn_tile(cfg, q, j, mode="loop"):
    kb = vb = j & 1
    slot, th = (j >> 1) & 3, j & 1
    nslot, nth = ((j + 1) >> 1) & 3, (j + 1) & 1
    z = mode == "first"
    addu = cfg.addu if mode == "loop" else ()
    groups = [qk(0, kb), pv(2, vb ^ 1, z), qk(1, kb), pv(3, vb ^ 1, z), qk(2, kb), pv(0, vb, lsum=0 not in addu), qk(3, kb), pv(1, vb, lsum=1 not in addu)]
    st = [q.add(g) for g in groups]; st.append(len(q.m))
    sm_half(q, st[0], 3, 1)
    for u in range(3):
        sm_half(q, st[2 * u + 1], u, 0, u in addu)
        sm_half(q, st[2 * u + 2], u, 1, u in addu)
    sm_half(q, st[7], 3, 0)
    vr_ = [vread(vb, slot, th, dt, e) for dt in range(8) for e in range(2)]
    NV = 6 if 0 in cfg.addu else 0
    if 0 in addu: pos = [st[0] + k for k in (1, 3, 5, 5, 7)] + [st[1] + k for k in (1, 5, 8, 8)] + [st[2] + 5]
    else: pos = [st[0] + k for k in (1, 3, 5, 5, 7)] + [st[1] + k for k in (1, 1, 3, 5, 5, 7, 8)] + [st[2] + k for k in (1, 3, 5, 5)]
    for p, r in zip(pos, vr_[16 - len(pos):]): q.put(p, r)
    mid = st[4] - 1
    if j & 1:
        if mode == "loop": q.put(mid, f"s_waitcnt vmcnt({16-cfg.lag}) lgkmcnt(0)")
        else: q.put(mid, f"WAITVM seg{(j+1)//2}{'k' if j == 29 and cfg.split15 else ''} lgkmcnt(0)")
        q.put(mid, "s_barrier")
    else:
        q.put(mid, "s_waitcnt lgkmcnt(0)")
    kr_ = [kread(kb ^ 1, nslot, nth, kt, ks) for kt in range(2) for ks in range(4)]
    if 1 in addu: pos = [st[4] + 5] + [st[5] + k for k in (1, 1, 3, 5, 5, 7)] + [st[6] + 1]
    else: pos = [st[4] + k for k in (1, 3, 5, 7)] + [st[5] + k for k in (1, 3, 5, 7)]
    for p, r in zip(pos, kr_): q.put(p, r)
    if NV and mode != "final":
        nvr = [vread(vb ^ 1, nslot, nth, dt, e) for dt in range(8) for e in range(2)][:NV]
        for p, r in zip([st[6] + 3, st[6] + 5, st[6] + 5, st[6] + 7, st[7] + 1, st[7] + 1], nvr): q.put(p, r)
        q.put(st[8] - 2, f"s_waitcnt lgkmcnt({NV})")
    else:
        q.put(st[8] - 2 if j != 29 else st[7], "s_waitcnt lgkmcnt(0)")
    dpos = [st[0] + 1, st[2] + 1, st[4] + 1, st[6] + 1]
    for k in range(4):
        gp = 4 * j + 26 + k - cfg.lag
        if mode == "first" and k < 2: continue
        if mode == "final":
            if gp < 128: q.place(piece(cfg, gp, True), [[st[0] + 1, st[0] + 5, st[1] + 1, st[1] + 3][k] if cfg.wsched in (0, 2) else dpos[k]])
            continue
        q.place(piece(cfg, gp, False, cfg.lag < 2), [dpos[k]])
    return st

def rowmax_l(t, t2):
    return [f"v_mov_b32 v{t2}, v{t}", "s_nop 1", f"v_permlane32_swap_b32 v{t}, v{t2}", f"v_max_f32 v{t}, v{t}, v{t2}",
            f"v_mov_b32 v{t2}, v{t}", "s_nop 1", f"v_permlane16_swap_b32 v{t}, v{t2}", f"v_max_f32 v{t}, v{t}, v{t2}"]

def scale_pack(cfg, b0, t, mul, pk):
    o = []
    if pk: o += [f"v_pk_mul_f32 {vr(b0+2*i,2)}, {vr(b0+2*i,2)}, {mul[1]}" for i in range(4)]
    else: o += [f"v_mul_f32 v{b0+i}, {mul[0]}, v{b0+i}" for i in range(8)]
    o += [f"v_cvt_pk_bf16_f32 v{t+i}, v{b0+2*i}, v{b0+2*i+1}" for i in range(4)]
    return o

def gen(cfg):
    if cfg.wsched == 2: UNIT[:] = UNIT2
    if cfg.epark: WBLK[:] = WBLK2
    WBLK.extend([-224, -208, -192, -176][:cfg.R - 16])
    assert 112 + 20 * cfg.DO <= 240 - 16 * (cfg.R - 16)
    a = Asm()
    a("s_cmp_ge_u32 s2, 256")
    a("s_cbranch_scc1 L_end")
    a("s_mov_b32 s35, 0")
    a("L_restart:")
    stamp(a, cfg, "start")
    a("s_load_dwordx4 s[4:7], s[0:1], 0")
    a("s_load_dwordx4 s[44:47], s[0:1], 16")
    a("v_lshrrev_b32 v2, 6, v0")
    a("v_and_b32 v1, 63, v0")
    a("v_readfirstlane_b32 s3, v2")
    a("s_and_b32 s50, s2, 7")
    a("s_lshr_b32 s51, s2, 3")
    a("s_and_b32 s52, s51, 3")
    a("s_lshr_b32 s53, s51, 2")
    a("s_bfe_u32 s28, s2, 0x10000")
    a("s_lshl2_add_u32 s28, s28, s52")
    a("s_lshr_b32 s54, s50, 1")
    a("s_lshl3_add_u32 s29, s54, s53")
    a("s_add_u32 s52, s52, s53")
    a("s_and_b32 s52, s52, 1")
    a("s_mul_i32 s32, s52, 5")
    a("s_add_u32 s54, s54, s50")
    a("s_and_b32 s54, s54, 1")
    a("s_lshl1_add_u32 s32, s54, s32")
    a("s_lshl_b32 s30, s32, 7")
    a("s_lshl_b32 s31, s32, 19")
    a("s_lshl_b32 s40, s3, 12")
    a("s_lshl1_add_u32 s36, s40, %d" % XBASE[0][0])
    a("s_add_u32 s39, s40, %d" % WWIN)
    a("v_lshrrev_b32 v3, 4, v1")
    a("v_lshrrev_b32 v4, 3, v1")
    a("v_and_b32 v5, 7, v1")
    a("v_and_b32 v2, 15, v1")
    a("s_mul_i32 s52, s3, %d" % (64 * 1280))
    a("v_mul_u32_u24 v8, 1280, v4")
    a("v_xor_b32 v9, v3, v5")
    a("v_lshlrev_b32 v9, 4, v9")
    a(f"v_add3_u32 v{XDA}, v9, s52, v8")
    a(f"v_xor_b32 v17, 64, v{XDA}")
    for pp in range(1, 8):
        a(f"v_add_u32 v{XDA+pp}, {10240*pp-1024*(pp&3)}, v{17 if pp & 1 else XDA}")
    a("s_lshl_b32 s52, s3, 17")
    a("v_lshlrev_b32 v8, 13, v3")
    a("v_and_b32 v9, 1, v3")
    a("v_lshrrev_b32 v10, 1, v3")
    a("v_lshl_or_b32 v9, v10, 2, v9")
    a("v_xor_b32 v9, v9, v2")
    a("v_lshlrev_b32 v9, 4, v9")
    a(f"v_add3_u32 v{WDA}, v9, s52, v8")
    a(f"v_xor_b32 v17, 128, v{WDA}")
    for pp in range(1, 4):
        a(f"v_add_u32 v{WDA+pp}, {32768*pp-1024*pp}, v{17 if pp >> 1 else WDA}")
    a("s_mul_i32 s52, s28, 307200")
    a("s_lshl_b32 s53, s29, 8")
    a.ext(srd(SX, 4, "s52", 307200)[2:] + srd(SW, 46, "s53", 640 * 8192 - 31 * 256)[2:])
    a("s_waitcnt lgkmcnt(0)")
    stamp(a, cfg, "kernarg")
    a.ext(srd(SX, 4, "s52", 307200)[:2] + srd(SW, 46, "s53", 0)[:2])

    def qstage(c):
        bf = c % 3
        o = [f"s_mov_b32 m0, s{36+bf}"]
        o += [dma(XDA + pp, SX, "s30", 1024 * pp, cfg.xflags) for pp in range(4)]
        o += [f"s_add_u32 m0, s{36+bf}, 4096"]
        o += [dma(XDA + 4 + pp, SX, "s30", 1024 * pp, cfg.xflags) for pp in range(4)]
        o += [f"s_add_u32 m0, s39, {WOFF[bf]}"]
        o += [dma(WDA + pp, SW, "s31", 1024 * pp, cfg.xflags) for pp in range(4)]
        o += ["s_add_u32 s32, s32, 1", "s_cmp_eq_u32 s32, 10", "s_cselect_b32 s32, 0, s32", "s_lshl_b32 s30, s32, 7", "s_lshl_b32 s31, s32, 19"]
        return tag(o, f"c{c}")
    a.ext(with_nop(qstage(0)))
    a("s_load_dwordx2 s[48:49], s[0:1], 56")
    if cfg.cwarm:
        a("s_getpc_b64 s[54:55]")
        a("L_cbase:")
        a("s_lshl2_add_u32 s52, s51, s3")
        a(f"s_mul_i32 s52, s52, {5 if cfg.w3 else 3}")
        a(f"v_min_u32 v18, {4 if cfg.w3 else 2}, v1")
        a("v_add_u32 v18, s52, v18")
        a("v_lshlrev_b32 v18, 7, v18")
        a("v_min_u32 v18, L_exact-L_cbase, v18")
        a("v_mov_b32 v19, s55")
        a("v_add_co_u32 v18, vcc, s54, v18")
        a("v_addc_co_u32 v19, vcc, 0, v19, vcc")
        a("global_load_dword v20, v[18:19], off")
    a("s_mov_b32 s33, s40")
    a("s_and_b32 s52, s3, 1")
    a("s_lshl_b32 s52, s52, 13")
    a("s_cmp_ge_u32 s3, 2")
    for bf in range(1, 3):
        a(f"s_mov_b32 s53, {XBASE[bf][0]}")
        a(f"s_cselect_b32 s{36+bf}, {XBASE[bf][1]}, s53")
    for bf in range(1, 3):
        a(f"s_add_u32 s{36+bf}, s{36+bf}, s52")
    a("v_bfe_u32 v6, v1, 2, 2")
    a("v_and_b32 v7, 3, v1")
    if cfg.c1first: a.ext(with_nop(qstage(1)))
    a("s_waitcnt lgkmcnt(0)")
    if cfg.sig == "line":
        a("s_lshl_b32 s52, s28, 5")
        a("s_add_u32 s52, s52, s29")
        a("s_lshl_b32 s52, s52, 7")
        a(f"s_add_u32 s52, s52, {FOFF}")
        a("v_mov_b32 v18, s52")
        a("v_mov_b32 v19, 0")
        a("s_mov_b64 exec, 1")
        a("global_store_dword v18, v19, s[48:49] sc1")
        a("s_mov_b64 exec, -1")
        a("v_and_b32 v0, 31, v1")
        a("v_lshlrev_b32 v0, 3, v0")
    a("s_load_dwordx4 s[56:59], s[0:1], 32")
    a("s_lshl_b32 s52, s28, 5")
    a("s_add_u32 s52, s52, s29")
    a("s_lshl_b32 s52, s52, 18")
    a.ext(srd(SK, 6, "s52", KVBYTES))
    a.ext(srd(SV, 44, "s52", KVBYTES))
    a("s_mul_i32 s52, s28, %d" % (15 * 131072))
    a.ext(srd(SO, 48, "s52", 15 * 131072))
    a("s_load_dwordx2 s[46:47], s[0:1], 48")
    a("v_lshlrev_b32 v10, 8, v3")
    for pp in range(4):
        a(f"v_add_u32 v9, {4*pp}, v3")
        a("v_xor_b32 v9, v9, v2")
        a(f"v_lshl_add_u32 v{KDA+pp}, v9, 4, v10")
    for pp in range(2):
        a(f"v_add_u32 v9, {4*pp}, v3")
        a("v_lshlrev_b32 v9, 1, v9")
        a("v_xor_b32 v9, v9, v2")
        a(f"v_lshl_add_u32 v{VDA+pp}, v9, 4, v10")
    a("v_lshrrev_b32 v9, 1, v2")
    for s in range(2):
        a(f"v_or_b32 v8, {4*s}, v3")
        a("v_xor_b32 v8, v8, v9")
        a("v_lshlrev_b32 v8, 4, v8")
        a("v_lshl_add_u32 v8, v2, 7, v8")
        for bf in range(3):
            a(f"v_add_u32 v{XRA+2*bf+s}, s{36+bf}, v8")
    a("v_lshrrev_b32 v11, 1, v7")
    a("v_and_b32 v12, 1, v7")
    a("v_lshlrev_b32 v12, 3, v12")
    a("v_and_b32 v9, 1, v6")
    a("v_lshrrev_b32 v10, 1, v6")
    a("v_lshl_or_b32 v9, v10, 2, v9")
    a("v_and_b32 v10, 1, v3")
    a("v_lshl_or_b32 v9, v10, 3, v9")
    a("v_lshl_or_b32 v9, v11, 1, v9")
    a("v_lshl_add_u32 v13, v3, 3, v6")
    a("v_lshl_add_u32 v13, v13, 8, v12")
    a(f"v_add_u32 v13, {WWIN}, v13")
    for dt in range(8):
        a(f"v_xor_b32 v8, {4*(dt>>1)+(dt&1)}, v9")
        a(f"v_lshl_add_u32 v{WRA+dt}, v8, 4, v13")
    a("v_lshl_or_b32 v9, v10, 2, v6")
    a("v_lshl_or_b32 v9, v9, 1, v11")
    a("v_lshl_add_u32 v14, v3, 2, v6")
    a("v_lshl_add_u32 v14, v14, 8, v12")
    a("v_add_u32 v14, 65536, v14")
    for dt in range(8):
        a(f"v_xor_b32 v8, {2*dt}, v9")
        a(f"v_lshl_add_u32 v{VRA+dt}, v8, 4, v14")
    for ks in range(4):
        a(f"v_or_b32 v8, {4*ks}, v3")
        a("v_xor_b32 v8, v8, v2")
        a("v_lshlrev_b32 v8, 4, v8")
        a(f"v_lshl_add_u32 v{KRA+ks}, v2, 8, v8")
    for i in range(4):
        a(f"v_mov_b32 v{MTR+i}, 0xff800000")
    a("v_lshlrev_b32 v15, 4, v1")
    a(f"v_and_b32 v8, {cfg.tl-1}, v1")
    a(f"v_lshrrev_b32 v9, {int(math.log2(cfg.tl))}, v1")
    a("v_lshlrev_b32 v9, 14, v9")
    a("v_lshl_add_u32 v219, v8, 7, v9")
    a("v_lshlrev_b32 v9, 1, v3")
    a("v_xor_b32 v9, v9, v5")
    a("v_lshlrev_b32 v9, 4, v9")
    a("v_mul_u32_u24 v8, 1280, v4")
    a("v_add_u32 v8, v8, v9")
    for pp in range(4):
        a(f"v_add_u32 v{WD+pp}, {pp*9216}, v8")
    a("v_lshl_add_u32 v14, v3, 2, v6")
    a("v_bfe_u32 v13, v14, 1, 2")
    a("v_lshl_or_b32 v13, v13, 1, v11")
    a("v_lshl_add_u32 v14, v14, 7, v12")
    a("v_add_u32 v14, s40, v14")
    for nt in range(4):
        a(f"s_add_u32 s53, s3, {nt}")
        a("s_and_b32 s53, s53, 3")
        a("s_lshl_b32 s53, s53, 1")
        a("v_xor_b32 v16, s53, v13")
        a(f"v_lshl_add_u32 v{WRL[0][nt]}, v16, 4, v14")
        a(f"v_add_u32 v{WRL[1][nt]}, 65536, v{WRL[0][nt]}")
        a(f"v_add_u32 v{WRL[2][nt]}, 131072, v{WRL[0][nt]}")
    for i in range(5): a(f"v_add_u32 v{OAL[i]}, {131072*i}, v15")
    a("s_min_u32 s51, s51, 29")
    a("s_cmp_ge_u32 s51, 15")
    a("s_cselect_b32 s52, 1, 0")
    a("s_cselect_b32 s53, 15, 0")
    a("s_sub_u32 s53, s51, s53")
    a("s_and_b32 s43, s50, 6")
    a("s_add_u32 s43, s43, s52")
    a("s_mul_i32 s54, s53, 52")
    a("s_lshr_b32 s54, s54, 8")
    a("s_mul_i32 s41, s54, 5")
    a("s_sub_u32 s53, s53, s41")
    a("s_lshl_b32 s34, s53, 2")
    a("s_and_b32 s55, s50, 1")
    a("s_mul_i32 s55, s55, 5")
    a("s_add_u32 s55, s55, s53")
    a("s_mul_i32 s52, s52, 15")
    a("s_add_u32 s41, s41, s52")
    if cfg.rA:
        a(f"s_mul_i32 s53, s53, {cfg.rA}")
        a("s_add_u32 s41, s41, s53")
    a("s_and_b32 s41, s41, 31")
    sc = f32(math.log2(math.e) / math.sqrt(128.0))
    if cfg.wpull:
        a("s_mul_i32 s52, s2, 160")
        a(f"s_mul_i32 s53, s3, {14 if cfg.wpull == 1 else 40}")
        a("s_add_u32 s52, s52, s53")
        a("v_add_u32 v218, s52, v1")
        a("v_lshlrev_b32 v218, 7, v218")
        a("v_mov_b32 v16, 0x7fffff80")
        a(f"v_cmp_gt_u32 vcc, {14 if cfg.wpull == 1 else 40}, v1")
        a("v_cndmask_b32 v255, v16, v218, vcc")
    if cfg.wl2:
        a("s_lshr_b32 s52, s2, 3")
        a("s_lshl_b32 s52, s52, 2")
        a("s_add_u32 s52, s52, s3")
        a("s_mul_i32 s52, s52, %d" % (32 * 1280))
        a("s_and_b32 s53, s50, 1")
        a("s_mul_i32 s53, s53, 640")
        a("s_add_u32 s52, s52, s53")
        a("v_mul_u32_u24 v16, 52, v1")
        a("v_lshrrev_b32 v16, 8, v16")
        a("v_mul_u32_u24 v17, 5, v16")
        a("v_sub_u32 v17, v1, v17")
        a("v_mul_u32_u24 v16, 1280, v16")
        a("v_lshl_add_u32 v16, v17, 7, v16")
        a("v_add_u32 v16, s52, v16")
        a("v_mov_b32 v17, 0x7fffff80")
        a("v_cmp_gt_u32 vcc, 15, v1")
        a("v_cndmask_b32 v255, v17, v16, vcc")
    a(f"s_mov_b32 s44, {sc}")
    a(f"s_mov_b32 s45, {sc}")
    if not cfg.c1first: a.ext(with_nop(qstage(1)))
    stamp(a, cfg, "issued")

    def qreads(c):
        bf = rb = c % 3
        o = []
        for s in range(2):
            o.append(f"ds_read_b128 {XF(rb,s,0)}, v{XRA+2*bf+s}")
        for dt in range(8):
            for s in range(2):
                for e in range(2):
                    o.append(f"ds_read_b64_tr_b16 {WF2(rb,s,dt,e)}, v{WRA+dt} offset:{WOFF[bf]+8192*s+1024*e}")
        for u in range(1, 4):
            for s in range(2):
                o.append(f"ds_read_b128 {XF(rb,s,u)}, v{XRA+2*bf+s} offset:{2048*u}")
        return o
    a("WAITVM c0 lgkmcnt(0)")
    a("s_barrier")
    stamp(a, cfg, "landed")
    r0 = qreads(0)
    if cfg.fast0: a.ext(r0[:14])
    else:
        a.ext(r0)
        a.ext(with_nop(qstage(2)))
    wp = ["s_mov_b32 s4, s56", "s_mov_b32 s5, s57", f"s_mov_b32 s6, {4096*1280}", "s_mov_b32 s7, 0x20000", "buffer_load_dword v218, v255, s[4:7], 0 offen"]
    if cfg.wpull == 2: a.ext(wp)
    a("s_waitcnt lgkmcnt(8)" if cfg.fast0 else "s_waitcnt lgkmcnt(0)")
    if cfg.w3:
        a("s_cmp_eq_u32 s3, 3")
        a("s_cbranch_scc1 L_w3")
        a("L_sec0:")
    q = Seq()
    per = []
    for c in range(10):
        rb = c % 3
        mf = []
        for u in range(4):
            for dt in range(8):
                d = vr(O_(u, dt), 4)
                for s in range(2):
                    mf.append(f"{MF} {d}, {WF(rb,s,dt)}, {XF(rb,s,u)}, {'0' if c == 0 and s == 0 else d}")
        p0 = q.add(mf); per.append(p0)
        for x in stamp_l(a, cfg, f"q{c+1}"): q.put(p0 + 63, "!" + x)
    BQ = {n: max(cfg.b1 + cfg.bsp * (n - 1), 64 * (n - 2)) for n in range(1, 10)}
    BQ[10] = BQ[9] + 44
    for n in range(1, 11):
        p = BQ[n]
        q.put(p, f"WAITVM c{n} lgkmcnt(0)" if n < 10 else "s_waitcnt lgkmcnt(0)"); q.put(p, "s_barrier")
        if n < 10:
            for i, r in enumerate(qreads(n)): q.put(p + 1 + (i * 3) // 4, r)
        if n + 2 < 10:
            q.place(qstage(n + 2), [p + 2 + (cfg.bsp * i) // 12 for i in range(12)])
        assert n == 1 or n == 10 or BQ[n + 1] < 64 * n, n
    q.put(63, "s_waitcnt lgkmcnt(0)")
    if cfg.fast0:
        for i, r in enumerate(r0[14:]): q.put(i // 2, r)
        for dt in range(1, 8):
            issued = min(40, 14 + 2 * (2 * dt - 1)); needed = 2 + 4 * (dt + 1)
            q.g[2 * dt - 1].insert(0, f"s_waitcnt lgkmcnt({min(15, issued - needed)})")
        q.g[15].insert(0, "s_waitcnt lgkmcnt(0)")
        q.place(qstage(2), [4 + i + i // 4 for i in range(12)])
    if cfg.wpull >= 3: q.place(wp, [per[cfg.wpull - 3] + 60])
    sw = [f"s_mov_b32 s52, {sum(v << (4*k) for k, v in enumerate(cfg.xs))}", "s_lshr_b32 s52, s52, s34", "s_and_b32 s37, s52, 15"]
    sw += ["s_mul_i32 s52, s3, %d" % (1024 * 1280), "s_lshl_b32 s53, s55, 7", "s_add_u32 s52, s52, s53"] + srd(SWO, 56, "s52", WOSZ) + \
         ["s_mul_i32 s52, s43, 15", "s_mul_i32 s53, s54, 5", "s_add_u32 s52, s52, s53", "s_lshl_b32 s52, s52, 17", "s_lshl_b32 s53, s3, 15",
          "s_add_u32 s52, s52, s53"] + srd(SOR, 48, "s52", ORSZ)
    if cfg.wpull == 1 or cfg.wl2: sw += ["s_mov_b32 s4, s56", "s_mov_b32 s5, s57", f"s_mov_b32 s6, {4096*1280}", "s_mov_b32 s7, 0x20000", "s_mov_b32 s38, 0"]
    i = per[8] + 2
    k = 0
    while k < len(sw):
        n = 2 if "s_addc" in sw[min(k + 1, len(sw) - 1)] else 1
        for x in sw[k:k + n]: q.put(i, x)
        k += n; i += 2
    p9 = per[9]
    def qepi(u):
        o = []
        for m in range(4):
            t = 16 + 4 * (m & 1)
            o += scale_pack(cfg, O_(u, 2 * m), t, ("s44", "s[44:45]"), cfg.pkmul)
            if m:
                tp = 16 + 4 * ((m - 1) & 1)
                o += [f"v_accvgpr_write_b32 a{Q_(u,m-1)+i}, v{tp+i}" for i in range(4)]
            o += [f"v_permlane16_swap_b32 v{t}, v{t+2}", f"v_permlane16_swap_b32 v{t+1}, v{t+3}"]
        o += [f"v_accvgpr_write_b32 a{Q_(u,3)+i}, v{20+i}" for i in range(4)]
        return o
    q.put(p9 + 31, "WAITVM seg0k" if cfg.split0 else "WAITVM seg0"); q.put(p9 + 31, "s_barrier")
    for x in stamp_l(a, cfg, "b0"): q.put(p9 + 31, "!" + x)
    k0r = [kread(0, 0, 0, kt, ks) for kt in range(2) for ks in range(4)]
    for i, r in enumerate(k0r): q.put(p9 + 32 + 2 * i, r)
    e = q.stream(qepi(0), p9 + 16 + 4, cap=4)
    e = q.stream(qepi(1), max(e, p9 + 32 + 4), cap=4)
    e = q.stream(qepi(2), max(e, p9 + 48 + 4), cap=4)
    q.put(p9 + 62, "s_waitcnt lgkmcnt(0)")
    lab = q.raw([])
    for x in stamp_l(a, cfg, "g0"): q.put(len(q.m) - 1, "!" + x)
    g0 = q.add(qk(0, 0, True))
    g1 = q.add(qk(1, 0, True))
    g2 = q.add(qk(2, 0, True))
    v0r = [vread(0, 0, 0, dt, e_) for dt in range(8) for e_ in range(2)]
    k1r = [kread(1, 0, 1, kt, ks) for kt in range(2) for ks in range(4)]
    if cfg.split0:
        for i, r in enumerate(k1r): q.put(g0 + i, r)
        q.put(g1 - 1, "!WAITVM seg0"); q.put(g1 - 1, "!s_barrier")
        for i, r in enumerate(v0r): q.put(g1 + i, r)
    else:
        for i, r in enumerate(v0r + k1r): q.put(g0 + i, r)
    e = q.stream(qepi(3), max(e, g0), cap=4)
    def fmax(u):
        s0 = S_(u, 0); t = NM(u)
        o = [f"v_max3_f32 v{t}, v{s0}, v{s0+1}, v{s0+2}", f"v_max3_f32 v{t+1}, v{s0+3}, v{s0+4}, v{s0+5}",
             f"v_max3_f32 v{t}, v{t}, v{s0+6}, v{s0+7}", f"v_max3_f32 v{t}, v{t}, v{t+1}, v{MTR+u}"]
        return o + [x for x in rowmax_l(t, t + 1) if "s_nop" not in x]
    def fexp(u, nexp):
        s0 = S_(u, 0); t = NM(u)
        o = [f"v_sub_f32 v{s0+r}, v{s0+r}, v{t}" for r in range(8)]
        o += [f"v_exp_f32 v{s0+r}, v{s0+r}" for r in range(nexp)]
        o += [f"v_sub_f32 v{NM(u)+i}, 0, v{t}" for i in (1, 2, 3, 0)]
        o += [f"v_cvt_pk_bf16_f32 v{P_(u)+r//2}, v{s0+r}, v{s0+r+1}" for r in range(0, nexp, 2)]
        return o
    ones = [f"v_mov_b32 v{LA[u]}, 0" for u in cfg.addu] + ["v_mov_b32 v27, 0x3f803f80"] + [f"v_accvgpr_write_b32 a{ONES+i}, v27" for i in range(4)]
    e = q.stream(merge(fmax(0), fmax(1), ones), max(e, g2 + 1), cap=4)
    for x in stamp_l(a, cfg, "g3"): q.put(len(q.m) - 1, "!" + x)
    if cfg.epark:
        q.put(len(q.m) - 1, "!s_cmp_lg_u32 s35, 0"); q.put(len(q.m) - 1, "!s_cbranch_scc1 L_exact")
    g3 = q.add(qk(3, 0, True))
    e = q.stream(merge(fexp(0, 8), fmax(2)), g3, cap=6)
    q.raw(["s_waitcnt lgkmcnt(0)"])
    for x in stamp_l(a, cfg, "g4"): q.put(len(q.m) - 1, "!" + x)
    g4 = q.add(pv(0, 0, True))
    e = q.stream(merge(fexp(1, 8), fmax(3)), g4, cap=5)
    for x in stamp_l(a, cfg, "g5"): q.put(len(q.m) - 1, "!" + x)
    g5 = q.add(pv(1, 0, True))
    e = q.stream(merge(fexp(2, 8), fexp(3, 4)), g5, cap=7)
    for x in stamp_l(a, cfg, "tile1"): q.raw([x])
    st1 = attn_tile(cfg, q, 1, "first")
    if cfg.sig == "line":
        arr = ["s_and_b32 s52, s2, 31", "s_lshl_b32 s52, s52, 3", "v_mov_b32 v16, s52", "v_mov_b32 v17, 1", "s_cmp_lg_u32 s3, 0", "s_cbranch_scc1 L_noarr",
               "s_mov_b64 exec, 1", "global_atomic_add v16, v17, s[46:47] sc1 ;@skip", "s_mov_b64 exec, -1", "L_noarr:"]
        for x in arr: q.put(st1[8] - 1, "!" + x)
    kv = []
    NP = 32 - cfg.lag
    for gp in range(NP): kv += piece(cfg, gp, False)
    pos = []
    i = BQ[7] + cfg.bsp + 3; acc = cfg.kvpace
    free_at = [0, BQ[8], BQ[8], BQ[8], BQ[9], BQ[9], BQ[9], BQ[10]]
    while len(pos) < NP:
        ok = q.m[i] and q.m[i - 1] and q.m[i + 1] and (q.slots(i) < 2 or i > p9 + 16) and i > free_at[len(pos) // 4]
        if ok and acc >= cfg.kvpace:
            pos.append(i); acc = 0
        acc += max(4, 2 + q.slots(i)) / 4
        i += 1
    assert pos[3 if cfg.split0 else 7] < p9 + 31 and pos[7] < g1 - 2 and pos[-1] < st1[4] - 2, (pos, p9, st1)
    if "nokv23" in cfg.exp: kv = [("buffer_dummy ;@" + x.split(";@")[1]) if (x.endswith("seg2") or x.endswith("seg3")) else x for x in kv]
    for k, (c, sg) in enumerate(cfg.touch):
        q.put(per[c] + cfg.tpos - 1, f"s_add_u32 s53, s40, {16384*sg}")
        q.put(per[c] + cfg.tpos, f"buffer_load_dword v255, v219, s[{SV if cfg.tkv[k % len(cfg.tkv)] == 'v' else SK}:{(SV if cfg.tkv[k % len(cfg.tkv)] == 'v' else SK)+3}], s53 offen {cfg.tflags}".rstrip())
    q.place(kv, pos)
    q.emit(a)
    a.l = fix(resolve_waits(a.l))
    a("s_mov_b32 s34, 3")
    a(".p2align 6")
    a("L_loop:")
    body0 = len(a.l)
    q = Seq()
    def loopstamp(q, p, pre):
        if cfg.stamps and pre in cfg.only.split(","):
            o = ["s_memtime s[4:5]", "s_memrealtime s[6:7]", "s_waitcnt lgkmcnt(0)"]
            for it in range(3):
                i = len(a.stamps); a.stamps.append(f"{pre}{it}")
                o += [f"s_cmp_eq_u32 s34, {3-it}", f"s_cselect_b32 s{60+4*i}, s4, s{60+4*i}", f"s_cselect_b32 s{62+4*i}, s6, s{62+4*i}"]
            for x in o: q.put(p, x)
    for j in range(2, 10):
        st = attn_tile(cfg, q, j)
        if j == 2: loopstamp(q, st[4] - 1, "ia")
        if j == 6: loopstamp(q, st[4] - 1, "ib")
        if cfg.wl2 and j % 2 == 0:
            q.put(st[3] + 1, f"buffer_load_dword v16, v255, s[4:7], s38 offen {cfg.wl2f}".rstrip())
            q.put(st[3] + 2, f"s_add_u32 s38, s38, {3*1280}")
        if cfg.wpull == 1 and j == 4:
            q.put(st[3] + 1, "buffer_load_dword v16, v255, s[4:7], s38 offen")
            q.put(st[3] + 2, f"s_add_u32 s38, s38, {56*128}")
        if j in (5, 7):
            for x in reversed(stamp_l(a, cfg, f"w{j}a")): q.g[st[4] - 1].insert(0, x)
            for x in stamp_l(a, cfg, f"w{j}b"): q.put(st[4] - 1, x)
        if j == 6:
            for x in reversed(stamp_l(a, cfg, f"d{j}a")): q.g[st[2] + 1].insert(0, x)
            for x in stamp_l(a, cfg, f"d{j}b"): q.put(st[2] + 1, "!" + x)
    if "lnobar" in cfg.exp: q.g = [[x for x in gp if x != "s_barrier"] for gp in q.g]
    if "lnodma" in cfg.exp: q.g = [[x for x in gp if kind(x.lstrip("!")) != "vm"] for gp in q.g]
    if "lnods" in cfg.exp: q.g = [[x for x in gp if kind(x.lstrip("!")) != "ds"] for gp in q.g]
    if "lnowait" in cfg.exp: q.g = [[x for x in gp if not (x.startswith("s_waitcnt") and "s_cmp_eq_u32 s34, 3" not in gp)] for gp in q.g]
    if "lnocvt" in cfg.exp: q.g = [[x for x in gp if not x.startswith("v_cvt")] for gp in q.g]
    q.put(-3, "s_sub_u32 s34, s34, 1")
    q.put(-1, "s_cmp_lg_u32 s34, 0"); q.put(-1, "s_cbranch_scc1 L_loop")
    q.emit(a)
    a.l = a.l[:body0] + [x.split(" ;@")[0] for x in a.l[body0:]]
    body = a.l[body0:]
    b = Asm(); b.stamps = a.stamps
    for gp in range(104, 130 - cfg.lag): b(f"buffer_dummy ;@seg{gp//8}" + ("k" if gp % 8 < 4 else ""))
    q = Seq()
    if "nowo" in cfg.exp: b(f"s_mov_b32 s{SWO+2}, 0")
    for x in stamp_l(b, cfg, "t26"): b(x)
    sts = {j: attn_tile(cfg, q, j, "final") for j in range(26, 30)}
    def wpos(st, half):
        return [st[4*half] + 1, st[4*half+1] + 8 if half == 0 else st[5] + 1, st[4*half+2] + (7 if half == 0 else 1), st[4*half+3] + 1]
    if cfg.wsched == 0:
        for j, (t0, t1) in {26: (0, 1), 27: (2, 3), 28: (4, 5), 29: (10, 6)}.items():
            st = sts[j]
            q.place(wdma(cfg, t0), [st[1] + 8, st[2] + 7, st[3] + 1, st[3] + 5])
            q.place(wdma(cfg, t1), [st[5] + 8, st[6] + 1, st[6] + 5, st[7] + 5])
    elif cfg.wsched >= 3:
        pass
    elif cfg.wsched == 2:
        st = sts[26]
        q.place(wdma(cfg, 0), [st[2] + 7, st[4] + 1, st[5] + 8, st[7] + 1])
        for j, (t0, t1) in {27: (1, 5), 28: (2, 6), 29: (3, 7)}.items():
            st = sts[j]
            q.place(wdma(cfg, t0), [st[0] + 5, st[1] + 8, st[2] + 7, st[3] + 5])
            q.place(wdma(cfg, t1), [st[5] + 8, st[6] + 1, st[6] + 5, st[7] + 5])
    else:
        st = sts[27]
        q.place(wdma(cfg, 0), [st[5] + 8, st[6] + 1, st[6] + 5, st[7] + 5])
        st = sts[28]
        q.place(wdma(cfg, 1), [st[0] + 5, st[0] + 7, st[1] + 1, st[1] + 3])
        q.place(wdma(cfg, 2), [st[2] + 1, st[2] + 7, st[3] + 1, st[3] + 5])
        q.place(wdma(cfg, 3), [st[5] + 8, st[6] + 1, st[6] + 5, st[7] + 5])
        st = sts[29]
        q.place(wdma(cfg, 4), [st[0] + 5, st[0] + 7, st[1] + 1, st[1] + 3])
        q.place(wdma(cfg, 5), [st[2] + 1, st[2] + 3, st[2] + 5, st[2] + 7])
        q.place(wdma(cfg, 10), [st[3] + 5, st[3] + 7, st[4] + 1, st[4] + 3])
        q.place(wdma(cfg, 6), [st[5] + 8, st[6] + 1, st[6] + 5, st[7] + 5])
    if cfg.sig == "line": q.put(sts[26][3] + 1, "global_load_dword v255, v0, s[46:47] sc1 ;@arr")
    if cfg.tlb:
        so = ["s_mul_i32 s52, s43, 240", "s_mul_i32 s53, s54, 80", "s_add_u32 s52, s52, s53", "s_mul_i32 s52, s52, 1280", "s_lshl_b32 s53, s55, 7", "s_add_u32 s52, s52, s53"]
        st = sts[27]
        for k, x in enumerate(so): q.g[st[4] + 2 + k].insert(0, x)
        sd = srd(SOUT, 58, "s52", 79 * 1280 + 128)
        q.g[st[4] + 8][0:0] = sd[:2]; q.g[st[5]][0:0] = sd[2:]
        q.put(st[5] + 1, f"buffer_load_dword v16, off, s[{SOUT}:{SOUT+3}], 0")
        q.put(st[5] + 3, f"buffer_load_dword v16, off, s[{SO}:{SO+3}], 0")
        q.put(st[5] + 5, f"buffer_load_dword v16, off, s[{SOR}:{SOR+3}], 0")
    if cfg.wsched < 3:
        st = sts[28]
        q.g[st[5] + 8].insert(0, "WAITVM w0")
        q.g[sts[29][4]].insert(0, "WAITVM w1")
        for p, r in zip([st[5] + 8, st[6] + 1, st[6] + 3, st[6] + 5, st[6] + 7, st[7] + 1, st[7] + 1, st[7] + 3], wreads(0)): q.put(p, r)
        k = q.g[st[8] - 2].index("s_waitcnt lgkmcnt(0)"); q.g[st[8] - 2][k] = "s_waitcnt lgkmcnt(8)"
        st = sts[29]
        q.put(st[1] + 7, "s_waitcnt lgkmcnt(10)")
        for p, r in zip([st[4] + 1, st[4] + 5, st[5] + 1, st[5] + 5, st[5] + 8, st[6] + 1, st[6] + 3, st[6] + 5], wreads(1)): q.put(p, r)
        k = q.g[st[7]].index("s_waitcnt lgkmcnt(0)"); q.g[st[7]][k] = "s_waitcnt lgkmcnt(4)"
    st = sts[29]
    for p, r in zip([st[7] + k for k in (1, 1, 3, 5, 7, 8, 8)] + [st[8]], [kread(1, 3, 1, kt, ks) for kt in range(2) for ks in range(4)]):
        if p < st[8]: q.put(p, r)
        else: lastk = r
    for x in stamp_l(b, cfg, "t30"): q.put(len(q.m) - 1, "!" + x)
    if cfg.w3: q.put(len(q.m) - 1, "!L_sec1:")
    job = lambda k: (k >> 1, k & 1, k & 3)
    F = []
    for k in range(8):
        u, tb, sl = job(k)
        F.append(q.add(qk(u, tb, sl=sl)))
        if k < 2: F.append(q.add(pv(2 + k, 1)))
        else:
            u, tb, sl = job(k - 2); F.append(q.add(pv(u, tb, sl=sl)))
    for k in (6, 7):
        u, tb, sl = job(k); F.append(q.add(pv(u, tb, sl=sl)))
    F.append(len(q.m))
    sm_half(q, F[0], 3, 1)
    for k in range(8):
        sm_half(q, F[2 * k + 1], k & 3, 0); sm_half(q, F[2 * k + 2], k & 3, 1)
    q.put(F[0] + 1, lastk)
    v30 = [vread(0, 3, 0, dt, e) for dt in range(8) for e in range(2)]
    v31 = [vread(1, 3, 1, dt, e) for dt in range(8) for e in range(2)]
    if not cfg.split15:
        for p, r in zip([F[0] + k for k in (1, 3, 5, 5, 7)] + [F[1] + k for k in (1, 1, 3, 5, 5, 7)] + [F[2] + k for k in (1, 1, 3, 5, 5)], v30): q.put(p, r)
        q.put(F[1] + 8, "s_waitcnt lgkmcnt(10)")
        for p, r in zip([F[4] + k for k in (1, 1, 3, 5, 5, 7)] + [F[5] + k for k in (1, 1, 3, 5, 5, 7, 8, 8)] + [F[6] + k for k in (1, 1)], v31): q.put(p, r)
        q.put(F[4], "s_waitcnt lgkmcnt(0)")
        q.place(wdma(cfg, 11), [F[2] + 7, F[3] + 1, F[3] + 3, F[3] + 5])
        q.place(wdma(cfg, 7), [F[5] + 3, F[5] + 7, F[6] + 3, F[6] + 5])
    else:
        q.put(F[1] + 8, "WAITVM seg15 lgkmcnt(0)"); q.put(F[1] + 8, "s_barrier")
        for p, r in zip([F[2] + k for k in (1, 1, 3, 5, 5, 7)] + [F[3] + k for k in (1, 1, 3, 5, 5, 7, 8, 8)] + [F[4] + k for k in (1, 1)], v30): q.put(p, r)
        for p, r in zip([F[4] + k for k in (3, 5, 5, 7)] + [F[5] + k for k in (1, 1, 3, 5, 5, 7, 8, 8)] + [F[6] + k for k in (1, 1, 3, 3)], v31): q.put(p, r)
        q.put(F[5] - 1, "s_waitcnt lgkmcnt(3)")
        if cfg.wsched >= 3:
            pass
        elif cfg.wsched == 2:
            q.place(wdma(cfg, 4), [F[0] + 5, F[0] + 7, F[1] + 3, F[1] + 7])
            q.place(wdma(cfg, 10), [F[2] + 4, F[2] + 6, F[3], F[3] + 2])
            q.place(wdma(cfg, 11), [F[4], F[4] + 2, F[4] + 4, F[4] + 6])
        else:
            q.place(wdma(cfg, 11), [F[0] + 5, F[0] + 7, F[1] + 1, F[1] + 3])
            q.place(wdma(cfg, 7), [F[2], F[2] + 4, F[3] + 2, F[3] + 6])
    q.put(F[7] - 1, "s_waitcnt lgkmcnt(0)"); q.put(F[7] - 1, "s_barrier")
    issued = set(range(12))
    if cfg.wsched < 3:
        q.place(wdma(cfg, 8), [F[7] + 5, F[7] + 7, F[7] + 8, F[8] + 1])
        q.place(wdma(cfg, 9), [F[8] + 7, F[9] + 1, F[9] + 3, F[9] + 5])
    else:
        issued = set()
        free = {0: 0, 4: 0, 8: 0, 9: 0, 1: sts[27][4], 5: sts[27][4], 2: sts[29][4], 6: sts[29][4], 3: F[7], 7: F[7]}
        p = sts[26][4] + 1 + cfg.wdelay
        for t in range(cfg.wn):
            sp = cfg.wp if t < 5 else cfg.wp2
            p = max(p, free[UNIT[t]] + 6)
            ps = []
            for k in range(4):
                pp_ = p
                while t < 5 and q.slots(pp_) >= 2: pp_ += 1
                ps.append(pp_); p = max(p + sp, pp_ + (1 if k < 3 else 6))
            assert ps[-1] < F[18], (t, ps)
            q.place(wdma(cfg, t), ps); issued.add(t)
    if "nost" in cfg.exp: q.g[F[4]].insert(0, f"s_mov_b32 s{SO+2}, 0")
    def onorm(u, store=True):
        o = [f"v_accvgpr_read_b32 v16, a{L_(u)}"]
        if u in cfg.addu:
            t = LA[u]
            o += [f"v_mov_b32 v17, v{t}", f"v_permlane32_swap_b32 v{t}, v17", f"v_add_f32 v{t}, v{t}, v17",
                  f"v_mov_b32 v17, v{t}", f"v_permlane16_swap_b32 v{t}, v17", f"v_add_f32 v{t}, v{t}, v17", f"v_add_f32 v16, v16, v{t}"]
        o += ["v_cmp_ngt_f32 vcc, s36, v16", "v_rcp_f32 v16, v16", "s_or_b64 s[50:51], s[50:51], vcc", "v_mov_b32 v17, v16"]
        for m in range(4):
            t = O_(u, 0) + 4 * m
            o += scale_pack(cfg, O_(u, 2 * m), t, ("v16", "v[16:17]"), True)
            if store: o += ostore(u)[m:m + 1]
        if store: o += ostore(u)[4:]
        return o
    def ostore(u):
        return [f"buffer_store_dwordx4 {vr(O_(u,0)+4*m,4)}, v15, s[{SO}:{SO+3}], s30 offen offset:{1024*m} {cfg.oflags}".rstrip() + " ;@ost" for m in range(4)] + ["s_add_u32 s30, s30, 131072"]
    for k, x in enumerate([f"s_mov_b32 s36, {f32(cfg.lthr)}", "s_mov_b64 s[50:51], 0", "s_lshl_b32 s30, s3, 19", "s_lshl_b32 s31, s29, 12", "s_add_u32 s30, s30, s31"]):
        q.g[F[4] + 2 + k].insert(0, x)
    for k in (2, 4, 6, 8, 10, 12, 14, 16):
        for x in stamp_l(b, cfg, f"F{k}"): q.put(F[k] - 1, "!" + x)
    if cfg.epark:
        def epark(t, p0, refill_at):
            q.g[p0].insert(0, f"WAITVM w{t}")
            for k, r in enumerate(wreads(t)): q.put(p0 + 2 * (k // 2), r)
            if refill_at:
                q.place(wdma(cfg, t + 10), refill_at)
                q.g[refill_at[0]].insert(0, f"WAITLG p{t}")
        epark(2, F[7] + 1, [F[10] + 3, F[10] + 5, F[10] + 7, F[11] + 1])
        epark(3, F[9] + 1, [F[11] + 7, F[11] + 8, F[12] + 1, F[12] + 3])
        epark(5, F[11] + 2, [F[13] + 1, F[13] + 3, F[13] + 5, F[13] + 7])
        epark(6, F[13] + 2, [F[14] + 5, F[14] + 7, F[15] + 1, F[15] + 3])
        epark(7, F[14] + 1, [F[16] + 1, F[16] + 3, F[16] + 5, F[16] + 7])
        epark(4, F[15] + 2, [F[17] + 5, F[17] + 6, F[17] + 7, F[17] + 8])
        epark(8, F[16] + 2, None)
        epark(9, F[17] + 1, None)
    if cfg.early == 1:
        e = q.stream(onorm(0), F[8] + 4, cap=cfg.ncap)
        e = q.stream(onorm(1), max(e, F[12] + 4), cap=cfg.ncap)
        e = q.stream(onorm(2), max(e, F[16] + 4), cap=cfg.ncap + 2)
    if cfg.early >= 2:
        e = q.stream(onorm(0, False), F[8] + 4, cap=cfg.ncap)
        e = q.stream(onorm(1, False), max(e, F[12] + 4), cap=cfg.ncap)
        e = q.stream(onorm(2, False), max(e, F[16] + 4), cap=cfg.ncap + 2)
        if cfg.early == 3:
            for k, x in enumerate(ostore(0) + ostore(1)): q.put(min(F[16] + 8 + k, F[18] - 1), x if kind(x) == "vm" else "!" + x)
    q.emit(b)
    if cfg.early == 2: b.ext(ostore(0) + ostore(1) + ostore(2))
    if cfg.early == 3: b.ext(ostore(2))
    if not cfg.early: b.ext(onorm(0) + onorm(1) + onorm(2))
    stamp(b, cfg, "loopend")
    if "nowo" in cfg.exp: b(f"s_mov_b32 s{SWO+2}, {WOSZ}")
    def park(t): return [f"WAITVM w{t}"] + wreads(t)
    def refill(t): return with_nop(wdma(cfg, t + 10))
    DU = UNIT[9 if cfg.epark else 2]
    if cfg.wsched >= 3:
        DU = UNIT[0] if cfg.wn else UNIT[9]
        late = [t for t in range(10) if t not in issued]
        for t in late[:3]:
            if UNIT[t] != DU: b.ext(with_nop(wdma(cfg, t))); issued.add(t)
        if cfg.wn: b.ext(park(0))
    elif cfg.epark: b.ext(park(10) + park(11))
    else: b.ext(park(2) + park(3))
    b.ext(onorm(3))
    stamp(b, cfg, "stored")
    if cfg.force_fb: b("s_mov_b64 s[50:51], -1")
    b("s_cmp_lg_u64 s[50:51], 0")
    b("s_cselect_b32 s52, 1, 0")
    b(f"s_add_u32 s53, s40, {16384*DU}")
    b("v_mov_b32 v16, s52")
    b("v_mov_b32 v17, s53")
    b("v_and_b32 v18, 3, v1")
    b("v_lshlrev_b32 v18, 12, v18")
    b(f"v_add_u32 v18, {16384*DU}, v18")
    b("s_waitcnt lgkmcnt(0)")
    b("ds_write_b32 v17, v16")
    if cfg.wsched >= 3: pass
    elif cfg.epark: b.ext(refill(8) + park(12) + park(13))
    else: b.ext(refill(3) + park(4) + park(5))
    b("s_waitcnt lgkmcnt(0)")
    b("s_barrier")
    b("ds_read_b32 v20, v18")
    parked = [0] if cfg.wsched >= 3 and cfg.wn else []
    if cfg.wsched >= 3:
        for t in range(1, min(cfg.wn, 6)): b.ext(park(t)); parked.append(t)
    elif cfg.epark: b.ext(refill(10))
    else: b.ext(refill(4) + park(6) + park(7))
    b("s_waitcnt lgkmcnt(0)")
    b("v_cmp_ne_u32 vcc, 0, v20")
    b("s_cmp_eq_u32 s35, 0")
    b("s_cselect_b64 s[52:53], vcc, 0")
    b("s_cmp_lg_u64 s[52:53], 0")
    b("s_cbranch_scc1 L_redo" if cfg.epark else "s_cbranch_scc1 L_exact")
    if not cfg.sigfirst: b.ext(park(8) + park(9) + park(10) + park(11))
    if cfg.sig == "line":
        b("s_lshl_b32 s52, s28, 5")
        b("s_add_u32 s52, s52, s29")
        b("s_lshl_b32 s52, s52, 7")
        b(f"s_add_u32 s52, s52, {FOFF}")
    else:
        b("s_lshl_b32 s52, s28, 2")
        b("s_lshr_b32 s53, s29, 3")
        b("s_add_u32 s52, s52, s53")
        b("s_lshl_b32 s52, s52, 3")
    b("v_mov_b32 v16, s52")
    b("v_mov_b32 v17, 1")
    if cfg.wsched >= 3:
        for t in parked[1:3]: b.ext(refill(t)); issued.add(t + 10)
    elif cfg.epark: b.ext(refill(11))
    elif cfg.pre5: b.ext(refill(5))
    b("WAITVM ost")
    b("s_barrier")
    b("s_cmp_lg_u32 s3, 0")
    b("s_cbranch_scc1 L_nosig")
    b("s_mov_b64 exec, 1")
    if cfg.sig == "line": b("global_store_dword v16, v17, s[48:49] sc1 ;@skip")
    else: b("global_atomic_add v16, v17, s[46:47] sc1 ;@skip")
    b("s_mov_b64 exec, -1")
    b("L_nosig:")
    stamp(b, cfg, "signaled")
    b("s_lshr_b32 s52, s2, 3")
    b("s_cmp_ge_u32 s52, 30")
    b("s_cbranch_scc1 L_fin")
    if cfg.wsched >= 3:
        for t in range(10):
            if t not in issued: b.ext(with_nop(wdma(cfg, t))); issued.add(t)
        for t in parked:
            if t + 10 not in issued: b.ext(refill(t)); issued.add(t + 10)
        prev = None
        for t in range(12):
            if t in parked: continue
            b.ext(park(t))
            if prev is not None: b(f"WAITLG p{prev}"); b.ext(refill(prev))
            prev = t
        b("s_waitcnt lgkmcnt(0)")
        b.ext(refill(prev))
    elif cfg.epark:
        b.ext(refill(9) + refill(12))
    elif cfg.sigfirst:
        b.ext(refill(2) + ([] if cfg.pre5 else refill(5)) + park(8) + park(9) + refill(6) + park(10) + park(11) + refill(7))
        b("s_waitcnt lgkmcnt(0)")
        for t in range(8, 12): b.ext(refill(t))
    else:
        b("s_waitcnt lgkmcnt(0)")
        b.ext(refill(2))
        for t in range(5, 12): b.ext(refill(t))
    b("s_lshl_b32 s52, s43, 2")
    b("s_add_u32 s52, s52, s3")
    if cfg.sig == "line":
        b("s_lshl_b32 s52, s52, 10")
        b(f"s_add_u32 s52, s52, {FOFF}")
        b("v_and_b32 v16, 7, v1")
        b("v_lshlrev_b32 v16, 7, v16")
        b("v_add_u32 v16, s52, v16")
        pbase = "s[48:49]"
    else:
        b("s_lshl_b32 s52, s52, 3")
        b("v_mov_b32 v16, s52")
        pbase = "s[46:47]"
    prev = 13 if cfg.epark else None
    for t in range(14 if cfg.epark else 12, cfg.R):
        if cfg.epoll and t == max(cfg.epoll, 14 if cfg.epark else 0): b(f"global_load_dword v17, v16, {pbase} sc1 ;@ep")
        b.ext(park(t))
        if prev is not None and prev + 10 < cfg.X:
            b("s_waitcnt lgkmcnt(8)")
            b.ext(refill(prev))
        prev = t
    b("s_waitcnt lgkmcnt(0)")
    if prev + 10 < cfg.X: b.ext(refill(prev))
    stamp(b, cfg, "parked")
    b("s_mov_b32 s34, 0x100000")
    want = 1 if cfg.sig == "line" else 8
    cmpi = "v_cmp_ne_u32 vcc, 1, v17" if cfg.sig == "line" else "v_cmp_gt_u32 vcc, 8, v17"
    if cfg.sig == "line":
        b("WAITVM arr")
        b("v_cmp_gt_u32 vcc, 8, v255")
        b("s_cbranch_vccz L_cleared")
        b("L_wclr:")
        b("global_load_dword v255, v0, s[46:47] sc1 ;@skip")
        b("s_waitcnt vmcnt(0)")
        b("v_cmp_gt_u32 vcc, 8, v255")
        b("s_sub_u32 s34, s34, 1")
        b("s_cselect_b64 vcc, 0, vcc")
        b("s_cbranch_vccnz L_wclr")
        b("s_branch L_poll")
        b("L_cleared:")
    if cfg.epoll:
        b("WAITVM ep")
        b(cmpi)
        b("s_cbranch_vccz L_ready")
    b("L_poll:")
    b(f"global_load_dword v17, v16, {pbase} sc1")
    b("s_waitcnt vmcnt(0)")
    b(cmpi)
    b("s_sub_u32 s34, s34, 1")
    b("s_cselect_b64 vcc, 0, vcc")
    b("s_cbranch_vccnz L_poll")
    b("L_ready:")
    stamp(b, cfg, "polled")
    worder = [x.split(";@")[1] for x in b.l if ";@w" in x and kind(x) == "vm"]
    check_setup(b.l, "tail")
    a.l += fix(resolve_waits(b.l))
    c = Asm(); c.stamps = a.stamps
    for t_ in worder: c(f"buffer_dummy ;@{t_}")
    ACC = lambda i, nt: 32 + 16 * i + 4 * nt
    OFB = [112, 132, 152, 172, 192]
    OF = lambda t, i: OFB[t % cfg.DO] + 4 * i
    def oload(t):
        return [x + f" ;@o{t}" for x in [f"s_add_u32 s30, s41, {t}", "s_xor_b32 s30, s30, s37", "s_lshl_b32 s30, s30, 10", "s_and_b32 s30, s30, 0x7fff"]] + \
            tag([f"buffer_load_dwordx4 {vr(OF(t,i),4)}, v{OAL[i]}, s[{SOR}:{SOR+3}], s30 offen {cfg.orflags}".rstrip() for i in range(5)], f"o{t}")
    for t in range(cfg.DO - 1): c.ext(oload(t))
    if not cfg.tlb:
        c("s_mul_i32 s52, s43, 240")
        c("s_mul_i32 s53, s54, 80")
        c("s_add_u32 s52, s52, s53")
        c("s_mul_i32 s52, s52, 1280")
        c("s_lshl_b32 s53, s55, 7")
        c("s_add_u32 s52, s52, s53")
        c.ext(srd(SOUT, 58, "s52", 79 * 1280 + 128))
    for j in range(1, 4):
        c(f"s_add_u32 s52, s3, {j}")
        c("s_and_b32 s52, s52, 3")
        c("s_mul_i32 s52, s52, 15360")
        c(f"v_add_u32 v{240+j}, s52, v15")
    c("s_mul_i32 s52, s3, 15360")
    c("v_add_u32 v240, s52, v15")
    c("v_mul_u32_u24 v244, 1280, v2")
    c("v_lshl_add_u32 v244, v3, 3, v244")
    nextw = cfg.X
    q = Seq()
    NL = cfg.NL
    for t in range(32 - NL):
        mf = []
        for i in range(5):
            for nt in range(4):
                d = vr(ACC(i, nt), 4)
                mf.append(f"{MF} {d}, {WS(t,nt)}, {vr(OF(t,i),4)}, {'0' if t == 0 else d}")
        q.raw([f"WAITVM o{t} lgkmcnt(0)"] + (stamp_l(c, cfg, f"p{t}") if t in (1, 4, 8, 16, 24) else []))
        g = q.add(mf)
        if t + cfg.DO - 1 < 32: q.place(oload(t + cfg.DO - 1), [g + 4, g + 6, g + 9, g + 12, g + 15])
        tr = t + cfg.R - 1
        if t >= 1 and tr < 32:
            q.g[g].insert(0, f"WAITVM w{tr}")
            for k, r in enumerate(wreads(tr)): q.put(g + 1 + k, r)
        if nextw < 32 and nextw - 10 <= t + cfg.R - 2 and (nextw - cfg.X) * cfg.wev <= t:
            q.place(wdma(cfg, nextw), [g + 10, g + 13, g + 16, g + 18])
            nextw += 1
        if t == 20: q.put(g + 19, "s_barrier")
    assert nextw == 32
    q.raw([f"WAITVM o{32-NL} lgkmcnt(0)"])
    wr = lambda i, j: f"ds_write_b128 v{240+j}, {vr(ACC(i,j),4)} offset:{5120*(j-1)+1024*i}"
    for i in range(5):
        mf = []
        for j in (1, 2, 3, 0):
            d = vr(ACC(i, j), 4)
            for t in range(32 - NL, 32):
                mf.append(f"{MF} {d}, {WS(t,j)}, {vr(OF(t,i),4)}, {d}")
        g = q.add(mf)
        if i == 0:
            for k in range(1, NL): q.g[g + k - 1].append(f"!WAITVM o{32-NL+k}")
        else:
            for j in range(1, 4): q.put(g + 2 + NL * (j - 1), wr(i - 1, j))
    q.raw(stamp_l(c, cfg, "projdone") + ["s_nop 1", wr(4, 1), wr(4, 2), "s_nop 1", wr(4, 3)])
    q.emit(c)
    c("s_waitcnt lgkmcnt(0)")
    c("s_barrier")
    for i in range(5):
        for j in range(3):
            c(f"ds_read_b128 {vr(112+12*i+4*j,4)}, v240 offset:{5120*j+1024*i}")
    c("s_lshl_b32 s52, s3, 5")
    for i in range(5):
        c(f"s_waitcnt lgkmcnt({3*(4-i)})")
        bb = 112 + 12 * i; ac = ACC(i, 0)
        for r in range(0, 4, 2):
            c(f"v_pk_add_f32 {vr(ac+r,2)}, {vr(ac+r,2)}, {vr(bb+r,2)}")
            c(f"v_pk_add_f32 {vr(bb+4+r,2)}, {vr(bb+4+r,2)}, {vr(bb+8+r,2)}")
        for r in range(0, 4, 2):
            c(f"v_pk_add_f32 {vr(ac+r,2)}, {vr(ac+r,2)}, {vr(bb+4+r,2)}")
        c(f"v_cvt_pk_bf16_f32 v{ac}, v{ac}, v{ac+1}")
        c(f"v_cvt_pk_bf16_f32 v{ac+1}, v{ac+2}, v{ac+3}")
        c(f"buffer_store_dwordx2 {vr(ac,2)}, v244, s[{SOUT}:{SOUT+3}], s52 offen {cfg.outflags}".rstrip())
        c("s_add_u32 s52, s52, %d" % (16 * 1280))
    check_setup(c.l, "proj")
    a.l += resolve_waits(c.l)
    a("L_fin:")
    if cfg.stamps or cfg.calib:
        a("s_waitcnt vmcnt(0)")
        stamp(a, cfg, "end")
    if cfg.calib:
        a("s_waitcnt lgkmcnt(0)")
        a("s_or_b32 s52, s2, s3")
        a("s_cmp_lg_u32 s52, 0")
        a("s_cbranch_scc1 L_end")
        a(f"s_sub_u32 s52, s{62+4*cfg.cal_j}, s{62+4*cfg.cal_i}")
        a("s_lshl_b32 s52, s52, 2")
        a("s_add_u32 s52, s52, s62")
        a("L_spin:")
        a("s_memrealtime s[56:57]")
        a("s_waitcnt lgkmcnt(0)")
        a("s_sub_u32 s56, s56, s52")
        a(f"s_cmp_lt_i32 s56, {cfg.calib*100}")
        a("s_cbranch_scc1 L_spin")
    if cfg.stamps:
        stamps_out(a, cfg, 64 << 20)
    a("L_end:")
    a("s_endpgm")
    if cfg.w3:
        i0, i1 = a.l.index("L_sec0:"), a.l.index("L_sec1:")
        dead_v = set(("v", r) for r in list(range(128, 160)) + list(range(184, 192)) + list(range(204, 208)) + list(range(220, 224)))
        dead_a = set(("a", r) for r in range(48, 64))
        sec = []; skip = False
        for x in a.l[i0 + 1:i1]:
            if x == "s_and_b32 s52, s2, 31": skip = True
            if skip:
                if x == "L_noarr:": skip = False
                continue
            if x.endswith(":") or x.startswith(".") or x.startswith(";"):
                if x == "L_loop:":
                    z = [f"v_mov_b32 v{r}, 0" for _, r in sorted(dead_v)] + [f"v_accvgpr_write_b32 a{r}, 0" for r in list(range(48, 64)) + list(range(204, 208))]
                    k = sec.index(".p2align 6"); sec[k:k] = z
                    w3body0 = len(sec) + 1
                    x = "L_loop3:"
                sec.append(x); continue
            if x.startswith("s_nop"): continue
            ins = parse(x)
            if ins["k"] == "mfma" and (ins["D"] & dead_v or ins["Dtok"] == "a[204:207]"): continue
            if ins["k"] == "valu" and (ins["wr"] & (dead_v | dead_a) or ins["rd"] & set(("v", r) for r in range(128, 160))): continue
            if x == "s_cbranch_scc1 L_loop": x = "s_cbranch_scc1 L_loop3"
            sec.append(x)
        sec = fix(sec)
        l0 = sec.index("L_loop3:"); l1 = sec.index("s_cbranch_scc1 L_loop3")
        assert check(sec[l0:l1 + 1] * 2, "w3-loop") == 0 and check(sec + a.l[i1:i1 + 40], "w3-exit") == 0 and check(a.l[i0 - 30:i0] + sec, "w3-entry") == 0
        a("L_w3:")
        a.ext(sec)
        a("s_branch L_sec1")
    if cfg.epark:
        a("L_redo:")
        a("s_mov_b32 s35, 1")
        a("s_lshl_b32 s52, s3, 6")
        a("v_or_b32 v0, s52, v1")
        a("s_waitcnt vmcnt(0) lgkmcnt(0)")
        a("s_barrier")
        a("s_branch L_restart")
    a("L_exact:")
    ex0 = len(a.l)
    a("s_mov_b32 s35, 1")
    a(f"s_mov_b32 s{SK+2}, {KVBYTES}")
    a(f"s_mov_b32 s{SV+2}, {KVBYTES}")
    a("s_mov_b32 s33, s40")
    a("s_waitcnt vmcnt(0) lgkmcnt(0)")
    a("L_exact_loop:")
    a("s_barrier")
    a.ext(with_nop(kdma(cfg, 0)))
    a(ADV)
    a("s_waitcnt vmcnt(0)")
    a("s_barrier")
    for th in range(2):
        for kt in range(2):
            for ks in range(4): a(kread(0, 0, th, kt, ks))
        a("s_waitcnt lgkmcnt(0)")
        for u in range(4): a.ext(qk(u, 0, True))
        a("s_nop 7")
        for u in range(4):
            s0 = S_(u, 0)
            for r in range(0, 8, 2):
                a(f"v_max3_f32 v{MTR+u}, v{MTR+u}, v{s0+r}, v{s0+r+1}")
    a(f"s_cmp_lt_u32 s33, {KVBYTES}")
    a("s_cbranch_scc1 L_exact_loop")
    a("s_barrier")
    a("s_mov_b32 s33, s40")
    a.ext([x.split(" ;@")[0] for x in with_nop(sum([piece(cfg, gp, False) for gp in range(NP)], []))])
    a("s_waitcnt vmcnt(0)")
    a("s_barrier")
    a.ext(k0r + v0r)
    a("s_waitcnt lgkmcnt(0)")
    a.ext(k1r)
    for u in range(4): a.ext(qk(u, 0, True))
    a.ext(ones)
    a("s_nop 7")
    a.ext(fix(merge(*[fmax(u) for u in range(4)]) + merge(*[fexp(u, 8 if u < 3 else 4) for u in range(4)])))
    a("s_nop 1")
    a.ext(pv(0, 0, True) + pv(1, 0, True))
    a("s_waitcnt lgkmcnt(0)")
    q = Seq(); attn_tile(cfg, q, 1, "first")
    x1 = Asm()
    for t_ in ["seg1"]: x1("buffer_dummy ;@seg1")
    q.emit(x1)
    a.l += resolve_waits(x1.l)
    a("s_mov_b32 s34, 3")
    a("s_branch L_loop")
    bad = check(a.l[:ex0], "main") + check(body + body, "attn-loop") + check(a.l[ex0:] + body, "exact")
    assert bad == 0
    return a

def build(cfg):
    k = NAME + "_kernel"
    out = []
    out.append("; @launch grid=(256,1,1) block=(256,1,1) lds=163840")
    out.append('.amdgcn_target "amdgcn-amd-amdhsa--gfx950"')
    out.append(".text")
    out.append(f".globl {k}\n.p2align 8\n.type {k},@function\n{k}:")
    out.append(gen(cfg).text())
    out.append('.section .rodata,"a"')
    out.append(f""".p2align 6
.amdhsa_kernel {k}
  .amdhsa_next_free_vgpr 512
  .amdhsa_next_free_sgpr 102
  .amdhsa_accum_offset 256
  .amdhsa_group_segment_fixed_size 0
  .amdhsa_kernarg_size 64
  .amdhsa_user_sgpr_count 2
  .amdhsa_user_sgpr_kernarg_segment_ptr 1
  .amdhsa_system_sgpr_workgroup_id_x 1
.end_amdhsa_kernel
""")
    return "\n".join(out)

if __name__ == "__main__":
    cfg = Cfg()
    path = sys.argv[1]
    for kv in sys.argv[2:]:
        k, v = kv.split("=", 1)
        old = getattr(cfg, k)
        setattr(cfg, k, type(old)(eval(v)) if isinstance(old, (bool, int, float, tuple)) else v)
    txt = build(cfg)
    open(path, "w").write(txt)
```

```python
import sys, math, struct
from asmlib import *

NAME = "standalone__mha_block_cached__near_ridge"
def f32(x): return struct.unpack("<I", struct.pack("<f", x))[0]
MF = "v_mfma_f32_16x16x32_bf16"

class Cfg:
    kvflags = "nt"
    oflags = "sc1"
    orflags = "sc1"
    xflags = ""
    bflags = ""
    stamps = False
    only = ""
    qspread = 4
    kvpace = 13.5
    lthr = 2.0 ** 40
    force_fb = False
    rot = 5
    rA = 0
    DO = 4
    NL = 2
    joint = 1
    opk = 2
    bm = 0
    bmi = 0
    wv = 2
    jcap = 2
    uni = 0
    ipre = 32
    upi = 30
    urest = 9
    w3 = 1
    wn = 10
    wp = 17
    wp2 = 4
    wdelay = 0
    R = 19
    epark = 0
    addu = ()
    tlb = 0
    fast0 = 1
    c1first = 0
    pre5 = 1
    early = 1
    cwarm = 1
    wl2 = 0
    wl2f = ""
    lag = 4
    split0 = 0
    wsched = 2
    b1 = 24
    bsp = 50
    split15 = 1
    sigfirst = 1
    outflags = ""
    wpull = 0
    epoll = 15
    touch = ()
    tpos = 52
    tl = 16
    tflags = ""
    tkv = "v"
    dmode = "even"
    xs = (0, 0, 0, 0, 0)
    k0at = 5
    X = 29
    wev = 1.0
    ncap = 3
    sig = "line"
    pkmul = False
    qord = 0
    exp = ""
    calib = 0
    cal_i = 0
    cal_j = 0

O_ = lambda u, dt: 32 + 32 * u + 4 * dt
S_ = lambda u, kt: 160 + 8 * u + 4 * kt
P_ = lambda u: 192 + 4 * u
NM = lambda u: 208 + 4 * u
KRA, VRA, KDA, VDA, MTR = 224, 228, 236, 240, 242
WD = 246
XDA, WDA, XRA, WRA = 192, 200, 204, 210
Q_ = lambda u, m: 16 * u + 4 * m
KF = lambda b, kt, ks: 64 + 32 * b + 16 * kt + 4 * ks
VF = lambda b, dt: 128 + 32 * b + 4 * dt
L_ = lambda u: 192 + 4 * u
ONES = 208
WF = lambda b, s, dt: ar([160, 0, 96][b] + 32 * s + 4 * dt, 4)
WF2 = lambda b, s, dt, e: ar([160, 0, 96][b] + 32 * s + 4 * dt + 2 * e, 2)
XF = lambda b, s, u: vr([224, 64, 160][b] + 16 * s + 4 * u, 4, "aav"[b])
SX, SW, SK, SV, SO = 8, 12, 16, 20, 24
SWO, SOR, SOUT = 8, 12, 4
KVBYTES = 262144
XBASE = [(131072, 147456), (65536, 16384), (32768, 49152)]
WWIN = 81920
WOFF = [32768, 0, 16384]
UNIT = [0, 4, 8, 9, 1, 5, 2, 6, 3, 7]
UNIT2 = [0, 4, 9, 5, 6, 8, 1, 2, 3, 7]
UNIT3 = [0, 4, 9, 1, 2, 8, 5, 6, 3, 7]
WRL = [[28, 29, 30, 31], [250, 251, 252, 253], [7, 8, 9, 10]]
OAL = [4, 5, 13, 14, 254]
WBLK = [224, 240, 64, 80, 96, 112, 128, 144, 160, 176, 208, 192, 0, 16, 32, 48]
WBLK2 = [224, 240, 0, 16, 48, 32, 64, 80, 96, 112, 128, 144, 160, 176, 208, 192]
def WS(t, nt, e=None):
    b = WBLK[t % len(WBLK)]
    f = "a" if b >= 0 else "v"
    return vr(abs(b) + 4 * nt, 4, f) if e is None else vr(abs(b) + 4 * nt + 2 * e, 2, f)
def wreads(t):
    u_ = UNIT[t % 10]
    return [f"ds_read_b64_tr_b16 {WS(t,nt,e)}, v{WRL[u_>>2][nt]} offset:{16384*(u_&3)+2048*e} ;@p{t}" for nt in range(4) for e in range(2)]
FOFF = 24 << 20
WOSZ = 1024 * 1280 - 9 * 128
ORSZ = 4 * 131072 + 32768

class Seq:
    def __init__(self): self.m = []; self.g = []
    def add(self, mfmas):
        n = len(self.m); self.m += mfmas; self.g += [[] for _ in mfmas]; return n
    def raw(self, lines):
        self.m.append(None); self.g.append(["!" + x for x in lines]); return len(self.m) - 1
    def put(self, i, x): self.g[i].append(x)
    def slots(self, i):
        n = 0
        for x in self.g[i]:
            k = kind(x.lstrip("!"))
            if k in ("ds", "vm", "valu"): n += 2 if x.lstrip("!").startswith(TRANS) else 1
        return n
    def place(self, lst, vmpos):
        vmpos = list(vmpos); pend = []; last = None
        for x in lst:
            if kind(x) == "vm":
                p = vmpos.pop(0)
                assert not pend or last is None or p - len(pend) > last, (lst, p, last)
                for k, s in enumerate(reversed(pend)): self.g[p - 1 - k].insert(0, s)
                pend = []; self.g[p].append(x); last = p
            else: pend.append(x)
        for k, s in enumerate(pend): self.g[last + 1 + k].insert(0, s)
    def stream(self, lst, start, cap=2, end=None):
        i = start
        for x in lst:
            c = 2 if x.startswith(TRANS) else (0 if kind(x) == "s" else 1)
            while self.slots(i) + c > cap and (end is None or i < end) and i + 1 < len(self.m): i += 1
            self.g[i].append("!" + x)
        return i
    def emit(self, a): emit_gaps(a, self.m, self.g)

def stamp_l(a, cfg, name):
    if (cfg.stamps or cfg.calib) and (cfg.only == "" or name in cfg.only.split(",") or name in ("start", "end")):
        i = len(a.stamps); a.stamps.append(name)
        assert i < 10
        return [f"s_memtime s[{60+4*i}:{61+4*i}]", f"s_memrealtime s[{62+4*i}:{63+4*i}]"]
    return []
def stamp(a, cfg, name): a.ext(stamp_l(a, cfg, name))

def stamps_out(a, cfg, wsoff):
    n = len(a.stamps)
    a.l.insert(0, "; stamps " + str(wsoff >> 20) + " " + " ".join(a.stamps))
    a("s_waitcnt lgkmcnt(0)")
    a(f"s_add_u32 s48, s48, {wsoff}")
    a("s_addc_u32 s49, s49, 0")
    a("s_mov_b32 s50, 0x100000")
    a("s_mov_b32 s51, 0x20000")
    a("s_lshl_b32 s52, s2, 2")
    a("s_add_u32 s52, s52, s3")
    a("s_lshl_b32 s52, s52, 7")
    a("v_mov_b32 v6, s52")
    a("v_cmp_eq_u32 vcc, 0, v1")
    a("s_and_saveexec_b64 s[54:55], vcc")
    for i in range(n):
        a(f"v_mov_b32 v4, s{60+4*i}")
        a(f"v_mov_b32 v5, s{62+4*i}")
        a(f"buffer_store_dwordx2 v[4:5], v6, s[48:51], 0 offen offset:{8*i}")
        a("s_nop 1")
    a("s_getreg_b32 s53, hwreg(HW_REG_XCC_ID)")
    a("v_mov_b32 v4, s53")
    a("buffer_store_dword v4, v6, s[48:51], 0 offen offset:120")
    a("v_mov_b32 v4, 0x5157")
    a(f"v_mov_b32 v5, {n}")
    a("buffer_store_dwordx2 v[4:5], v6, s[48:51], 0 offen offset:112")
    a("s_mov_b64 exec, s[54:55]")

def srd(s, plo, off_s, size):
    return [f"s_add_u32 s{s}, s{plo}, {off_s}", f"s_addc_u32 s{s+1}, s{plo+1}, 0", f"s_mov_b32 s{s+2}, {size}", f"s_mov_b32 s{s+3}, 0x20000"]
def dma(vaddr, sdesc, soff, imm, flags=""):
    o = f" offset:{imm}" if imm else ""
    f = f" {flags}" if flags else ""
    return f"buffer_load_dwordx4 v{vaddr}, s[{sdesc}:{sdesc+3}], {soff} offen{o}{f} lds"
def tag(lst, t):
    return [x + f" ;@{t}" if kind(x) == "vm" else x for x in lst]
def check_setup(lines, name):
    last = {}
    for x in lines:
        if ";@" not in x:
            if kind(x) == "s" and not x.endswith(":") and len(x.split()) > 1 and x.split()[1].rstrip(",") in ("m0", "s42", "s30"): last[x.split()[1].rstrip(",")] = None
            continue
        t = x.split(";@")[1]
        if kind(x) == "s": last[x.split()[1].rstrip(",")] = t
        elif t[0] == "w" and t[1:].isdigit() and not x.startswith("buffer_dummy"):
            assert last.get("m0") == t and last.get("s42") == t, (name, x, last)
        elif t[0] == "o" and t[1:].isdigit() and not x.startswith("buffer_dummy"):
            assert last.get("s30") == t, (name, x, last)
def with_nop(lst):
    o = []
    for x in lst:
        o.append(x)
        if " m0," in x: o.append("s_nop 0")
    return o

def resolve_waits(lines):
    out = []; seq = []; lseq = []
    for x in lines:
        if x.startswith("WAITLG"):
            t = x.split()[1]
            idx = max(i for i, v in enumerate(lseq) if v == t)
            out.append(f"s_waitcnt lgkmcnt({min(len(lseq) - 1 - idx, 15)})")
            continue
        if x.startswith("ds_"): lseq.append(x.split(";@")[1] if ";@" in x else "")
        if x.startswith("WAITVM"):
            p = x.split(None, 2)
            idx = max(i for i, t in enumerate(seq) if t == p[1])
            n = min(len(seq) - 1 - idx, 63)
            out.append(f"s_waitcnt vmcnt({n})" + (" " + p[2] if len(p) > 2 else ""))
            continue
        if not (x.endswith(":") or x.startswith(".") or x.startswith(";")) and kind(x) == "vm" and not x.endswith(";@skip"):
            seq.append(x.split(";@")[1] if ";@" in x else "")
        if not x.startswith("buffer_dummy"): out.append(x.split(" ;@")[0])
    return out

def kdma(cfg, slot, so="s33"):
    return [f"s_add_u32 m0, s40, {16384*slot}"] + [dma(KDA + pp, SK, so, 1024 * pp, cfg.kvflags) for pp in range(4)]
def vdma(cfg, slot, so="s33"):
    return [f"s_add_u32 m0, s40, {65536+16384*slot}"] + [dma(VDA + (pp & 1), SV, so, 1024 * pp, cfg.kvflags) for pp in range(4)]
ADV = "s_add_u32 s33, s33, 16384"
def upiece(cfg, gp):
    sg = gp >> 3
    if gp & 1: return ["s_or_b32 m0, m0, 0x10000", dma(VDA, SV, "s33", 0, cfg.kvflags) + f" ;@seg{sg}", "s_add_u32 s33, s33, 4096"]
    return ["s_and_b32 m0, s33, 0xffff", dma(KDA, SK, "s33", 0, cfg.kvflags) + f" ;@seg{sg}" + ("k" if sg == 15 else "")]
def piece(cfg, gp, setm0, guard=False):
    sg, kv, pp = gp // 8, (gp % 8) // 4, gp % 4
    grp = (vdma if kv else kdma)(cfg, sg & 3)
    o = ([grp[0]] if pp == 0 or setm0 else []) + tag([grp[1 + pp]], f"seg{sg}" + ("k" if kv == 0 else ""))
    if gp % 8 == 7:
        o += [ADV]
        if guard: o += [f"s_cmp_lt_u32 s33, {KVBYTES}", f"s_cselect_b32 s{SK+2}, {KVBYTES}, 0"]
    return o
def wdma(cfg, t):
    return [x + f" ;@w{t}" for x in [f"s_add_u32 s42, s41, {t}", "s_bfe_u32 s42, s42, 0x50000", "s_xor_b32 s42, s42, s37", "s_mul_i32 s42, s42, 40960", f"s_add_u32 m0, s40, {16384*UNIT[t%10]}"]] + \
        tag([dma(WD + pp, SWO, "s42", 1024 * pp, cfg.bflags) for pp in range(4)], f"w{t}")
def kread(buf, slot, th, kt, ks):
    return f"ds_read_b128 {ar(KF(buf,kt,ks),4)}, v{KRA+ks} offset:{16384*slot+8192*th+4096*kt}"
def vread(buf, slot, th, dt, e):
    return f"ds_read_b64_tr_b16 {ar(VF(buf,dt)+2*e,2)}, v{VRA+dt} offset:{16384*slot+8192*th+4096*e}"

def qk(u, kb, czero=False, sl=None):
    m = []
    for kt in range(2):
        d = vr(S_(u if sl is None else sl, kt), 4)
        for ks in range(4):
            c = ("0" if czero else vr(NM(u), 4)) if ks == 0 else d
            m.append(f"{MF} {d}, {ar(KF(kb,kt,ks),4)}, {ar(Q_(u,ks),4)}, {c}")
    return m
LA = {0: 18, 1: 19}
def pv(u, vb, czero=False, sl=None, lsum=True):
    m = []
    p = vr(P_(u if sl is None else sl), 4)
    for dt in range(8):
        d = vr(O_(u, dt), 4)
        m.append(f"{MF} {d}, {ar(VF(vb,dt),4)}, {p}, {'0' if czero else d}")
    d = ar(L_(u), 4)
    if lsum: m.append(f"{MF} {d}, {ar(ONES,4)}, {p}, {'0' if czero else d}")
    return m
def sm_half(q, g0, u, kt, add=False):
    s = S_(u, kt)
    for r in range(4):
        if add: q.put(g0 + 2 * r + 1, f"v_add_f32 v{LA[u]}, v{LA[u]}, v{s+r}")
        q.put(g0 + 2 * r, f"v_exp_f32 v{s+r}, v{s+r}")
        if r & 1: q.put(g0 + 2 * r + 1, f"v_cvt_pk_bf16_f32 v{P_(u)+2*kt+r//2}, v{s+r-1}, v{s+r}")

def attn_tile(cfg, q, j, mode="loop"):
    kb = vb = j & 1
    slot, th = (j >> 1) & 3, j & 1
    nslot, nth = ((j + 1) >> 1) & 3, (j + 1) & 1
    z = mode == "first"
    addu = cfg.addu if mode == "loop" else ()
    groups = [qk(0, kb), pv(2, vb ^ 1, z), qk(1, kb), pv(3, vb ^ 1, z), qk(2, kb), pv(0, vb, lsum=0 not in addu), qk(3, kb), pv(1, vb, lsum=1 not in addu)]
    st = [q.add(g) for g in groups]; st.append(len(q.m))
    sm_half(q, st[0], 3, 1)
    for u in range(3):
        sm_half(q, st[2 * u + 1], u, 0, u in addu)
        sm_half(q, st[2 * u + 2], u, 1, u in addu)
    sm_half(q, st[7], 3, 0)
    vr_ = [vread(vb, slot, th, dt, e) for dt in range(8) for e in range(2)]
    NV = 6 if 0 in cfg.addu else 0
    if 0 in addu: pos = [st[0] + k for k in (1, 3, 5, 5, 7)] + [st[1] + k for k in (1, 5, 8, 8)] + [st[2] + 5]
    else: pos = [st[0] + k for k in (1, 3, 5, 5, 7)] + [st[1] + k for k in (1, 1, 3, 5, 5, 7, 8)] + [st[2] + k for k in (1, 3, 5, 5)]
    for p, r in zip(pos, vr_[16 - len(pos):]): q.put(p, r)
    mid = st[4] - 1
    if j & 1:
        if mode == "loop": q.put(mid, f"s_waitcnt vmcnt({16-cfg.lag if not cfg.bm else (18 if cfg.bm == 3 else 14)-cfg.lag}) lgkmcnt(0)" if not cfg.uni else "UNIWAIT")
        else: q.put(mid, f"WAITVM seg{(j+1)//2}{'k' if j == 29 and cfg.split15 else ''} lgkmcnt(0)")
        q.put(mid, "s_barrier")
    else:
        q.put(mid, "s_waitcnt lgkmcnt(0)")
    kr_ = [kread(kb ^ 1, nslot, nth, kt, ks) for kt in range(2) for ks in range(4)]
    if 1 in addu: pos = [st[4] + 5] + [st[5] + k for k in (1, 1, 3, 5, 5, 7)] + [st[6] + 1]
    else: pos = [st[4] + k for k in (1, 3, 5, 7)] + [st[5] + k for k in (1, 3, 5, 7)]
    for p, r in zip(pos, kr_): q.put(p, r)
    if NV and mode != "final":
        nvr = [vread(vb ^ 1, nslot, nth, dt, e) for dt in range(8) for e in range(2)][:NV]
        for p, r in zip([st[6] + 3, st[6] + 5, st[6] + 5, st[6] + 7, st[7] + 1, st[7] + 1], nvr): q.put(p, r)
        q.put(st[8] - 2, f"s_waitcnt lgkmcnt({NV})")
    else:
        q.put(st[8] - 2 if j != 29 else st[7], "s_waitcnt lgkmcnt(0)")
    dpos = [st[0] + 1, st[2] + 1, st[4] + 1, st[6] + 1]
    if cfg.bm:
        assert cfg.lag % 4 == 2 and not cfg.uni
        dpos = {1: [st[4] + 1, st[4] + 5, st[5] + 1, st[5] + 5], 2: [st[4] + 1, st[4] + 3, st[4] + 5, st[4] + 7], 3: [st[2] + 7, st[3] + 1, st[3] + 3, st[3] + 5],
                4: [st[4] + 1, st[4] + 2, st[4] + 3, st[4] + 4]}[cfg.bm]
    for k in range(0 if not cfg.uni else 4, 4):
        gp = 4 * j + 26 + k - cfg.lag
        if mode == "first" and k < 2 and not cfg.bm: continue
        if mode == "final":
            if gp < 128: q.place(piece(cfg, gp, True), [[st[0] + 1, st[0] + 5, st[1] + 1, st[1] + 3][k] if cfg.wsched in (0, 2) else dpos[k]])
            continue
        q.place(piece(cfg, gp, False, cfg.lag < 2), [dpos[k]])
    return st

def rowmax_l(t, t2):
    return [f"v_mov_b32 v{t2}, v{t}", "s_nop 1", f"v_permlane32_swap_b32 v{t}, v{t2}", f"v_max_f32 v{t}, v{t}, v{t2}",
            f"v_mov_b32 v{t2}, v{t}", "s_nop 1", f"v_permlane16_swap_b32 v{t}, v{t2}", f"v_max_f32 v{t}, v{t}, v{t2}"]

def scale_pack(cfg, b0, t, mul, pk):
    o = []
    if pk: o += [f"v_pk_mul_f32 {vr(b0+2*i,2)}, {vr(b0+2*i,2)}, {mul[1]}" for i in range(4)]
    else: o += [f"v_mul_f32 v{b0+i}, {mul[0]}, v{b0+i}" for i in range(8)]
    o += [f"v_cvt_pk_bf16_f32 v{t+i}, v{b0+2*i}, v{b0+2*i+1}" for i in range(4)]
    return o

def gen(cfg):
    if cfg.wsched == 2: UNIT[:] = UNIT2 if not cfg.wv else UNIT3
    if cfg.epark: WBLK[:] = WBLK2
    WBLK.extend([-224, -208, -192, -176][:cfg.R - 16])
    assert 112 + 20 * cfg.DO <= 240 - 16 * (cfg.R - 16)
    a = Asm()
    a("s_cmp_ge_u32 s2, 256")
    a("s_cbranch_scc1 L_end")
    a("s_mov_b32 s35, 0")
    a("L_restart:")
    stamp(a, cfg, "start")
    a("s_load_dwordx4 s[4:7], s[0:1], 0")
    a("s_load_dwordx4 s[44:47], s[0:1], 16")
    a("v_lshrrev_b32 v2, 6, v0")
    a("v_and_b32 v1, 63, v0")
    a("v_readfirstlane_b32 s3, v2")
    a("s_and_b32 s50, s2, 7")
    a("s_lshr_b32 s51, s2, 3")
    a("s_and_b32 s52, s51, 3")
    a("s_lshr_b32 s53, s51, 2")
    a("s_bfe_u32 s28, s2, 0x10000")
    a("s_lshl2_add_u32 s28, s28, s52")
    a("s_lshr_b32 s54, s50, 1")
    a("s_lshl3_add_u32 s29, s54, s53")
    a("s_add_u32 s52, s52, s53")
    a("s_and_b32 s52, s52, 1")
    a("s_mul_i32 s32, s52, 5")
    a("s_add_u32 s54, s54, s50")
    a("s_and_b32 s54, s54, 1")
    a("s_lshl1_add_u32 s32, s54, s32")
    a("s_lshl_b32 s30, s32, 7")
    a("s_lshl_b32 s31, s32, 19")
    a("s_lshl_b32 s40, s3, 12")
    a("s_lshl1_add_u32 s36, s40, %d" % XBASE[0][0])
    a("s_add_u32 s39, s40, %d" % WWIN)
    a("v_lshrrev_b32 v3, 4, v1")
    a("v_lshrrev_b32 v4, 3, v1")
    a("v_and_b32 v5, 7, v1")
    a("v_and_b32 v2, 15, v1")
    a("s_mul_i32 s52, s3, %d" % (64 * 1280))
    a("v_mul_u32_u24 v8, 1280, v4")
    a("v_xor_b32 v9, v3, v5")
    a("v_lshlrev_b32 v9, 4, v9")
    a(f"v_add3_u32 v{XDA}, v9, s52, v8")
    a(f"v_xor_b32 v17, 64, v{XDA}")
    for pp in range(1, 8):
        a(f"v_add_u32 v{XDA+pp}, {10240*pp-1024*(pp&3)}, v{17 if pp & 1 else XDA}")
    a("s_lshl_b32 s52, s3, 17")
    a("v_lshlrev_b32 v8, 13, v3")
    a("v_and_b32 v9, 1, v3")
    a("v_lshrrev_b32 v10, 1, v3")
    a("v_lshl_or_b32 v9, v10, 2, v9")
    a("v_xor_b32 v9, v9, v2")
    a("v_lshlrev_b32 v9, 4, v9")
    a(f"v_add3_u32 v{WDA}, v9, s52, v8")
    a(f"v_xor_b32 v17, 128, v{WDA}")
    for pp in range(1, 4):
        a(f"v_add_u32 v{WDA+pp}, {32768*pp-1024*pp}, v{17 if pp >> 1 else WDA}")
    a("s_mul_i32 s52, s28, 307200")
    a("s_lshl_b32 s53, s29, 8")
    a.ext(srd(SX, 4, "s52", 307200)[2:] + srd(SW, 46, "s53", 640 * 8192 - 31 * 256)[2:])
    a("s_waitcnt lgkmcnt(0)")
    stamp(a, cfg, "kernarg")
    a.ext(srd(SX, 4, "s52", 307200)[:2] + srd(SW, 46, "s53", 0)[:2])

    def qstage(c):
        bf = c % 3
        o = [f"s_mov_b32 m0, s{36+bf}"]
        o += [dma(XDA + pp, SX, "s30", 1024 * pp, cfg.xflags) for pp in range(4)]
        o += [f"s_add_u32 m0, s{36+bf}, 4096"]
        o += [dma(XDA + 4 + pp, SX, "s30", 1024 * pp, cfg.xflags) for pp in range(4)]
        o += [f"s_add_u32 m0, s39, {WOFF[bf]}"]
        o += [dma(WDA + pp, SW, "s31", 1024 * pp, cfg.xflags) for pp in range(4)]
        o += ["s_add_u32 s32, s32, 1", "s_cmp_eq_u32 s32, 10", "s_cselect_b32 s32, 0, s32", "s_lshl_b32 s30, s32, 7", "s_lshl_b32 s31, s32, 19"]
        return tag(o, f"c{c}")
    a.ext(with_nop(qstage(0)))
    a("s_load_dwordx2 s[48:49], s[0:1], 56")
    if cfg.cwarm:
        a("s_getpc_b64 s[54:55]")
        a("L_cbase:")
        a("s_lshl2_add_u32 s52, s51, s3")
        a(f"s_mul_i32 s52, s52, {5 if cfg.w3 else 3}")
        a(f"v_min_u32 v18, {4 if cfg.w3 else 2}, v1")
        a("v_add_u32 v18, s52, v18")
        a("v_lshlrev_b32 v18, 7, v18")
        a("v_min_u32 v18, L_exact-L_cbase, v18")
        a("v_mov_b32 v19, s55")
        a("v_add_co_u32 v18, vcc, s54, v18")
        a("v_addc_co_u32 v19, vcc, 0, v19, vcc")
        a("global_load_dword v20, v[18:19], off")
    a("s_mov_b32 s33, s40" if not cfg.uni else "s_lshl_b32 s33, s3, 10")
    a("s_and_b32 s52, s3, 1")
    a("s_lshl_b32 s52, s52, 13")
    a("s_cmp_ge_u32 s3, 2")
    for bf in range(1, 3):
        a(f"s_mov_b32 s53, {XBASE[bf][0]}")
        a(f"s_cselect_b32 s{36+bf}, {XBASE[bf][1]}, s53")
    for bf in range(1, 3):
        a(f"s_add_u32 s{36+bf}, s{36+bf}, s52")
    a("v_bfe_u32 v6, v1, 2, 2")
    a("v_and_b32 v7, 3, v1")
    if cfg.c1first: a.ext(with_nop(qstage(1)))
    a("s_waitcnt lgkmcnt(0)")
    if cfg.sig == "line":
        a("s_lshl_b32 s52, s28, 5")
        a("s_add_u32 s52, s52, s29")
        a("s_lshl_b32 s52, s52, 7")
        a(f"s_add_u32 s52, s52, {FOFF}")
        a("v_mov_b32 v18, s52")
        a("v_mov_b32 v19, 0")
        a("s_mov_b64 exec, 1")
        a("global_store_dword v18, v19, s[48:49] sc1")
        a("s_mov_b64 exec, -1")
        a("v_and_b32 v0, 31, v1")
        a("v_lshlrev_b32 v0, 3, v0")
    a("s_load_dwordx4 s[56:59], s[0:1], 32")
    a("s_lshl_b32 s52, s28, 5")
    a("s_add_u32 s52, s52, s29")
    a("s_lshl_b32 s52, s52, 18")
    a.ext(srd(SK, 6, "s52", KVBYTES))
    a.ext(srd(SV, 44, "s52", KVBYTES))
    a("s_mul_i32 s52, s28, %d" % (15 * 131072))
    a.ext(srd(SO, 48, "s52", 15 * 131072))
    a("s_load_dwordx2 s[46:47], s[0:1], 48")
    a("v_lshlrev_b32 v10, 8, v3")
    if cfg.uni:
        a("s_lshl_b32 s52, s3, 2")
        a("v_add_u32 v8, s52, v3")
        a("v_xor_b32 v9, v8, v2")
        a(f"v_lshl_add_u32 v{KDA}, v9, 4, v10")
        a("v_and_b32 v8, 7, v8")
        a("v_lshlrev_b32 v8, 1, v8")
        a("v_xor_b32 v9, v8, v2")
        a(f"v_lshl_add_u32 v{VDA}, v9, 4, v10")
    else:
        for pp in range(4):
            a(f"v_add_u32 v9, {4*pp}, v3")
            a("v_xor_b32 v9, v9, v2")
            a(f"v_lshl_add_u32 v{KDA+pp}, v9, 4, v10")
        for pp in range(2):
            a(f"v_add_u32 v9, {4*pp}, v3")
            a("v_lshlrev_b32 v9, 1, v9")
            a("v_xor_b32 v9, v9, v2")
            a(f"v_lshl_add_u32 v{VDA+pp}, v9, 4, v10")
    a("v_lshrrev_b32 v9, 1, v2")
    for s in range(2):
        a(f"v_or_b32 v8, {4*s}, v3")
        a("v_xor_b32 v8, v8, v9")
        a("v_lshlrev_b32 v8, 4, v8")
        a("v_lshl_add_u32 v8, v2, 7, v8")
        for bf in range(3):
            a(f"v_add_u32 v{XRA+2*bf+s}, s{36+bf}, v8")
    a("v_lshrrev_b32 v11, 1, v7")
    a("v_and_b32 v12, 1, v7")
    a("v_lshlrev_b32 v12, 3, v12")
    a("v_and_b32 v9, 1, v6")
    a("v_lshrrev_b32 v10, 1, v6")
    a("v_lshl_or_b32 v9, v10, 2, v9")
    a("v_and_b32 v10, 1, v3")
    a("v_lshl_or_b32 v9, v10, 3, v9")
    a("v_lshl_or_b32 v9, v11, 1, v9")
    a("v_lshl_add_u32 v13, v3, 3, v6")
    a("v_lshl_add_u32 v13, v13, 8, v12")
    a(f"v_add_u32 v13, {WWIN}, v13")
    for dt in range(8):
        a(f"v_xor_b32 v8, {4*(dt>>1)+(dt&1)}, v9")
        a(f"v_lshl_add_u32 v{WRA+dt}, v8, 4, v13")
    a("v_lshl_or_b32 v9, v10, 2, v6")
    a("v_lshl_or_b32 v9, v9, 1, v11")
    a("v_lshl_add_u32 v14, v3, 2, v6")
    a("v_lshl_add_u32 v14, v14, 8, v12")
    a("v_add_u32 v14, 65536, v14")
    for dt in range(8):
        a(f"v_xor_b32 v8, {2*dt}, v9")
        a(f"v_lshl_add_u32 v{VRA+dt}, v8, 4, v14")
    for ks in range(4):
        a(f"v_or_b32 v8, {4*ks}, v3")
        a("v_xor_b32 v8, v8, v2")
        a("v_lshlrev_b32 v8, 4, v8")
        a(f"v_lshl_add_u32 v{KRA+ks}, v2, 8, v8")
    for i in range(4):
        a(f"v_mov_b32 v{MTR+i}, 0xff800000")
    a("v_lshlrev_b32 v15, 4, v1")
    a(f"v_and_b32 v8, {cfg.tl-1}, v1")
    a(f"v_lshrrev_b32 v9, {int(math.log2(cfg.tl))}, v1")
    a("v_lshlrev_b32 v9, 14, v9")
    a("v_lshl_add_u32 v219, v8, 7, v9")
    a("v_lshlrev_b32 v9, 1, v3")
    a("v_xor_b32 v9, v9, v5")
    a("v_lshlrev_b32 v9, 4, v9")
    a("v_mul_u32_u24 v8, 1280, v4")
    a("v_add_u32 v8, v8, v9")
    for pp in range(4):
        a(f"v_add_u32 v{WD+pp}, {pp*9216}, v8")
    a("v_lshl_add_u32 v14, v3, 2, v6")
    a("v_bfe_u32 v13, v14, 1, 2")
    a("v_lshl_or_b32 v13, v13, 1, v11")
    a("v_lshl_add_u32 v14, v14, 7, v12")
    a("v_add_u32 v14, s40, v14")
    for nt in range(4):
        a(f"s_add_u32 s53, s3, {nt}")
        a("s_and_b32 s53, s53, 3")
        a("s_lshl_b32 s53, s53, 1")
        a("v_xor_b32 v16, s53, v13")
        a(f"v_lshl_add_u32 v{WRL[0][nt]}, v16, 4, v14")
        a(f"v_add_u32 v{WRL[1][nt]}, 65536, v{WRL[0][nt]}")
        a(f"v_add_u32 v{WRL[2][nt]}, 131072, v{WRL[0][nt]}")
    for i in range(5): a(f"v_add_u32 v{OAL[i]}, {131072*i}, v15")
    a("s_min_u32 s51, s51, 29")
    a("s_cmp_ge_u32 s51, 15")
    a("s_cselect_b32 s52, 1, 0")
    a("s_cselect_b32 s53, 15, 0")
    a("s_sub_u32 s53, s51, s53")
    a("s_and_b32 s43, s50, 6")
    a("s_add_u32 s43, s43, s52")
    a("s_mul_i32 s54, s53, 52")
    a("s_lshr_b32 s54, s54, 8")
    a("s_mul_i32 s41, s54, 5")
    a("s_sub_u32 s53, s53, s41")
    a("s_lshl_b32 s34, s53, 2")
    a("s_and_b32 s55, s50, 1")
    a("s_mul_i32 s55, s55, 5")
    a("s_add_u32 s55, s55, s53")
    a("s_mul_i32 s52, s52, 15")
    a("s_add_u32 s41, s41, s52")
    if cfg.rA:
        a(f"s_mul_i32 s53, s53, {cfg.rA}")
        a("s_add_u32 s41, s41, s53")
    a("s_and_b32 s41, s41, 31")
    sc = f32(math.log2(math.e) / math.sqrt(128.0))
    if cfg.wpull:
        a("s_mul_i32 s52, s2, 160")
        a(f"s_mul_i32 s53, s3, {14 if cfg.wpull == 1 else 40}")
        a("s_add_u32 s52, s52, s53")
        a("v_add_u32 v218, s52, v1")
        a("v_lshlrev_b32 v218, 7, v218")
        a("v_mov_b32 v16, 0x7fffff80")
        a(f"v_cmp_gt_u32 vcc, {14 if cfg.wpull == 1 else 40}, v1")
        a("v_cndmask_b32 v255, v16, v218, vcc")
    if cfg.wl2:
        a("s_lshr_b32 s52, s2, 3")
        a("s_lshl_b32 s52, s52, 2")
        a("s_add_u32 s52, s52, s3")
        a("s_mul_i32 s52, s52, %d" % (32 * 1280))
        a("s_and_b32 s53, s50, 1")
        a("s_mul_i32 s53, s53, 640")
        a("s_add_u32 s52, s52, s53")
        a("v_mul_u32_u24 v16, 52, v1")
        a("v_lshrrev_b32 v16, 8, v16")
        a("v_mul_u32_u24 v17, 5, v16")
        a("v_sub_u32 v17, v1, v17")
        a("v_mul_u32_u24 v16, 1280, v16")
        a("v_lshl_add_u32 v16, v17, 7, v16")
        a("v_add_u32 v16, s52, v16")
        a("v_mov_b32 v17, 0x7fffff80")
        a("v_cmp_gt_u32 vcc, 15, v1")
        a("v_cndmask_b32 v255, v17, v16, vcc")
    a(f"s_mov_b32 s44, {sc}")
    a(f"s_mov_b32 s45, {sc}")
    if not cfg.c1first: a.ext(with_nop(qstage(1)))
    stamp(a, cfg, "issued")

    def qreads(c):
        bf = rb = c % 3
        o = []
        for s in range(2):
            o.append(f"ds_read_b128 {XF(rb,s,0)}, v{XRA+2*bf+s}")
        for dt in range(8):
            for s in range(2):
                for e in range(2):
                    o.append(f"ds_read_b64_tr_b16 {WF2(rb,s,dt,e)}, v{WRA+dt} offset:{WOFF[bf]+8192*s+1024*e}")
        for u in range(1, 4):
            for s in range(2):
                o.append(f"ds_read_b128 {XF(rb,s,u)}, v{XRA+2*bf+s} offset:{2048*u}")
        return o
    a("WAITVM c0 lgkmcnt(0)")
    a("s_barrier")
    stamp(a, cfg, "landed")
    r0 = qreads(0)
    if cfg.fast0: a.ext(r0[:14])
    else:
        a.ext(r0)
        a.ext(with_nop(qstage(2)))
    wp = ["s_mov_b32 s4, s56", "s_mov_b32 s5, s57", f"s_mov_b32 s6, {4096*1280}", "s_mov_b32 s7, 0x20000", "buffer_load_dword v218, v255, s[4:7], 0 offen"]
    if cfg.wpull == 2: a.ext(wp)
    a("s_waitcnt lgkmcnt(8)" if cfg.fast0 else "s_waitcnt lgkmcnt(0)")
    if cfg.w3:
        a("s_cmp_eq_u32 s3, 3")
        a("s_cbranch_scc1 L_w3")
        a("L_sec0:")
    q = Seq()
    per = []
    for c in range(10):
        rb = c % 3
        mf = []
        for u in range(4):
            for dt in range(8):
                d = vr(O_(u, dt), 4)
                for s in range(2):
                    mf.append(f"{MF} {d}, {WF(rb,s,dt)}, {XF(rb,s,u)}, {'0' if c == 0 and s == 0 else d}")
        if cfg.joint and c >= 8:
            mf = []
            for u in (2 * (c - 8), 2 * (c - 8) + 1):
                for dt in range(8):
                    d = vr(O_(u, dt), 4)
                    for cc in (8, 9):
                        for s in range(2): mf.append(f"{MF} {d}, {WF(cc%3,s,dt)}, {XF(cc%3,s,u)}, {d}")
        p0 = q.add(mf); per.append(p0)
        for x in stamp_l(a, cfg, f"q{c+1}"): q.put(p0 + 63, "!" + x)
    BQ = {n: max(cfg.b1 + cfg.bsp * (n - 1), 64 * (n - 2)) for n in range(1, 10)}
    BQ[10] = BQ[9] + 44
    for n in range(1, 11):
        p = BQ[n]
        q.put(p, f"WAITVM c{n} lgkmcnt(0)" if n < 10 else "s_waitcnt lgkmcnt(0)"); q.put(p, "s_barrier")
        if n < 10:
            for i, r in enumerate(qreads(n)): q.put(p + 1 + (i * 3) // 4, r)
        if n + 2 < 10:
            q.place(qstage(n + 2), [p + 2 + (cfg.bsp * i) // 12 for i in range(12)])
        assert n == 1 or n == 10 or BQ[n + 1] < 64 * n, n
    q.put(63, "s_waitcnt lgkmcnt(0)")
    if cfg.fast0:
        for i, r in enumerate(r0[14:]): q.put(i // 2, r)
        for dt in range(1, 8):
            issued = min(40, 14 + 2 * (2 * dt - 1)); needed = 2 + 4 * (dt + 1)
            q.g[2 * dt - 1].insert(0, f"s_waitcnt lgkmcnt({min(15, issued - needed)})")
        q.g[15].insert(0, "s_waitcnt lgkmcnt(0)")
        q.place(qstage(2), [4 + i + i // 4 for i in range(12)])
    if cfg.wpull >= 3: q.place(wp, [per[cfg.wpull - 3] + 60])
    sw = [f"s_mov_b32 s52, {sum(v << (4*k) for k, v in enumerate(cfg.xs))}", "s_lshr_b32 s52, s52, s34", "s_and_b32 s37, s52, 15"]
    sw += ["s_mul_i32 s52, s3, %d" % (1024 * 1280), "s_lshl_b32 s53, s55, 7", "s_add_u32 s52, s52, s53"] + srd(SWO, 56, "s52", WOSZ) + \
         ["s_mul_i32 s52, s43, 15", "s_mul_i32 s53, s54, 5", "s_add_u32 s52, s52, s53", "s_lshl_b32 s52, s52, 17", "s_lshl_b32 s53, s3, 15",
          "s_add_u32 s52, s52, s53"] + srd(SOR, 48, "s52", ORSZ)
    if cfg.wpull == 1 or cfg.wl2: sw += ["s_mov_b32 s4, s56", "s_mov_b32 s5, s57", f"s_mov_b32 s6, {4096*1280}", "s_mov_b32 s7, 0x20000", "s_mov_b32 s38, 0"]
    i = per[8] + 2
    k = 0
    while k < len(sw):
        n = 2 if "s_addc" in sw[min(k + 1, len(sw) - 1)] else 1
        for x in sw[k:k + n]: q.put(i, x)
        k += n; i += 2
    p9 = per[9]
    def qepi(u):
        o = []
        for m in range(4):
            t = 16 + 4 * (m & 1)
            o += scale_pack(cfg, O_(u, 2 * m), t, ("s44", "s[44:45]"), cfg.pkmul)
            if m:
                tp = 16 + 4 * ((m - 1) & 1)
                o += [f"v_accvgpr_write_b32 a{Q_(u,m-1)+i}, v{tp+i}" for i in range(4)]
            o += [f"v_permlane16_swap_b32 v{t}, v{t+2}", f"v_permlane16_swap_b32 v{t+1}, v{t+3}"]
        o += [f"v_accvgpr_write_b32 a{Q_(u,3)+i}, v{20+i}" for i in range(4)]
        return o
    q.put(p9 + 31, "WAITVM seg0k" if cfg.split0 else "WAITVM seg0"); q.put(p9 + 31, "s_barrier")
    for x in stamp_l(a, cfg, "b0"): q.put(p9 + 31, "!" + x)
    k0r = [kread(0, 0, 0, kt, ks) for kt in range(2) for ks in range(4)]
    for i, r in enumerate(k0r): q.put(p9 + 32 + 2 * i, r)
    if cfg.joint:
        assert BQ[10] < per[8]
        e = q.stream(qepi(0), per[8] + 32 + 4, cap=cfg.jcap)
        e = q.stream(qepi(1), max(e, p9 + 4), cap=cfg.jcap)
        e = q.stream(qepi(2), max(e, p9 + 32 + 4), cap=cfg.jcap)
    else:
        e = q.stream(qepi(0), p9 + 16 + 4, cap=4)
        e = q.stream(qepi(1), max(e, p9 + 32 + 4), cap=4)
        e = q.stream(qepi(2), max(e, p9 + 48 + 4), cap=4)
    q.put(p9 + 62, "s_waitcnt lgkmcnt(0)")
    lab = q.raw([])
    for x in stamp_l(a, cfg, "g0"): q.put(len(q.m) - 1, "!" + x)
    g0 = q.add(qk(0, 0, True))
    g1 = q.add(qk(1, 0, True))
    g2 = q.add(qk(2, 0, True))
    v0r = [vread(0, 0, 0, dt, e_) for dt in range(8) for e_ in range(2)]
    k1r = [kread(1, 0, 1, kt, ks) for kt in range(2) for ks in range(4)]
    if cfg.split0:
        for i, r in enumerate(k1r): q.put(g0 + i, r)
        q.put(g1 - 1, "!WAITVM seg0"); q.put(g1 - 1, "!s_barrier")
        for i, r in enumerate(v0r): q.put(g1 + i, r)
    else:
        for i, r in enumerate(v0r + k1r): q.put(g0 + i, r)
    e = q.stream(qepi(3), max(e, g0), cap=4)
    def fmax(u):
        s0 = S_(u, 0); t = NM(u)
        o = [f"v_max3_f32 v{t}, v{s0}, v{s0+1}, v{s0+2}", f"v_max3_f32 v{t+1}, v{s0+3}, v{s0+4}, v{s0+5}",
             f"v_max3_f32 v{t}, v{t}, v{s0+6}, v{s0+7}", f"v_max3_f32 v{t}, v{t}, v{t+1}, v{MTR+u}"]
        return o + [x for x in rowmax_l(t, t + 1) if "s_nop" not in x]
    def fexp(u, nexp):
        s0 = S_(u, 0); t = NM(u)
        o = [f"v_sub_f32 v{s0+r}, v{s0+r}, v{t}" for r in range(8)]
        o += [f"v_exp_f32 v{s0+r}, v{s0+r}" for r in range(nexp)]
        o += [f"v_sub_f32 v{NM(u)+i}, 0, v{t}" for i in (1, 2, 3, 0)]
        o += [f"v_cvt_pk_bf16_f32 v{P_(u)+r//2}, v{s0+r}, v{s0+r+1}" for r in range(0, nexp, 2)]
        return o
    ones = [f"v_mov_b32 v{LA[u]}, 0" for u in cfg.addu] + ["v_mov_b32 v27, 0x3f803f80"] + [f"v_accvgpr_write_b32 a{ONES+i}, v27" for i in range(4)]
    e = q.stream(merge(fmax(0), fmax(1), ones), max(e, g2 + 1), cap=4)
    for x in stamp_l(a, cfg, "g3"): q.put(len(q.m) - 1, "!" + x)
    if cfg.epark:
        q.put(len(q.m) - 1, "!s_cmp_lg_u32 s35, 0"); q.put(len(q.m) - 1, "!s_cbranch_scc1 L_exact")
    g3 = q.add(qk(3, 0, True))
    e = q.stream(merge(fexp(0, 8), fmax(2)), g3, cap=6)
    q.raw(["s_waitcnt lgkmcnt(0)"])
    for x in stamp_l(a, cfg, "g4"): q.put(len(q.m) - 1, "!" + x)
    g4 = q.add(pv(0, 0, True))
    e = q.stream(merge(fexp(1, 8), fmax(3)), g4, cap=5)
    for x in stamp_l(a, cfg, "g5"): q.put(len(q.m) - 1, "!" + x)
    g5 = q.add(pv(1, 0, True))
    e = q.stream(merge(fexp(2, 8), fexp(3, 4)), g5, cap=7)
    for x in stamp_l(a, cfg, "tile1"): q.raw([x])
    st1 = attn_tile(cfg, q, 1, "first")
    if cfg.sig == "line":
        arr = ["s_and_b32 s52, s2, 31", "s_lshl_b32 s52, s52, 3", "v_mov_b32 v16, s52", "v_mov_b32 v17, 1", "s_cmp_lg_u32 s3, 0", "s_cbranch_scc1 L_noarr",
               "s_mov_b64 exec, 1", "global_atomic_add v16, v17, s[46:47] sc1 ;@skip", "s_mov_b64 exec, -1", "L_noarr:"]
        for x in arr: q.put(st1[8] - 1, "!" + x)
    kv = []
    NP = 32 - cfg.lag if not cfg.uni else cfg.ipre - 2
    if cfg.bm: NP = 30 - cfg.lag
    for gp in range(NP): kv += piece(cfg, gp, False) if not cfg.uni else upiece(cfg, gp)
    if cfg.uni:
        q.place(upiece(cfg, NP), [st1[4] + 1]); q.place(upiece(cfg, NP + 1), [st1[6] + 1])
    pos = []
    i = BQ[7] + cfg.bsp + 3; acc = 4 * cfg.kvpace
    free_at = [0, BQ[8], BQ[8], BQ[8], BQ[9], BQ[9], BQ[9], BQ[10]]
    if cfg.uni: free_at = [BQ[8], BQ[8], BQ[8], BQ[8], BQ[9], BQ[9], BQ[10], BQ[10]]
    while len(pos) < NP:
        ok = q.m[i] and q.m[i - 1] and q.m[i + 1] and (q.slots(i) < 2 or i > (p9 + 16 if not cfg.joint else per[8] + 32)) and i > free_at[len(pos) // 4]
        if ok and acc >= (cfg.kvpace if not cfg.bmi else (4 * cfg.kvpace - 3 * cfg.bmi if len(pos) % 4 == 0 else cfg.bmi)):
            pos.append(i); acc = 0
        acc += max(4, 2 + q.slots(i)) / 4
        i += 1
    assert pos[3 if cfg.split0 else 7] < p9 + 31 and pos[7] < g1 - 2 and pos[-1] < (st1[4] - 2 if cfg.bm != 3 else st1[2] + 3), (pos, p9, st1)
    if "nokv23" in cfg.exp: kv = [("buffer_dummy ;@" + x.split(";@")[1]) if (x.endswith("seg2") or x.endswith("seg3")) else x for x in kv]
    for k, (c, sg) in enumerate(cfg.touch):
        q.put(per[c] + cfg.tpos - 1, f"s_add_u32 s53, s40, {16384*sg}")
        q.put(per[c] + cfg.tpos, f"buffer_load_dword v255, v219, s[{SV if cfg.tkv[k % len(cfg.tkv)] == 'v' else SK}:{(SV if cfg.tkv[k % len(cfg.tkv)] == 'v' else SK)+3}], s53 offen {cfg.tflags}".rstrip())
    q.place(kv, pos)
    q.emit(a)
    a.l = fix(resolve_waits(a.l))
    a("s_mov_b32 s34, 3")
    a(".p2align 6")
    a("L_loop:")
    body0 = len(a.l)
    q = Seq()
    def loopstamp(q, p, pre):
        if cfg.stamps and pre in cfg.only.split(","):
            o = ["s_memtime s[4:5]", "s_memrealtime s[6:7]", "s_waitcnt lgkmcnt(0)"]
            for it in range(3):
                i = len(a.stamps); a.stamps.append(f"{pre}{it}")
                o += [f"s_cmp_eq_u32 s34, {3-it}", f"s_cselect_b32 s{60+4*i}, s4, s{60+4*i}", f"s_cselect_b32 s{62+4*i}, s6, s{62+4*i}"]
            for x in o: q.put(p, x)
    for j in range(2, 10):
        st = attn_tile(cfg, q, j)
        if j == 2: loopstamp(q, st[4] - 1, "ia")
        if j == 6: loopstamp(q, st[4] - 1, "ib")
        if cfg.wl2 and j % 2 == 0:
            q.put(st[3] + 1, f"buffer_load_dword v16, v255, s[4:7], s38 offen {cfg.wl2f}".rstrip())
            q.put(st[3] + 2, f"s_add_u32 s38, s38, {3*1280}")
        if cfg.wpull == 1 and j == 4:
            q.put(st[3] + 1, "buffer_load_dword v16, v255, s[4:7], s38 offen")
            q.put(st[3] + 2, f"s_add_u32 s38, s38, {56*128}")
        if j in (5, 7):
            for x in reversed(stamp_l(a, cfg, f"w{j}a")): q.g[st[4] - 1].insert(0, x)
            for x in stamp_l(a, cfg, f"w{j}b"): q.put(st[4] - 1, x)
        if j == 6:
            for x in reversed(stamp_l(a, cfg, f"d{j}a")): q.g[st[2] + 1].insert(0, x)
            for x in stamp_l(a, cfg, f"d{j}b"): q.put(st[2] + 1, "!" + x)
    if cfg.uni:
        n = len(q.m); cnt = cfg.upi; ps = []
        for k in range(cnt):
            p = int((k + 0.1) * n / cnt) + 1
            while q.slots(p) >= 2 or "UNIWAIT" in q.g[p] or "UNIWAIT" in q.g[p - 1]: p += 1
            ps.append(p)
        assert ps[-1] < n - 4 and cfg.ipre % 2 == 0 and cnt % 2 == 0
        for k, p in enumerate(ps): q.place(upiece(cfg, k), [p])
        for bi, p in enumerate([i for i in range(n) if "UNIWAIT" in q.g[i]]):
            before = sum(1 for x in ps if x < p)
            m = 2 + bi + 8
            nw = cfg.ipre + 2 * cnt + before - 8 * (m + 1)
            assert cfg.ipre + before <= 8 * (2 + bi - 1 + 4) and nw >= 4, (bi, nw)
            q.g[p][q.g[p].index("UNIWAIT")] = f"s_waitcnt vmcnt({nw}) lgkmcnt(0)"
        IEND = cfg.ipre + 3 * cnt
    if "lnobar" in cfg.exp: q.g = [[x for x in gp if x != "s_barrier"] for gp in q.g]
    if "lnodma" in cfg.exp: q.g = [[x for x in gp if kind(x.lstrip("!")) != "vm"] for gp in q.g]
    if "lnods" in cfg.exp: q.g = [[x for x in gp if kind(x.lstrip("!")) != "ds"] for gp in q.g]
    if "lnowait" in cfg.exp: q.g = [[x for x in gp if not (x.startswith("s_waitcnt") and "s_cmp_eq_u32 s34, 3" not in gp)] for gp in q.g]
    if "lnocvt" in cfg.exp: q.g = [[x for x in gp if not x.startswith("v_cvt")] for gp in q.g]
    q.put(-3, "s_sub_u32 s34, s34, 1")
    q.put(-1, "s_cmp_lg_u32 s34, 0"); q.put(-1, "s_cbranch_scc1 L_loop")
    q.emit(a)
    a.l = a.l[:body0] + [x.split(" ;@")[0] for x in a.l[body0:]]
    body = a.l[body0:]
    b = Asm(); b.stamps = a.stamps
    if cfg.uni:
        for gp in range(104, IEND): b(f"buffer_dummy ;@seg{gp//8}" + ("k" if gp >= 120 and gp % 2 == 0 else ""))
    else:
        for gp in range(104, 130 - cfg.lag): b(f"buffer_dummy ;@seg{gp//8}" + ("k" if gp % 8 < 4 else ""))
    q = Seq()
    if "nowo" in cfg.exp: b(f"s_mov_b32 s{SWO+2}, 0")
    for x in stamp_l(b, cfg, "t26"): b(x)
    sts = {j: attn_tile(cfg, q, j, "final") for j in range(26, 30)}
    if cfg.uni:
        rest = [(0, n_) for n_ in range(IEND // 2, 64)] + [(1, n_) for n_ in range(IEND // 2, 64)]
        p = sts[26][0] + 2
        for kv_, n_ in rest:
            d = 4096 * (n_ - IEND // 2)
            lst = [f"s_add_u32 s53, s33, {d}", f"s_and_b32 m0, s53, 0xffff"] + (["s_or_b32 m0, m0, 0x10000"] if kv_ else []) + \
                  [dma(VDA if kv_ else KDA, SV if kv_ else SK, "s53", 0, cfg.kvflags) + f" ;@seg{n_>>2}" + ("k" if not kv_ and n_ >= 60 else "")]
            pp_ = max(p, sts[26][0] + 3)
            while q.slots(pp_) >= 2: pp_ += 1
            q.place(lst, [pp_]); p = max(p + cfg.urest, pp_ + 5); KVEND = pp_
    def wpos(st, half):
        return [st[4*half] + 1, st[4*half+1] + 8 if half == 0 else st[5] + 1, st[4*half+2] + (7 if half == 0 else 1), st[4*half+3] + 1]
    if cfg.wsched == 0:
        for j, (t0, t1) in {26: (0, 1), 27: (2, 3), 28: (4, 5), 29: (10, 6)}.items():
            st = sts[j]
            q.place(wdma(cfg, t0), [st[1] + 8, st[2] + 7, st[3] + 1, st[3] + 5])
            q.place(wdma(cfg, t1), [st[5] + 8, st[6] + 1, st[6] + 5, st[7] + 5])
    elif cfg.wsched >= 3:
        pass
    elif cfg.wsched == 2:
        st = sts[26]
        if cfg.uni:
            st = sts[27]
            assert KVEND < st[0] - 6
            q.place(wdma(cfg, 0), [st[0] + 1, st[1] + 3, st[2] + 1, st[3] + 1])
            q.place(wdma(cfg, 1), [st[4] + 1, st[5] + 3, st[6] + 1, st[7] + 1])
            st = sts[28]
            q.place(wdma(cfg, 2), [st[0] + 1, st[1] + 1, st[1] + 8, st[2] + 5])
            q.place(wdma(cfg, 5), [st[3] + 3, st[3] + 5, st[3] + 7, st[4] + 1])
            q.place(wdma(cfg, 6), [st[5] + 8, st[6] + 1, st[6] + 5, st[7] + 5])
        else: q.place(wdma(cfg, 0), [st[2] + 7, st[4] + 1, st[5] + 8, st[7] + 1])
        if cfg.wv:
            st = sts[29]
            q.place(wdma(cfg, 6), [st[0] + 5, st[1] + 8, st[2] + 7, st[3] + 5])
            q.place(wdma(cfg, 4), [st[4] + 5, st[4] + 7, st[5] + 3, st[5] + 7])
            q.place(wdma(cfg, 7), [st[6] + 5, st[6] + 7, st[7] + 3, st[7] + 5])
        for j, (t0, t1) in (({27: (1, 5), 28: (2, 6), 29: (3, 7)} if not cfg.wv else {27: (1, 5), 28: (2, 3)}) if not cfg.uni else {29: (3, 7)}).items():
            st = sts[j]
            q.place(wdma(cfg, t0), [st[0] + 5, st[1] + 8, st[2] + 7, st[3] + 5])
            q.place(wdma(cfg, t1), [st[5] + 8, st[6] + 1, st[6] + 5, st[7] + 5])
    else:
        st = sts[27]
        q.place(wdma(cfg, 0), [st[5] + 8, st[6] + 1, st[6] + 5, st[7] + 5])
        st = sts[28]
        q.place(wdma(cfg, 1), [st[0] + 5, st[0] + 7, st[1] + 1, st[1] + 3])
        q.place(wdma(cfg, 2), [st[2] + 1, st[2] + 7, st[3] + 1, st[3] + 5])
        q.place(wdma(cfg, 3), [st[5] + 8, st[6] + 1, st[6] + 5, st[7] + 5])
        st = sts[29]
        q.place(wdma(cfg, 4), [st[0] + 5, st[0] + 7, st[1] + 1, st[1] + 3])
        q.place(wdma(cfg, 5), [st[2] + 1, st[2] + 3, st[2] + 5, st[2] + 7])
        q.place(wdma(cfg, 10), [st[3] + 5, st[3] + 7, st[4] + 1, st[4] + 3])
        q.place(wdma(cfg, 6), [st[5] + 8, st[6] + 1, st[6] + 5, st[7] + 5])
    if cfg.sig == "line": q.put(sts[26][3] + 1, "global_load_dword v255, v0, s[46:47] sc1 ;@arr")
    if cfg.tlb:
        so = ["s_mul_i32 s52, s43, 240", "s_mul_i32 s53, s54, 80", "s_add_u32 s52, s52, s53", "s_mul_i32 s52, s52, 1280", "s_lshl_b32 s53, s55, 7", "s_add_u32 s52, s52, s53"]
        st = sts[27]
        for k, x in enumerate(so): q.g[st[4] + 2 + k].insert(0, x)
        sd = srd(SOUT, 58, "s52", 79 * 1280 + 128)
        q.g[st[4] + 8][0:0] = sd[:2]; q.g[st[5]][0:0] = sd[2:]
        q.put(st[5] + 1, f"buffer_load_dword v16, off, s[{SOUT}:{SOUT+3}], 0")
        q.put(st[5] + 3, f"buffer_load_dword v16, off, s[{SO}:{SO+3}], 0")
        q.put(st[5] + 5, f"buffer_load_dword v16, off, s[{SOR}:{SOR+3}], 0")
    if cfg.wsched < 3:
        st = sts[28]
        q.g[st[5] + 8].insert(0, "WAITVM w0")
        q.g[sts[29][4]].insert(0, "WAITVM w1")
        for p, r in zip([st[5] + 8, st[6] + 1, st[6] + 3, st[6] + 5, st[6] + 7, st[7] + 1, st[7] + 1, st[7] + 3], wreads(0)): q.put(p, r)
        k = q.g[st[8] - 2].index("s_waitcnt lgkmcnt(0)"); q.g[st[8] - 2][k] = "s_waitcnt lgkmcnt(8)"
        st = sts[29]
        q.put(st[1] + 7, "s_waitcnt lgkmcnt(10)")
        for p, r in zip([st[4] + 1, st[4] + 5, st[5] + 1, st[5] + 5, st[5] + 8, st[6] + 1, st[6] + 3, st[6] + 5], wreads(1)): q.put(p, r)
        k = q.g[st[7]].index("s_waitcnt lgkmcnt(0)"); q.g[st[7]][k] = "s_waitcnt lgkmcnt(4)"
    st = sts[29]
    for p, r in zip([st[7] + k for k in (1, 1, 3, 5, 7, 8, 8)] + [st[8]], [kread(1, 3, 1, kt, ks) for kt in range(2) for ks in range(4)]):
        if p < st[8]: q.put(p, r)
        else: lastk = r
    for x in stamp_l(b, cfg, "t30"): q.put(len(q.m) - 1, "!" + x)
    if cfg.w3: q.put(len(q.m) - 1, "!L_sec1:")
    job = lambda k: (k >> 1, k & 1, k & 3)
    F = []
    for k in range(8):
        u, tb, sl = job(k)
        F.append(q.add(qk(u, tb, sl=sl)))
        if k < 2: F.append(q.add(pv(2 + k, 1)))
        else:
            u, tb, sl = job(k - 2); F.append(q.add(pv(u, tb, sl=sl)))
    for k in (6, 7):
        u, tb, sl = job(k); F.append(q.add(pv(u, tb, sl=sl)))
    F.append(len(q.m))
    sm_half(q, F[0], 3, 1)
    for k in range(8):
        sm_half(q, F[2 * k + 1], k & 3, 0); sm_half(q, F[2 * k + 2], k & 3, 1)
    q.put(F[0] + 1, lastk)
    v30 = [vread(0, 3, 0, dt, e) for dt in range(8) for e in range(2)]
    v31 = [vread(1, 3, 1, dt, e) for dt in range(8) for e in range(2)]
    if not cfg.split15:
        for p, r in zip([F[0] + k for k in (1, 3, 5, 5, 7)] + [F[1] + k for k in (1, 1, 3, 5, 5, 7)] + [F[2] + k for k in (1, 1, 3, 5, 5)], v30): q.put(p, r)
        q.put(F[1] + 8, "s_waitcnt lgkmcnt(10)")
        for p, r in zip([F[4] + k for k in (1, 1, 3, 5, 5, 7)] + [F[5] + k for k in (1, 1, 3, 5, 5, 7, 8, 8)] + [F[6] + k for k in (1, 1)], v31): q.put(p, r)
        q.put(F[4], "s_waitcnt lgkmcnt(0)")
        q.place(wdma(cfg, 11), [F[2] + 7, F[3] + 1, F[3] + 3, F[3] + 5])
        q.place(wdma(cfg, 7), [F[5] + 3, F[5] + 7, F[6] + 3, F[6] + 5])
    else:
        q.put(F[1] + 8, "WAITVM seg15 lgkmcnt(0)"); q.put(F[1] + 8, "s_barrier")
        for p, r in zip([F[2] + k for k in (1, 1, 3, 5, 5, 7)] + [F[3] + k for k in (1, 1, 3, 5, 5, 7, 8, 8)] + [F[4] + k for k in (1, 1)], v30): q.put(p, r)
        for p, r in zip([F[4] + k for k in (3, 5, 5, 7)] + [F[5] + k for k in (1, 1, 3, 5, 5, 7, 8, 8)] + [F[6] + k for k in (1, 1, 3, 3)], v31): q.put(p, r)
        q.put(F[5] - 1, "s_waitcnt lgkmcnt(3)")
        if cfg.wsched >= 3:
            pass
        elif cfg.wv:
            q.place(wdma(cfg, 10), [F[0] + 5, F[0] + 7, F[1] + 3, F[1] + 7] if cfg.wv == 1 else [F[2] + 4, F[2] + 6, F[3], F[3] + 2])
            q.place(wdma(cfg, 11), [F[4], F[4] + 2, F[4] + 4, F[4] + 6])
        elif cfg.wsched == 2:
            q.place(wdma(cfg, 4), [F[0] + 5, F[0] + 7, F[1] + 3, F[1] + 7])
            q.place(wdma(cfg, 10), [F[2] + 4, F[2] + 6, F[3], F[3] + 2])
            q.place(wdma(cfg, 11), [F[4], F[4] + 2, F[4] + 4, F[4] + 6])
        else:
            q.place(wdma(cfg, 11), [F[0] + 5, F[0] + 7, F[1] + 1, F[1] + 3])
            q.place(wdma(cfg, 7), [F[2], F[2] + 4, F[3] + 2, F[3] + 6])
    q.put(F[7] - 1, "s_waitcnt lgkmcnt(0)"); q.put(F[7] - 1, "s_barrier")
    issued = set(range(12))
    if cfg.wsched < 3:
        q.place(wdma(cfg, 8), [F[7] + 5, F[7] + 7, F[7] + 8, F[8] + 1])
        q.place(wdma(cfg, 9), [F[8] + 7, F[9] + 1, F[9] + 3, F[9] + 5])
    else:
        issued = set()
        free = {0: 0, 4: 0, 8: 0, 9: 0, 1: sts[27][4], 5: sts[27][4], 2: sts[29][4], 6: sts[29][4], 3: F[7], 7: F[7]}
        p = sts[26][4] + 1 + cfg.wdelay
        for t in range(cfg.wn):
            sp = cfg.wp if t < 5 else cfg.wp2
            p = max(p, free[UNIT[t]] + 6)
            ps = []
            for k in range(4):
                pp_ = p
                while t < 5 and q.slots(pp_) >= 2: pp_ += 1
                ps.append(pp_); p = max(p + sp, pp_ + (1 if k < 3 else 6))
            assert ps[-1] < F[18], (t, ps)
            q.place(wdma(cfg, t), ps); issued.add(t)
    if "nost" in cfg.exp: q.g[F[4]].insert(0, f"s_mov_b32 s{SO+2}, 0")
    def onorm(u, store=True):
        o = [f"v_accvgpr_read_b32 v16, a{L_(u)}"]
        if u in cfg.addu:
            t = LA[u]
            o += [f"v_mov_b32 v17, v{t}", f"v_permlane32_swap_b32 v{t}, v17", f"v_add_f32 v{t}, v{t}, v17",
                  f"v_mov_b32 v17, v{t}", f"v_permlane16_swap_b32 v{t}, v17", f"v_add_f32 v{t}, v{t}, v17", f"v_add_f32 v16, v16, v{t}"]
        o += ["v_cmp_ngt_f32 vcc, s36, v16", "v_rcp_f32 v16, v16", "s_or_b64 s[50:51], s[50:51], vcc", "v_mov_b32 v17, v16"]
        for m in range(4):
            t = O_(u, 0) + 4 * m
            o += scale_pack(cfg, O_(u, 2 * m), t, ("v16", "v[16:17]"), cfg.opk == 1 or (cfg.opk == 2 and u == 3))
            if store: o += ostore(u)[m:m + 1]
        if store: o += ostore(u)[4:]
        return o
    def ostore(u):
        return [f"buffer_store_dwordx4 {vr(O_(u,0)+4*m,4)}, v15, s[{SO}:{SO+3}], s30 offen offset:{1024*m} {cfg.oflags}".rstrip() + " ;@ost" for m in range(4)] + ["s_add_u32 s30, s30, 131072"]
    for k, x in enumerate([f"s_mov_b32 s36, {f32(cfg.lthr)}", "s_mov_b64 s[50:51], 0", "s_lshl_b32 s30, s3, 19", "s_lshl_b32 s31, s29, 12", "s_add_u32 s30, s30, s31"]):
        q.g[F[4] + 2 + k].insert(0, x)
    for k in (2, 4, 6, 8, 10, 12, 14, 16):
        for x in stamp_l(b, cfg, f"F{k}"): q.put(F[k] - 1, "!" + x)
    if cfg.epark:
        def epark(t, p0, refill_at):
            q.g[p0].insert(0, f"WAITVM w{t}")
            for k, r in enumerate(wreads(t)): q.put(p0 + 2 * (k // 2), r)
            if refill_at:
                q.place(wdma(cfg, t + 10), refill_at)
                q.g[refill_at[0]].insert(0, f"WAITLG p{t}")
        epark(2, F[7] + 1, [F[10] + 3, F[10] + 5, F[10] + 7, F[11] + 1])
        epark(3, F[9] + 1, [F[11] + 7, F[11] + 8, F[12] + 1, F[12] + 3])
        epark(5, F[11] + 2, [F[13] + 1, F[13] + 3, F[13] + 5, F[13] + 7])
        epark(6, F[13] + 2, [F[14] + 5, F[14] + 7, F[15] + 1, F[15] + 3])
        epark(7, F[14] + 1, [F[16] + 1, F[16] + 3, F[16] + 5, F[16] + 7])
        epark(4, F[15] + 2, [F[17] + 5, F[17] + 6, F[17] + 7, F[17] + 8])
        epark(8, F[16] + 2, None)
        epark(9, F[17] + 1, None)
    if cfg.early == 1:
        e = q.stream(onorm(0), F[8] + 4, cap=cfg.ncap)
        e = q.stream(onorm(1), max(e, F[12] + 4), cap=cfg.ncap)
        e = q.stream(onorm(2), max(e, F[16] + 4), cap=cfg.ncap + 2)
    if cfg.early >= 2:
        e = q.stream(onorm(0, False), F[8] + 4, cap=cfg.ncap)
        e = q.stream(onorm(1, False), max(e, F[12] + 4), cap=cfg.ncap)
        e = q.stream(onorm(2, False), max(e, F[16] + 4), cap=cfg.ncap + 2)
        if cfg.early == 3:
            for k, x in enumerate(ostore(0) + ostore(1)): q.put(min(F[16] + 8 + k, F[18] - 1), x if kind(x) == "vm" else "!" + x)
    q.emit(b)
    if cfg.early == 2: b.ext(ostore(0) + ostore(1) + ostore(2))
    if cfg.early == 3: b.ext(ostore(2))
    if not cfg.early: b.ext(onorm(0) + onorm(1) + onorm(2))
    stamp(b, cfg, "loopend")
    if "nowo" in cfg.exp: b(f"s_mov_b32 s{SWO+2}, {WOSZ}")
    def park(t): return [f"WAITVM w{t}"] + wreads(t)
    def refill(t): return with_nop(wdma(cfg, t + 10))
    DU = UNIT[9 if cfg.epark else 2]
    if cfg.wsched >= 3:
        DU = UNIT[0] if cfg.wn else UNIT[9]
        late = [t for t in range(10) if t not in issued]
        for t in late[:3]:
            if UNIT[t] != DU: b.ext(with_nop(wdma(cfg, t))); issued.add(t)
        if cfg.wn: b.ext(park(0))
    elif cfg.epark: b.ext(park(10) + park(11))
    else: b.ext(park(2) + park(3))
    b.ext(onorm(3))
    stamp(b, cfg, "stored")
    if cfg.force_fb: b("s_mov_b64 s[50:51], -1")
    b("s_cmp_lg_u64 s[50:51], 0")
    b("s_cselect_b32 s52, 1, 0")
    b(f"s_add_u32 s53, s40, {16384*DU}")
    b("v_mov_b32 v16, s52")
    b("v_mov_b32 v17, s53")
    b("v_and_b32 v18, 3, v1")
    b("v_lshlrev_b32 v18, 12, v18")
    b(f"v_add_u32 v18, {16384*DU}, v18")
    b("s_waitcnt lgkmcnt(0)")
    b("ds_write_b32 v17, v16")
    if cfg.wsched >= 3: pass
    elif cfg.epark: b.ext(refill(8) + park(12) + park(13))
    else: b.ext(refill(3) + park(4) + park(5))
    b("s_waitcnt lgkmcnt(0)")
    b("s_barrier")
    b("ds_read_b32 v20, v18")
    parked = [0] if cfg.wsched >= 3 and cfg.wn else []
    if cfg.wsched >= 3:
        for t in range(1, min(cfg.wn, 6)): b.ext(park(t)); parked.append(t)
    elif cfg.epark: b.ext(refill(10))
    else: b.ext(refill(4) + park(6) + park(7))
    b("s_waitcnt lgkmcnt(0)")
    b("v_cmp_ne_u32 vcc, 0, v20")
    b("s_cmp_eq_u32 s35, 0")
    b("s_cselect_b64 s[52:53], vcc, 0")
    b("s_cmp_lg_u64 s[52:53], 0")
    b("s_cbranch_scc1 L_redo" if cfg.epark else "s_cbranch_scc1 L_exact")
    if not cfg.sigfirst: b.ext(park(8) + park(9) + park(10) + park(11))
    if cfg.sig == "line":
        b("s_lshl_b32 s52, s28, 5")
        b("s_add_u32 s52, s52, s29")
        b("s_lshl_b32 s52, s52, 7")
        b(f"s_add_u32 s52, s52, {FOFF}")
    else:
        b("s_lshl_b32 s52, s28, 2")
        b("s_lshr_b32 s53, s29, 3")
        b("s_add_u32 s52, s52, s53")
        b("s_lshl_b32 s52, s52, 3")
    b("v_mov_b32 v16, s52")
    b("v_mov_b32 v17, 1")
    if cfg.wsched >= 3:
        for t in parked[1:3]: b.ext(refill(t)); issued.add(t + 10)
    elif cfg.epark: b.ext(refill(11))
    elif cfg.pre5: b.ext(refill(5))
    b("WAITVM ost")
    b("s_barrier")
    b("s_cmp_lg_u32 s3, 0")
    b("s_cbranch_scc1 L_nosig")
    b("s_mov_b64 exec, 1")
    if cfg.sig == "line": b("global_store_dword v16, v17, s[48:49] sc1 ;@skip")
    else: b("global_atomic_add v16, v17, s[46:47] sc1 ;@skip")
    b("s_mov_b64 exec, -1")
    b("L_nosig:")
    stamp(b, cfg, "signaled")
    b("s_lshr_b32 s52, s2, 3")
    b("s_cmp_ge_u32 s52, 30")
    b("s_cbranch_scc1 L_fin")
    if cfg.wsched >= 3:
        for t in range(10):
            if t not in issued: b.ext(with_nop(wdma(cfg, t))); issued.add(t)
        for t in parked:
            if t + 10 not in issued: b.ext(refill(t)); issued.add(t + 10)
        prev = None
        for t in range(12):
            if t in parked: continue
            b.ext(park(t))
            if prev is not None: b(f"WAITLG p{prev}"); b.ext(refill(prev))
            prev = t
        b("s_waitcnt lgkmcnt(0)")
        b.ext(refill(prev))
    elif cfg.epark:
        b.ext(refill(9) + refill(12))
    elif cfg.sigfirst:
        b.ext(refill(2) + ([] if cfg.pre5 else refill(5)) + park(8) + park(9) + refill(6) + park(10) + park(11) + refill(7))
        b("s_waitcnt lgkmcnt(0)")
        for t in range(8, 12): b.ext(refill(t))
    else:
        b("s_waitcnt lgkmcnt(0)")
        b.ext(refill(2))
        for t in range(5, 12): b.ext(refill(t))
    b("s_lshl_b32 s52, s43, 2")
    b("s_add_u32 s52, s52, s3")
    if cfg.sig == "line":
        b("s_lshl_b32 s52, s52, 10")
        b(f"s_add_u32 s52, s52, {FOFF}")
        b("v_and_b32 v16, 7, v1")
        b("v_lshlrev_b32 v16, 7, v16")
        b("v_add_u32 v16, s52, v16")
        pbase = "s[48:49]"
    else:
        b("s_lshl_b32 s52, s52, 3")
        b("v_mov_b32 v16, s52")
        pbase = "s[46:47]"
    prev = 13 if cfg.epark else None
    for t in range(14 if cfg.epark else 12, cfg.R):
        if cfg.epoll and t == max(cfg.epoll, 14 if cfg.epark else 0): b(f"global_load_dword v17, v16, {pbase} sc1 ;@ep")
        b.ext(park(t))
        if prev is not None and prev + 10 < cfg.X:
            b("s_waitcnt lgkmcnt(8)")
            b.ext(refill(prev))
        prev = t
    b("s_waitcnt lgkmcnt(0)")
    if prev + 10 < cfg.X: b.ext(refill(prev))
    stamp(b, cfg, "parked")
    b("s_mov_b32 s34, 0x100000")
    want = 1 if cfg.sig == "line" else 8
    cmpi = "v_cmp_ne_u32 vcc, 1, v17" if cfg.sig == "line" else "v_cmp_gt_u32 vcc, 8, v17"
    if cfg.sig == "line":
        b("WAITVM arr")
        b("v_cmp_gt_u32 vcc, 8, v255")
        b("s_cbranch_vccz L_cleared")
        b("L_wclr:")
        b("global_load_dword v255, v0, s[46:47] sc1 ;@skip")
        b("s_waitcnt vmcnt(0)")
        b("v_cmp_gt_u32 vcc, 8, v255")
        b("s_sub_u32 s34, s34, 1")
        b("s_cselect_b64 vcc, 0, vcc")
        b("s_cbranch_vccnz L_wclr")
        b("s_branch L_poll")
        b("L_cleared:")
    if cfg.epoll:
        b("WAITVM ep")
        b(cmpi)
        b("s_cbranch_vccz L_ready")
    b("L_poll:")
    b(f"global_load_dword v17, v16, {pbase} sc1")
    b("s_waitcnt vmcnt(0)")
    b(cmpi)
    b("s_sub_u32 s34, s34, 1")
    b("s_cselect_b64 vcc, 0, vcc")
    b("s_cbranch_vccnz L_poll")
    b("L_ready:")
    stamp(b, cfg, "polled")
    worder = [x.split(";@")[1] for x in b.l if ";@w" in x and kind(x) == "vm"]
    check_setup(b.l, "tail")
    a.l += fix(resolve_waits(b.l))
    c = Asm(); c.stamps = a.stamps
    for t_ in worder: c(f"buffer_dummy ;@{t_}")
    ACC = lambda i, nt: 32 + 16 * i + 4 * nt
    OFB = [112, 132, 152, 172, 192]
    OF = lambda t, i: OFB[t % cfg.DO] + 4 * i
    def oload(t):
        return [x + f" ;@o{t}" for x in [f"s_add_u32 s30, s41, {t}", "s_xor_b32 s30, s30, s37", "s_lshl_b32 s30, s30, 10", "s_and_b32 s30, s30, 0x7fff"]] + \
            tag([f"buffer_load_dwordx4 {vr(OF(t,i),4)}, v{OAL[i]}, s[{SOR}:{SOR+3}], s30 offen {cfg.orflags}".rstrip() for i in range(5)], f"o{t}")
    for t in range(cfg.DO - 1): c.ext(oload(t))
    if not cfg.tlb:
        c("s_mul_i32 s52, s43, 240")
        c("s_mul_i32 s53, s54, 80")
        c("s_add_u32 s52, s52, s53")
        c("s_mul_i32 s52, s52, 1280")
        c("s_lshl_b32 s53, s55, 7")
        c("s_add_u32 s52, s52, s53")
        c.ext(srd(SOUT, 58, "s52", 79 * 1280 + 128))
    for j in range(1, 4):
        c(f"s_add_u32 s52, s3, {j}")
        c("s_and_b32 s52, s52, 3")
        c("s_mul_i32 s52, s52, 15360")
        c(f"v_add_u32 v{240+j}, s52, v15")
    c("s_mul_i32 s52, s3, 15360")
    c("v_add_u32 v240, s52, v15")
    c("v_mul_u32_u24 v244, 1280, v2")
    c("v_lshl_add_u32 v244, v3, 3, v244")
    nextw = cfg.X
    q = Seq()
    NL = cfg.NL
    for t in range(32 - NL):
        mf = []
        for i in range(5):
            for nt in range(4):
                d = vr(ACC(i, nt), 4)
                mf.append(f"{MF} {d}, {WS(t,nt)}, {vr(OF(t,i),4)}, {'0' if t == 0 else d}")
        q.raw([f"WAITVM o{t} lgkmcnt(0)"] + (stamp_l(c, cfg, f"p{t}") if t in (1, 4, 8, 16, 24) else []))
        g = q.add(mf)
        if t + cfg.DO - 1 < 32: q.place(oload(t + cfg.DO - 1), [g + 4, g + 6, g + 9, g + 12, g + 15])
        tr = t + cfg.R - 1
        if t >= 1 and tr < 32:
            q.g[g].insert(0, f"WAITVM w{tr}")
            for k, r in enumerate(wreads(tr)): q.put(g + 1 + k, r)
        if nextw < 32 and nextw - 10 <= t + cfg.R - 2 and (nextw - cfg.X) * cfg.wev <= t:
            q.place(wdma(cfg, nextw), [g + 10, g + 13, g + 16, g + 18])
            nextw += 1
        if t == 20: q.put(g + 19, "s_barrier")
    assert nextw == 32
    q.raw([f"WAITVM o{32-NL} lgkmcnt(0)"])
    wr = lambda i, j: f"ds_write_b128 v{240+j}, {vr(ACC(i,j),4)} offset:{5120*(j-1)+1024*i}"
    for i in range(5):
        mf = []
        for j in (1, 2, 3, 0):
            d = vr(ACC(i, j), 4)
            for t in range(32 - NL, 32):
                mf.append(f"{MF} {d}, {WS(t,j)}, {vr(OF(t,i),4)}, {d}")
        g = q.add(mf)
        if i == 0:
            for k in range(1, NL): q.g[g + k - 1].append(f"!WAITVM o{32-NL+k}")
        else:
            for j in range(1, 4): q.put(g + 2 + NL * (j - 1), wr(i - 1, j))
    q.raw(stamp_l(c, cfg, "projdone") + ["s_nop 1", wr(4, 1), wr(4, 2), "s_nop 1", wr(4, 3)])
    q.emit(c)
    c("s_waitcnt lgkmcnt(0)")
    c("s_barrier")
    for i in range(5):
        for j in range(3):
            c(f"ds_read_b128 {vr(112+12*i+4*j,4)}, v240 offset:{5120*j+1024*i}")
    c("s_lshl_b32 s52, s3, 5")
    for i in range(5):
        c(f"s_waitcnt lgkmcnt({3*(4-i)})")
        bb = 112 + 12 * i; ac = ACC(i, 0)
        for r in range(0, 4, 2):
            c(f"v_pk_add_f32 {vr(ac+r,2)}, {vr(ac+r,2)}, {vr(bb+r,2)}")
            c(f"v_pk_add_f32 {vr(bb+4+r,2)}, {vr(bb+4+r,2)}, {vr(bb+8+r,2)}")
        for r in range(0, 4, 2):
            c(f"v_pk_add_f32 {vr(ac+r,2)}, {vr(ac+r,2)}, {vr(bb+4+r,2)}")
        c(f"v_cvt_pk_bf16_f32 v{ac}, v{ac}, v{ac+1}")
        c(f"v_cvt_pk_bf16_f32 v{ac+1}, v{ac+2}, v{ac+3}")
        c(f"buffer_store_dwordx2 {vr(ac,2)}, v244, s[{SOUT}:{SOUT+3}], s52 offen {cfg.outflags}".rstrip())
        c("s_add_u32 s52, s52, %d" % (16 * 1280))
    check_setup(c.l, "proj")
    a.l += resolve_waits(c.l)
    a("L_fin:")
    if cfg.stamps or cfg.calib:
        a("s_waitcnt vmcnt(0)")
        stamp(a, cfg, "end")
    if cfg.calib:
        a("s_waitcnt lgkmcnt(0)")
        a("s_or_b32 s52, s2, s3")
        a("s_cmp_lg_u32 s52, 0")
        a("s_cbranch_scc1 L_end")
        a(f"s_sub_u32 s52, s{62+4*cfg.cal_j}, s{62+4*cfg.cal_i}")
        a("s_lshl_b32 s52, s52, 2")
        a("s_add_u32 s52, s52, s62")
        a("L_spin:")
        a("s_memrealtime s[56:57]")
        a("s_waitcnt lgkmcnt(0)")
        a("s_sub_u32 s56, s56, s52")
        a(f"s_cmp_lt_i32 s56, {cfg.calib*100}")
        a("s_cbranch_scc1 L_spin")
    if cfg.stamps:
        stamps_out(a, cfg, 64 << 20)
    a("L_end:")
    a("s_endpgm")
    if cfg.w3:
        i0, i1 = a.l.index("L_sec0:"), a.l.index("L_sec1:")
        dead_v = set(("v", r) for r in list(range(128, 160)) + list(range(184, 192)) + list(range(204, 208)) + list(range(220, 224)))
        dead_a = set(("a", r) for r in range(48, 64))
        sec = []; skip = False
        for x in a.l[i0 + 1:i1]:
            if x == "s_and_b32 s52, s2, 31": skip = True
            if skip:
                if x == "L_noarr:": skip = False
                continue
            if x.endswith(":") or x.startswith(".") or x.startswith(";"):
                if x == "L_loop:":
                    z = [f"v_mov_b32 v{r}, 0" for _, r in sorted(dead_v)] + [f"v_accvgpr_write_b32 a{r}, 0" for r in list(range(48, 64)) + list(range(204, 208))]
                    k = sec.index(".p2align 6"); sec[k:k] = z
                    w3body0 = len(sec) + 1
                    x = "L_loop3:"
                sec.append(x); continue
            if x.startswith("s_nop"): continue
            ins = parse(x)
            if ins["k"] == "mfma" and (ins["D"] & dead_v or ins["Dtok"] == "a[204:207]"): continue
            if ins["k"] == "valu" and (ins["wr"] & (dead_v | dead_a) or ins["rd"] & set(("v", r) for r in range(128, 160))): continue
            if x == "s_cbranch_scc1 L_loop": x = "s_cbranch_scc1 L_loop3"
            sec.append(x)
        sec = fix(sec)
        l0 = sec.index("L_loop3:"); l1 = sec.index("s_cbranch_scc1 L_loop3")
        assert check(sec[l0:l1 + 1] * 2, "w3-loop") == 0 and check(sec + a.l[i1:i1 + 40], "w3-exit") == 0 and check(a.l[i0 - 30:i0] + sec, "w3-entry") == 0
        a("L_w3:")
        a.ext(sec)
        a("s_branch L_sec1")
    if cfg.epark:
        a("L_redo:")
        a("s_mov_b32 s35, 1")
        a("s_lshl_b32 s52, s3, 6")
        a("v_or_b32 v0, s52, v1")
        a("s_waitcnt vmcnt(0) lgkmcnt(0)")
        a("s_barrier")
        a("s_branch L_restart")
    a("L_exact:")
    ex0 = len(a.l)
    a("s_mov_b32 s35, 1")
    a(f"s_mov_b32 s{SK+2}, {KVBYTES}")
    a(f"s_mov_b32 s{SV+2}, {KVBYTES}")
    a("s_mov_b32 s33, s40" if not cfg.uni else "s_lshl_b32 s33, s3, 10")
    a("s_waitcnt vmcnt(0) lgkmcnt(0)")
    a("L_exact_loop:")
    a("s_barrier")
    if cfg.uni:
        for n_ in range(4): a.ext(["s_and_b32 m0, s33, 0x3fff", "s_nop 0", dma(KDA, SK, "s33", 0, cfg.kvflags), "s_add_u32 s33, s33, 4096"])
    else:
        a.ext(with_nop(kdma(cfg, 0)))
        a(ADV)
    a("s_waitcnt vmcnt(0)")
    a("s_barrier")
    for th in range(2):
        for kt in range(2):
            for ks in range(4): a(kread(0, 0, th, kt, ks))
        a("s_waitcnt lgkmcnt(0)")
        for u in range(4): a.ext(qk(u, 0, True))
        a("s_nop 7")
        for u in range(4):
            s0 = S_(u, 0)
            for r in range(0, 8, 2):
                a(f"v_max3_f32 v{MTR+u}, v{MTR+u}, v{s0+r}, v{s0+r+1}")
    a(f"s_cmp_lt_u32 s33, {KVBYTES}")
    a("s_cbranch_scc1 L_exact_loop")
    a("s_barrier")
    a("s_mov_b32 s33, s40" if not cfg.uni else "s_lshl_b32 s33, s3, 10")
    a.ext([x.split(" ;@")[0] for x in with_nop(sum([piece(cfg, gp, False) if not cfg.uni else upiece(cfg, gp) for gp in range(NP)], []))])
    a("s_waitcnt vmcnt(0)")
    a("s_barrier")
    a.ext(k0r + v0r)
    a("s_waitcnt lgkmcnt(0)")
    a.ext(k1r)
    for u in range(4): a.ext(qk(u, 0, True))
    a.ext(ones)
    a("s_nop 7")
    a.ext(fix(merge(*[fmax(u) for u in range(4)]) + merge(*[fexp(u, 8 if u < 3 else 4) for u in range(4)])))
    a("s_nop 1")
    a.ext(pv(0, 0, True) + pv(1, 0, True))
    a("s_waitcnt lgkmcnt(0)")
    q = Seq(); st1 = attn_tile(cfg, q, 1, "first")
    if cfg.uni:
        q.place(upiece(cfg, NP), [st1[4] + 1]); q.place(upiece(cfg, NP + 1), [st1[6] + 1])
    x1 = Asm()
    for t_ in ["seg1"]: x1("buffer_dummy ;@seg1")
    q.emit(x1)
    a.l += resolve_waits(x1.l)
    a("s_mov_b32 s34, 3")
    a("s_branch L_loop")
    bad = check(a.l[:ex0], "main") + check(body + body, "attn-loop") + check(a.l[ex0:] + body, "exact")
    assert bad == 0
    return a

def build(cfg):
    k = NAME + "_kernel"
    out = []
    out.append("; @launch grid=(256,1,1) block=(256,1,1) lds=163840")
    out.append('.amdgcn_target "amdgcn-amd-amdhsa--gfx950"')
    out.append(".text")
    out.append(f".globl {k}\n.p2align 8\n.type {k},@function\n{k}:")
    out.append(gen(cfg).text())
    out.append('.section .rodata,"a"')
    out.append(f""".p2align 6
.amdhsa_kernel {k}
  .amdhsa_next_free_vgpr 512
  .amdhsa_next_free_sgpr 102
  .amdhsa_accum_offset 256
  .amdhsa_group_segment_fixed_size 0
  .amdhsa_kernarg_size 64
  .amdhsa_user_sgpr_count 2
  .amdhsa_user_sgpr_kernarg_segment_ptr 1
  .amdhsa_system_sgpr_workgroup_id_x 1
.end_amdhsa_kernel
""")
    return "\n".join(out)

if __name__ == "__main__":
    cfg = Cfg()
    path = sys.argv[1]
    for kv in sys.argv[2:]:
        k, v = kv.split("=", 1)
        old = getattr(cfg, k)
        setattr(cfg, k, type(old)(eval(v)) if isinstance(old, (bool, int, float, tuple)) else v)
    txt = build(cfg)
    open(path, "w").write(txt)
```

```python
import sys, math, struct
from asmlib import *

NAME = "standalone__mha_block_cached__near_ridge"
def f32(x): return struct.unpack("<I", struct.pack("<f", x))[0]
MF = "v_mfma_f32_16x16x32_bf16"

class Cfg:
    kvflags = "nt"
    oflags = "sc1"
    orflags = "sc1"
    xflags = ""
    bflags = ""
    stamps = False
    only = ""
    qspread = 4
    kvpace = 13.5
    lthr = 2.0 ** 40
    force_fb = False
    rot = 5
    rA = 0
    DO = 4
    NL = 2
    joint = 1
    opk = 2
    ucl = 0
    uph = 0.3
    fin2 = 1
    mapx = 0
    map3b = 0
    lazy = ()
    c0same = 0
    roff = 5
    fsig = 2
    bm = 2
    bmi = 0
    wv = 2
    jcap = 2
    uni = 0
    ipre = 32
    upi = 30
    urest = 9
    w3 = 1
    wn = 10
    wp = 17
    wp2 = 4
    wdelay = 0
    R = 19
    epark = 0
    addu = ()
    tlb = 0
    fast0 = 1
    c1first = 0
    pre5 = 1
    early = 1
    cwarm = 1
    wl2 = 0
    wl2f = ""
    lag = 2
    split0 = 0
    wsched = 2
    b1 = 24
    bsp = 50
    split15 = 1
    sigfirst = 1
    outflags = ""
    wpull = 0
    epoll = 15
    touch = ()
    tpos = 52
    tl = 16
    tflags = ""
    tkv = "v"
    dmode = "even"
    xs = (0, 0, 0, 0, 0)
    k0at = 5
    X = 29
    wev = 1.0
    ncap = 3
    sig = "line"
    pkmul = False
    qord = 0
    exp = ""
    calib = 0
    cal_i = 0
    cal_j = 0

O_ = lambda u, dt: 32 + 32 * u + 4 * dt
S_ = lambda u, kt: 160 + 8 * u + 4 * kt
P_ = lambda u: 192 + 4 * u
NM = lambda u: 208 + 4 * u
KRA, VRA, KDA, VDA, MTR = 224, 228, 236, 240, 242
WD = 246
XDA, WDA, XRA, WRA = 192, 200, 204, 210
Q_ = lambda u, m: 16 * u + 4 * m
KF = lambda b, kt, ks: 64 + 32 * b + 16 * kt + 4 * ks
VF = lambda b, dt: 128 + 32 * b + 4 * dt
L_ = lambda u: 192 + 4 * u
ONES = 208
WF = lambda b, s, dt: ar([160, 0, 96][b] + 32 * s + 4 * dt, 4)
WF2 = lambda b, s, dt, e: ar([160, 0, 96][b] + 32 * s + 4 * dt + 2 * e, 2)
XF = lambda b, s, u: vr([224, 64, 160][b] + 16 * s + 4 * u, 4, "aav"[b])
SX, SW, SK, SV, SO = 8, 12, 16, 20, 24
SWO, SOR, SOUT = 8, 12, 4
KVBYTES = 262144
XBASE = [(131072, 147456), (65536, 16384), (32768, 49152)]
WWIN = 81920
WOFF = [32768, 0, 16384]
UNIT = [0, 4, 8, 9, 1, 5, 2, 6, 3, 7]
UNIT2 = [0, 4, 9, 5, 6, 8, 1, 2, 3, 7]
UNIT3 = [0, 4, 9, 1, 2, 8, 5, 6, 3, 7]
WRL = [[28, 29, 30, 31], [250, 251, 252, 253], [7, 8, 9, 10]]
OAL = [4, 5, 13, 14, 254]
WBLK = [224, 240, 64, 80, 96, 112, 128, 144, 160, 176, 208, 192, 0, 16, 32, 48]
WBLK2 = [224, 240, 0, 16, 48, 32, 64, 80, 96, 112, 128, 144, 160, 176, 208, 192]
def WS(t, nt, e=None):
    b = WBLK[t % len(WBLK)]
    f = "a" if b >= 0 else "v"
    return vr(abs(b) + 4 * nt, 4, f) if e is None else vr(abs(b) + 4 * nt + 2 * e, 2, f)
def wreads(t):
    u_ = UNIT[t % 10]
    return [f"ds_read_b64_tr_b16 {WS(t,nt,e)}, v{WRL[u_>>2][nt]} offset:{16384*(u_&3)+2048*e} ;@p{t}" for nt in range(4) for e in range(2)]
FOFF = 24 << 20
WOSZ = 1024 * 1280 - 9 * 128
ORSZ = 4 * 131072 + 32768

class Seq:
    def __init__(self): self.m = []; self.g = []
    def add(self, mfmas):
        n = len(self.m); self.m += mfmas; self.g += [[] for _ in mfmas]; return n
    def raw(self, lines):
        self.m.append(None); self.g.append(["!" + x for x in lines]); return len(self.m) - 1
    def put(self, i, x): self.g[i].append(x)
    def slots(self, i):
        n = 0
        for x in self.g[i]:
            k = kind(x.lstrip("!"))
            if k in ("ds", "vm", "valu"): n += 2 if x.lstrip("!").startswith(TRANS) else 1
        return n
    def place(self, lst, vmpos):
        vmpos = list(vmpos); pend = []; last = None
        for x in lst:
            if kind(x) == "vm":
                p = vmpos.pop(0)
                assert not pend or last is None or p - len(pend) > last, (lst, p, last)
                for k, s in enumerate(reversed(pend)): self.g[p - 1 - k].insert(0, s)
                pend = []; self.g[p].append(x); last = p
            else: pend.append(x)
        for k, s in enumerate(pend): self.g[last + 1 + k].insert(0, s)
    def stream(self, lst, start, cap=2, end=None):
        i = start
        for x in lst:
            c = 2 if x.startswith(TRANS) else (0 if kind(x) == "s" else 1)
            while self.slots(i) + c > cap and (end is None or i < end) and i + 1 < len(self.m): i += 1
            self.g[i].append("!" + x)
        return i
    def emit(self, a): emit_gaps(a, self.m, self.g)

def stamp_l(a, cfg, name):
    if (cfg.stamps or cfg.calib) and (cfg.only == "" or name in cfg.only.split(",") or name in ("start", "end")):
        i = len(a.stamps); a.stamps.append(name)
        assert i < 10
        return [f"s_memtime s[{60+4*i}:{61+4*i}]", f"s_memrealtime s[{62+4*i}:{63+4*i}]"]
    return []
def stamp(a, cfg, name): a.ext(stamp_l(a, cfg, name))

def stamps_out(a, cfg, wsoff):
    n = len(a.stamps)
    a.l.insert(0, "; stamps " + str(wsoff >> 20) + " " + " ".join(a.stamps))
    a("s_waitcnt lgkmcnt(0)")
    a(f"s_add_u32 s48, s48, {wsoff}")
    a("s_addc_u32 s49, s49, 0")
    a("s_mov_b32 s50, 0x100000")
    a("s_mov_b32 s51, 0x20000")
    a("s_lshl_b32 s52, s2, 2")
    a("s_add_u32 s52, s52, s3")
    a("s_lshl_b32 s52, s52, 7")
    a("v_mov_b32 v6, s52")
    a("v_cmp_eq_u32 vcc, 0, v1")
    a("s_and_saveexec_b64 s[54:55], vcc")
    for i in range(n):
        a(f"v_mov_b32 v4, s{60+4*i}")
        a(f"v_mov_b32 v5, s{62+4*i}")
        a(f"buffer_store_dwordx2 v[4:5], v6, s[48:51], 0 offen offset:{8*i}")
        a("s_nop 1")
    a("s_getreg_b32 s53, hwreg(HW_REG_XCC_ID)")
    a("v_mov_b32 v4, s53")
    a("buffer_store_dword v4, v6, s[48:51], 0 offen offset:120")
    a("v_mov_b32 v4, 0x5157")
    a(f"v_mov_b32 v5, {n}")
    a("buffer_store_dwordx2 v[4:5], v6, s[48:51], 0 offen offset:112")
    a("s_mov_b64 exec, s[54:55]")

def srd(s, plo, off_s, size):
    return [f"s_add_u32 s{s}, s{plo}, {off_s}", f"s_addc_u32 s{s+1}, s{plo+1}, 0", f"s_mov_b32 s{s+2}, {size}", f"s_mov_b32 s{s+3}, 0x20000"]
def dma(vaddr, sdesc, soff, imm, flags=""):
    o = f" offset:{imm}" if imm else ""
    f = f" {flags}" if flags else ""
    return f"buffer_load_dwordx4 v{vaddr}, s[{sdesc}:{sdesc+3}], {soff} offen{o}{f} lds"
def tag(lst, t):
    return [x + f" ;@{t}" if kind(x) == "vm" else x for x in lst]
def check_setup(lines, name):
    last = {}
    for x in lines:
        if ";@" not in x:
            if kind(x) == "s" and not x.endswith(":") and len(x.split()) > 1 and x.split()[1].rstrip(",") in ("m0", "s42", "s30"): last[x.split()[1].rstrip(",")] = None
            continue
        t = x.split(";@")[1]
        if kind(x) == "s": last[x.split()[1].rstrip(",")] = t
        elif t[0] == "w" and t[1:].isdigit() and not x.startswith("buffer_dummy"):
            assert last.get("m0") == t and last.get("s42") == t, (name, x, last)
        elif t[0] == "o" and t[1:].isdigit() and not x.startswith("buffer_dummy"):
            assert last.get("s30") == t, (name, x, last)
def with_nop(lst):
    o = []
    for x in lst:
        o.append(x)
        if " m0," in x: o.append("s_nop 0")
    return o

def resolve_waits(lines):
    out = []; seq = []; lseq = []
    for x in lines:
        if x.startswith("WAITLG"):
            t = x.split()[1]
            idx = max(i for i, v in enumerate(lseq) if v == t)
            out.append(f"s_waitcnt lgkmcnt({min(len(lseq) - 1 - idx, 15)})")
            continue
        if x.startswith("ds_"): lseq.append(x.split(";@")[1] if ";@" in x else "")
        if x.startswith("WAITVM"):
            p = x.split(None, 2)
            idx = max(i for i, t in enumerate(seq) if t == p[1])
            n = min(len(seq) - 1 - idx, 63)
            out.append(f"s_waitcnt vmcnt({n})" + (" " + p[2] if len(p) > 2 else ""))
            continue
        if not (x.endswith(":") or x.startswith(".") or x.startswith(";")) and kind(x) == "vm" and not x.endswith(";@skip"):
            seq.append(x.split(";@")[1] if ";@" in x else "")
        if not x.startswith("buffer_dummy"): out.append(x.split(" ;@")[0])
    return out

def kdma(cfg, slot, so="s33"):
    return [f"s_add_u32 m0, s40, {16384*slot}"] + [dma(KDA + pp, SK, so, 1024 * pp, cfg.kvflags) for pp in range(4)]
def vdma(cfg, slot, so="s33"):
    return [f"s_add_u32 m0, s40, {65536+16384*slot}"] + [dma(VDA + (pp & 1), SV, so, 1024 * pp, cfg.kvflags) for pp in range(4)]
ADV = "s_add_u32 s33, s33, 16384"
def upiece(cfg, gp):
    sg = gp >> 3
    if gp & 1: return ["s_or_b32 m0, m0, 0x10000", dma(VDA, SV, "s33", 0, cfg.kvflags) + f" ;@seg{sg}", "s_add_u32 s33, s33, 4096"]
    return ["s_and_b32 m0, s33, 0xffff", dma(KDA, SK, "s33", 0, cfg.kvflags) + f" ;@seg{sg}" + ("k" if sg == 15 else "")]
def piece(cfg, gp, setm0, guard=False):
    sg, kv, pp = gp // 8, (gp % 8) // 4, gp % 4
    grp = (vdma if kv else kdma)(cfg, sg & 3)
    o = ([grp[0]] if pp == 0 or setm0 else []) + tag([grp[1 + pp]], f"seg{sg}" + ("k" if kv == 0 else ""))
    if gp % 8 == 7:
        o += [ADV]
        if guard: o += [f"s_cmp_lt_u32 s33, {KVBYTES}", f"s_cselect_b32 s{SK+2}, {KVBYTES}, 0"]
    return o
def wdma(cfg, t):
    return [x + f" ;@w{t}" for x in [f"s_add_u32 s42, s41, {t}", "s_and_b32 s42, s42, 31", "s_mul_i32 s42, s42, 40960", f"s_add_u32 m0, s40, {16384*UNIT[t%10]}"]] + \
        tag([dma(WD + pp, SWO, "s42", 1024 * pp, cfg.bflags) for pp in range(4)], f"w{t}")
def kread(buf, slot, th, kt, ks):
    return f"ds_read_b128 {ar(KF(buf,kt,ks),4)}, v{KRA+ks} offset:{16384*slot+8192*th+4096*kt}"
def vread(buf, slot, th, dt, e):
    return f"ds_read_b64_tr_b16 {ar(VF(buf,dt)+2*e,2)}, v{VRA+dt} offset:{16384*slot+8192*th+4096*e}"

def qk(u, kb, czero=False, sl=None):
    m = []
    for kt in range(2):
        d = vr(S_(u if sl is None else sl, kt), 4)
        for ks in range(4):
            c = ("0" if czero else vr(NM(u), 4)) if ks == 0 else d
            m.append(f"{MF} {d}, {ar(KF(kb,kt,ks),4)}, {ar(Q_(u,ks),4)}, {c}")
    return m
LA = {0: 18, 1: 19}
def pv(u, vb, czero=False, sl=None, lsum=True):
    m = []
    p = vr(P_(u if sl is None else sl), 4)
    for dt in range(8):
        d = vr(O_(u, dt), 4)
        m.append(f"{MF} {d}, {ar(VF(vb,dt),4)}, {p}, {'0' if czero else d}")
    d = ar(L_(u), 4)
    if lsum: m.append(f"{MF} {d}, {ar(ONES,4)}, {p}, {'0' if czero else d}")
    return m
def sm_half(q, g0, u, kt, add=False):
    s = S_(u, kt)
    for r in range(4):
        if add: q.put(g0 + 2 * r + 1, f"v_add_f32 v{LA[u]}, v{LA[u]}, v{s+r}")
        q.put(g0 + 2 * r, f"v_exp_f32 v{s+r}, v{s+r}")
        if r & 1: q.put(g0 + 2 * r + 1, f"v_cvt_pk_bf16_f32 v{P_(u)+2*kt+r//2}, v{s+r-1}, v{s+r}")

def attn_tile(cfg, q, j, mode="loop"):
    kb = vb = j & 1
    slot, th = (j >> 1) & 3, j & 1
    nslot, nth = ((j + 1) >> 1) & 3, (j + 1) & 1
    z = mode == "first"
    addu = cfg.addu if mode == "loop" else ()
    groups = [qk(0, kb), pv(2, vb ^ 1, z), qk(1, kb), pv(3, vb ^ 1, z), qk(2, kb), pv(0, vb, lsum=0 not in addu), qk(3, kb), pv(1, vb, lsum=1 not in addu)]
    st = [q.add(g) for g in groups]; st.append(len(q.m))
    sm_half(q, st[0], 3, 1)
    for u in range(3):
        sm_half(q, st[2 * u + 1], u, 0, u in addu)
        sm_half(q, st[2 * u + 2], u, 1, u in addu)
    sm_half(q, st[7], 3, 0)
    vr_ = [vread(vb, slot, th, dt, e) for dt in range(8) for e in range(2)]
    NV = 6 if 0 in cfg.addu else 0
    if 0 in addu: pos = [st[0] + k for k in (1, 3, 5, 5, 7)] + [st[1] + k for k in (1, 5, 8, 8)] + [st[2] + 5]
    else: pos = [st[0] + k for k in (1, 3, 5, 5, 7)] + [st[1] + k for k in (1, 1, 3, 5, 5, 7, 8)] + [st[2] + k for k in (1, 3, 5, 5)]
    for p, r in zip(pos, vr_[16 - len(pos):]): q.put(p, r)
    mid = st[4] - 1
    if j & 1:
        if mode == "loop": q.put(mid, f"s_waitcnt vmcnt({16-cfg.lag if not cfg.bm else (18 if cfg.bm == 3 else 14)-cfg.lag}) lgkmcnt(0)" if not cfg.uni else "UNIWAIT")
        else: q.put(mid, f"WAITVM seg{(j+1)//2}{'k' if j == 29 and cfg.split15 else ''} lgkmcnt(0)")
        q.put(mid, "s_barrier")
    else:
        q.put(mid, "s_waitcnt lgkmcnt(0)")
    kr_ = [kread(kb ^ 1, nslot, nth, kt, ks) for kt in range(2) for ks in range(4)]
    if 1 in addu: pos = [st[4] + 5] + [st[5] + k for k in (1, 1, 3, 5, 5, 7)] + [st[6] + 1]
    else: pos = [st[4] + k for k in (1, 3, 5, 7)] + [st[5] + k for k in (1, 3, 5, 7)]
    for p, r in zip(pos, kr_): q.put(p, r)
    if NV and mode != "final":
        nvr = [vread(vb ^ 1, nslot, nth, dt, e) for dt in range(8) for e in range(2)][:NV]
        for p, r in zip([st[6] + 3, st[6] + 5, st[6] + 5, st[6] + 7, st[7] + 1, st[7] + 1], nvr): q.put(p, r)
        q.put(st[8] - 2, f"s_waitcnt lgkmcnt({NV})")
    else:
        q.put(st[8] - 2 if j != 29 else st[7], "s_waitcnt lgkmcnt(0)")
    dpos = [st[0] + 1, st[2] + 1, st[4] + 1, st[6] + 1]
    if cfg.bm:
        assert cfg.lag % 4 == 2
        dpos = {1: [st[4] + 1, st[4] + 5, st[5] + 1, st[5] + 5], 2: [st[4] + 1, st[4] + 3, st[4] + 5, st[4] + 7], 3: [st[2] + 7, st[3] + 1, st[3] + 3, st[3] + 5],
                4: [st[4] + 1, st[4] + 2, st[4] + 3, st[4] + 4]}[cfg.bm]
    for k in range(0 if not cfg.uni else 4, 4):
        gp = 4 * j + 26 + k - cfg.lag
        if mode == "first" and k < 2 and not cfg.bm: continue
        if mode == "final":
            if gp < 128: q.place(piece(cfg, gp, True), [[st[0] + 1, st[0] + 5, st[1] + 1, st[1] + 3][k] if cfg.wsched in (0, 2) else dpos[k]])
            continue
        q.place(piece(cfg, gp, False, cfg.lag < 2), [dpos[k]])
    return st

def rowmax_l(t, t2):
    return [f"v_mov_b32 v{t2}, v{t}", "s_nop 1", f"v_permlane32_swap_b32 v{t}, v{t2}", f"v_max_f32 v{t}, v{t}, v{t2}",
            f"v_mov_b32 v{t2}, v{t}", "s_nop 1", f"v_permlane16_swap_b32 v{t}, v{t2}", f"v_max_f32 v{t}, v{t}, v{t2}"]

def scale_pack(cfg, b0, t, mul, pk):
    o = []
    if pk: o += [f"v_pk_mul_f32 {vr(b0+2*i,2)}, {vr(b0+2*i,2)}, {mul[1]}" for i in range(4)]
    else: o += [f"v_mul_f32 v{b0+i}, {mul[0]}, v{b0+i}" for i in range(8)]
    o += [f"v_cvt_pk_bf16_f32 v{t+i}, v{b0+2*i}, v{b0+2*i+1}" for i in range(4)]
    return o

def gen(cfg):
    if cfg.wsched == 2: UNIT[:] = UNIT2 if not cfg.wv else UNIT3
    if cfg.epark: WBLK[:] = WBLK2
    WBLK.extend([-224, -208, -192, -176][:cfg.R - 16])
    assert 112 + 20 * cfg.DO <= 240 - 16 * (cfg.R - 16)
    a = Asm()
    a("s_cmp_ge_u32 s2, 256")
    a("s_cbranch_scc1 L_end")
    a("s_mov_b32 s35, 0")
    a("L_restart:")
    stamp(a, cfg, "start")
    a("s_load_dwordx4 s[4:7], s[0:1], 0")
    a("s_load_dwordx4 s[44:47], s[0:1], 16")
    a("v_lshrrev_b32 v2, 6, v0")
    a("v_and_b32 v1, 63, v0")
    a("v_readfirstlane_b32 s3, v2")
    a("s_and_b32 s50, s2, 7")
    a("s_lshr_b32 s51, s2, 3")
    a("s_and_b32 s52, s51, 3")
    a("s_lshr_b32 s53, s51, 2")
    a("s_bfe_u32 s28, s2, 0x10000")
    a("s_lshl2_add_u32 s28, s28, s52")
    a("s_lshr_b32 s54, s50, 1")
    a("s_lshl3_add_u32 s29, s54, s53")
    a("s_add_u32 s52, s52, s53")
    a("s_and_b32 s52, s52, 1")
    a(f"s_mul_i32 s32, s52, {cfg.roff}")
    a("s_add_u32 s54, s54, s50")
    a("s_and_b32 s54, s54, 1")
    a("s_lshl1_add_u32 s32, s54, s32")
    if cfg.mapx:
        a("s_mov_b32 s28, s50")
        a("s_mov_b32 s29, s51")
        a("s_mul_i32 s32, s50, 5")
        a("s_lshr_b32 s32, s32, 2")
        if cfg.mapx == 2:
            a("s_and_b32 s52, s51, 1")
            a("s_mul_i32 s52, s52, 5")
            a("s_add_u32 s32, s32, s52")
            a("s_cmp_ge_u32 s32, 10")
            a("s_cselect_b32 s52, 10, 0")
            a("s_sub_u32 s32, s32, s52")
    if cfg.c0same:
        a("s_mov_b32 s30, %d" % (9 << 7))
        a("s_mov_b32 s31, %d" % (9 << 19))
    else:
        a("s_lshl_b32 s30, s32, 7")
        a("s_lshl_b32 s31, s32, 19")
    a("s_lshl_b32 s40, s3, 12")
    a("s_lshl1_add_u32 s36, s40, %d" % XBASE[0][0])
    a("s_add_u32 s39, s40, %d" % WWIN)
    a("v_lshrrev_b32 v3, 4, v1")
    a("v_lshrrev_b32 v4, 3, v1")
    a("v_and_b32 v5, 7, v1")
    a("v_and_b32 v2, 15, v1")
    a("s_mul_i32 s52, s3, %d" % (64 * 1280))
    a("v_mul_u32_u24 v8, 1280, v4")
    a("v_xor_b32 v9, v3, v5")
    a("v_lshlrev_b32 v9, 4, v9")
    a(f"v_add3_u32 v{XDA}, v9, s52, v8")
    a(f"v_xor_b32 v17, 64, v{XDA}")
    for pp in range(1, 8):
        a(f"v_add_u32 v{XDA+pp}, {10240*pp-1024*(pp&3)}, v{17 if pp & 1 else XDA}")
    a("s_lshl_b32 s52, s3, 17")
    a("v_lshlrev_b32 v8, 13, v3")
    a("v_and_b32 v9, 1, v3")
    a("v_lshrrev_b32 v10, 1, v3")
    a("v_lshl_or_b32 v9, v10, 2, v9")
    a("v_xor_b32 v9, v9, v2")
    a("v_lshlrev_b32 v9, 4, v9")
    a(f"v_add3_u32 v{WDA}, v9, s52, v8")
    a(f"v_xor_b32 v17, 128, v{WDA}")
    for pp in range(1, 4):
        a(f"v_add_u32 v{WDA+pp}, {32768*pp-1024*pp}, v{17 if pp >> 1 else WDA}")
    a("s_mul_i32 s52, s28, 307200")
    a("s_lshl_b32 s53, s29, 8")
    a.ext(srd(SX, 4, "s52", 307200)[2:] + srd(SW, 46, "s53", 640 * 8192 - 31 * 256)[2:])
    a("s_waitcnt lgkmcnt(0)")
    stamp(a, cfg, "kernarg")
    a.ext(srd(SX, 4, "s52", 307200)[:2] + srd(SW, 46, "s53", 0)[:2])

    def qstage(c):
        bf = c % 3
        o = [f"s_mov_b32 m0, s{36+bf}"]
        o += [dma(XDA + pp, SX, "s30", 1024 * pp, cfg.xflags) for pp in range(4)]
        o += [f"s_add_u32 m0, s{36+bf}, 4096"]
        o += [dma(XDA + 4 + pp, SX, "s30", 1024 * pp, cfg.xflags) for pp in range(4)]
        o += [f"s_add_u32 m0, s39, {WOFF[bf]}"]
        o += [dma(WDA + pp, SW, "s31", 1024 * pp, cfg.xflags) for pp in range(4)]
        if not (cfg.c0same and c == 0): o += ["s_add_u32 s32, s32, 1", f"s_cmp_eq_u32 s32, {9 if cfg.c0same else 10}", "s_cselect_b32 s32, 0, s32"]
        o += ["s_lshl_b32 s30, s32, 7", "s_lshl_b32 s31, s32, 19"]
        return tag(o, f"c{c}")
    a.ext(with_nop(qstage(0)))
    a("s_load_dwordx2 s[48:49], s[0:1], 56")
    if cfg.cwarm:
        a("s_getpc_b64 s[54:55]")
        a("L_cbase:")
        a("s_lshl2_add_u32 s52, s51, s3")
        a(f"s_mul_i32 s52, s52, {5 if cfg.w3 else 3}")
        a(f"v_min_u32 v18, {4 if cfg.w3 else 2}, v1")
        a("v_add_u32 v18, s52, v18")
        a("v_lshlrev_b32 v18, 7, v18")
        a("v_min_u32 v18, L_exact-L_cbase, v18")
        a("v_mov_b32 v19, s55")
        a("v_add_co_u32 v18, vcc, s54, v18")
        a("v_addc_co_u32 v19, vcc, 0, v19, vcc")
        a("global_load_dword v20, v[18:19], off")
    a("s_mov_b32 s33, s40" if not cfg.uni else "s_lshl_b32 s33, s3, 10")
    a("s_and_b32 s52, s3, 1")
    a("s_lshl_b32 s52, s52, 13")
    a("s_cmp_ge_u32 s3, 2")
    for bf in range(1, 3):
        a(f"s_mov_b32 s53, {XBASE[bf][0]}")
        a(f"s_cselect_b32 s{36+bf}, {XBASE[bf][1]}, s53")
    for bf in range(1, 3):
        a(f"s_add_u32 s{36+bf}, s{36+bf}, s52")
    a("v_bfe_u32 v6, v1, 2, 2")
    a("v_and_b32 v7, 3, v1")
    if cfg.c1first: a.ext(with_nop(qstage(1)))
    a("s_waitcnt lgkmcnt(0)")
    if cfg.sig == "line":
        a("s_lshl_b32 s52, s28, 5")
        a("s_add_u32 s52, s52, s29")
        a("s_lshl_b32 s52, s52, 7")
        a(f"s_add_u32 s52, s52, {FOFF}")
        a("v_mov_b32 v18, s52")
        a("v_mov_b32 v19, 0")
        a("s_mov_b64 exec, 1")
        a("global_store_dword v18, v19, s[48:49] sc1")
        a("s_mov_b64 exec, -1")
        a("v_and_b32 v0, 31, v1")
        a("v_lshlrev_b32 v0, 3, v0")
    a("s_load_dwordx4 s[56:59], s[0:1], 32")
    a("s_lshl_b32 s52, s28, 5")
    a("s_add_u32 s52, s52, s29")
    a("s_lshl_b32 s52, s52, 18")
    a.ext(srd(SK, 6, "s52", KVBYTES))
    a.ext(srd(SV, 44, "s52", KVBYTES))
    a("s_mul_i32 s52, s28, %d" % (15 * 131072))
    a.ext(srd(SO, 48, "s52", 15 * 131072))
    a("s_load_dwordx2 s[46:47], s[0:1], 48")
    a("v_lshlrev_b32 v10, 8, v3")
    if cfg.uni:
        a("s_lshl_b32 s52, s3, 2")
        a("v_add_u32 v8, s52, v3")
        a("v_xor_b32 v9, v8, v2")
        a(f"v_lshl_add_u32 v{KDA}, v9, 4, v10")
        a("v_and_b32 v8, 7, v8")
        a("v_lshlrev_b32 v8, 1, v8")
        a("v_xor_b32 v9, v8, v2")
        a(f"v_lshl_add_u32 v{VDA}, v9, 4, v10")
    else:
        for pp in range(4):
            a(f"v_add_u32 v9, {4*pp}, v3")
            a("v_xor_b32 v9, v9, v2")
            a(f"v_lshl_add_u32 v{KDA+pp}, v9, 4, v10")
        for pp in range(2):
            a(f"v_add_u32 v9, {4*pp}, v3")
            a("v_lshlrev_b32 v9, 1, v9")
            a("v_xor_b32 v9, v9, v2")
            a(f"v_lshl_add_u32 v{VDA+pp}, v9, 4, v10")
    a("v_lshrrev_b32 v9, 1, v2")
    for s in range(2):
        a(f"v_or_b32 v8, {4*s}, v3")
        a("v_xor_b32 v8, v8, v9")
        a("v_lshlrev_b32 v8, 4, v8")
        a("v_lshl_add_u32 v8, v2, 7, v8")
        for bf in range(3):
            a(f"v_add_u32 v{XRA+2*bf+s}, s{36+bf}, v8")
    a("v_lshrrev_b32 v11, 1, v7")
    a("v_and_b32 v12, 1, v7")
    a("v_lshlrev_b32 v12, 3, v12")
    a("v_and_b32 v9, 1, v6")
    a("v_lshrrev_b32 v10, 1, v6")
    a("v_lshl_or_b32 v9, v10, 2, v9")
    a("v_and_b32 v10, 1, v3")
    a("v_lshl_or_b32 v9, v10, 3, v9")
    a("v_lshl_or_b32 v9, v11, 1, v9")
    a("v_lshl_add_u32 v13, v3, 3, v6")
    a("v_lshl_add_u32 v13, v13, 8, v12")
    a(f"v_add_u32 v13, {WWIN}, v13")
    for dt in range(8):
        a(f"v_xor_b32 v8, {4*(dt>>1)+(dt&1)}, v9")
        a(f"v_lshl_add_u32 v{WRA+dt}, v8, 4, v13")
    a("v_lshl_or_b32 v9, v10, 2, v6")
    a("v_lshl_or_b32 v9, v9, 1, v11")
    a("v_lshl_add_u32 v14, v3, 2, v6")
    a("v_lshl_add_u32 v14, v14, 8, v12")
    a("v_add_u32 v14, 65536, v14")
    for dt in range(8):
        a(f"v_xor_b32 v8, {2*dt}, v9")
        a(f"v_lshl_add_u32 v{VRA+dt}, v8, 4, v14")
    for ks in range(4):
        a(f"v_or_b32 v8, {4*ks}, v3")
        a("v_xor_b32 v8, v8, v2")
        a("v_lshlrev_b32 v8, 4, v8")
        a(f"v_lshl_add_u32 v{KRA+ks}, v2, 8, v8")
    for i in range(4):
        a(f"v_mov_b32 v{MTR+i}, 0xff800000")
    a("v_lshlrev_b32 v15, 4, v1")
    a(f"v_and_b32 v8, {cfg.tl-1}, v1")
    a(f"v_lshrrev_b32 v9, {int(math.log2(cfg.tl))}, v1")
    a("v_lshlrev_b32 v9, 14, v9")
    a("v_lshl_add_u32 v219, v8, 7, v9")
    a("v_lshlrev_b32 v9, 1, v3")
    a("v_xor_b32 v9, v9, v5")
    a("v_lshlrev_b32 v9, 4, v9")
    a("v_mul_u32_u24 v8, 1280, v4")
    a("v_add_u32 v8, v8, v9")
    for pp in range(4):
        a(f"v_add_u32 v{WD+pp}, {pp*9216}, v8")
    a("v_lshl_add_u32 v14, v3, 2, v6")
    a("v_bfe_u32 v13, v14, 1, 2")
    a("v_lshl_or_b32 v13, v13, 1, v11")
    a("v_lshl_add_u32 v14, v14, 7, v12")
    a("v_add_u32 v14, s40, v14")
    for nt in range(4):
        a(f"s_add_u32 s53, s3, {nt}")
        a("s_and_b32 s53, s53, 3")
        a("s_lshl_b32 s53, s53, 1")
        a("v_xor_b32 v16, s53, v13")
        a(f"v_lshl_add_u32 v{WRL[0][nt]}, v16, 4, v14")
        a(f"v_add_u32 v{WRL[1][nt]}, 65536, v{WRL[0][nt]}")
        a(f"v_add_u32 v{WRL[2][nt]}, 131072, v{WRL[0][nt]}")
    for i in range(5): a(f"v_add_u32 v{OAL[i]}, {131072*i}, v15")
    a("s_min_u32 s51, s51, 29")
    a("s_cmp_ge_u32 s51, 15")
    a("s_cselect_b32 s52, 1, 0")
    a("s_cselect_b32 s53, 15, 0")
    a("s_sub_u32 s53, s51, s53")
    a("s_and_b32 s43, s50, 6")
    a("s_add_u32 s43, s43, s52")
    a("s_mul_i32 s54, s53, 52")
    a("s_lshr_b32 s54, s54, 8")
    a("s_mul_i32 s41, s54, 5")
    a("s_sub_u32 s53, s53, s41")
    a("s_and_b32 s55, s50, 1")
    a("s_mul_i32 s55, s55, 5")
    a("s_add_u32 s55, s55, s53")
    a("s_mul_i32 s52, s52, 3")
    a("s_add_u32 s41, s54, s52")
    a("s_mul_i32 s41, s41, 43")
    a("s_lshr_b32 s41, s41, 3")
    if cfg.rA:
        a(f"s_mul_i32 s53, s53, {cfg.rA}")
        a("s_add_u32 s41, s41, s53")
    if cfg.map3b:
        a("s_mov_b32 s43, s50")
        a("s_mul_i32 s54, s51, 26")
        a("s_lshr_b32 s54, s54, 8")
        a("s_mul_i32 s52, s54, 10")
        a("s_sub_u32 s55, s51, s52")
        a("s_mul_i32 s41, s54, 11")
        a("s_add_u32 s41, s41, s50")
        a("s_mov_b32 s34, 0")
    a("s_and_b32 s41, s41, 31")
    sc = f32(math.log2(math.e) / math.sqrt(128.0))
    if cfg.wpull:
        a("s_mul_i32 s52, s2, 160")
        a(f"s_mul_i32 s53, s3, {14 if cfg.wpull == 1 else 40}")
        a("s_add_u32 s52, s52, s53")
        a("v_add_u32 v218, s52, v1")
        a("v_lshlrev_b32 v218, 7, v218")
        a("v_mov_b32 v16, 0x7fffff80")
        a(f"v_cmp_gt_u32 vcc, {14 if cfg.wpull == 1 else 40}, v1")
        a("v_cndmask_b32 v255, v16, v218, vcc")
    if cfg.wl2:
        a("s_lshr_b32 s52, s2, 3")
        a("s_lshl_b32 s52, s52, 2")
        a("s_add_u32 s52, s52, s3")
        a("s_mul_i32 s52, s52, %d" % (32 * 1280))
        a("s_and_b32 s53, s50, 1")
        a("s_mul_i32 s53, s53, 640")
        a("s_add_u32 s52, s52, s53")
        a("v_mul_u32_u24 v16, 52, v1")
        a("v_lshrrev_b32 v16, 8, v16")
        a("v_mul_u32_u24 v17, 5, v16")
        a("v_sub_u32 v17, v1, v17")
        a("v_mul_u32_u24 v16, 1280, v16")
        a("v_lshl_add_u32 v16, v17, 7, v16")
        a("v_add_u32 v16, s52, v16")
        a("v_mov_b32 v17, 0x7fffff80")
        a("v_cmp_gt_u32 vcc, 15, v1")
        a("v_cndmask_b32 v255, v17, v16, vcc")
    a(f"s_mov_b32 s44, {sc}")
    a(f"s_mov_b32 s45, {sc}")
    if not cfg.c1first: a.ext(with_nop(qstage(1)))
    stamp(a, cfg, "issued")

    def qreads(c):
        bf = rb = c % 3
        o = []
        for s in range(2):
            o.append(f"ds_read_b128 {XF(rb,s,0)}, v{XRA+2*bf+s}")
        for dt in range(8):
            for s in range(2):
                for e in range(2):
                    o.append(f"ds_read_b64_tr_b16 {WF2(rb,s,dt,e)}, v{WRA+dt} offset:{WOFF[bf]+8192*s+1024*e}")
        for u in range(1, 4):
            for s in range(2):
                o.append(f"ds_read_b128 {XF(rb,s,u)}, v{XRA+2*bf+s} offset:{2048*u}")
        return o
    a("WAITVM c0 lgkmcnt(0)")
    a("s_barrier")
    stamp(a, cfg, "landed")
    r0 = qreads(0)
    if cfg.fast0: a.ext(r0[:14])
    else:
        a.ext(r0)
        a.ext(with_nop(qstage(2)))
    wp = ["s_mov_b32 s4, s56", "s_mov_b32 s5, s57", f"s_mov_b32 s6, {4096*1280}", "s_mov_b32 s7, 0x20000", "buffer_load_dword v218, v255, s[4:7], 0 offen"]
    if cfg.wpull == 2: a.ext(wp)
    a("s_waitcnt lgkmcnt(8)" if cfg.fast0 else "s_waitcnt lgkmcnt(0)")
    if cfg.w3:
        a("s_cmp_eq_u32 s3, 3")
        a("s_cbranch_scc1 L_w3")
        a("L_sec0:")
    q = Seq()
    per = []
    for c in range(10):
        rb = c % 3
        mf = []
        for u in range(4):
            for dt in range(8):
                d = vr(O_(u, dt), 4)
                for s in range(2):
                    mf.append(f"{MF} {d}, {WF(rb,s,dt)}, {XF(rb,s,u)}, {'0' if c == 0 and s == 0 else d}")
        if cfg.joint and c >= 8:
            mf = []
            for u in (2 * (c - 8), 2 * (c - 8) + 1):
                for dt in range(8):
                    d = vr(O_(u, dt), 4)
                    for cc in (8, 9):
                        for s in range(2): mf.append(f"{MF} {d}, {WF(cc%3,s,dt)}, {XF(cc%3,s,u)}, {d}")
        p0 = q.add(mf); per.append(p0)
        for x in stamp_l(a, cfg, f"q{c+1}"): q.put(p0 + 63, "!" + x)
    if cfg.lazy:
        A = dict(zip(range(1, 10), cfg.lazy))
        FR = {0: 22}
        for n in range(1, 10):
            assert A[n] >= 64 * (n - 2) and A[n] + 26 < 64 * n + 3, n
            q.put(A[n], f"WAITVM c{n}"); q.put(A[n], "s_barrier")
            fast = A[n] + 38 > 64 * n
            for i, r in enumerate(qreads(n)): q.put(A[n] + 1 + (i // 2 if fast else (i * 3) // 4), r)
            FR[n] = min(A[n] + (26 if fast else 36), 64 * n - 1)
        DE = 0
        for n in range(10):
            q.put(FR[n], "s_waitcnt lgkmcnt(0)"); q.put(FR[n], "s_barrier")
            if n + 3 < 10:
                p = max(FR[n] + 2, DE + 6)
                ps = [p + (cfg.bsp * i) // 12 for i in range(12)]
                q.place(qstage(n + 3), ps); DE = ps[-1]
                assert DE < A[n + 3] - 20, n
        BQ = {7: DE - cfg.bsp + 3, 8: FR[7], 9: FR[8], 10: FR[9]}
    else:
        BQ = {n: max(cfg.b1 + cfg.bsp * (n - 1), 64 * (n - 2)) for n in range(1, 10)}
        BQ[10] = BQ[9] + 44
        for n in range(1, 11):
            p = BQ[n]
            q.put(p, f"WAITVM c{n} lgkmcnt(0)" if n < 10 else "s_waitcnt lgkmcnt(0)"); q.put(p, "s_barrier")
            if n < 10:
                for i, r in enumerate(qreads(n)): q.put(p + 1 + (i * 3) // 4, r)
            if n + 2 < 10:
                q.place(qstage(n + 2), [p + 2 + (cfg.bsp * i) // 12 for i in range(12)])
            assert n == 1 or n == 10 or BQ[n + 1] < 64 * n, n
        q.put(63, "s_waitcnt lgkmcnt(0)")
    if cfg.fast0:
        for i, r in enumerate(r0[14:]): q.put(i // 2, r)
        for dt in range(1, 8):
            issued = min(40, 14 + 2 * (2 * dt - 1)); needed = 2 + 4 * (dt + 1)
            q.g[2 * dt - 1].insert(0, f"s_waitcnt lgkmcnt({min(15, issued - needed)})")
        q.g[15].insert(0, "s_waitcnt lgkmcnt(0)")
        q.place(qstage(2), [4 + i + i // 4 for i in range(12)])
    if cfg.wpull >= 3: q.place(wp, [per[cfg.wpull - 3] + 60])
    sw = ["s_mul_i32 s52, s3, %d" % (1024 * 1280), "s_lshl_b32 s53, s55, 7", "s_add_u32 s52, s52, s53"] + srd(SWO, 56, "s52", WOSZ) + \
         ["s_mul_i32 s52, s43, 15", "s_mul_i32 s53, s54, 5", "s_add_u32 s52, s52, s53", "s_lshl_b32 s52, s52, 17", "s_lshl_b32 s53, s3, 15",
          "s_add_u32 s52, s52, s53"] + srd(SOR, 48, "s52", ORSZ)
    if cfg.wpull == 1 or cfg.wl2: sw += ["s_mov_b32 s4, s56", "s_mov_b32 s5, s57", f"s_mov_b32 s6, {4096*1280}", "s_mov_b32 s7, 0x20000", "s_mov_b32 s38, 0"]
    i = per[8] + 2
    k = 0
    while k < len(sw):
        n = 2 if "s_addc" in sw[min(k + 1, len(sw) - 1)] else 1
        for x in sw[k:k + n]: q.put(i, x)
        k += n; i += 2
    p9 = per[9]
    def qepi(u):
        o = []
        for m in range(4):
            t = 16 + 4 * (m & 1)
            o += scale_pack(cfg, O_(u, 2 * m), t, ("s44", "s[44:45]"), cfg.pkmul)
            if m:
                tp = 16 + 4 * ((m - 1) & 1)
                o += [f"v_accvgpr_write_b32 a{Q_(u,m-1)+i}, v{tp+i}" for i in range(4)]
            o += [f"v_permlane16_swap_b32 v{t}, v{t+2}", f"v_permlane16_swap_b32 v{t+1}, v{t+3}"]
        o += [f"v_accvgpr_write_b32 a{Q_(u,3)+i}, v{20+i}" for i in range(4)]
        return o
    q.put(p9 + 31, "WAITVM seg0k" if cfg.split0 else "WAITVM seg0"); q.put(p9 + 31, "s_barrier")
    for x in stamp_l(a, cfg, "b0"): q.put(p9 + 31, "!" + x)
    k0r = [kread(0, 0, 0, kt, ks) for kt in range(2) for ks in range(4)]
    for i, r in enumerate(k0r): q.put(p9 + 32 + 2 * i, r)
    if cfg.joint:
        assert BQ[10] < per[8]
        e = q.stream(qepi(0), per[8] + 32 + 4, cap=cfg.jcap)
        e = q.stream(qepi(1), max(e, p9 + 4), cap=cfg.jcap)
        e = q.stream(qepi(2), max(e, p9 + 32 + 4), cap=cfg.jcap)
    else:
        e = q.stream(qepi(0), p9 + 16 + 4, cap=4)
        e = q.stream(qepi(1), max(e, p9 + 32 + 4), cap=4)
        e = q.stream(qepi(2), max(e, p9 + 48 + 4), cap=4)
    q.put(p9 + 62, "s_waitcnt lgkmcnt(0)")
    lab = q.raw([])
    for x in stamp_l(a, cfg, "g0"): q.put(len(q.m) - 1, "!" + x)
    g0 = q.add(qk(0, 0, True))
    g1 = q.add(qk(1, 0, True))
    g2 = q.add(qk(2, 0, True))
    v0r = [vread(0, 0, 0, dt, e_) for dt in range(8) for e_ in range(2)]
    k1r = [kread(1, 0, 1, kt, ks) for kt in range(2) for ks in range(4)]
    if cfg.split0:
        for i, r in enumerate(k1r): q.put(g0 + i, r)
        q.put(g1 - 1, "!WAITVM seg0"); q.put(g1 - 1, "!s_barrier")
        for i, r in enumerate(v0r): q.put(g1 + i, r)
    else:
        for i, r in enumerate(v0r + k1r): q.put(g0 + i, r)
    e = q.stream(qepi(3), max(e, g0), cap=4)
    def fmax(u):
        s0 = S_(u, 0); t = NM(u)
        o = [f"v_max3_f32 v{t}, v{s0}, v{s0+1}, v{s0+2}", f"v_max3_f32 v{t+1}, v{s0+3}, v{s0+4}, v{s0+5}",
             f"v_max3_f32 v{t}, v{t}, v{s0+6}, v{s0+7}", f"v_max3_f32 v{t}, v{t}, v{t+1}, v{MTR+u}"]
        return o + [x for x in rowmax_l(t, t + 1) if "s_nop" not in x]
    def fexp(u, nexp):
        s0 = S_(u, 0); t = NM(u)
        o = [f"v_sub_f32 v{s0+r}, v{s0+r}, v{t}" for r in range(8)]
        o += [f"v_exp_f32 v{s0+r}, v{s0+r}" for r in range(nexp)]
        o += [f"v_sub_f32 v{NM(u)+i}, 0, v{t}" for i in (1, 2, 3, 0)]
        o += [f"v_cvt_pk_bf16_f32 v{P_(u)+r//2}, v{s0+r}, v{s0+r+1}" for r in range(0, nexp, 2)]
        return o
    ones = [f"v_mov_b32 v{LA[u]}, 0" for u in cfg.addu] + ["v_mov_b32 v27, 0x3f803f80"] + [f"v_accvgpr_write_b32 a{ONES+i}, v27" for i in range(4)]
    e = q.stream(merge(fmax(0), fmax(1), ones), max(e, g2 + 1), cap=4)
    for x in stamp_l(a, cfg, "g3"): q.put(len(q.m) - 1, "!" + x)
    if cfg.epark:
        q.put(len(q.m) - 1, "!s_cmp_lg_u32 s35, 0"); q.put(len(q.m) - 1, "!s_cbranch_scc1 L_exact")
    g3 = q.add(qk(3, 0, True))
    e = q.stream(merge(fexp(0, 8), fmax(2)), g3, cap=6)
    q.raw(["s_waitcnt lgkmcnt(0)"])
    for x in stamp_l(a, cfg, "g4"): q.put(len(q.m) - 1, "!" + x)
    g4 = q.add(pv(0, 0, True))
    e = q.stream(merge(fexp(1, 8), fmax(3)), g4, cap=5)
    for x in stamp_l(a, cfg, "g5"): q.put(len(q.m) - 1, "!" + x)
    g5 = q.add(pv(1, 0, True))
    e = q.stream(merge(fexp(2, 8), fexp(3, 4)), g5, cap=7)
    for x in stamp_l(a, cfg, "tile1"): q.raw([x])
    st1 = attn_tile(cfg, q, 1, "first")
    if cfg.sig == "line":
        arr = ["s_and_b32 s52, s2, 31", "s_lshl_b32 s52, s52, 3", "v_mov_b32 v16, s52", "v_mov_b32 v17, 1", "s_cmp_lg_u32 s3, 0", "s_cbranch_scc1 L_noarr",
               "s_mov_b64 exec, 1", "global_atomic_add v16, v17, s[46:47] sc1 ;@skip", "s_mov_b64 exec, -1", "L_noarr:"]
        for x in arr: q.put(st1[8] - 1, "!" + x)
    kv = []
    NP = 32 - cfg.lag if not cfg.uni else cfg.ipre - 2
    if cfg.bm and not cfg.uni: NP = 30 - cfg.lag
    for gp in range(NP): kv += piece(cfg, gp, False) if not cfg.uni else upiece(cfg, gp)
    if cfg.uni:
        q.place(upiece(cfg, NP), [st1[4] + 1]); q.place(upiece(cfg, NP + 1), [st1[6] + 1])
    pos = []
    i = BQ[7] + cfg.bsp + 3; acc = 4 * cfg.kvpace
    free_at = [0, BQ[8], BQ[8], BQ[8], BQ[9], BQ[9], BQ[9], BQ[10]]
    if cfg.uni: free_at = [BQ[8], BQ[8], BQ[8], BQ[8], BQ[9], BQ[9], BQ[10], BQ[10]]
    while len(pos) < NP:
        ok = q.m[i] and q.m[i - 1] and q.m[i + 1] and (q.slots(i) < 2 or i > (p9 + 16 if not cfg.joint else per[8] + 32)) and i > free_at[len(pos) // 4]
        if ok and acc >= (cfg.kvpace if not cfg.bmi else (4 * cfg.kvpace - 3 * cfg.bmi if len(pos) % 4 == 0 else cfg.bmi)):
            pos.append(i); acc = 0
        acc += max(4, 2 + q.slots(i)) / 4
        i += 1
    assert pos[3 if cfg.split0 else 7] < p9 + 31 and pos[7] < g1 - 2 and pos[-1] < (st1[4] - 2 if cfg.bm != 3 else st1[2] + 3), (pos, p9, st1)
    if "nokv23" in cfg.exp: kv = [("buffer_dummy ;@" + x.split(";@")[1]) if (x.endswith("seg2") or x.endswith("seg3")) else x for x in kv]
    for k, (c, sg) in enumerate(cfg.touch):
        q.put(per[c] + cfg.tpos - 1, f"s_add_u32 s53, s40, {16384*sg}")
        q.put(per[c] + cfg.tpos, f"buffer_load_dword v255, v219, s[{SV if cfg.tkv[k % len(cfg.tkv)] == 'v' else SK}:{(SV if cfg.tkv[k % len(cfg.tkv)] == 'v' else SK)+3}], s53 offen {cfg.tflags}".rstrip())
    q.place(kv, pos)
    q.emit(a)
    a.l = fix(resolve_waits(a.l))
    a("s_mov_b32 s34, 3")
    a(".p2align 6")
    a("L_loop:")
    body0 = len(a.l)
    q = Seq()
    def loopstamp(q, p, pre):
        if cfg.stamps and pre in cfg.only.split(","):
            o = ["s_memtime s[4:5]", "s_memrealtime s[6:7]", "s_waitcnt lgkmcnt(0)"]
            for it in range(3):
                i = len(a.stamps); a.stamps.append(f"{pre}{it}")
                o += [f"s_cmp_eq_u32 s34, {3-it}", f"s_cselect_b32 s{60+4*i}, s4, s{60+4*i}", f"s_cselect_b32 s{62+4*i}, s6, s{62+4*i}"]
            for x in o: q.put(p, x)
    for j in range(2, 10):
        st = attn_tile(cfg, q, j)
        if j == 2: loopstamp(q, st[4] - 1, "ia")
        if j == 6: loopstamp(q, st[4] - 1, "ib")
        if cfg.wl2 and j % 2 == 0:
            q.put(st[3] + 1, f"buffer_load_dword v16, v255, s[4:7], s38 offen {cfg.wl2f}".rstrip())
            q.put(st[3] + 2, f"s_add_u32 s38, s38, {3*1280}")
        if cfg.wpull == 1 and j == 4:
            q.put(st[3] + 1, "buffer_load_dword v16, v255, s[4:7], s38 offen")
            q.put(st[3] + 2, f"s_add_u32 s38, s38, {56*128}")
        if j in (5, 7):
            for x in reversed(stamp_l(a, cfg, f"w{j}a")): q.g[st[4] - 1].insert(0, x)
            for x in stamp_l(a, cfg, f"w{j}b"): q.put(st[4] - 1, x)
        if j == 6:
            for x in reversed(stamp_l(a, cfg, f"d{j}a")): q.g[st[2] + 1].insert(0, x)
            for x in stamp_l(a, cfg, f"d{j}b"): q.put(st[2] + 1, "!" + x)
    if cfg.uni:
        n = len(q.m); cnt = cfg.upi; ps = []
        for k in range(cnt):
            if cfg.ucl:
                p = int((k // cfg.ucl + cfg.uph) * n / (cnt // cfg.ucl)) + 1 if k % cfg.ucl == 0 else ps[-1] + 2
                while q.slots(p) >= (2 if k % cfg.ucl == 0 else 3) or any(x.startswith("v_exp") for x in q.g[p]) or "UNIWAIT" in q.g[p] or "UNIWAIT" in q.g[p - 1]: p += 1
            else:
                p = int((k + 0.1) * n / cnt) + 1
                while q.slots(p) >= 2 or "UNIWAIT" in q.g[p] or "UNIWAIT" in q.g[p - 1]: p += 1
            ps.append(p)
        assert ps[-1] < n - 4 and cfg.ipre % 2 == 0 and cnt % 2 == 0
        for k, p in enumerate(ps): q.place(upiece(cfg, k), [p])
        for bi, p in enumerate([i for i in range(n) if "UNIWAIT" in q.g[i]]):
            before = sum(1 for x in ps if x < p)
            m = 2 + bi + 8
            nw = cfg.ipre + 2 * cnt + before - 8 * (m + 1)
            assert cfg.ipre + before <= 8 * (2 + bi - 1 + 4) and nw >= 4, (bi, nw)
            q.g[p][q.g[p].index("UNIWAIT")] = f"s_waitcnt vmcnt({nw}) lgkmcnt(0)"
        IEND = cfg.ipre + 3 * cnt
    if "lnobar" in cfg.exp: q.g = [[x for x in gp if x != "s_barrier"] for gp in q.g]
    if "lnodma" in cfg.exp: q.g = [[x for x in gp if kind(x.lstrip("!")) != "vm"] for gp in q.g]
    if "lnods" in cfg.exp: q.g = [[x for x in gp if kind(x.lstrip("!")) != "ds"] for gp in q.g]
    if "lnowait" in cfg.exp: q.g = [[x for x in gp if not (x.startswith("s_waitcnt") and "s_cmp_eq_u32 s34, 3" not in gp)] for gp in q.g]
    if "lnocvt" in cfg.exp: q.g = [[x for x in gp if not x.startswith("v_cvt")] for gp in q.g]
    q.put(-3, "s_sub_u32 s34, s34, 1")
    q.put(-1, "s_cmp_lg_u32 s34, 0"); q.put(-1, "s_cbranch_scc1 L_loop")
    q.emit(a)
    a.l = a.l[:body0] + [x.split(" ;@")[0] for x in a.l[body0:]]
    body = a.l[body0:]
    b = Asm(); b.stamps = a.stamps
    if cfg.uni:
        for gp in range(104, IEND): b(f"buffer_dummy ;@seg{gp//8}" + ("k" if gp >= 120 and gp % 2 == 0 else ""))
    else:
        for gp in range(104, 130 - cfg.lag): b(f"buffer_dummy ;@seg{gp//8}" + ("k" if gp % 8 < 4 else ""))
    q = Seq()
    if "nowo" in cfg.exp: b(f"s_mov_b32 s{SWO+2}, 0")
    for x in stamp_l(b, cfg, "t26"): b(x)
    sts = {j: attn_tile(cfg, q, j, "final") for j in range(26, 30)}
    if cfg.uni:
        rest = [(0, n_) for n_ in range(IEND // 2, 64)] + [(1, n_) for n_ in range(IEND // 2, 64)]
        p = sts[26][0] + 2
        for kv_, n_ in rest:
            d = 4096 * (n_ - IEND // 2)
            lst = [f"s_add_u32 s53, s33, {d}", f"s_and_b32 m0, s53, 0xffff"] + (["s_or_b32 m0, m0, 0x10000"] if kv_ else []) + \
                  [dma(VDA if kv_ else KDA, SV if kv_ else SK, "s53", 0, cfg.kvflags) + f" ;@seg{n_>>2}" + ("k" if not kv_ and n_ >= 60 else "")]
            pp_ = max(p, sts[26][0] + 3)
            while q.slots(pp_) >= 2 and not cfg.ucl: pp_ += 1
            q.place(lst, [pp_]); p = max(p + cfg.urest, pp_ + (5 if not cfg.ucl else (3 if not kv_ and n_ < 63 else 4))); KVEND = pp_
    def wpos(st, half):
        return [st[4*half] + 1, st[4*half+1] + 8 if half == 0 else st[5] + 1, st[4*half+2] + (7 if half == 0 else 1), st[4*half+3] + 1]
    if cfg.wsched == 0:
        for j, (t0, t1) in {26: (0, 1), 27: (2, 3), 28: (4, 5), 29: (10, 6)}.items():
            st = sts[j]
            q.place(wdma(cfg, t0), [st[1] + 8, st[2] + 7, st[3] + 1, st[3] + 5])
            q.place(wdma(cfg, t1), [st[5] + 8, st[6] + 1, st[6] + 5, st[7] + 5])
    elif cfg.wsched >= 3:
        pass
    elif cfg.wsched == 2:
        st = sts[26]
        if cfg.uni and cfg.ucl:
            assert KVEND < st[4] - 3
            q.place(wdma(cfg, 0), [st[4] + 1, st[5] + 1, st[5] + 8, st[7] + 1])
        elif cfg.uni:
            st = sts[27]
            assert KVEND < st[0] - 6
            q.place(wdma(cfg, 0), [st[0] + 1, st[1] + 3, st[2] + 1, st[3] + 1])
            q.place(wdma(cfg, 1), [st[4] + 1, st[5] + 3, st[6] + 1, st[7] + 1])
            st = sts[28]
            q.place(wdma(cfg, 2), [st[0] + 1, st[1] + 1, st[1] + 8, st[2] + 5])
            q.place(wdma(cfg, 5), [st[3] + 3, st[3] + 5, st[3] + 7, st[4] + 1])
            q.place(wdma(cfg, 6), [st[5] + 8, st[6] + 1, st[6] + 5, st[7] + 5])
        else: q.place(wdma(cfg, 0), [st[2] + 7, st[4] + 1, st[5] + 8, st[7] + 1])
        if cfg.wv:
            st = sts[29]
            q.place(wdma(cfg, 6), [st[0] + 5, st[1] + 8, st[2] + 7, st[3] + 5])
            q.place(wdma(cfg, 4), [st[4] + 5, st[4] + 7, st[5] + 3, st[5] + 7])
            q.place(wdma(cfg, 7), [st[6] + 5, st[6] + 7, st[7] + 3, st[7] + 5])
        for j, (t0, t1) in (({27: (1, 5), 28: (2, 6), 29: (3, 7)} if not cfg.wv else {27: (1, 5), 28: (2, 3)}) if not cfg.uni or cfg.ucl else {29: (3, 7)}).items():
            st = sts[j]
            q.place(wdma(cfg, t0), [st[0] + 5, st[1] + 8, st[2] + 7, st[3] + 5])
            q.place(wdma(cfg, t1), [st[5] + 8, st[6] + 1, st[6] + 5, st[7] + 5])
    else:
        st = sts[27]
        q.place(wdma(cfg, 0), [st[5] + 8, st[6] + 1, st[6] + 5, st[7] + 5])
        st = sts[28]
        q.place(wdma(cfg, 1), [st[0] + 5, st[0] + 7, st[1] + 1, st[1] + 3])
        q.place(wdma(cfg, 2), [st[2] + 1, st[2] + 7, st[3] + 1, st[3] + 5])
        q.place(wdma(cfg, 3), [st[5] + 8, st[6] + 1, st[6] + 5, st[7] + 5])
        st = sts[29]
        q.place(wdma(cfg, 4), [st[0] + 5, st[0] + 7, st[1] + 1, st[1] + 3])
        q.place(wdma(cfg, 5), [st[2] + 1, st[2] + 3, st[2] + 5, st[2] + 7])
        q.place(wdma(cfg, 10), [st[3] + 5, st[3] + 7, st[4] + 1, st[4] + 3])
        q.place(wdma(cfg, 6), [st[5] + 8, st[6] + 1, st[6] + 5, st[7] + 5])
    if cfg.sig == "line": q.put(sts[26][3] + 1, "global_load_dword v255, v0, s[46:47] sc1 ;@arr")
    if cfg.tlb:
        so = ["s_mul_i32 s52, s43, 240", "s_mul_i32 s53, s54, 80", "s_add_u32 s52, s52, s53", "s_mul_i32 s52, s52, 1280", "s_lshl_b32 s53, s55, 7", "s_add_u32 s52, s52, s53"]
        st = sts[27]
        for k, x in enumerate(so): q.g[st[4] + 2 + k].insert(0, x)
        sd = srd(SOUT, 58, "s52", 79 * 1280 + 128)
        q.g[st[4] + 8][0:0] = sd[:2]; q.g[st[5]][0:0] = sd[2:]
        q.put(st[5] + 1, f"buffer_load_dword v16, off, s[{SOUT}:{SOUT+3}], 0")
        q.put(st[5] + 3, f"buffer_load_dword v16, off, s[{SO}:{SO+3}], 0")
        q.put(st[5] + 5, f"buffer_load_dword v16, off, s[{SOR}:{SOR+3}], 0")
    if cfg.wsched < 3:
        st = sts[28]
        q.g[st[5] + 8].insert(0, "WAITVM w0")
        q.g[sts[29][4]].insert(0, "WAITVM w1")
        for p, r in zip([st[5] + 8, st[6] + 1, st[6] + 3, st[6] + 5, st[6] + 7, st[7] + 1, st[7] + 1, st[7] + 3], wreads(0)): q.put(p, r)
        k = q.g[st[8] - 2].index("s_waitcnt lgkmcnt(0)"); q.g[st[8] - 2][k] = "s_waitcnt lgkmcnt(8)"
        st = sts[29]
        q.put(st[1] + 7, "s_waitcnt lgkmcnt(10)")
        for p, r in zip([st[4] + 1, st[4] + 5, st[5] + 1, st[5] + 5, st[5] + 8, st[6] + 1, st[6] + 3, st[6] + 5], wreads(1)): q.put(p, r)
        k = q.g[st[7]].index("s_waitcnt lgkmcnt(0)"); q.g[st[7]][k] = "s_waitcnt lgkmcnt(4)"
    st = sts[29]
    for p, r in zip([st[7] + k for k in (1, 1, 3, 5, 7, 8, 8)] + [st[8]], [kread(1, 3, 1, kt, ks) for kt in range(2) for ks in range(4)]):
        if p < st[8]: q.put(p, r)
        else: lastk = r
    for x in stamp_l(b, cfg, "t30"): q.put(len(q.m) - 1, "!" + x)
    if cfg.w3: q.put(len(q.m) - 1, "!L_sec1:")
    job = lambda k: (k >> 1, k & 1, k & 3)
    F = []
    for k in range(8):
        u, tb, sl = job(k)
        F.append(q.add(qk(u, tb, sl=sl)))
        if k < 2: F.append(q.add(pv(2 + k, 1)))
        else:
            u, tb, sl = job(k - 2); F.append(q.add(pv(u, tb, sl=sl)))
    for k in (6, 7):
        u, tb, sl = job(k); F.append(q.add(pv(u, tb, sl=sl)))
    F.append(len(q.m))
    sm_half(q, F[0], 3, 1)
    for k in range(8):
        sm_half(q, F[2 * k + 1], k & 3, 0); sm_half(q, F[2 * k + 2], k & 3, 1)
    q.put(F[0] + 1, lastk)
    v30 = [vread(0, 3, 0, dt, e) for dt in range(8) for e in range(2)]
    v31 = [vread(1, 3, 1, dt, e) for dt in range(8) for e in range(2)]
    if not cfg.split15:
        for p, r in zip([F[0] + k for k in (1, 3, 5, 5, 7)] + [F[1] + k for k in (1, 1, 3, 5, 5, 7)] + [F[2] + k for k in (1, 1, 3, 5, 5)], v30): q.put(p, r)
        q.put(F[1] + 8, "s_waitcnt lgkmcnt(10)")
        for p, r in zip([F[4] + k for k in (1, 1, 3, 5, 5, 7)] + [F[5] + k for k in (1, 1, 3, 5, 5, 7, 8, 8)] + [F[6] + k for k in (1, 1)], v31): q.put(p, r)
        q.put(F[4], "s_waitcnt lgkmcnt(0)")
        q.place(wdma(cfg, 11), [F[2] + 7, F[3] + 1, F[3] + 3, F[3] + 5])
        q.place(wdma(cfg, 7), [F[5] + 3, F[5] + 7, F[6] + 3, F[6] + 5])
    else:
        q.put(F[1] + 8, "WAITVM seg15 lgkmcnt(0)"); q.put(F[1] + 8, "s_barrier")
        for p, r in zip([F[2] + k for k in (1, 1, 3, 5, 5, 7)] + [F[3] + k for k in (1, 1, 3, 5, 5, 7, 8, 8)] + [F[4] + k for k in (1, 1)], v30): q.put(p, r)
        for p, r in zip([F[4] + k for k in (3, 5, 5, 7)] + [F[5] + k for k in (1, 1, 3, 5, 5, 7, 8, 8)] + [F[6] + k for k in (1, 1, 3, 3)], v31): q.put(p, r)
        q.put(F[5] - 1, "s_waitcnt lgkmcnt(3)")
        if cfg.wsched >= 3:
            pass
        elif cfg.wv:
            q.place(wdma(cfg, 10), [F[0] + 5, F[0] + 7, F[1] + 3, F[1] + 7] if cfg.wv == 1 else [F[2] + 4, F[2] + 6, F[3], F[3] + 2])
            q.place(wdma(cfg, 11), [F[4], F[4] + 2, F[4] + 4, F[4] + 6])
        elif cfg.wsched == 2:
            q.place(wdma(cfg, 4), [F[0] + 5, F[0] + 7, F[1] + 3, F[1] + 7])
            q.place(wdma(cfg, 10), [F[2] + 4, F[2] + 6, F[3], F[3] + 2])
            q.place(wdma(cfg, 11), [F[4], F[4] + 2, F[4] + 4, F[4] + 6])
        else:
            q.place(wdma(cfg, 11), [F[0] + 5, F[0] + 7, F[1] + 1, F[1] + 3])
            q.place(wdma(cfg, 7), [F[2], F[2] + 4, F[3] + 2, F[3] + 6])
    q.put(F[7] - 1, "s_waitcnt lgkmcnt(0)"); q.put(F[7] - 1, "s_barrier")
    issued = set(range(12))
    if cfg.wsched < 3:
        q.place(wdma(cfg, 8), [F[7] + 5, F[7] + 7, F[7] + 8, F[8] + 1])
        q.place(wdma(cfg, 9), [F[8] + 7, F[9] + 1, F[9] + 3, F[9] + 5])
    else:
        issued = set()
        free = {0: 0, 4: 0, 8: 0, 9: 0, 1: sts[27][4], 5: sts[27][4], 2: sts[29][4], 6: sts[29][4], 3: F[7], 7: F[7]}
        p = sts[26][4] + 1 + cfg.wdelay
        for t in range(cfg.wn):
            sp = cfg.wp if t < 5 else cfg.wp2
            p = max(p, free[UNIT[t]] + 6)
            ps = []
            for k in range(4):
                pp_ = p
                while t < 5 and q.slots(pp_) >= 2: pp_ += 1
                ps.append(pp_); p = max(p + sp, pp_ + (1 if k < 3 else 6))
            assert ps[-1] < F[18], (t, ps)
            q.place(wdma(cfg, t), ps); issued.add(t)
    if "nost" in cfg.exp: q.g[F[4]].insert(0, f"s_mov_b32 s{SO+2}, 0")
    def onorm(u, store=True):
        o = [f"v_accvgpr_read_b32 v16, a{L_(u)}"]
        if u in cfg.addu:
            t = LA[u]
            o += [f"v_mov_b32 v17, v{t}", f"v_permlane32_swap_b32 v{t}, v17", f"v_add_f32 v{t}, v{t}, v17",
                  f"v_mov_b32 v17, v{t}", f"v_permlane16_swap_b32 v{t}, v17", f"v_add_f32 v{t}, v{t}, v17", f"v_add_f32 v16, v16, v{t}"]
        o += ["v_cmp_ngt_f32 vcc, s36, v16", "v_rcp_f32 v16, v16", "s_or_b64 s[50:51], s[50:51], vcc", "v_mov_b32 v17, v16"]
        for m in range(4):
            t = O_(u, 0) + 4 * m
            o += scale_pack(cfg, O_(u, 2 * m), t, ("v16", "v[16:17]"), cfg.opk == 1 or (cfg.opk == 2 and u == 3))
            if store: o += ostore(u)[m:m + 1]
        if store: o += ostore(u)[4:]
        return o
    def ostore(u):
        return [f"buffer_store_dwordx4 {vr(O_(u,0)+4*m,4)}, v15, s[{SO}:{SO+3}], s30 offen offset:{1024*m} {cfg.oflags}".rstrip() + " ;@ost" for m in range(4)] + ["s_add_u32 s30, s30, 131072"]
    for k, x in enumerate([f"s_mov_b32 s36, {f32(cfg.lthr)}", "s_mov_b64 s[50:51], 0", "s_lshl_b32 s30, s3, 19", "s_lshl_b32 s31, s29, 12", "s_add_u32 s30, s30, s31"]):
        q.g[F[4] + 2 + k].insert(0, x)
    for k in (2, 4, 6, 8, 10, 12, 14, 16):
        for x in stamp_l(b, cfg, f"F{k}"): q.put(F[k] - 1, "!" + x)
    if cfg.epark:
        def epark(t, p0, refill_at):
            q.g[p0].insert(0, f"WAITVM w{t}")
            for k, r in enumerate(wreads(t)): q.put(p0 + 2 * (k // 2), r)
            if refill_at:
                q.place(wdma(cfg, t + 10), refill_at)
                q.g[refill_at[0]].insert(0, f"WAITLG p{t}")
        epark(2, F[7] + 1, [F[10] + 3, F[10] + 5, F[10] + 7, F[11] + 1])
        epark(3, F[9] + 1, [F[11] + 7, F[11] + 8, F[12] + 1, F[12] + 3])
        epark(5, F[11] + 2, [F[13] + 1, F[13] + 3, F[13] + 5, F[13] + 7])
        epark(6, F[13] + 2, [F[14] + 5, F[14] + 7, F[15] + 1, F[15] + 3])
        epark(7, F[14] + 1, [F[16] + 1, F[16] + 3, F[16] + 5, F[16] + 7])
        epark(4, F[15] + 2, [F[17] + 5, F[17] + 6, F[17] + 7, F[17] + 8])
        epark(8, F[16] + 2, None)
        epark(9, F[17] + 1, None)
    if cfg.fsig:
        for t, p0 in ((2, F[13] + 2), (3, F[14] + 1), (4, F[15] + 2), (5, F[16] + 1)):
            q.g[p0].insert(0, f"WAITVM w{t}")
            for k, r in enumerate(wreads(t)): q.put(p0 + 2 * (k // 2), r)
    if cfg.early == 1:
        e = q.stream(onorm(0), F[8] + 4, cap=cfg.ncap)
        e = q.stream(onorm(1), max(e, F[12] + 4), cap=cfg.ncap)
        e = q.stream(onorm(2), max(e, F[16] + 4), cap=cfg.ncap + 2)
    if cfg.early >= 2:
        e = q.stream(onorm(0, False), F[8] + 4, cap=cfg.ncap)
        e = q.stream(onorm(1, False), max(e, F[12] + 4), cap=cfg.ncap)
        e = q.stream(onorm(2, False), max(e, F[16] + 4), cap=cfg.ncap + 2)
        if cfg.early == 3:
            for k, x in enumerate(ostore(0) + ostore(1)): q.put(min(F[16] + 8 + k, F[18] - 1), x if kind(x) == "vm" else "!" + x)
    q.emit(b)
    if cfg.early == 2: b.ext(ostore(0) + ostore(1) + ostore(2))
    if cfg.early == 3: b.ext(ostore(2))
    if not cfg.early: b.ext(onorm(0) + onorm(1) + onorm(2))
    stamp(b, cfg, "loopend")
    if "nowo" in cfg.exp: b(f"s_mov_b32 s{SWO+2}, {WOSZ}")
    def park(t): return [f"WAITVM w{t}"] + wreads(t)
    def refill(t): return with_nop(wdma(cfg, t + 10))
    DU = UNIT[9 if cfg.epark else 2]
    if cfg.fsig:
        on3 = onorm(3)
        k3 = on3.index("s_or_b64 s[50:51], s[50:51], vcc") + 1
        b.ext(on3[:k3])
        if cfg.force_fb: b("s_mov_b64 s[50:51], -1")
        b("s_cmp_lg_u64 s[50:51], 0")
        b("s_cselect_b32 s52, 1, 0")
        b(f"s_add_u32 s53, s40, {16384*DU}")
        b("v_mov_b32 v20, s52")
        b("v_mov_b32 v21, s53")
        b("WAITLG p2")
        b("ds_write_b32 v21, v20")
        b.ext(on3[k3:])
        stamp(b, cfg, "stored")
        b("v_and_b32 v18, 3, v1")
        b("v_lshlrev_b32 v18, 12, v18")
        b(f"v_add_u32 v18, {16384*DU}, v18")
        b("s_waitcnt lgkmcnt(0)")
        b("s_barrier")
        b("ds_read_b32 v20, v18")
        b.ext(refill(3) + refill(4))
        b("s_waitcnt lgkmcnt(0)")
        b("v_cmp_ne_u32 vcc, 0, v20")
        b("s_cmp_eq_u32 s35, 0")
        b("s_cselect_b64 s[52:53], vcc, 0")
        b("s_cmp_lg_u64 s[52:53], 0")
        b("s_cbranch_scc1 L_exact")
        if cfg.fsig == 2: b.ext(park(6) + park(7))
    else:
        if cfg.wsched >= 3:
            DU = UNIT[0] if cfg.wn else UNIT[9]
            late = [t for t in range(10) if t not in issued]
            for t in late[:3]:
                if UNIT[t] != DU: b.ext(with_nop(wdma(cfg, t))); issued.add(t)
            if cfg.wn: b.ext(park(0))
        elif cfg.epark: b.ext(park(10) + park(11))
        else: b.ext(park(2) + park(3))
        b.ext(onorm(3))
        stamp(b, cfg, "stored")
        if cfg.force_fb: b("s_mov_b64 s[50:51], -1")
        b("s_cmp_lg_u64 s[50:51], 0")
        b("s_cselect_b32 s52, 1, 0")
        b(f"s_add_u32 s53, s40, {16384*DU}")
        b("v_mov_b32 v16, s52")
        b("v_mov_b32 v17, s53")
        b("v_and_b32 v18, 3, v1")
        b("v_lshlrev_b32 v18, 12, v18")
        b(f"v_add_u32 v18, {16384*DU}, v18")
        b("s_waitcnt lgkmcnt(0)")
        b("ds_write_b32 v17, v16")
        if cfg.wsched >= 3: pass
        elif cfg.epark: b.ext(refill(8) + park(12) + park(13))
        else: b.ext(refill(3) + park(4) + park(5))
        b("s_waitcnt lgkmcnt(0)")
        b("s_barrier")
        b("ds_read_b32 v20, v18")
        parked = [0] if cfg.wsched >= 3 and cfg.wn else []
        if cfg.wsched >= 3:
            for t in range(1, min(cfg.wn, 6)): b.ext(park(t)); parked.append(t)
        elif cfg.epark: b.ext(refill(10))
        else: b.ext(refill(4) + park(6) + park(7))
        b("s_waitcnt lgkmcnt(0)")
        b("v_cmp_ne_u32 vcc, 0, v20")
        b("s_cmp_eq_u32 s35, 0")
        b("s_cselect_b64 s[52:53], vcc, 0")
        b("s_cmp_lg_u64 s[52:53], 0")
        b("s_cbranch_scc1 L_redo" if cfg.epark else "s_cbranch_scc1 L_exact")
        if not cfg.sigfirst: b.ext(park(8) + park(9) + park(10) + park(11))
    if cfg.sig == "line":
        b("s_lshl_b32 s52, s28, 5")
        b("s_add_u32 s52, s52, s29")
        b("s_lshl_b32 s52, s52, 7")
        b(f"s_add_u32 s52, s52, {FOFF}")
    else:
        b("s_lshl_b32 s52, s28, 2")
        b("s_lshr_b32 s53, s29, 3")
        b("s_add_u32 s52, s52, s53")
        b("s_lshl_b32 s52, s52, 3")
    b("v_mov_b32 v16, s52")
    b("v_mov_b32 v17, 1")
    if cfg.wsched >= 3:
        for t in parked[1:3]: b.ext(refill(t)); issued.add(t + 10)
    elif cfg.epark: b.ext(refill(11))
    elif cfg.pre5: b.ext(refill(5))
    b("WAITVM ost")
    b("s_barrier")
    b("s_cmp_lg_u32 s3, 0")
    b("s_cbranch_scc1 L_nosig")
    b("s_mov_b64 exec, 1")
    if cfg.sig == "line": b("global_store_dword v16, v17, s[48:49] sc1 ;@skip")
    else: b("global_atomic_add v16, v17, s[46:47] sc1 ;@skip")
    b("s_mov_b64 exec, -1")
    b("L_nosig:")
    stamp(b, cfg, "signaled")
    b("s_lshr_b32 s52, s2, 3")
    b("s_cmp_ge_u32 s52, 30")
    b("s_cbranch_scc1 L_fin")
    if cfg.wsched >= 3:
        for t in range(10):
            if t not in issued: b.ext(with_nop(wdma(cfg, t))); issued.add(t)
        for t in parked:
            if t + 10 not in issued: b.ext(refill(t)); issued.add(t + 10)
        prev = None
        for t in range(12):
            if t in parked: continue
            b.ext(park(t))
            if prev is not None: b(f"WAITLG p{prev}"); b.ext(refill(prev))
            prev = t
        b("s_waitcnt lgkmcnt(0)")
        b.ext(refill(prev))
    elif cfg.epark:
        b.ext(refill(9) + refill(12))
    elif cfg.fsig:
        b.ext(refill(2) + ([] if cfg.fsig == 2 else park(6) + park(7)) + park(8) + park(9))
        b("WAITLG p7")
        b.ext(refill(6) + park(10) + park(11) + refill(7))
        b("s_waitcnt lgkmcnt(0)")
        for t in range(8, 12): b.ext(refill(t))
    elif cfg.sigfirst:
        b.ext(refill(2) + ([] if cfg.pre5 else refill(5)) + park(8) + park(9) + refill(6) + park(10) + park(11) + refill(7))
        b("s_waitcnt lgkmcnt(0)")
        for t in range(8, 12): b.ext(refill(t))
    else:
        b("s_waitcnt lgkmcnt(0)")
        b.ext(refill(2))
        for t in range(5, 12): b.ext(refill(t))
    b("s_lshl_b32 s52, s43, 2")
    b("s_add_u32 s52, s52, s3")
    if cfg.sig == "line":
        b("s_lshl_b32 s52, s52, 10")
        b(f"s_add_u32 s52, s52, {FOFF}")
        b("v_and_b32 v16, 7, v1")
        b("v_lshlrev_b32 v16, 7, v16")
        b("v_add_u32 v16, s52, v16")
        pbase = "s[48:49]"
    else:
        b("s_lshl_b32 s52, s52, 3")
        b("v_mov_b32 v16, s52")
        pbase = "s[46:47]"
    prev = 13 if cfg.epark else None
    for t in range(14 if cfg.epark else 12, cfg.R):
        if cfg.epoll and t == max(cfg.epoll, 14 if cfg.epark else 0): b(f"global_load_dword v17, v16, {pbase} sc1 ;@ep")
        b.ext(park(t))
        if prev is not None and prev + 10 < cfg.X:
            b("s_waitcnt lgkmcnt(8)")
            b.ext(refill(prev))
        prev = t
    b("s_waitcnt lgkmcnt(0)")
    if prev + 10 < cfg.X: b.ext(refill(prev))
    stamp(b, cfg, "parked")
    b("s_mov_b32 s34, 0x100000")
    want = 1 if cfg.sig == "line" else 8
    cmpi = "v_cmp_ne_u32 vcc, 1, v17" if cfg.sig == "line" else "v_cmp_gt_u32 vcc, 8, v17"
    if cfg.sig == "line":
        b("WAITVM arr")
        b("v_cmp_gt_u32 vcc, 8, v255")
        b("s_cbranch_vccz L_cleared")
        b("L_wclr:")
        b("global_load_dword v255, v0, s[46:47] sc1 ;@skip")
        b("s_waitcnt vmcnt(0)")
        b("v_cmp_gt_u32 vcc, 8, v255")
        b("s_sub_u32 s34, s34, 1")
        b("s_cselect_b64 vcc, 0, vcc")
        b("s_cbranch_vccnz L_wclr")
        b("s_branch L_poll")
        b("L_cleared:")
    if cfg.epoll:
        b("WAITVM ep")
        b(cmpi)
        b("s_cbranch_vccz L_ready")
    b("L_poll:")
    b(f"global_load_dword v17, v16, {pbase} sc1")
    b("s_waitcnt vmcnt(0)")
    b(cmpi)
    b("s_sub_u32 s34, s34, 1")
    b("s_cselect_b64 vcc, 0, vcc")
    b("s_cbranch_vccnz L_poll")
    b("L_ready:")
    stamp(b, cfg, "polled")
    worder = [x.split(";@")[1] for x in b.l if ";@w" in x and kind(x) == "vm"]
    check_setup(b.l, "tail")
    a.l += fix(resolve_waits(b.l))
    c = Asm(); c.stamps = a.stamps
    for t_ in worder: c(f"buffer_dummy ;@{t_}")
    ACC = lambda i, nt: 32 + 16 * i + 4 * nt
    OFB = [112, 132, 152, 172, 192]
    OF = lambda t, i: OFB[t % cfg.DO] + 4 * i
    def oload(t):
        return [x + f" ;@o{t}" for x in [f"s_add_u32 s30, s41, {t}", "s_lshl_b32 s30, s30, 10", "s_and_b32 s30, s30, 0x7fff"]] + \
            tag([f"buffer_load_dwordx4 {vr(OF(t,i),4)}, v{OAL[i]}, s[{SOR}:{SOR+3}], s30 offen {cfg.orflags}".rstrip() for i in range(5)], f"o{t}")
    for t in range(cfg.DO - 1): c.ext(oload(t))
    if not cfg.tlb:
        c("s_mul_i32 s52, s43, 240")
        c("s_mul_i32 s53, s54, 80")
        c("s_add_u32 s52, s52, s53")
        c("s_mul_i32 s52, s52, 1280")
        c("s_lshl_b32 s53, s55, 7")
        c("s_add_u32 s52, s52, s53")
        c.ext(srd(SOUT, 58, "s52", 79 * 1280 + 128))
    for j in range(1, 4):
        c(f"s_add_u32 s52, s3, {j}")
        c("s_and_b32 s52, s52, 3")
        c("s_mul_i32 s52, s52, 15360")
        c(f"v_add_u32 v{240+j}, s52, v15")
    c("s_mul_i32 s52, s3, 15360")
    c("v_add_u32 v240, s52, v15")
    c("v_mul_u32_u24 v244, 1280, v2")
    c("v_lshl_add_u32 v244, v3, 3, v244")
    nextw = cfg.X
    q = Seq()
    NL = cfg.NL
    for t in range(32 - NL):
        mf = []
        for i in range(5):
            for nt in range(4):
                d = vr(ACC(i, nt), 4)
                mf.append(f"{MF} {d}, {WS(t,nt)}, {vr(OF(t,i),4)}, {'0' if t == 0 else d}")
        q.raw([f"WAITVM o{t} lgkmcnt(0)"] + (stamp_l(c, cfg, f"p{t}") if t in (1, 4, 8, 16, 24) else []))
        g = q.add(mf)
        if t + cfg.DO - 1 < 32: q.place(oload(t + cfg.DO - 1), [g + 4, g + 6, g + 9, g + 12, g + 15])
        tr = t + cfg.R - 1
        if t >= 1 and tr < 32:
            q.g[g].insert(0, f"WAITVM w{tr}")
            for k, r in enumerate(wreads(tr)): q.put(g + 1 + k, r)
        if nextw < 32 and nextw - 10 <= t + cfg.R - 2 and (nextw - cfg.X) * cfg.wev <= t:
            q.place(wdma(cfg, nextw), [g + 10, g + 13, g + 16, g + 18])
            nextw += 1
        if t == 20: q.put(g + 19, "s_barrier")
    assert nextw == 32
    q.raw([f"WAITVM o{32-NL} lgkmcnt(0)"])
    wr = lambda i, j: f"ds_write_b128 v{240+j}, {vr(ACC(i,j),4)} offset:{5120*(j-1)+1024*i}"
    for i in range(5):
        mf = []
        for j in (1, 2, 3, 0):
            d = vr(ACC(i, j), 4)
            for t in range(32 - NL, 32):
                mf.append(f"{MF} {d}, {WS(t,j)}, {vr(OF(t,i),4)}, {d}")
        g = q.add(mf)
        if i == 0:
            for k in range(1, NL): q.g[g + k - 1].append(f"!WAITVM o{32-NL+k}")
        else:
            for j in range(1, 4): q.put(g + 2 + NL * (j - 1), wr(i - 1, j))
    RB = lambda i: 112 + 12 * i if i < 3 else 192 + 12 * (i - 3)
    rd = lambda i: [f"ds_read_b128 {vr(RB(i)+4*j,4)}, v240 offset:{5120*j+1024*i} ;@r{i}" for j in range(3)]
    def fin(i):
        bb = RB(i); ac = ACC(i, 0); o = [f"WAITLG r{i}"]
        for r in range(0, 4, 2):
            o += [f"v_pk_add_f32 {vr(ac+r,2)}, {vr(ac+r,2)}, {vr(bb+r,2)}", f"v_pk_add_f32 {vr(bb+4+r,2)}, {vr(bb+4+r,2)}, {vr(bb+8+r,2)}"]
        for r in range(0, 4, 2):
            o += [f"v_pk_add_f32 {vr(ac+r,2)}, {vr(ac+r,2)}, {vr(bb+4+r,2)}"]
        o += [f"v_cvt_pk_bf16_f32 v{ac}, v{ac}, v{ac+1}", f"v_cvt_pk_bf16_f32 v{ac+1}, v{ac+2}, v{ac+3}",
              f"buffer_store_dwordx2 {vr(ac,2)}, v244, s[{SOUT}:{SOUT+3}], s52 offen {cfg.outflags}".rstrip(), "s_add_u32 s52, s52, %d" % (16 * 1280)]
        return o
    if cfg.fin2:
        assert cfg.DO == 4 and NL == 2
        q.g[g + 1].insert(0, "s_barrier"); q.g[g + 1].insert(0, "s_waitcnt lgkmcnt(0)")
        for k, r in enumerate(rd(0) + rd(1) + rd(2)): q.put(g + 1 + min(k // 2 + (k > 3), 6), r)
        q.raw(stamp_l(c, cfg, "projdone") + ["s_lshl_b32 s52, s3, 5", wr(4, 1), wr(4, 2)])
        q.emit(c)
        c.ext(fin(0)[:5]); c(wr(4, 3)); c.ext(fin(0)[5:] + fin(1))
        c("s_waitcnt lgkmcnt(0)")
        c("s_barrier")
        c.ext(rd(3) + rd(4) + fin(2) + fin(3) + fin(4))
    else:
        q.raw(stamp_l(c, cfg, "projdone") + ["s_nop 1", wr(4, 1), wr(4, 2), "s_nop 1", wr(4, 3)])
        q.emit(c)
        c("s_waitcnt lgkmcnt(0)")
        c("s_barrier")
        for i in range(5): c.ext(rd(i))
        c("s_lshl_b32 s52, s3, 5")
        for i in range(5): c.ext(fin(i))
    check_setup(c.l, "proj")
    a.l += fix(resolve_waits(c.l))
    a("L_fin:")
    if cfg.stamps or cfg.calib:
        a("s_waitcnt vmcnt(0)")
        stamp(a, cfg, "end")
    if cfg.calib:
        a("s_waitcnt lgkmcnt(0)")
        a("s_or_b32 s52, s2, s3")
        a("s_cmp_lg_u32 s52, 0")
        a("s_cbranch_scc1 L_end")
        a(f"s_sub_u32 s52, s{62+4*cfg.cal_j}, s{62+4*cfg.cal_i}")
        a("s_lshl_b32 s52, s52, 2")
        a("s_add_u32 s52, s52, s62")
        a("L_spin:")
        a("s_memrealtime s[56:57]")
        a("s_waitcnt lgkmcnt(0)")
        a("s_sub_u32 s56, s56, s52")
        a(f"s_cmp_lt_i32 s56, {cfg.calib*100}")
        a("s_cbranch_scc1 L_spin")
    if cfg.stamps:
        stamps_out(a, cfg, 64 << 20)
    a("L_end:")
    a("s_endpgm")
    if cfg.w3:
        i0, i1 = a.l.index("L_sec0:"), a.l.index("L_sec1:")
        dead_v = set(("v", r) for r in list(range(128, 160)) + list(range(184, 192)) + list(range(204, 208)) + list(range(220, 224)))
        dead_a = set(("a", r) for r in range(48, 64))
        sec = []; skip = False
        for x in a.l[i0 + 1:i1]:
            if x == "s_and_b32 s52, s2, 31": skip = True
            if skip:
                if x == "L_noarr:": skip = False
                continue
            if x.endswith(":") or x.startswith(".") or x.startswith(";"):
                if x == "L_loop:":
                    z = [f"v_mov_b32 v{r}, 0" for _, r in sorted(dead_v)] + [f"v_accvgpr_write_b32 a{r}, 0" for r in list(range(48, 64)) + list(range(204, 208))]
                    k = sec.index(".p2align 6"); sec[k:k] = z
                    w3body0 = len(sec) + 1
                    x = "L_loop3:"
                sec.append(x); continue
            if x.startswith("s_nop"): continue
            ins = parse(x)
            if ins["k"] == "mfma" and (ins["D"] & dead_v or ins["Dtok"] == "a[204:207]"): continue
            if ins["k"] == "valu" and (ins["wr"] & (dead_v | dead_a) or ins["rd"] & set(("v", r) for r in range(128, 160))): continue
            if x == "s_cbranch_scc1 L_loop": x = "s_cbranch_scc1 L_loop3"
            sec.append(x)
        sec = fix(sec)
        l0 = sec.index("L_loop3:"); l1 = sec.index("s_cbranch_scc1 L_loop3")
        assert check(sec[l0:l1 + 1] * 2, "w3-loop") == 0 and check(sec + a.l[i1:i1 + 40], "w3-exit") == 0 and check(a.l[i0 - 30:i0] + sec, "w3-entry") == 0
        a("L_w3:")
        a.ext(sec)
        a("s_branch L_sec1")
    if cfg.epark:
        a("L_redo:")
        a("s_mov_b32 s35, 1")
        a("s_lshl_b32 s52, s3, 6")
        a("v_or_b32 v0, s52, v1")
        a("s_waitcnt vmcnt(0) lgkmcnt(0)")
        a("s_barrier")
        a("s_branch L_restart")
    a("L_exact:")
    ex0 = len(a.l)
    a("s_mov_b32 s35, 1")
    a(f"s_mov_b32 s{SK+2}, {KVBYTES}")
    a(f"s_mov_b32 s{SV+2}, {KVBYTES}")
    a("s_mov_b32 s33, s40" if not cfg.uni else "s_lshl_b32 s33, s3, 10")
    a("s_waitcnt vmcnt(0) lgkmcnt(0)")
    a("L_exact_loop:")
    a("s_barrier")
    if cfg.uni:
        for n_ in range(4): a.ext(["s_and_b32 m0, s33, 0x3fff", "s_nop 0", dma(KDA, SK, "s33", 0, cfg.kvflags), "s_add_u32 s33, s33, 4096"])
    else:
        a.ext(with_nop(kdma(cfg, 0)))
        a(ADV)
    a("s_waitcnt vmcnt(0)")
    a("s_barrier")
    for th in range(2):
        for kt in range(2):
            for ks in range(4): a(kread(0, 0, th, kt, ks))
        a("s_waitcnt lgkmcnt(0)")
        for u in range(4): a.ext(qk(u, 0, True))
        a("s_nop 7")
        for u in range(4):
            s0 = S_(u, 0)
            for r in range(0, 8, 2):
                a(f"v_max3_f32 v{MTR+u}, v{MTR+u}, v{s0+r}, v{s0+r+1}")
    a(f"s_cmp_lt_u32 s33, {KVBYTES}")
    a("s_cbranch_scc1 L_exact_loop")
    a("s_barrier")
    a("s_mov_b32 s33, s40" if not cfg.uni else "s_lshl_b32 s33, s3, 10")
    a.ext([x.split(" ;@")[0] for x in with_nop(sum([piece(cfg, gp, False) if not cfg.uni else upiece(cfg, gp) for gp in range(NP)], []))])
    a("s_waitcnt vmcnt(0)")
    a("s_barrier")
    a.ext(k0r + v0r)
    a("s_waitcnt lgkmcnt(0)")
    a.ext(k1r)
    for u in range(4): a.ext(qk(u, 0, True))
    a.ext(ones)
    a("s_nop 7")
    a.ext(fix(merge(*[fmax(u) for u in range(4)]) + merge(*[fexp(u, 8 if u < 3 else 4) for u in range(4)])))
    a("s_nop 1")
    a.ext(pv(0, 0, True) + pv(1, 0, True))
    a("s_waitcnt lgkmcnt(0)")
    q = Seq(); st1 = attn_tile(cfg, q, 1, "first")
    if cfg.uni:
        q.place(upiece(cfg, NP), [st1[4] + 1]); q.place(upiece(cfg, NP + 1), [st1[6] + 1])
    x1 = Asm()
    for t_ in ["seg1"]: x1("buffer_dummy ;@seg1")
    q.emit(x1)
    a.l += resolve_waits(x1.l)
    a("s_mov_b32 s34, 3")
    a("s_branch L_loop")
    bad = check(a.l[:ex0], "main") + check(body + body, "attn-loop") + check(a.l[ex0:] + body, "exact")
    assert bad == 0
    return a

HEADER = """; Kernarg layout for this problem (64 bytes, ptrs only, base s[0:1]):
;   offset  56: d_ws      [0, 15.7 MB) attention output O as MFMA fragments, [24 MB, +32 KB) hand-off words
;
;     p = exp2(.), o^T += V^T p^T, row sums by an MFMA with a ones operand.  m is the row maximum of the first key tile; if any
;     wave w contracts over heads 8w..8w+7 once their words are set, partial sums meet in LDS.
; @launch grid=(256,1,1) block=(256,1,1) lds=163840"""

def build(cfg):
    k = NAME + "_kernel"
    out = []
    out.append(HEADER)
    out.append('.amdgcn_target "amdgcn-amd-amdhsa--gfx950"')
    out.append(".text")
    out.append(f".globl {k}\n.p2align 8\n.type {k},@function\n{k}:")
    out.append(gen(cfg).text())
    out.append('.section .rodata,"a"')
    out.append(f""".p2align 6
.amdhsa_kernel {k}
  .amdhsa_next_free_vgpr 512
  .amdhsa_next_free_sgpr 102
  .amdhsa_accum_offset 256
  .amdhsa_group_segment_fixed_size 0
  .amdhsa_kernarg_size 64
  .amdhsa_user_sgpr_count 2
  .amdhsa_user_sgpr_kernarg_segment_ptr 1
  .amdhsa_system_sgpr_workgroup_id_x 1
.end_amdhsa_kernel
""")
    return "\n".join(out)

if __name__ == "__main__":
    cfg = Cfg()
    path = sys.argv[1]
    for kv in sys.argv[2:]:
        k, v = kv.split("=", 1)
        old = getattr(cfg, k)
        setattr(cfg, k, type(old)(eval(v)) if isinstance(old, (bool, int, float, tuple)) else v)
    txt = build(cfg)
    open(path, "w").write(txt)
```

```python
import sys, math, struct
from asmlib import *

NAME = "standalone__mha_block_cached__near_ridge"
def f32(x): return struct.unpack("<I", struct.pack("<f", x))[0]
MF = "v_mfma_f32_16x16x32_bf16"

class Cfg:
    kvflags = "nt"
    oflags = "sc1"
    orflags = "sc1"
    xflags = ""
    bflags = ""
    stamps = False
    only = ""
    qspread = 4
    kvpace = 13.5
    lthr = 2.0 ** 40
    force_fb = False
    rot = 5
    rA = 0
    DO = 4
    NL = 2
    joint = 1
    opk = 2
    lds_last = 0
    pad = 0
    prio = 0
    ucl = 0
    uph = 0.3
    fin2 = 1
    mapx = 0
    map3b = 0
    lazy = ()
    c0same = 0
    roff = 5
    fsig = 2
    bm = 2
    bmi = 0
    wv = 2
    jcap = 2
    uni = 0
    ipre = 32
    upi = 30
    urest = 9
    w3 = 1
    wn = 10
    wp = 17
    wp2 = 4
    wdelay = 0
    R = 19
    epark = 0
    addu = ()
    tlb = 0
    fast0 = 1
    c1first = 0
    pre5 = 1
    early = 1
    cwarm = 1
    wl2 = 0
    wl2f = ""
    lag = 2
    split0 = 0
    wsched = 2
    b1 = 24
    bsp = 50
    split15 = 1
    sigfirst = 1
    outflags = ""
    wpull = 0
    epoll = 15
    touch = ()
    tpos = 52
    tl = 16
    tflags = ""
    tkv = "v"
    dmode = "even"
    xs = (0, 0, 0, 0, 0)
    k0at = 5
    X = 29
    wev = 1.0
    ncap = 3
    sig = "line"
    pkmul = False
    qord = 0
    exp = ""
    calib = 0
    cal_i = 0
    cal_j = 0

O_ = lambda u, dt: 32 + 32 * u + 4 * dt
S_ = lambda u, kt: 160 + 8 * u + 4 * kt
P_ = lambda u: 192 + 4 * u
NM = lambda u: 208 + 4 * u
KRA, VRA, KDA, VDA, MTR = 224, 228, 236, 240, 242
WD = 246
XDA, WDA, XRA, WRA = 192, 200, 204, 210
Q_ = lambda u, m: 16 * u + 4 * m
KF = lambda b, kt, ks: 64 + 32 * b + 16 * kt + 4 * ks
VF = lambda b, dt: 128 + 32 * b + 4 * dt
L_ = lambda u: 192 + 4 * u
ONES = 208
WF = lambda b, s, dt: ar([160, 0, 96][b] + 32 * s + 4 * dt, 4)
WF2 = lambda b, s, dt, e: ar([160, 0, 96][b] + 32 * s + 4 * dt + 2 * e, 2)
XF = lambda b, s, u: vr([224, 64, 160][b] + 16 * s + 4 * u, 4, "aav"[b])
SX, SW, SK, SV, SO = 8, 12, 16, 20, 24
SWO, SOR, SOUT = 8, 12, 4
KVBYTES = 262144
XBASE = [(131072, 147456), (65536, 16384), (32768, 49152)]
WWIN = 81920
WOFF = [32768, 0, 16384]
UNIT = [0, 4, 8, 9, 1, 5, 2, 6, 3, 7]
UNIT2 = [0, 4, 9, 5, 6, 8, 1, 2, 3, 7]
UNIT3 = [0, 4, 9, 1, 2, 8, 5, 6, 3, 7]
WRL = [[28, 29, 30, 31], [250, 251, 252, 253], [7, 8, 9, 10]]
OAL = [4, 5, 13, 14, 254]
WBLK = [224, 240, 64, 80, 96, 112, 128, 144, 160, 176, 208, 192, 0, 16, 32, 48]
WBLK2 = [224, 240, 0, 16, 48, 32, 64, 80, 96, 112, 128, 144, 160, 176, 208, 192]
def WS(t, nt, e=None):
    b = WBLK[t % len(WBLK)]
    f = "a" if b >= 0 else "v"
    return vr(abs(b) + 4 * nt, 4, f) if e is None else vr(abs(b) + 4 * nt + 2 * e, 2, f)
def wreads(t):
    u_ = UNIT[t % 10]
    return [f"ds_read_b64_tr_b16 {WS(t,nt,e)}, v{WRL[u_>>2][nt]} offset:{16384*(u_&3)+2048*e} ;@p{t}" for nt in range(4) for e in range(2)]
FOFF = 24 << 20
WOSZ = 1024 * 1280 - 9 * 128
ORSZ = 4 * 131072 + 32768

class Seq:
    def __init__(self): self.m = []; self.g = []
    def add(self, mfmas):
        n = len(self.m); self.m += mfmas; self.g += [[] for _ in mfmas]; return n
    def raw(self, lines):
        self.m.append(None); self.g.append(["!" + x for x in lines]); return len(self.m) - 1
    def put(self, i, x): self.g[i].append(x)
    def slots(self, i):
        n = 0
        for x in self.g[i]:
            k = kind(x.lstrip("!"))
            if k in ("ds", "vm", "valu"): n += 2 if x.lstrip("!").startswith(TRANS) else 1
        return n
    def place(self, lst, vmpos):
        vmpos = list(vmpos); pend = []; last = None
        for x in lst:
            if kind(x) == "vm":
                p = vmpos.pop(0)
                assert not pend or last is None or p - len(pend) > last, (lst, p, last)
                for k, s in enumerate(reversed(pend)): self.g[p - 1 - k].insert(0, s)
                pend = []; self.g[p].append(x); last = p
            else: pend.append(x)
        for k, s in enumerate(pend): self.g[last + 1 + k].insert(0, s)
    def stream(self, lst, start, cap=2, end=None):
        i = start
        for x in lst:
            c = 2 if x.startswith(TRANS) else (0 if kind(x) == "s" else 1)
            while self.slots(i) + c > cap and (end is None or i < end) and i + 1 < len(self.m): i += 1
            self.g[i].append("!" + x)
        return i
    def emit(self, a): emit_gaps(a, self.m, self.g)

def stamp_l(a, cfg, name):
    if (cfg.stamps or cfg.calib) and (cfg.only == "" or name in cfg.only.split(",") or name in ("start", "end")):
        i = len(a.stamps); a.stamps.append(name)
        assert i < 10
        return [f"s_memtime s[{60+4*i}:{61+4*i}]", f"s_memrealtime s[{62+4*i}:{63+4*i}]"]
    return []
def stamp(a, cfg, name): a.ext(stamp_l(a, cfg, name))

def stamps_out(a, cfg, wsoff):
    n = len(a.stamps)
    a.l.insert(0, "; stamps " + str(wsoff >> 20) + " " + " ".join(a.stamps))
    a("s_waitcnt lgkmcnt(0)")
    a(f"s_add_u32 s48, s48, {wsoff}")
    a("s_addc_u32 s49, s49, 0")
    a("s_mov_b32 s50, 0x100000")
    a("s_mov_b32 s51, 0x20000")
    a("s_lshl_b32 s52, s2, 2")
    a("s_add_u32 s52, s52, s3")
    a("s_lshl_b32 s52, s52, 7")
    a("v_mov_b32 v6, s52")
    a("v_cmp_eq_u32 vcc, 0, v1")
    a("s_and_saveexec_b64 s[54:55], vcc")
    for i in range(n):
        a(f"v_mov_b32 v4, s{60+4*i}")
        a(f"v_mov_b32 v5, s{62+4*i}")
        a(f"buffer_store_dwordx2 v[4:5], v6, s[48:51], 0 offen offset:{8*i}")
        a("s_nop 1")
    a("s_getreg_b32 s53, hwreg(HW_REG_XCC_ID)")
    a("v_mov_b32 v4, s53")
    a("buffer_store_dword v4, v6, s[48:51], 0 offen offset:120")
    a("v_mov_b32 v4, 0x5157")
    a(f"v_mov_b32 v5, {n}")
    a("buffer_store_dwordx2 v[4:5], v6, s[48:51], 0 offen offset:112")
    a("s_mov_b64 exec, s[54:55]")

def srd(s, plo, off_s, size):
    return [f"s_add_u32 s{s}, s{plo}, {off_s}", f"s_addc_u32 s{s+1}, s{plo+1}, 0", f"s_mov_b32 s{s+2}, {size}", f"s_mov_b32 s{s+3}, 0x20000"]
def dma(vaddr, sdesc, soff, imm, flags=""):
    o = f" offset:{imm}" if imm else ""
    f = f" {flags}" if flags else ""
    return f"buffer_load_dwordx4 v{vaddr}, s[{sdesc}:{sdesc+3}], {soff} offen{o}{f} lds"
def tag(lst, t):
    return [x + f" ;@{t}" if kind(x) == "vm" else x for x in lst]
def check_setup(lines, name):
    last = {}
    for x in lines:
        if ";@" not in x:
            if kind(x) == "s" and not x.endswith(":") and len(x.split()) > 1 and x.split()[1].rstrip(",") in ("m0", "s42", "s30"): last[x.split()[1].rstrip(",")] = None
            continue
        t = x.split(";@")[1]
        if kind(x) == "s": last[x.split()[1].rstrip(",")] = t
        elif t[0] == "w" and t[1:].isdigit() and not x.startswith("buffer_dummy"):
            assert last.get("m0") == t and last.get("s42") == t, (name, x, last)
        elif t[0] == "o" and t[1:].isdigit() and not x.startswith("buffer_dummy"):
            assert last.get("s30") == t, (name, x, last)
def with_nop(lst):
    o = []
    for x in lst:
        o.append(x)
        if " m0," in x: o.append("s_nop 0")
    return o

def resolve_waits(lines):
    out = []; seq = []; lseq = []
    for x in lines:
        if x.startswith("WAITLG"):
            t = x.split()[1]
            idx = max(i for i, v in enumerate(lseq) if v == t)
            out.append(f"s_waitcnt lgkmcnt({min(len(lseq) - 1 - idx, 15)})")
            continue
        if x.startswith("ds_"): lseq.append(x.split(";@")[1] if ";@" in x else "")
        if x.startswith("WAITVM"):
            p = x.split(None, 2)
            idx = max(i for i, t in enumerate(seq) if t == p[1])
            n = min(len(seq) - 1 - idx, 63)
            out.append(f"s_waitcnt vmcnt({n})" + (" " + p[2] if len(p) > 2 else ""))
            continue
        if not (x.endswith(":") or x.startswith(".") or x.startswith(";")) and kind(x) == "vm" and not x.endswith(";@skip"):
            seq.append(x.split(";@")[1] if ";@" in x else "")
        if not x.startswith("buffer_dummy"): out.append(x.split(" ;@")[0])
    return out

def kdma(cfg, slot, so="s33"):
    return [f"s_add_u32 m0, s40, {16384*slot}"] + [dma(KDA + pp, SK, so, 1024 * pp, cfg.kvflags) for pp in range(4)]
def vdma(cfg, slot, so="s33"):
    return [f"s_add_u32 m0, s40, {65536+16384*slot}"] + [dma(VDA + (pp & 1), SV, so, 1024 * pp, cfg.kvflags) for pp in range(4)]
ADV = "s_add_u32 s33, s33, 16384"
def upiece(cfg, gp):
    sg = gp >> 3
    if gp & 1: return ["s_or_b32 m0, m0, 0x10000", dma(VDA, SV, "s33", 0, cfg.kvflags) + f" ;@seg{sg}", "s_add_u32 s33, s33, 4096"]
    return ["s_and_b32 m0, s33, 0xffff", dma(KDA, SK, "s33", 0, cfg.kvflags) + f" ;@seg{sg}" + ("k" if sg == 15 else "")]
def piece(cfg, gp, setm0, guard=False):
    sg, kv, pp = gp // 8, (gp % 8) // 4, gp % 4
    grp = (vdma if kv else kdma)(cfg, sg & 3)
    o = ([grp[0]] if pp == 0 or setm0 else []) + tag([grp[1 + pp]], f"seg{sg}" + ("k" if kv == 0 else ""))
    if gp % 8 == 7:
        o += [ADV]
        if guard: o += [f"s_cmp_lt_u32 s33, {KVBYTES}", f"s_cselect_b32 s{SK+2}, {KVBYTES}, 0"]
    return o
def wdma(cfg, t):
    return [x + f" ;@w{t}" for x in [f"s_add_u32 s42, s41, {t}", "s_and_b32 s42, s42, 31", "s_mul_i32 s42, s42, 40960", f"s_add_u32 m0, s40, {16384*UNIT[t%10]}"]] + \
        tag([dma(WD + pp, SWO, "s42", 1024 * pp, cfg.bflags) for pp in range(4)], f"w{t}")
def kread(buf, slot, th, kt, ks):
    return f"ds_read_b128 {ar(KF(buf,kt,ks),4)}, v{KRA+ks} offset:{16384*slot+8192*th+4096*kt}"
def vread(buf, slot, th, dt, e):
    return f"ds_read_b64_tr_b16 {ar(VF(buf,dt)+2*e,2)}, v{VRA+dt} offset:{16384*slot+8192*th+4096*e}"

def qk(u, kb, czero=False, sl=None):
    m = []
    for kt in range(2):
        d = vr(S_(u if sl is None else sl, kt), 4)
        for ks in range(4):
            c = ("0" if czero else vr(NM(u), 4)) if ks == 0 else d
            m.append(f"{MF} {d}, {ar(KF(kb,kt,ks),4)}, {ar(Q_(u,ks),4)}, {c}")
    return m
LA = {0: 18, 1: 19}
def pv(u, vb, czero=False, sl=None, lsum=True):
    m = []
    p = vr(P_(u if sl is None else sl), 4)
    for dt in range(8):
        d = vr(O_(u, dt), 4)
        m.append(f"{MF} {d}, {ar(VF(vb,dt),4)}, {p}, {'0' if czero else d}")
    d = ar(L_(u), 4)
    if lsum: m.append(f"{MF} {d}, {ar(ONES,4)}, {p}, {'0' if czero else d}")
    return m
def sm_half(q, g0, u, kt, add=False):
    s = S_(u, kt)
    for r in range(4):
        if add: q.put(g0 + 2 * r + 1, f"v_add_f32 v{LA[u]}, v{LA[u]}, v{s+r}")
        q.put(g0 + 2 * r, f"v_exp_f32 v{s+r}, v{s+r}")
        if r & 1: q.put(g0 + 2 * r + 1, f"v_cvt_pk_bf16_f32 v{P_(u)+2*kt+r//2}, v{s+r-1}, v{s+r}")

def attn_tile(cfg, q, j, mode="loop"):
    kb = vb = j & 1
    slot, th = (j >> 1) & 3, j & 1
    nslot, nth = ((j + 1) >> 1) & 3, (j + 1) & 1
    z = mode == "first"
    addu = cfg.addu if mode == "loop" else ()
    groups = [qk(0, kb), pv(2, vb ^ 1, z), qk(1, kb), pv(3, vb ^ 1, z), qk(2, kb), pv(0, vb, lsum=0 not in addu), qk(3, kb), pv(1, vb, lsum=1 not in addu)]
    st = [q.add(g) for g in groups]; st.append(len(q.m))
    sm_half(q, st[0], 3, 1)
    for u in range(3):
        sm_half(q, st[2 * u + 1], u, 0, u in addu)
        sm_half(q, st[2 * u + 2], u, 1, u in addu)
    sm_half(q, st[7], 3, 0)
    vr_ = [vread(vb, slot, th, dt, e) for dt in range(8) for e in range(2)]
    NV = 6 if 0 in cfg.addu else 0
    if 0 in addu: pos = [st[0] + k for k in (1, 3, 5, 5, 7)] + [st[1] + k for k in (1, 5, 8, 8)] + [st[2] + 5]
    else: pos = [st[0] + k for k in (1, 3, 5, 5, 7)] + [st[1] + k for k in (1, 1, 3, 5, 5, 7, 8)] + [st[2] + k for k in (1, 3, 5, 5)]
    for p, r in zip(pos, vr_[16 - len(pos):]): q.put(p, r)
    mid = st[4] - 1
    if j & 1:
        if mode == "loop": q.put(mid, f"s_waitcnt vmcnt({16-cfg.lag if not cfg.bm else (18 if cfg.bm == 3 else 14)-cfg.lag}) lgkmcnt(0)" if not cfg.uni else "UNIWAIT")
        else: q.put(mid, f"WAITVM seg{(j+1)//2}{'k' if j == 29 and cfg.split15 else ''} lgkmcnt(0)")
        q.put(mid, "s_barrier")
    else:
        q.put(mid, "s_waitcnt lgkmcnt(0)")
    kr_ = [kread(kb ^ 1, nslot, nth, kt, ks) for kt in range(2) for ks in range(4)]
    if 1 in addu: pos = [st[4] + 5] + [st[5] + k for k in (1, 1, 3, 5, 5, 7)] + [st[6] + 1]
    else: pos = [st[4] + k for k in (1, 3, 5, 7)] + [st[5] + k for k in (1, 3, 5, 7)]
    for p, r in zip(pos, kr_): q.put(p, r)
    if NV and mode != "final":
        nvr = [vread(vb ^ 1, nslot, nth, dt, e) for dt in range(8) for e in range(2)][:NV]
        for p, r in zip([st[6] + 3, st[6] + 5, st[6] + 5, st[6] + 7, st[7] + 1, st[7] + 1], nvr): q.put(p, r)
        q.put(st[8] - 2, f"s_waitcnt lgkmcnt({NV})")
    else:
        q.put(st[8] - 2 if j != 29 else st[7], "s_waitcnt lgkmcnt(0)")
    if cfg.lds_last:
        cand = [i for i in range(st[0], st[8]) if any(x.startswith("v_cvt") for x in q.g[i]) and any(x.startswith("ds_read") for x in q.g[i])]
        for k in range(cfg.lds_last):
            i = cand[(k * len(cand)) // cfg.lds_last]
            c_ = [x for x in q.g[i] if x.startswith("v_cvt")][0]; r_ = [x for x in q.g[i] if x.startswith("ds_read")][0]
            q.g[i].remove(c_); q.g[i].remove(r_); q.g[i] += ["!" + c_, "!" + r_]
    dpos = [st[0] + 1, st[2] + 1, st[4] + 1, st[6] + 1]
    if cfg.bm:
        assert cfg.lag % 4 == 2
        dpos = {1: [st[4] + 1, st[4] + 5, st[5] + 1, st[5] + 5], 2: [st[4] + 1, st[4] + 3, st[4] + 5, st[4] + 7], 3: [st[2] + 7, st[3] + 1, st[3] + 3, st[3] + 5],
                4: [st[4] + 1, st[4] + 2, st[4] + 3, st[4] + 4]}[cfg.bm]
    for k in range(0 if not cfg.uni else 4, 4):
        gp = 4 * j + 26 + k - cfg.lag
        if mode == "first" and k < 2 and not cfg.bm: continue
        if mode == "final":
            if gp < 128: q.place(piece(cfg, gp, True), [[st[0] + 1, st[0] + 5, st[1] + 1, st[1] + 3][k] if cfg.wsched in (0, 2) else dpos[k]])
            continue
        q.place(piece(cfg, gp, False, cfg.lag < 2), [dpos[k]])
    return st

def rowmax_l(t, t2):
    return [f"v_mov_b32 v{t2}, v{t}", "s_nop 1", f"v_permlane32_swap_b32 v{t}, v{t2}", f"v_max_f32 v{t}, v{t}, v{t2}",
            f"v_mov_b32 v{t2}, v{t}", "s_nop 1", f"v_permlane16_swap_b32 v{t}, v{t2}", f"v_max_f32 v{t}, v{t}, v{t2}"]

def scale_pack(cfg, b0, t, mul, pk):
    o = []
    if pk: o += [f"v_pk_mul_f32 {vr(b0+2*i,2)}, {vr(b0+2*i,2)}, {mul[1]}" for i in range(4)]
    else: o += [f"v_mul_f32 v{b0+i}, {mul[0]}, v{b0+i}" for i in range(8)]
    o += [f"v_cvt_pk_bf16_f32 v{t+i}, v{b0+2*i}, v{b0+2*i+1}" for i in range(4)]
    return o

def gen(cfg):
    if cfg.wsched == 2: UNIT[:] = UNIT2 if not cfg.wv else UNIT3
    if cfg.epark: WBLK[:] = WBLK2
    WBLK.extend([-224, -208, -192, -176][:cfg.R - 16])
    assert 112 + 20 * cfg.DO <= 240 - 16 * (cfg.R - 16)
    a = Asm()
    a("s_cmp_ge_u32 s2, 256")
    a("s_cbranch_scc1 L_end")
    a("s_mov_b32 s35, 0")
    a("L_restart:")
    stamp(a, cfg, "start")
    a("s_load_dwordx4 s[4:7], s[0:1], 0")
    a("s_load_dwordx4 s[44:47], s[0:1], 16")
    a("v_lshrrev_b32 v2, 6, v0")
    a("v_and_b32 v1, 63, v0")
    a("v_readfirstlane_b32 s3, v2")
    a("s_and_b32 s50, s2, 7")
    a("s_lshr_b32 s51, s2, 3")
    a("s_and_b32 s52, s51, 3")
    a("s_lshr_b32 s53, s51, 2")
    a("s_bfe_u32 s28, s2, 0x10000")
    a("s_lshl2_add_u32 s28, s28, s52")
    a("s_lshr_b32 s54, s50, 1")
    a("s_lshl3_add_u32 s29, s54, s53")
    a("s_add_u32 s52, s52, s53")
    a("s_and_b32 s52, s52, 1")
    a(f"s_mul_i32 s32, s52, {cfg.roff}")
    a("s_add_u32 s54, s54, s50")
    a("s_and_b32 s54, s54, 1")
    a("s_lshl1_add_u32 s32, s54, s32")
    if cfg.mapx:
        a("s_mov_b32 s28, s50")
        a("s_mov_b32 s29, s51")
        a("s_mul_i32 s32, s50, 5")
        a("s_lshr_b32 s32, s32, 2")
        if cfg.mapx == 2:
            a("s_and_b32 s52, s51, 1")
            a("s_mul_i32 s52, s52, 5")
            a("s_add_u32 s32, s32, s52")
            a("s_cmp_ge_u32 s32, 10")
            a("s_cselect_b32 s52, 10, 0")
            a("s_sub_u32 s32, s32, s52")
    if cfg.c0same:
        a("s_mov_b32 s30, %d" % (9 << 7))
        a("s_mov_b32 s31, %d" % (9 << 19))
    else:
        a("s_lshl_b32 s30, s32, 7")
        a("s_lshl_b32 s31, s32, 19")
    a("s_lshl_b32 s40, s3, 12")
    a("s_lshl1_add_u32 s36, s40, %d" % XBASE[0][0])
    a("s_add_u32 s39, s40, %d" % WWIN)
    a("v_lshrrev_b32 v3, 4, v1")
    a("v_lshrrev_b32 v4, 3, v1")
    a("v_and_b32 v5, 7, v1")
    a("v_and_b32 v2, 15, v1")
    a("s_mul_i32 s52, s3, %d" % (64 * 1280))
    a("v_mul_u32_u24 v8, 1280, v4")
    a("v_xor_b32 v9, v3, v5")
    a("v_lshlrev_b32 v9, 4, v9")
    a(f"v_add3_u32 v{XDA}, v9, s52, v8")
    a(f"v_xor_b32 v17, 64, v{XDA}")
    for pp in range(1, 8):
        a(f"v_add_u32 v{XDA+pp}, {10240*pp-1024*(pp&3)}, v{17 if pp & 1 else XDA}")
    a("s_lshl_b32 s52, s3, 17")
    a("v_lshlrev_b32 v8, 13, v3")
    a("v_and_b32 v9, 1, v3")
    a("v_lshrrev_b32 v10, 1, v3")
    a("v_lshl_or_b32 v9, v10, 2, v9")
    a("v_xor_b32 v9, v9, v2")
    a("v_lshlrev_b32 v9, 4, v9")
    a(f"v_add3_u32 v{WDA}, v9, s52, v8")
    a(f"v_xor_b32 v17, 128, v{WDA}")
    for pp in range(1, 4):
        a(f"v_add_u32 v{WDA+pp}, {32768*pp-1024*pp}, v{17 if pp >> 1 else WDA}")
    a("s_mul_i32 s52, s28, 307200")
    a("s_lshl_b32 s53, s29, 8")
    a.ext(srd(SX, 4, "s52", 307200)[2:] + srd(SW, 46, "s53", 640 * 8192 - 31 * 256)[2:])
    a("s_waitcnt lgkmcnt(0)")
    stamp(a, cfg, "kernarg")
    a.ext(srd(SX, 4, "s52", 307200)[:2] + srd(SW, 46, "s53", 0)[:2])

    def qstage(c):
        bf = c % 3
        o = [f"s_mov_b32 m0, s{36+bf}"]
        o += [dma(XDA + pp, SX, "s30", 1024 * pp, cfg.xflags) for pp in range(4)]
        o += [f"s_add_u32 m0, s{36+bf}, 4096"]
        o += [dma(XDA + 4 + pp, SX, "s30", 1024 * pp, cfg.xflags) for pp in range(4)]
        o += [f"s_add_u32 m0, s39, {WOFF[bf]}"]
        o += [dma(WDA + pp, SW, "s31", 1024 * pp, cfg.xflags) for pp in range(4)]
        if not (cfg.c0same and c == 0): o += ["s_add_u32 s32, s32, 1", f"s_cmp_eq_u32 s32, {9 if cfg.c0same else 10}", "s_cselect_b32 s32, 0, s32"]
        o += ["s_lshl_b32 s30, s32, 7", "s_lshl_b32 s31, s32, 19"]
        return tag(o, f"c{c}")
    a.ext(with_nop(qstage(0)))
    a("s_load_dwordx2 s[48:49], s[0:1], 56")
    if cfg.cwarm:
        a("s_getpc_b64 s[54:55]")
        a("L_cbase:")
        a("s_lshl2_add_u32 s52, s51, s3")
        a(f"s_mul_i32 s52, s52, {5 if cfg.w3 else 3}")
        a(f"v_min_u32 v18, {4 if cfg.w3 else 2}, v1")
        a("v_add_u32 v18, s52, v18")
        a("v_lshlrev_b32 v18, 7, v18")
        a("v_min_u32 v18, L_exact-L_cbase, v18")
        a("v_mov_b32 v19, s55")
        a("v_add_co_u32 v18, vcc, s54, v18")
        a("v_addc_co_u32 v19, vcc, 0, v19, vcc")
        a("global_load_dword v20, v[18:19], off")
    a("s_mov_b32 s33, s40" if not cfg.uni else "s_lshl_b32 s33, s3, 10")
    a("s_and_b32 s52, s3, 1")
    a("s_lshl_b32 s52, s52, 13")
    a("s_cmp_ge_u32 s3, 2")
    for bf in range(1, 3):
        a(f"s_mov_b32 s53, {XBASE[bf][0]}")
        a(f"s_cselect_b32 s{36+bf}, {XBASE[bf][1]}, s53")
    for bf in range(1, 3):
        a(f"s_add_u32 s{36+bf}, s{36+bf}, s52")
    a("v_bfe_u32 v6, v1, 2, 2")
    a("v_and_b32 v7, 3, v1")
    if cfg.c1first: a.ext(with_nop(qstage(1)))
    a("s_waitcnt lgkmcnt(0)")
    if cfg.sig == "line":
        a("s_lshl_b32 s52, s28, 5")
        a("s_add_u32 s52, s52, s29")
        a("s_lshl_b32 s52, s52, 7")
        a(f"s_add_u32 s52, s52, {FOFF}")
        a("v_mov_b32 v18, s52")
        a("v_mov_b32 v19, 0")
        a("s_mov_b64 exec, 1")
        a("global_store_dword v18, v19, s[48:49] sc1")
        a("s_mov_b64 exec, -1")
        a("v_and_b32 v0, 31, v1")
        a("v_lshlrev_b32 v0, 3, v0")
    a("s_load_dwordx4 s[56:59], s[0:1], 32")
    a("s_lshl_b32 s52, s28, 5")
    a("s_add_u32 s52, s52, s29")
    a("s_lshl_b32 s52, s52, 18")
    a.ext(srd(SK, 6, "s52", KVBYTES))
    a.ext(srd(SV, 44, "s52", KVBYTES))
    a("s_mul_i32 s52, s28, %d" % (15 * 131072))
    a.ext(srd(SO, 48, "s52", 15 * 131072))
    a("s_load_dwordx2 s[46:47], s[0:1], 48")
    a("v_lshlrev_b32 v10, 8, v3")
    if cfg.uni:
        a("s_lshl_b32 s52, s3, 2")
        a("v_add_u32 v8, s52, v3")
        a("v_xor_b32 v9, v8, v2")
        a(f"v_lshl_add_u32 v{KDA}, v9, 4, v10")
        a("v_and_b32 v8, 7, v8")
        a("v_lshlrev_b32 v8, 1, v8")
        a("v_xor_b32 v9, v8, v2")
        a(f"v_lshl_add_u32 v{VDA}, v9, 4, v10")
    else:
        for pp in range(4):
            a(f"v_add_u32 v9, {4*pp}, v3")
            a("v_xor_b32 v9, v9, v2")
            a(f"v_lshl_add_u32 v{KDA+pp}, v9, 4, v10")
        for pp in range(2):
            a(f"v_add_u32 v9, {4*pp}, v3")
            a("v_lshlrev_b32 v9, 1, v9")
            a("v_xor_b32 v9, v9, v2")
            a(f"v_lshl_add_u32 v{VDA+pp}, v9, 4, v10")
    a("v_lshrrev_b32 v9, 1, v2")
    for s in range(2):
        a(f"v_or_b32 v8, {4*s}, v3")
        a("v_xor_b32 v8, v8, v9")
        a("v_lshlrev_b32 v8, 4, v8")
        a("v_lshl_add_u32 v8, v2, 7, v8")
        for bf in range(3):
            a(f"v_add_u32 v{XRA+2*bf+s}, s{36+bf}, v8")
    a("v_lshrrev_b32 v11, 1, v7")
    a("v_and_b32 v12, 1, v7")
    a("v_lshlrev_b32 v12, 3, v12")
    a("v_and_b32 v9, 1, v6")
    a("v_lshrrev_b32 v10, 1, v6")
    a("v_lshl_or_b32 v9, v10, 2, v9")
    a("v_and_b32 v10, 1, v3")
    a("v_lshl_or_b32 v9, v10, 3, v9")
    a("v_lshl_or_b32 v9, v11, 1, v9")
    a("v_lshl_add_u32 v13, v3, 3, v6")
    a("v_lshl_add_u32 v13, v13, 8, v12")
    a(f"v_add_u32 v13, {WWIN}, v13")
    for dt in range(8):
        a(f"v_xor_b32 v8, {4*(dt>>1)+(dt&1)}, v9")
        a(f"v_lshl_add_u32 v{WRA+dt}, v8, 4, v13")
    a("v_lshl_or_b32 v9, v10, 2, v6")
    a("v_lshl_or_b32 v9, v9, 1, v11")
    a("v_lshl_add_u32 v14, v3, 2, v6")
    a("v_lshl_add_u32 v14, v14, 8, v12")
    a("v_add_u32 v14, 65536, v14")
    for dt in range(8):
        a(f"v_xor_b32 v8, {2*dt}, v9")
        a(f"v_lshl_add_u32 v{VRA+dt}, v8, 4, v14")
    for ks in range(4):
        a(f"v_or_b32 v8, {4*ks}, v3")
        a("v_xor_b32 v8, v8, v2")
        a("v_lshlrev_b32 v8, 4, v8")
        a(f"v_lshl_add_u32 v{KRA+ks}, v2, 8, v8")
    for i in range(4):
        a(f"v_mov_b32 v{MTR+i}, 0xff800000")
    a("v_lshlrev_b32 v15, 4, v1")
    a(f"v_and_b32 v8, {cfg.tl-1}, v1")
    a(f"v_lshrrev_b32 v9, {int(math.log2(cfg.tl))}, v1")
    a("v_lshlrev_b32 v9, 14, v9")
    a("v_lshl_add_u32 v219, v8, 7, v9")
    a("v_lshlrev_b32 v9, 1, v3")
    a("v_xor_b32 v9, v9, v5")
    a("v_lshlrev_b32 v9, 4, v9")
    a("v_mul_u32_u24 v8, 1280, v4")
    a("v_add_u32 v8, v8, v9")
    for pp in range(4):
        a(f"v_add_u32 v{WD+pp}, {pp*9216}, v8")
    a("v_lshl_add_u32 v14, v3, 2, v6")
    a("v_bfe_u32 v13, v14, 1, 2")
    a("v_lshl_or_b32 v13, v13, 1, v11")
    a("v_lshl_add_u32 v14, v14, 7, v12")
    a("v_add_u32 v14, s40, v14")
    for nt in range(4):
        a(f"s_add_u32 s53, s3, {nt}")
        a("s_and_b32 s53, s53, 3")
        a("s_lshl_b32 s53, s53, 1")
        a("v_xor_b32 v16, s53, v13")
        a(f"v_lshl_add_u32 v{WRL[0][nt]}, v16, 4, v14")
        a(f"v_add_u32 v{WRL[1][nt]}, 65536, v{WRL[0][nt]}")
        a(f"v_add_u32 v{WRL[2][nt]}, 131072, v{WRL[0][nt]}")
    for i in range(5): a(f"v_add_u32 v{OAL[i]}, {131072*i}, v15")
    a("s_min_u32 s51, s51, 29")
    a("s_cmp_ge_u32 s51, 15")
    a("s_cselect_b32 s52, 1, 0")
    a("s_cselect_b32 s53, 15, 0")
    a("s_sub_u32 s53, s51, s53")
    a("s_and_b32 s43, s50, 6")
    a("s_add_u32 s43, s43, s52")
    a("s_mul_i32 s54, s53, 52")
    a("s_lshr_b32 s54, s54, 8")
    a("s_mul_i32 s41, s54, 5")
    a("s_sub_u32 s53, s53, s41")
    a("s_and_b32 s55, s50, 1")
    a("s_mul_i32 s55, s55, 5")
    a("s_add_u32 s55, s55, s53")
    a("s_mul_i32 s52, s52, 3")
    a("s_add_u32 s41, s54, s52")
    a("s_mul_i32 s41, s41, 43")
    a("s_lshr_b32 s41, s41, 3")
    if cfg.rA:
        a(f"s_mul_i32 s53, s53, {cfg.rA}")
        a("s_add_u32 s41, s41, s53")
    if cfg.map3b:
        a("s_mov_b32 s43, s50")
        a("s_mul_i32 s54, s51, 26")
        a("s_lshr_b32 s54, s54, 8")
        a("s_mul_i32 s52, s54, 10")
        a("s_sub_u32 s55, s51, s52")
        a("s_mul_i32 s41, s54, 11")
        a("s_add_u32 s41, s41, s50")
        a("s_mov_b32 s34, 0")
    a("s_and_b32 s41, s41, 31")
    sc = f32(math.log2(math.e) / math.sqrt(128.0))
    if cfg.wpull:
        a("s_mul_i32 s52, s2, 160")
        a(f"s_mul_i32 s53, s3, {14 if cfg.wpull == 1 else 40}")
        a("s_add_u32 s52, s52, s53")
        a("v_add_u32 v218, s52, v1")
        a("v_lshlrev_b32 v218, 7, v218")
        a("v_mov_b32 v16, 0x7fffff80")
        a(f"v_cmp_gt_u32 vcc, {14 if cfg.wpull == 1 else 40}, v1")
        a("v_cndmask_b32 v255, v16, v218, vcc")
    if cfg.wl2:
        a("s_lshr_b32 s52, s2, 3")
        a("s_lshl_b32 s52, s52, 2")
        a("s_add_u32 s52, s52, s3")
        a("s_mul_i32 s52, s52, %d" % (32 * 1280))
        a("s_and_b32 s53, s50, 1")
        a("s_mul_i32 s53, s53, 640")
        a("s_add_u32 s52, s52, s53")
        a("v_mul_u32_u24 v16, 52, v1")
        a("v_lshrrev_b32 v16, 8, v16")
        a("v_mul_u32_u24 v17, 5, v16")
        a("v_sub_u32 v17, v1, v17")
        a("v_mul_u32_u24 v16, 1280, v16")
        a("v_lshl_add_u32 v16, v17, 7, v16")
        a("v_add_u32 v16, s52, v16")
        a("v_mov_b32 v17, 0x7fffff80")
        a("v_cmp_gt_u32 vcc, 15, v1")
        a("v_cndmask_b32 v255, v17, v16, vcc")
    a(f"s_mov_b32 s44, {sc}")
    a(f"s_mov_b32 s45, {sc}")
    if not cfg.c1first: a.ext(with_nop(qstage(1)))
    stamp(a, cfg, "issued")

    def qreads(c):
        bf = rb = c % 3
        o = []
        for s in range(2):
            o.append(f"ds_read_b128 {XF(rb,s,0)}, v{XRA+2*bf+s}")
        for dt in range(8):
            for s in range(2):
                for e in range(2):
                    o.append(f"ds_read_b64_tr_b16 {WF2(rb,s,dt,e)}, v{WRA+dt} offset:{WOFF[bf]+8192*s+1024*e}")
        for u in range(1, 4):
            for s in range(2):
                o.append(f"ds_read_b128 {XF(rb,s,u)}, v{XRA+2*bf+s} offset:{2048*u}")
        return o
    a("WAITVM c0 lgkmcnt(0)")
    a("s_barrier")
    stamp(a, cfg, "landed")
    r0 = qreads(0)
    if cfg.fast0: a.ext(r0[:14])
    else:
        a.ext(r0)
        a.ext(with_nop(qstage(2)))
    wp = ["s_mov_b32 s4, s56", "s_mov_b32 s5, s57", f"s_mov_b32 s6, {4096*1280}", "s_mov_b32 s7, 0x20000", "buffer_load_dword v218, v255, s[4:7], 0 offen"]
    if cfg.wpull == 2: a.ext(wp)
    a("s_waitcnt lgkmcnt(8)" if cfg.fast0 else "s_waitcnt lgkmcnt(0)")
    if cfg.w3:
        a("s_cmp_eq_u32 s3, 3")
        a("s_cbranch_scc1 L_w3")
        if cfg.prio: a(f"s_setprio {cfg.prio}")
        a("L_sec0:")
    q = Seq()
    per = []
    for c in range(10):
        rb = c % 3
        mf = []
        for u in range(4):
            for dt in range(8):
                d = vr(O_(u, dt), 4)
                for s in range(2):
                    mf.append(f"{MF} {d}, {WF(rb,s,dt)}, {XF(rb,s,u)}, {'0' if c == 0 and s == 0 else d}")
        if cfg.joint and c >= 8:
            mf = []
            for u in (2 * (c - 8), 2 * (c - 8) + 1):
                for dt in range(8):
                    d = vr(O_(u, dt), 4)
                    for cc in (8, 9):
                        for s in range(2): mf.append(f"{MF} {d}, {WF(cc%3,s,dt)}, {XF(cc%3,s,u)}, {d}")
        p0 = q.add(mf); per.append(p0)
        for x in stamp_l(a, cfg, f"q{c+1}"): q.put(p0 + 63, "!" + x)
    if cfg.lazy:
        A = dict(zip(range(1, 10), cfg.lazy))
        FR = {0: 22}
        for n in range(1, 10):
            assert A[n] >= 64 * (n - 2) and A[n] + 26 < 64 * n + 3, n
            q.put(A[n], f"WAITVM c{n}"); q.put(A[n], "s_barrier")
            fast = A[n] + 38 > 64 * n
            for i, r in enumerate(qreads(n)): q.put(A[n] + 1 + (i // 2 if fast else (i * 3) // 4), r)
            FR[n] = min(A[n] + (26 if fast else 36), 64 * n - 1)
        DE = 0
        for n in range(10):
            q.put(FR[n], "s_waitcnt lgkmcnt(0)"); q.put(FR[n], "s_barrier")
            if n + 3 < 10:
                p = max(FR[n] + 2, DE + 6)
                ps = [p + (cfg.bsp * i) // 12 for i in range(12)]
                q.place(qstage(n + 3), ps); DE = ps[-1]
                assert DE < A[n + 3] - 20, n
        BQ = {7: DE - cfg.bsp + 3, 8: FR[7], 9: FR[8], 10: FR[9]}
    else:
        BQ = {n: max(cfg.b1 + cfg.bsp * (n - 1), 64 * (n - 2)) for n in range(1, 10)}
        BQ[10] = BQ[9] + 44
        for n in range(1, 11):
            p = BQ[n]
            q.put(p, f"WAITVM c{n} lgkmcnt(0)" if n < 10 else "s_waitcnt lgkmcnt(0)"); q.put(p, "s_barrier")
            if n < 10:
                for i, r in enumerate(qreads(n)): q.put(p + 1 + (i * 3) // 4, r)
            if n + 2 < 10:
                q.place(qstage(n + 2), [p + 2 + (cfg.bsp * i) // 12 for i in range(12)])
            assert n == 1 or n == 10 or BQ[n + 1] < 64 * n, n
        q.put(63, "s_waitcnt lgkmcnt(0)")
    if cfg.fast0:
        for i, r in enumerate(r0[14:]): q.put(i // 2, r)
        for dt in range(1, 8):
            issued = min(40, 14 + 2 * (2 * dt - 1)); needed = 2 + 4 * (dt + 1)
            q.g[2 * dt - 1].insert(0, f"s_waitcnt lgkmcnt({min(15, issued - needed)})")
        q.g[15].insert(0, "s_waitcnt lgkmcnt(0)")
        q.place(qstage(2), [4 + i + i // 4 for i in range(12)])
    if cfg.wpull >= 3: q.place(wp, [per[cfg.wpull - 3] + 60])
    sw = ["s_mul_i32 s52, s3, %d" % (1024 * 1280), "s_lshl_b32 s53, s55, 7", "s_add_u32 s52, s52, s53"] + srd(SWO, 56, "s52", WOSZ) + \
         ["s_mul_i32 s52, s43, 15", "s_mul_i32 s53, s54, 5", "s_add_u32 s52, s52, s53", "s_lshl_b32 s52, s52, 17", "s_lshl_b32 s53, s3, 15",
          "s_add_u32 s52, s52, s53"] + srd(SOR, 48, "s52", ORSZ)
    if cfg.wpull == 1 or cfg.wl2: sw += ["s_mov_b32 s4, s56", "s_mov_b32 s5, s57", f"s_mov_b32 s6, {4096*1280}", "s_mov_b32 s7, 0x20000", "s_mov_b32 s38, 0"]
    i = per[8] + 2
    k = 0
    while k < len(sw):
        n = 2 if "s_addc" in sw[min(k + 1, len(sw) - 1)] else 1
        for x in sw[k:k + n]: q.put(i, x)
        k += n; i += 2
    p9 = per[9]
    def qepi(u):
        o = []
        for m in range(4):
            t = 16 + 4 * (m & 1)
            o += scale_pack(cfg, O_(u, 2 * m), t, ("s44", "s[44:45]"), cfg.pkmul)
            if m:
                tp = 16 + 4 * ((m - 1) & 1)
                o += [f"v_accvgpr_write_b32 a{Q_(u,m-1)+i}, v{tp+i}" for i in range(4)]
            o += [f"v_permlane16_swap_b32 v{t}, v{t+2}", f"v_permlane16_swap_b32 v{t+1}, v{t+3}"]
        o += [f"v_accvgpr_write_b32 a{Q_(u,3)+i}, v{20+i}" for i in range(4)]
        return o
    q.put(p9 + 31, "WAITVM seg0k" if cfg.split0 else "WAITVM seg0"); q.put(p9 + 31, "s_barrier")
    for x in stamp_l(a, cfg, "b0"): q.put(p9 + 31, "!" + x)
    k0r = [kread(0, 0, 0, kt, ks) for kt in range(2) for ks in range(4)]
    for i, r in enumerate(k0r): q.put(p9 + 32 + 2 * i, r)
    if cfg.joint:
        assert BQ[10] < per[8]
        e = q.stream(qepi(0), per[8] + 32 + 4, cap=cfg.jcap)
        e = q.stream(qepi(1), max(e, p9 + 4), cap=cfg.jcap)
        e = q.stream(qepi(2), max(e, p9 + 32 + 4), cap=cfg.jcap)
    else:
        e = q.stream(qepi(0), p9 + 16 + 4, cap=4)
        e = q.stream(qepi(1), max(e, p9 + 32 + 4), cap=4)
        e = q.stream(qepi(2), max(e, p9 + 48 + 4), cap=4)
    q.put(p9 + 62, "s_waitcnt lgkmcnt(0)")
    lab = q.raw([])
    for x in stamp_l(a, cfg, "g0"): q.put(len(q.m) - 1, "!" + x)
    g0 = q.add(qk(0, 0, True))
    g1 = q.add(qk(1, 0, True))
    g2 = q.add(qk(2, 0, True))
    v0r = [vread(0, 0, 0, dt, e_) for dt in range(8) for e_ in range(2)]
    k1r = [kread(1, 0, 1, kt, ks) for kt in range(2) for ks in range(4)]
    if cfg.split0:
        for i, r in enumerate(k1r): q.put(g0 + i, r)
        q.put(g1 - 1, "!WAITVM seg0"); q.put(g1 - 1, "!s_barrier")
        for i, r in enumerate(v0r): q.put(g1 + i, r)
    else:
        for i, r in enumerate(v0r + k1r): q.put(g0 + i, r)
    e = q.stream(qepi(3), max(e, g0), cap=4)
    def fmax(u):
        s0 = S_(u, 0); t = NM(u)
        o = [f"v_max3_f32 v{t}, v{s0}, v{s0+1}, v{s0+2}", f"v_max3_f32 v{t+1}, v{s0+3}, v{s0+4}, v{s0+5}",
             f"v_max3_f32 v{t}, v{t}, v{s0+6}, v{s0+7}", f"v_max3_f32 v{t}, v{t}, v{t+1}, v{MTR+u}"]
        return o + [x for x in rowmax_l(t, t + 1) if "s_nop" not in x]
    def fexp(u, nexp):
        s0 = S_(u, 0); t = NM(u)
        o = [f"v_sub_f32 v{s0+r}, v{s0+r}, v{t}" for r in range(8)]
        o += [f"v_exp_f32 v{s0+r}, v{s0+r}" for r in range(nexp)]
        o += [f"v_sub_f32 v{NM(u)+i}, 0, v{t}" for i in (1, 2, 3, 0)]
        o += [f"v_cvt_pk_bf16_f32 v{P_(u)+r//2}, v{s0+r}, v{s0+r+1}" for r in range(0, nexp, 2)]
        return o
    ones = [f"v_mov_b32 v{LA[u]}, 0" for u in cfg.addu] + ["v_mov_b32 v27, 0x3f803f80"] + [f"v_accvgpr_write_b32 a{ONES+i}, v27" for i in range(4)]
    e = q.stream(merge(fmax(0), fmax(1), ones), max(e, g2 + 1), cap=4)
    for x in stamp_l(a, cfg, "g3"): q.put(len(q.m) - 1, "!" + x)
    if cfg.epark:
        q.put(len(q.m) - 1, "!s_cmp_lg_u32 s35, 0"); q.put(len(q.m) - 1, "!s_cbranch_scc1 L_exact")
    g3 = q.add(qk(3, 0, True))
    e = q.stream(merge(fexp(0, 8), fmax(2)), g3, cap=6)
    q.raw(["s_waitcnt lgkmcnt(0)"])
    for x in stamp_l(a, cfg, "g4"): q.put(len(q.m) - 1, "!" + x)
    g4 = q.add(pv(0, 0, True))
    e = q.stream(merge(fexp(1, 8), fmax(3)), g4, cap=5)
    for x in stamp_l(a, cfg, "g5"): q.put(len(q.m) - 1, "!" + x)
    g5 = q.add(pv(1, 0, True))
    e = q.stream(merge(fexp(2, 8), fexp(3, 4)), g5, cap=7)
    for x in stamp_l(a, cfg, "tile1"): q.raw([x])
    st1 = attn_tile(cfg, q, 1, "first")
    if cfg.sig == "line":
        arr = ["s_and_b32 s52, s2, 31", "s_lshl_b32 s52, s52, 3", "v_mov_b32 v16, s52", "v_mov_b32 v17, 1", "s_cmp_lg_u32 s3, 0", "s_cbranch_scc1 L_noarr",
               "s_mov_b64 exec, 1", "global_atomic_add v16, v17, s[46:47] sc1 ;@skip", "s_mov_b64 exec, -1", "L_noarr:"]
        for x in arr: q.put(st1[8] - 1, "!" + x)
    kv = []
    NP = 32 - cfg.lag if not cfg.uni else cfg.ipre - 2
    if cfg.bm and not cfg.uni: NP = 30 - cfg.lag
    for gp in range(NP): kv += piece(cfg, gp, False) if not cfg.uni else upiece(cfg, gp)
    if cfg.uni:
        q.place(upiece(cfg, NP), [st1[4] + 1]); q.place(upiece(cfg, NP + 1), [st1[6] + 1])
    pos = []
    i = BQ[7] + cfg.bsp + 3; acc = 4 * cfg.kvpace
    free_at = [0, BQ[8], BQ[8], BQ[8], BQ[9], BQ[9], BQ[9], BQ[10]]
    if cfg.uni: free_at = [BQ[8], BQ[8], BQ[8], BQ[8], BQ[9], BQ[9], BQ[10], BQ[10]]
    while len(pos) < NP:
        ok = q.m[i] and q.m[i - 1] and q.m[i + 1] and (q.slots(i) < 2 or i > (p9 + 16 if not cfg.joint else per[8] + 32)) and i > free_at[len(pos) // 4]
        if ok and acc >= (cfg.kvpace if not cfg.bmi else (4 * cfg.kvpace - 3 * cfg.bmi if len(pos) % 4 == 0 else cfg.bmi)):
            pos.append(i); acc = 0
        acc += max(4, 2 + q.slots(i)) / 4
        i += 1
    assert pos[3 if cfg.split0 else 7] < p9 + 31 and pos[7] < g1 - 2 and pos[-1] < (st1[4] - 2 if cfg.bm != 3 else st1[2] + 3), (pos, p9, st1)
    if "nokv23" in cfg.exp: kv = [("buffer_dummy ;@" + x.split(";@")[1]) if (x.endswith("seg2") or x.endswith("seg3")) else x for x in kv]
    for k, (c, sg) in enumerate(cfg.touch):
        q.put(per[c] + cfg.tpos - 1, f"s_add_u32 s53, s40, {16384*sg}")
        q.put(per[c] + cfg.tpos, f"buffer_load_dword v255, v219, s[{SV if cfg.tkv[k % len(cfg.tkv)] == 'v' else SK}:{(SV if cfg.tkv[k % len(cfg.tkv)] == 'v' else SK)+3}], s53 offen {cfg.tflags}".rstrip())
    q.place(kv, pos)
    q.emit(a)
    a.l = fix(resolve_waits(a.l))
    a("s_mov_b32 s34, 3")
    a(".p2align 6")
    a("L_loop:")
    body0 = len(a.l)
    q = Seq()
    def loopstamp(q, p, pre):
        if cfg.stamps and pre in cfg.only.split(","):
            o = ["s_memtime s[4:5]", "s_memrealtime s[6:7]", "s_waitcnt lgkmcnt(0)"]
            for it in range(3):
                i = len(a.stamps); a.stamps.append(f"{pre}{it}")
                o += [f"s_cmp_eq_u32 s34, {3-it}", f"s_cselect_b32 s{60+4*i}, s4, s{60+4*i}", f"s_cselect_b32 s{62+4*i}, s6, s{62+4*i}"]
            for x in o: q.put(p, x)
    for j in range(2, 10):
        st = attn_tile(cfg, q, j)
        if j == 2: loopstamp(q, st[4] - 1, "ia")
        if j == 6: loopstamp(q, st[4] - 1, "ib")
        if cfg.wl2 and j % 2 == 0:
            q.put(st[3] + 1, f"buffer_load_dword v16, v255, s[4:7], s38 offen {cfg.wl2f}".rstrip())
            q.put(st[3] + 2, f"s_add_u32 s38, s38, {3*1280}")
        if cfg.wpull == 1 and j == 4:
            q.put(st[3] + 1, "buffer_load_dword v16, v255, s[4:7], s38 offen")
            q.put(st[3] + 2, f"s_add_u32 s38, s38, {56*128}")
        if j in (5, 7):
            for x in reversed(stamp_l(a, cfg, f"w{j}a")): q.g[st[4] - 1].insert(0, x)
            for x in stamp_l(a, cfg, f"w{j}b"): q.put(st[4] - 1, x)
        if j == 6:
            for x in reversed(stamp_l(a, cfg, f"d{j}a")): q.g[st[2] + 1].insert(0, x)
            for x in stamp_l(a, cfg, f"d{j}b"): q.put(st[2] + 1, "!" + x)
    if cfg.uni:
        n = len(q.m); cnt = cfg.upi; ps = []
        for k in range(cnt):
            if cfg.ucl:
                p = int((k // cfg.ucl + cfg.uph) * n / (cnt // cfg.ucl)) + 1 if k % cfg.ucl == 0 else ps[-1] + (2 if k & 1 else 3)
                while q.slots(p) >= (2 if k % cfg.ucl == 0 else 3) or any(x.startswith("v_exp") for x in q.g[p]) or "UNIWAIT" in q.g[p] or "UNIWAIT" in q.g[p - 1]: p += 1
            else:
                p = int((k + 0.1) * n / cnt) + 1
                while q.slots(p) >= 2 or "UNIWAIT" in q.g[p] or "UNIWAIT" in q.g[p - 1]: p += 1
            ps.append(p)
        assert ps[-1] < n - 4 and cfg.ipre % 2 == 0 and cnt % 2 == 0
        for k, p in enumerate(ps): q.place(upiece(cfg, k), [p])
        for bi, p in enumerate([i for i in range(n) if "UNIWAIT" in q.g[i]]):
            before = sum(1 for x in ps if x < p)
            m = 2 + bi + 8
            nw = cfg.ipre + 2 * cnt + before - 8 * (m + 1)
            assert cfg.ipre + before <= 8 * (2 + bi - 1 + 4) and nw >= 4, (bi, nw)
            q.g[p][q.g[p].index("UNIWAIT")] = f"s_waitcnt vmcnt({nw}) lgkmcnt(0)"
        IEND = cfg.ipre + 3 * cnt
    if cfg.pad:
        for i in range(0, len(q.m), cfg.pad): q.put(i, "!s_nop 3")
    if "lnobar" in cfg.exp: q.g = [[x for x in gp if x != "s_barrier"] for gp in q.g]
    if "lnodma" in cfg.exp: q.g = [[x for x in gp if kind(x.lstrip("!")) != "vm"] for gp in q.g]
    if "lnods" in cfg.exp: q.g = [[x for x in gp if kind(x.lstrip("!")) != "ds"] for gp in q.g]
    if "lnowait" in cfg.exp: q.g = [[x for x in gp if not (x.startswith("s_waitcnt") and "s_cmp_eq_u32 s34, 3" not in gp)] for gp in q.g]
    if "lnocvt" in cfg.exp: q.g = [[x for x in gp if not x.startswith("v_cvt")] for gp in q.g]
    q.put(-3, "s_sub_u32 s34, s34, 1")
    q.put(-1, "s_cmp_lg_u32 s34, 0"); q.put(-1, "s_cbranch_scc1 L_loop")
    q.emit(a)
    a.l = a.l[:body0] + [x.split(" ;@")[0] for x in a.l[body0:]]
    body = a.l[body0:]
    b = Asm(); b.stamps = a.stamps
    if cfg.uni:
        for gp in range(104, IEND): b(f"buffer_dummy ;@seg{gp//8}" + ("k" if gp >= 120 and gp % 2 == 0 else ""))
    else:
        for gp in range(104, 130 - cfg.lag): b(f"buffer_dummy ;@seg{gp//8}" + ("k" if gp % 8 < 4 else ""))
    q = Seq()
    if "nowo" in cfg.exp: b(f"s_mov_b32 s{SWO+2}, 0")
    for x in stamp_l(b, cfg, "t26"): b(x)
    sts = {j: attn_tile(cfg, q, j, "final") for j in range(26, 30)}
    if cfg.uni:
        rest = [(0, n_) for n_ in range(IEND // 2, 64)] + [(1, n_) for n_ in range(IEND // 2, 64)]
        p = sts[26][0] + 2
        for kv_, n_ in rest:
            d = 4096 * (n_ - IEND // 2)
            lst = [f"s_add_u32 s53, s33, {d}", f"s_and_b32 m0, s53, 0xffff"] + (["s_or_b32 m0, m0, 0x10000"] if kv_ else []) + \
                  [dma(VDA if kv_ else KDA, SV if kv_ else SK, "s53", 0, cfg.kvflags) + f" ;@seg{n_>>2}" + ("k" if not kv_ and n_ >= 60 else "")]
            pp_ = max(p, sts[26][0] + 3)
            while q.slots(pp_) >= 2 and not cfg.ucl: pp_ += 1
            q.place(lst, [pp_]); p = max(p + cfg.urest, pp_ + (5 if not cfg.ucl else (3 if not kv_ and n_ < 63 else 4))); KVEND = pp_
    def wpos(st, half):
        return [st[4*half] + 1, st[4*half+1] + 8 if half == 0 else st[5] + 1, st[4*half+2] + (7 if half == 0 else 1), st[4*half+3] + 1]
    if cfg.wsched == 0:
        for j, (t0, t1) in {26: (0, 1), 27: (2, 3), 28: (4, 5), 29: (10, 6)}.items():
            st = sts[j]
            q.place(wdma(cfg, t0), [st[1] + 8, st[2] + 7, st[3] + 1, st[3] + 5])
            q.place(wdma(cfg, t1), [st[5] + 8, st[6] + 1, st[6] + 5, st[7] + 5])
    elif cfg.wsched >= 3:
        pass
    elif cfg.wsched == 2:
        st = sts[26]
        if cfg.uni and cfg.ucl:
            assert KVEND < st[4] - 3
            q.place(wdma(cfg, 0), [st[4] + 1, st[5] + 1, st[5] + 8, st[7] + 1])
        elif cfg.uni:
            st = sts[27]
            assert KVEND < st[0] - 6
            q.place(wdma(cfg, 0), [st[0] + 1, st[1] + 3, st[2] + 1, st[3] + 1])
            q.place(wdma(cfg, 1), [st[4] + 1, st[5] + 3, st[6] + 1, st[7] + 1])
            st = sts[28]
            q.place(wdma(cfg, 2), [st[0] + 1, st[1] + 1, st[1] + 8, st[2] + 5])
            q.place(wdma(cfg, 5), [st[3] + 3, st[3] + 5, st[3] + 7, st[4] + 1])
            q.place(wdma(cfg, 6), [st[5] + 8, st[6] + 1, st[6] + 5, st[7] + 5])
        else: q.place(wdma(cfg, 0), [st[2] + 7, st[4] + 1, st[5] + 8, st[7] + 1])
        if cfg.wv:
            st = sts[29]
            q.place(wdma(cfg, 6), [st[0] + 5, st[1] + 8, st[2] + 7, st[3] + 5])
            q.place(wdma(cfg, 4), [st[4] + 5, st[4] + 7, st[5] + 3, st[5] + 7])
            q.place(wdma(cfg, 7), [st[6] + 5, st[6] + 7, st[7] + 3, st[7] + 5])
        for j, (t0, t1) in (({27: (1, 5), 28: (2, 6), 29: (3, 7)} if not cfg.wv else {27: (1, 5), 28: (2, 3)}) if not cfg.uni or cfg.ucl else {29: (3, 7)}).items():
            st = sts[j]
            q.place(wdma(cfg, t0), [st[0] + 5, st[1] + 8, st[2] + 7, st[3] + 5])
            q.place(wdma(cfg, t1), [st[5] + 8, st[6] + 1, st[6] + 5, st[7] + 5])
    else:
        st = sts[27]
        q.place(wdma(cfg, 0), [st[5] + 8, st[6] + 1, st[6] + 5, st[7] + 5])
        st = sts[28]
        q.place(wdma(cfg, 1), [st[0] + 5, st[0] + 7, st[1] + 1, st[1] + 3])
        q.place(wdma(cfg, 2), [st[2] + 1, st[2] + 7, st[3] + 1, st[3] + 5])
        q.place(wdma(cfg, 3), [st[5] + 8, st[6] + 1, st[6] + 5, st[7] + 5])
        st = sts[29]
        q.place(wdma(cfg, 4), [st[0] + 5, st[0] + 7, st[1] + 1, st[1] + 3])
        q.place(wdma(cfg, 5), [st[2] + 1, st[2] + 3, st[2] + 5, st[2] + 7])
        q.place(wdma(cfg, 10), [st[3] + 5, st[3] + 7, st[4] + 1, st[4] + 3])
        q.place(wdma(cfg, 6), [st[5] + 8, st[6] + 1, st[6] + 5, st[7] + 5])
    if cfg.sig == "line": q.put(sts[26][3] + 1, "global_load_dword v255, v0, s[46:47] sc1 ;@arr")
    if cfg.tlb:
        so = ["s_mul_i32 s52, s43, 240", "s_mul_i32 s53, s54, 80", "s_add_u32 s52, s52, s53", "s_mul_i32 s52, s52, 1280", "s_lshl_b32 s53, s55, 7", "s_add_u32 s52, s52, s53"]
        st = sts[27]
        for k, x in enumerate(so): q.g[st[4] + 2 + k].insert(0, x)
        sd = srd(SOUT, 58, "s52", 79 * 1280 + 128)
        q.g[st[4] + 8][0:0] = sd[:2]; q.g[st[5]][0:0] = sd[2:]
        q.put(st[5] + 1, f"buffer_load_dword v16, off, s[{SOUT}:{SOUT+3}], 0")
        q.put(st[5] + 3, f"buffer_load_dword v16, off, s[{SO}:{SO+3}], 0")
        q.put(st[5] + 5, f"buffer_load_dword v16, off, s[{SOR}:{SOR+3}], 0")
    if cfg.wsched < 3:
        st = sts[28]
        q.g[st[5] + 8].insert(0, "WAITVM w0")
        q.g[sts[29][4]].insert(0, "WAITVM w1")
        for p, r in zip([st[5] + 8, st[6] + 1, st[6] + 3, st[6] + 5, st[6] + 7, st[7] + 1, st[7] + 1, st[7] + 3], wreads(0)): q.put(p, r)
        k = q.g[st[8] - 2].index("s_waitcnt lgkmcnt(0)"); q.g[st[8] - 2][k] = "s_waitcnt lgkmcnt(8)"
        st = sts[29]
        q.put(st[1] + 7, "s_waitcnt lgkmcnt(10)")
        for p, r in zip([st[4] + 1, st[4] + 5, st[5] + 1, st[5] + 5, st[5] + 8, st[6] + 1, st[6] + 3, st[6] + 5], wreads(1)): q.put(p, r)
        k = q.g[st[7]].index("s_waitcnt lgkmcnt(0)"); q.g[st[7]][k] = "s_waitcnt lgkmcnt(4)"
    st = sts[29]
    for p, r in zip([st[7] + k for k in (1, 1, 3, 5, 7, 8, 8)] + [st[8]], [kread(1, 3, 1, kt, ks) for kt in range(2) for ks in range(4)]):
        if p < st[8]: q.put(p, r)
        else: lastk = r
    for x in stamp_l(b, cfg, "t30"): q.put(len(q.m) - 1, "!" + x)
    if cfg.w3: q.put(len(q.m) - 1, "!L_sec1:")
    job = lambda k: (k >> 1, k & 1, k & 3)
    F = []
    for k in range(8):
        u, tb, sl = job(k)
        F.append(q.add(qk(u, tb, sl=sl)))
        if k < 2: F.append(q.add(pv(2 + k, 1)))
        else:
            u, tb, sl = job(k - 2); F.append(q.add(pv(u, tb, sl=sl)))
    for k in (6, 7):
        u, tb, sl = job(k); F.append(q.add(pv(u, tb, sl=sl)))
    F.append(len(q.m))
    sm_half(q, F[0], 3, 1)
    for k in range(8):
        sm_half(q, F[2 * k + 1], k & 3, 0); sm_half(q, F[2 * k + 2], k & 3, 1)
    q.put(F[0] + 1, lastk)
    v30 = [vread(0, 3, 0, dt, e) for dt in range(8) for e in range(2)]
    v31 = [vread(1, 3, 1, dt, e) for dt in range(8) for e in range(2)]
    if not cfg.split15:
        for p, r in zip([F[0] + k for k in (1, 3, 5, 5, 7)] + [F[1] + k for k in (1, 1, 3, 5, 5, 7)] + [F[2] + k for k in (1, 1, 3, 5, 5)], v30): q.put(p, r)
        q.put(F[1] + 8, "s_waitcnt lgkmcnt(10)")
        for p, r in zip([F[4] + k for k in (1, 1, 3, 5, 5, 7)] + [F[5] + k for k in (1, 1, 3, 5, 5, 7, 8, 8)] + [F[6] + k for k in (1, 1)], v31): q.put(p, r)
        q.put(F[4], "s_waitcnt lgkmcnt(0)")
        q.place(wdma(cfg, 11), [F[2] + 7, F[3] + 1, F[3] + 3, F[3] + 5])
        q.place(wdma(cfg, 7), [F[5] + 3, F[5] + 7, F[6] + 3, F[6] + 5])
    else:
        q.put(F[1] + 8, "WAITVM seg15 lgkmcnt(0)"); q.put(F[1] + 8, "s_barrier")
        for p, r in zip([F[2] + k for k in (1, 1, 3, 5, 5, 7)] + [F[3] + k for k in (1, 1, 3, 5, 5, 7, 8, 8)] + [F[4] + k for k in (1, 1)], v30): q.put(p, r)
        for p, r in zip([F[4] + k for k in (3, 5, 5, 7)] + [F[5] + k for k in (1, 1, 3, 5, 5, 7, 8, 8)] + [F[6] + k for k in (1, 1, 3, 3)], v31): q.put(p, r)
        q.put(F[5] - 1, "s_waitcnt lgkmcnt(3)")
        if cfg.wsched >= 3:
            pass
        elif cfg.wv:
            q.place(wdma(cfg, 10), [F[0] + 5, F[0] + 7, F[1] + 3, F[1] + 7] if cfg.wv == 1 else [F[2] + 4, F[2] + 6, F[3], F[3] + 2])
            q.place(wdma(cfg, 11), [F[4], F[4] + 2, F[4] + 4, F[4] + 6])
        elif cfg.wsched == 2:
            q.place(wdma(cfg, 4), [F[0] + 5, F[0] + 7, F[1] + 3, F[1] + 7])
            q.place(wdma(cfg, 10), [F[2] + 4, F[2] + 6, F[3], F[3] + 2])
            q.place(wdma(cfg, 11), [F[4], F[4] + 2, F[4] + 4, F[4] + 6])
        else:
            q.place(wdma(cfg, 11), [F[0] + 5, F[0] + 7, F[1] + 1, F[1] + 3])
            q.place(wdma(cfg, 7), [F[2], F[2] + 4, F[3] + 2, F[3] + 6])
    q.put(F[7] - 1, "s_waitcnt lgkmcnt(0)"); q.put(F[7] - 1, "s_barrier")
    issued = set(range(12))
    if cfg.wsched < 3:
        q.place(wdma(cfg, 8), [F[7] + 5, F[7] + 7, F[7] + 8, F[8] + 1])
        q.place(wdma(cfg, 9), [F[8] + 7, F[9] + 1, F[9] + 3, F[9] + 5])
    else:
        issued = set()
        free = {0: 0, 4: 0, 8: 0, 9: 0, 1: sts[27][4], 5: sts[27][4], 2: sts[29][4], 6: sts[29][4], 3: F[7], 7: F[7]}
        p = sts[26][4] + 1 + cfg.wdelay
        for t in range(cfg.wn):
            sp = cfg.wp if t < 5 else cfg.wp2
            p = max(p, free[UNIT[t]] + 6)
            ps = []
            for k in range(4):
                pp_ = p
                while t < 5 and q.slots(pp_) >= 2: pp_ += 1
                ps.append(pp_); p = max(p + sp, pp_ + (1 if k < 3 else 6))
            assert ps[-1] < F[18], (t, ps)
            q.place(wdma(cfg, t), ps); issued.add(t)
    if "nost" in cfg.exp: q.g[F[4]].insert(0, f"s_mov_b32 s{SO+2}, 0")
    def onorm(u, store=True):
        o = [f"v_accvgpr_read_b32 v16, a{L_(u)}"]
        if u in cfg.addu:
            t = LA[u]
            o += [f"v_mov_b32 v17, v{t}", f"v_permlane32_swap_b32 v{t}, v17", f"v_add_f32 v{t}, v{t}, v17",
                  f"v_mov_b32 v17, v{t}", f"v_permlane16_swap_b32 v{t}, v17", f"v_add_f32 v{t}, v{t}, v17", f"v_add_f32 v16, v16, v{t}"]
        o += ["v_cmp_ngt_f32 vcc, s36, v16", "v_rcp_f32 v16, v16", "s_or_b64 s[50:51], s[50:51], vcc", "v_mov_b32 v17, v16"]
        for m in range(4):
            t = O_(u, 0) + 4 * m
            o += scale_pack(cfg, O_(u, 2 * m), t, ("v16", "v[16:17]"), cfg.opk == 1 or (cfg.opk == 2 and u == 3))
            if store: o += ostore(u)[m:m + 1]
        if store: o += ostore(u)[4:]
        return o
    def ostore(u):
        return [f"buffer_store_dwordx4 {vr(O_(u,0)+4*m,4)}, v15, s[{SO}:{SO+3}], s30 offen offset:{1024*m} {cfg.oflags}".rstrip() + " ;@ost" for m in range(4)] + ["s_add_u32 s30, s30, 131072"]
    for k, x in enumerate([f"s_mov_b32 s36, {f32(cfg.lthr)}", "s_mov_b64 s[50:51], 0", "s_lshl_b32 s30, s3, 19", "s_lshl_b32 s31, s29, 12", "s_add_u32 s30, s30, s31"]):
        q.g[F[4] + 2 + k].insert(0, x)
    for k in (2, 4, 6, 8, 10, 12, 14, 16):
        for x in stamp_l(b, cfg, f"F{k}"): q.put(F[k] - 1, "!" + x)
    if cfg.epark:
        def epark(t, p0, refill_at):
            q.g[p0].insert(0, f"WAITVM w{t}")
            for k, r in enumerate(wreads(t)): q.put(p0 + 2 * (k // 2), r)
            if refill_at:
                q.place(wdma(cfg, t + 10), refill_at)
                q.g[refill_at[0]].insert(0, f"WAITLG p{t}")
        epark(2, F[7] + 1, [F[10] + 3, F[10] + 5, F[10] + 7, F[11] + 1])
        epark(3, F[9] + 1, [F[11] + 7, F[11] + 8, F[12] + 1, F[12] + 3])
        epark(5, F[11] + 2, [F[13] + 1, F[13] + 3, F[13] + 5, F[13] + 7])
        epark(6, F[13] + 2, [F[14] + 5, F[14] + 7, F[15] + 1, F[15] + 3])
        epark(7, F[14] + 1, [F[16] + 1, F[16] + 3, F[16] + 5, F[16] + 7])
        epark(4, F[15] + 2, [F[17] + 5, F[17] + 6, F[17] + 7, F[17] + 8])
        epark(8, F[16] + 2, None)
        epark(9, F[17] + 1, None)
    if cfg.fsig:
        for t, p0 in ((2, F[13] + 2), (3, F[14] + 1), (4, F[15] + 2), (5, F[16] + 1)):
            q.g[p0].insert(0, f"WAITVM w{t}")
            for k, r in enumerate(wreads(t)): q.put(p0 + 2 * (k // 2), r)
    if cfg.early == 1:
        e = q.stream(onorm(0), F[8] + 4, cap=cfg.ncap)
        e = q.stream(onorm(1), max(e, F[12] + 4), cap=cfg.ncap)
        e = q.stream(onorm(2), max(e, F[16] + 4), cap=cfg.ncap + 2)
    if cfg.early >= 2:
        e = q.stream(onorm(0, False), F[8] + 4, cap=cfg.ncap)
        e = q.stream(onorm(1, False), max(e, F[12] + 4), cap=cfg.ncap)
        e = q.stream(onorm(2, False), max(e, F[16] + 4), cap=cfg.ncap + 2)
        if cfg.early == 3:
            for k, x in enumerate(ostore(0) + ostore(1)): q.put(min(F[16] + 8 + k, F[18] - 1), x if kind(x) == "vm" else "!" + x)
    q.emit(b)
    if cfg.early == 2: b.ext(ostore(0) + ostore(1) + ostore(2))
    if cfg.early == 3: b.ext(ostore(2))
    if not cfg.early: b.ext(onorm(0) + onorm(1) + onorm(2))
    stamp(b, cfg, "loopend")
    if "nowo" in cfg.exp: b(f"s_mov_b32 s{SWO+2}, {WOSZ}")
    def park(t): return [f"WAITVM w{t}"] + wreads(t)
    def refill(t): return with_nop(wdma(cfg, t + 10))
    DU = UNIT[9 if cfg.epark else 2]
    if cfg.fsig:
        on3 = onorm(3)
        k3 = on3.index("s_or_b64 s[50:51], s[50:51], vcc") + 1
        b.ext(on3[:k3])
        if cfg.force_fb: b("s_mov_b64 s[50:51], -1")
        b("s_cmp_lg_u64 s[50:51], 0")
        b("s_cselect_b32 s52, 1, 0")
        b(f"s_add_u32 s53, s40, {16384*DU}")
        b("v_mov_b32 v20, s52")
        b("v_mov_b32 v21, s53")
        b("WAITLG p2")
        b("ds_write_b32 v21, v20")
        b.ext(on3[k3:])
        stamp(b, cfg, "stored")
        b("v_and_b32 v18, 3, v1")
        b("v_lshlrev_b32 v18, 12, v18")
        b(f"v_add_u32 v18, {16384*DU}, v18")
        b("s_waitcnt lgkmcnt(0)")
        b("s_barrier")
        b("ds_read_b32 v20, v18")
        b.ext(refill(3) + refill(4))
        b("s_waitcnt lgkmcnt(0)")
        b("v_cmp_ne_u32 vcc, 0, v20")
        b("s_cmp_eq_u32 s35, 0")
        b("s_cselect_b64 s[52:53], vcc, 0")
        b("s_cmp_lg_u64 s[52:53], 0")
        b("s_cbranch_scc1 L_exact")
        if cfg.fsig == 2: b.ext(park(6) + park(7))
    else:
        if cfg.wsched >= 3:
            DU = UNIT[0] if cfg.wn else UNIT[9]
            late = [t for t in range(10) if t not in issued]
            for t in late[:3]:
                if UNIT[t] != DU: b.ext(with_nop(wdma(cfg, t))); issued.add(t)
            if cfg.wn: b.ext(park(0))
        elif cfg.epark: b.ext(park(10) + park(11))
        else: b.ext(park(2) + park(3))
        b.ext(onorm(3))
        stamp(b, cfg, "stored")
        if cfg.force_fb: b("s_mov_b64 s[50:51], -1")
        b("s_cmp_lg_u64 s[50:51], 0")
        b("s_cselect_b32 s52, 1, 0")
        b(f"s_add_u32 s53, s40, {16384*DU}")
        b("v_mov_b32 v16, s52")
        b("v_mov_b32 v17, s53")
        b("v_and_b32 v18, 3, v1")
        b("v_lshlrev_b32 v18, 12, v18")
        b(f"v_add_u32 v18, {16384*DU}, v18")
        b("s_waitcnt lgkmcnt(0)")
        b("ds_write_b32 v17, v16")
        if cfg.wsched >= 3: pass
        elif cfg.epark: b.ext(refill(8) + park(12) + park(13))
        else: b.ext(refill(3) + park(4) + park(5))
        b("s_waitcnt lgkmcnt(0)")
        b("s_barrier")
        b("ds_read_b32 v20, v18")
        parked = [0] if cfg.wsched >= 3 and cfg.wn else []
        if cfg.wsched >= 3:
            for t in range(1, min(cfg.wn, 6)): b.ext(park(t)); parked.append(t)
        elif cfg.epark: b.ext(refill(10))
        else: b.ext(refill(4) + park(6) + park(7))
        b("s_waitcnt lgkmcnt(0)")
        b("v_cmp_ne_u32 vcc, 0, v20")
        b("s_cmp_eq_u32 s35, 0")
        b("s_cselect_b64 s[52:53], vcc, 0")
        b("s_cmp_lg_u64 s[52:53], 0")
        b("s_cbranch_scc1 L_redo" if cfg.epark else "s_cbranch_scc1 L_exact")
        if not cfg.sigfirst: b.ext(park(8) + park(9) + park(10) + park(11))
    if cfg.sig == "line":
        b("s_lshl_b32 s52, s28, 5")
        b("s_add_u32 s52, s52, s29")
        b("s_lshl_b32 s52, s52, 7")
        b(f"s_add_u32 s52, s52, {FOFF}")
    else:
        b("s_lshl_b32 s52, s28, 2")
        b("s_lshr_b32 s53, s29, 3")
        b("s_add_u32 s52, s52, s53")
        b("s_lshl_b32 s52, s52, 3")
    b("v_mov_b32 v16, s52")
    b("v_mov_b32 v17, 1")
    if cfg.wsched >= 3:
        for t in parked[1:3]: b.ext(refill(t)); issued.add(t + 10)
    elif cfg.epark: b.ext(refill(11))
    elif cfg.pre5: b.ext(refill(5))
    b("WAITVM ost")
    b("s_barrier")
    b("s_cmp_lg_u32 s3, 0")
    b("s_cbranch_scc1 L_nosig")
    b("s_mov_b64 exec, 1")
    if cfg.sig == "line": b("global_store_dword v16, v17, s[48:49] sc1 ;@skip")
    else: b("global_atomic_add v16, v17, s[46:47] sc1 ;@skip")
    b("s_mov_b64 exec, -1")
    b("L_nosig:")
    stamp(b, cfg, "signaled")
    b("s_lshr_b32 s52, s2, 3")
    b("s_cmp_ge_u32 s52, 30")
    b("s_cbranch_scc1 L_fin")
    if cfg.wsched >= 3:
        for t in range(10):
            if t not in issued: b.ext(with_nop(wdma(cfg, t))); issued.add(t)
        for t in parked:
            if t + 10 not in issued: b.ext(refill(t)); issued.add(t + 10)
        prev = None
        for t in range(12):
            if t in parked: continue
            b.ext(park(t))
            if prev is not None: b(f"WAITLG p{prev}"); b.ext(refill(prev))
            prev = t
        b("s_waitcnt lgkmcnt(0)")
        b.ext(refill(prev))
    elif cfg.epark:
        b.ext(refill(9) + refill(12))
    elif cfg.fsig:
        b.ext(refill(2) + ([] if cfg.fsig == 2 else park(6) + park(7)) + park(8) + park(9))
        b("WAITLG p7")
        b.ext(refill(6) + park(10) + park(11) + refill(7))
        b("s_waitcnt lgkmcnt(0)")
        for t in range(8, 12): b.ext(refill(t))
    elif cfg.sigfirst:
        b.ext(refill(2) + ([] if cfg.pre5 else refill(5)) + park(8) + park(9) + refill(6) + park(10) + park(11) + refill(7))
        b("s_waitcnt lgkmcnt(0)")
        for t in range(8, 12): b.ext(refill(t))
    else:
        b("s_waitcnt lgkmcnt(0)")
        b.ext(refill(2))
        for t in range(5, 12): b.ext(refill(t))
    b("s_lshl_b32 s52, s43, 2")
    b("s_add_u32 s52, s52, s3")
    if cfg.sig == "line":
        b("s_lshl_b32 s52, s52, 10")
        b(f"s_add_u32 s52, s52, {FOFF}")
        b("v_and_b32 v16, 7, v1")
        b("v_lshlrev_b32 v16, 7, v16")
        b("v_add_u32 v16, s52, v16")
        pbase = "s[48:49]"
    else:
        b("s_lshl_b32 s52, s52, 3")
        b("v_mov_b32 v16, s52")
        pbase = "s[46:47]"
    prev = 13 if cfg.epark else None
    for t in range(14 if cfg.epark else 12, cfg.R):
        if cfg.epoll and t == max(cfg.epoll, 14 if cfg.epark else 0): b(f"global_load_dword v17, v16, {pbase} sc1 ;@ep")
        b.ext(park(t))
        if prev is not None and prev + 10 < cfg.X:
            b("s_waitcnt lgkmcnt(8)")
            b.ext(refill(prev))
        prev = t
    b("s_waitcnt lgkmcnt(0)")
    if prev + 10 < cfg.X: b.ext(refill(prev))
    stamp(b, cfg, "parked")
    b("s_mov_b32 s34, 0x100000")
    want = 1 if cfg.sig == "line" else 8
    cmpi = "v_cmp_ne_u32 vcc, 1, v17" if cfg.sig == "line" else "v_cmp_gt_u32 vcc, 8, v17"
    if cfg.sig == "line":
        b("WAITVM arr")
        b("v_cmp_gt_u32 vcc, 8, v255")
        b("s_cbranch_vccz L_cleared")
        b("L_wclr:")
        b("global_load_dword v255, v0, s[46:47] sc1 ;@skip")
        b("s_waitcnt vmcnt(0)")
        b("v_cmp_gt_u32 vcc, 8, v255")
        b("s_sub_u32 s34, s34, 1")
        b("s_cselect_b64 vcc, 0, vcc")
        b("s_cbranch_vccnz L_wclr")
        b("s_branch L_poll")
        b("L_cleared:")
    if cfg.epoll:
        b("WAITVM ep")
        b(cmpi)
        b("s_cbranch_vccz L_ready")
    b("L_poll:")
    b(f"global_load_dword v17, v16, {pbase} sc1")
    b("s_waitcnt vmcnt(0)")
    b(cmpi)
    b("s_sub_u32 s34, s34, 1")
    b("s_cselect_b64 vcc, 0, vcc")
    b("s_cbranch_vccnz L_poll")
    b("L_ready:")
    stamp(b, cfg, "polled")
    worder = [x.split(";@")[1] for x in b.l if ";@w" in x and kind(x) == "vm"]
    check_setup(b.l, "tail")
    a.l += fix(resolve_waits(b.l))
    c = Asm(); c.stamps = a.stamps
    for t_ in worder: c(f"buffer_dummy ;@{t_}")
    ACC = lambda i, nt: 32 + 16 * i + 4 * nt
    OFB = [112, 132, 152, 172, 192]
    OF = lambda t, i: OFB[t % cfg.DO] + 4 * i
    def oload(t):
        return [x + f" ;@o{t}" for x in [f"s_add_u32 s30, s41, {t}", "s_lshl_b32 s30, s30, 10", "s_and_b32 s30, s30, 0x7fff"]] + \
            tag([f"buffer_load_dwordx4 {vr(OF(t,i),4)}, v{OAL[i]}, s[{SOR}:{SOR+3}], s30 offen {cfg.orflags}".rstrip() for i in range(5)], f"o{t}")
    for t in range(cfg.DO - 1): c.ext(oload(t))
    if not cfg.tlb:
        c("s_mul_i32 s52, s43, 240")
        c("s_mul_i32 s53, s54, 80")
        c("s_add_u32 s52, s52, s53")
        c("s_mul_i32 s52, s52, 1280")
        c("s_lshl_b32 s53, s55, 7")
        c("s_add_u32 s52, s52, s53")
        c.ext(srd(SOUT, 58, "s52", 79 * 1280 + 128))
    for j in range(1, 4):
        c(f"s_add_u32 s52, s3, {j}")
        c("s_and_b32 s52, s52, 3")
        c("s_mul_i32 s52, s52, 15360")
        c(f"v_add_u32 v{240+j}, s52, v15")
    c("s_mul_i32 s52, s3, 15360")
    c("v_add_u32 v240, s52, v15")
    c("v_mul_u32_u24 v244, 1280, v2")
    c("v_lshl_add_u32 v244, v3, 3, v244")
    nextw = cfg.X
    q = Seq()
    NL = cfg.NL
    for t in range(32 - NL):
        mf = []
        for i in range(5):
            for nt in range(4):
                d = vr(ACC(i, nt), 4)
                mf.append(f"{MF} {d}, {WS(t,nt)}, {vr(OF(t,i),4)}, {'0' if t == 0 else d}")
        q.raw([f"WAITVM o{t} lgkmcnt(0)"] + (stamp_l(c, cfg, f"p{t}") if t in (1, 4, 8, 16, 24) else []))
        g = q.add(mf)
        if t + cfg.DO - 1 < 32: q.place(oload(t + cfg.DO - 1), [g + 4, g + 6, g + 9, g + 12, g + 15])
        tr = t + cfg.R - 1
        if t >= 1 and tr < 32:
            q.g[g].insert(0, f"WAITVM w{tr}")
            for k, r in enumerate(wreads(tr)): q.put(g + 1 + k, r)
        if nextw < 32 and nextw - 10 <= t + cfg.R - 2 and (nextw - cfg.X) * cfg.wev <= t:
            q.place(wdma(cfg, nextw), [g + 10, g + 13, g + 16, g + 18])
            nextw += 1
        if t == 20: q.put(g + 19, "s_barrier")
    assert nextw == 32
    q.raw([f"WAITVM o{32-NL} lgkmcnt(0)"])
    wr = lambda i, j: f"ds_write_b128 v{240+j}, {vr(ACC(i,j),4)} offset:{5120*(j-1)+1024*i}"
    for i in range(5):
        mf = []
        for j in (1, 2, 3, 0):
            d = vr(ACC(i, j), 4)
            for t in range(32 - NL, 32):
                mf.append(f"{MF} {d}, {WS(t,j)}, {vr(OF(t,i),4)}, {d}")
        g = q.add(mf)
        if i == 0:
            for k in range(1, NL): q.g[g + k - 1].append(f"!WAITVM o{32-NL+k}")
        else:
            for j in range(1, 4): q.put(g + 2 + NL * (j - 1), wr(i - 1, j))
    RB = lambda i: 112 + 12 * i if i < 3 else 192 + 12 * (i - 3)
    rd = lambda i: [f"ds_read_b128 {vr(RB(i)+4*j,4)}, v240 offset:{5120*j+1024*i} ;@r{i}" for j in range(3)]
    def fin(i):
        bb = RB(i); ac = ACC(i, 0); o = [f"WAITLG r{i}"]
        for r in range(0, 4, 2):
            o += [f"v_pk_add_f32 {vr(ac+r,2)}, {vr(ac+r,2)}, {vr(bb+r,2)}", f"v_pk_add_f32 {vr(bb+4+r,2)}, {vr(bb+4+r,2)}, {vr(bb+8+r,2)}"]
        for r in range(0, 4, 2):
            o += [f"v_pk_add_f32 {vr(ac+r,2)}, {vr(ac+r,2)}, {vr(bb+4+r,2)}"]
        o += [f"v_cvt_pk_bf16_f32 v{ac}, v{ac}, v{ac+1}", f"v_cvt_pk_bf16_f32 v{ac+1}, v{ac+2}, v{ac+3}",
              f"buffer_store_dwordx2 {vr(ac,2)}, v244, s[{SOUT}:{SOUT+3}], s52 offen {cfg.outflags}".rstrip(), "s_add_u32 s52, s52, %d" % (16 * 1280)]
        return o
    if cfg.fin2:
        assert cfg.DO == 4 and NL == 2
        q.g[g + 1].insert(0, "s_barrier"); q.g[g + 1].insert(0, "s_waitcnt lgkmcnt(0)")
        for k, r in enumerate(rd(0) + rd(1) + rd(2)): q.put(g + 1 + min(k // 2 + (k > 3), 6), r)
        q.raw(stamp_l(c, cfg, "projdone") + ["s_lshl_b32 s52, s3, 5", wr(4, 1), wr(4, 2)])
        q.emit(c)
        c.ext(fin(0)[:5]); c(wr(4, 3)); c.ext(fin(0)[5:] + fin(1))
        c("s_waitcnt lgkmcnt(0)")
        c("s_barrier")
        c.ext(rd(3) + rd(4) + fin(2) + fin(3) + fin(4))
    else:
        q.raw(stamp_l(c, cfg, "projdone") + ["s_nop 1", wr(4, 1), wr(4, 2), "s_nop 1", wr(4, 3)])
        q.emit(c)
        c("s_waitcnt lgkmcnt(0)")
        c("s_barrier")
        for i in range(5): c.ext(rd(i))
        c("s_lshl_b32 s52, s3, 5")
        for i in range(5): c.ext(fin(i))
    check_setup(c.l, "proj")
    a.l += fix(resolve_waits(c.l))
    a("L_fin:")
    if cfg.stamps or cfg.calib:
        a("s_waitcnt vmcnt(0)")
        stamp(a, cfg, "end")
    if cfg.calib:
        a("s_waitcnt lgkmcnt(0)")
        a("s_or_b32 s52, s2, s3")
        a("s_cmp_lg_u32 s52, 0")
        a("s_cbranch_scc1 L_end")
        a(f"s_sub_u32 s52, s{62+4*cfg.cal_j}, s{62+4*cfg.cal_i}")
        a("s_lshl_b32 s52, s52, 2")
        a("s_add_u32 s52, s52, s62")
        a("L_spin:")
        a("s_memrealtime s[56:57]")
        a("s_waitcnt lgkmcnt(0)")
        a("s_sub_u32 s56, s56, s52")
        a(f"s_cmp_lt_i32 s56, {cfg.calib*100}")
        a("s_cbranch_scc1 L_spin")
    if cfg.stamps:
        stamps_out(a, cfg, 64 << 20)
    a("L_end:")
    a("s_endpgm")
    if cfg.w3:
        i0, i1 = a.l.index("L_sec0:"), a.l.index("L_sec1:")
        dead_v = set(("v", r) for r in list(range(128, 160)) + list(range(184, 192)) + list(range(204, 208)) + list(range(220, 224)))
        dead_a = set(("a", r) for r in range(48, 64))
        sec = []; skip = False
        for x in a.l[i0 + 1:i1]:
            if x == "s_and_b32 s52, s2, 31": skip = True
            if skip:
                if x == "L_noarr:": skip = False
                continue
            if x.endswith(":") or x.startswith(".") or x.startswith(";"):
                if x == "L_loop:":
                    z = [f"v_mov_b32 v{r}, 0" for _, r in sorted(dead_v)] + [f"v_accvgpr_write_b32 a{r}, 0" for r in list(range(48, 64)) + list(range(204, 208))]
                    k = sec.index(".p2align 6"); sec[k:k] = z
                    w3body0 = len(sec) + 1
                    x = "L_loop3:"
                sec.append(x); continue
            if x.startswith("s_nop"): continue
            ins = parse(x)
            if ins["k"] == "mfma" and (ins["D"] & dead_v or ins["Dtok"] == "a[204:207]"): continue
            if ins["k"] == "valu" and (ins["wr"] & (dead_v | dead_a) or ins["rd"] & set(("v", r) for r in range(128, 160))): continue
            if x == "s_cbranch_scc1 L_loop": x = "s_cbranch_scc1 L_loop3"
            sec.append(x)
        sec = fix(sec)
        l0 = sec.index("L_loop3:"); l1 = sec.index("s_cbranch_scc1 L_loop3")
        assert check(sec[l0:l1 + 1] * 2, "w3-loop") == 0 and check(sec + a.l[i1:i1 + 40], "w3-exit") == 0 and check(a.l[i0 - 30:i0] + sec, "w3-entry") == 0
        a("L_w3:")
        a.ext(sec)
        a("s_branch L_sec1")
    if cfg.epark:
        a("L_redo:")
        a("s_mov_b32 s35, 1")
        a("s_lshl_b32 s52, s3, 6")
        a("v_or_b32 v0, s52, v1")
        a("s_waitcnt vmcnt(0) lgkmcnt(0)")
        a("s_barrier")
        a("s_branch L_restart")
    a("L_exact:")
    ex0 = len(a.l)
    a("s_mov_b32 s35, 1")
    a(f"s_mov_b32 s{SK+2}, {KVBYTES}")
    a(f"s_mov_b32 s{SV+2}, {KVBYTES}")
    a("s_mov_b32 s33, s40" if not cfg.uni else "s_lshl_b32 s33, s3, 10")
    a("s_waitcnt vmcnt(0) lgkmcnt(0)")
    a("L_exact_loop:")
    a("s_barrier")
    if cfg.uni:
        for n_ in range(4): a.ext(["s_and_b32 m0, s33, 0x3fff", "s_nop 0", dma(KDA, SK, "s33", 0, cfg.kvflags), "s_add_u32 s33, s33, 4096"])
    else:
        a.ext(with_nop(kdma(cfg, 0)))
        a(ADV)
    a("s_waitcnt vmcnt(0)")
    a("s_barrier")
    for th in range(2):
        for kt in range(2):
            for ks in range(4): a(kread(0, 0, th, kt, ks))
        a("s_waitcnt lgkmcnt(0)")
        for u in range(4): a.ext(qk(u, 0, True))
        a("s_nop 7")
        for u in range(4):
            s0 = S_(u, 0)
            for r in range(0, 8, 2):
                a(f"v_max3_f32 v{MTR+u}, v{MTR+u}, v{s0+r}, v{s0+r+1}")
    a(f"s_cmp_lt_u32 s33, {KVBYTES}")
    a("s_cbranch_scc1 L_exact_loop")
    a("s_barrier")
    a("s_mov_b32 s33, s40" if not cfg.uni else "s_lshl_b32 s33, s3, 10")
    a.ext([x.split(" ;@")[0] for x in with_nop(sum([piece(cfg, gp, False) if not cfg.uni else upiece(cfg, gp) for gp in range(NP)], []))])
    a("s_waitcnt vmcnt(0)")
    a("s_barrier")
    a.ext(k0r + v0r)
    a("s_waitcnt lgkmcnt(0)")
    a.ext(k1r)
    for u in range(4): a.ext(qk(u, 0, True))
    a.ext(ones)
    a("s_nop 7")
    a.ext(fix(merge(*[fmax(u) for u in range(4)]) + merge(*[fexp(u, 8 if u < 3 else 4) for u in range(4)])))
    a("s_nop 1")
    a.ext(pv(0, 0, True) + pv(1, 0, True))
    a("s_waitcnt lgkmcnt(0)")
    q = Seq(); st1 = attn_tile(cfg, q, 1, "first")
    if cfg.uni:
        q.place(upiece(cfg, NP), [st1[4] + 1]); q.place(upiece(cfg, NP + 1), [st1[6] + 1])
    x1 = Asm()
    for t_ in ["seg1"]: x1("buffer_dummy ;@seg1")
    q.emit(x1)
    a.l += resolve_waits(x1.l)
    a("s_mov_b32 s34, 3")
    a("s_branch L_loop")
    bad = check(a.l[:ex0], "main") + check(body + body, "attn-loop") + check(a.l[ex0:] + body, "exact")
    assert bad == 0
    return a

HEADER = """; Kernarg layout for this problem (64 bytes, ptrs only, base s[0:1]):
;   offset  56: d_ws      [0, 15.7 MB) attention output O as MFMA fragments, [24 MB, +32 KB) hand-off words
;
;     p = exp2(.), o^T += V^T p^T, row sums by an MFMA with a ones operand.  m is the row maximum of the first key tile; if any
;     wave w contracts over heads 8w..8w+7 once their words are set, partial sums meet in LDS.
; @launch grid=(256,1,1) block=(256,1,1) lds=163840"""

def build(cfg):
    k = NAME + "_kernel"
    out = []
    out.append(HEADER)
    out.append('.amdgcn_target "amdgcn-amd-amdhsa--gfx950"')
    out.append(".text")
    out.append(f".globl {k}\n.p2align 8\n.type {k},@function\n{k}:")
    out.append(gen(cfg).text())
    out.append('.section .rodata,"a"')
    out.append(f""".p2align 6
.amdhsa_kernel {k}
  .amdhsa_next_free_vgpr 512
  .amdhsa_next_free_sgpr 102
  .amdhsa_accum_offset 256
  .amdhsa_group_segment_fixed_size 0
  .amdhsa_kernarg_size 64
  .amdhsa_user_sgpr_count 2
  .amdhsa_user_sgpr_kernarg_segment_ptr 1
  .amdhsa_system_sgpr_workgroup_id_x 1
.end_amdhsa_kernel
""")
    return "\n".join(out)

if __name__ == "__main__":
    cfg = Cfg()
    path = sys.argv[1]
    for kv in sys.argv[2:]:
        k, v = kv.split("=", 1)
        old = getattr(cfg, k)
        setattr(cfg, k, type(old)(eval(v)) if isinstance(old, (bool, int, float, tuple)) else v)
    txt = build(cfg)
    open(path, "w").write(txt)
```

```python
import sys, math, struct
from asmlib import *

NAME = "standalone__mha_block_cached__near_ridge"
def f32(x): return struct.unpack("<I", struct.pack("<f", x))[0]
MF = "v_mfma_f32_16x16x32_bf16"

class Cfg:
    kvflags = "nt"
    oflags = "sc1"
    orflags = "sc1"
    xflags = ""
    bflags = ""
    stamps = False
    only = ""
    qspread = 4
    kvpace = 13.5
    lthr = 2.0 ** 40
    force_fb = False
    rot = 5
    rA = 0
    DO = 5
    NL = 3
    R = 16
    epark = 0
    addu = ()
    tlb = 0
    fast0 = 1
    c1first = 0
    pre5 = 1
    early = 1
    cwarm = 1
    wl2 = 0
    wl2f = ""
    lag = 4
    split0 = 0
    wsched = 2
    b1 = 24
    bsp = 50
    split15 = 1
    sigfirst = 1
    outflags = ""
    wpull = 0
    epoll = 12
    touch = ()
    tpos = 52
    tl = 16
    tflags = ""
    tkv = "v"
    dmode = "even"
    xs = (0, 0, 0, 0, 0)
    k0at = 5
    X = 26
    wev = 1.0
    ncap = 3
    sig = "line"
    pkmul = True
    qord = 0
    exp = ""
    calib = 0
    cal_i = 0
    cal_j = 0

O_ = lambda u, dt: 32 + 32 * u + 4 * dt
S_ = lambda u, kt: 160 + 8 * u + 4 * kt
P_ = lambda u: 192 + 4 * u
NM = lambda u: 208 + 4 * u
KRA, VRA, KDA, VDA, MTR = 224, 228, 236, 240, 242
WD = 246
XDA, WDA, XRA, WRA = 192, 200, 204, 210
Q_ = lambda u, m: 16 * u + 4 * m
KF = lambda b, kt, ks: 64 + 32 * b + 16 * kt + 4 * ks
VF = lambda b, dt: 128 + 32 * b + 4 * dt
L_ = lambda u: 192 + 4 * u
ONES = 208
WF = lambda b, s, dt: ar([160, 0, 96][b] + 32 * s + 4 * dt, 4)
WF2 = lambda b, s, dt, e: ar([160, 0, 96][b] + 32 * s + 4 * dt + 2 * e, 2)
XF = lambda b, s, u: vr([224, 64, 160][b] + 16 * s + 4 * u, 4, "aav"[b])
SX, SW, SK, SV, SO = 8, 12, 16, 20, 24
SWO, SOR, SOUT = 8, 12, 4
KVBYTES = 262144
XBASE = [(131072, 147456), (65536, 16384), (32768, 49152)]
WWIN = 81920
WOFF = [32768, 0, 16384]
UNIT = [0, 4, 8, 9, 1, 5, 2, 6, 3, 7]
UNIT2 = [0, 4, 9, 5, 6, 8, 1, 2, 3, 7]
WRL = [[28, 29, 30, 31], [250, 251, 252, 253], [7, 8, 9, 10]]
OAL = [4, 5, 13, 14, 254]
WBLK = [224, 240, 64, 80, 96, 112, 128, 144, 160, 176, 208, 192, 0, 16, 32, 48]
WBLK2 = [224, 240, 0, 16, 48, 32, 64, 80, 96, 112, 128, 144, 160, 176, 208, 192]
def WS(t, nt, e=None):
    b = WBLK[t % len(WBLK)]
    f = "a" if b >= 0 else "v"
    return vr(abs(b) + 4 * nt, 4, f) if e is None else vr(abs(b) + 4 * nt + 2 * e, 2, f)
def wreads(t):
    u_ = UNIT[t % 10]
    return [f"ds_read_b64_tr_b16 {WS(t,nt,e)}, v{WRL[u_>>2][nt]} offset:{16384*(u_&3)+2048*e} ;@p{t}" for nt in range(4) for e in range(2)]
FOFF = 24 << 20
WOSZ = 1024 * 1280 - 9 * 128
ORSZ = 4 * 131072 + 32768

class Seq:
    def __init__(self): self.m = []; self.g = []
    def add(self, mfmas):
        n = len(self.m); self.m += mfmas; self.g += [[] for _ in mfmas]; return n
    def raw(self, lines):
        self.m.append(None); self.g.append(["!" + x for x in lines]); return len(self.m) - 1
    def put(self, i, x): self.g[i].append(x)
    def slots(self, i):
        n = 0
        for x in self.g[i]:
            k = kind(x.lstrip("!"))
            if k in ("ds", "vm", "valu"): n += 2 if x.lstrip("!").startswith(TRANS) else 1
        return n
    def place(self, lst, vmpos):
        vmpos = list(vmpos); pend = []; last = None
        for x in lst:
            if kind(x) == "vm":
                p = vmpos.pop(0)
                assert not pend or last is None or p - len(pend) > last, (lst, p, last)
                for k, s in enumerate(reversed(pend)): self.g[p - 1 - k].insert(0, s)
                pend = []; self.g[p].append(x); last = p
            else: pend.append(x)
        for k, s in enumerate(pend): self.g[last + 1 + k].insert(0, s)
    def stream(self, lst, start, cap=2, end=None):
        i = start
        for x in lst:
            c = 2 if x.startswith(TRANS) else (0 if kind(x) == "s" else 1)
            while self.slots(i) + c > cap and (end is None or i < end) and i + 1 < len(self.m): i += 1
            self.g[i].append("!" + x)
        return i
    def emit(self, a): emit_gaps(a, self.m, self.g)

def stamp_l(a, cfg, name):
    if (cfg.stamps or cfg.calib) and (cfg.only == "" or name in cfg.only.split(",") or name in ("start", "end")):
        i = len(a.stamps); a.stamps.append(name)
        assert i < 10
        return [f"s_memtime s[{60+4*i}:{61+4*i}]", f"s_memrealtime s[{62+4*i}:{63+4*i}]"]
    return []
def stamp(a, cfg, name): a.ext(stamp_l(a, cfg, name))

def stamps_out(a, cfg, wsoff):
    n = len(a.stamps)
    a.l.insert(0, "; stamps " + str(wsoff >> 20) + " " + " ".join(a.stamps))
    a("s_waitcnt lgkmcnt(0)")
    a(f"s_add_u32 s48, s48, {wsoff}")
    a("s_addc_u32 s49, s49, 0")
    a("s_mov_b32 s50, 0x100000")
    a("s_mov_b32 s51, 0x20000")
    a("s_lshl_b32 s52, s2, 2")
    a("s_add_u32 s52, s52, s3")
    a("s_lshl_b32 s52, s52, 7")
    a("v_mov_b32 v6, s52")
    a("v_cmp_eq_u32 vcc, 0, v1")
    a("s_and_saveexec_b64 s[54:55], vcc")
    for i in range(n):
        a(f"v_mov_b32 v4, s{60+4*i}")
        a(f"v_mov_b32 v5, s{62+4*i}")
        a(f"buffer_store_dwordx2 v[4:5], v6, s[48:51], 0 offen offset:{8*i}")
        a("s_nop 1")
    a("s_getreg_b32 s53, hwreg(HW_REG_XCC_ID)")
    a("v_mov_b32 v4, s53")
    a("buffer_store_dword v4, v6, s[48:51], 0 offen offset:120")
    a("v_mov_b32 v4, 0x5157")
    a(f"v_mov_b32 v5, {n}")
    a("buffer_store_dwordx2 v[4:5], v6, s[48:51], 0 offen offset:112")
    a("s_mov_b64 exec, s[54:55]")

def srd(s, plo, off_s, size):
    return [f"s_add_u32 s{s}, s{plo}, {off_s}", f"s_addc_u32 s{s+1}, s{plo+1}, 0", f"s_mov_b32 s{s+2}, {size}", f"s_mov_b32 s{s+3}, 0x20000"]
def dma(vaddr, sdesc, soff, imm, flags=""):
    o = f" offset:{imm}" if imm else ""
    f = f" {flags}" if flags else ""
    return f"buffer_load_dwordx4 v{vaddr}, s[{sdesc}:{sdesc+3}], {soff} offen{o}{f} lds"
def tag(lst, t):
    return [x + f" ;@{t}" if kind(x) == "vm" else x for x in lst]
def check_setup(lines, name):
    last = {}
    for x in lines:
        if ";@" not in x:
            if kind(x) == "s" and not x.endswith(":") and len(x.split()) > 1 and x.split()[1].rstrip(",") in ("m0", "s42", "s30"): last[x.split()[1].rstrip(",")] = None
            continue
        t = x.split(";@")[1]
        if kind(x) == "s": last[x.split()[1].rstrip(",")] = t
        elif t[0] == "w" and t[1:].isdigit() and not x.startswith("buffer_dummy"):
            assert last.get("m0") == t and last.get("s42") == t, (name, x, last)
        elif t[0] == "o" and t[1:].isdigit() and not x.startswith("buffer_dummy"):
            assert last.get("s30") == t, (name, x, last)
def with_nop(lst):
    o = []
    for x in lst:
        o.append(x)
        if " m0," in x: o.append("s_nop 0")
    return o

def resolve_waits(lines):
    out = []; seq = []; lseq = []
    for x in lines:
        if x.startswith("WAITLG"):
            t = x.split()[1]
            idx = max(i for i, v in enumerate(lseq) if v == t)
            out.append(f"s_waitcnt lgkmcnt({min(len(lseq) - 1 - idx, 15)})")
            continue
        if x.startswith("ds_"): lseq.append(x.split(";@")[1] if ";@" in x else "")
        if x.startswith("WAITVM"):
            p = x.split(None, 2)
            idx = max(i for i, t in enumerate(seq) if t == p[1])
            n = min(len(seq) - 1 - idx, 63)
            out.append(f"s_waitcnt vmcnt({n})" + (" " + p[2] if len(p) > 2 else ""))
            continue
        if not (x.endswith(":") or x.startswith(".") or x.startswith(";")) and kind(x) == "vm" and not x.endswith(";@skip"):
            seq.append(x.split(";@")[1] if ";@" in x else "")
        if not x.startswith("buffer_dummy"): out.append(x.split(" ;@")[0])
    return out

def kdma(cfg, slot, so="s33"):
    return [f"s_add_u32 m0, s40, {16384*slot}"] + [dma(KDA + pp, SK, so, 1024 * pp, cfg.kvflags) for pp in range(4)]
def vdma(cfg, slot, so="s33"):
    return [f"s_add_u32 m0, s40, {65536+16384*slot}"] + [dma(VDA + (pp & 1), SV, so, 1024 * pp, cfg.kvflags) for pp in range(4)]
ADV = "s_add_u32 s33, s33, 16384"
def piece(cfg, gp, setm0, guard=False):
    sg, kv, pp = gp // 8, (gp % 8) // 4, gp % 4
    grp = (vdma if kv else kdma)(cfg, sg & 3)
    o = ([grp[0]] if pp == 0 or setm0 else []) + tag([grp[1 + pp]], f"seg{sg}" + ("k" if kv == 0 else ""))
    if gp % 8 == 7:
        o += [ADV]
        if guard: o += [f"s_cmp_lt_u32 s33, {KVBYTES}", f"s_cselect_b32 s{SK+2}, {KVBYTES}, 0"]
    return o
def wdma(cfg, t):
    return [x + f" ;@w{t}" for x in [f"s_add_u32 s42, s41, {t}", "s_bfe_u32 s42, s42, 0x50000", "s_xor_b32 s42, s42, s37", "s_mul_i32 s42, s42, 40960", f"s_add_u32 m0, s40, {16384*UNIT[t%10]}"]] + \
        tag([dma(WD + pp, SWO, "s42", 1024 * pp, cfg.bflags) for pp in range(4)], f"w{t}")
def kread(buf, slot, th, kt, ks):
    return f"ds_read_b128 {ar(KF(buf,kt,ks),4)}, v{KRA+ks} offset:{16384*slot+8192*th+4096*kt}"
def vread(buf, slot, th, dt, e):
    return f"ds_read_b64_tr_b16 {ar(VF(buf,dt)+2*e,2)}, v{VRA+dt} offset:{16384*slot+8192*th+4096*e}"

def qk(u, kb, czero=False, sl=None):
    m = []
    for kt in range(2):
        d = vr(S_(u if sl is None else sl, kt), 4)
        for ks in range(4):
            c = ("0" if czero else vr(NM(u), 4)) if ks == 0 else d
            m.append(f"{MF} {d}, {ar(KF(kb,kt,ks),4)}, {ar(Q_(u,ks),4)}, {c}")
    return m
LA = {0: 18, 1: 19}
def pv(u, vb, czero=False, sl=None, lsum=True):
    m = []
    p = vr(P_(u if sl is None else sl), 4)
    for dt in range(8):
        d = vr(O_(u, dt), 4)
        m.append(f"{MF} {d}, {ar(VF(vb,dt),4)}, {p}, {'0' if czero else d}")
    d = ar(L_(u), 4)
    if lsum: m.append(f"{MF} {d}, {ar(ONES,4)}, {p}, {'0' if czero else d}")
    return m
def sm_half(q, g0, u, kt, add=False):
    s = S_(u, kt)
    for r in range(4):
        if add: q.put(g0 + 2 * r + 1, f"v_add_f32 v{LA[u]}, v{LA[u]}, v{s+r}")
        q.put(g0 + 2 * r, f"v_exp_f32 v{s+r}, v{s+r}")
        if r & 1: q.put(g0 + 2 * r + 1, f"v_cvt_pk_bf16_f32 v{P_(u)+2*kt+r//2}, v{s+r-1}, v{s+r}")

def attn_tile(cfg, q, j, mode="loop"):
    kb = vb = j & 1
    slot, th = (j >> 1) & 3, j & 1
    nslot, nth = ((j + 1) >> 1) & 3, (j + 1) & 1
    z = mode == "first"
    addu = cfg.addu if mode == "loop" else ()
    groups = [qk(0, kb), pv(2, vb ^ 1, z), qk(1, kb), pv(3, vb ^ 1, z), qk(2, kb), pv(0, vb, lsum=0 not in addu), qk(3, kb), pv(1, vb, lsum=1 not in addu)]
    st = [q.add(g) for g in groups]; st.append(len(q.m))
    sm_half(q, st[0], 3, 1)
    for u in range(3):
        sm_half(q, st[2 * u + 1], u, 0, u in addu)
        sm_half(q, st[2 * u + 2], u, 1, u in addu)
    sm_half(q, st[7], 3, 0)
    vr_ = [vread(vb, slot, th, dt, e) for dt in range(8) for e in range(2)]
    NV = 6 if 0 in cfg.addu else 0
    if 0 in addu: pos = [st[0] + k for k in (1, 3, 5, 5, 7)] + [st[1] + k for k in (1, 5, 8, 8)] + [st[2] + 5]
    else: pos = [st[0] + k for k in (1, 3, 5, 5, 7)] + [st[1] + k for k in (1, 1, 3, 5, 5, 7, 8)] + [st[2] + k for k in (1, 3, 5, 5)]
    for p, r in zip(pos, vr_[16 - len(pos):]): q.put(p, r)
    mid = st[4] - 1
    if j & 1:
        if mode == "loop": q.put(mid, f"s_waitcnt vmcnt({16-cfg.lag}) lgkmcnt(0)")
        else: q.put(mid, f"WAITVM seg{(j+1)//2}{'k' if j == 29 and cfg.split15 else ''} lgkmcnt(0)")
        q.put(mid, "s_barrier")
    else:
        q.put(mid, "s_waitcnt lgkmcnt(0)")
    kr_ = [kread(kb ^ 1, nslot, nth, kt, ks) for kt in range(2) for ks in range(4)]
    if 1 in addu: pos = [st[4] + 5] + [st[5] + k for k in (1, 1, 3, 5, 5, 7)] + [st[6] + 1]
    else: pos = [st[4] + k for k in (1, 3, 5, 7)] + [st[5] + k for k in (1, 3, 5, 7)]
    for p, r in zip(pos, kr_): q.put(p, r)
    if NV and mode != "final":
        nvr = [vread(vb ^ 1, nslot, nth, dt, e) for dt in range(8) for e in range(2)][:NV]
        for p, r in zip([st[6] + 3, st[6] + 5, st[6] + 5, st[6] + 7, st[7] + 1, st[7] + 1], nvr): q.put(p, r)
        q.put(st[8] - 2, f"s_waitcnt lgkmcnt({NV})")
    else:
        q.put(st[8] - 2 if j != 29 else st[7], "s_waitcnt lgkmcnt(0)")
    dpos = [st[0] + 1, st[2] + 1, st[4] + 1, st[6] + 1]
    for k in range(4):
        gp = 4 * j + 26 + k - cfg.lag
        if mode == "first" and k < 2: continue
        if mode == "final":
            if gp < 128: q.place(piece(cfg, gp, True), [[st[0] + 1, st[0] + 5, st[1] + 1, st[1] + 3][k] if cfg.wsched != 1 else dpos[k]])
            continue
        q.place(piece(cfg, gp, False, cfg.lag < 2), [dpos[k]])
    return st

def rowmax_l(t, t2):
    return [f"v_mov_b32 v{t2}, v{t}", "s_nop 1", f"v_permlane32_swap_b32 v{t}, v{t2}", f"v_max_f32 v{t}, v{t}, v{t2}",
            f"v_mov_b32 v{t2}, v{t}", "s_nop 1", f"v_permlane16_swap_b32 v{t}, v{t2}", f"v_max_f32 v{t}, v{t}, v{t2}"]

def scale_pack(cfg, b0, t, mul, pk):
    o = []
    if pk: o += [f"v_pk_mul_f32 {vr(b0+2*i,2)}, {vr(b0+2*i,2)}, {mul[1]}" for i in range(4)]
    else: o += [f"v_mul_f32 v{b0+i}, {mul[0]}, v{b0+i}" for i in range(8)]
    o += [f"v_cvt_pk_bf16_f32 v{t+i}, v{b0+2*i}, v{b0+2*i+1}" for i in range(4)]
    return o

def gen(cfg):
    if cfg.wsched == 2: UNIT[:] = UNIT2
    if cfg.epark: WBLK[:] = WBLK2
    WBLK.extend([-224, -208, -192, -176][:cfg.R - 16])
    assert 112 + 20 * cfg.DO <= 240 - 16 * (cfg.R - 16)
    a = Asm()
    a("s_cmp_ge_u32 s2, 256")
    a("s_cbranch_scc1 L_end")
    a("s_mov_b32 s35, 0")
    a("L_restart:")
    stamp(a, cfg, "start")
    a("s_load_dwordx4 s[4:7], s[0:1], 0")
    a("s_load_dwordx4 s[44:47], s[0:1], 16")
    a("v_lshrrev_b32 v2, 6, v0")
    a("v_and_b32 v1, 63, v0")
    a("v_readfirstlane_b32 s3, v2")
    a("s_and_b32 s50, s2, 7")
    a("s_lshr_b32 s51, s2, 3")
    a("s_and_b32 s52, s51, 3")
    a("s_lshr_b32 s53, s51, 2")
    a("s_bfe_u32 s28, s2, 0x10000")
    a("s_lshl2_add_u32 s28, s28, s52")
    a("s_lshr_b32 s54, s50, 1")
    a("s_lshl3_add_u32 s29, s54, s53")
    a("s_add_u32 s52, s52, s53")
    a("s_and_b32 s52, s52, 1")
    a("s_mul_i32 s32, s52, 5")
    a("s_add_u32 s54, s54, s50")
    a("s_and_b32 s54, s54, 1")
    a("s_lshl1_add_u32 s32, s54, s32")
    a("s_lshl_b32 s30, s32, 7")
    a("s_lshl_b32 s31, s32, 19")
    a("s_lshl_b32 s40, s3, 12")
    a("s_lshl1_add_u32 s36, s40, %d" % XBASE[0][0])
    a("s_add_u32 s39, s40, %d" % WWIN)
    a("v_lshrrev_b32 v3, 4, v1")
    a("v_lshrrev_b32 v4, 3, v1")
    a("v_and_b32 v5, 7, v1")
    a("v_and_b32 v2, 15, v1")
    a("s_mul_i32 s52, s3, %d" % (64 * 1280))
    a("v_mul_u32_u24 v8, 1280, v4")
    a("v_xor_b32 v9, v3, v5")
    a("v_lshlrev_b32 v9, 4, v9")
    a(f"v_add3_u32 v{XDA}, v9, s52, v8")
    a(f"v_xor_b32 v17, 64, v{XDA}")
    for pp in range(1, 8):
        a(f"v_add_u32 v{XDA+pp}, {10240*pp-1024*(pp&3)}, v{17 if pp & 1 else XDA}")
    a("s_lshl_b32 s52, s3, 17")
    a("v_lshlrev_b32 v8, 13, v3")
    a("v_and_b32 v9, 1, v3")
    a("v_lshrrev_b32 v10, 1, v3")
    a("v_lshl_or_b32 v9, v10, 2, v9")
    a("v_xor_b32 v9, v9, v2")
    a("v_lshlrev_b32 v9, 4, v9")
    a(f"v_add3_u32 v{WDA}, v9, s52, v8")
    a(f"v_xor_b32 v17, 128, v{WDA}")
    for pp in range(1, 4):
        a(f"v_add_u32 v{WDA+pp}, {32768*pp-1024*pp}, v{17 if pp >> 1 else WDA}")
    a("s_mul_i32 s52, s28, 307200")
    a("s_lshl_b32 s53, s29, 8")
    a.ext(srd(SX, 4, "s52", 307200)[2:] + srd(SW, 46, "s53", 640 * 8192 - 31 * 256)[2:])
    a("s_waitcnt lgkmcnt(0)")
    stamp(a, cfg, "kernarg")
    a.ext(srd(SX, 4, "s52", 307200)[:2] + srd(SW, 46, "s53", 0)[:2])

    def qstage(c):
        bf = c % 3
        o = [f"s_mov_b32 m0, s{36+bf}"]
        o += [dma(XDA + pp, SX, "s30", 1024 * pp, cfg.xflags) for pp in range(4)]
        o += [f"s_add_u32 m0, s{36+bf}, 4096"]
        o += [dma(XDA + 4 + pp, SX, "s30", 1024 * pp, cfg.xflags) for pp in range(4)]
        o += [f"s_add_u32 m0, s39, {WOFF[bf]}"]
        o += [dma(WDA + pp, SW, "s31", 1024 * pp, cfg.xflags) for pp in range(4)]
        o += ["s_add_u32 s32, s32, 1", "s_cmp_eq_u32 s32, 10", "s_cselect_b32 s32, 0, s32", "s_lshl_b32 s30, s32, 7", "s_lshl_b32 s31, s32, 19"]
        return tag(o, f"c{c}")
    a.ext(with_nop(qstage(0)))
    a("s_load_dwordx2 s[48:49], s[0:1], 56")
    if cfg.cwarm:
        a("s_getpc_b64 s[54:55]")
        a("L_cbase:")
        a("s_lshl2_add_u32 s52, s51, s3")
        a("s_mul_i32 s52, s52, 3")
        a("v_min_u32 v18, 2, v1")
        a("v_add_u32 v18, s52, v18")
        a("v_lshlrev_b32 v18, 7, v18")
        a("v_min_u32 v18, L_exact-L_cbase, v18")
        a("v_mov_b32 v19, s55")
        a("v_add_co_u32 v18, vcc, s54, v18")
        a("v_addc_co_u32 v19, vcc, 0, v19, vcc")
        a("global_load_dword v20, v[18:19], off")
    a("s_mov_b32 s33, s40")
    a("s_and_b32 s52, s3, 1")
    a("s_lshl_b32 s52, s52, 13")
    a("s_cmp_ge_u32 s3, 2")
    for bf in range(1, 3):
        a(f"s_mov_b32 s53, {XBASE[bf][0]}")
        a(f"s_cselect_b32 s{36+bf}, {XBASE[bf][1]}, s53")
    for bf in range(1, 3):
        a(f"s_add_u32 s{36+bf}, s{36+bf}, s52")
    a("v_bfe_u32 v6, v1, 2, 2")
    a("v_and_b32 v7, 3, v1")
    if cfg.c1first: a.ext(with_nop(qstage(1)))
    a("s_waitcnt lgkmcnt(0)")
    if cfg.sig == "line":
        a("s_lshl_b32 s52, s28, 5")
        a("s_add_u32 s52, s52, s29")
        a("s_lshl_b32 s52, s52, 7")
        a(f"s_add_u32 s52, s52, {FOFF}")
        a("v_mov_b32 v18, s52")
        a("v_mov_b32 v19, 0")
        a("s_mov_b64 exec, 1")
        a("global_store_dword v18, v19, s[48:49] sc1")
        a("s_mov_b64 exec, -1")
        a("v_and_b32 v0, 31, v1")
        a("v_lshlrev_b32 v0, 3, v0")
    a("s_load_dwordx4 s[56:59], s[0:1], 32")
    a("s_lshl_b32 s52, s28, 5")
    a("s_add_u32 s52, s52, s29")
    a("s_lshl_b32 s52, s52, 18")
    a.ext(srd(SK, 6, "s52", KVBYTES))
    a.ext(srd(SV, 44, "s52", KVBYTES))
    a("s_mul_i32 s52, s28, %d" % (15 * 131072))
    a.ext(srd(SO, 48, "s52", 15 * 131072))
    a("s_load_dwordx2 s[46:47], s[0:1], 48")
    a("v_lshlrev_b32 v10, 8, v3")
    for pp in range(4):
        a(f"v_add_u32 v9, {4*pp}, v3")
        a("v_xor_b32 v9, v9, v2")
        a(f"v_lshl_add_u32 v{KDA+pp}, v9, 4, v10")
    for pp in range(2):
        a(f"v_add_u32 v9, {4*pp}, v3")
        a("v_lshlrev_b32 v9, 1, v9")
        a("v_xor_b32 v9, v9, v2")
        a(f"v_lshl_add_u32 v{VDA+pp}, v9, 4, v10")
    a("v_lshrrev_b32 v9, 1, v2")
    for s in range(2):
        a(f"v_or_b32 v8, {4*s}, v3")
        a("v_xor_b32 v8, v8, v9")
        a("v_lshlrev_b32 v8, 4, v8")
        a("v_lshl_add_u32 v8, v2, 7, v8")
        for bf in range(3):
            a(f"v_add_u32 v{XRA+2*bf+s}, s{36+bf}, v8")
    a("v_lshrrev_b32 v11, 1, v7")
    a("v_and_b32 v12, 1, v7")
    a("v_lshlrev_b32 v12, 3, v12")
    a("v_and_b32 v9, 1, v6")
    a("v_lshrrev_b32 v10, 1, v6")
    a("v_lshl_or_b32 v9, v10, 2, v9")
    a("v_and_b32 v10, 1, v3")
    a("v_lshl_or_b32 v9, v10, 3, v9")
    a("v_lshl_or_b32 v9, v11, 1, v9")
    a("v_lshl_add_u32 v13, v3, 3, v6")
    a("v_lshl_add_u32 v13, v13, 8, v12")
    a(f"v_add_u32 v13, {WWIN}, v13")
    for dt in range(8):
        a(f"v_xor_b32 v8, {4*(dt>>1)+(dt&1)}, v9")
        a(f"v_lshl_add_u32 v{WRA+dt}, v8, 4, v13")
    a("v_lshl_or_b32 v9, v10, 2, v6")
    a("v_lshl_or_b32 v9, v9, 1, v11")
    a("v_lshl_add_u32 v14, v3, 2, v6")
    a("v_lshl_add_u32 v14, v14, 8, v12")
    a("v_add_u32 v14, 65536, v14")
    for dt in range(8):
        a(f"v_xor_b32 v8, {2*dt}, v9")
        a(f"v_lshl_add_u32 v{VRA+dt}, v8, 4, v14")
    for ks in range(4):
        a(f"v_or_b32 v8, {4*ks}, v3")
        a("v_xor_b32 v8, v8, v2")
        a("v_lshlrev_b32 v8, 4, v8")
        a(f"v_lshl_add_u32 v{KRA+ks}, v2, 8, v8")
    for i in range(4):
        a(f"v_mov_b32 v{MTR+i}, 0xff800000")
    a("v_lshlrev_b32 v15, 4, v1")
    a(f"v_and_b32 v8, {cfg.tl-1}, v1")
    a(f"v_lshrrev_b32 v9, {int(math.log2(cfg.tl))}, v1")
    a("v_lshlrev_b32 v9, 14, v9")
    a("v_lshl_add_u32 v219, v8, 7, v9")
    a("v_lshlrev_b32 v9, 1, v3")
    a("v_xor_b32 v9, v9, v5")
    a("v_lshlrev_b32 v9, 4, v9")
    a("v_mul_u32_u24 v8, 1280, v4")
    a("v_add_u32 v8, v8, v9")
    for pp in range(4):
        a(f"v_add_u32 v{WD+pp}, {pp*9216}, v8")
    a("v_lshl_add_u32 v14, v3, 2, v6")
    a("v_bfe_u32 v13, v14, 1, 2")
    a("v_lshl_or_b32 v13, v13, 1, v11")
    a("v_lshl_add_u32 v14, v14, 7, v12")
    a("v_add_u32 v14, s40, v14")
    for nt in range(4):
        a(f"s_add_u32 s53, s3, {nt}")
        a("s_and_b32 s53, s53, 3")
        a("s_lshl_b32 s53, s53, 1")
        a("v_xor_b32 v16, s53, v13")
        a(f"v_lshl_add_u32 v{WRL[0][nt]}, v16, 4, v14")
        a(f"v_add_u32 v{WRL[1][nt]}, 65536, v{WRL[0][nt]}")
        a(f"v_add_u32 v{WRL[2][nt]}, 131072, v{WRL[0][nt]}")
    for i in range(5): a(f"v_add_u32 v{OAL[i]}, {131072*i}, v15")
    a("s_min_u32 s51, s51, 29")
    a("s_cmp_ge_u32 s51, 15")
    a("s_cselect_b32 s52, 1, 0")
    a("s_cselect_b32 s53, 15, 0")
    a("s_sub_u32 s53, s51, s53")
    a("s_and_b32 s43, s50, 6")
    a("s_add_u32 s43, s43, s52")
    a("s_mul_i32 s54, s53, 52")
    a("s_lshr_b32 s54, s54, 8")
    a("s_mul_i32 s41, s54, 5")
    a("s_sub_u32 s53, s53, s41")
    a("s_lshl_b32 s34, s53, 2")
    a("s_and_b32 s55, s50, 1")
    a("s_mul_i32 s55, s55, 5")
    a("s_add_u32 s55, s55, s53")
    a("s_mul_i32 s52, s52, 15")
    a("s_add_u32 s41, s41, s52")
    if cfg.rA:
        a(f"s_mul_i32 s53, s53, {cfg.rA}")
        a("s_add_u32 s41, s41, s53")
    a("s_and_b32 s41, s41, 31")
    sc = f32(math.log2(math.e) / math.sqrt(128.0))
    if cfg.wpull:
        a("s_mul_i32 s52, s2, 160")
        a(f"s_mul_i32 s53, s3, {14 if cfg.wpull == 1 else 40}")
        a("s_add_u32 s52, s52, s53")
        a("v_add_u32 v218, s52, v1")
        a("v_lshlrev_b32 v218, 7, v218")
        a("v_mov_b32 v16, 0x7fffff80")
        a(f"v_cmp_gt_u32 vcc, {14 if cfg.wpull == 1 else 40}, v1")
        a("v_cndmask_b32 v255, v16, v218, vcc")
    if cfg.wl2:
        a("s_lshr_b32 s52, s2, 3")
        a("s_lshl_b32 s52, s52, 2")
        a("s_add_u32 s52, s52, s3")
        a("s_mul_i32 s52, s52, %d" % (32 * 1280))
        a("s_and_b32 s53, s50, 1")
        a("s_mul_i32 s53, s53, 640")
        a("s_add_u32 s52, s52, s53")
        a("v_mul_u32_u24 v16, 52, v1")
        a("v_lshrrev_b32 v16, 8, v16")
        a("v_mul_u32_u24 v17, 5, v16")
        a("v_sub_u32 v17, v1, v17")
        a("v_mul_u32_u24 v16, 1280, v16")
        a("v_lshl_add_u32 v16, v17, 7, v16")
        a("v_add_u32 v16, s52, v16")
        a("v_mov_b32 v17, 0x7fffff80")
        a("v_cmp_gt_u32 vcc, 15, v1")
        a("v_cndmask_b32 v255, v17, v16, vcc")
    a(f"s_mov_b32 s44, {sc}")
    a(f"s_mov_b32 s45, {sc}")
    if not cfg.c1first: a.ext(with_nop(qstage(1)))
    stamp(a, cfg, "issued")

    def qreads(c):
        bf = rb = c % 3
        o = []
        for s in range(2):
            o.append(f"ds_read_b128 {XF(rb,s,0)}, v{XRA+2*bf+s}")
        for dt in range(8):
            for s in range(2):
                for e in range(2):
                    o.append(f"ds_read_b64_tr_b16 {WF2(rb,s,dt,e)}, v{WRA+dt} offset:{WOFF[bf]+8192*s+1024*e}")
        for u in range(1, 4):
            for s in range(2):
                o.append(f"ds_read_b128 {XF(rb,s,u)}, v{XRA+2*bf+s} offset:{2048*u}")
        return o
    a("WAITVM c0 lgkmcnt(0)")
    a("s_barrier")
    stamp(a, cfg, "landed")
    r0 = qreads(0)
    if cfg.fast0: a.ext(r0[:14])
    else:
        a.ext(r0)
        a.ext(with_nop(qstage(2)))
    wp = ["s_mov_b32 s4, s56", "s_mov_b32 s5, s57", f"s_mov_b32 s6, {4096*1280}", "s_mov_b32 s7, 0x20000", "buffer_load_dword v218, v255, s[4:7], 0 offen"]
    if cfg.wpull == 2: a.ext(wp)
    a("s_waitcnt lgkmcnt(8)" if cfg.fast0 else "s_waitcnt lgkmcnt(0)")
    q = Seq()
    per = []
    for c in range(10):
        rb = c % 3
        mf = []
        for u in range(4):
            for dt in range(8):
                d = vr(O_(u, dt), 4)
                for s in range(2):
                    mf.append(f"{MF} {d}, {WF(rb,s,dt)}, {XF(rb,s,u)}, {'0' if c == 0 and s == 0 else d}")
        p0 = q.add(mf); per.append(p0)
        for x in stamp_l(a, cfg, f"q{c+1}"): q.put(p0 + 63, "!" + x)
    BQ = {n: max(cfg.b1 + cfg.bsp * (n - 1), 64 * (n - 2)) for n in range(1, 10)}
    BQ[10] = BQ[9] + 44
    for n in range(1, 11):
        p = BQ[n]
        q.put(p, f"WAITVM c{n} lgkmcnt(0)" if n < 10 else "s_waitcnt lgkmcnt(0)"); q.put(p, "s_barrier")
        if n < 10:
            for i, r in enumerate(qreads(n)): q.put(p + 1 + (i * 3) // 4, r)
        if n + 2 < 10:
            q.place(qstage(n + 2), [p + 2 + (cfg.bsp * i) // 12 for i in range(12)])
        assert n == 1 or n == 10 or BQ[n + 1] < 64 * n, n
    q.put(63, "s_waitcnt lgkmcnt(0)")
    if cfg.fast0:
        for i, r in enumerate(r0[14:]): q.put(i // 2, r)
        for dt in range(1, 8):
            issued = min(40, 14 + 2 * (2 * dt - 1)); needed = 2 + 4 * (dt + 1)
            q.g[2 * dt - 1].insert(0, f"s_waitcnt lgkmcnt({min(15, issued - needed)})")
        q.g[15].insert(0, "s_waitcnt lgkmcnt(0)")
        q.place(qstage(2), [4 + i + i // 4 for i in range(12)])
    if cfg.wpull >= 3: q.place(wp, [per[cfg.wpull - 3] + 60])
    sw = [f"s_mov_b32 s52, {sum(v << (4*k) for k, v in enumerate(cfg.xs))}", "s_lshr_b32 s52, s52, s34", "s_and_b32 s37, s52, 15"]
    sw += ["s_mul_i32 s52, s3, %d" % (1024 * 1280), "s_lshl_b32 s53, s55, 7", "s_add_u32 s52, s52, s53"] + srd(SWO, 56, "s52", WOSZ) + \
         ["s_mul_i32 s52, s43, 15", "s_mul_i32 s53, s54, 5", "s_add_u32 s52, s52, s53", "s_lshl_b32 s52, s52, 17", "s_lshl_b32 s53, s3, 15",
          "s_add_u32 s52, s52, s53"] + srd(SOR, 48, "s52", ORSZ)
    if cfg.wpull == 1 or cfg.wl2: sw += ["s_mov_b32 s4, s56", "s_mov_b32 s5, s57", f"s_mov_b32 s6, {4096*1280}", "s_mov_b32 s7, 0x20000", "s_mov_b32 s38, 0"]
    i = per[8] + 2
    k = 0
    while k < len(sw):
        n = 2 if "s_addc" in sw[min(k + 1, len(sw) - 1)] else 1
        for x in sw[k:k + n]: q.put(i, x)
        k += n; i += 2
    p9 = per[9]
    def qepi(u):
        o = []
        for m in range(4):
            t = 16 + 4 * (m & 1)
            o += scale_pack(cfg, O_(u, 2 * m), t, ("s44", "s[44:45]"), cfg.pkmul)
            if m:
                tp = 16 + 4 * ((m - 1) & 1)
                o += [f"v_accvgpr_write_b32 a{Q_(u,m-1)+i}, v{tp+i}" for i in range(4)]
            o += [f"v_permlane16_swap_b32 v{t}, v{t+2}", f"v_permlane16_swap_b32 v{t+1}, v{t+3}"]
        o += [f"v_accvgpr_write_b32 a{Q_(u,3)+i}, v{20+i}" for i in range(4)]
        return o
    q.put(p9 + 31, "WAITVM seg0k" if cfg.split0 else "WAITVM seg0"); q.put(p9 + 31, "s_barrier")
    for x in stamp_l(a, cfg, "b0"): q.put(p9 + 31, "!" + x)
    k0r = [kread(0, 0, 0, kt, ks) for kt in range(2) for ks in range(4)]
    for i, r in enumerate(k0r): q.put(p9 + 32 + 2 * i, r)
    e = q.stream(qepi(0), p9 + 16 + 4, cap=4)
    e = q.stream(qepi(1), max(e, p9 + 32 + 4), cap=4)
    e = q.stream(qepi(2), max(e, p9 + 48 + 4), cap=4)
    q.put(p9 + 62, "s_waitcnt lgkmcnt(0)")
    lab = q.raw([])
    for x in stamp_l(a, cfg, "g0"): q.put(len(q.m) - 1, "!" + x)
    g0 = q.add(qk(0, 0, True))
    g1 = q.add(qk(1, 0, True))
    g2 = q.add(qk(2, 0, True))
    v0r = [vread(0, 0, 0, dt, e_) for dt in range(8) for e_ in range(2)]
    k1r = [kread(1, 0, 1, kt, ks) for kt in range(2) for ks in range(4)]
    if cfg.split0:
        for i, r in enumerate(k1r): q.put(g0 + i, r)
        q.put(g1 - 1, "!WAITVM seg0"); q.put(g1 - 1, "!s_barrier")
        for i, r in enumerate(v0r): q.put(g1 + i, r)
    else:
        for i, r in enumerate(v0r + k1r): q.put(g0 + i, r)
    e = q.stream(qepi(3), max(e, g0), cap=4)
    def fmax(u):
        s0 = S_(u, 0); t = NM(u)
        o = [f"v_max3_f32 v{t}, v{s0}, v{s0+1}, v{s0+2}", f"v_max3_f32 v{t+1}, v{s0+3}, v{s0+4}, v{s0+5}",
             f"v_max3_f32 v{t}, v{t}, v{s0+6}, v{s0+7}", f"v_max3_f32 v{t}, v{t}, v{t+1}, v{MTR+u}"]
        return o + [x for x in rowmax_l(t, t + 1) if "s_nop" not in x]
    def fexp(u, nexp):
        s0 = S_(u, 0); t = NM(u)
        o = [f"v_sub_f32 v{s0+r}, v{s0+r}, v{t}" for r in range(8)]
        o += [f"v_exp_f32 v{s0+r}, v{s0+r}" for r in range(nexp)]
        o += [f"v_sub_f32 v{NM(u)+i}, 0, v{t}" for i in (1, 2, 3, 0)]
        o += [f"v_cvt_pk_bf16_f32 v{P_(u)+r//2}, v{s0+r}, v{s0+r+1}" for r in range(0, nexp, 2)]
        return o
    ones = [f"v_mov_b32 v{LA[u]}, 0" for u in cfg.addu] + ["v_mov_b32 v27, 0x3f803f80"] + [f"v_accvgpr_write_b32 a{ONES+i}, v27" for i in range(4)]
    e = q.stream(merge(fmax(0), fmax(1), ones), max(e, g2 + 1), cap=4)
    for x in stamp_l(a, cfg, "g3"): q.put(len(q.m) - 1, "!" + x)
    if cfg.epark:
        q.put(len(q.m) - 1, "!s_cmp_lg_u32 s35, 0"); q.put(len(q.m) - 1, "!s_cbranch_scc1 L_exact")
    g3 = q.add(qk(3, 0, True))
    e = q.stream(merge(fexp(0, 8), fmax(2)), g3, cap=6)
    q.raw(["s_waitcnt lgkmcnt(0)"])
    for x in stamp_l(a, cfg, "g4"): q.put(len(q.m) - 1, "!" + x)
    g4 = q.add(pv(0, 0, True))
    e = q.stream(merge(fexp(1, 8), fmax(3)), g4, cap=5)
    for x in stamp_l(a, cfg, "g5"): q.put(len(q.m) - 1, "!" + x)
    g5 = q.add(pv(1, 0, True))
    e = q.stream(merge(fexp(2, 8), fexp(3, 4)), g5, cap=7)
    for x in stamp_l(a, cfg, "tile1"): q.raw([x])
    st1 = attn_tile(cfg, q, 1, "first")
    if cfg.sig == "line":
        arr = ["s_and_b32 s52, s2, 31", "s_lshl_b32 s52, s52, 3", "v_mov_b32 v16, s52", "v_mov_b32 v17, 1", "s_cmp_lg_u32 s3, 0", "s_cbranch_scc1 L_noarr",
               "s_mov_b64 exec, 1", "global_atomic_add v16, v17, s[46:47] sc1 ;@skip", "s_mov_b64 exec, -1", "L_noarr:"]
        for x in arr: q.put(st1[8] - 1, "!" + x)
    kv = []
    NP = 32 - cfg.lag
    for gp in range(NP): kv += piece(cfg, gp, False)
    pos = []
    i = BQ[7] + cfg.bsp + 3; acc = cfg.kvpace
    free_at = [0, BQ[8], BQ[8], BQ[8], BQ[9], BQ[9], BQ[9], BQ[10]]
    while len(pos) < NP:
        ok = q.m[i] and q.m[i - 1] and q.m[i + 1] and (q.slots(i) < 2 or i > p9 + 16) and i > free_at[len(pos) // 4]
        if ok and acc >= cfg.kvpace:
            pos.append(i); acc = 0
        acc += max(4, 2 + q.slots(i)) / 4
        i += 1
    assert pos[3 if cfg.split0 else 7] < p9 + 31 and pos[7] < g1 - 2 and pos[-1] < st1[4] - 2, (pos, p9, st1)
    if "nokv23" in cfg.exp: kv = [("buffer_dummy ;@" + x.split(";@")[1]) if (x.endswith("seg2") or x.endswith("seg3")) else x for x in kv]
    for k, (c, sg) in enumerate(cfg.touch):
        q.put(per[c] + cfg.tpos - 1, f"s_add_u32 s53, s40, {16384*sg}")
        q.put(per[c] + cfg.tpos, f"buffer_load_dword v255, v219, s[{SV if cfg.tkv[k % len(cfg.tkv)] == 'v' else SK}:{(SV if cfg.tkv[k % len(cfg.tkv)] == 'v' else SK)+3}], s53 offen {cfg.tflags}".rstrip())
    q.place(kv, pos)
    q.emit(a)
    a.l = fix(resolve_waits(a.l))
    a("s_mov_b32 s34, 3")
    a(".p2align 6")
    a("L_loop:")
    body0 = len(a.l)
    q = Seq()
    def loopstamp(q, p, pre):
        if cfg.stamps and pre in cfg.only.split(","):
            o = ["s_memtime s[4:5]", "s_memrealtime s[6:7]", "s_waitcnt lgkmcnt(0)"]
            for it in range(3):
                i = len(a.stamps); a.stamps.append(f"{pre}{it}")
                o += [f"s_cmp_eq_u32 s34, {3-it}", f"s_cselect_b32 s{60+4*i}, s4, s{60+4*i}", f"s_cselect_b32 s{62+4*i}, s6, s{62+4*i}"]
            for x in o: q.put(p, x)
    for j in range(2, 10):
        st = attn_tile(cfg, q, j)
        if j == 2: loopstamp(q, st[4] - 1, "ia")
        if j == 6: loopstamp(q, st[4] - 1, "ib")
        if cfg.wl2 and j % 2 == 0:
            q.put(st[3] + 1, f"buffer_load_dword v16, v255, s[4:7], s38 offen {cfg.wl2f}".rstrip())
            q.put(st[3] + 2, f"s_add_u32 s38, s38, {3*1280}")
        if cfg.wpull == 1 and j == 4:
            q.put(st[3] + 1, "buffer_load_dword v16, v255, s[4:7], s38 offen")
            q.put(st[3] + 2, f"s_add_u32 s38, s38, {56*128}")
        if j in (5, 7):
            for x in reversed(stamp_l(a, cfg, f"w{j}a")): q.g[st[4] - 1].insert(0, x)
            for x in stamp_l(a, cfg, f"w{j}b"): q.put(st[4] - 1, x)
        if j == 6:
            for x in reversed(stamp_l(a, cfg, f"d{j}a")): q.g[st[2] + 1].insert(0, x)
            for x in stamp_l(a, cfg, f"d{j}b"): q.put(st[2] + 1, "!" + x)
    if "lnobar" in cfg.exp: q.g = [[x for x in gp if x != "s_barrier"] for gp in q.g]
    if "lnodma" in cfg.exp: q.g = [[x for x in gp if kind(x.lstrip("!")) != "vm"] for gp in q.g]
    if "lnods" in cfg.exp: q.g = [[x for x in gp if kind(x.lstrip("!")) != "ds"] for gp in q.g]
    if "lnowait" in cfg.exp: q.g = [[x for x in gp if not (x.startswith("s_waitcnt") and "s_cmp_eq_u32 s34, 3" not in gp)] for gp in q.g]
    if "lnocvt" in cfg.exp: q.g = [[x for x in gp if not x.startswith("v_cvt")] for gp in q.g]
    q.put(-3, "s_sub_u32 s34, s34, 1")
    q.put(-1, "s_cmp_lg_u32 s34, 0"); q.put(-1, "s_cbranch_scc1 L_loop")
    q.emit(a)
    a.l = a.l[:body0] + [x.split(" ;@")[0] for x in a.l[body0:]]
    body = a.l[body0:]
    b = Asm(); b.stamps = a.stamps
    for gp in range(104, 130 - cfg.lag): b(f"buffer_dummy ;@seg{gp//8}" + ("k" if gp % 8 < 4 else ""))
    q = Seq()
    if "nowo" in cfg.exp: b(f"s_mov_b32 s{SWO+2}, 0")
    for x in stamp_l(b, cfg, "t26"): b(x)
    sts = {j: attn_tile(cfg, q, j, "final") for j in range(26, 30)}
    def wpos(st, half):
        return [st[4*half] + 1, st[4*half+1] + 8 if half == 0 else st[5] + 1, st[4*half+2] + (7 if half == 0 else 1), st[4*half+3] + 1]
    if cfg.wsched == 0:
        for j, (t0, t1) in {26: (0, 1), 27: (2, 3), 28: (4, 5), 29: (10, 6)}.items():
            st = sts[j]
            q.place(wdma(cfg, t0), [st[1] + 8, st[2] + 7, st[3] + 1, st[3] + 5])
            q.place(wdma(cfg, t1), [st[5] + 8, st[6] + 1, st[6] + 5, st[7] + 5])
    elif cfg.wsched == 2:
        st = sts[26]
        q.place(wdma(cfg, 0), [st[2] + 7, st[4] + 1, st[5] + 8, st[7] + 1])
        for j, (t0, t1) in {27: (1, 5), 28: (2, 6), 29: (3, 7)}.items():
            st = sts[j]
            q.place(wdma(cfg, t0), [st[0] + 5, st[1] + 8, st[2] + 7, st[3] + 5])
            q.place(wdma(cfg, t1), [st[5] + 8, st[6] + 1, st[6] + 5, st[7] + 5])
    else:
        st = sts[27]
        q.place(wdma(cfg, 0), [st[5] + 8, st[6] + 1, st[6] + 5, st[7] + 5])
        st = sts[28]
        q.place(wdma(cfg, 1), [st[0] + 5, st[0] + 7, st[1] + 1, st[1] + 3])
        q.place(wdma(cfg, 2), [st[2] + 1, st[2] + 7, st[3] + 1, st[3] + 5])
        q.place(wdma(cfg, 3), [st[5] + 8, st[6] + 1, st[6] + 5, st[7] + 5])
        st = sts[29]
        q.place(wdma(cfg, 4), [st[0] + 5, st[0] + 7, st[1] + 1, st[1] + 3])
        q.place(wdma(cfg, 5), [st[2] + 1, st[2] + 3, st[2] + 5, st[2] + 7])
        q.place(wdma(cfg, 10), [st[3] + 5, st[3] + 7, st[4] + 1, st[4] + 3])
        q.place(wdma(cfg, 6), [st[5] + 8, st[6] + 1, st[6] + 5, st[7] + 5])
    if cfg.sig == "line": q.put(sts[26][3] + 1, "global_load_dword v255, v0, s[46:47] sc1 ;@arr")
    if cfg.tlb:
        so = ["s_mul_i32 s52, s43, 240", "s_mul_i32 s53, s54, 80", "s_add_u32 s52, s52, s53", "s_mul_i32 s52, s52, 1280", "s_lshl_b32 s53, s55, 7", "s_add_u32 s52, s52, s53"]
        st = sts[27]
        for k, x in enumerate(so): q.g[st[4] + 2 + k].insert(0, x)
        sd = srd(SOUT, 58, "s52", 79 * 1280 + 128)
        q.g[st[4] + 8][0:0] = sd[:2]; q.g[st[5]][0:0] = sd[2:]
        q.put(st[5] + 1, f"buffer_load_dword v16, off, s[{SOUT}:{SOUT+3}], 0")
        q.put(st[5] + 3, f"buffer_load_dword v16, off, s[{SO}:{SO+3}], 0")
        q.put(st[5] + 5, f"buffer_load_dword v16, off, s[{SOR}:{SOR+3}], 0")
    st = sts[28]
    q.g[st[5] + 8].insert(0, "WAITVM w0")
    q.g[sts[29][4]].insert(0, "WAITVM w1")
    for p, r in zip([st[5] + 8, st[6] + 1, st[6] + 3, st[6] + 5, st[6] + 7, st[7] + 1, st[7] + 1, st[7] + 3], wreads(0)): q.put(p, r)
    k = q.g[st[8] - 2].index("s_waitcnt lgkmcnt(0)"); q.g[st[8] - 2][k] = "s_waitcnt lgkmcnt(8)"
    st = sts[29]
    q.put(st[1] + 7, "s_waitcnt lgkmcnt(10)")
    for p, r in zip([st[4] + 1, st[4] + 5, st[5] + 1, st[5] + 5, st[5] + 8, st[6] + 1, st[6] + 3, st[6] + 5], wreads(1)): q.put(p, r)
    k = q.g[st[7]].index("s_waitcnt lgkmcnt(0)"); q.g[st[7]][k] = "s_waitcnt lgkmcnt(4)"
    st = sts[29]
    for p, r in zip([st[7] + k for k in (1, 1, 3, 5, 7, 8, 8)] + [st[8]], [kread(1, 3, 1, kt, ks) for kt in range(2) for ks in range(4)]):
        if p < st[8]: q.put(p, r)
        else: lastk = r
    for x in stamp_l(b, cfg, "t30"): q.put(len(q.m) - 1, "!" + x)
    job = lambda k: (k >> 1, k & 1, k & 3)
    F = []
    for k in range(8):
        u, tb, sl = job(k)
        F.append(q.add(qk(u, tb, sl=sl)))
        if k < 2: F.append(q.add(pv(2 + k, 1)))
        else:
            u, tb, sl = job(k - 2); F.append(q.add(pv(u, tb, sl=sl)))
    for k in (6, 7):
        u, tb, sl = job(k); F.append(q.add(pv(u, tb, sl=sl)))
    F.append(len(q.m))
    sm_half(q, F[0], 3, 1)
    for k in range(8):
        sm_half(q, F[2 * k + 1], k & 3, 0); sm_half(q, F[2 * k + 2], k & 3, 1)
    q.put(F[0] + 1, lastk)
    v30 = [vread(0, 3, 0, dt, e) for dt in range(8) for e in range(2)]
    v31 = [vread(1, 3, 1, dt, e) for dt in range(8) for e in range(2)]
    if not cfg.split15:
        for p, r in zip([F[0] + k for k in (1, 3, 5, 5, 7)] + [F[1] + k for k in (1, 1, 3, 5, 5, 7)] + [F[2] + k for k in (1, 1, 3, 5, 5)], v30): q.put(p, r)
        q.put(F[1] + 8, "s_waitcnt lgkmcnt(10)")
        for p, r in zip([F[4] + k for k in (1, 1, 3, 5, 5, 7)] + [F[5] + k for k in (1, 1, 3, 5, 5, 7, 8, 8)] + [F[6] + k for k in (1, 1)], v31): q.put(p, r)
        q.put(F[4], "s_waitcnt lgkmcnt(0)")
        q.place(wdma(cfg, 11), [F[2] + 7, F[3] + 1, F[3] + 3, F[3] + 5])
        q.place(wdma(cfg, 7), [F[5] + 3, F[5] + 7, F[6] + 3, F[6] + 5])
    else:
        q.put(F[1] + 8, "WAITVM seg15 lgkmcnt(0)"); q.put(F[1] + 8, "s_barrier")
        for p, r in zip([F[2] + k for k in (1, 1, 3, 5, 5, 7)] + [F[3] + k for k in (1, 1, 3, 5, 5, 7, 8, 8)] + [F[4] + k for k in (1, 1)], v30): q.put(p, r)
        for p, r in zip([F[4] + k for k in (3, 5, 5, 7)] + [F[5] + k for k in (1, 1, 3, 5, 5, 7, 8, 8)] + [F[6] + k for k in (1, 1, 3, 3)], v31): q.put(p, r)
        q.put(F[5] - 1, "s_waitcnt lgkmcnt(3)")
        if cfg.wsched == 2:
            q.place(wdma(cfg, 4), [F[0] + 5, F[0] + 7, F[1] + 3, F[1] + 7])
            q.place(wdma(cfg, 10), [F[2] + 4, F[2] + 6, F[3], F[3] + 2])
            q.place(wdma(cfg, 11), [F[4], F[4] + 2, F[4] + 4, F[4] + 6])
        else:
            q.place(wdma(cfg, 11), [F[0] + 5, F[0] + 7, F[1] + 1, F[1] + 3])
            q.place(wdma(cfg, 7), [F[2], F[2] + 4, F[3] + 2, F[3] + 6])
    q.put(F[7] - 1, "s_waitcnt lgkmcnt(0)"); q.put(F[7] - 1, "s_barrier")
    q.place(wdma(cfg, 8), [F[7] + 5, F[7] + 7, F[7] + 8, F[8] + 1])
    q.place(wdma(cfg, 9), [F[8] + 7, F[9] + 1, F[9] + 3, F[9] + 5])
    if "nost" in cfg.exp: q.g[F[4]].insert(0, f"s_mov_b32 s{SO+2}, 0")
    def onorm(u, store=True):
        o = [f"v_accvgpr_read_b32 v16, a{L_(u)}"]
        if u in cfg.addu:
            t = LA[u]
            o += [f"v_mov_b32 v17, v{t}", f"v_permlane32_swap_b32 v{t}, v17", f"v_add_f32 v{t}, v{t}, v17",
                  f"v_mov_b32 v17, v{t}", f"v_permlane16_swap_b32 v{t}, v17", f"v_add_f32 v{t}, v{t}, v17", f"v_add_f32 v16, v16, v{t}"]
        o += ["v_cmp_ngt_f32 vcc, s36, v16", "v_rcp_f32 v16, v16", "s_or_b64 s[50:51], s[50:51], vcc", "v_mov_b32 v17, v16"]
        for m in range(4):
            t = O_(u, 0) + 4 * m
            o += scale_pack(cfg, O_(u, 2 * m), t, ("v16", "v[16:17]"), True)
            if store: o += ostore(u)[m:m + 1]
        if store: o += ostore(u)[4:]
        return o
    def ostore(u):
        return [f"buffer_store_dwordx4 {vr(O_(u,0)+4*m,4)}, v15, s[{SO}:{SO+3}], s30 offen offset:{1024*m} {cfg.oflags}".rstrip() + " ;@ost" for m in range(4)] + ["s_add_u32 s30, s30, 131072"]
    for k, x in enumerate([f"s_mov_b32 s36, {f32(cfg.lthr)}", "s_mov_b64 s[50:51], 0", "s_lshl_b32 s30, s3, 19", "s_lshl_b32 s31, s29, 12", "s_add_u32 s30, s30, s31"]):
        q.g[F[4] + 2 + k].insert(0, x)
    for k in (2, 4, 6, 8, 10, 12, 14, 16):
        for x in stamp_l(b, cfg, f"F{k}"): q.put(F[k] - 1, "!" + x)
    if cfg.epark:
        def epark(t, p0, refill_at):
            q.g[p0].insert(0, f"WAITVM w{t}")
            for k, r in enumerate(wreads(t)): q.put(p0 + 2 * (k // 2), r)
            if refill_at:
                q.place(wdma(cfg, t + 10), refill_at)
                q.g[refill_at[0]].insert(0, f"WAITLG p{t}")
        epark(2, F[7] + 1, [F[10] + 3, F[10] + 5, F[10] + 7, F[11] + 1])
        epark(3, F[9] + 1, [F[11] + 7, F[11] + 8, F[12] + 1, F[12] + 3])
        epark(5, F[11] + 2, [F[13] + 1, F[13] + 3, F[13] + 5, F[13] + 7])
        epark(6, F[13] + 2, [F[14] + 5, F[14] + 7, F[15] + 1, F[15] + 3])
        epark(7, F[14] + 1, [F[16] + 1, F[16] + 3, F[16] + 5, F[16] + 7])
        epark(4, F[15] + 2, [F[17] + 5, F[17] + 6, F[17] + 7, F[17] + 8])
        epark(8, F[16] + 2, None)
        epark(9, F[17] + 1, None)
    if cfg.early == 1:
        e = q.stream(onorm(0), F[8] + 4, cap=cfg.ncap)
        e = q.stream(onorm(1), max(e, F[12] + 4), cap=cfg.ncap)
        e = q.stream(onorm(2), max(e, F[16] + 4), cap=cfg.ncap + 2)
    if cfg.early >= 2:
        e = q.stream(onorm(0, False), F[8] + 4, cap=cfg.ncap)
        e = q.stream(onorm(1, False), max(e, F[12] + 4), cap=cfg.ncap)
        e = q.stream(onorm(2, False), max(e, F[16] + 4), cap=cfg.ncap + 2)
        if cfg.early == 3:
            for k, x in enumerate(ostore(0) + ostore(1)): q.put(min(F[16] + 8 + k, F[18] - 1), x if kind(x) == "vm" else "!" + x)
    q.emit(b)
    if cfg.early == 2: b.ext(ostore(0) + ostore(1) + ostore(2))
    if cfg.early == 3: b.ext(ostore(2))
    if not cfg.early: b.ext(onorm(0) + onorm(1) + onorm(2))
    stamp(b, cfg, "loopend")
    if "nowo" in cfg.exp: b(f"s_mov_b32 s{SWO+2}, {WOSZ}")
    def park(t): return [f"WAITVM w{t}"] + wreads(t)
    def refill(t): return with_nop(wdma(cfg, t + 10))
    DU = UNIT[9 if cfg.epark else 2]
    if cfg.epark: b.ext(park(10) + park(11))
    else: b.ext(park(2) + park(3))
    b.ext(onorm(3))
    stamp(b, cfg, "stored")
    if cfg.force_fb: b("s_mov_b64 s[50:51], -1")
    b("s_cmp_lg_u64 s[50:51], 0")
    b("s_cselect_b32 s52, 1, 0")
    b(f"s_add_u32 s53, s40, {16384*DU}")
    b("v_mov_b32 v16, s52")
    b("v_mov_b32 v17, s53")
    b("v_and_b32 v18, 3, v1")
    b("v_lshlrev_b32 v18, 12, v18")
    b(f"v_add_u32 v18, {16384*DU}, v18")
    b("s_waitcnt lgkmcnt(0)")
    b("ds_write_b32 v17, v16")
    if cfg.epark: b.ext(refill(8) + park(12) + park(13))
    else: b.ext(refill(3) + park(4) + park(5))
    b("s_waitcnt lgkmcnt(0)")
    b("s_barrier")
    b("ds_read_b32 v20, v18")
    if cfg.epark: b.ext(refill(10))
    else: b.ext(refill(4) + park(6) + park(7))
    b("s_waitcnt lgkmcnt(0)")
    b("v_cmp_ne_u32 vcc, 0, v20")
    b("s_cmp_eq_u32 s35, 0")
    b("s_cselect_b64 s[52:53], vcc, 0")
    b("s_cmp_lg_u64 s[52:53], 0")
    b("s_cbranch_scc1 L_redo" if cfg.epark else "s_cbranch_scc1 L_exact")
    if not cfg.sigfirst: b.ext(park(8) + park(9) + park(10) + park(11))
    if cfg.sig == "line":
        b("s_lshl_b32 s52, s28, 5")
        b("s_add_u32 s52, s52, s29")
        b("s_lshl_b32 s52, s52, 7")
        b(f"s_add_u32 s52, s52, {FOFF}")
    else:
        b("s_lshl_b32 s52, s28, 2")
        b("s_lshr_b32 s53, s29, 3")
        b("s_add_u32 s52, s52, s53")
        b("s_lshl_b32 s52, s52, 3")
    b("v_mov_b32 v16, s52")
    b("v_mov_b32 v17, 1")
    if cfg.epark: b.ext(refill(11))
    elif cfg.pre5: b.ext(refill(5))
    b("WAITVM ost")
    b("s_barrier")
    b("s_cmp_lg_u32 s3, 0")
    b("s_cbranch_scc1 L_nosig")
    b("s_mov_b64 exec, 1")
    if cfg.sig == "line": b("global_store_dword v16, v17, s[48:49] sc1 ;@skip")
    else: b("global_atomic_add v16, v17, s[46:47] sc1 ;@skip")
    b("s_mov_b64 exec, -1")
    b("L_nosig:")
    stamp(b, cfg, "signaled")
    b("s_lshr_b32 s52, s2, 3")
    b("s_cmp_ge_u32 s52, 30")
    b("s_cbranch_scc1 L_fin")
    if cfg.epark:
        b.ext(refill(9) + refill(12))
    elif cfg.sigfirst:
        b.ext(refill(2) + ([] if cfg.pre5 else refill(5)) + park(8) + park(9) + refill(6) + park(10) + park(11) + refill(7))
        b("s_waitcnt lgkmcnt(0)")
        for t in range(8, 12): b.ext(refill(t))
    else:
        b("s_waitcnt lgkmcnt(0)")
        b.ext(refill(2))
        for t in range(5, 12): b.ext(refill(t))
    b("s_lshl_b32 s52, s43, 2")
    b("s_add_u32 s52, s52, s3")
    if cfg.sig == "line":
        b("s_lshl_b32 s52, s52, 10")
        b(f"s_add_u32 s52, s52, {FOFF}")
        b("v_and_b32 v16, 7, v1")
        b("v_lshlrev_b32 v16, 7, v16")
        b("v_add_u32 v16, s52, v16")
        pbase = "s[48:49]"
    else:
        b("s_lshl_b32 s52, s52, 3")
        b("v_mov_b32 v16, s52")
        pbase = "s[46:47]"
    prev = 13 if cfg.epark else None
    for t in range(14 if cfg.epark else 12, cfg.R):
        if cfg.epoll and t == max(cfg.epoll, 14 if cfg.epark else 0): b(f"global_load_dword v17, v16, {pbase} sc1 ;@ep")
        b.ext(park(t))
        if prev is not None and prev + 10 < cfg.X:
            b("s_waitcnt lgkmcnt(8)")
            b.ext(refill(prev))
        prev = t
    b("s_waitcnt lgkmcnt(0)")
    if prev + 10 < cfg.X: b.ext(refill(prev))
    stamp(b, cfg, "parked")
    b("s_mov_b32 s34, 0x100000")
    want = 1 if cfg.sig == "line" else 8
    cmpi = "v_cmp_ne_u32 vcc, 1, v17" if cfg.sig == "line" else "v_cmp_gt_u32 vcc, 8, v17"
    if cfg.sig == "line":
        b("WAITVM arr")
        b("v_cmp_gt_u32 vcc, 8, v255")
        b("s_cbranch_vccz L_cleared")
        b("L_wclr:")
        b("global_load_dword v255, v0, s[46:47] sc1 ;@skip")
        b("s_waitcnt vmcnt(0)")
        b("v_cmp_gt_u32 vcc, 8, v255")
        b("s_sub_u32 s34, s34, 1")
        b("s_cselect_b64 vcc, 0, vcc")
        b("s_cbranch_vccnz L_wclr")
        b("s_branch L_poll")
        b("L_cleared:")
    if cfg.epoll:
        b("WAITVM ep")
        b(cmpi)
        b("s_cbranch_vccz L_ready")
    b("L_poll:")
    b(f"global_load_dword v17, v16, {pbase} sc1")
    b("s_waitcnt vmcnt(0)")
    b(cmpi)
    b("s_sub_u32 s34, s34, 1")
    b("s_cselect_b64 vcc, 0, vcc")
    b("s_cbranch_vccnz L_poll")
    b("L_ready:")
    stamp(b, cfg, "polled")
    worder = [x.split(";@")[1] for x in b.l if ";@w" in x and kind(x) == "vm"]
    check_setup(b.l, "tail")
    a.l += fix(resolve_waits(b.l))
    c = Asm(); c.stamps = a.stamps
    for t_ in worder: c(f"buffer_dummy ;@{t_}")
    ACC = lambda i, nt: 32 + 16 * i + 4 * nt
    OFB = [112, 132, 152, 172, 192]
    OF = lambda t, i: OFB[t % cfg.DO] + 4 * i
    def oload(t):
        return [x + f" ;@o{t}" for x in [f"s_add_u32 s30, s41, {t}", "s_xor_b32 s30, s30, s37", "s_lshl_b32 s30, s30, 10", "s_and_b32 s30, s30, 0x7fff"]] + \
            tag([f"buffer_load_dwordx4 {vr(OF(t,i),4)}, v{OAL[i]}, s[{SOR}:{SOR+3}], s30 offen {cfg.orflags}".rstrip() for i in range(5)], f"o{t}")
    for t in range(cfg.DO - 1): c.ext(oload(t))
    if not cfg.tlb:
        c("s_mul_i32 s52, s43, 240")
        c("s_mul_i32 s53, s54, 80")
        c("s_add_u32 s52, s52, s53")
        c("s_mul_i32 s52, s52, 1280")
        c("s_lshl_b32 s53, s55, 7")
        c("s_add_u32 s52, s52, s53")
        c.ext(srd(SOUT, 58, "s52", 79 * 1280 + 128))
    for j in range(1, 4):
        c(f"s_add_u32 s52, s3, {j}")
        c("s_and_b32 s52, s52, 3")
        c("s_mul_i32 s52, s52, 15360")
        c(f"v_add_u32 v{240+j}, s52, v15")
    c("s_mul_i32 s52, s3, 15360")
    c("v_add_u32 v240, s52, v15")
    c("v_mul_u32_u24 v244, 1280, v2")
    c("v_lshl_add_u32 v244, v3, 3, v244")
    nextw = cfg.X
    q = Seq()
    NL = cfg.NL
    for t in range(32 - NL):
        mf = []
        for i in range(5):
            for nt in range(4):
                d = vr(ACC(i, nt), 4)
                mf.append(f"{MF} {d}, {WS(t,nt)}, {vr(OF(t,i),4)}, {'0' if t == 0 else d}")
        q.raw([f"WAITVM o{t} lgkmcnt(0)"] + (stamp_l(c, cfg, f"p{t}") if t in (1, 4, 8, 16, 24) else []))
        g = q.add(mf)
        if t + cfg.DO - 1 < 32: q.place(oload(t + cfg.DO - 1), [g + 4, g + 6, g + 9, g + 12, g + 15])
        tr = t + cfg.R - 1
        if t >= 1 and tr < 32:
            q.g[g].insert(0, f"WAITVM w{tr}")
            for k, r in enumerate(wreads(tr)): q.put(g + 1 + k, r)
        if nextw < 32 and nextw - 10 <= t + cfg.R - 2 and (nextw - cfg.X) * cfg.wev <= t:
            q.place(wdma(cfg, nextw), [g + 10, g + 13, g + 16, g + 18])
            nextw += 1
        if t == 20: q.put(g + 19, "s_barrier")
    assert nextw == 32
    q.raw([f"WAITVM o{32-NL} lgkmcnt(0)"])
    wr = lambda i, j: f"ds_write_b128 v{240+j}, {vr(ACC(i,j),4)} offset:{5120*(j-1)+1024*i}"
    for i in range(5):
        mf = []
        for j in (1, 2, 3, 0):
            d = vr(ACC(i, j), 4)
            for t in range(32 - NL, 32):
                mf.append(f"{MF} {d}, {WS(t,j)}, {vr(OF(t,i),4)}, {d}")
        g = q.add(mf)
        if i == 0:
            for k in range(1, NL): q.g[g + k - 1].append(f"!WAITVM o{32-NL+k}")
        else:
            for j in range(1, 4): q.put(g + 2 + NL * (j - 1), wr(i - 1, j))
    q.raw(stamp_l(c, cfg, "projdone") + ["s_nop 1", wr(4, 1), wr(4, 2), "s_nop 1", wr(4, 3)])
    q.emit(c)
    c("s_waitcnt lgkmcnt(0)")
    c("s_barrier")
    for i in range(5):
        for j in range(3):
            c(f"ds_read_b128 {vr(112+12*i+4*j,4)}, v240 offset:{5120*j+1024*i}")
    c("s_lshl_b32 s52, s3, 5")
    for i in range(5):
        c(f"s_waitcnt lgkmcnt({3*(4-i)})")
        bb = 112 + 12 * i; ac = ACC(i, 0)
        for r in range(0, 4, 2):
            c(f"v_pk_add_f32 {vr(ac+r,2)}, {vr(ac+r,2)}, {vr(bb+r,2)}")
            c(f"v_pk_add_f32 {vr(bb+4+r,2)}, {vr(bb+4+r,2)}, {vr(bb+8+r,2)}")
        for r in range(0, 4, 2):
            c(f"v_pk_add_f32 {vr(ac+r,2)}, {vr(ac+r,2)}, {vr(bb+4+r,2)}")
        c(f"v_cvt_pk_bf16_f32 v{ac}, v{ac}, v{ac+1}")
        c(f"v_cvt_pk_bf16_f32 v{ac+1}, v{ac+2}, v{ac+3}")
        c(f"buffer_store_dwordx2 {vr(ac,2)}, v244, s[{SOUT}:{SOUT+3}], s52 offen {cfg.outflags}".rstrip())
        c("s_add_u32 s52, s52, %d" % (16 * 1280))
    check_setup(c.l, "proj")
    a.l += resolve_waits(c.l)
    a("L_fin:")
    if cfg.stamps or cfg.calib:
        a("s_waitcnt vmcnt(0)")
        stamp(a, cfg, "end")
    if cfg.calib:
        a("s_waitcnt lgkmcnt(0)")
        a("s_or_b32 s52, s2, s3")
        a("s_cmp_lg_u32 s52, 0")
        a("s_cbranch_scc1 L_end")
        a(f"s_sub_u32 s52, s{62+4*cfg.cal_j}, s{62+4*cfg.cal_i}")
        a("s_lshl_b32 s52, s52, 2")
        a("s_add_u32 s52, s52, s62")
        a("L_spin:")
        a("s_memrealtime s[56:57]")
        a("s_waitcnt lgkmcnt(0)")
        a("s_sub_u32 s56, s56, s52")
        a(f"s_cmp_lt_i32 s56, {cfg.calib*100}")
        a("s_cbranch_scc1 L_spin")
    if cfg.stamps:
        stamps_out(a, cfg, 64 << 20)
    a("L_end:")
    a("s_endpgm")
    if cfg.epark:
        a("L_redo:")
        a("s_mov_b32 s35, 1")
        a("s_lshl_b32 s52, s3, 6")
        a("v_or_b32 v0, s52, v1")
        a("s_waitcnt vmcnt(0) lgkmcnt(0)")
        a("s_barrier")
        a("s_branch L_restart")
    a("L_exact:")
    ex0 = len(a.l)
    a("s_mov_b32 s35, 1")
    a(f"s_mov_b32 s{SK+2}, {KVBYTES}")
    a(f"s_mov_b32 s{SV+2}, {KVBYTES}")
    a("s_mov_b32 s33, s40")
    a("s_waitcnt vmcnt(0) lgkmcnt(0)")
    a("L_exact_loop:")
    a("s_barrier")
    a.ext(with_nop(kdma(cfg, 0)))
    a(ADV)
    a("s_waitcnt vmcnt(0)")
    a("s_barrier")
    for th in range(2):
        for kt in range(2):
            for ks in range(4): a(kread(0, 0, th, kt, ks))
        a("s_waitcnt lgkmcnt(0)")
        for u in range(4): a.ext(qk(u, 0, True))
        a("s_nop 7")
        for u in range(4):
            s0 = S_(u, 0)
            for r in range(0, 8, 2):
                a(f"v_max3_f32 v{MTR+u}, v{MTR+u}, v{s0+r}, v{s0+r+1}")
    a(f"s_cmp_lt_u32 s33, {KVBYTES}")
    a("s_cbranch_scc1 L_exact_loop")
    a("s_barrier")
    a("s_mov_b32 s33, s40")
    a.ext([x.split(" ;@")[0] for x in with_nop(sum([piece(cfg, gp, False) for gp in range(NP)], []))])
    a("s_waitcnt vmcnt(0)")
    a("s_barrier")
    a.ext(k0r + v0r)
    a("s_waitcnt lgkmcnt(0)")
    a.ext(k1r)
    for u in range(4): a.ext(qk(u, 0, True))
    a.ext(ones)
    a("s_nop 7")
    a.ext(fix(merge(*[fmax(u) for u in range(4)]) + merge(*[fexp(u, 8 if u < 3 else 4) for u in range(4)])))
    a("s_nop 1")
    a.ext(pv(0, 0, True) + pv(1, 0, True))
    a("s_waitcnt lgkmcnt(0)")
    q = Seq(); attn_tile(cfg, q, 1, "first")
    x1 = Asm()
    for t_ in ["seg1"]: x1("buffer_dummy ;@seg1")
    q.emit(x1)
    a.l += resolve_waits(x1.l)
    a("s_mov_b32 s34, 3")
    a("s_branch L_loop")
    bad = check(a.l[:ex0], "main") + check(body + body, "attn-loop") + check(a.l[ex0:] + body, "exact")
    assert bad == 0
    return a

def build(cfg):
    k = NAME + "_kernel"
    out = []
    out.append("; @launch grid=(256,1,1) block=(256,1,1) lds=163840")
    out.append('.amdgcn_target "amdgcn-amd-amdhsa--gfx950"')
    out.append(".text")
    out.append(f".globl {k}\n.p2align 8\n.type {k},@function\n{k}:")
    out.append(gen(cfg).text())
    out.append('.section .rodata,"a"')
    out.append(f""".p2align 6
.amdhsa_kernel {k}
  .amdhsa_next_free_vgpr 512
  .amdhsa_next_free_sgpr 102
  .amdhsa_accum_offset 256
  .amdhsa_group_segment_fixed_size 0
  .amdhsa_kernarg_size 64
  .amdhsa_user_sgpr_count 2
  .amdhsa_user_sgpr_kernarg_segment_ptr 1
  .amdhsa_system_sgpr_workgroup_id_x 1
.end_amdhsa_kernel
""")
    return "\n".join(out)

if __name__ == "__main__":
    cfg = Cfg()
    path = sys.argv[1]
    for kv in sys.argv[2:]:
        k, v = kv.split("=", 1)
        old = getattr(cfg, k)
        setattr(cfg, k, type(old)(eval(v)) if isinstance(old, (bool, int, float, tuple)) else v)
    txt = build(cfg)
    open(path, "w").write(txt)
```

```python
import sys, math, struct
from asmlib import *

NAME = "standalone__mha_block_cached__near_ridge"
def f32(x): return struct.unpack("<I", struct.pack("<f", x))[0]
MF = "v_mfma_f32_16x16x32_bf16"

class Cfg:
    kvflags = "nt"
    oflags = "sc1"
    orflags = "sc1"
    xflags = ""
    bflags = ""
    stamps = False
    only = ""
    qspread = 4
    kvpace = 13.5
    lthr = 2.0 ** 40
    force_fb = False
    rot = 5
    rA = 0
    DO = 4
    NL = 2
    joint = 1
    opk = 2
    lds_last = 0
    pad = 0
    prio = 0
    ucl = 0
    uph = 0.3
    fin2 = 1
    mapx = 0
    map3b = 0
    lazy = ()
    c0same = 0
    roff = 5
    fsig = 2
    bm = 0
    bmi = 0
    wv = 2
    jcap = 2
    uni = 0
    ipre = 32
    upi = 30
    urest = 9
    w3 = 1
    wn = 10
    wp = 17
    wp2 = 4
    wdelay = 0
    R = 19
    epark = 0
    addu = ()
    tlb = 0
    fast0 = 1
    c1first = 0
    pre5 = 1
    early = 1
    cwarm = 1
    wl2 = 0
    wl2f = ""
    lag = 4
    split0 = 0
    wsched = 2
    b1 = 24
    bsp = 50
    split15 = 1
    sigfirst = 1
    outflags = ""
    wpull = 0
    epoll = 15
    touch = ()
    tpos = 52
    tl = 16
    tflags = ""
    tkv = "v"
    dmode = "even"
    xs = (0, 0, 0, 0, 0)
    k0at = 5
    X = 29
    wev = 1.0
    ncap = 3
    sig = "line"
    pkmul = False
    qord = 0
    exp = ""
    calib = 0
    cal_i = 0
    cal_j = 0

O_ = lambda u, dt: 32 + 32 * u + 4 * dt
S_ = lambda u, kt: 160 + 8 * u + 4 * kt
P_ = lambda u: 192 + 4 * u
NM = lambda u: 208 + 4 * u
KRA, VRA, KDA, VDA, MTR = 224, 228, 236, 240, 242
WD = 246
XDA, WDA, XRA, WRA = 192, 200, 204, 210
Q_ = lambda u, m: 16 * u + 4 * m
KF = lambda b, kt, ks: 64 + 32 * b + 16 * kt + 4 * ks
VF = lambda b, dt: 128 + 32 * b + 4 * dt
L_ = lambda u: 192 + 4 * u
ONES = 208
WF = lambda b, s, dt: ar([160, 0, 96][b] + 32 * s + 4 * dt, 4)
WF2 = lambda b, s, dt, e: ar([160, 0, 96][b] + 32 * s + 4 * dt + 2 * e, 2)
XF = lambda b, s, u: vr([224, 64, 160][b] + 16 * s + 4 * u, 4, "aav"[b])
SX, SW, SK, SV, SO = 8, 12, 16, 20, 24
SWO, SOR, SOUT = 8, 12, 4
KVBYTES = 262144
XBASE = [(131072, 147456), (65536, 16384), (32768, 49152)]
WWIN = 81920
WOFF = [32768, 0, 16384]
UNIT = [0, 4, 8, 9, 1, 5, 2, 6, 3, 7]
UNIT2 = [0, 4, 9, 5, 6, 8, 1, 2, 3, 7]
UNIT3 = [0, 4, 9, 1, 2, 8, 5, 6, 3, 7]
WRL = [[28, 29, 30, 31], [250, 251, 252, 253], [7, 8, 9, 10]]
OAL = [4, 5, 13, 14, 254]
WBLK = [224, 240, 64, 80, 96, 112, 128, 144, 160, 176, 208, 192, 0, 16, 32, 48]
WBLK2 = [224, 240, 0, 16, 48, 32, 64, 80, 96, 112, 128, 144, 160, 176, 208, 192]
def WS(t, nt, e=None):
    b = WBLK[t % len(WBLK)]
    f = "a" if b >= 0 else "v"
    return vr(abs(b) + 4 * nt, 4, f) if e is None else vr(abs(b) + 4 * nt + 2 * e, 2, f)
def wreads(t):
    u_ = UNIT[t % 10]
    return [f"ds_read_b64_tr_b16 {WS(t,nt,e)}, v{WRL[u_>>2][nt]} offset:{16384*(u_&3)+2048*e} ;@p{t}" for nt in range(4) for e in range(2)]
FOFF = 24 << 20
WOSZ = 1024 * 1280 - 9 * 128
ORSZ = 4 * 131072 + 32768

class Seq:
    def __init__(self): self.m = []; self.g = []
    def add(self, mfmas):
        n = len(self.m); self.m += mfmas; self.g += [[] for _ in mfmas]; return n
    def raw(self, lines):
        self.m.append(None); self.g.append(["!" + x for x in lines]); return len(self.m) - 1
    def put(self, i, x): self.g[i].append(x)
    def slots(self, i):
        n = 0
        for x in self.g[i]:
            k = kind(x.lstrip("!"))
            if k in ("ds", "vm", "valu"): n += 2 if x.lstrip("!").startswith(TRANS) else 1
        return n
    def place(self, lst, vmpos):
        vmpos = list(vmpos); pend = []; last = None
        for x in lst:
            if kind(x) == "vm":
                p = vmpos.pop(0)
                assert not pend or last is None or p - len(pend) > last, (lst, p, last)
                for k, s in enumerate(reversed(pend)): self.g[p - 1 - k].insert(0, s)
                pend = []; self.g[p].append(x); last = p
            else: pend.append(x)
        for k, s in enumerate(pend): self.g[last + 1 + k].insert(0, s)
    def stream(self, lst, start, cap=2, end=None):
        i = start
        for x in lst:
            c = 2 if x.startswith(TRANS) else (0 if kind(x) == "s" else 1)
            while self.slots(i) + c > cap and (end is None or i < end) and i + 1 < len(self.m): i += 1
            self.g[i].append("!" + x)
        return i
    def emit(self, a): emit_gaps(a, self.m, self.g)

def stamp_l(a, cfg, name):
    if (cfg.stamps or cfg.calib) and (cfg.only == "" or name in cfg.only.split(",") or name in ("start", "end")):
        i = len(a.stamps); a.stamps.append(name)
        assert i < 10
        return [f"s_memtime s[{60+4*i}:{61+4*i}]", f"s_memrealtime s[{62+4*i}:{63+4*i}]"]
    return []
def stamp(a, cfg, name): a.ext(stamp_l(a, cfg, name))

def stamps_out(a, cfg, wsoff):
    n = len(a.stamps)
    a.l.insert(0, "; stamps " + str(wsoff >> 20) + " " + " ".join(a.stamps))
    a("s_waitcnt lgkmcnt(0)")
    a(f"s_add_u32 s48, s48, {wsoff}")
    a("s_addc_u32 s49, s49, 0")
    a("s_mov_b32 s50, 0x100000")
    a("s_mov_b32 s51, 0x20000")
    a("s_lshl_b32 s52, s2, 2")
    a("s_add_u32 s52, s52, s3")
    a("s_lshl_b32 s52, s52, 7")
    a("v_mov_b32 v6, s52")
    a("v_cmp_eq_u32 vcc, 0, v1")
    a("s_and_saveexec_b64 s[54:55], vcc")
    for i in range(n):
        a(f"v_mov_b32 v4, s{60+4*i}")
        a(f"v_mov_b32 v5, s{62+4*i}")
        a(f"buffer_store_dwordx2 v[4:5], v6, s[48:51], 0 offen offset:{8*i}")
        a("s_nop 1")
    a("s_getreg_b32 s53, hwreg(HW_REG_XCC_ID)")
    a("v_mov_b32 v4, s53")
    a("buffer_store_dword v4, v6, s[48:51], 0 offen offset:120")
    a("v_mov_b32 v4, 0x5157")
    a(f"v_mov_b32 v5, {n}")
    a("buffer_store_dwordx2 v[4:5], v6, s[48:51], 0 offen offset:112")
    a("s_mov_b64 exec, s[54:55]")

def srd(s, plo, off_s, size):
    return [f"s_add_u32 s{s}, s{plo}, {off_s}", f"s_addc_u32 s{s+1}, s{plo+1}, 0", f"s_mov_b32 s{s+2}, {size}", f"s_mov_b32 s{s+3}, 0x20000"]
def dma(vaddr, sdesc, soff, imm, flags=""):
    o = f" offset:{imm}" if imm else ""
    f = f" {flags}" if flags else ""
    return f"buffer_load_dwordx4 v{vaddr}, s[{sdesc}:{sdesc+3}], {soff} offen{o}{f} lds"
def tag(lst, t):
    return [x + f" ;@{t}" if kind(x) == "vm" else x for x in lst]
def check_setup(lines, name):
    last = {}
    for x in lines:
        if ";@" not in x:
            if kind(x) == "s" and not x.endswith(":") and len(x.split()) > 1 and x.split()[1].rstrip(",") in ("m0", "s42", "s30"): last[x.split()[1].rstrip(",")] = None
            continue
        t = x.split(";@")[1]
        if kind(x) == "s": last[x.split()[1].rstrip(",")] = t
        elif t[0] == "w" and t[1:].isdigit() and not x.startswith("buffer_dummy"):
            assert last.get("m0") == t and last.get("s42") == t, (name, x, last)
        elif t[0] == "o" and t[1:].isdigit() and not x.startswith("buffer_dummy"):
            assert last.get("s30") == t, (name, x, last)
def with_nop(lst):
    o = []
    for x in lst:
        o.append(x)
        if " m0," in x: o.append("s_nop 0")
    return o

def resolve_waits(lines):
    out = []; seq = []; lseq = []
    for x in lines:
        if x.startswith("WAITLG"):
            t = x.split()[1]
            idx = max(i for i, v in enumerate(lseq) if v == t)
            out.append(f"s_waitcnt lgkmcnt({min(len(lseq) - 1 - idx, 15)})")
            continue
        if x.startswith("ds_"): lseq.append(x.split(";@")[1] if ";@" in x else "")
        if x.startswith("WAITVM"):
            p = x.split(None, 2)
            idx = max(i for i, t in enumerate(seq) if t == p[1])
            n = min(len(seq) - 1 - idx, 63)
            out.append(f"s_waitcnt vmcnt({n})" + (" " + p[2] if len(p) > 2 else ""))
            continue
        if not (x.endswith(":") or x.startswith(".") or x.startswith(";")) and kind(x) == "vm" and not x.endswith(";@skip"):
            seq.append(x.split(";@")[1] if ";@" in x else "")
        if not x.startswith("buffer_dummy"): out.append(x.split(" ;@")[0])
    return out

def kdma(cfg, slot, so="s33"):
    return [f"s_add_u32 m0, s40, {16384*slot}"] + [dma(KDA + pp, SK, so, 1024 * pp, cfg.kvflags) for pp in range(4)]
def vdma(cfg, slot, so="s33"):
    return [f"s_add_u32 m0, s40, {65536+16384*slot}"] + [dma(VDA + (pp & 1), SV, so, 1024 * pp, cfg.kvflags) for pp in range(4)]
ADV = "s_add_u32 s33, s33, 16384"
def upiece(cfg, gp):
    sg = gp >> 3
    if gp & 1: return ["s_or_b32 m0, m0, 0x10000", dma(VDA, SV, "s33", 0, cfg.kvflags) + f" ;@seg{sg}", "s_add_u32 s33, s33, 4096"]
    return ["s_and_b32 m0, s33, 0xffff", dma(KDA, SK, "s33", 0, cfg.kvflags) + f" ;@seg{sg}" + ("k" if sg == 15 else "")]
def piece(cfg, gp, setm0, guard=False):
    sg, kv, pp = gp // 8, (gp % 8) // 4, gp % 4
    grp = (vdma if kv else kdma)(cfg, sg & 3)
    o = ([grp[0]] if pp == 0 or setm0 else []) + tag([grp[1 + pp]], f"seg{sg}" + ("k" if kv == 0 else ""))
    if gp % 8 == 7:
        o += [ADV]
        if guard: o += [f"s_cmp_lt_u32 s33, {KVBYTES}", f"s_cselect_b32 s{SK+2}, {KVBYTES}, 0"]
    return o
def wdma(cfg, t):
    return [x + f" ;@w{t}" for x in [f"s_add_u32 s42, s41, {t}", "s_and_b32 s42, s42, 31", "s_mul_i32 s42, s42, 40960", f"s_add_u32 m0, s40, {16384*UNIT[t%10]}"]] + \
        tag([dma(WD + pp, SWO, "s42", 1024 * pp, cfg.bflags) for pp in range(4)], f"w{t}")
def kread(buf, slot, th, kt, ks):
    return f"ds_read_b128 {ar(KF(buf,kt,ks),4)}, v{KRA+ks} offset:{16384*slot+8192*th+4096*kt}"
def vread(buf, slot, th, dt, e):
    return f"ds_read_b64_tr_b16 {ar(VF(buf,dt)+2*e,2)}, v{VRA+dt} offset:{16384*slot+8192*th+4096*e}"

def qk(u, kb, czero=False, sl=None):
    m = []
    for kt in range(2):
        d = vr(S_(u if sl is None else sl, kt), 4)
        for ks in range(4):
            c = ("0" if czero else vr(NM(u), 4)) if ks == 0 else d
            m.append(f"{MF} {d}, {ar(KF(kb,kt,ks),4)}, {ar(Q_(u,ks),4)}, {c}")
    return m
LA = {0: 18, 1: 19}
def pv(u, vb, czero=False, sl=None, lsum=True):
    m = []
    p = vr(P_(u if sl is None else sl), 4)
    for dt in range(8):
        d = vr(O_(u, dt), 4)
        m.append(f"{MF} {d}, {ar(VF(vb,dt),4)}, {p}, {'0' if czero else d}")
    d = ar(L_(u), 4)
    if lsum: m.append(f"{MF} {d}, {ar(ONES,4)}, {p}, {'0' if czero else d}")
    return m
def sm_half(q, g0, u, kt, add=False):
    s = S_(u, kt)
    for r in range(4):
        if add: q.put(g0 + 2 * r + 1, f"v_add_f32 v{LA[u]}, v{LA[u]}, v{s+r}")
        q.put(g0 + 2 * r, f"v_exp_f32 v{s+r}, v{s+r}")
        if r & 1: q.put(g0 + 2 * r + 1, f"v_cvt_pk_bf16_f32 v{P_(u)+2*kt+r//2}, v{s+r-1}, v{s+r}")

def attn_tile(cfg, q, j, mode="loop"):
    kb = vb = j & 1
    slot, th = (j >> 1) & 3, j & 1
    nslot, nth = ((j + 1) >> 1) & 3, (j + 1) & 1
    z = mode == "first"
    addu = cfg.addu if mode == "loop" else ()
    groups = [qk(0, kb), pv(2, vb ^ 1, z), qk(1, kb), pv(3, vb ^ 1, z), qk(2, kb), pv(0, vb, lsum=0 not in addu), qk(3, kb), pv(1, vb, lsum=1 not in addu)]
    st = [q.add(g) for g in groups]; st.append(len(q.m))
    sm_half(q, st[0], 3, 1)
    for u in range(3):
        sm_half(q, st[2 * u + 1], u, 0, u in addu)
        sm_half(q, st[2 * u + 2], u, 1, u in addu)
    sm_half(q, st[7], 3, 0)
    vr_ = [vread(vb, slot, th, dt, e) for dt in range(8) for e in range(2)]
    NV = 6 if 0 in cfg.addu else 0
    if 0 in addu: pos = [st[0] + k for k in (1, 3, 5, 5, 7)] + [st[1] + k for k in (1, 5, 8, 8)] + [st[2] + 5]
    else: pos = [st[0] + k for k in (1, 3, 5, 5, 7)] + [st[1] + k for k in (1, 1, 3, 5, 5, 7, 8)] + [st[2] + k for k in (1, 3, 5, 5)]
    for p, r in zip(pos, vr_[16 - len(pos):]): q.put(p, r)
    mid = st[4] - 1
    if j & 1:
        if mode == "loop": q.put(mid, f"s_waitcnt vmcnt({16-cfg.lag if not cfg.bm else (18 if cfg.bm == 3 else 14)-cfg.lag}) lgkmcnt(0)" if not cfg.uni else "UNIWAIT")
        else: q.put(mid, f"WAITVM seg{(j+1)//2}{'k' if j == 29 and cfg.split15 else ''} lgkmcnt(0)")
        q.put(mid, "s_barrier")
    else:
        q.put(mid, "s_waitcnt lgkmcnt(0)")
    kr_ = [kread(kb ^ 1, nslot, nth, kt, ks) for kt in range(2) for ks in range(4)]
    if 1 in addu: pos = [st[4] + 5] + [st[5] + k for k in (1, 1, 3, 5, 5, 7)] + [st[6] + 1]
    else: pos = [st[4] + k for k in (1, 3, 5, 7)] + [st[5] + k for k in (1, 3, 5, 7)]
    for p, r in zip(pos, kr_): q.put(p, r)
    if NV and mode != "final":
        nvr = [vread(vb ^ 1, nslot, nth, dt, e) for dt in range(8) for e in range(2)][:NV]
        for p, r in zip([st[6] + 3, st[6] + 5, st[6] + 5, st[6] + 7, st[7] + 1, st[7] + 1], nvr): q.put(p, r)
        q.put(st[8] - 2, f"s_waitcnt lgkmcnt({NV})")
    else:
        q.put(st[8] - 2 if j != 29 else st[7], "s_waitcnt lgkmcnt(0)")
    if cfg.lds_last:
        cand = [i for i in range(st[0], st[8]) if any(x.startswith("v_cvt") for x in q.g[i]) and any(x.startswith("ds_read") for x in q.g[i])]
        for k in range(cfg.lds_last):
            i = cand[(k * len(cand)) // cfg.lds_last]
            c_ = [x for x in q.g[i] if x.startswith("v_cvt")][0]; r_ = [x for x in q.g[i] if x.startswith("ds_read")][0]
            q.g[i].remove(c_); q.g[i].remove(r_); q.g[i] += ["!" + c_, "!" + r_]
    dpos = [st[0] + 1, st[2] + 1, st[4] + 1, st[6] + 1]
    if cfg.bm:
        assert cfg.lag % 4 == 2
        dpos = {1: [st[4] + 1, st[4] + 5, st[5] + 1, st[5] + 5], 2: [st[4] + 1, st[4] + 3, st[4] + 5, st[4] + 7], 3: [st[2] + 7, st[3] + 1, st[3] + 3, st[3] + 5],
                4: [st[4] + 1, st[4] + 2, st[4] + 3, st[4] + 4]}[cfg.bm]
    for k in range(0 if not cfg.uni else 4, 4):
        gp = 4 * j + 26 + k - cfg.lag
        if mode == "first" and k < 2 and not cfg.bm: continue
        if mode == "final":
            if gp < 128: q.place(piece(cfg, gp, True), [[st[0] + 1, st[0] + 5, st[1] + 1, st[1] + 3][k] if cfg.wsched in (0, 2) else dpos[k]])
            continue
        q.place(piece(cfg, gp, False, cfg.lag < 2), [dpos[k]])
    return st

def rowmax_l(t, t2):
    return [f"v_mov_b32 v{t2}, v{t}", "s_nop 1", f"v_permlane32_swap_b32 v{t}, v{t2}", f"v_max_f32 v{t}, v{t}, v{t2}",
            f"v_mov_b32 v{t2}, v{t}", "s_nop 1", f"v_permlane16_swap_b32 v{t}, v{t2}", f"v_max_f32 v{t}, v{t}, v{t2}"]

def scale_pack(cfg, b0, t, mul, pk):
    o = []
    if pk: o += [f"v_pk_mul_f32 {vr(b0+2*i,2)}, {vr(b0+2*i,2)}, {mul[1]}" for i in range(4)]
    else: o += [f"v_mul_f32 v{b0+i}, {mul[0]}, v{b0+i}" for i in range(8)]
    o += [f"v_cvt_pk_bf16_f32 v{t+i}, v{b0+2*i}, v{b0+2*i+1}" for i in range(4)]
    return o

def gen(cfg):
    if cfg.wsched == 2: UNIT[:] = UNIT2 if not cfg.wv else UNIT3
    if cfg.epark: WBLK[:] = WBLK2
    WBLK.extend([-224, -208, -192, -176][:cfg.R - 16])
    assert 112 + 20 * cfg.DO <= 240 - 16 * (cfg.R - 16)
    a = Asm()
    a("s_cmp_ge_u32 s2, 256")
    a("s_cbranch_scc1 L_end")
    a("s_mov_b32 s35, 0")
    a("L_restart:")
    stamp(a, cfg, "start")
    a("s_load_dwordx4 s[4:7], s[0:1], 0")
    a("s_load_dwordx4 s[44:47], s[0:1], 16")
    a("v_lshrrev_b32 v2, 6, v0")
    a("v_and_b32 v1, 63, v0")
    a("v_readfirstlane_b32 s3, v2")
    a("s_and_b32 s50, s2, 7")
    a("s_lshr_b32 s51, s2, 3")
    a("s_and_b32 s52, s51, 3")
    a("s_lshr_b32 s53, s51, 2")
    a("s_bfe_u32 s28, s2, 0x10000")
    a("s_lshl2_add_u32 s28, s28, s52")
    a("s_lshr_b32 s54, s50, 1")
    a("s_lshl3_add_u32 s29, s54, s53")
    a("s_add_u32 s52, s52, s53")
    a("s_and_b32 s52, s52, 1")
    a(f"s_mul_i32 s32, s52, {cfg.roff}")
    a("s_add_u32 s54, s54, s50")
    a("s_and_b32 s54, s54, 1")
    a("s_lshl1_add_u32 s32, s54, s32")
    if cfg.mapx:
        a("s_mov_b32 s28, s50")
        a("s_mov_b32 s29, s51")
        a("s_mul_i32 s32, s50, 5")
        a("s_lshr_b32 s32, s32, 2")
        if cfg.mapx == 2:
            a("s_and_b32 s52, s51, 1")
            a("s_mul_i32 s52, s52, 5")
            a("s_add_u32 s32, s32, s52")
            a("s_cmp_ge_u32 s32, 10")
            a("s_cselect_b32 s52, 10, 0")
            a("s_sub_u32 s32, s32, s52")
    if cfg.c0same:
        a("s_mov_b32 s30, %d" % (9 << 7))
        a("s_mov_b32 s31, %d" % (9 << 19))
    else:
        a("s_lshl_b32 s30, s32, 7")
        a("s_lshl_b32 s31, s32, 19")
    a("s_lshl_b32 s40, s3, 12")
    a("s_lshl1_add_u32 s36, s40, %d" % XBASE[0][0])
    a("s_add_u32 s39, s40, %d" % WWIN)
    a("v_lshrrev_b32 v3, 4, v1")
    a("v_lshrrev_b32 v4, 3, v1")
    a("v_and_b32 v5, 7, v1")
    a("v_and_b32 v2, 15, v1")
    a("s_mul_i32 s52, s3, %d" % (64 * 1280))
    a("v_mul_u32_u24 v8, 1280, v4")
    a("v_xor_b32 v9, v3, v5")
    a("v_lshlrev_b32 v9, 4, v9")
    a(f"v_add3_u32 v{XDA}, v9, s52, v8")
    a(f"v_xor_b32 v17, 64, v{XDA}")
    for pp in range(1, 8):
        a(f"v_add_u32 v{XDA+pp}, {10240*pp-1024*(pp&3)}, v{17 if pp & 1 else XDA}")
    a("s_lshl_b32 s52, s3, 17")
    a("v_lshlrev_b32 v8, 13, v3")
    a("v_and_b32 v9, 1, v3")
    a("v_lshrrev_b32 v10, 1, v3")
    a("v_lshl_or_b32 v9, v10, 2, v9")
    a("v_xor_b32 v9, v9, v2")
    a("v_lshlrev_b32 v9, 4, v9")
    a(f"v_add3_u32 v{WDA}, v9, s52, v8")
    a(f"v_xor_b32 v17, 128, v{WDA}")
    for pp in range(1, 4):
        a(f"v_add_u32 v{WDA+pp}, {32768*pp-1024*pp}, v{17 if pp >> 1 else WDA}")
    a("s_mul_i32 s52, s28, 307200")
    a("s_lshl_b32 s53, s29, 8")
    a.ext(srd(SX, 4, "s52", 307200)[2:] + srd(SW, 46, "s53", 640 * 8192 - 31 * 256)[2:])
    a("s_waitcnt lgkmcnt(0)")
    stamp(a, cfg, "kernarg")
    a.ext(srd(SX, 4, "s52", 307200)[:2] + srd(SW, 46, "s53", 0)[:2])

    def qstage(c):
        bf = c % 3
        o = [f"s_mov_b32 m0, s{36+bf}"]
        o += [dma(XDA + pp, SX, "s30", 1024 * pp, cfg.xflags) for pp in range(4)]
        o += [f"s_add_u32 m0, s{36+bf}, 4096"]
        o += [dma(XDA + 4 + pp, SX, "s30", 1024 * pp, cfg.xflags) for pp in range(4)]
        o += [f"s_add_u32 m0, s39, {WOFF[bf]}"]
        o += [dma(WDA + pp, SW, "s31", 1024 * pp, cfg.xflags) for pp in range(4)]
        if not (cfg.c0same and c == 0): o += ["s_add_u32 s32, s32, 1", f"s_cmp_eq_u32 s32, {9 if cfg.c0same else 10}", "s_cselect_b32 s32, 0, s32"]
        o += ["s_lshl_b32 s30, s32, 7", "s_lshl_b32 s31, s32, 19"]
        return tag(o, f"c{c}")
    a.ext(with_nop(qstage(0)))
    a("s_load_dwordx2 s[48:49], s[0:1], 56")
    if cfg.cwarm:
        a("s_getpc_b64 s[54:55]")
        a("L_cbase:")
        a("s_lshl2_add_u32 s52, s51, s3")
        a(f"s_mul_i32 s52, s52, {5 if cfg.w3 else 3}")
        a(f"v_min_u32 v18, {4 if cfg.w3 else 2}, v1")
        a("v_add_u32 v18, s52, v18")
        a("v_lshlrev_b32 v18, 7, v18")
        a("v_min_u32 v18, L_exact-L_cbase, v18")
        a("v_mov_b32 v19, s55")
        a("v_add_co_u32 v18, vcc, s54, v18")
        a("v_addc_co_u32 v19, vcc, 0, v19, vcc")
        a("global_load_dword v20, v[18:19], off")
    a("s_mov_b32 s33, s40" if not cfg.uni else "s_lshl_b32 s33, s3, 10")
    a("s_and_b32 s52, s3, 1")
    a("s_lshl_b32 s52, s52, 13")
    a("s_cmp_ge_u32 s3, 2")
    for bf in range(1, 3):
        a(f"s_mov_b32 s53, {XBASE[bf][0]}")
        a(f"s_cselect_b32 s{36+bf}, {XBASE[bf][1]}, s53")
    for bf in range(1, 3):
        a(f"s_add_u32 s{36+bf}, s{36+bf}, s52")
    a("v_bfe_u32 v6, v1, 2, 2")
    a("v_and_b32 v7, 3, v1")
    if cfg.c1first: a.ext(with_nop(qstage(1)))
    a("s_waitcnt lgkmcnt(0)")
    if cfg.sig == "line":
        a("s_lshl_b32 s52, s28, 5")
        a("s_add_u32 s52, s52, s29")
        a("s_lshl_b32 s52, s52, 7")
        a(f"s_add_u32 s52, s52, {FOFF}")
        a("v_mov_b32 v18, s52")
        a("v_mov_b32 v19, 0")
        a("s_mov_b64 exec, 1")
        a("global_store_dword v18, v19, s[48:49] sc1")
        a("s_mov_b64 exec, -1")
        a("v_and_b32 v0, 31, v1")
        a("v_lshlrev_b32 v0, 3, v0")
    a("s_load_dwordx4 s[56:59], s[0:1], 32")
    a("s_lshl_b32 s52, s28, 5")
    a("s_add_u32 s52, s52, s29")
    a("s_lshl_b32 s52, s52, 18")
    a.ext(srd(SK, 6, "s52", KVBYTES))
    a.ext(srd(SV, 44, "s52", KVBYTES))
    a("s_mul_i32 s52, s28, %d" % (15 * 131072))
    a.ext(srd(SO, 48, "s52", 15 * 131072))
    a("s_load_dwordx2 s[46:47], s[0:1], 48")
    a("v_lshlrev_b32 v10, 8, v3")
    if cfg.uni:
        a("s_lshl_b32 s52, s3, 2")
        a("v_add_u32 v8, s52, v3")
        a("v_xor_b32 v9, v8, v2")
        a(f"v_lshl_add_u32 v{KDA}, v9, 4, v10")
        a("v_and_b32 v8, 7, v8")
        a("v_lshlrev_b32 v8, 1, v8")
        a("v_xor_b32 v9, v8, v2")
        a(f"v_lshl_add_u32 v{VDA}, v9, 4, v10")
    else:
        for pp in range(4):
            a(f"v_add_u32 v9, {4*pp}, v3")
            a("v_xor_b32 v9, v9, v2")
            a(f"v_lshl_add_u32 v{KDA+pp}, v9, 4, v10")
        for pp in range(2):
            a(f"v_add_u32 v9, {4*pp}, v3")
            a("v_lshlrev_b32 v9, 1, v9")
            a("v_xor_b32 v9, v9, v2")
            a(f"v_lshl_add_u32 v{VDA+pp}, v9, 4, v10")
    a("v_lshrrev_b32 v9, 1, v2")
    for s in range(2):
        a(f"v_or_b32 v8, {4*s}, v3")
        a("v_xor_b32 v8, v8, v9")
        a("v_lshlrev_b32 v8, 4, v8")
        a("v_lshl_add_u32 v8, v2, 7, v8")
        for bf in range(3):
            a(f"v_add_u32 v{XRA+2*bf+s}, s{36+bf}, v8")
    a("v_lshrrev_b32 v11, 1, v7")
    a("v_and_b32 v12, 1, v7")
    a("v_lshlrev_b32 v12, 3, v12")
    a("v_and_b32 v9, 1, v6")
    a("v_lshrrev_b32 v10, 1, v6")
    a("v_lshl_or_b32 v9, v10, 2, v9")
    a("v_and_b32 v10, 1, v3")
    a("v_lshl_or_b32 v9, v10, 3, v9")
    a("v_lshl_or_b32 v9, v11, 1, v9")
    a("v_lshl_add_u32 v13, v3, 3, v6")
    a("v_lshl_add_u32 v13, v13, 8, v12")
    a(f"v_add_u32 v13, {WWIN}, v13")
    for dt in range(8):
        a(f"v_xor_b32 v8, {4*(dt>>1)+(dt&1)}, v9")
        a(f"v_lshl_add_u32 v{WRA+dt}, v8, 4, v13")
    a("v_lshl_or_b32 v9, v10, 2, v6")
    a("v_lshl_or_b32 v9, v9, 1, v11")
    a("v_lshl_add_u32 v14, v3, 2, v6")
    a("v_lshl_add_u32 v14, v14, 8, v12")
    a("v_add_u32 v14, 65536, v14")
    for dt in range(8):
        a(f"v_xor_b32 v8, {2*dt}, v9")
        a(f"v_lshl_add_u32 v{VRA+dt}, v8, 4, v14")
    for ks in range(4):
        a(f"v_or_b32 v8, {4*ks}, v3")
        a("v_xor_b32 v8, v8, v2")
        a("v_lshlrev_b32 v8, 4, v8")
        a(f"v_lshl_add_u32 v{KRA+ks}, v2, 8, v8")
    for i in range(4):
        a(f"v_mov_b32 v{MTR+i}, 0xff800000")
    a("v_lshlrev_b32 v15, 4, v1")
    a(f"v_and_b32 v8, {cfg.tl-1}, v1")
    a(f"v_lshrrev_b32 v9, {int(math.log2(cfg.tl))}, v1")
    a("v_lshlrev_b32 v9, 14, v9")
    a("v_lshl_add_u32 v219, v8, 7, v9")
    a("v_lshlrev_b32 v9, 1, v3")
    a("v_xor_b32 v9, v9, v5")
    a("v_lshlrev_b32 v9, 4, v9")
    a("v_mul_u32_u24 v8, 1280, v4")
    a("v_add_u32 v8, v8, v9")
    for pp in range(4):
        a(f"v_add_u32 v{WD+pp}, {pp*9216}, v8")
    a("v_lshl_add_u32 v14, v3, 2, v6")
    a("v_bfe_u32 v13, v14, 1, 2")
    a("v_lshl_or_b32 v13, v13, 1, v11")
    a("v_lshl_add_u32 v14, v14, 7, v12")
    a("v_add_u32 v14, s40, v14")
    for nt in range(4):
        a(f"s_add_u32 s53, s3, {nt}")
        a("s_and_b32 s53, s53, 3")
        a("s_lshl_b32 s53, s53, 1")
        a("v_xor_b32 v16, s53, v13")
        a(f"v_lshl_add_u32 v{WRL[0][nt]}, v16, 4, v14")
        a(f"v_add_u32 v{WRL[1][nt]}, 65536, v{WRL[0][nt]}")
        a(f"v_add_u32 v{WRL[2][nt]}, 131072, v{WRL[0][nt]}")
    for i in range(5): a(f"v_add_u32 v{OAL[i]}, {131072*i}, v15")
    a("s_min_u32 s51, s51, 29")
    a("s_cmp_ge_u32 s51, 15")
    a("s_cselect_b32 s52, 1, 0")
    a("s_cselect_b32 s53, 15, 0")
    a("s_sub_u32 s53, s51, s53")
    a("s_and_b32 s43, s50, 6")
    a("s_add_u32 s43, s43, s52")
    a("s_mul_i32 s54, s53, 52")
    a("s_lshr_b32 s54, s54, 8")
    a("s_mul_i32 s41, s54, 5")
    a("s_sub_u32 s53, s53, s41")
    a("s_and_b32 s55, s50, 1")
    a("s_mul_i32 s55, s55, 5")
    a("s_add_u32 s55, s55, s53")
    a("s_mul_i32 s52, s52, 3")
    a("s_add_u32 s41, s54, s52")
    a("s_mul_i32 s41, s41, 43")
    a("s_lshr_b32 s41, s41, 3")
    if cfg.rA:
        a(f"s_mul_i32 s53, s53, {cfg.rA}")
        a("s_add_u32 s41, s41, s53")
    if cfg.map3b:
        a("s_mov_b32 s43, s50")
        a("s_mul_i32 s54, s51, 26")
        a("s_lshr_b32 s54, s54, 8")
        a("s_mul_i32 s52, s54, 10")
        a("s_sub_u32 s55, s51, s52")
        a("s_mul_i32 s41, s54, 11")
        a("s_add_u32 s41, s41, s50")
        a("s_mov_b32 s34, 0")
    a("s_and_b32 s41, s41, 31")
    sc = f32(math.log2(math.e) / math.sqrt(128.0))
    if cfg.wpull:
        a("s_mul_i32 s52, s2, 160")
        a(f"s_mul_i32 s53, s3, {14 if cfg.wpull == 1 else 40}")
        a("s_add_u32 s52, s52, s53")
        a("v_add_u32 v218, s52, v1")
        a("v_lshlrev_b32 v218, 7, v218")
        a("v_mov_b32 v16, 0x7fffff80")
        a(f"v_cmp_gt_u32 vcc, {14 if cfg.wpull == 1 else 40}, v1")
        a("v_cndmask_b32 v255, v16, v218, vcc")
    if cfg.wl2:
        a("s_lshr_b32 s52, s2, 3")
        a("s_lshl_b32 s52, s52, 2")
        a("s_add_u32 s52, s52, s3")
        a("s_mul_i32 s52, s52, %d" % (32 * 1280))
        a("s_and_b32 s53, s50, 1")
        a("s_mul_i32 s53, s53, 640")
        a("s_add_u32 s52, s52, s53")
        a("v_mul_u32_u24 v16, 52, v1")
        a("v_lshrrev_b32 v16, 8, v16")
        a("v_mul_u32_u24 v17, 5, v16")
        a("v_sub_u32 v17, v1, v17")
        a("v_mul_u32_u24 v16, 1280, v16")
        a("v_lshl_add_u32 v16, v17, 7, v16")
        a("v_add_u32 v16, s52, v16")
        a("v_mov_b32 v17, 0x7fffff80")
        a("v_cmp_gt_u32 vcc, 15, v1")
        a("v_cndmask_b32 v255, v17, v16, vcc")
    a(f"s_mov_b32 s44, {sc}")
    a(f"s_mov_b32 s45, {sc}")
    if not cfg.c1first: a.ext(with_nop(qstage(1)))
    stamp(a, cfg, "issued")

    def qreads(c):
        bf = rb = c % 3
        o = []
        for s in range(2):
            o.append(f"ds_read_b128 {XF(rb,s,0)}, v{XRA+2*bf+s}")
        for dt in range(8):
            for s in range(2):
                for e in range(2):
                    o.append(f"ds_read_b64_tr_b16 {WF2(rb,s,dt,e)}, v{WRA+dt} offset:{WOFF[bf]+8192*s+1024*e}")
        for u in range(1, 4):
            for s in range(2):
                o.append(f"ds_read_b128 {XF(rb,s,u)}, v{XRA+2*bf+s} offset:{2048*u}")
        return o
    a("WAITVM c0 lgkmcnt(0)")
    a("s_barrier")
    stamp(a, cfg, "landed")
    r0 = qreads(0)
    if cfg.fast0: a.ext(r0[:14])
    else:
        a.ext(r0)
        a.ext(with_nop(qstage(2)))
    wp = ["s_mov_b32 s4, s56", "s_mov_b32 s5, s57", f"s_mov_b32 s6, {4096*1280}", "s_mov_b32 s7, 0x20000", "buffer_load_dword v218, v255, s[4:7], 0 offen"]
    if cfg.wpull == 2: a.ext(wp)
    a("s_waitcnt lgkmcnt(8)" if cfg.fast0 else "s_waitcnt lgkmcnt(0)")
    if cfg.w3:
        a("s_cmp_eq_u32 s3, 3")
        a("s_cbranch_scc1 L_w3")
        if cfg.prio: a(f"s_setprio {cfg.prio}")
        a("L_sec0:")
    q = Seq()
    per = []
    for c in range(10):
        rb = c % 3
        mf = []
        for u in range(4):
            for dt in range(8):
                d = vr(O_(u, dt), 4)
                for s in range(2):
                    mf.append(f"{MF} {d}, {WF(rb,s,dt)}, {XF(rb,s,u)}, {'0' if c == 0 and s == 0 else d}")
        if cfg.joint and c >= 8:
            mf = []
            for u in (2 * (c - 8), 2 * (c - 8) + 1):
                for dt in range(8):
                    d = vr(O_(u, dt), 4)
                    for cc in (8, 9):
                        for s in range(2): mf.append(f"{MF} {d}, {WF(cc%3,s,dt)}, {XF(cc%3,s,u)}, {d}")
        p0 = q.add(mf); per.append(p0)
        for x in stamp_l(a, cfg, f"q{c+1}"): q.put(p0 + 63, "!" + x)
    if cfg.lazy:
        A = dict(zip(range(1, 10), cfg.lazy))
        FR = {0: 22}
        for n in range(1, 10):
            assert A[n] >= 64 * (n - 2) and A[n] + 26 < 64 * n + 3, n
            q.put(A[n], f"WAITVM c{n}"); q.put(A[n], "s_barrier")
            fast = A[n] + 38 > 64 * n
            for i, r in enumerate(qreads(n)): q.put(A[n] + 1 + (i // 2 if fast else (i * 3) // 4), r)
            FR[n] = min(A[n] + (26 if fast else 36), 64 * n - 1)
        DE = 0
        for n in range(10):
            q.put(FR[n], "s_waitcnt lgkmcnt(0)"); q.put(FR[n], "s_barrier")
            if n + 3 < 10:
                p = max(FR[n] + 2, DE + 6)
                ps = [p + (cfg.bsp * i) // 12 for i in range(12)]
                q.place(qstage(n + 3), ps); DE = ps[-1]
                assert DE < A[n + 3] - 20, n
        BQ = {7: DE - cfg.bsp + 3, 8: FR[7], 9: FR[8], 10: FR[9]}
    else:
        BQ = {n: max(cfg.b1 + cfg.bsp * (n - 1), 64 * (n - 2)) for n in range(1, 10)}
        BQ[10] = BQ[9] + 44
        for n in range(1, 11):
            p = BQ[n]
            q.put(p, f"WAITVM c{n} lgkmcnt(0)" if n < 10 else "s_waitcnt lgkmcnt(0)"); q.put(p, "s_barrier")
            if n < 10:
                for i, r in enumerate(qreads(n)): q.put(p + 1 + (i * 3) // 4, r)
            if n + 2 < 10:
                q.place(qstage(n + 2), [p + 2 + (cfg.bsp * i) // 12 for i in range(12)])
            assert n == 1 or n == 10 or BQ[n + 1] < 64 * n, n
        q.put(63, "s_waitcnt lgkmcnt(0)")
    if cfg.fast0:
        for i, r in enumerate(r0[14:]): q.put(i // 2, r)
        for dt in range(1, 8):
            issued = min(40, 14 + 2 * (2 * dt - 1)); needed = 2 + 4 * (dt + 1)
            q.g[2 * dt - 1].insert(0, f"s_waitcnt lgkmcnt({min(15, issued - needed)})")
        q.g[15].insert(0, "s_waitcnt lgkmcnt(0)")
        q.place(qstage(2), [4 + i + i // 4 for i in range(12)])
    if cfg.wpull >= 3: q.place(wp, [per[cfg.wpull - 3] + 60])
    sw = ["s_mul_i32 s52, s3, %d" % (1024 * 1280), "s_lshl_b32 s53, s55, 7", "s_add_u32 s52, s52, s53"] + srd(SWO, 56, "s52", WOSZ) + \
         ["s_mul_i32 s52, s43, 15", "s_mul_i32 s53, s54, 5", "s_add_u32 s52, s52, s53", "s_lshl_b32 s52, s52, 17", "s_lshl_b32 s53, s3, 15",
          "s_add_u32 s52, s52, s53"] + srd(SOR, 48, "s52", ORSZ)
    if cfg.wpull == 1 or cfg.wl2: sw += ["s_mov_b32 s4, s56", "s_mov_b32 s5, s57", f"s_mov_b32 s6, {4096*1280}", "s_mov_b32 s7, 0x20000", "s_mov_b32 s38, 0"]
    i = per[8] + 2
    k = 0
    while k < len(sw):
        n = 2 if "s_addc" in sw[min(k + 1, len(sw) - 1)] else 1
        for x in sw[k:k + n]: q.put(i, x)
        k += n; i += 2
    p9 = per[9]
    def qepi(u):
        o = []
        for m in range(4):
            t = 16 + 4 * (m & 1)
            o += scale_pack(cfg, O_(u, 2 * m), t, ("s44", "s[44:45]"), cfg.pkmul)
            if m:
                tp = 16 + 4 * ((m - 1) & 1)
                o += [f"v_accvgpr_write_b32 a{Q_(u,m-1)+i}, v{tp+i}" for i in range(4)]
            o += [f"v_permlane16_swap_b32 v{t}, v{t+2}", f"v_permlane16_swap_b32 v{t+1}, v{t+3}"]
        o += [f"v_accvgpr_write_b32 a{Q_(u,3)+i}, v{20+i}" for i in range(4)]
        return o
    q.put(p9 + 31, "WAITVM seg0k" if cfg.split0 else "WAITVM seg0"); q.put(p9 + 31, "s_barrier")
    for x in stamp_l(a, cfg, "b0"): q.put(p9 + 31, "!" + x)
    k0r = [kread(0, 0, 0, kt, ks) for kt in range(2) for ks in range(4)]
    for i, r in enumerate(k0r): q.put(p9 + 32 + 2 * i, r)
    if cfg.joint:
        assert BQ[10] < per[8]
        e = q.stream(qepi(0), per[8] + 32 + 4, cap=cfg.jcap)
        e = q.stream(qepi(1), max(e, p9 + 4), cap=cfg.jcap)
        e = q.stream(qepi(2), max(e, p9 + 32 + 4), cap=cfg.jcap)
    else:
        e = q.stream(qepi(0), p9 + 16 + 4, cap=4)
        e = q.stream(qepi(1), max(e, p9 + 32 + 4), cap=4)
        e = q.stream(qepi(2), max(e, p9 + 48 + 4), cap=4)
    q.put(p9 + 62, "s_waitcnt lgkmcnt(0)")
    lab = q.raw([])
    for x in stamp_l(a, cfg, "g0"): q.put(len(q.m) - 1, "!" + x)
    g0 = q.add(qk(0, 0, True))
    g1 = q.add(qk(1, 0, True))
    g2 = q.add(qk(2, 0, True))
    v0r = [vread(0, 0, 0, dt, e_) for dt in range(8) for e_ in range(2)]
    k1r = [kread(1, 0, 1, kt, ks) for kt in range(2) for ks in range(4)]
    if cfg.split0:
        for i, r in enumerate(k1r): q.put(g0 + i, r)
        q.put(g1 - 1, "!WAITVM seg0"); q.put(g1 - 1, "!s_barrier")
        for i, r in enumerate(v0r): q.put(g1 + i, r)
    else:
        for i, r in enumerate(v0r + k1r): q.put(g0 + i, r)
    e = q.stream(qepi(3), max(e, g0), cap=4)
    def fmax(u):
        s0 = S_(u, 0); t = NM(u)
        o = [f"v_max3_f32 v{t}, v{s0}, v{s0+1}, v{s0+2}", f"v_max3_f32 v{t+1}, v{s0+3}, v{s0+4}, v{s0+5}",
             f"v_max3_f32 v{t}, v{t}, v{s0+6}, v{s0+7}", f"v_max3_f32 v{t}, v{t}, v{t+1}, v{MTR+u}"]
        return o + [x for x in rowmax_l(t, t + 1) if "s_nop" not in x]
    def fexp(u, nexp):
        s0 = S_(u, 0); t = NM(u)
        o = [f"v_sub_f32 v{s0+r}, v{s0+r}, v{t}" for r in range(8)]
        o += [f"v_exp_f32 v{s0+r}, v{s0+r}" for r in range(nexp)]
        o += [f"v_sub_f32 v{NM(u)+i}, 0, v{t}" for i in (1, 2, 3, 0)]
        o += [f"v_cvt_pk_bf16_f32 v{P_(u)+r//2}, v{s0+r}, v{s0+r+1}" for r in range(0, nexp, 2)]
        return o
    ones = [f"v_mov_b32 v{LA[u]}, 0" for u in cfg.addu] + ["v_mov_b32 v27, 0x3f803f80"] + [f"v_accvgpr_write_b32 a{ONES+i}, v27" for i in range(4)]
    e = q.stream(merge(fmax(0), fmax(1), ones), max(e, g2 + 1), cap=4)
    for x in stamp_l(a, cfg, "g3"): q.put(len(q.m) - 1, "!" + x)
    if cfg.epark:
        q.put(len(q.m) - 1, "!s_cmp_lg_u32 s35, 0"); q.put(len(q.m) - 1, "!s_cbranch_scc1 L_exact")
    g3 = q.add(qk(3, 0, True))
    e = q.stream(merge(fexp(0, 8), fmax(2)), g3, cap=6)
    q.raw(["s_waitcnt lgkmcnt(0)"])
    for x in stamp_l(a, cfg, "g4"): q.put(len(q.m) - 1, "!" + x)
    g4 = q.add(pv(0, 0, True))
    e = q.stream(merge(fexp(1, 8), fmax(3)), g4, cap=5)
    for x in stamp_l(a, cfg, "g5"): q.put(len(q.m) - 1, "!" + x)
    g5 = q.add(pv(1, 0, True))
    e = q.stream(merge(fexp(2, 8), fexp(3, 4)), g5, cap=7)
    for x in stamp_l(a, cfg, "tile1"): q.raw([x])
    st1 = attn_tile(cfg, q, 1, "first")
    if cfg.sig == "line":
        arr = ["s_and_b32 s52, s2, 31", "s_lshl_b32 s52, s52, 3", "v_mov_b32 v16, s52", "v_mov_b32 v17, 1", "s_cmp_lg_u32 s3, 0", "s_cbranch_scc1 L_noarr",
               "s_mov_b64 exec, 1", "global_atomic_add v16, v17, s[46:47] sc1 ;@skip", "s_mov_b64 exec, -1", "L_noarr:"]
        for x in arr: q.put(st1[8] - 1, "!" + x)
    kv = []
    NP = 32 - cfg.lag if not cfg.uni else cfg.ipre - 2
    if cfg.bm and not cfg.uni: NP = 30 - cfg.lag
    for gp in range(NP): kv += piece(cfg, gp, False) if not cfg.uni else upiece(cfg, gp)
    if cfg.uni:
        q.place(upiece(cfg, NP), [st1[4] + 1]); q.place(upiece(cfg, NP + 1), [st1[6] + 1])
    pos = []
    i = BQ[7] + cfg.bsp + 3; acc = 4 * cfg.kvpace
    free_at = [0, BQ[8], BQ[8], BQ[8], BQ[9], BQ[9], BQ[9], BQ[10]]
    if cfg.uni: free_at = [BQ[8], BQ[8], BQ[8], BQ[8], BQ[9], BQ[9], BQ[10], BQ[10]]
    while len(pos) < NP:
        ok = q.m[i] and q.m[i - 1] and q.m[i + 1] and (q.slots(i) < 2 or i > (p9 + 16 if not cfg.joint else per[8] + 32)) and i > free_at[len(pos) // 4]
        if ok and acc >= (cfg.kvpace if not cfg.bmi else (4 * cfg.kvpace - 3 * cfg.bmi if len(pos) % 4 == 0 else cfg.bmi)):
            pos.append(i); acc = 0
        acc += max(4, 2 + q.slots(i)) / 4
        i += 1
    assert pos[3 if cfg.split0 else 7] < p9 + 31 and pos[7] < g1 - 2 and pos[-1] < (st1[4] - 2 if cfg.bm != 3 else st1[2] + 3), (pos, p9, st1)
    if "nokv23" in cfg.exp: kv = [("buffer_dummy ;@" + x.split(";@")[1]) if (x.endswith("seg2") or x.endswith("seg3")) else x for x in kv]
    for k, (c, sg) in enumerate(cfg.touch):
        q.put(per[c] + cfg.tpos - 1, f"s_add_u32 s53, s40, {16384*sg}")
        q.put(per[c] + cfg.tpos, f"buffer_load_dword v255, v219, s[{SV if cfg.tkv[k % len(cfg.tkv)] == 'v' else SK}:{(SV if cfg.tkv[k % len(cfg.tkv)] == 'v' else SK)+3}], s53 offen {cfg.tflags}".rstrip())
    q.place(kv, pos)
    q.emit(a)
    a.l = fix(resolve_waits(a.l))
    a("s_mov_b32 s34, 3")
    a(".p2align 6")
    a("L_loop:")
    body0 = len(a.l)
    q = Seq()
    def loopstamp(q, p, pre):
        if cfg.stamps and pre in cfg.only.split(","):
            o = ["s_memtime s[4:5]", "s_memrealtime s[6:7]", "s_waitcnt lgkmcnt(0)"]
            for it in range(3):
                i = len(a.stamps); a.stamps.append(f"{pre}{it}")
                o += [f"s_cmp_eq_u32 s34, {3-it}", f"s_cselect_b32 s{60+4*i}, s4, s{60+4*i}", f"s_cselect_b32 s{62+4*i}, s6, s{62+4*i}"]
            for x in o: q.put(p, x)
    for j in range(2, 10):
        st = attn_tile(cfg, q, j)
        if j == 2: loopstamp(q, st[4] - 1, "ia")
        if j == 6: loopstamp(q, st[4] - 1, "ib")
        if cfg.wl2 and j % 2 == 0:
            q.put(st[3] + 1, f"buffer_load_dword v16, v255, s[4:7], s38 offen {cfg.wl2f}".rstrip())
            q.put(st[3] + 2, f"s_add_u32 s38, s38, {3*1280}")
        if cfg.wpull == 1 and j == 4:
            q.put(st[3] + 1, "buffer_load_dword v16, v255, s[4:7], s38 offen")
            q.put(st[3] + 2, f"s_add_u32 s38, s38, {56*128}")
        if j in (5, 7):
            for x in reversed(stamp_l(a, cfg, f"w{j}a")): q.g[st[4] - 1].insert(0, x)
            for x in stamp_l(a, cfg, f"w{j}b"): q.put(st[4] - 1, x)
        if j == 6:
            for x in reversed(stamp_l(a, cfg, f"d{j}a")): q.g[st[2] + 1].insert(0, x)
            for x in stamp_l(a, cfg, f"d{j}b"): q.put(st[2] + 1, "!" + x)
    if cfg.uni:
        n = len(q.m); cnt = cfg.upi; ps = []
        for k in range(cnt):
            if cfg.ucl:
                p = int((k // cfg.ucl + cfg.uph) * n / (cnt // cfg.ucl)) + 1 if k % cfg.ucl == 0 else ps[-1] + (2 if k & 1 else 3)
                while q.slots(p) >= (2 if k % cfg.ucl == 0 else 3) or any(x.startswith("v_exp") for x in q.g[p]) or "UNIWAIT" in q.g[p] or "UNIWAIT" in q.g[p - 1]: p += 1
            else:
                p = int((k + 0.1) * n / cnt) + 1
                while q.slots(p) >= 2 or "UNIWAIT" in q.g[p] or "UNIWAIT" in q.g[p - 1]: p += 1
            ps.append(p)
        assert ps[-1] < n - 4 and cfg.ipre % 2 == 0 and cnt % 2 == 0
        for k, p in enumerate(ps): q.place(upiece(cfg, k), [p])
        for bi, p in enumerate([i for i in range(n) if "UNIWAIT" in q.g[i]]):
            before = sum(1 for x in ps if x < p)
            m = 2 + bi + 8
            nw = cfg.ipre + 2 * cnt + before - 8 * (m + 1)
            assert cfg.ipre + before <= 8 * (2 + bi - 1 + 4) and nw >= 4, (bi, nw)
            q.g[p][q.g[p].index("UNIWAIT")] = f"s_waitcnt vmcnt({nw}) lgkmcnt(0)"
        IEND = cfg.ipre + 3 * cnt
    if cfg.pad:
        for i in range(0, len(q.m), cfg.pad): q.put(i, "!s_nop 3")
    if "lnobar" in cfg.exp: q.g = [[x for x in gp if x != "s_barrier"] for gp in q.g]
    if "lnodma" in cfg.exp: q.g = [[x for x in gp if kind(x.lstrip("!")) != "vm"] for gp in q.g]
    if "lnods" in cfg.exp: q.g = [[x for x in gp if kind(x.lstrip("!")) != "ds"] for gp in q.g]
    if "lnowait" in cfg.exp: q.g = [[x for x in gp if not (x.startswith("s_waitcnt") and "s_cmp_eq_u32 s34, 3" not in gp)] for gp in q.g]
    if "lnocvt" in cfg.exp: q.g = [[x for x in gp if not x.startswith("v_cvt")] for gp in q.g]
    q.put(-3, "s_sub_u32 s34, s34, 1")
    q.put(-1, "s_cmp_lg_u32 s34, 0"); q.put(-1, "s_cbranch_scc1 L_loop")
    q.emit(a)
    a.l = a.l[:body0] + [x.split(" ;@")[0] for x in a.l[body0:]]
    body = a.l[body0:]
    b = Asm(); b.stamps = a.stamps
    if cfg.uni:
        for gp in range(104, IEND): b(f"buffer_dummy ;@seg{gp//8}" + ("k" if gp >= 120 and gp % 2 == 0 else ""))
    else:
        for gp in range(104, 130 - cfg.lag): b(f"buffer_dummy ;@seg{gp//8}" + ("k" if gp % 8 < 4 else ""))
    q = Seq()
    if "nowo" in cfg.exp: b(f"s_mov_b32 s{SWO+2}, 0")
    for x in stamp_l(b, cfg, "t26"): b(x)
    sts = {j: attn_tile(cfg, q, j, "final") for j in range(26, 30)}
    if cfg.uni:
        rest = [(0, n_) for n_ in range(IEND // 2, 64)] + [(1, n_) for n_ in range(IEND // 2, 64)]
        p = sts[26][0] + 2
        for kv_, n_ in rest:
            d = 4096 * (n_ - IEND // 2)
            lst = [f"s_add_u32 s53, s33, {d}", f"s_and_b32 m0, s53, 0xffff"] + (["s_or_b32 m0, m0, 0x10000"] if kv_ else []) + \
                  [dma(VDA if kv_ else KDA, SV if kv_ else SK, "s53", 0, cfg.kvflags) + f" ;@seg{n_>>2}" + ("k" if not kv_ and n_ >= 60 else "")]
            pp_ = max(p, sts[26][0] + 3)
            while q.slots(pp_) >= 2 and not cfg.ucl: pp_ += 1
            q.place(lst, [pp_]); p = max(p + cfg.urest, pp_ + (5 if not cfg.ucl else (3 if not kv_ and n_ < 63 else 4))); KVEND = pp_
    def wpos(st, half):
        return [st[4*half] + 1, st[4*half+1] + 8 if half == 0 else st[5] + 1, st[4*half+2] + (7 if half == 0 else 1), st[4*half+3] + 1]
    if cfg.wsched == 0:
        for j, (t0, t1) in {26: (0, 1), 27: (2, 3), 28: (4, 5), 29: (10, 6)}.items():
            st = sts[j]
            q.place(wdma(cfg, t0), [st[1] + 8, st[2] + 7, st[3] + 1, st[3] + 5])
            q.place(wdma(cfg, t1), [st[5] + 8, st[6] + 1, st[6] + 5, st[7] + 5])
    elif cfg.wsched >= 3:
        pass
    elif cfg.wsched == 2:
        st = sts[26]
        if cfg.uni and cfg.ucl:
            assert KVEND < st[4] - 3
            q.place(wdma(cfg, 0), [st[4] + 1, st[5] + 1, st[5] + 8, st[7] + 1])
        elif cfg.uni:
            st = sts[27]
            assert KVEND < st[0] - 6
            q.place(wdma(cfg, 0), [st[0] + 1, st[1] + 3, st[2] + 1, st[3] + 1])
            q.place(wdma(cfg, 1), [st[4] + 1, st[5] + 3, st[6] + 1, st[7] + 1])
            st = sts[28]
            q.place(wdma(cfg, 2), [st[0] + 1, st[1] + 1, st[1] + 8, st[2] + 5])
            q.place(wdma(cfg, 5), [st[3] + 3, st[3] + 5, st[3] + 7, st[4] + 1])
            q.place(wdma(cfg, 6), [st[5] + 8, st[6] + 1, st[6] + 5, st[7] + 5])
        else: q.place(wdma(cfg, 0), [st[2] + 7, st[4] + 1, st[5] + 8, st[7] + 1])
        if cfg.wv:
            st = sts[29]
            q.place(wdma(cfg, 6), [st[0] + 5, st[1] + 8, st[2] + 7, st[3] + 5])
            q.place(wdma(cfg, 4), [st[4] + 5, st[4] + 7, st[5] + 3, st[5] + 7])
            q.place(wdma(cfg, 7), [st[6] + 5, st[6] + 7, st[7] + 3, st[7] + 5])
        for j, (t0, t1) in (({27: (1, 5), 28: (2, 6), 29: (3, 7)} if not cfg.wv else {27: (1, 5), 28: (2, 3)}) if not cfg.uni or cfg.ucl else {29: (3, 7)}).items():
            st = sts[j]
            q.place(wdma(cfg, t0), [st[0] + 5, st[1] + 8, st[2] + 7, st[3] + 5])
            q.place(wdma(cfg, t1), [st[5] + 8, st[6] + 1, st[6] + 5, st[7] + 5])
    else:
        st = sts[27]
        q.place(wdma(cfg, 0), [st[5] + 8, st[6] + 1, st[6] + 5, st[7] + 5])
        st = sts[28]
        q.place(wdma(cfg, 1), [st[0] + 5, st[0] + 7, st[1] + 1, st[1] + 3])
        q.place(wdma(cfg, 2), [st[2] + 1, st[2] + 7, st[3] + 1, st[3] + 5])
        q.place(wdma(cfg, 3), [st[5] + 8, st[6] + 1, st[6] + 5, st[7] + 5])
        st = sts[29]
        q.place(wdma(cfg, 4), [st[0] + 5, st[0] + 7, st[1] + 1, st[1] + 3])
        q.place(wdma(cfg, 5), [st[2] + 1, st[2] + 3, st[2] + 5, st[2] + 7])
        q.place(wdma(cfg, 10), [st[3] + 5, st[3] + 7, st[4] + 1, st[4] + 3])
        q.place(wdma(cfg, 6), [st[5] + 8, st[6] + 1, st[6] + 5, st[7] + 5])
    if cfg.sig == "line": q.put(sts[26][3] + 1, "global_load_dword v255, v0, s[46:47] sc1 ;@arr")
    if cfg.tlb:
        so = ["s_mul_i32 s52, s43, 240", "s_mul_i32 s53, s54, 80", "s_add_u32 s52, s52, s53", "s_mul_i32 s52, s52, 1280", "s_lshl_b32 s53, s55, 7", "s_add_u32 s52, s52, s53"]
        st = sts[27]
        for k, x in enumerate(so): q.g[st[4] + 2 + k].insert(0, x)
        sd = srd(SOUT, 58, "s52", 79 * 1280 + 128)
        q.g[st[4] + 8][0:0] = sd[:2]; q.g[st[5]][0:0] = sd[2:]
        q.put(st[5] + 1, f"buffer_load_dword v16, off, s[{SOUT}:{SOUT+3}], 0")
        q.put(st[5] + 3, f"buffer_load_dword v16, off, s[{SO}:{SO+3}], 0")
        q.put(st[5] + 5, f"buffer_load_dword v16, off, s[{SOR}:{SOR+3}], 0")
    if cfg.wsched < 3:
        st = sts[28]
        q.g[st[5] + 8].insert(0, "WAITVM w0")
        q.g[sts[29][4]].insert(0, "WAITVM w1")
        for p, r in zip([st[5] + 8, st[6] + 1, st[6] + 3, st[6] + 5, st[6] + 7, st[7] + 1, st[7] + 1, st[7] + 3], wreads(0)): q.put(p, r)
        k = q.g[st[8] - 2].index("s_waitcnt lgkmcnt(0)"); q.g[st[8] - 2][k] = "s_waitcnt lgkmcnt(8)"
        st = sts[29]
        q.put(st[1] + 7, "s_waitcnt lgkmcnt(10)")
        for p, r in zip([st[4] + 1, st[4] + 5, st[5] + 1, st[5] + 5, st[5] + 8, st[6] + 1, st[6] + 3, st[6] + 5], wreads(1)): q.put(p, r)
        k = q.g[st[7]].index("s_waitcnt lgkmcnt(0)"); q.g[st[7]][k] = "s_waitcnt lgkmcnt(4)"
    st = sts[29]
    for p, r in zip([st[7] + k for k in (1, 1, 3, 5, 7, 8, 8)] + [st[8]], [kread(1, 3, 1, kt, ks) for kt in range(2) for ks in range(4)]):
        if p < st[8]: q.put(p, r)
        else: lastk = r
    for x in stamp_l(b, cfg, "t30"): q.put(len(q.m) - 1, "!" + x)
    if cfg.w3: q.put(len(q.m) - 1, "!L_sec1:")
    job = lambda k: (k >> 1, k & 1, k & 3)
    F = []
    for k in range(8):
        u, tb, sl = job(k)
        F.append(q.add(qk(u, tb, sl=sl)))
        if k < 2: F.append(q.add(pv(2 + k, 1)))
        else:
            u, tb, sl = job(k - 2); F.append(q.add(pv(u, tb, sl=sl)))
    for k in (6, 7):
        u, tb, sl = job(k); F.append(q.add(pv(u, tb, sl=sl)))
    F.append(len(q.m))
    sm_half(q, F[0], 3, 1)
    for k in range(8):
        sm_half(q, F[2 * k + 1], k & 3, 0); sm_half(q, F[2 * k + 2], k & 3, 1)
    q.put(F[0] + 1, lastk)
    v30 = [vread(0, 3, 0, dt, e) for dt in range(8) for e in range(2)]
    v31 = [vread(1, 3, 1, dt, e) for dt in range(8) for e in range(2)]
    if not cfg.split15:
        for p, r in zip([F[0] + k for k in (1, 3, 5, 5, 7)] + [F[1] + k for k in (1, 1, 3, 5, 5, 7)] + [F[2] + k for k in (1, 1, 3, 5, 5)], v30): q.put(p, r)
        q.put(F[1] + 8, "s_waitcnt lgkmcnt(10)")
        for p, r in zip([F[4] + k for k in (1, 1, 3, 5, 5, 7)] + [F[5] + k for k in (1, 1, 3, 5, 5, 7, 8, 8)] + [F[6] + k for k in (1, 1)], v31): q.put(p, r)
        q.put(F[4], "s_waitcnt lgkmcnt(0)")
        q.place(wdma(cfg, 11), [F[2] + 7, F[3] + 1, F[3] + 3, F[3] + 5])
        q.place(wdma(cfg, 7), [F[5] + 3, F[5] + 7, F[6] + 3, F[6] + 5])
    else:
        q.put(F[1] + 8, "WAITVM seg15 lgkmcnt(0)"); q.put(F[1] + 8, "s_barrier")
        for p, r in zip([F[2] + k for k in (1, 1, 3, 5, 5, 7)] + [F[3] + k for k in (1, 1, 3, 5, 5, 7, 8, 8)] + [F[4] + k for k in (1, 1)], v30): q.put(p, r)
        for p, r in zip([F[4] + k for k in (3, 5, 5, 7)] + [F[5] + k for k in (1, 1, 3, 5, 5, 7, 8, 8)] + [F[6] + k for k in (1, 1, 3, 3)], v31): q.put(p, r)
        q.put(F[5] - 1, "s_waitcnt lgkmcnt(3)")
        if cfg.wsched >= 3:
            pass
        elif cfg.wv:
            q.place(wdma(cfg, 10), [F[0] + 5, F[0] + 7, F[1] + 3, F[1] + 7] if cfg.wv == 1 else [F[2] + 4, F[2] + 6, F[3], F[3] + 2])
            q.place(wdma(cfg, 11), [F[4], F[4] + 2, F[4] + 4, F[4] + 6])
        elif cfg.wsched == 2:
            q.place(wdma(cfg, 4), [F[0] + 5, F[0] + 7, F[1] + 3, F[1] + 7])
            q.place(wdma(cfg, 10), [F[2] + 4, F[2] + 6, F[3], F[3] + 2])
            q.place(wdma(cfg, 11), [F[4], F[4] + 2, F[4] + 4, F[4] + 6])
        else:
            q.place(wdma(cfg, 11), [F[0] + 5, F[0] + 7, F[1] + 1, F[1] + 3])
            q.place(wdma(cfg, 7), [F[2], F[2] + 4, F[3] + 2, F[3] + 6])
    q.put(F[7] - 1, "s_waitcnt lgkmcnt(0)"); q.put(F[7] - 1, "s_barrier")
    issued = set(range(12))
    if cfg.wsched < 3:
        q.place(wdma(cfg, 8), [F[7] + 5, F[7] + 7, F[7] + 8, F[8] + 1])
        q.place(wdma(cfg, 9), [F[8] + 7, F[9] + 1, F[9] + 3, F[9] + 5])
    else:
        issued = set()
        free = {0: 0, 4: 0, 8: 0, 9: 0, 1: sts[27][4], 5: sts[27][4], 2: sts[29][4], 6: sts[29][4], 3: F[7], 7: F[7]}
        p = sts[26][4] + 1 + cfg.wdelay
        for t in range(cfg.wn):
            sp = cfg.wp if t < 5 else cfg.wp2
            p = max(p, free[UNIT[t]] + 6)
            ps = []
            for k in range(4):
                pp_ = p
                while t < 5 and q.slots(pp_) >= 2: pp_ += 1
                ps.append(pp_); p = max(p + sp, pp_ + (1 if k < 3 else 6))
            assert ps[-1] < F[18], (t, ps)
            q.place(wdma(cfg, t), ps); issued.add(t)
    if "nost" in cfg.exp: q.g[F[4]].insert(0, f"s_mov_b32 s{SO+2}, 0")
    def onorm(u, store=True):
        o = [f"v_accvgpr_read_b32 v16, a{L_(u)}"]
        if u in cfg.addu:
            t = LA[u]
            o += [f"v_mov_b32 v17, v{t}", f"v_permlane32_swap_b32 v{t}, v17", f"v_add_f32 v{t}, v{t}, v17",
                  f"v_mov_b32 v17, v{t}", f"v_permlane16_swap_b32 v{t}, v17", f"v_add_f32 v{t}, v{t}, v17", f"v_add_f32 v16, v16, v{t}"]
        o += ["v_cmp_ngt_f32 vcc, s36, v16", "v_rcp_f32 v16, v16", "s_or_b64 s[50:51], s[50:51], vcc", "v_mov_b32 v17, v16"]
        for m in range(4):
            t = O_(u, 0) + 4 * m
            o += scale_pack(cfg, O_(u, 2 * m), t, ("v16", "v[16:17]"), cfg.opk == 1 or (cfg.opk == 2 and u == 3))
            if store: o += ostore(u)[m:m + 1]
        if store: o += ostore(u)[4:]
        return o
    def ostore(u):
        return [f"buffer_store_dwordx4 {vr(O_(u,0)+4*m,4)}, v15, s[{SO}:{SO+3}], s30 offen offset:{1024*m} {cfg.oflags}".rstrip() + " ;@ost" for m in range(4)] + ["s_add_u32 s30, s30, 131072"]
    for k, x in enumerate([f"s_mov_b32 s36, {f32(cfg.lthr)}", "s_mov_b64 s[50:51], 0", "s_lshl_b32 s30, s3, 19", "s_lshl_b32 s31, s29, 12", "s_add_u32 s30, s30, s31"]):
        q.g[F[4] + 2 + k].insert(0, x)
    for k in (2, 4, 6, 8, 10, 12, 14, 16):
        for x in stamp_l(b, cfg, f"F{k}"): q.put(F[k] - 1, "!" + x)
    if cfg.epark:
        def epark(t, p0, refill_at):
            q.g[p0].insert(0, f"WAITVM w{t}")
            for k, r in enumerate(wreads(t)): q.put(p0 + 2 * (k // 2), r)
            if refill_at:
                q.place(wdma(cfg, t + 10), refill_at)
                q.g[refill_at[0]].insert(0, f"WAITLG p{t}")
        epark(2, F[7] + 1, [F[10] + 3, F[10] + 5, F[10] + 7, F[11] + 1])
        epark(3, F[9] + 1, [F[11] + 7, F[11] + 8, F[12] + 1, F[12] + 3])
        epark(5, F[11] + 2, [F[13] + 1, F[13] + 3, F[13] + 5, F[13] + 7])
        epark(6, F[13] + 2, [F[14] + 5, F[14] + 7, F[15] + 1, F[15] + 3])
        epark(7, F[14] + 1, [F[16] + 1, F[16] + 3, F[16] + 5, F[16] + 7])
        epark(4, F[15] + 2, [F[17] + 5, F[17] + 6, F[17] + 7, F[17] + 8])
        epark(8, F[16] + 2, None)
        epark(9, F[17] + 1, None)
    if cfg.fsig:
        for t, p0 in ((2, F[13] + 2), (3, F[14] + 1), (4, F[15] + 2), (5, F[16] + 1)):
            q.g[p0].insert(0, f"WAITVM w{t}")
            for k, r in enumerate(wreads(t)): q.put(p0 + 2 * (k // 2), r)
    if cfg.early == 1:
        e = q.stream(onorm(0), F[8] + 4, cap=cfg.ncap)
        e = q.stream(onorm(1), max(e, F[12] + 4), cap=cfg.ncap)
        e = q.stream(onorm(2), max(e, F[16] + 4), cap=cfg.ncap + 2)
    if cfg.early >= 2:
        e = q.stream(onorm(0, False), F[8] + 4, cap=cfg.ncap)
        e = q.stream(onorm(1, False), max(e, F[12] + 4), cap=cfg.ncap)
        e = q.stream(onorm(2, False), max(e, F[16] + 4), cap=cfg.ncap + 2)
        if cfg.early == 3:
            for k, x in enumerate(ostore(0) + ostore(1)): q.put(min(F[16] + 8 + k, F[18] - 1), x if kind(x) == "vm" else "!" + x)
    q.emit(b)
    if cfg.early == 2: b.ext(ostore(0) + ostore(1) + ostore(2))
    if cfg.early == 3: b.ext(ostore(2))
    if not cfg.early: b.ext(onorm(0) + onorm(1) + onorm(2))
    stamp(b, cfg, "loopend")
    if "nowo" in cfg.exp: b(f"s_mov_b32 s{SWO+2}, {WOSZ}")
    def park(t): return [f"WAITVM w{t}"] + wreads(t)
    def refill(t): return with_nop(wdma(cfg, t + 10))
    DU = UNIT[9 if cfg.epark else 2]
    if cfg.fsig:
        on3 = onorm(3)
        k3 = on3.index("s_or_b64 s[50:51], s[50:51], vcc") + 1
        b.ext(on3[:k3])
        if cfg.force_fb: b("s_mov_b64 s[50:51], -1")
        b("s_cmp_lg_u64 s[50:51], 0")
        b("s_cselect_b32 s52, 1, 0")
        b(f"s_add_u32 s53, s40, {16384*DU}")
        b("v_mov_b32 v20, s52")
        b("v_mov_b32 v21, s53")
        b("WAITLG p2")
        b("ds_write_b32 v21, v20")
        b.ext(on3[k3:])
        stamp(b, cfg, "stored")
        b("v_and_b32 v18, 3, v1")
        b("v_lshlrev_b32 v18, 12, v18")
        b(f"v_add_u32 v18, {16384*DU}, v18")
        b("s_waitcnt lgkmcnt(0)")
        b("s_barrier")
        b("ds_read_b32 v20, v18")
        b.ext(refill(3) + refill(4))
        b("s_waitcnt lgkmcnt(0)")
        b("v_cmp_ne_u32 vcc, 0, v20")
        b("s_cmp_eq_u32 s35, 0")
        b("s_cselect_b64 s[52:53], vcc, 0")
        b("s_cmp_lg_u64 s[52:53], 0")
        b("s_cbranch_scc1 L_exact")
        if cfg.fsig == 2: b.ext(park(6) + park(7))
    else:
        if cfg.wsched >= 3:
            DU = UNIT[0] if cfg.wn else UNIT[9]
            late = [t for t in range(10) if t not in issued]
            for t in late[:3]:
                if UNIT[t] != DU: b.ext(with_nop(wdma(cfg, t))); issued.add(t)
            if cfg.wn: b.ext(park(0))
        elif cfg.epark: b.ext(park(10) + park(11))
        else: b.ext(park(2) + park(3))
        b.ext(onorm(3))
        stamp(b, cfg, "stored")
        if cfg.force_fb: b("s_mov_b64 s[50:51], -1")
        b("s_cmp_lg_u64 s[50:51], 0")
        b("s_cselect_b32 s52, 1, 0")
        b(f"s_add_u32 s53, s40, {16384*DU}")
        b("v_mov_b32 v16, s52")
        b("v_mov_b32 v17, s53")
        b("v_and_b32 v18, 3, v1")
        b("v_lshlrev_b32 v18, 12, v18")
        b(f"v_add_u32 v18, {16384*DU}, v18")
        b("s_waitcnt lgkmcnt(0)")
        b("ds_write_b32 v17, v16")
        if cfg.wsched >= 3: pass
        elif cfg.epark: b.ext(refill(8) + park(12) + park(13))
        else: b.ext(refill(3) + park(4) + park(5))
        b("s_waitcnt lgkmcnt(0)")
        b("s_barrier")
        b("ds_read_b32 v20, v18")
        parked = [0] if cfg.wsched >= 3 and cfg.wn else []
        if cfg.wsched >= 3:
            for t in range(1, min(cfg.wn, 6)): b.ext(park(t)); parked.append(t)
        elif cfg.epark: b.ext(refill(10))
        else: b.ext(refill(4) + park(6) + park(7))
        b("s_waitcnt lgkmcnt(0)")
        b("v_cmp_ne_u32 vcc, 0, v20")
        b("s_cmp_eq_u32 s35, 0")
        b("s_cselect_b64 s[52:53], vcc, 0")
        b("s_cmp_lg_u64 s[52:53], 0")
        b("s_cbranch_scc1 L_redo" if cfg.epark else "s_cbranch_scc1 L_exact")
        if not cfg.sigfirst: b.ext(park(8) + park(9) + park(10) + park(11))
    if cfg.sig == "line":
        b("s_lshl_b32 s52, s28, 5")
        b("s_add_u32 s52, s52, s29")
        b("s_lshl_b32 s52, s52, 7")
        b(f"s_add_u32 s52, s52, {FOFF}")
    else:
        b("s_lshl_b32 s52, s28, 2")
        b("s_lshr_b32 s53, s29, 3")
        b("s_add_u32 s52, s52, s53")
        b("s_lshl_b32 s52, s52, 3")
    b("v_mov_b32 v16, s52")
    b("v_mov_b32 v17, 1")
    if cfg.wsched >= 3:
        for t in parked[1:3]: b.ext(refill(t)); issued.add(t + 10)
    elif cfg.epark: b.ext(refill(11))
    elif cfg.pre5: b.ext(refill(5))
    b("WAITVM ost")
    b("s_barrier")
    b("s_cmp_lg_u32 s3, 0")
    b("s_cbranch_scc1 L_nosig")
    b("s_mov_b64 exec, 1")
    if cfg.sig == "line": b("global_store_dword v16, v17, s[48:49] sc1 ;@skip")
    else: b("global_atomic_add v16, v17, s[46:47] sc1 ;@skip")
    b("s_mov_b64 exec, -1")
    b("L_nosig:")
    stamp(b, cfg, "signaled")
    b("s_lshr_b32 s52, s2, 3")
    b("s_cmp_ge_u32 s52, 30")
    b("s_cbranch_scc1 L_fin")
    if cfg.wsched >= 3:
        for t in range(10):
            if t not in issued: b.ext(with_nop(wdma(cfg, t))); issued.add(t)
        for t in parked:
            if t + 10 not in issued: b.ext(refill(t)); issued.add(t + 10)
        prev = None
        for t in range(12):
            if t in parked: continue
            b.ext(park(t))
            if prev is not None: b(f"WAITLG p{prev}"); b.ext(refill(prev))
            prev = t
        b("s_waitcnt lgkmcnt(0)")
        b.ext(refill(prev))
    elif cfg.epark:
        b.ext(refill(9) + refill(12))
    elif cfg.fsig:
        b.ext(refill(2) + ([] if cfg.fsig == 2 else park(6) + park(7)) + park(8) + park(9))
        b("WAITLG p7")
        b.ext(refill(6) + park(10) + park(11) + refill(7))
        b("s_waitcnt lgkmcnt(0)")
        for t in range(8, 12): b.ext(refill(t))
    elif cfg.sigfirst:
        b.ext(refill(2) + ([] if cfg.pre5 else refill(5)) + park(8) + park(9) + refill(6) + park(10) + park(11) + refill(7))
        b("s_waitcnt lgkmcnt(0)")
        for t in range(8, 12): b.ext(refill(t))
    else:
        b("s_waitcnt lgkmcnt(0)")
        b.ext(refill(2))
        for t in range(5, 12): b.ext(refill(t))
    b("s_lshl_b32 s52, s43, 2")
    b("s_add_u32 s52, s52, s3")
    if cfg.sig == "line":
        b("s_lshl_b32 s52, s52, 10")
        b(f"s_add_u32 s52, s52, {FOFF}")
        b("v_and_b32 v16, 7, v1")
        b("v_lshlrev_b32 v16, 7, v16")
        b("v_add_u32 v16, s52, v16")
        pbase = "s[48:49]"
    else:
        b("s_lshl_b32 s52, s52, 3")
        b("v_mov_b32 v16, s52")
        pbase = "s[46:47]"
    prev = 13 if cfg.epark else None
    for t in range(14 if cfg.epark else 12, cfg.R):
        if cfg.epoll and t == max(cfg.epoll, 14 if cfg.epark else 0): b(f"global_load_dword v17, v16, {pbase} sc1 ;@ep")
        b.ext(park(t))
        if prev is not None and prev + 10 < cfg.X:
            b("s_waitcnt lgkmcnt(8)")
            b.ext(refill(prev))
        prev = t
    b("s_waitcnt lgkmcnt(0)")
    if prev + 10 < cfg.X: b.ext(refill(prev))
    stamp(b, cfg, "parked")
    b("s_mov_b32 s34, 0x100000")
    want = 1 if cfg.sig == "line" else 8
    cmpi = "v_cmp_ne_u32 vcc, 1, v17" if cfg.sig == "line" else "v_cmp_gt_u32 vcc, 8, v17"
    if cfg.sig == "line":
        b("WAITVM arr")
        b("v_cmp_gt_u32 vcc, 8, v255")
        b("s_cbranch_vccz L_cleared")
        b("L_wclr:")
        b("global_load_dword v255, v0, s[46:47] sc1 ;@skip")
        b("s_waitcnt vmcnt(0)")
        b("v_cmp_gt_u32 vcc, 8, v255")
        b("s_sub_u32 s34, s34, 1")
        b("s_cselect_b64 vcc, 0, vcc")
        b("s_cbranch_vccnz L_wclr")
        b("s_branch L_poll")
        b("L_cleared:")
    if cfg.epoll:
        b("WAITVM ep")
        b(cmpi)
        b("s_cbranch_vccz L_ready")
    b("L_poll:")
    b(f"global_load_dword v17, v16, {pbase} sc1")
    b("s_waitcnt vmcnt(0)")
    b(cmpi)
    b("s_sub_u32 s34, s34, 1")
    b("s_cselect_b64 vcc, 0, vcc")
    b("s_cbranch_vccnz L_poll")
    b("L_ready:")
    stamp(b, cfg, "polled")
    worder = [x.split(";@")[1] for x in b.l if ";@w" in x and kind(x) == "vm"]
    check_setup(b.l, "tail")
    a.l += fix(resolve_waits(b.l))
    c = Asm(); c.stamps = a.stamps
    for t_ in worder: c(f"buffer_dummy ;@{t_}")
    ACC = lambda i, nt: 32 + 16 * i + 4 * nt
    OFB = [112, 132, 152, 172, 192]
    OF = lambda t, i: OFB[t % cfg.DO] + 4 * i
    def oload(t):
        return [x + f" ;@o{t}" for x in [f"s_add_u32 s30, s41, {t}", "s_lshl_b32 s30, s30, 10", "s_and_b32 s30, s30, 0x7fff"]] + \
            tag([f"buffer_load_dwordx4 {vr(OF(t,i),4)}, v{OAL[i]}, s[{SOR}:{SOR+3}], s30 offen {cfg.orflags}".rstrip() for i in range(5)], f"o{t}")
    for t in range(cfg.DO - 1): c.ext(oload(t))
    if not cfg.tlb:
        c("s_mul_i32 s52, s43, 240")
        c("s_mul_i32 s53, s54, 80")
        c("s_add_u32 s52, s52, s53")
        c("s_mul_i32 s52, s52, 1280")
        c("s_lshl_b32 s53, s55, 7")
        c("s_add_u32 s52, s52, s53")
        c.ext(srd(SOUT, 58, "s52", 79 * 1280 + 128))
    for j in range(1, 4):
        c(f"s_add_u32 s52, s3, {j}")
        c("s_and_b32 s52, s52, 3")
        c("s_mul_i32 s52, s52, 15360")
        c(f"v_add_u32 v{240+j}, s52, v15")
    c("s_mul_i32 s52, s3, 15360")
    c("v_add_u32 v240, s52, v15")
    c("v_mul_u32_u24 v244, 1280, v2")
    c("v_lshl_add_u32 v244, v3, 3, v244")
    nextw = cfg.X
    q = Seq()
    NL = cfg.NL
    for t in range(32 - NL):
        mf = []
        for i in range(5):
            for nt in range(4):
                d = vr(ACC(i, nt), 4)
                mf.append(f"{MF} {d}, {WS(t,nt)}, {vr(OF(t,i),4)}, {'0' if t == 0 else d}")
        q.raw([f"WAITVM o{t} lgkmcnt(0)"] + (stamp_l(c, cfg, f"p{t}") if t in (1, 4, 8, 16, 24) else []))
        g = q.add(mf)
        if t + cfg.DO - 1 < 32: q.place(oload(t + cfg.DO - 1), [g + 4, g + 6, g + 9, g + 12, g + 15])
        tr = t + cfg.R - 1
        if t >= 1 and tr < 32:
            q.g[g].insert(0, f"WAITVM w{tr}")
            for k, r in enumerate(wreads(tr)): q.put(g + 1 + k, r)
        if nextw < 32 and nextw - 10 <= t + cfg.R - 2 and (nextw - cfg.X) * cfg.wev <= t:
            q.place(wdma(cfg, nextw), [g + 10, g + 13, g + 16, g + 18])
            nextw += 1
        if t == 20: q.put(g + 19, "s_barrier")
    assert nextw == 32
    q.raw([f"WAITVM o{32-NL} lgkmcnt(0)"])
    wr = lambda i, j: f"ds_write_b128 v{240+j}, {vr(ACC(i,j),4)} offset:{5120*(j-1)+1024*i}"
    for i in range(5):
        mf = []
        for j in (1, 2, 3, 0):
            d = vr(ACC(i, j), 4)
            for t in range(32 - NL, 32):
                mf.append(f"{MF} {d}, {WS(t,j)}, {vr(OF(t,i),4)}, {d}")
        g = q.add(mf)
        if i == 0:
            for k in range(1, NL): q.g[g + k - 1].append(f"!WAITVM o{32-NL+k}")
        else:
            for j in range(1, 4): q.put(g + 2 + NL * (j - 1), wr(i - 1, j))
    RB = lambda i: 112 + 12 * i if i < 3 else 192 + 12 * (i - 3)
    rd = lambda i: [f"ds_read_b128 {vr(RB(i)+4*j,4)}, v240 offset:{5120*j+1024*i} ;@r{i}" for j in range(3)]
    def fin(i):
        bb = RB(i); ac = ACC(i, 0); o = [f"WAITLG r{i}"]
        for r in range(0, 4, 2):
            o += [f"v_pk_add_f32 {vr(ac+r,2)}, {vr(ac+r,2)}, {vr(bb+r,2)}", f"v_pk_add_f32 {vr(bb+4+r,2)}, {vr(bb+4+r,2)}, {vr(bb+8+r,2)}"]
        for r in range(0, 4, 2):
            o += [f"v_pk_add_f32 {vr(ac+r,2)}, {vr(ac+r,2)}, {vr(bb+4+r,2)}"]
        o += [f"v_cvt_pk_bf16_f32 v{ac}, v{ac}, v{ac+1}", f"v_cvt_pk_bf16_f32 v{ac+1}, v{ac+2}, v{ac+3}",
              f"buffer_store_dwordx2 {vr(ac,2)}, v244, s[{SOUT}:{SOUT+3}], s52 offen {cfg.outflags}".rstrip(), "s_add_u32 s52, s52, %d" % (16 * 1280)]
        return o
    if cfg.fin2:
        assert cfg.DO == 4 and NL == 2
        q.g[g + 1].insert(0, "s_barrier"); q.g[g + 1].insert(0, "s_waitcnt lgkmcnt(0)")
        for k, r in enumerate(rd(0) + rd(1) + rd(2)): q.put(g + 1 + min(k // 2 + (k > 3), 6), r)
        q.raw(stamp_l(c, cfg, "projdone") + ["s_lshl_b32 s52, s3, 5", wr(4, 1), wr(4, 2)])
        q.emit(c)
        c.ext(fin(0)[:5]); c(wr(4, 3)); c.ext(fin(0)[5:] + fin(1))
        c("s_waitcnt lgkmcnt(0)")
        c("s_barrier")
        c.ext(rd(3) + rd(4) + fin(2) + fin(3) + fin(4))
    else:
        q.raw(stamp_l(c, cfg, "projdone") + ["s_nop 1", wr(4, 1), wr(4, 2), "s_nop 1", wr(4, 3)])
        q.emit(c)
        c("s_waitcnt lgkmcnt(0)")
        c("s_barrier")
        for i in range(5): c.ext(rd(i))
        c("s_lshl_b32 s52, s3, 5")
        for i in range(5): c.ext(fin(i))
    check_setup(c.l, "proj")
    a.l += fix(resolve_waits(c.l))
    a("L_fin:")
    if cfg.stamps or cfg.calib:
        a("s_waitcnt vmcnt(0)")
        stamp(a, cfg, "end")
    if cfg.calib:
        a("s_waitcnt lgkmcnt(0)")
        a("s_or_b32 s52, s2, s3")
        a("s_cmp_lg_u32 s52, 0")
        a("s_cbranch_scc1 L_end")
        a(f"s_sub_u32 s52, s{62+4*cfg.cal_j}, s{62+4*cfg.cal_i}")
        a("s_lshl_b32 s52, s52, 2")
        a("s_add_u32 s52, s52, s62")
        a("L_spin:")
        a("s_memrealtime s[56:57]")
        a("s_waitcnt lgkmcnt(0)")
        a("s_sub_u32 s56, s56, s52")
        a(f"s_cmp_lt_i32 s56, {cfg.calib*100}")
        a("s_cbranch_scc1 L_spin")
    if cfg.stamps:
        stamps_out(a, cfg, 64 << 20)
    a("L_end:")
    a("s_endpgm")
    if cfg.w3:
        i0, i1 = a.l.index("L_sec0:"), a.l.index("L_sec1:")
        dead_v = set(("v", r) for r in list(range(128, 160)) + list(range(184, 192)) + list(range(204, 208)) + list(range(220, 224)))
        dead_a = set(("a", r) for r in range(48, 64))
        sec = []; skip = False
        for x in a.l[i0 + 1:i1]:
            if x == "s_and_b32 s52, s2, 31": skip = True
            if skip:
                if x == "L_noarr:": skip = False
                continue
            if x.endswith(":") or x.startswith(".") or x.startswith(";"):
                if x == "L_loop:":
                    z = [f"v_mov_b32 v{r}, 0" for _, r in sorted(dead_v)] + [f"v_accvgpr_write_b32 a{r}, 0" for r in list(range(48, 64)) + list(range(204, 208))]
                    k = sec.index(".p2align 6"); sec[k:k] = z
                    w3body0 = len(sec) + 1
                    x = "L_loop3:"
                sec.append(x); continue
            if x.startswith("s_nop"): continue
            ins = parse(x)
            if ins["k"] == "mfma" and (ins["D"] & dead_v or ins["Dtok"] == "a[204:207]"): continue
            if ins["k"] == "valu" and (ins["wr"] & (dead_v | dead_a) or ins["rd"] & set(("v", r) for r in range(128, 160))): continue
            if x == "s_cbranch_scc1 L_loop": x = "s_cbranch_scc1 L_loop3"
            sec.append(x)
        sec = fix(sec)
        l0 = sec.index("L_loop3:"); l1 = sec.index("s_cbranch_scc1 L_loop3")
        assert check(sec[l0:l1 + 1] * 2, "w3-loop") == 0 and check(sec + a.l[i1:i1 + 40], "w3-exit") == 0 and check(a.l[i0 - 30:i0] + sec, "w3-entry") == 0
        a("L_w3:")
        a.ext(sec)
        a("s_branch L_sec1")
    if cfg.epark:
        a("L_redo:")
        a("s_mov_b32 s35, 1")
        a("s_lshl_b32 s52, s3, 6")
        a("v_or_b32 v0, s52, v1")
        a("s_waitcnt vmcnt(0) lgkmcnt(0)")
        a("s_barrier")
        a("s_branch L_restart")
    a("L_exact:")
    ex0 = len(a.l)
    a("s_mov_b32 s35, 1")
    a(f"s_mov_b32 s{SK+2}, {KVBYTES}")
    a(f"s_mov_b32 s{SV+2}, {KVBYTES}")
    a("s_mov_b32 s33, s40" if not cfg.uni else "s_lshl_b32 s33, s3, 10")
    a("s_waitcnt vmcnt(0) lgkmcnt(0)")
    a("L_exact_loop:")
    a("s_barrier")
    if cfg.uni:
        for n_ in range(4): a.ext(["s_and_b32 m0, s33, 0x3fff", "s_nop 0", dma(KDA, SK, "s33", 0, cfg.kvflags), "s_add_u32 s33, s33, 4096"])
    else:
        a.ext(with_nop(kdma(cfg, 0)))
        a(ADV)
    a("s_waitcnt vmcnt(0)")
    a("s_barrier")
    for th in range(2):
        for kt in range(2):
            for ks in range(4): a(kread(0, 0, th, kt, ks))
        a("s_waitcnt lgkmcnt(0)")
        for u in range(4): a.ext(qk(u, 0, True))
        a("s_nop 7")
        for u in range(4):
            s0 = S_(u, 0)
            for r in range(0, 8, 2):
                a(f"v_max3_f32 v{MTR+u}, v{MTR+u}, v{s0+r}, v{s0+r+1}")
    a(f"s_cmp_lt_u32 s33, {KVBYTES}")
    a("s_cbranch_scc1 L_exact_loop")
    a("s_barrier")
    a("s_mov_b32 s33, s40" if not cfg.uni else "s_lshl_b32 s33, s3, 10")
    a.ext([x.split(" ;@")[0] for x in with_nop(sum([piece(cfg, gp, False) if not cfg.uni else upiece(cfg, gp) for gp in range(NP)], []))])
    a("s_waitcnt vmcnt(0)")
    a("s_barrier")
    a.ext(k0r + v0r)
    a("s_waitcnt lgkmcnt(0)")
    a.ext(k1r)
    for u in range(4): a.ext(qk(u, 0, True))
    a.ext(ones)
    a("s_nop 7")
    a.ext(fix(merge(*[fmax(u) for u in range(4)]) + merge(*[fexp(u, 8 if u < 3 else 4) for u in range(4)])))
    a("s_nop 1")
    a.ext(pv(0, 0, True) + pv(1, 0, True))
    a("s_waitcnt lgkmcnt(0)")
    q = Seq(); st1 = attn_tile(cfg, q, 1, "first")
    if cfg.uni:
        q.place(upiece(cfg, NP), [st1[4] + 1]); q.place(upiece(cfg, NP + 1), [st1[6] + 1])
    x1 = Asm()
    for t_ in ["seg1"]: x1("buffer_dummy ;@seg1")
    q.emit(x1)
    a.l += resolve_waits(x1.l)
    a("s_mov_b32 s34, 3")
    a("s_branch L_loop")
    bad = check(a.l[:ex0], "main") + check(body + body, "attn-loop") + check(a.l[ex0:] + body, "exact")
    assert bad == 0
    return a

HEADER = """; Kernarg layout for this problem (64 bytes, ptrs only, base s[0:1]):
;   offset  56: d_ws      [0, 15.7 MB) attention output O as MFMA fragments, [24 MB, +32 KB) hand-off words
;
;     p = exp2(.), o^T += V^T p^T, row sums by an MFMA with a ones operand.  m is the row maximum of the first key tile; if any
;     wave w contracts over heads 8w..8w+7 once their words are set, partial sums meet in LDS.
; @launch grid=(256,1,1) block=(256,1,1) lds=163840"""

def build(cfg):
    k = NAME + "_kernel"
    out = []
    out.append(HEADER)
    out.append('.amdgcn_target "amdgcn-amd-amdhsa--gfx950"')
    out.append(".text")
    out.append(f".globl {k}\n.p2align 8\n.type {k},@function\n{k}:")
    out.append(gen(cfg).text())
    out.append('.section .rodata,"a"')
    out.append(f""".p2align 6
.amdhsa_kernel {k}
  .amdhsa_next_free_vgpr 512
  .amdhsa_next_free_sgpr 102
  .amdhsa_accum_offset 256
  .amdhsa_group_segment_fixed_size 0
  .amdhsa_kernarg_size 64
  .amdhsa_user_sgpr_count 2
  .amdhsa_user_sgpr_kernarg_segment_ptr 1
  .amdhsa_system_sgpr_workgroup_id_x 1
.end_amdhsa_kernel
""")
    return "\n".join(out)

if __name__ == "__main__":
    cfg = Cfg()
    path = sys.argv[1]
    for kv in sys.argv[2:]:
        k, v = kv.split("=", 1)
        old = getattr(cfg, k)
        setattr(cfg, k, type(old)(eval(v)) if isinstance(old, (bool, int, float, tuple)) else v)
    txt = build(cfg)
    open(path, "w").write(txt)
```

```python
import sys, math, struct
from asmlib import *

NAME = "standalone__mha_block_cached__near_ridge"
def f32(x): return struct.unpack("<I", struct.pack("<f", x))[0]
MF = "v_mfma_f32_16x16x32_bf16"

class Cfg:
    kvflags = "nt"
    oflags = "sc1"
    orflags = "sc1"
    xflags = ""
    bflags = ""
    stamps = False
    only = ""
    qspread = 4
    kvpace = 13.5
    lthr = 2.0 ** 40
    force_fb = False
    rot = 5
    rA = 0
    DO = 4
    NL = 2
    joint = 1
    opk = 2
    lds_fin = -1
    kvp2 = 0.0
    kvsw = 31
    lds_last = 5
    pad = 0
    prio = 0
    ucl = 0
    uph = 0.3
    fin2 = 1
    mapx = 0
    map3b = 0
    lazy = ()
    c0same = 0
    roff = 5
    fsig = 2
    bm = 0
    bmi = 0
    wv = 2
    jcap = 2
    uni = 0
    ipre = 32
    upi = 30
    urest = 9
    w3 = 1
    wn = 10
    wp = 17
    wp2 = 4
    wdelay = 0
    R = 19
    epark = 0
    addu = ()
    tlb = 0
    fast0 = 1
    c1first = 0
    pre5 = 1
    early = 1
    cwarm = 1
    wl2 = 0
    wl2f = ""
    lag = 4
    split0 = 0
    wsched = 2
    b1 = 24
    bsp = 50
    split15 = 1
    sigfirst = 1
    outflags = ""
    wpull = 0
    epoll = 15
    touch = ()
    tpos = 52
    tl = 16
    tflags = ""
    tkv = "v"
    dmode = "even"
    xs = (0, 0, 0, 0, 0)
    k0at = 5
    X = 29
    wev = 1.0
    ncap = 3
    sig = "line"
    pkmul = False
    qord = 0
    exp = ""
    calib = 0
    cal_i = 0
    cal_j = 0

O_ = lambda u, dt: 32 + 32 * u + 4 * dt
S_ = lambda u, kt: 160 + 8 * u + 4 * kt
P_ = lambda u: 192 + 4 * u
NM = lambda u: 208 + 4 * u
KRA, VRA, KDA, VDA, MTR = 224, 228, 236, 240, 242
WD = 246
XDA, WDA, XRA, WRA = 192, 200, 204, 210
Q_ = lambda u, m: 16 * u + 4 * m
KF = lambda b, kt, ks: 64 + 32 * b + 16 * kt + 4 * ks
VF = lambda b, dt: 128 + 32 * b + 4 * dt
L_ = lambda u: 192 + 4 * u
ONES = 208
WF = lambda b, s, dt: ar([160, 0, 96][b] + 32 * s + 4 * dt, 4)
WF2 = lambda b, s, dt, e: ar([160, 0, 96][b] + 32 * s + 4 * dt + 2 * e, 2)
XF = lambda b, s, u: vr([224, 64, 160][b] + 16 * s + 4 * u, 4, "aav"[b])
SX, SW, SK, SV, SO = 8, 12, 16, 20, 24
SWO, SOR, SOUT = 8, 12, 4
KVBYTES = 262144
XBASE = [(131072, 147456), (65536, 16384), (32768, 49152)]
WWIN = 81920
WOFF = [32768, 0, 16384]
UNIT = [0, 4, 8, 9, 1, 5, 2, 6, 3, 7]
UNIT2 = [0, 4, 9, 5, 6, 8, 1, 2, 3, 7]
UNIT3 = [0, 4, 9, 1, 2, 8, 5, 6, 3, 7]
WRL = [[28, 29, 30, 31], [250, 251, 252, 253], [7, 8, 9, 10]]
OAL = [4, 5, 13, 14, 254]
WBLK = [224, 240, 64, 80, 96, 112, 128, 144, 160, 176, 208, 192, 0, 16, 32, 48]
WBLK2 = [224, 240, 0, 16, 48, 32, 64, 80, 96, 112, 128, 144, 160, 176, 208, 192]
def WS(t, nt, e=None):
    b = WBLK[t % len(WBLK)]
    f = "a" if b >= 0 else "v"
    return vr(abs(b) + 4 * nt, 4, f) if e is None else vr(abs(b) + 4 * nt + 2 * e, 2, f)
def wreads(t):
    u_ = UNIT[t % 10]
    return [f"ds_read_b64_tr_b16 {WS(t,nt,e)}, v{WRL[u_>>2][nt]} offset:{16384*(u_&3)+2048*e} ;@p{t}" for nt in range(4) for e in range(2)]
FOFF = 24 << 20
WOSZ = 1024 * 1280 - 9 * 128
ORSZ = 4 * 131072 + 32768

class Seq:
    def __init__(self): self.m = []; self.g = []
    def add(self, mfmas):
        n = len(self.m); self.m += mfmas; self.g += [[] for _ in mfmas]; return n
    def raw(self, lines):
        self.m.append(None); self.g.append(["!" + x for x in lines]); return len(self.m) - 1
    def put(self, i, x): self.g[i].append(x)
    def slots(self, i):
        n = 0
        for x in self.g[i]:
            k = kind(x.lstrip("!"))
            if k in ("ds", "vm", "valu"): n += 2 if x.lstrip("!").startswith(TRANS) else 1
        return n
    def place(self, lst, vmpos):
        vmpos = list(vmpos); pend = []; last = None
        for x in lst:
            if kind(x) == "vm":
                p = vmpos.pop(0)
                assert not pend or last is None or p - len(pend) > last, (lst, p, last)
                for k, s in enumerate(reversed(pend)): self.g[p - 1 - k].insert(0, s)
                pend = []; self.g[p].append(x); last = p
            else: pend.append(x)
        for k, s in enumerate(pend): self.g[last + 1 + k].insert(0, s)
    def stream(self, lst, start, cap=2, end=None):
        i = start
        for x in lst:
            c = 2 if x.startswith(TRANS) else (0 if kind(x) == "s" else 1)
            while self.slots(i) + c > cap and (end is None or i < end) and i + 1 < len(self.m): i += 1
            self.g[i].append("!" + x)
        return i
    def emit(self, a): emit_gaps(a, self.m, self.g)

def stamp_l(a, cfg, name):
    if (cfg.stamps or cfg.calib) and (cfg.only == "" or name in cfg.only.split(",") or name in ("start", "end")):
        i = len(a.stamps); a.stamps.append(name)
        assert i < 10
        return [f"s_memtime s[{60+4*i}:{61+4*i}]", f"s_memrealtime s[{62+4*i}:{63+4*i}]"]
    return []
def stamp(a, cfg, name): a.ext(stamp_l(a, cfg, name))

def stamps_out(a, cfg, wsoff):
    n = len(a.stamps)
    a.l.insert(0, "; stamps " + str(wsoff >> 20) + " " + " ".join(a.stamps))
    a("s_waitcnt lgkmcnt(0)")
    a(f"s_add_u32 s48, s48, {wsoff}")
    a("s_addc_u32 s49, s49, 0")
    a("s_mov_b32 s50, 0x100000")
    a("s_mov_b32 s51, 0x20000")
    a("s_lshl_b32 s52, s2, 2")
    a("s_add_u32 s52, s52, s3")
    a("s_lshl_b32 s52, s52, 7")
    a("v_mov_b32 v6, s52")
    a("v_cmp_eq_u32 vcc, 0, v1")
    a("s_and_saveexec_b64 s[54:55], vcc")
    for i in range(n):
        a(f"v_mov_b32 v4, s{60+4*i}")
        a(f"v_mov_b32 v5, s{62+4*i}")
        a(f"buffer_store_dwordx2 v[4:5], v6, s[48:51], 0 offen offset:{8*i}")
        a("s_nop 1")
    a("s_getreg_b32 s53, hwreg(HW_REG_XCC_ID)")
    a("v_mov_b32 v4, s53")
    a("buffer_store_dword v4, v6, s[48:51], 0 offen offset:120")
    a("v_mov_b32 v4, 0x5157")
    a(f"v_mov_b32 v5, {n}")
    a("buffer_store_dwordx2 v[4:5], v6, s[48:51], 0 offen offset:112")
    a("s_mov_b64 exec, s[54:55]")

def srd(s, plo, off_s, size):
    return [f"s_add_u32 s{s}, s{plo}, {off_s}", f"s_addc_u32 s{s+1}, s{plo+1}, 0", f"s_mov_b32 s{s+2}, {size}", f"s_mov_b32 s{s+3}, 0x20000"]
def dma(vaddr, sdesc, soff, imm, flags=""):
    o = f" offset:{imm}" if imm else ""
    f = f" {flags}" if flags else ""
    return f"buffer_load_dwordx4 v{vaddr}, s[{sdesc}:{sdesc+3}], {soff} offen{o}{f} lds"
def tag(lst, t):
    return [x + f" ;@{t}" if kind(x) == "vm" else x for x in lst]
def check_setup(lines, name):
    last = {}
    for x in lines:
        if ";@" not in x:
            if kind(x) == "s" and not x.endswith(":") and len(x.split()) > 1 and x.split()[1].rstrip(",") in ("m0", "s42", "s30"): last[x.split()[1].rstrip(",")] = None
            continue
        t = x.split(";@")[1]
        if kind(x) == "s": last[x.split()[1].rstrip(",")] = t
        elif t[0] == "w" and t[1:].isdigit() and not x.startswith("buffer_dummy"):
            assert last.get("m0") == t and last.get("s42") == t, (name, x, last)
        elif t[0] == "o" and t[1:].isdigit() and not x.startswith("buffer_dummy"):
            assert last.get("s30") == t, (name, x, last)
def with_nop(lst):
    o = []
    for x in lst:
        o.append(x)
        if " m0," in x: o.append("s_nop 0")
    return o

def resolve_waits(lines):
    out = []; seq = []; lseq = []
    for x in lines:
        if x.startswith("WAITLG"):
            t = x.split()[1]
            idx = max(i for i, v in enumerate(lseq) if v == t)
            out.append(f"s_waitcnt lgkmcnt({min(len(lseq) - 1 - idx, 15)})")
            continue
        if x.startswith("ds_"): lseq.append(x.split(";@")[1] if ";@" in x else "")
        if x.startswith("WAITVM"):
            p = x.split(None, 2)
            idx = max(i for i, t in enumerate(seq) if t == p[1])
            n = min(len(seq) - 1 - idx, 63)
            out.append(f"s_waitcnt vmcnt({n})" + (" " + p[2] if len(p) > 2 else ""))
            continue
        if not (x.endswith(":") or x.startswith(".") or x.startswith(";")) and kind(x) == "vm" and not x.endswith(";@skip"):
            seq.append(x.split(";@")[1] if ";@" in x else "")
        if not x.startswith("buffer_dummy"): out.append(x.split(" ;@")[0])
    return out

def kdma(cfg, slot, so="s33"):
    return [f"s_add_u32 m0, s40, {16384*slot}"] + [dma(KDA + pp, SK, so, 1024 * pp, cfg.kvflags) for pp in range(4)]
def vdma(cfg, slot, so="s33"):
    return [f"s_add_u32 m0, s40, {65536+16384*slot}"] + [dma(VDA + (pp & 1), SV, so, 1024 * pp, cfg.kvflags) for pp in range(4)]
ADV = "s_add_u32 s33, s33, 16384"
def upiece(cfg, gp):
    sg = gp >> 3
    if gp & 1: return ["s_or_b32 m0, m0, 0x10000", dma(VDA, SV, "s33", 0, cfg.kvflags) + f" ;@seg{sg}", "s_add_u32 s33, s33, 4096"]
    return ["s_and_b32 m0, s33, 0xffff", dma(KDA, SK, "s33", 0, cfg.kvflags) + f" ;@seg{sg}" + ("k" if sg == 15 else "")]
def piece(cfg, gp, setm0, guard=False):
    sg, kv, pp = gp // 8, (gp % 8) // 4, gp % 4
    grp = (vdma if kv else kdma)(cfg, sg & 3)
    o = ([grp[0]] if pp == 0 or setm0 else []) + tag([grp[1 + pp]], f"seg{sg}" + ("k" if kv == 0 else ""))
    if gp % 8 == 7:
        o += [ADV]
        if guard: o += [f"s_cmp_lt_u32 s33, {KVBYTES}", f"s_cselect_b32 s{SK+2}, {KVBYTES}, 0"]
    return o
def wdma(cfg, t):
    return [x + f" ;@w{t}" for x in [f"s_add_u32 s42, s41, {t}", "s_and_b32 s42, s42, 31", "s_mul_i32 s42, s42, 40960", f"s_add_u32 m0, s40, {16384*UNIT[t%10]}"]] + \
        tag([dma(WD + pp, SWO, "s42", 1024 * pp, cfg.bflags) for pp in range(4)], f"w{t}")
def kread(buf, slot, th, kt, ks):
    return f"ds_read_b128 {ar(KF(buf,kt,ks),4)}, v{KRA+ks} offset:{16384*slot+8192*th+4096*kt}"
def vread(buf, slot, th, dt, e):
    return f"ds_read_b64_tr_b16 {ar(VF(buf,dt)+2*e,2)}, v{VRA+dt} offset:{16384*slot+8192*th+4096*e}"

def qk(u, kb, czero=False, sl=None):
    m = []
    for kt in range(2):
        d = vr(S_(u if sl is None else sl, kt), 4)
        for ks in range(4):
            c = ("0" if czero else vr(NM(u), 4)) if ks == 0 else d
            m.append(f"{MF} {d}, {ar(KF(kb,kt,ks),4)}, {ar(Q_(u,ks),4)}, {c}")
    return m
LA = {0: 18, 1: 19}
def pv(u, vb, czero=False, sl=None, lsum=True):
    m = []
    p = vr(P_(u if sl is None else sl), 4)
    for dt in range(8):
        d = vr(O_(u, dt), 4)
        m.append(f"{MF} {d}, {ar(VF(vb,dt),4)}, {p}, {'0' if czero else d}")
    d = ar(L_(u), 4)
    if lsum: m.append(f"{MF} {d}, {ar(ONES,4)}, {p}, {'0' if czero else d}")
    return m
def sm_half(q, g0, u, kt, add=False):
    s = S_(u, kt)
    for r in range(4):
        if add: q.put(g0 + 2 * r + 1, f"v_add_f32 v{LA[u]}, v{LA[u]}, v{s+r}")
        q.put(g0 + 2 * r, f"v_exp_f32 v{s+r}, v{s+r}")
        if r & 1: q.put(g0 + 2 * r + 1, f"v_cvt_pk_bf16_f32 v{P_(u)+2*kt+r//2}, v{s+r-1}, v{s+r}")

def attn_tile(cfg, q, j, mode="loop"):
    kb = vb = j & 1
    slot, th = (j >> 1) & 3, j & 1
    nslot, nth = ((j + 1) >> 1) & 3, (j + 1) & 1
    z = mode == "first"
    addu = cfg.addu if mode == "loop" else ()
    groups = [qk(0, kb), pv(2, vb ^ 1, z), qk(1, kb), pv(3, vb ^ 1, z), qk(2, kb), pv(0, vb, lsum=0 not in addu), qk(3, kb), pv(1, vb, lsum=1 not in addu)]
    st = [q.add(g) for g in groups]; st.append(len(q.m))
    sm_half(q, st[0], 3, 1)
    for u in range(3):
        sm_half(q, st[2 * u + 1], u, 0, u in addu)
        sm_half(q, st[2 * u + 2], u, 1, u in addu)
    sm_half(q, st[7], 3, 0)
    vr_ = [vread(vb, slot, th, dt, e) for dt in range(8) for e in range(2)]
    NV = 6 if 0 in cfg.addu else 0
    if 0 in addu: pos = [st[0] + k for k in (1, 3, 5, 5, 7)] + [st[1] + k for k in (1, 5, 8, 8)] + [st[2] + 5]
    else: pos = [st[0] + k for k in (1, 3, 5, 5, 7)] + [st[1] + k for k in (1, 1, 3, 5, 5, 7, 8)] + [st[2] + k for k in (1, 3, 5, 5)]
    for p, r in zip(pos, vr_[16 - len(pos):]): q.put(p, r)
    mid = st[4] - 1
    if j & 1:
        if mode == "loop": q.put(mid, f"s_waitcnt vmcnt({16-cfg.lag if not cfg.bm else (18 if cfg.bm == 3 else 14)-cfg.lag}) lgkmcnt(0)" if not cfg.uni else "UNIWAIT")
        else: q.put(mid, f"WAITVM seg{(j+1)//2}{'k' if j == 29 and cfg.split15 else ''} lgkmcnt(0)")
        q.put(mid, "s_barrier")
    else:
        q.put(mid, "s_waitcnt lgkmcnt(0)")
    kr_ = [kread(kb ^ 1, nslot, nth, kt, ks) for kt in range(2) for ks in range(4)]
    if 1 in addu: pos = [st[4] + 5] + [st[5] + k for k in (1, 1, 3, 5, 5, 7)] + [st[6] + 1]
    else: pos = [st[4] + k for k in (1, 3, 5, 7)] + [st[5] + k for k in (1, 3, 5, 7)]
    for p, r in zip(pos, kr_): q.put(p, r)
    if NV and mode != "final":
        nvr = [vread(vb ^ 1, nslot, nth, dt, e) for dt in range(8) for e in range(2)][:NV]
        for p, r in zip([st[6] + 3, st[6] + 5, st[6] + 5, st[6] + 7, st[7] + 1, st[7] + 1], nvr): q.put(p, r)
        q.put(st[8] - 2, f"s_waitcnt lgkmcnt({NV})")
    else:
        q.put(st[8] - 2 if j != 29 else st[7], "s_waitcnt lgkmcnt(0)")
    nlast = cfg.lds_last if mode != "final" else (cfg.lds_fin if cfg.lds_fin >= 0 else cfg.lds_last)
    if nlast:
        cand = [i for i in range(st[0], st[8]) if any(x.startswith("v_cvt") for x in q.g[i]) and any(x.startswith("ds_read") for x in q.g[i])]
        for k in range(nlast):
            i = cand[(k * len(cand)) // nlast]
            c_ = [x for x in q.g[i] if x.startswith("v_cvt")][0]; r_ = [x for x in q.g[i] if x.startswith("ds_read")][0]
            q.g[i].remove(c_); q.g[i].remove(r_); q.g[i] += ["!" + c_, "!" + r_]
    dpos = [st[0] + 1, st[2] + 1, st[4] + 1, st[6] + 1]
    if cfg.bm:
        assert cfg.lag % 4 == 2
        dpos = {1: [st[4] + 1, st[4] + 5, st[5] + 1, st[5] + 5], 2: [st[4] + 1, st[4] + 3, st[4] + 5, st[4] + 7], 3: [st[2] + 7, st[3] + 1, st[3] + 3, st[3] + 5],
                4: [st[4] + 1, st[4] + 2, st[4] + 3, st[4] + 4]}[cfg.bm]
    for k in range(0 if not cfg.uni else 4, 4):
        gp = 4 * j + 26 + k - cfg.lag
        if mode == "first" and k < 2 and not cfg.bm: continue
        if mode == "final":
            if gp < 128: q.place(piece(cfg, gp, True), [[st[0] + 1, st[0] + 5, st[1] + 1, st[1] + 3][k] if cfg.wsched in (0, 2) else dpos[k]])
            continue
        q.place(piece(cfg, gp, False, cfg.lag < 2), [dpos[k]])
    return st

def rowmax_l(t, t2):
    return [f"v_mov_b32 v{t2}, v{t}", "s_nop 1", f"v_permlane32_swap_b32 v{t}, v{t2}", f"v_max_f32 v{t}, v{t}, v{t2}",
            f"v_mov_b32 v{t2}, v{t}", "s_nop 1", f"v_permlane16_swap_b32 v{t}, v{t2}", f"v_max_f32 v{t}, v{t}, v{t2}"]

def scale_pack(cfg, b0, t, mul, pk):
    o = []
    if pk: o += [f"v_pk_mul_f32 {vr(b0+2*i,2)}, {vr(b0+2*i,2)}, {mul[1]}" for i in range(4)]
    else: o += [f"v_mul_f32 v{b0+i}, {mul[0]}, v{b0+i}" for i in range(8)]
    o += [f"v_cvt_pk_bf16_f32 v{t+i}, v{b0+2*i}, v{b0+2*i+1}" for i in range(4)]
    return o

def gen(cfg):
    if cfg.wsched == 2: UNIT[:] = UNIT2 if not cfg.wv else UNIT3
    if cfg.epark: WBLK[:] = WBLK2
    WBLK.extend([-224, -208, -192, -176][:cfg.R - 16])
    assert 112 + 20 * cfg.DO <= 240 - 16 * (cfg.R - 16)
    a = Asm()
    a("s_cmp_ge_u32 s2, 256")
    a("s_cbranch_scc1 L_end")
    a("s_mov_b32 s35, 0")
    a("L_restart:")
    stamp(a, cfg, "start")
    a("s_load_dwordx4 s[4:7], s[0:1], 0")
    a("s_load_dwordx4 s[44:47], s[0:1], 16")
    a("v_lshrrev_b32 v2, 6, v0")
    a("v_and_b32 v1, 63, v0")
    a("v_readfirstlane_b32 s3, v2")
    a("s_and_b32 s50, s2, 7")
    a("s_lshr_b32 s51, s2, 3")
    a("s_and_b32 s52, s51, 3")
    a("s_lshr_b32 s53, s51, 2")
    a("s_bfe_u32 s28, s2, 0x10000")
    a("s_lshl2_add_u32 s28, s28, s52")
    a("s_lshr_b32 s54, s50, 1")
    a("s_lshl3_add_u32 s29, s54, s53")
    a("s_add_u32 s52, s52, s53")
    a("s_and_b32 s52, s52, 1")
    a(f"s_mul_i32 s32, s52, {cfg.roff}")
    a("s_add_u32 s54, s54, s50")
    a("s_and_b32 s54, s54, 1")
    a("s_lshl1_add_u32 s32, s54, s32")
    if cfg.mapx:
        a("s_mov_b32 s28, s50")
        a("s_mov_b32 s29, s51")
        a("s_mul_i32 s32, s50, 5")
        a("s_lshr_b32 s32, s32, 2")
        if cfg.mapx == 2:
            a("s_and_b32 s52, s51, 1")
            a("s_mul_i32 s52, s52, 5")
            a("s_add_u32 s32, s32, s52")
            a("s_cmp_ge_u32 s32, 10")
            a("s_cselect_b32 s52, 10, 0")
            a("s_sub_u32 s32, s32, s52")
    if cfg.c0same:
        a("s_mov_b32 s30, %d" % (9 << 7))
        a("s_mov_b32 s31, %d" % (9 << 19))
    else:
        a("s_lshl_b32 s30, s32, 7")
        a("s_lshl_b32 s31, s32, 19")
    a("s_lshl_b32 s40, s3, 12")
    a("s_lshl1_add_u32 s36, s40, %d" % XBASE[0][0])
    a("s_add_u32 s39, s40, %d" % WWIN)
    a("v_lshrrev_b32 v3, 4, v1")
    a("v_lshrrev_b32 v4, 3, v1")
    a("v_and_b32 v5, 7, v1")
    a("v_and_b32 v2, 15, v1")
    a("s_mul_i32 s52, s3, %d" % (64 * 1280))
    a("v_mul_u32_u24 v8, 1280, v4")
    a("v_xor_b32 v9, v3, v5")
    a("v_lshlrev_b32 v9, 4, v9")
    a(f"v_add3_u32 v{XDA}, v9, s52, v8")
    a(f"v_xor_b32 v17, 64, v{XDA}")
    for pp in range(1, 8):
        a(f"v_add_u32 v{XDA+pp}, {10240*pp-1024*(pp&3)}, v{17 if pp & 1 else XDA}")
    a("s_lshl_b32 s52, s3, 17")
    a("v_lshlrev_b32 v8, 13, v3")
    a("v_and_b32 v9, 1, v3")
    a("v_lshrrev_b32 v10, 1, v3")
    a("v_lshl_or_b32 v9, v10, 2, v9")
    a("v_xor_b32 v9, v9, v2")
    a("v_lshlrev_b32 v9, 4, v9")
    a(f"v_add3_u32 v{WDA}, v9, s52, v8")
    a(f"v_xor_b32 v17, 128, v{WDA}")
    for pp in range(1, 4):
        a(f"v_add_u32 v{WDA+pp}, {32768*pp-1024*pp}, v{17 if pp >> 1 else WDA}")
    a("s_mul_i32 s52, s28, 307200")
    a("s_lshl_b32 s53, s29, 8")
    a.ext(srd(SX, 4, "s52", 307200)[2:] + srd(SW, 46, "s53", 640 * 8192 - 31 * 256)[2:])
    a("s_waitcnt lgkmcnt(0)")
    stamp(a, cfg, "kernarg")
    a.ext(srd(SX, 4, "s52", 307200)[:2] + srd(SW, 46, "s53", 0)[:2])

    def qstage(c):
        bf = c % 3
        o = [f"s_mov_b32 m0, s{36+bf}"]
        o += [dma(XDA + pp, SX, "s30", 1024 * pp, cfg.xflags) for pp in range(4)]
        o += [f"s_add_u32 m0, s{36+bf}, 4096"]
        o += [dma(XDA + 4 + pp, SX, "s30", 1024 * pp, cfg.xflags) for pp in range(4)]
        o += [f"s_add_u32 m0, s39, {WOFF[bf]}"]
        o += [dma(WDA + pp, SW, "s31", 1024 * pp, cfg.xflags) for pp in range(4)]
        if not (cfg.c0same and c == 0): o += ["s_add_u32 s32, s32, 1", f"s_cmp_eq_u32 s32, {9 if cfg.c0same else 10}", "s_cselect_b32 s32, 0, s32"]
        o += ["s_lshl_b32 s30, s32, 7", "s_lshl_b32 s31, s32, 19"]
        return tag(o, f"c{c}")
    a.ext(with_nop(qstage(0)))
    a("s_load_dwordx2 s[48:49], s[0:1], 56")
    if cfg.cwarm:
        a("s_getpc_b64 s[54:55]")
        a("L_cbase:")
        a("s_lshl2_add_u32 s52, s51, s3")
        a(f"s_mul_i32 s52, s52, {5 if cfg.w3 else 3}")
        a(f"v_min_u32 v18, {4 if cfg.w3 else 2}, v1")
        a("v_add_u32 v18, s52, v18")
        a("v_lshlrev_b32 v18, 7, v18")
        a("v_min_u32 v18, L_exact-L_cbase, v18")
        a("v_mov_b32 v19, s55")
        a("v_add_co_u32 v18, vcc, s54, v18")
        a("v_addc_co_u32 v19, vcc, 0, v19, vcc")
        a("global_load_dword v20, v[18:19], off")
    a("s_mov_b32 s33, s40" if not cfg.uni else "s_lshl_b32 s33, s3, 10")
    a("s_and_b32 s52, s3, 1")
    a("s_lshl_b32 s52, s52, 13")
    a("s_cmp_ge_u32 s3, 2")
    for bf in range(1, 3):
        a(f"s_mov_b32 s53, {XBASE[bf][0]}")
        a(f"s_cselect_b32 s{36+bf}, {XBASE[bf][1]}, s53")
    for bf in range(1, 3):
        a(f"s_add_u32 s{36+bf}, s{36+bf}, s52")
    a("v_bfe_u32 v6, v1, 2, 2")
    a("v_and_b32 v7, 3, v1")
    if cfg.c1first: a.ext(with_nop(qstage(1)))
    a("s_waitcnt lgkmcnt(0)")
    if cfg.sig == "line":
        a("s_lshl_b32 s52, s28, 5")
        a("s_add_u32 s52, s52, s29")
        a("s_lshl_b32 s52, s52, 7")
        a(f"s_add_u32 s52, s52, {FOFF}")
        a("v_mov_b32 v18, s52")
        a("v_mov_b32 v19, 0")
        a("s_mov_b64 exec, 1")
        a("global_store_dword v18, v19, s[48:49] sc1")
        a("s_mov_b64 exec, -1")
        a("v_and_b32 v0, 31, v1")
        a("v_lshlrev_b32 v0, 3, v0")
    a("s_load_dwordx4 s[56:59], s[0:1], 32")
    a("s_lshl_b32 s52, s28, 5")
    a("s_add_u32 s52, s52, s29")
    a("s_lshl_b32 s52, s52, 18")
    a.ext(srd(SK, 6, "s52", KVBYTES))
    a.ext(srd(SV, 44, "s52", KVBYTES))
    a("s_mul_i32 s52, s28, %d" % (15 * 131072))
    a.ext(srd(SO, 48, "s52", 15 * 131072))
    a("s_load_dwordx2 s[46:47], s[0:1], 48")
    a("v_lshlrev_b32 v10, 8, v3")
    if cfg.uni:
        a("s_lshl_b32 s52, s3, 2")
        a("v_add_u32 v8, s52, v3")
        a("v_xor_b32 v9, v8, v2")
        a(f"v_lshl_add_u32 v{KDA}, v9, 4, v10")
        a("v_and_b32 v8, 7, v8")
        a("v_lshlrev_b32 v8, 1, v8")
        a("v_xor_b32 v9, v8, v2")
        a(f"v_lshl_add_u32 v{VDA}, v9, 4, v10")
    else:
        for pp in range(4):
            a(f"v_add_u32 v9, {4*pp}, v3")
            a("v_xor_b32 v9, v9, v2")
            a(f"v_lshl_add_u32 v{KDA+pp}, v9, 4, v10")
        for pp in range(2):
            a(f"v_add_u32 v9, {4*pp}, v3")
            a("v_lshlrev_b32 v9, 1, v9")
            a("v_xor_b32 v9, v9, v2")
            a(f"v_lshl_add_u32 v{VDA+pp}, v9, 4, v10")
    a("v_lshrrev_b32 v9, 1, v2")
    for s in range(2):
        a(f"v_or_b32 v8, {4*s}, v3")
        a("v_xor_b32 v8, v8, v9")
        a("v_lshlrev_b32 v8, 4, v8")
        a("v_lshl_add_u32 v8, v2, 7, v8")
        for bf in range(3):
            a(f"v_add_u32 v{XRA+2*bf+s}, s{36+bf}, v8")
    a("v_lshrrev_b32 v11, 1, v7")
    a("v_and_b32 v12, 1, v7")
    a("v_lshlrev_b32 v12, 3, v12")
    a("v_and_b32 v9, 1, v6")
    a("v_lshrrev_b32 v10, 1, v6")
    a("v_lshl_or_b32 v9, v10, 2, v9")
    a("v_and_b32 v10, 1, v3")
    a("v_lshl_or_b32 v9, v10, 3, v9")
    a("v_lshl_or_b32 v9, v11, 1, v9")
    a("v_lshl_add_u32 v13, v3, 3, v6")
    a("v_lshl_add_u32 v13, v13, 8, v12")
    a(f"v_add_u32 v13, {WWIN}, v13")
    for dt in range(8):
        a(f"v_xor_b32 v8, {4*(dt>>1)+(dt&1)}, v9")
        a(f"v_lshl_add_u32 v{WRA+dt}, v8, 4, v13")
    a("v_lshl_or_b32 v9, v10, 2, v6")
    a("v_lshl_or_b32 v9, v9, 1, v11")
    a("v_lshl_add_u32 v14, v3, 2, v6")
    a("v_lshl_add_u32 v14, v14, 8, v12")
    a("v_add_u32 v14, 65536, v14")
    for dt in range(8):
        a(f"v_xor_b32 v8, {2*dt}, v9")
        a(f"v_lshl_add_u32 v{VRA+dt}, v8, 4, v14")
    for ks in range(4):
        a(f"v_or_b32 v8, {4*ks}, v3")
        a("v_xor_b32 v8, v8, v2")
        a("v_lshlrev_b32 v8, 4, v8")
        a(f"v_lshl_add_u32 v{KRA+ks}, v2, 8, v8")
    for i in range(4):
        a(f"v_mov_b32 v{MTR+i}, 0xff800000")
    a("v_lshlrev_b32 v15, 4, v1")
    a(f"v_and_b32 v8, {cfg.tl-1}, v1")
    a(f"v_lshrrev_b32 v9, {int(math.log2(cfg.tl))}, v1")
    a("v_lshlrev_b32 v9, 14, v9")
    a("v_lshl_add_u32 v219, v8, 7, v9")
    a("v_lshlrev_b32 v9, 1, v3")
    a("v_xor_b32 v9, v9, v5")
    a("v_lshlrev_b32 v9, 4, v9")
    a("v_mul_u32_u24 v8, 1280, v4")
    a("v_add_u32 v8, v8, v9")
    for pp in range(4):
        a(f"v_add_u32 v{WD+pp}, {pp*9216}, v8")
    a("v_lshl_add_u32 v14, v3, 2, v6")
    a("v_bfe_u32 v13, v14, 1, 2")
    a("v_lshl_or_b32 v13, v13, 1, v11")
    a("v_lshl_add_u32 v14, v14, 7, v12")
    a("v_add_u32 v14, s40, v14")
    for nt in range(4):
        a(f"s_add_u32 s53, s3, {nt}")
        a("s_and_b32 s53, s53, 3")
        a("s_lshl_b32 s53, s53, 1")
        a("v_xor_b32 v16, s53, v13")
        a(f"v_lshl_add_u32 v{WRL[0][nt]}, v16, 4, v14")
        a(f"v_add_u32 v{WRL[1][nt]}, 65536, v{WRL[0][nt]}")
        a(f"v_add_u32 v{WRL[2][nt]}, 131072, v{WRL[0][nt]}")
    for i in range(5): a(f"v_add_u32 v{OAL[i]}, {131072*i}, v15")
    a("s_min_u32 s51, s51, 29")
    a("s_cmp_ge_u32 s51, 15")
    a("s_cselect_b32 s52, 1, 0")
    a("s_cselect_b32 s53, 15, 0")
    a("s_sub_u32 s53, s51, s53")
    a("s_and_b32 s43, s50, 6")
    a("s_add_u32 s43, s43, s52")
    a("s_mul_i32 s54, s53, 52")
    a("s_lshr_b32 s54, s54, 8")
    a("s_mul_i32 s41, s54, 5")
    a("s_sub_u32 s53, s53, s41")
    a("s_and_b32 s55, s50, 1")
    a("s_mul_i32 s55, s55, 5")
    a("s_add_u32 s55, s55, s53")
    a("s_mul_i32 s52, s52, 3")
    a("s_add_u32 s41, s54, s52")
    a("s_mul_i32 s41, s41, 43")
    a("s_lshr_b32 s41, s41, 3")
    if cfg.rA:
        a(f"s_mul_i32 s53, s53, {cfg.rA}")
        a("s_add_u32 s41, s41, s53")
    if cfg.map3b:
        a("s_mov_b32 s43, s50")
        a("s_mul_i32 s54, s51, 26")
        a("s_lshr_b32 s54, s54, 8")
        a("s_mul_i32 s52, s54, 10")
        a("s_sub_u32 s55, s51, s52")
        a("s_mul_i32 s41, s54, 11")
        a("s_add_u32 s41, s41, s50")
        a("s_mov_b32 s34, 0")
    a("s_and_b32 s41, s41, 31")
    sc = f32(math.log2(math.e) / math.sqrt(128.0))
    if cfg.wpull:
        a("s_mul_i32 s52, s2, 160")
        a(f"s_mul_i32 s53, s3, {14 if cfg.wpull == 1 else 40}")
        a("s_add_u32 s52, s52, s53")
        a("v_add_u32 v218, s52, v1")
        a("v_lshlrev_b32 v218, 7, v218")
        a("v_mov_b32 v16, 0x7fffff80")
        a(f"v_cmp_gt_u32 vcc, {14 if cfg.wpull == 1 else 40}, v1")
        a("v_cndmask_b32 v255, v16, v218, vcc")
    if cfg.wl2:
        a("s_lshr_b32 s52, s2, 3")
        a("s_lshl_b32 s52, s52, 2")
        a("s_add_u32 s52, s52, s3")
        a("s_mul_i32 s52, s52, %d" % (32 * 1280))
        a("s_and_b32 s53, s50, 1")
        a("s_mul_i32 s53, s53, 640")
        a("s_add_u32 s52, s52, s53")
        a("v_mul_u32_u24 v16, 52, v1")
        a("v_lshrrev_b32 v16, 8, v16")
        a("v_mul_u32_u24 v17, 5, v16")
        a("v_sub_u32 v17, v1, v17")
        a("v_mul_u32_u24 v16, 1280, v16")
        a("v_lshl_add_u32 v16, v17, 7, v16")
        a("v_add_u32 v16, s52, v16")
        a("v_mov_b32 v17, 0x7fffff80")
        a("v_cmp_gt_u32 vcc, 15, v1")
        a("v_cndmask_b32 v255, v17, v16, vcc")
    a(f"s_mov_b32 s44, {sc}")
    a(f"s_mov_b32 s45, {sc}")
    if not cfg.c1first: a.ext(with_nop(qstage(1)))
    stamp(a, cfg, "issued")

    def qreads(c):
        bf = rb = c % 3
        o = []
        for s in range(2):
            o.append(f"ds_read_b128 {XF(rb,s,0)}, v{XRA+2*bf+s}")
        for dt in range(8):
            for s in range(2):
                for e in range(2):
                    o.append(f"ds_read_b64_tr_b16 {WF2(rb,s,dt,e)}, v{WRA+dt} offset:{WOFF[bf]+8192*s+1024*e}")
        for u in range(1, 4):
            for s in range(2):
                o.append(f"ds_read_b128 {XF(rb,s,u)}, v{XRA+2*bf+s} offset:{2048*u}")
        return o
    a("WAITVM c0 lgkmcnt(0)")
    a("s_barrier")
    stamp(a, cfg, "landed")
    r0 = qreads(0)
    if cfg.fast0: a.ext(r0[:14])
    else:
        a.ext(r0)
        a.ext(with_nop(qstage(2)))
    wp = ["s_mov_b32 s4, s56", "s_mov_b32 s5, s57", f"s_mov_b32 s6, {4096*1280}", "s_mov_b32 s7, 0x20000", "buffer_load_dword v218, v255, s[4:7], 0 offen"]
    if cfg.wpull == 2: a.ext(wp)
    a("s_waitcnt lgkmcnt(8)" if cfg.fast0 else "s_waitcnt lgkmcnt(0)")
    if cfg.w3:
        a("s_cmp_eq_u32 s3, 3")
        a("s_cbranch_scc1 L_w3")
        if cfg.prio: a(f"s_setprio {cfg.prio}")
        a("L_sec0:")
    q = Seq()
    per = []
    for c in range(10):
        rb = c % 3
        mf = []
        for u in range(4):
            for dt in range(8):
                d = vr(O_(u, dt), 4)
                for s in range(2):
                    mf.append(f"{MF} {d}, {WF(rb,s,dt)}, {XF(rb,s,u)}, {'0' if c == 0 and s == 0 else d}")
        if cfg.joint and c >= 8:
            mf = []
            for u in (2 * (c - 8), 2 * (c - 8) + 1):
                for dt in range(8):
                    d = vr(O_(u, dt), 4)
                    for cc in (8, 9):
                        for s in range(2): mf.append(f"{MF} {d}, {WF(cc%3,s,dt)}, {XF(cc%3,s,u)}, {d}")
        p0 = q.add(mf); per.append(p0)
        for x in stamp_l(a, cfg, f"q{c+1}"): q.put(p0 + 63, "!" + x)
    if cfg.lazy:
        A = dict(zip(range(1, 10), cfg.lazy))
        FR = {0: 22}
        for n in range(1, 10):
            assert A[n] >= 64 * (n - 2) and A[n] + 26 < 64 * n + 3, n
            q.put(A[n], f"WAITVM c{n}"); q.put(A[n], "s_barrier")
            fast = A[n] + 38 > 64 * n
            for i, r in enumerate(qreads(n)): q.put(A[n] + 1 + (i // 2 if fast else (i * 3) // 4), r)
            FR[n] = min(A[n] + (26 if fast else 36), 64 * n - 1)
        DE = 0
        for n in range(10):
            q.put(FR[n], "s_waitcnt lgkmcnt(0)"); q.put(FR[n], "s_barrier")
            if n + 3 < 10:
                p = max(FR[n] + 2, DE + 6)
                ps = [p + (cfg.bsp * i) // 12 for i in range(12)]
                q.place(qstage(n + 3), ps); DE = ps[-1]
                assert DE < A[n + 3] - 20, n
        BQ = {7: DE - cfg.bsp + 3, 8: FR[7], 9: FR[8], 10: FR[9]}
    else:
        BQ = {n: max(cfg.b1 + cfg.bsp * (n - 1), 64 * (n - 2)) for n in range(1, 10)}
        BQ[10] = BQ[9] + 44
        for n in range(1, 11):
            p = BQ[n]
            q.put(p, f"WAITVM c{n} lgkmcnt(0)" if n < 10 else "s_waitcnt lgkmcnt(0)"); q.put(p, "s_barrier")
            if n < 10:
                for i, r in enumerate(qreads(n)): q.put(p + 1 + (i * 3) // 4, r)
            if n + 2 < 10:
                q.place(qstage(n + 2), [p + 2 + (cfg.bsp * i) // 12 for i in range(12)])
            assert n == 1 or n == 10 or BQ[n + 1] < 64 * n, n
        q.put(63, "s_waitcnt lgkmcnt(0)")
    if cfg.fast0:
        for i, r in enumerate(r0[14:]): q.put(i // 2, r)
        for dt in range(1, 8):
            issued = min(40, 14 + 2 * (2 * dt - 1)); needed = 2 + 4 * (dt + 1)
            q.g[2 * dt - 1].insert(0, f"s_waitcnt lgkmcnt({min(15, issued - needed)})")
        q.g[15].insert(0, "s_waitcnt lgkmcnt(0)")
        q.place(qstage(2), [4 + i + i // 4 for i in range(12)])
    if cfg.wpull >= 3: q.place(wp, [per[cfg.wpull - 3] + 60])
    sw = ["s_mul_i32 s52, s3, %d" % (1024 * 1280), "s_lshl_b32 s53, s55, 7", "s_add_u32 s52, s52, s53"] + srd(SWO, 56, "s52", WOSZ) + \
         ["s_mul_i32 s52, s43, 15", "s_mul_i32 s53, s54, 5", "s_add_u32 s52, s52, s53", "s_lshl_b32 s52, s52, 17", "s_lshl_b32 s53, s3, 15",
          "s_add_u32 s52, s52, s53"] + srd(SOR, 48, "s52", ORSZ)
    if cfg.wpull == 1 or cfg.wl2: sw += ["s_mov_b32 s4, s56", "s_mov_b32 s5, s57", f"s_mov_b32 s6, {4096*1280}", "s_mov_b32 s7, 0x20000", "s_mov_b32 s38, 0"]
    i = per[8] + 2
    k = 0
    while k < len(sw):
        n = 2 if "s_addc" in sw[min(k + 1, len(sw) - 1)] else 1
        for x in sw[k:k + n]: q.put(i, x)
        k += n; i += 2
    p9 = per[9]
    def qepi(u):
        o = []
        for m in range(4):
            t = 16 + 4 * (m & 1)
            o += scale_pack(cfg, O_(u, 2 * m), t, ("s44", "s[44:45]"), cfg.pkmul)
            if m:
                tp = 16 + 4 * ((m - 1) & 1)
                o += [f"v_accvgpr_write_b32 a{Q_(u,m-1)+i}, v{tp+i}" for i in range(4)]
            o += [f"v_permlane16_swap_b32 v{t}, v{t+2}", f"v_permlane16_swap_b32 v{t+1}, v{t+3}"]
        o += [f"v_accvgpr_write_b32 a{Q_(u,3)+i}, v{20+i}" for i in range(4)]
        return o
    q.put(p9 + 31, "WAITVM seg0k" if cfg.split0 else "WAITVM seg0"); q.put(p9 + 31, "s_barrier")
    for x in stamp_l(a, cfg, "b0"): q.put(p9 + 31, "!" + x)
    k0r = [kread(0, 0, 0, kt, ks) for kt in range(2) for ks in range(4)]
    for i, r in enumerate(k0r): q.put(p9 + 32 + 2 * i, r)
    if cfg.joint:
        assert BQ[10] < per[8]
        e = q.stream(qepi(0), per[8] + 32 + 4, cap=cfg.jcap)
        e = q.stream(qepi(1), max(e, p9 + 4), cap=cfg.jcap)
        e = q.stream(qepi(2), max(e, p9 + 32 + 4), cap=cfg.jcap)
    else:
        e = q.stream(qepi(0), p9 + 16 + 4, cap=4)
        e = q.stream(qepi(1), max(e, p9 + 32 + 4), cap=4)
        e = q.stream(qepi(2), max(e, p9 + 48 + 4), cap=4)
    q.put(p9 + 62, "s_waitcnt lgkmcnt(0)")
    lab = q.raw([])
    for x in stamp_l(a, cfg, "g0"): q.put(len(q.m) - 1, "!" + x)
    g0 = q.add(qk(0, 0, True))
    g1 = q.add(qk(1, 0, True))
    g2 = q.add(qk(2, 0, True))
    v0r = [vread(0, 0, 0, dt, e_) for dt in range(8) for e_ in range(2)]
    k1r = [kread(1, 0, 1, kt, ks) for kt in range(2) for ks in range(4)]
    if cfg.split0:
        for i, r in enumerate(k1r): q.put(g0 + i, r)
        q.put(g1 - 1, "!WAITVM seg0"); q.put(g1 - 1, "!s_barrier")
        for i, r in enumerate(v0r): q.put(g1 + i, r)
    else:
        for i, r in enumerate(v0r + k1r): q.put(g0 + i, r)
    e = q.stream(qepi(3), max(e, g0), cap=4)
    def fmax(u):
        s0 = S_(u, 0); t = NM(u)
        o = [f"v_max3_f32 v{t}, v{s0}, v{s0+1}, v{s0+2}", f"v_max3_f32 v{t+1}, v{s0+3}, v{s0+4}, v{s0+5}",
             f"v_max3_f32 v{t}, v{t}, v{s0+6}, v{s0+7}", f"v_max3_f32 v{t}, v{t}, v{t+1}, v{MTR+u}"]
        return o + [x for x in rowmax_l(t, t + 1) if "s_nop" not in x]
    def fexp(u, nexp):
        s0 = S_(u, 0); t = NM(u)
        o = [f"v_sub_f32 v{s0+r}, v{s0+r}, v{t}" for r in range(8)]
        o += [f"v_exp_f32 v{s0+r}, v{s0+r}" for r in range(nexp)]
        o += [f"v_sub_f32 v{NM(u)+i}, 0, v{t}" for i in (1, 2, 3, 0)]
        o += [f"v_cvt_pk_bf16_f32 v{P_(u)+r//2}, v{s0+r}, v{s0+r+1}" for r in range(0, nexp, 2)]
        return o
    ones = [f"v_mov_b32 v{LA[u]}, 0" for u in cfg.addu] + ["v_mov_b32 v27, 0x3f803f80"] + [f"v_accvgpr_write_b32 a{ONES+i}, v27" for i in range(4)]
    e = q.stream(merge(fmax(0), fmax(1), ones), max(e, g2 + 1), cap=4)
    for x in stamp_l(a, cfg, "g3"): q.put(len(q.m) - 1, "!" + x)
    if cfg.epark:
        q.put(len(q.m) - 1, "!s_cmp_lg_u32 s35, 0"); q.put(len(q.m) - 1, "!s_cbranch_scc1 L_exact")
    g3 = q.add(qk(3, 0, True))
    e = q.stream(merge(fexp(0, 8), fmax(2)), g3, cap=6)
    q.raw(["s_waitcnt lgkmcnt(0)"])
    for x in stamp_l(a, cfg, "g4"): q.put(len(q.m) - 1, "!" + x)
    g4 = q.add(pv(0, 0, True))
    e = q.stream(merge(fexp(1, 8), fmax(3)), g4, cap=5)
    for x in stamp_l(a, cfg, "g5"): q.put(len(q.m) - 1, "!" + x)
    g5 = q.add(pv(1, 0, True))
    e = q.stream(merge(fexp(2, 8), fexp(3, 4)), g5, cap=7)
    for x in stamp_l(a, cfg, "tile1"): q.raw([x])
    st1 = attn_tile(cfg, q, 1, "first")
    if cfg.sig == "line":
        arr = ["s_and_b32 s52, s2, 31", "s_lshl_b32 s52, s52, 3", "v_mov_b32 v16, s52", "v_mov_b32 v17, 1", "s_cmp_lg_u32 s3, 0", "s_cbranch_scc1 L_noarr",
               "s_mov_b64 exec, 1", "global_atomic_add v16, v17, s[46:47] sc1 ;@skip", "s_mov_b64 exec, -1", "L_noarr:"]
        for x in arr: q.put(st1[8] - 1, "!" + x)
    kv = []
    NP = 32 - cfg.lag if not cfg.uni else cfg.ipre - 2
    if cfg.bm and not cfg.uni: NP = 30 - cfg.lag
    for gp in range(NP): kv += piece(cfg, gp, False) if not cfg.uni else upiece(cfg, gp)
    if cfg.uni:
        q.place(upiece(cfg, NP), [st1[4] + 1]); q.place(upiece(cfg, NP + 1), [st1[6] + 1])
    pos = []
    i = BQ[7] + cfg.bsp + 3; acc = 4 * cfg.kvpace
    free_at = [0, BQ[8], BQ[8], BQ[8], BQ[9], BQ[9], BQ[9], BQ[10]]
    if cfg.uni: free_at = [BQ[8], BQ[8], BQ[8], BQ[8], BQ[9], BQ[9], BQ[10], BQ[10]]
    while len(pos) < NP:
        ok = q.m[i] and q.m[i - 1] and q.m[i + 1] and (q.slots(i) < 2 or i > (p9 + 16 if not cfg.joint else per[8] + 32)) and i > free_at[len(pos) // 4]
        if ok and acc >= ((cfg.kvpace if not cfg.kvp2 or i < p9 + cfg.kvsw else cfg.kvp2) if not cfg.bmi else (4 * cfg.kvpace - 3 * cfg.bmi if len(pos) % 4 == 0 else cfg.bmi)):
            pos.append(i); acc = 0
        acc += max(4, 2 + q.slots(i)) / 4
        i += 1
    assert pos[3 if cfg.split0 else 7] < p9 + 31 and pos[7] < g1 - 2 and pos[-1] < (st1[4] - 2 if cfg.bm != 3 else st1[2] + 3), (pos, p9, st1)
    if "nokv23" in cfg.exp: kv = [("buffer_dummy ;@" + x.split(";@")[1]) if (x.endswith("seg2") or x.endswith("seg3")) else x for x in kv]
    for k, (c, sg) in enumerate(cfg.touch):
        q.put(per[c] + cfg.tpos - 1, f"s_add_u32 s53, s40, {16384*sg}")
        q.put(per[c] + cfg.tpos, f"buffer_load_dword v255, v219, s[{SV if cfg.tkv[k % len(cfg.tkv)] == 'v' else SK}:{(SV if cfg.tkv[k % len(cfg.tkv)] == 'v' else SK)+3}], s53 offen {cfg.tflags}".rstrip())
    q.place(kv, pos)
    q.emit(a)
    a.l = fix(resolve_waits(a.l))
    a("s_mov_b32 s34, 3")
    a(".p2align 6")
    a("L_loop:")
    body0 = len(a.l)
    q = Seq()
    def loopstamp(q, p, pre):
        if cfg.stamps and pre in cfg.only.split(","):
            o = ["s_memtime s[4:5]", "s_memrealtime s[6:7]", "s_waitcnt lgkmcnt(0)"]
            for it in range(3):
                i = len(a.stamps); a.stamps.append(f"{pre}{it}")
                o += [f"s_cmp_eq_u32 s34, {3-it}", f"s_cselect_b32 s{60+4*i}, s4, s{60+4*i}", f"s_cselect_b32 s{62+4*i}, s6, s{62+4*i}"]
            for x in o: q.put(p, x)
    for j in range(2, 10):
        st = attn_tile(cfg, q, j)
        if j == 2: loopstamp(q, st[4] - 1, "ia")
        if j == 6: loopstamp(q, st[4] - 1, "ib")
        if cfg.wl2 and j % 2 == 0:
            q.put(st[3] + 1, f"buffer_load_dword v16, v255, s[4:7], s38 offen {cfg.wl2f}".rstrip())
            q.put(st[3] + 2, f"s_add_u32 s38, s38, {3*1280}")
        if cfg.wpull == 1 and j == 4:
            q.put(st[3] + 1, "buffer_load_dword v16, v255, s[4:7], s38 offen")
            q.put(st[3] + 2, f"s_add_u32 s38, s38, {56*128}")
        if j in (5, 7):
            for x in reversed(stamp_l(a, cfg, f"w{j}a")): q.g[st[4] - 1].insert(0, x)
            for x in stamp_l(a, cfg, f"w{j}b"): q.put(st[4] - 1, x)
        if j == 6:
            for x in reversed(stamp_l(a, cfg, f"d{j}a")): q.g[st[2] + 1].insert(0, x)
            for x in stamp_l(a, cfg, f"d{j}b"): q.put(st[2] + 1, "!" + x)
    if cfg.uni:
        n = len(q.m); cnt = cfg.upi; ps = []
        for k in range(cnt):
            if cfg.ucl:
                p = int((k // cfg.ucl + cfg.uph) * n / (cnt // cfg.ucl)) + 1 if k % cfg.ucl == 0 else ps[-1] + (2 if k & 1 else 3)
                while q.slots(p) >= (2 if k % cfg.ucl == 0 else 3) or any(x.startswith("v_exp") for x in q.g[p]) or "UNIWAIT" in q.g[p] or "UNIWAIT" in q.g[p - 1]: p += 1
            else:
                p = int((k + 0.1) * n / cnt) + 1
                while q.slots(p) >= 2 or "UNIWAIT" in q.g[p] or "UNIWAIT" in q.g[p - 1]: p += 1
            ps.append(p)
        assert ps[-1] < n - 4 and cfg.ipre % 2 == 0 and cnt % 2 == 0
        for k, p in enumerate(ps): q.place(upiece(cfg, k), [p])
        for bi, p in enumerate([i for i in range(n) if "UNIWAIT" in q.g[i]]):
            before = sum(1 for x in ps if x < p)
            m = 2 + bi + 8
            nw = cfg.ipre + 2 * cnt + before - 8 * (m + 1)
            assert cfg.ipre + before <= 8 * (2 + bi - 1 + 4) and nw >= 4, (bi, nw)
            q.g[p][q.g[p].index("UNIWAIT")] = f"s_waitcnt vmcnt({nw}) lgkmcnt(0)"
        IEND = cfg.ipre + 3 * cnt
    if cfg.pad:
        for i in range(0, len(q.m), cfg.pad): q.put(i, "!s_nop 3")
    if "lnobar" in cfg.exp: q.g = [[x for x in gp if x != "s_barrier"] for gp in q.g]
    if "lnodma" in cfg.exp: q.g = [[x for x in gp if kind(x.lstrip("!")) != "vm"] for gp in q.g]
    if "lnods" in cfg.exp: q.g = [[x for x in gp if kind(x.lstrip("!")) != "ds"] for gp in q.g]
    if "lnowait" in cfg.exp: q.g = [[x for x in gp if not (x.startswith("s_waitcnt") and "s_cmp_eq_u32 s34, 3" not in gp)] for gp in q.g]
    if "lnocvt" in cfg.exp: q.g = [[x for x in gp if not x.startswith("v_cvt")] for gp in q.g]
    q.put(-3, "s_sub_u32 s34, s34, 1")
    q.put(-1, "s_cmp_lg_u32 s34, 0"); q.put(-1, "s_cbranch_scc1 L_loop")
    q.emit(a)
    a.l = a.l[:body0] + [x.split(" ;@")[0] for x in a.l[body0:]]
    body = a.l[body0:]
    b = Asm(); b.stamps = a.stamps
    if cfg.uni:
        for gp in range(104, IEND): b(f"buffer_dummy ;@seg{gp//8}" + ("k" if gp >= 120 and gp % 2 == 0 else ""))
    else:
        for gp in range(104, 130 - cfg.lag): b(f"buffer_dummy ;@seg{gp//8}" + ("k" if gp % 8 < 4 else ""))
    q = Seq()
    if "nowo" in cfg.exp: b(f"s_mov_b32 s{SWO+2}, 0")
    for x in stamp_l(b, cfg, "t26"): b(x)
    sts = {j: attn_tile(cfg, q, j, "final") for j in range(26, 30)}
    if cfg.uni:
        rest = [(0, n_) for n_ in range(IEND // 2, 64)] + [(1, n_) for n_ in range(IEND // 2, 64)]
        p = sts[26][0] + 2
        for kv_, n_ in rest:
            d = 4096 * (n_ - IEND // 2)
            lst = [f"s_add_u32 s53, s33, {d}", f"s_and_b32 m0, s53, 0xffff"] + (["s_or_b32 m0, m0, 0x10000"] if kv_ else []) + \
                  [dma(VDA if kv_ else KDA, SV if kv_ else SK, "s53", 0, cfg.kvflags) + f" ;@seg{n_>>2}" + ("k" if not kv_ and n_ >= 60 else "")]
            pp_ = max(p, sts[26][0] + 3)
            while q.slots(pp_) >= 2 and not cfg.ucl: pp_ += 1
            q.place(lst, [pp_]); p = max(p + cfg.urest, pp_ + (5 if not cfg.ucl else (3 if not kv_ and n_ < 63 else 4))); KVEND = pp_
    def wpos(st, half):
        return [st[4*half] + 1, st[4*half+1] + 8 if half == 0 else st[5] + 1, st[4*half+2] + (7 if half == 0 else 1), st[4*half+3] + 1]
    if cfg.wsched == 0:
        for j, (t0, t1) in {26: (0, 1), 27: (2, 3), 28: (4, 5), 29: (10, 6)}.items():
            st = sts[j]
            q.place(wdma(cfg, t0), [st[1] + 8, st[2] + 7, st[3] + 1, st[3] + 5])
            q.place(wdma(cfg, t1), [st[5] + 8, st[6] + 1, st[6] + 5, st[7] + 5])
    elif cfg.wsched >= 3:
        pass
    elif cfg.wsched == 2:
        st = sts[26]
        if cfg.uni and cfg.ucl:
            assert KVEND < st[4] - 3
            q.place(wdma(cfg, 0), [st[4] + 1, st[5] + 1, st[5] + 8, st[7] + 1])
        elif cfg.uni:
            st = sts[27]
            assert KVEND < st[0] - 6
            q.place(wdma(cfg, 0), [st[0] + 1, st[1] + 3, st[2] + 1, st[3] + 1])
            q.place(wdma(cfg, 1), [st[4] + 1, st[5] + 3, st[6] + 1, st[7] + 1])
            st = sts[28]
            q.place(wdma(cfg, 2), [st[0] + 1, st[1] + 1, st[1] + 8, st[2] + 5])
            q.place(wdma(cfg, 5), [st[3] + 3, st[3] + 5, st[3] + 7, st[4] + 1])
            q.place(wdma(cfg, 6), [st[5] + 8, st[6] + 1, st[6] + 5, st[7] + 5])
        else: q.place(wdma(cfg, 0), [st[2] + 7, st[4] + 1, st[5] + 8, st[7] + 1])
        if cfg.wv:
            st = sts[29]
            q.place(wdma(cfg, 6), [st[0] + 5, st[1] + 8, st[2] + 7, st[3] + 5])
            q.place(wdma(cfg, 4), [st[4] + 5, st[4] + 7, st[5] + 3, st[5] + 7])
            q.place(wdma(cfg, 7), [st[6] + 5, st[6] + 7, st[7] + 3, st[7] + 5])
        for j, (t0, t1) in (({27: (1, 5), 28: (2, 6), 29: (3, 7)} if not cfg.wv else {27: (1, 5), 28: (2, 3)}) if not cfg.uni or cfg.ucl else {29: (3, 7)}).items():
            st = sts[j]
            q.place(wdma(cfg, t0), [st[0] + 5, st[1] + 8, st[2] + 7, st[3] + 5])
            q.place(wdma(cfg, t1), [st[5] + 8, st[6] + 1, st[6] + 5, st[7] + 5])
    else:
        st = sts[27]
        q.place(wdma(cfg, 0), [st[5] + 8, st[6] + 1, st[6] + 5, st[7] + 5])
        st = sts[28]
        q.place(wdma(cfg, 1), [st[0] + 5, st[0] + 7, st[1] + 1, st[1] + 3])
        q.place(wdma(cfg, 2), [st[2] + 1, st[2] + 7, st[3] + 1, st[3] + 5])
        q.place(wdma(cfg, 3), [st[5] + 8, st[6] + 1, st[6] + 5, st[7] + 5])
        st = sts[29]
        q.place(wdma(cfg, 4), [st[0] + 5, st[0] + 7, st[1] + 1, st[1] + 3])
        q.place(wdma(cfg, 5), [st[2] + 1, st[2] + 3, st[2] + 5, st[2] + 7])
        q.place(wdma(cfg, 10), [st[3] + 5, st[3] + 7, st[4] + 1, st[4] + 3])
        q.place(wdma(cfg, 6), [st[5] + 8, st[6] + 1, st[6] + 5, st[7] + 5])
    if cfg.sig == "line": q.put(sts[26][3] + 1, "global_load_dword v255, v0, s[46:47] sc1 ;@arr")
    if cfg.tlb:
        so = ["s_mul_i32 s52, s43, 240", "s_mul_i32 s53, s54, 80", "s_add_u32 s52, s52, s53", "s_mul_i32 s52, s52, 1280", "s_lshl_b32 s53, s55, 7", "s_add_u32 s52, s52, s53"]
        st = sts[27]
        for k, x in enumerate(so): q.g[st[4] + 2 + k].insert(0, x)
        sd = srd(SOUT, 58, "s52", 79 * 1280 + 128)
        q.g[st[4] + 8][0:0] = sd[:2]; q.g[st[5]][0:0] = sd[2:]
        q.put(st[5] + 1, f"buffer_load_dword v16, off, s[{SOUT}:{SOUT+3}], 0")
        q.put(st[5] + 3, f"buffer_load_dword v16, off, s[{SO}:{SO+3}], 0")
        q.put(st[5] + 5, f"buffer_load_dword v16, off, s[{SOR}:{SOR+3}], 0")
    if cfg.wsched < 3:
        st = sts[28]
        q.g[st[5] + 8].insert(0, "WAITVM w0")
        q.g[sts[29][4]].insert(0, "WAITVM w1")
        for p, r in zip([st[5] + 8, st[6] + 1, st[6] + 3, st[6] + 5, st[6] + 7, st[7] + 1, st[7] + 1, st[7] + 3], wreads(0)): q.put(p, r)
        k = q.g[st[8] - 2].index("s_waitcnt lgkmcnt(0)"); q.g[st[8] - 2][k] = "s_waitcnt lgkmcnt(8)"
        st = sts[29]
        q.put(st[1] + 7, "s_waitcnt lgkmcnt(10)")
        for p, r in zip([st[4] + 1, st[4] + 5, st[5] + 1, st[5] + 5, st[5] + 8, st[6] + 1, st[6] + 3, st[6] + 5], wreads(1)): q.put(p, r)
        k = q.g[st[7]].index("s_waitcnt lgkmcnt(0)"); q.g[st[7]][k] = "s_waitcnt lgkmcnt(4)"
    st = sts[29]
    for p, r in zip([st[7] + k for k in (1, 1, 3, 5, 7, 8, 8)] + [st[8]], [kread(1, 3, 1, kt, ks) for kt in range(2) for ks in range(4)]):
        if p < st[8]: q.put(p, r)
        else: lastk = r
    for x in stamp_l(b, cfg, "t30"): q.put(len(q.m) - 1, "!" + x)
    if cfg.w3: q.put(len(q.m) - 1, "!L_sec1:")
    job = lambda k: (k >> 1, k & 1, k & 3)
    F = []
    for k in range(8):
        u, tb, sl = job(k)
        F.append(q.add(qk(u, tb, sl=sl)))
        if k < 2: F.append(q.add(pv(2 + k, 1)))
        else:
            u, tb, sl = job(k - 2); F.append(q.add(pv(u, tb, sl=sl)))
    for k in (6, 7):
        u, tb, sl = job(k); F.append(q.add(pv(u, tb, sl=sl)))
    F.append(len(q.m))
    sm_half(q, F[0], 3, 1)
    for k in range(8):
        sm_half(q, F[2 * k + 1], k & 3, 0); sm_half(q, F[2 * k + 2], k & 3, 1)
    q.put(F[0] + 1, lastk)
    v30 = [vread(0, 3, 0, dt, e) for dt in range(8) for e in range(2)]
    v31 = [vread(1, 3, 1, dt, e) for dt in range(8) for e in range(2)]
    if not cfg.split15:
        for p, r in zip([F[0] + k for k in (1, 3, 5, 5, 7)] + [F[1] + k for k in (1, 1, 3, 5, 5, 7)] + [F[2] + k for k in (1, 1, 3, 5, 5)], v30): q.put(p, r)
        q.put(F[1] + 8, "s_waitcnt lgkmcnt(10)")
        for p, r in zip([F[4] + k for k in (1, 1, 3, 5, 5, 7)] + [F[5] + k for k in (1, 1, 3, 5, 5, 7, 8, 8)] + [F[6] + k for k in (1, 1)], v31): q.put(p, r)
        q.put(F[4], "s_waitcnt lgkmcnt(0)")
        q.place(wdma(cfg, 11), [F[2] + 7, F[3] + 1, F[3] + 3, F[3] + 5])
        q.place(wdma(cfg, 7), [F[5] + 3, F[5] + 7, F[6] + 3, F[6] + 5])
    else:
        q.put(F[1] + 8, "WAITVM seg15 lgkmcnt(0)"); q.put(F[1] + 8, "s_barrier")
        for p, r in zip([F[2] + k for k in (1, 1, 3, 5, 5, 7)] + [F[3] + k for k in (1, 1, 3, 5, 5, 7, 8, 8)] + [F[4] + k for k in (1, 1)], v30): q.put(p, r)
        for p, r in zip([F[4] + k for k in (3, 5, 5, 7)] + [F[5] + k for k in (1, 1, 3, 5, 5, 7, 8, 8)] + [F[6] + k for k in (1, 1, 3, 3)], v31): q.put(p, r)
        q.put(F[5] - 1, "s_waitcnt lgkmcnt(3)")
        if cfg.wsched >= 3:
            pass
        elif cfg.wv:
            q.place(wdma(cfg, 10), [F[0] + 5, F[0] + 7, F[1] + 3, F[1] + 7] if cfg.wv == 1 else [F[2] + 4, F[2] + 6, F[3], F[3] + 2])
            q.place(wdma(cfg, 11), [F[4], F[4] + 2, F[4] + 4, F[4] + 6])
        elif cfg.wsched == 2:
            q.place(wdma(cfg, 4), [F[0] + 5, F[0] + 7, F[1] + 3, F[1] + 7])
            q.place(wdma(cfg, 10), [F[2] + 4, F[2] + 6, F[3], F[3] + 2])
            q.place(wdma(cfg, 11), [F[4], F[4] + 2, F[4] + 4, F[4] + 6])
        else:
            q.place(wdma(cfg, 11), [F[0] + 5, F[0] + 7, F[1] + 1, F[1] + 3])
            q.place(wdma(cfg, 7), [F[2], F[2] + 4, F[3] + 2, F[3] + 6])
    q.put(F[7] - 1, "s_waitcnt lgkmcnt(0)"); q.put(F[7] - 1, "s_barrier")
    issued = set(range(12))
    if cfg.wsched < 3:
        q.place(wdma(cfg, 8), [F[7] + 5, F[7] + 7, F[7] + 8, F[8] + 1])
        q.place(wdma(cfg, 9), [F[8] + 7, F[9] + 1, F[9] + 3, F[9] + 5])
    else:
        issued = set()
        free = {0: 0, 4: 0, 8: 0, 9: 0, 1: sts[27][4], 5: sts[27][4], 2: sts[29][4], 6: sts[29][4], 3: F[7], 7: F[7]}
        p = sts[26][4] + 1 + cfg.wdelay
        for t in range(cfg.wn):
            sp = cfg.wp if t < 5 else cfg.wp2
            p = max(p, free[UNIT[t]] + 6)
            ps = []
            for k in range(4):
                pp_ = p
                while t < 5 and q.slots(pp_) >= 2: pp_ += 1
                ps.append(pp_); p = max(p + sp, pp_ + (1 if k < 3 else 6))
            assert ps[-1] < F[18], (t, ps)
            q.place(wdma(cfg, t), ps); issued.add(t)
    if "nost" in cfg.exp: q.g[F[4]].insert(0, f"s_mov_b32 s{SO+2}, 0")
    def onorm(u, store=True):
        o = [f"v_accvgpr_read_b32 v16, a{L_(u)}"]
        if u in cfg.addu:
            t = LA[u]
            o += [f"v_mov_b32 v17, v{t}", f"v_permlane32_swap_b32 v{t}, v17", f"v_add_f32 v{t}, v{t}, v17",
                  f"v_mov_b32 v17, v{t}", f"v_permlane16_swap_b32 v{t}, v17", f"v_add_f32 v{t}, v{t}, v17", f"v_add_f32 v16, v16, v{t}"]
        o += ["v_cmp_ngt_f32 vcc, s36, v16", "v_rcp_f32 v16, v16", "s_or_b64 s[50:51], s[50:51], vcc", "v_mov_b32 v17, v16"]
        for m in range(4):
            t = O_(u, 0) + 4 * m
            o += scale_pack(cfg, O_(u, 2 * m), t, ("v16", "v[16:17]"), cfg.opk == 1 or (cfg.opk == 2 and u == 3))
            if store: o += ostore(u)[m:m + 1]
        if store: o += ostore(u)[4:]
        return o
    def ostore(u):
        return [f"buffer_store_dwordx4 {vr(O_(u,0)+4*m,4)}, v15, s[{SO}:{SO+3}], s30 offen offset:{1024*m} {cfg.oflags}".rstrip() + " ;@ost" for m in range(4)] + ["s_add_u32 s30, s30, 131072"]
    for k, x in enumerate([f"s_mov_b32 s36, {f32(cfg.lthr)}", "s_mov_b64 s[50:51], 0", "s_lshl_b32 s30, s3, 19", "s_lshl_b32 s31, s29, 12", "s_add_u32 s30, s30, s31"]):
        q.g[F[4] + 2 + k].insert(0, x)
    for k in (2, 4, 6, 8, 10, 12, 14, 16):
        for x in stamp_l(b, cfg, f"F{k}"): q.put(F[k] - 1, "!" + x)
    if cfg.epark:
        def epark(t, p0, refill_at):
            q.g[p0].insert(0, f"WAITVM w{t}")
            for k, r in enumerate(wreads(t)): q.put(p0 + 2 * (k // 2), r)
            if refill_at:
                q.place(wdma(cfg, t + 10), refill_at)
                q.g[refill_at[0]].insert(0, f"WAITLG p{t}")
        epark(2, F[7] + 1, [F[10] + 3, F[10] + 5, F[10] + 7, F[11] + 1])
        epark(3, F[9] + 1, [F[11] + 7, F[11] + 8, F[12] + 1, F[12] + 3])
        epark(5, F[11] + 2, [F[13] + 1, F[13] + 3, F[13] + 5, F[13] + 7])
        epark(6, F[13] + 2, [F[14] + 5, F[14] + 7, F[15] + 1, F[15] + 3])
        epark(7, F[14] + 1, [F[16] + 1, F[16] + 3, F[16] + 5, F[16] + 7])
        epark(4, F[15] + 2, [F[17] + 5, F[17] + 6, F[17] + 7, F[17] + 8])
        epark(8, F[16] + 2, None)
        epark(9, F[17] + 1, None)
    if cfg.fsig:
        for t, p0 in ((2, F[13] + 2), (3, F[14] + 1), (4, F[15] + 2), (5, F[16] + 1)):
            q.g[p0].insert(0, f"WAITVM w{t}")
            for k, r in enumerate(wreads(t)): q.put(p0 + 2 * (k // 2), r)
    if cfg.early == 1:
        e = q.stream(onorm(0), F[8] + 4, cap=cfg.ncap)
        e = q.stream(onorm(1), max(e, F[12] + 4), cap=cfg.ncap)
        e = q.stream(onorm(2), max(e, F[16] + 4), cap=cfg.ncap + 2)
    if cfg.early >= 2:
        e = q.stream(onorm(0, False), F[8] + 4, cap=cfg.ncap)
        e = q.stream(onorm(1, False), max(e, F[12] + 4), cap=cfg.ncap)
        e = q.stream(onorm(2, False), max(e, F[16] + 4), cap=cfg.ncap + 2)
        if cfg.early == 3:
            for k, x in enumerate(ostore(0) + ostore(1)): q.put(min(F[16] + 8 + k, F[18] - 1), x if kind(x) == "vm" else "!" + x)
    q.emit(b)
    if cfg.early == 2: b.ext(ostore(0) + ostore(1) + ostore(2))
    if cfg.early == 3: b.ext(ostore(2))
    if not cfg.early: b.ext(onorm(0) + onorm(1) + onorm(2))
    stamp(b, cfg, "loopend")
    if "nowo" in cfg.exp: b(f"s_mov_b32 s{SWO+2}, {WOSZ}")
    def park(t): return [f"WAITVM w{t}"] + wreads(t)
    def refill(t): return with_nop(wdma(cfg, t + 10))
    DU = UNIT[9 if cfg.epark else 2]
    if cfg.fsig:
        on3 = onorm(3)
        k3 = on3.index("s_or_b64 s[50:51], s[50:51], vcc") + 1
        b.ext(on3[:k3])
        if cfg.force_fb: b("s_mov_b64 s[50:51], -1")
        b("s_cmp_lg_u64 s[50:51], 0")
        b("s_cselect_b32 s52, 1, 0")
        b(f"s_add_u32 s53, s40, {16384*DU}")
        b("v_mov_b32 v20, s52")
        b("v_mov_b32 v21, s53")
        b("WAITLG p2")
        b("ds_write_b32 v21, v20")
        b.ext(on3[k3:])
        stamp(b, cfg, "stored")
        b("v_and_b32 v18, 3, v1")
        b("v_lshlrev_b32 v18, 12, v18")
        b(f"v_add_u32 v18, {16384*DU}, v18")
        b("s_waitcnt lgkmcnt(0)")
        b("s_barrier")
        b("ds_read_b32 v20, v18")
        b.ext(refill(3) + refill(4))
        b("s_waitcnt lgkmcnt(0)")
        b("v_cmp_ne_u32 vcc, 0, v20")
        b("s_cmp_eq_u32 s35, 0")
        b("s_cselect_b64 s[52:53], vcc, 0")
        b("s_cmp_lg_u64 s[52:53], 0")
        b("s_cbranch_scc1 L_exact")
        if cfg.fsig == 2: b.ext(park(6) + park(7))
    else:
        if cfg.wsched >= 3:
            DU = UNIT[0] if cfg.wn else UNIT[9]
            late = [t for t in range(10) if t not in issued]
            for t in late[:3]:
                if UNIT[t] != DU: b.ext(with_nop(wdma(cfg, t))); issued.add(t)
            if cfg.wn: b.ext(park(0))
        elif cfg.epark: b.ext(park(10) + park(11))
        else: b.ext(park(2) + park(3))
        b.ext(onorm(3))
        stamp(b, cfg, "stored")
        if cfg.force_fb: b("s_mov_b64 s[50:51], -1")
        b("s_cmp_lg_u64 s[50:51], 0")
        b("s_cselect_b32 s52, 1, 0")
        b(f"s_add_u32 s53, s40, {16384*DU}")
        b("v_mov_b32 v16, s52")
        b("v_mov_b32 v17, s53")
        b("v_and_b32 v18, 3, v1")
        b("v_lshlrev_b32 v18, 12, v18")
        b(f"v_add_u32 v18, {16384*DU}, v18")
        b("s_waitcnt lgkmcnt(0)")
        b("ds_write_b32 v17, v16")
        if cfg.wsched >= 3: pass
        elif cfg.epark: b.ext(refill(8) + park(12) + park(13))
        else: b.ext(refill(3) + park(4) + park(5))
        b("s_waitcnt lgkmcnt(0)")
        b("s_barrier")
        b("ds_read_b32 v20, v18")
        parked = [0] if cfg.wsched >= 3 and cfg.wn else []
        if cfg.wsched >= 3:
            for t in range(1, min(cfg.wn, 6)): b.ext(park(t)); parked.append(t)
        elif cfg.epark: b.ext(refill(10))
        else: b.ext(refill(4) + park(6) + park(7))
        b("s_waitcnt lgkmcnt(0)")
        b("v_cmp_ne_u32 vcc, 0, v20")
        b("s_cmp_eq_u32 s35, 0")
        b("s_cselect_b64 s[52:53], vcc, 0")
        b("s_cmp_lg_u64 s[52:53], 0")
        b("s_cbranch_scc1 L_redo" if cfg.epark else "s_cbranch_scc1 L_exact")
        if not cfg.sigfirst: b.ext(park(8) + park(9) + park(10) + park(11))
    if cfg.sig == "line":
        b("s_lshl_b32 s52, s28, 5")
        b("s_add_u32 s52, s52, s29")
        b("s_lshl_b32 s52, s52, 7")
        b(f"s_add_u32 s52, s52, {FOFF}")
    else:
        b("s_lshl_b32 s52, s28, 2")
        b("s_lshr_b32 s53, s29, 3")
        b("s_add_u32 s52, s52, s53")
        b("s_lshl_b32 s52, s52, 3")
    b("v_mov_b32 v16, s52")
    b("v_mov_b32 v17, 1")
    if cfg.wsched >= 3:
        for t in parked[1:3]: b.ext(refill(t)); issued.add(t + 10)
    elif cfg.epark: b.ext(refill(11))
    elif cfg.pre5: b.ext(refill(5))
    b("WAITVM ost")
    b("s_barrier")
    b("s_cmp_lg_u32 s3, 0")
    b("s_cbranch_scc1 L_nosig")
    b("s_mov_b64 exec, 1")
    if cfg.sig == "line": b("global_store_dword v16, v17, s[48:49] sc1 ;@skip")
    else: b("global_atomic_add v16, v17, s[46:47] sc1 ;@skip")
    b("s_mov_b64 exec, -1")
    b("L_nosig:")
    stamp(b, cfg, "signaled")
    b("s_lshr_b32 s52, s2, 3")
    b("s_cmp_ge_u32 s52, 30")
    b("s_cbranch_scc1 L_fin")
    if cfg.wsched >= 3:
        for t in range(10):
            if t not in issued: b.ext(with_nop(wdma(cfg, t))); issued.add(t)
        for t in parked:
            if t + 10 not in issued: b.ext(refill(t)); issued.add(t + 10)
        prev = None
        for t in range(12):
            if t in parked: continue
            b.ext(park(t))
            if prev is not None: b(f"WAITLG p{prev}"); b.ext(refill(prev))
            prev = t
        b("s_waitcnt lgkmcnt(0)")
        b.ext(refill(prev))
    elif cfg.epark:
        b.ext(refill(9) + refill(12))
    elif cfg.fsig:
        b.ext(refill(2) + ([] if cfg.fsig == 2 else park(6) + park(7)) + park(8) + park(9))
        b("WAITLG p7")
        b.ext(refill(6) + park(10) + park(11) + refill(7))
        b("s_waitcnt lgkmcnt(0)")
        for t in range(8, 12): b.ext(refill(t))
    elif cfg.sigfirst:
        b.ext(refill(2) + ([] if cfg.pre5 else refill(5)) + park(8) + park(9) + refill(6) + park(10) + park(11) + refill(7))
        b("s_waitcnt lgkmcnt(0)")
        for t in range(8, 12): b.ext(refill(t))
    else:
        b("s_waitcnt lgkmcnt(0)")
        b.ext(refill(2))
        for t in range(5, 12): b.ext(refill(t))
    b("s_lshl_b32 s52, s43, 2")
    b("s_add_u32 s52, s52, s3")
    if cfg.sig == "line":
        b("s_lshl_b32 s52, s52, 10")
        b(f"s_add_u32 s52, s52, {FOFF}")
        b("v_and_b32 v16, 7, v1")
        b("v_lshlrev_b32 v16, 7, v16")
        b("v_add_u32 v16, s52, v16")
        pbase = "s[48:49]"
    else:
        b("s_lshl_b32 s52, s52, 3")
        b("v_mov_b32 v16, s52")
        pbase = "s[46:47]"
    prev = 13 if cfg.epark else None
    for t in range(14 if cfg.epark else 12, cfg.R):
        if cfg.epoll and t == max(cfg.epoll, 14 if cfg.epark else 0): b(f"global_load_dword v17, v16, {pbase} sc1 ;@ep")
        b.ext(park(t))
        if prev is not None and prev + 10 < cfg.X:
            b("s_waitcnt lgkmcnt(8)")
            b.ext(refill(prev))
        prev = t
    b("s_waitcnt lgkmcnt(0)")
    if prev + 10 < cfg.X: b.ext(refill(prev))
    stamp(b, cfg, "parked")
    b("s_mov_b32 s34, 0x100000")
    want = 1 if cfg.sig == "line" else 8
    cmpi = "v_cmp_ne_u32 vcc, 1, v17" if cfg.sig == "line" else "v_cmp_gt_u32 vcc, 8, v17"
    if cfg.sig == "line":
        b("WAITVM arr")
        b("v_cmp_gt_u32 vcc, 8, v255")
        b("s_cbranch_vccz L_cleared")
        b("L_wclr:")
        b("global_load_dword v255, v0, s[46:47] sc1 ;@skip")
        b("s_waitcnt vmcnt(0)")
        b("v_cmp_gt_u32 vcc, 8, v255")
        b("s_sub_u32 s34, s34, 1")
        b("s_cselect_b64 vcc, 0, vcc")
        b("s_cbranch_vccnz L_wclr")
        b("s_branch L_poll")
        b("L_cleared:")
    if cfg.epoll:
        b("WAITVM ep")
        b(cmpi)
        b("s_cbranch_vccz L_ready")
    b("L_poll:")
    b(f"global_load_dword v17, v16, {pbase} sc1")
    b("s_waitcnt vmcnt(0)")
    b(cmpi)
    b("s_sub_u32 s34, s34, 1")
    b("s_cselect_b64 vcc, 0, vcc")
    b("s_cbranch_vccnz L_poll")
    b("L_ready:")
    stamp(b, cfg, "polled")
    worder = [x.split(";@")[1] for x in b.l if ";@w" in x and kind(x) == "vm"]
    check_setup(b.l, "tail")
    a.l += fix(resolve_waits(b.l))
    c = Asm(); c.stamps = a.stamps
    for t_ in worder: c(f"buffer_dummy ;@{t_}")
    ACC = lambda i, nt: 32 + 16 * i + 4 * nt
    OFB = [112, 132, 152, 172, 192]
    OF = lambda t, i: OFB[t % cfg.DO] + 4 * i
    def oload(t):
        return [x + f" ;@o{t}" for x in [f"s_add_u32 s30, s41, {t}", "s_lshl_b32 s30, s30, 10", "s_and_b32 s30, s30, 0x7fff"]] + \
            tag([f"buffer_load_dwordx4 {vr(OF(t,i),4)}, v{OAL[i]}, s[{SOR}:{SOR+3}], s30 offen {cfg.orflags}".rstrip() for i in range(5)], f"o{t}")
    for t in range(cfg.DO - 1): c.ext(oload(t))
    if not cfg.tlb:
        c("s_mul_i32 s52, s43, 240")
        c("s_mul_i32 s53, s54, 80")
        c("s_add_u32 s52, s52, s53")
        c("s_mul_i32 s52, s52, 1280")
        c("s_lshl_b32 s53, s55, 7")
        c("s_add_u32 s52, s52, s53")
        c.ext(srd(SOUT, 58, "s52", 79 * 1280 + 128))
    for j in range(1, 4):
        c(f"s_add_u32 s52, s3, {j}")
        c("s_and_b32 s52, s52, 3")
        c("s_mul_i32 s52, s52, 15360")
        c(f"v_add_u32 v{240+j}, s52, v15")
    c("s_mul_i32 s52, s3, 15360")
    c("v_add_u32 v240, s52, v15")
    c("v_mul_u32_u24 v244, 1280, v2")
    c("v_lshl_add_u32 v244, v3, 3, v244")
    nextw = cfg.X
    q = Seq()
    NL = cfg.NL
    for t in range(32 - NL):
        mf = []
        for i in range(5):
            for nt in range(4):
                d = vr(ACC(i, nt), 4)
                mf.append(f"{MF} {d}, {WS(t,nt)}, {vr(OF(t,i),4)}, {'0' if t == 0 else d}")
        q.raw([f"WAITVM o{t} lgkmcnt(0)"] + (stamp_l(c, cfg, f"p{t}") if t in (1, 4, 8, 16, 24) else []))
        g = q.add(mf)
        if t + cfg.DO - 1 < 32: q.place(oload(t + cfg.DO - 1), [g + 4, g + 6, g + 9, g + 12, g + 15])
        tr = t + cfg.R - 1
        if t >= 1 and tr < 32:
            q.g[g].insert(0, f"WAITVM w{tr}")
            for k, r in enumerate(wreads(tr)): q.put(g + 1 + k, r)
        if nextw < 32 and nextw - 10 <= t + cfg.R - 2 and (nextw - cfg.X) * cfg.wev <= t:
            q.place(wdma(cfg, nextw), [g + 10, g + 13, g + 16, g + 18])
            nextw += 1
        if t == 20: q.put(g + 19, "s_barrier")
    assert nextw == 32
    q.raw([f"WAITVM o{32-NL} lgkmcnt(0)"])
    wr = lambda i, j: f"ds_write_b128 v{240+j}, {vr(ACC(i,j),4)} offset:{5120*(j-1)+1024*i}"
    for i in range(5):
        mf = []
        for j in (1, 2, 3, 0):
            d = vr(ACC(i, j), 4)
            for t in range(32 - NL, 32):
                mf.append(f"{MF} {d}, {WS(t,j)}, {vr(OF(t,i),4)}, {d}")
        g = q.add(mf)
        if i == 0:
            for k in range(1, NL): q.g[g + k - 1].append(f"!WAITVM o{32-NL+k}")
        else:
            for j in range(1, 4): q.put(g + 2 + NL * (j - 1), wr(i - 1, j))
    RB = lambda i: 112 + 12 * i if i < 3 else 192 + 12 * (i - 3)
    rd = lambda i: [f"ds_read_b128 {vr(RB(i)+4*j,4)}, v240 offset:{5120*j+1024*i} ;@r{i}" for j in range(3)]
    def fin(i):
        bb = RB(i); ac = ACC(i, 0); o = [f"WAITLG r{i}"]
        for r in range(0, 4, 2):
            o += [f"v_pk_add_f32 {vr(ac+r,2)}, {vr(ac+r,2)}, {vr(bb+r,2)}", f"v_pk_add_f32 {vr(bb+4+r,2)}, {vr(bb+4+r,2)}, {vr(bb+8+r,2)}"]
        for r in range(0, 4, 2):
            o += [f"v_pk_add_f32 {vr(ac+r,2)}, {vr(ac+r,2)}, {vr(bb+4+r,2)}"]
        o += [f"v_cvt_pk_bf16_f32 v{ac}, v{ac}, v{ac+1}", f"v_cvt_pk_bf16_f32 v{ac+1}, v{ac+2}, v{ac+3}",
              f"buffer_store_dwordx2 {vr(ac,2)}, v244, s[{SOUT}:{SOUT+3}], s52 offen {cfg.outflags}".rstrip(), "s_add_u32 s52, s52, %d" % (16 * 1280)]
        return o
    if cfg.fin2:
        assert cfg.DO == 4 and NL == 2
        q.g[g + 1].insert(0, "s_barrier"); q.g[g + 1].insert(0, "s_waitcnt lgkmcnt(0)")
        for k, r in enumerate(rd(0) + rd(1) + rd(2)): q.put(g + 1 + min(k // 2 + (k > 3), 6), r)
        q.raw(stamp_l(c, cfg, "projdone") + ["s_lshl_b32 s52, s3, 5", wr(4, 1), wr(4, 2)])
        q.emit(c)
        c.ext(fin(0)[:5]); c(wr(4, 3)); c.ext(fin(0)[5:] + fin(1))
        c("s_waitcnt lgkmcnt(0)")
        c("s_barrier")
        c.ext(rd(3) + rd(4) + fin(2) + fin(3) + fin(4))
    else:
        q.raw(stamp_l(c, cfg, "projdone") + ["s_nop 1", wr(4, 1), wr(4, 2), "s_nop 1", wr(4, 3)])
        q.emit(c)
        c("s_waitcnt lgkmcnt(0)")
        c("s_barrier")
        for i in range(5): c.ext(rd(i))
        c("s_lshl_b32 s52, s3, 5")
        for i in range(5): c.ext(fin(i))
    check_setup(c.l, "proj")
    a.l += fix(resolve_waits(c.l))
    a("L_fin:")
    if cfg.stamps or cfg.calib:
        a("s_waitcnt vmcnt(0)")
        stamp(a, cfg, "end")
    if cfg.calib:
        a("s_waitcnt lgkmcnt(0)")
        a("s_or_b32 s52, s2, s3")
        a("s_cmp_lg_u32 s52, 0")
        a("s_cbranch_scc1 L_end")
        a(f"s_sub_u32 s52, s{62+4*cfg.cal_j}, s{62+4*cfg.cal_i}")
        a("s_lshl_b32 s52, s52, 2")
        a("s_add_u32 s52, s52, s62")
        a("L_spin:")
        a("s_memrealtime s[56:57]")
        a("s_waitcnt lgkmcnt(0)")
        a("s_sub_u32 s56, s56, s52")
        a(f"s_cmp_lt_i32 s56, {cfg.calib*100}")
        a("s_cbranch_scc1 L_spin")
    if cfg.stamps:
        stamps_out(a, cfg, 64 << 20)
    a("L_end:")
    a("s_endpgm")
    if cfg.w3:
        i0, i1 = a.l.index("L_sec0:"), a.l.index("L_sec1:")
        dead_v = set(("v", r) for r in list(range(128, 160)) + list(range(184, 192)) + list(range(204, 208)) + list(range(220, 224)))
        dead_a = set(("a", r) for r in range(48, 64))
        sec = []; skip = False
        for x in a.l[i0 + 1:i1]:
            if x == "s_and_b32 s52, s2, 31": skip = True
            if skip:
                if x == "L_noarr:": skip = False
                continue
            if x.endswith(":") or x.startswith(".") or x.startswith(";"):
                if x == "L_loop:":
                    z = [f"v_mov_b32 v{r}, 0" for _, r in sorted(dead_v)] + [f"v_accvgpr_write_b32 a{r}, 0" for r in list(range(48, 64)) + list(range(204, 208))]
                    k = sec.index(".p2align 6"); sec[k:k] = z
                    w3body0 = len(sec) + 1
                    x = "L_loop3:"
                sec.append(x); continue
            if x.startswith("s_nop"): continue
            ins = parse(x)
            if ins["k"] == "mfma" and (ins["D"] & dead_v or ins["Dtok"] == "a[204:207]"): continue
            if ins["k"] == "valu" and (ins["wr"] & (dead_v | dead_a) or ins["rd"] & set(("v", r) for r in range(128, 160))): continue
            if x == "s_cbranch_scc1 L_loop": x = "s_cbranch_scc1 L_loop3"
            sec.append(x)
        sec = fix(sec)
        l0 = sec.index("L_loop3:"); l1 = sec.index("s_cbranch_scc1 L_loop3")
        assert check(sec[l0:l1 + 1] * 2, "w3-loop") == 0 and check(sec + a.l[i1:i1 + 40], "w3-exit") == 0 and check(a.l[i0 - 30:i0] + sec, "w3-entry") == 0
        a("L_w3:")
        a.ext(sec)
        a("s_branch L_sec1")
    if cfg.epark:
        a("L_redo:")
        a("s_mov_b32 s35, 1")
        a("s_lshl_b32 s52, s3, 6")
        a("v_or_b32 v0, s52, v1")
        a("s_waitcnt vmcnt(0) lgkmcnt(0)")
        a("s_barrier")
        a("s_branch L_restart")
    a("L_exact:")
    ex0 = len(a.l)
    a("s_mov_b32 s35, 1")
    a(f"s_mov_b32 s{SK+2}, {KVBYTES}")
    a(f"s_mov_b32 s{SV+2}, {KVBYTES}")
    a("s_mov_b32 s33, s40" if not cfg.uni else "s_lshl_b32 s33, s3, 10")
    a("s_waitcnt vmcnt(0) lgkmcnt(0)")
    a("L_exact_loop:")
    a("s_barrier")
    if cfg.uni:
        for n_ in range(4): a.ext(["s_and_b32 m0, s33, 0x3fff", "s_nop 0", dma(KDA, SK, "s33", 0, cfg.kvflags), "s_add_u32 s33, s33, 4096"])
    else:
        a.ext(with_nop(kdma(cfg, 0)))
        a(ADV)
    a("s_waitcnt vmcnt(0)")
    a("s_barrier")
    for th in range(2):
        for kt in range(2):
            for ks in range(4): a(kread(0, 0, th, kt, ks))
        a("s_waitcnt lgkmcnt(0)")
        for u in range(4): a.ext(qk(u, 0, True))
        a("s_nop 7")
        for u in range(4):
            s0 = S_(u, 0)
            for r in range(0, 8, 2):
                a(f"v_max3_f32 v{MTR+u}, v{MTR+u}, v{s0+r}, v{s0+r+1}")
    a(f"s_cmp_lt_u32 s33, {KVBYTES}")
    a("s_cbranch_scc1 L_exact_loop")
    a("s_barrier")
    a("s_mov_b32 s33, s40" if not cfg.uni else "s_lshl_b32 s33, s3, 10")
    a.ext([x.split(" ;@")[0] for x in with_nop(sum([piece(cfg, gp, False) if not cfg.uni else upiece(cfg, gp) for gp in range(NP)], []))])
    a("s_waitcnt vmcnt(0)")
    a("s_barrier")
    a.ext(k0r + v0r)
    a("s_waitcnt lgkmcnt(0)")
    a.ext(k1r)
    for u in range(4): a.ext(qk(u, 0, True))
    a.ext(ones)
    a("s_nop 7")
    a.ext(fix(merge(*[fmax(u) for u in range(4)]) + merge(*[fexp(u, 8 if u < 3 else 4) for u in range(4)])))
    a("s_nop 1")
    a.ext(pv(0, 0, True) + pv(1, 0, True))
    a("s_waitcnt lgkmcnt(0)")
    q = Seq(); st1 = attn_tile(cfg, q, 1, "first")
    if cfg.uni:
        q.place(upiece(cfg, NP), [st1[4] + 1]); q.place(upiece(cfg, NP + 1), [st1[6] + 1])
    x1 = Asm()
    for t_ in ["seg1"]: x1("buffer_dummy ;@seg1")
    q.emit(x1)
    a.l += resolve_waits(x1.l)
    a("s_mov_b32 s34, 3")
    a("s_branch L_loop")
    bad = check(a.l[:ex0], "main") + check(body + body, "attn-loop") + check(a.l[ex0:] + body, "exact")
    assert bad == 0
    return a

HEADER = """; Kernarg layout for this problem (64 bytes, ptrs only, base s[0:1]):
;   offset  56: d_ws      [0, 15.7 MB) attention output O as MFMA fragments, [24 MB, +32 KB) hand-off words
;
;     p = exp2(.), o^T += V^T p^T, row sums by an MFMA with a ones operand.  m is the row maximum of the first key tile; if any
;     wave w contracts over heads 8w..8w+7 once their words are set, partial sums meet in LDS.
; @launch grid=(256,1,1) block=(256,1,1) lds=163840"""

def build(cfg):
    k = NAME + "_kernel"
    out = []
    out.append(HEADER)
    out.append('.amdgcn_target "amdgcn-amd-amdhsa--gfx950"')
    out.append(".text")
    out.append(f".globl {k}\n.p2align 8\n.type {k},@function\n{k}:")
    out.append(gen(cfg).text())
    out.append('.section .rodata,"a"')
    out.append(f""".p2align 6
.amdhsa_kernel {k}
  .amdhsa_next_free_vgpr 512
  .amdhsa_next_free_sgpr 102
  .amdhsa_accum_offset 256
  .amdhsa_group_segment_fixed_size 0
  .amdhsa_kernarg_size 64
  .amdhsa_user_sgpr_count 2
  .amdhsa_user_sgpr_kernarg_segment_ptr 1
  .amdhsa_system_sgpr_workgroup_id_x 1
.end_amdhsa_kernel
""")
    return "\n".join(out)

if __name__ == "__main__":
    cfg = Cfg()
    path = sys.argv[1]
    for kv in sys.argv[2:]:
        k, v = kv.split("=", 1)
        old = getattr(cfg, k)
        setattr(cfg, k, type(old)(eval(v)) if isinstance(old, (bool, int, float, tuple)) else v)
    txt = build(cfg)
    open(path, "w").write(txt)
```

```python
import sys, math, struct
from asmlib import *

NAME = "standalone__mha_block_cached__near_ridge"
def f32(x): return struct.unpack("<I", struct.pack("<f", x))[0]
MF = "v_mfma_f32_16x16x32_bf16"

class Cfg:
    kvflags = "nt"
    oflags = "sc1"
    orflags = "sc1"
    xflags = ""
    bflags = ""
    stamps = False
    only = ""
    qspread = 4
    kvpace = 13.0
    lthr = 2.0 ** 40
    force_fb = False
    rot = 5
    rA = 0
    DO = 4
    NL = 2
    joint = 1
    opk = 2
    qd0 = 3
    qdn = 4
    kvdelay = 0
    trunc = False
    lds_fin = -1
    kvp2 = 0.0
    kvsw = 31
    lds_last = 5
    pad = 0
    prio = 0
    ucl = 0
    uph = 0.3
    fin2 = 1
    mapx = 0
    map3b = 0
    lazy = ()
    c0same = 0
    roff = 5
    fsig = 2
    bm = 0
    bmi = 0
    wv = 2
    jcap = 2
    uni = 0
    ipre = 32
    upi = 30
    urest = 9
    w3 = 1
    wn = 10
    wp = 17
    wp2 = 4
    wdelay = 0
    R = 19
    epark = 0
    addu = ()
    tlb = 0
    fast0 = 1
    c1first = 0
    pre5 = 1
    early = 1
    cwarm = 1
    wl2 = 0
    wl2f = ""
    lag = 4
    split0 = 0
    wsched = 2
    b1 = 24
    bsp = 50
    split15 = 1
    sigfirst = 1
    outflags = ""
    wpull = 0
    epoll = 15
    touch = ()
    tpos = 52
    tl = 16
    tflags = ""
    tkv = "v"
    dmode = "even"
    xs = (0, 0, 0, 0, 0)
    k0at = 5
    X = 29
    wev = 1.0
    ncap = 3
    sig = "line"
    pkmul = False
    qord = 0
    exp = ""
    calib = 0
    cal_i = 0
    cal_j = 0

O_ = lambda u, dt: 32 + 32 * u + 4 * dt
S_ = lambda u, kt: 160 + 8 * u + 4 * kt
P_ = lambda u: 192 + 4 * u
NM = lambda u: 208 + 4 * u
KRA, VRA, KDA, VDA, MTR = 224, 228, 236, 240, 242
WD = 246
XDA, WDA, XRA, WRA = 192, 200, 204, 210
Q_ = lambda u, m: 16 * u + 4 * m
KF = lambda b, kt, ks: 64 + 32 * b + 16 * kt + 4 * ks
VF = lambda b, dt: 128 + 32 * b + 4 * dt
L_ = lambda u: 192 + 4 * u
ONES = 208
WF = lambda b, s, dt: ar([160, 0, 96][b] + 32 * s + 4 * dt, 4)
WF2 = lambda b, s, dt, e: ar([160, 0, 96][b] + 32 * s + 4 * dt + 2 * e, 2)
XF = lambda b, s, u: vr([224, 64, 160][b] + 16 * s + 4 * u, 4, "aav"[b])
SX, SW, SK, SV, SO = 8, 12, 16, 20, 24
SWO, SOR, SOUT = 8, 12, 4
KVBYTES = 262144
XBASE = [(131072, 147456), (65536, 16384), (32768, 49152)]
WWIN = 81920
WOFF = [32768, 0, 16384]
UNIT = [0, 4, 8, 9, 1, 5, 2, 6, 3, 7]
UNIT2 = [0, 4, 9, 5, 6, 8, 1, 2, 3, 7]
UNIT3 = [0, 4, 9, 1, 2, 8, 5, 6, 3, 7]
WRL = [[28, 29, 30, 31], [250, 251, 252, 253], [7, 8, 9, 10]]
OAL = [4, 5, 13, 14, 254]
WBLK = [224, 240, 64, 80, 96, 112, 128, 144, 160, 176, 208, 192, 0, 16, 32, 48]
WBLK2 = [224, 240, 0, 16, 48, 32, 64, 80, 96, 112, 128, 144, 160, 176, 208, 192]
def WS(t, nt, e=None):
    b = WBLK[t % len(WBLK)]
    f = "a" if b >= 0 else "v"
    return vr(abs(b) + 4 * nt, 4, f) if e is None else vr(abs(b) + 4 * nt + 2 * e, 2, f)
def wreads(t):
    u_ = UNIT[t % 10]
    return [f"ds_read_b64_tr_b16 {WS(t,nt,e)}, v{WRL[u_>>2][nt]} offset:{16384*(u_&3)+2048*e} ;@p{t}" for nt in range(4) for e in range(2)]
FOFF = 24 << 20
WOSZ = 1024 * 1280 - 9 * 128
ORSZ = 4 * 131072 + 32768

class Seq:
    def __init__(self): self.m = []; self.g = []
    def add(self, mfmas):
        n = len(self.m); self.m += mfmas; self.g += [[] for _ in mfmas]; return n
    def raw(self, lines):
        self.m.append(None); self.g.append(["!" + x for x in lines]); return len(self.m) - 1
    def put(self, i, x): self.g[i].append(x)
    def slots(self, i):
        n = 0
        for x in self.g[i]:
            k = kind(x.lstrip("!"))
            if k in ("ds", "vm", "valu"): n += 2 if x.lstrip("!").startswith(TRANS) else 1
        return n
    def place(self, lst, vmpos):
        vmpos = list(vmpos); pend = []; last = None
        for x in lst:
            if kind(x) == "vm":
                p = vmpos.pop(0)
                assert not pend or last is None or p - len(pend) > last, (lst, p, last)
                for k, s in enumerate(reversed(pend)): self.g[p - 1 - k].insert(0, s)
                pend = []; self.g[p].append(x); last = p
            else: pend.append(x)
        for k, s in enumerate(pend): self.g[last + 1 + k].insert(0, s)
    def stream(self, lst, start, cap=2, end=None):
        i = start
        for x in lst:
            c = 2 if x.startswith(TRANS) else (0 if kind(x) == "s" else 1)
            while self.slots(i) + c > cap and (end is None or i < end) and i + 1 < len(self.m): i += 1
            self.g[i].append("!" + x)
        return i
    def emit(self, a): emit_gaps(a, self.m, self.g)

def stamp_l(a, cfg, name):
    if (cfg.stamps or cfg.calib) and (cfg.only == "" or name in cfg.only.split(",") or name in ("start", "end")):
        i = len(a.stamps); a.stamps.append(name)
        assert i < 10
        return [f"s_memtime s[{60+4*i}:{61+4*i}]", f"s_memrealtime s[{62+4*i}:{63+4*i}]"]
    return []
def stamp(a, cfg, name): a.ext(stamp_l(a, cfg, name))

def stamps_out(a, cfg, wsoff):
    n = len(a.stamps)
    a.l.insert(0, "; stamps " + str(wsoff >> 20) + " " + " ".join(a.stamps))
    a("s_waitcnt lgkmcnt(0)")
    a(f"s_add_u32 s48, s48, {wsoff}")
    a("s_addc_u32 s49, s49, 0")
    a("s_mov_b32 s50, 0x100000")
    a("s_mov_b32 s51, 0x20000")
    a("s_lshl_b32 s52, s2, 2")
    a("s_add_u32 s52, s52, s3")
    a("s_lshl_b32 s52, s52, 7")
    a("v_mov_b32 v6, s52")
    a("v_cmp_eq_u32 vcc, 0, v1")
    a("s_and_saveexec_b64 s[54:55], vcc")
    for i in range(n):
        a(f"v_mov_b32 v4, s{60+4*i}")
        a(f"v_mov_b32 v5, s{62+4*i}")
        a(f"buffer_store_dwordx2 v[4:5], v6, s[48:51], 0 offen offset:{8*i}")
        a("s_nop 1")
    a("s_getreg_b32 s53, hwreg(HW_REG_XCC_ID)")
    a("v_mov_b32 v4, s53")
    a("buffer_store_dword v4, v6, s[48:51], 0 offen offset:120")
    a("v_mov_b32 v4, 0x5157")
    a(f"v_mov_b32 v5, {n}")
    a("buffer_store_dwordx2 v[4:5], v6, s[48:51], 0 offen offset:112")
    a("s_mov_b64 exec, s[54:55]")

def srd(s, plo, off_s, size):
    return [f"s_add_u32 s{s}, s{plo}, {off_s}", f"s_addc_u32 s{s+1}, s{plo+1}, 0", f"s_mov_b32 s{s+2}, {size}", f"s_mov_b32 s{s+3}, 0x20000"]
def dma(vaddr, sdesc, soff, imm, flags=""):
    o = f" offset:{imm}" if imm else ""
    f = f" {flags}" if flags else ""
    return f"buffer_load_dwordx4 v{vaddr}, s[{sdesc}:{sdesc+3}], {soff} offen{o}{f} lds"
def tag(lst, t):
    return [x + f" ;@{t}" if kind(x) == "vm" else x for x in lst]
def check_setup(lines, name):
    last = {}
    for x in lines:
        if ";@" not in x:
            if kind(x) == "s" and not x.endswith(":") and len(x.split()) > 1 and x.split()[1].rstrip(",") in ("m0", "s42", "s30"): last[x.split()[1].rstrip(",")] = None
            continue
        t = x.split(";@")[1]
        if kind(x) == "s": last[x.split()[1].rstrip(",")] = t
        elif t[0] == "w" and t[1:].isdigit() and not x.startswith("buffer_dummy"):
            assert last.get("m0") == t and last.get("s42") == t, (name, x, last)
        elif t[0] == "o" and t[1:].isdigit() and not x.startswith("buffer_dummy"):
            assert last.get("s30") == t, (name, x, last)
def with_nop(lst):
    o = []
    for x in lst:
        o.append(x)
        if " m0," in x: o.append("s_nop 0")
    return o

def resolve_waits(lines):
    out = []; seq = []; lseq = []
    for x in lines:
        if x.startswith("WAITLG"):
            t = x.split()[1]
            idx = max(i for i, v in enumerate(lseq) if v == t)
            out.append(f"s_waitcnt lgkmcnt({min(len(lseq) - 1 - idx, 15)})")
            continue
        if x.startswith("ds_"): lseq.append(x.split(";@")[1] if ";@" in x else "")
        if x.startswith("WAITVM"):
            p = x.split(None, 2)
            idx = max(i for i, t in enumerate(seq) if t == p[1])
            n = min(len(seq) - 1 - idx, 63)
            out.append(f"s_waitcnt vmcnt({n})" + (" " + p[2] if len(p) > 2 else ""))
            continue
        if not (x.endswith(":") or x.startswith(".") or x.startswith(";")) and kind(x) == "vm" and not x.endswith(";@skip"):
            seq.append(x.split(";@")[1] if ";@" in x else "")
        if not x.startswith("buffer_dummy"): out.append(x.split(" ;@")[0])
    return out

def kdma(cfg, slot, so="s33"):
    return [f"s_add_u32 m0, s40, {16384*slot}"] + [dma(KDA + pp, SK, so, 1024 * pp, cfg.kvflags) for pp in range(4)]
def vdma(cfg, slot, so="s33"):
    return [f"s_add_u32 m0, s40, {65536+16384*slot}"] + [dma(VDA + (pp & 1), SV, so, 1024 * pp, cfg.kvflags) for pp in range(4)]
ADV = "s_add_u32 s33, s33, 16384"
def upiece(cfg, gp):
    sg = gp >> 3
    if gp & 1: return ["s_or_b32 m0, m0, 0x10000", dma(VDA, SV, "s33", 0, cfg.kvflags) + f" ;@seg{sg}", "s_add_u32 s33, s33, 4096"]
    return ["s_and_b32 m0, s33, 0xffff", dma(KDA, SK, "s33", 0, cfg.kvflags) + f" ;@seg{sg}" + ("k" if sg == 15 else "")]
def piece(cfg, gp, setm0, guard=False):
    sg, kv, pp = gp // 8, (gp % 8) // 4, gp % 4
    grp = (vdma if kv else kdma)(cfg, sg & 3)
    o = ([grp[0]] if pp == 0 or setm0 else []) + tag([grp[1 + pp]], f"seg{sg}" + ("k" if kv == 0 else ""))
    if gp % 8 == 7:
        o += [ADV]
        if guard: o += [f"s_cmp_lt_u32 s33, {KVBYTES}", f"s_cselect_b32 s{SK+2}, {KVBYTES}, 0"]
    return o
def wdma(cfg, t):
    return [x + f" ;@w{t}" for x in [f"s_add_u32 s42, s41, {t}", "s_and_b32 s42, s42, 31", "s_mul_i32 s42, s42, 40960", f"s_add_u32 m0, s40, {16384*UNIT[t%10]}"]] + \
        tag([dma(WD + pp, SWO, "s42", 1024 * pp, cfg.bflags) for pp in range(4)], f"w{t}")
def kread(buf, slot, th, kt, ks):
    return f"ds_read_b128 {ar(KF(buf,kt,ks),4)}, v{KRA+ks} offset:{16384*slot+8192*th+4096*kt}"
def vread(buf, slot, th, dt, e):
    return f"ds_read_b64_tr_b16 {ar(VF(buf,dt)+2*e,2)}, v{VRA+dt} offset:{16384*slot+8192*th+4096*e}"

def qk(u, kb, czero=False, sl=None):
    m = []
    for kt in range(2):
        d = vr(S_(u if sl is None else sl, kt), 4)
        for ks in range(4):
            c = ("0" if czero else vr(NM(u), 4)) if ks == 0 else d
            m.append(f"{MF} {d}, {ar(KF(kb,kt,ks),4)}, {ar(Q_(u,ks),4)}, {c}")
    return m
LA = {0: 18, 1: 19}
def pv(u, vb, czero=False, sl=None, lsum=True):
    m = []
    p = vr(P_(u if sl is None else sl), 4)
    for dt in range(8):
        d = vr(O_(u, dt), 4)
        m.append(f"{MF} {d}, {ar(VF(vb,dt),4)}, {p}, {'0' if czero else d}")
    d = ar(L_(u), 4)
    if lsum: m.append(f"{MF} {d}, {ar(ONES,4)}, {p}, {'0' if czero else d}")
    return m
TRUNC = [False]
def ppack(d, s):
    return f"v_perm_b32 v{d}, v{s+1}, v{s}, s39" if TRUNC[0] else f"v_cvt_pk_bf16_f32 v{d}, v{s}, v{s+1}"
def sm_half(q, g0, u, kt, add=False):
    s = S_(u, kt)
    for r in range(4):
        if add: q.put(g0 + 2 * r + 1, f"v_add_f32 v{LA[u]}, v{LA[u]}, v{s+r}")
        q.put(g0 + 2 * r, f"v_exp_f32 v{s+r}, v{s+r}")
        if r & 1: q.put(g0 + 2 * r + 1, ppack(P_(u) + 2 * kt + r // 2, s + r - 1))

def attn_tile(cfg, q, j, mode="loop"):
    kb = vb = j & 1
    slot, th = (j >> 1) & 3, j & 1
    nslot, nth = ((j + 1) >> 1) & 3, (j + 1) & 1
    z = mode == "first"
    addu = cfg.addu if mode == "loop" else ()
    groups = [qk(0, kb), pv(2, vb ^ 1, z), qk(1, kb), pv(3, vb ^ 1, z), qk(2, kb), pv(0, vb, lsum=0 not in addu), qk(3, kb), pv(1, vb, lsum=1 not in addu)]
    st = [q.add(g) for g in groups]; st.append(len(q.m))
    sm_half(q, st[0], 3, 1)
    for u in range(3):
        sm_half(q, st[2 * u + 1], u, 0, u in addu)
        sm_half(q, st[2 * u + 2], u, 1, u in addu)
    sm_half(q, st[7], 3, 0)
    vr_ = [vread(vb, slot, th, dt, e) for dt in range(8) for e in range(2)]
    NV = 6 if 0 in cfg.addu else 0
    if 0 in addu: pos = [st[0] + k for k in (1, 3, 5, 5, 7)] + [st[1] + k for k in (1, 5, 8, 8)] + [st[2] + 5]
    else: pos = [st[0] + k for k in (1, 3, 5, 5, 7)] + [st[1] + k for k in (1, 1, 3, 5, 5, 7, 8)] + [st[2] + k for k in (1, 3, 5, 5)]
    for p, r in zip(pos, vr_[16 - len(pos):]): q.put(p, r)
    mid = st[4] - 1
    if j & 1:
        if mode == "loop": q.put(mid, f"s_waitcnt vmcnt({16-cfg.lag if not cfg.bm else (18 if cfg.bm == 3 else 14)-cfg.lag}) lgkmcnt(0)" if not cfg.uni else "UNIWAIT")
        else: q.put(mid, f"WAITVM seg{(j+1)//2}{'k' if j == 29 and cfg.split15 else ''} lgkmcnt(0)")
        q.put(mid, "s_barrier")
    else:
        q.put(mid, "s_waitcnt lgkmcnt(0)")
    kr_ = [kread(kb ^ 1, nslot, nth, kt, ks) for kt in range(2) for ks in range(4)]
    if 1 in addu: pos = [st[4] + 5] + [st[5] + k for k in (1, 1, 3, 5, 5, 7)] + [st[6] + 1]
    else: pos = [st[4] + k for k in (1, 3, 5, 7)] + [st[5] + k for k in (1, 3, 5, 7)]
    for p, r in zip(pos, kr_): q.put(p, r)
    if NV and mode != "final":
        nvr = [vread(vb ^ 1, nslot, nth, dt, e) for dt in range(8) for e in range(2)][:NV]
        for p, r in zip([st[6] + 3, st[6] + 5, st[6] + 5, st[6] + 7, st[7] + 1, st[7] + 1], nvr): q.put(p, r)
        q.put(st[8] - 2, f"s_waitcnt lgkmcnt({NV})")
    else:
        q.put(st[8] - 2 if j != 29 else st[7], "s_waitcnt lgkmcnt(0)")
    nlast = cfg.lds_last if mode != "final" else (cfg.lds_fin if cfg.lds_fin >= 0 else cfg.lds_last)
    if nlast:
        cand = [i for i in range(st[0], st[8]) if any(x.startswith(("v_cvt", "v_perm")) for x in q.g[i]) and any(x.startswith("ds_read") for x in q.g[i])]
        for k in range(nlast):
            i = cand[(k * len(cand)) // nlast]
            c_ = [x for x in q.g[i] if x.startswith(("v_cvt", "v_perm"))][0]; r_ = [x for x in q.g[i] if x.startswith("ds_read")][0]
            q.g[i].remove(c_); q.g[i].remove(r_); q.g[i] += ["!" + c_, "!" + r_]
    dpos = [st[0] + 1, st[2] + 1, st[4] + 1, st[6] + 1]
    if cfg.bm:
        assert cfg.lag % 4 == 2
        dpos = {1: [st[4] + 1, st[4] + 5, st[5] + 1, st[5] + 5], 2: [st[4] + 1, st[4] + 3, st[4] + 5, st[4] + 7], 3: [st[2] + 7, st[3] + 1, st[3] + 3, st[3] + 5],
                4: [st[4] + 1, st[4] + 2, st[4] + 3, st[4] + 4]}[cfg.bm]
    for k in range(0 if not cfg.uni else 4, 4):
        gp = 4 * j + 26 + k - cfg.lag
        if mode == "first" and k < 2 and not cfg.bm: continue
        if mode == "final":
            if gp < 128: q.place(piece(cfg, gp, True), [[st[0] + 1, st[0] + 5, st[1] + 1, st[1] + 3][k] if cfg.wsched in (0, 2) else dpos[k]])
            continue
        q.place(piece(cfg, gp, False, cfg.lag < 2), [dpos[k]])
    return st

def rowmax_l(t, t2):
    return [f"v_mov_b32 v{t2}, v{t}", "s_nop 1", f"v_permlane32_swap_b32 v{t}, v{t2}", f"v_max_f32 v{t}, v{t}, v{t2}",
            f"v_mov_b32 v{t2}, v{t}", "s_nop 1", f"v_permlane16_swap_b32 v{t}, v{t2}", f"v_max_f32 v{t}, v{t}, v{t2}"]

def scale_pack(cfg, b0, t, mul, pk):
    o = []
    if pk: o += [f"v_pk_mul_f32 {vr(b0+2*i,2)}, {vr(b0+2*i,2)}, {mul[1]}" for i in range(4)]
    else: o += [f"v_mul_f32 v{b0+i}, {mul[0]}, v{b0+i}" for i in range(8)]
    o += [f"v_cvt_pk_bf16_f32 v{t+i}, v{b0+2*i}, v{b0+2*i+1}" for i in range(4)]
    return o

def gen(cfg):
    if cfg.wsched == 2: UNIT[:] = UNIT2 if not cfg.wv else UNIT3
    TRUNC[0] = cfg.trunc
    if cfg.epark: WBLK[:] = WBLK2
    WBLK.extend([-224, -208, -192, -176][:cfg.R - 16])
    assert 112 + 20 * cfg.DO <= 240 - 16 * (cfg.R - 16)
    a = Asm()
    a("s_cmp_ge_u32 s2, 256")
    a("s_cbranch_scc1 L_end")
    a("s_mov_b32 s35, 0")
    a("L_restart:")
    stamp(a, cfg, "start")
    a("s_load_dwordx4 s[4:7], s[0:1], 0")
    a("s_load_dwordx4 s[44:47], s[0:1], 16")
    a("v_lshrrev_b32 v2, 6, v0")
    a("v_and_b32 v1, 63, v0")
    a("v_readfirstlane_b32 s3, v2")
    a("s_and_b32 s50, s2, 7")
    a("s_lshr_b32 s51, s2, 3")
    a("s_and_b32 s52, s51, 3")
    a("s_lshr_b32 s53, s51, 2")
    a("s_bfe_u32 s28, s2, 0x10000")
    a("s_lshl2_add_u32 s28, s28, s52")
    a("s_lshr_b32 s54, s50, 1")
    a("s_lshl3_add_u32 s29, s54, s53")
    a("s_add_u32 s52, s52, s53")
    a("s_and_b32 s52, s52, 1")
    a(f"s_mul_i32 s32, s52, {cfg.roff}")
    a("s_add_u32 s54, s54, s50")
    a("s_and_b32 s54, s54, 1")
    a("s_lshl1_add_u32 s32, s54, s32")
    if cfg.mapx:
        a("s_mov_b32 s28, s50")
        a("s_mov_b32 s29, s51")
        a("s_mul_i32 s32, s50, 5")
        a("s_lshr_b32 s32, s32, 2")
        if cfg.mapx == 2:
            a("s_and_b32 s52, s51, 1")
            a("s_mul_i32 s52, s52, 5")
            a("s_add_u32 s32, s32, s52")
            a("s_cmp_ge_u32 s32, 10")
            a("s_cselect_b32 s52, 10, 0")
            a("s_sub_u32 s32, s32, s52")
    if cfg.c0same:
        a("s_mov_b32 s30, %d" % (9 << 7))
        a("s_mov_b32 s31, %d" % (9 << 19))
    else:
        a("s_lshl_b32 s30, s32, 7")
        a("s_lshl_b32 s31, s32, 19")
    a("s_lshl_b32 s40, s3, 12")
    a("s_lshl1_add_u32 s36, s40, %d" % XBASE[0][0])
    a("s_add_u32 s39, s40, %d" % WWIN)
    a("v_lshrrev_b32 v3, 4, v1")
    a("v_lshrrev_b32 v4, 3, v1")
    a("v_and_b32 v5, 7, v1")
    a("v_and_b32 v2, 15, v1")
    a("s_mul_i32 s52, s3, %d" % (64 * 1280))
    a("v_mul_u32_u24 v8, 1280, v4")
    a("v_xor_b32 v9, v3, v5")
    a("v_lshlrev_b32 v9, 4, v9")
    a(f"v_add3_u32 v{XDA}, v9, s52, v8")
    a(f"v_xor_b32 v17, 64, v{XDA}")
    for pp in range(1, 8):
        a(f"v_add_u32 v{XDA+pp}, {10240*pp-1024*(pp&3)}, v{17 if pp & 1 else XDA}")
    a("s_lshl_b32 s52, s3, 17")
    a("v_lshlrev_b32 v8, 13, v3")
    a("v_and_b32 v9, 1, v3")
    a("v_lshrrev_b32 v10, 1, v3")
    a("v_lshl_or_b32 v9, v10, 2, v9")
    a("v_xor_b32 v9, v9, v2")
    a("v_lshlrev_b32 v9, 4, v9")
    a(f"v_add3_u32 v{WDA}, v9, s52, v8")
    a(f"v_xor_b32 v17, 128, v{WDA}")
    for pp in range(1, 4):
        a(f"v_add_u32 v{WDA+pp}, {32768*pp-1024*pp}, v{17 if pp >> 1 else WDA}")
    a("s_mul_i32 s52, s28, 307200")
    a("s_lshl_b32 s53, s29, 8")
    a.ext(srd(SX, 4, "s52", 307200)[2:] + srd(SW, 46, "s53", 640 * 8192 - 31 * 256)[2:])
    a("s_waitcnt lgkmcnt(0)")
    stamp(a, cfg, "kernarg")
    a.ext(srd(SX, 4, "s52", 307200)[:2] + srd(SW, 46, "s53", 0)[:2])

    def qstage(c):
        bf = c % 3
        o = [f"s_mov_b32 m0, s{36+bf}"]
        o += [dma(XDA + pp, SX, "s30", 1024 * pp, cfg.xflags) for pp in range(4)]
        o += [f"s_add_u32 m0, s{36+bf}, 4096"]
        o += [dma(XDA + 4 + pp, SX, "s30", 1024 * pp, cfg.xflags) for pp in range(4)]
        o += [f"s_add_u32 m0, s39, {WOFF[bf]}"]
        o += [dma(WDA + pp, SW, "s31", 1024 * pp, cfg.xflags) for pp in range(4)]
        if not (cfg.c0same and c == 0): o += ["s_add_u32 s32, s32, 1", f"s_cmp_eq_u32 s32, {9 if cfg.c0same else 10}", "s_cselect_b32 s32, 0, s32"]
        o += ["s_lshl_b32 s30, s32, 7", "s_lshl_b32 s31, s32, 19"]
        return tag(o, f"c{c}")
    a.ext(with_nop(qstage(0)))
    a("s_load_dwordx2 s[48:49], s[0:1], 56")
    if cfg.cwarm:
        a("s_getpc_b64 s[54:55]")
        a("L_cbase:")
        a("s_lshl2_add_u32 s52, s51, s3")
        a(f"s_mul_i32 s52, s52, {5 if cfg.w3 else 3}")
        a(f"v_min_u32 v18, {4 if cfg.w3 else 2}, v1")
        a("v_add_u32 v18, s52, v18")
        a("v_lshlrev_b32 v18, 7, v18")
        a("v_min_u32 v18, L_exact-L_cbase, v18")
        a("v_mov_b32 v19, s55")
        a("v_add_co_u32 v18, vcc, s54, v18")
        a("v_addc_co_u32 v19, vcc, 0, v19, vcc")
        a("global_load_dword v20, v[18:19], off")
    a("s_mov_b32 s33, s40" if not cfg.uni else "s_lshl_b32 s33, s3, 10")
    a("s_and_b32 s52, s3, 1")
    a("s_lshl_b32 s52, s52, 13")
    a("s_cmp_ge_u32 s3, 2")
    for bf in range(1, 3):
        a(f"s_mov_b32 s53, {XBASE[bf][0]}")
        a(f"s_cselect_b32 s{36+bf}, {XBASE[bf][1]}, s53")
    for bf in range(1, 3):
        a(f"s_add_u32 s{36+bf}, s{36+bf}, s52")
    a("v_bfe_u32 v6, v1, 2, 2")
    a("v_and_b32 v7, 3, v1")
    if cfg.c1first: a.ext(with_nop(qstage(1)))
    a("s_waitcnt lgkmcnt(0)")
    if cfg.sig == "line":
        a("s_lshl_b32 s52, s28, 5")
        a("s_add_u32 s52, s52, s29")
        a("s_lshl_b32 s52, s52, 7")
        a(f"s_add_u32 s52, s52, {FOFF}")
        a("v_mov_b32 v18, s52")
        a("v_mov_b32 v19, 0")
        a("s_mov_b64 exec, 1")
        a("global_store_dword v18, v19, s[48:49] sc1")
        a("s_mov_b64 exec, -1")
        a("v_and_b32 v0, 31, v1")
        a("v_lshlrev_b32 v0, 3, v0")
    a("s_load_dwordx4 s[56:59], s[0:1], 32")
    a("s_lshl_b32 s52, s28, 5")
    a("s_add_u32 s52, s52, s29")
    a("s_lshl_b32 s52, s52, 18")
    a.ext(srd(SK, 6, "s52", KVBYTES))
    a.ext(srd(SV, 44, "s52", KVBYTES))
    a("s_mul_i32 s52, s28, %d" % (15 * 131072))
    a.ext(srd(SO, 48, "s52", 15 * 131072))
    a("s_load_dwordx2 s[46:47], s[0:1], 48")
    a("v_lshlrev_b32 v10, 8, v3")
    if cfg.uni:
        a("s_lshl_b32 s52, s3, 2")
        a("v_add_u32 v8, s52, v3")
        a("v_xor_b32 v9, v8, v2")
        a(f"v_lshl_add_u32 v{KDA}, v9, 4, v10")
        a("v_and_b32 v8, 7, v8")
        a("v_lshlrev_b32 v8, 1, v8")
        a("v_xor_b32 v9, v8, v2")
        a(f"v_lshl_add_u32 v{VDA}, v9, 4, v10")
    else:
        for pp in range(4):
            a(f"v_add_u32 v9, {4*pp}, v3")
            a("v_xor_b32 v9, v9, v2")
            a(f"v_lshl_add_u32 v{KDA+pp}, v9, 4, v10")
        for pp in range(2):
            a(f"v_add_u32 v9, {4*pp}, v3")
            a("v_lshlrev_b32 v9, 1, v9")
            a("v_xor_b32 v9, v9, v2")
            a(f"v_lshl_add_u32 v{VDA+pp}, v9, 4, v10")
    a("v_lshrrev_b32 v9, 1, v2")
    for s in range(2):
        a(f"v_or_b32 v8, {4*s}, v3")
        a("v_xor_b32 v8, v8, v9")
        a("v_lshlrev_b32 v8, 4, v8")
        a("v_lshl_add_u32 v8, v2, 7, v8")
        for bf in range(3):
            a(f"v_add_u32 v{XRA+2*bf+s}, s{36+bf}, v8")
    a("v_lshrrev_b32 v11, 1, v7")
    a("v_and_b32 v12, 1, v7")
    a("v_lshlrev_b32 v12, 3, v12")
    a("v_and_b32 v9, 1, v6")
    a("v_lshrrev_b32 v10, 1, v6")
    a("v_lshl_or_b32 v9, v10, 2, v9")
    a("v_and_b32 v10, 1, v3")
    a("v_lshl_or_b32 v9, v10, 3, v9")
    a("v_lshl_or_b32 v9, v11, 1, v9")
    a("v_lshl_add_u32 v13, v3, 3, v6")
    a("v_lshl_add_u32 v13, v13, 8, v12")
    a(f"v_add_u32 v13, {WWIN}, v13")
    for dt in range(8):
        a(f"v_xor_b32 v8, {4*(dt>>1)+(dt&1)}, v9")
        a(f"v_lshl_add_u32 v{WRA+dt}, v8, 4, v13")
    a("v_lshl_or_b32 v9, v10, 2, v6")
    a("v_lshl_or_b32 v9, v9, 1, v11")
    a("v_lshl_add_u32 v14, v3, 2, v6")
    a("v_lshl_add_u32 v14, v14, 8, v12")
    a("v_add_u32 v14, 65536, v14")
    for dt in range(8):
        a(f"v_xor_b32 v8, {2*dt}, v9")
        a(f"v_lshl_add_u32 v{VRA+dt}, v8, 4, v14")
    for ks in range(4):
        a(f"v_or_b32 v8, {4*ks}, v3")
        a("v_xor_b32 v8, v8, v2")
        a("v_lshlrev_b32 v8, 4, v8")
        a(f"v_lshl_add_u32 v{KRA+ks}, v2, 8, v8")
    for i in range(4):
        a(f"v_mov_b32 v{MTR+i}, 0xff800000")
    a("v_lshlrev_b32 v15, 4, v1")
    a(f"v_and_b32 v8, {cfg.tl-1}, v1")
    a(f"v_lshrrev_b32 v9, {int(math.log2(cfg.tl))}, v1")
    a("v_lshlrev_b32 v9, 14, v9")
    a("v_lshl_add_u32 v219, v8, 7, v9")
    a("v_lshlrev_b32 v9, 1, v3")
    a("v_xor_b32 v9, v9, v5")
    a("v_lshlrev_b32 v9, 4, v9")
    a("v_mul_u32_u24 v8, 1280, v4")
    a("v_add_u32 v8, v8, v9")
    for pp in range(4):
        a(f"v_add_u32 v{WD+pp}, {pp*9216}, v8")
    a("v_lshl_add_u32 v14, v3, 2, v6")
    a("v_bfe_u32 v13, v14, 1, 2")
    a("v_lshl_or_b32 v13, v13, 1, v11")
    a("v_lshl_add_u32 v14, v14, 7, v12")
    a("v_add_u32 v14, s40, v14")
    for nt in range(4):
        a(f"s_add_u32 s53, s3, {nt}")
        a("s_and_b32 s53, s53, 3")
        a("s_lshl_b32 s53, s53, 1")
        a("v_xor_b32 v16, s53, v13")
        a(f"v_lshl_add_u32 v{WRL[0][nt]}, v16, 4, v14")
        a(f"v_add_u32 v{WRL[1][nt]}, 65536, v{WRL[0][nt]}")
        a(f"v_add_u32 v{WRL[2][nt]}, 131072, v{WRL[0][nt]}")
    for i in range(5): a(f"v_add_u32 v{OAL[i]}, {131072*i}, v15")
    a("s_min_u32 s51, s51, 29")
    a("s_cmp_ge_u32 s51, 15")
    a("s_cselect_b32 s52, 1, 0")
    a("s_cselect_b32 s53, 15, 0")
    a("s_sub_u32 s53, s51, s53")
    a("s_and_b32 s43, s50, 6")
    a("s_add_u32 s43, s43, s52")
    a("s_mul_i32 s54, s53, 52")
    a("s_lshr_b32 s54, s54, 8")
    a("s_mul_i32 s41, s54, 5")
    a("s_sub_u32 s53, s53, s41")
    a("s_and_b32 s55, s50, 1")
    a("s_mul_i32 s55, s55, 5")
    a("s_add_u32 s55, s55, s53")
    a("s_mul_i32 s52, s52, 3")
    a("s_add_u32 s41, s54, s52")
    a("s_mul_i32 s41, s41, 43")
    a("s_lshr_b32 s41, s41, 3")
    if cfg.rA:
        a(f"s_mul_i32 s53, s53, {cfg.rA}")
        a("s_add_u32 s41, s41, s53")
    if cfg.map3b:
        a("s_mov_b32 s43, s50")
        a("s_mul_i32 s54, s51, 26")
        a("s_lshr_b32 s54, s54, 8")
        a("s_mul_i32 s52, s54, 10")
        a("s_sub_u32 s55, s51, s52")
        a("s_mul_i32 s41, s54, 11")
        a("s_add_u32 s41, s41, s50")
        a("s_mov_b32 s34, 0")
    a("s_and_b32 s41, s41, 31")
    sc = f32(math.log2(math.e) / math.sqrt(128.0))
    if cfg.wpull:
        a("s_mul_i32 s52, s2, 160")
        a(f"s_mul_i32 s53, s3, {14 if cfg.wpull == 1 else 40}")
        a("s_add_u32 s52, s52, s53")
        a("v_add_u32 v218, s52, v1")
        a("v_lshlrev_b32 v218, 7, v218")
        a("v_mov_b32 v16, 0x7fffff80")
        a(f"v_cmp_gt_u32 vcc, {14 if cfg.wpull == 1 else 40}, v1")
        a("v_cndmask_b32 v255, v16, v218, vcc")
    if cfg.wl2:
        a("s_lshr_b32 s52, s2, 3")
        a("s_lshl_b32 s52, s52, 2")
        a("s_add_u32 s52, s52, s3")
        a("s_mul_i32 s52, s52, %d" % (32 * 1280))
        a("s_and_b32 s53, s50, 1")
        a("s_mul_i32 s53, s53, 640")
        a("s_add_u32 s52, s52, s53")
        a("v_mul_u32_u24 v16, 52, v1")
        a("v_lshrrev_b32 v16, 8, v16")
        a("v_mul_u32_u24 v17, 5, v16")
        a("v_sub_u32 v17, v1, v17")
        a("v_mul_u32_u24 v16, 1280, v16")
        a("v_lshl_add_u32 v16, v17, 7, v16")
        a("v_add_u32 v16, s52, v16")
        a("v_mov_b32 v17, 0x7fffff80")
        a("v_cmp_gt_u32 vcc, 15, v1")
        a("v_cndmask_b32 v255, v17, v16, vcc")
    a(f"s_mov_b32 s44, {sc}")
    a(f"s_mov_b32 s45, {sc}")
    if not cfg.c1first: a.ext(with_nop(qstage(1)))
    stamp(a, cfg, "issued")

    def qreads(c):
        bf = rb = c % 3
        o = []
        for s in range(2):
            o.append(f"ds_read_b128 {XF(rb,s,0)}, v{XRA+2*bf+s}")
        for dt in range(8):
            for s in range(2):
                for e in range(2):
                    o.append(f"ds_read_b64_tr_b16 {WF2(rb,s,dt,e)}, v{WRA+dt} offset:{WOFF[bf]+8192*s+1024*e}")
        for u in range(1, 4):
            for s in range(2):
                o.append(f"ds_read_b128 {XF(rb,s,u)}, v{XRA+2*bf+s} offset:{2048*u}")
        return o
    a("WAITVM c0 lgkmcnt(0)")
    a("s_barrier")
    stamp(a, cfg, "landed")
    r0 = qreads(0)
    if cfg.fast0: a.ext(r0[:14])
    else:
        a.ext(r0)
        a.ext(with_nop(qstage(2)))
    wp = ["s_mov_b32 s4, s56", "s_mov_b32 s5, s57", f"s_mov_b32 s6, {4096*1280}", "s_mov_b32 s7, 0x20000", "buffer_load_dword v218, v255, s[4:7], 0 offen"]
    if cfg.wpull == 2: a.ext(wp)
    a("s_waitcnt lgkmcnt(8)" if cfg.fast0 else "s_waitcnt lgkmcnt(0)")
    if cfg.w3:
        a("s_cmp_eq_u32 s3, 3")
        a("s_cbranch_scc1 L_w3")
        if cfg.prio: a(f"s_setprio {cfg.prio}")
        a("L_sec0:")
    q = Seq()
    per = []
    for c in range(10):
        rb = c % 3
        mf = []
        for u in range(4):
            for dt in range(8):
                d = vr(O_(u, dt), 4)
                for s in range(2):
                    mf.append(f"{MF} {d}, {WF(rb,s,dt)}, {XF(rb,s,u)}, {'0' if c == 0 and s == 0 else d}")
        if cfg.joint and c >= 8:
            mf = []
            for u in (2 * (c - 8), 2 * (c - 8) + 1):
                for dt in range(8):
                    d = vr(O_(u, dt), 4)
                    for cc in (8, 9):
                        for s in range(2): mf.append(f"{MF} {d}, {WF(cc%3,s,dt)}, {XF(cc%3,s,u)}, {d}")
        p0 = q.add(mf); per.append(p0)
        for x in stamp_l(a, cfg, f"q{c+1}"): q.put(p0 + 63, "!" + x)
    if cfg.lazy:
        A = dict(zip(range(1, 10), cfg.lazy))
        FR = {0: 22}
        for n in range(1, 10):
            assert A[n] >= 64 * (n - 2) and A[n] + 26 < 64 * n + 3, n
            q.put(A[n], f"WAITVM c{n}"); q.put(A[n], "s_barrier")
            fast = A[n] + 38 > 64 * n
            for i, r in enumerate(qreads(n)): q.put(A[n] + 1 + (i // 2 if fast else (i * 3) // 4), r)
            FR[n] = min(A[n] + (26 if fast else 36), 64 * n - 1)
        DE = 0
        for n in range(10):
            q.put(FR[n], "s_waitcnt lgkmcnt(0)"); q.put(FR[n], "s_barrier")
            if n + 3 < 10:
                p = max(FR[n] + 2, DE + 6)
                ps = [p + (cfg.bsp * i) // 12 for i in range(12)]
                q.place(qstage(n + 3), ps); DE = ps[-1]
                assert DE < A[n + 3] - 20, n
        BQ = {7: DE - cfg.bsp + 3, 8: FR[7], 9: FR[8], 10: FR[9]}
    else:
        BQ = {n: max(cfg.b1 + cfg.bsp * (n - 1), 64 * (n - 2)) for n in range(1, 10)}
        BQ[10] = BQ[9] + 44
        for n in range(1, 11):
            p = BQ[n]
            q.put(p, f"WAITVM c{n} lgkmcnt(0)" if n < 10 else "s_waitcnt lgkmcnt(0)"); q.put(p, "s_barrier")
            if n < 10:
                for i, r in enumerate(qreads(n)): q.put(p + 1 + ((i * 3) // 4 if n < cfg.qd0 else i // cfg.qdn), r)
            if n + 2 < 10:
                q.place(qstage(n + 2), [p + 2 + (cfg.bsp * i) // 12 for i in range(12)])
            assert n == 1 or n == 10 or BQ[n + 1] < 64 * n, n
        q.put(63, "s_waitcnt lgkmcnt(0)")
    if cfg.fast0:
        for i, r in enumerate(r0[14:]): q.put(i // 2, r)
        for dt in range(1, 8):
            issued = min(40, 14 + 2 * (2 * dt - 1)); needed = 2 + 4 * (dt + 1)
            q.g[2 * dt - 1].insert(0, f"s_waitcnt lgkmcnt({min(15, issued - needed)})")
        q.g[15].insert(0, "s_waitcnt lgkmcnt(0)")
        q.place(qstage(2), [4 + i + i // 4 for i in range(12)])
    if cfg.wpull >= 3: q.place(wp, [per[cfg.wpull - 3] + 60])
    sw = ["s_mul_i32 s52, s3, %d" % (1024 * 1280), "s_lshl_b32 s53, s55, 7", "s_add_u32 s52, s52, s53"] + srd(SWO, 56, "s52", WOSZ) + \
         ["s_mul_i32 s52, s43, 15", "s_mul_i32 s53, s54, 5", "s_add_u32 s52, s52, s53", "s_lshl_b32 s52, s52, 17", "s_lshl_b32 s53, s3, 15",
          "s_add_u32 s52, s52, s53"] + srd(SOR, 48, "s52", ORSZ)
    if cfg.wpull == 1 or cfg.wl2: sw += ["s_mov_b32 s4, s56", "s_mov_b32 s5, s57", f"s_mov_b32 s6, {4096*1280}", "s_mov_b32 s7, 0x20000", "s_mov_b32 s38, 0"]
    if cfg.trunc: sw += ["s_mov_b32 s39, 0x07060302"]
    i = per[8] + 2
    k = 0
    while k < len(sw):
        n = 2 if "s_addc" in sw[min(k + 1, len(sw) - 1)] else 1
        for x in sw[k:k + n]: q.put(i, x)
        k += n; i += 2
    p9 = per[9]
    def qepi(u):
        o = []
        for m in range(4):
            t = 16 + 4 * (m & 1)
            o += scale_pack(cfg, O_(u, 2 * m), t, ("s44", "s[44:45]"), cfg.pkmul)
            if m:
                tp = 16 + 4 * ((m - 1) & 1)
                o += [f"v_accvgpr_write_b32 a{Q_(u,m-1)+i}, v{tp+i}" for i in range(4)]
            o += [f"v_permlane16_swap_b32 v{t}, v{t+2}", f"v_permlane16_swap_b32 v{t+1}, v{t+3}"]
        o += [f"v_accvgpr_write_b32 a{Q_(u,3)+i}, v{20+i}" for i in range(4)]
        return o
    q.put(p9 + 31, "WAITVM seg0k" if cfg.split0 else "WAITVM seg0"); q.put(p9 + 31, "s_barrier")
    for x in stamp_l(a, cfg, "b0"): q.put(p9 + 31, "!" + x)
    k0r = [kread(0, 0, 0, kt, ks) for kt in range(2) for ks in range(4)]
    for i, r in enumerate(k0r): q.put(p9 + 32 + 2 * i, r)
    if cfg.joint:
        assert BQ[10] < per[8]
        e = q.stream(qepi(0), per[8] + 32 + 4, cap=cfg.jcap)
        e = q.stream(qepi(1), max(e, p9 + 4), cap=cfg.jcap)
        e = q.stream(qepi(2), max(e, p9 + 32 + 4), cap=cfg.jcap)
    else:
        e = q.stream(qepi(0), p9 + 16 + 4, cap=4)
        e = q.stream(qepi(1), max(e, p9 + 32 + 4), cap=4)
        e = q.stream(qepi(2), max(e, p9 + 48 + 4), cap=4)
    q.put(p9 + 62, "s_waitcnt lgkmcnt(0)")
    lab = q.raw([])
    for x in stamp_l(a, cfg, "g0"): q.put(len(q.m) - 1, "!" + x)
    g0 = q.add(qk(0, 0, True))
    g1 = q.add(qk(1, 0, True))
    g2 = q.add(qk(2, 0, True))
    v0r = [vread(0, 0, 0, dt, e_) for dt in range(8) for e_ in range(2)]
    k1r = [kread(1, 0, 1, kt, ks) for kt in range(2) for ks in range(4)]
    if cfg.split0:
        for i, r in enumerate(k1r): q.put(g0 + i, r)
        q.put(g1 - 1, "!WAITVM seg0"); q.put(g1 - 1, "!s_barrier")
        for i, r in enumerate(v0r): q.put(g1 + i, r)
    else:
        for i, r in enumerate(v0r + k1r): q.put(g0 + i, r)
    e = q.stream(qepi(3), max(e, g0), cap=4)
    def fmax(u):
        s0 = S_(u, 0); t = NM(u)
        o = [f"v_max3_f32 v{t}, v{s0}, v{s0+1}, v{s0+2}", f"v_max3_f32 v{t+1}, v{s0+3}, v{s0+4}, v{s0+5}",
             f"v_max3_f32 v{t}, v{t}, v{s0+6}, v{s0+7}", f"v_max3_f32 v{t}, v{t}, v{t+1}, v{MTR+u}"]
        return o + [x for x in rowmax_l(t, t + 1) if "s_nop" not in x]
    def fexp(u, nexp):
        s0 = S_(u, 0); t = NM(u)
        o = [f"v_sub_f32 v{s0+r}, v{s0+r}, v{t}" for r in range(8)]
        o += [f"v_exp_f32 v{s0+r}, v{s0+r}" for r in range(nexp)]
        o += [f"v_sub_f32 v{NM(u)+i}, 0, v{t}" for i in (1, 2, 3, 0)]
        o += [ppack(P_(u) + r // 2, s0 + r) for r in range(0, nexp, 2)]
        return o
    ones = [f"v_mov_b32 v{LA[u]}, 0" for u in cfg.addu] + ["v_mov_b32 v27, 0x3f803f80"] + [f"v_accvgpr_write_b32 a{ONES+i}, v27" for i in range(4)]
    e = q.stream(merge(fmax(0), fmax(1), ones), max(e, g2 + 1), cap=4)
    for x in stamp_l(a, cfg, "g3"): q.put(len(q.m) - 1, "!" + x)
    if cfg.epark:
        q.put(len(q.m) - 1, "!s_cmp_lg_u32 s35, 0"); q.put(len(q.m) - 1, "!s_cbranch_scc1 L_exact")
    g3 = q.add(qk(3, 0, True))
    e = q.stream(merge(fexp(0, 8), fmax(2)), g3, cap=6)
    q.raw(["s_waitcnt lgkmcnt(0)"])
    for x in stamp_l(a, cfg, "g4"): q.put(len(q.m) - 1, "!" + x)
    g4 = q.add(pv(0, 0, True))
    e = q.stream(merge(fexp(1, 8), fmax(3)), g4, cap=5)
    for x in stamp_l(a, cfg, "g5"): q.put(len(q.m) - 1, "!" + x)
    g5 = q.add(pv(1, 0, True))
    e = q.stream(merge(fexp(2, 8), fexp(3, 4)), g5, cap=7)
    for x in stamp_l(a, cfg, "tile1"): q.raw([x])
    st1 = attn_tile(cfg, q, 1, "first")
    if cfg.sig == "line":
        arr = ["s_and_b32 s52, s2, 31", "s_lshl_b32 s52, s52, 3", "v_mov_b32 v16, s52", "v_mov_b32 v17, 1", "s_cmp_lg_u32 s3, 0", "s_cbranch_scc1 L_noarr",
               "s_mov_b64 exec, 1", "global_atomic_add v16, v17, s[46:47] sc1 ;@skip", "s_mov_b64 exec, -1", "L_noarr:"]
        for x in arr: q.put(st1[8] - 1, "!" + x)
    kv = []
    NP = 32 - cfg.lag if not cfg.uni else cfg.ipre - 2
    if cfg.bm and not cfg.uni: NP = 30 - cfg.lag
    for gp in range(NP): kv += piece(cfg, gp, False) if not cfg.uni else upiece(cfg, gp)
    if cfg.uni:
        q.place(upiece(cfg, NP), [st1[4] + 1]); q.place(upiece(cfg, NP + 1), [st1[6] + 1])
    pos = []
    i = BQ[7] + cfg.bsp + 3 + cfg.kvdelay; acc = 4 * cfg.kvpace
    free_at = [0, BQ[8], BQ[8], BQ[8], BQ[9], BQ[9], BQ[9], BQ[10]]
    if cfg.uni: free_at = [BQ[8], BQ[8], BQ[8], BQ[8], BQ[9], BQ[9], BQ[10], BQ[10]]
    while len(pos) < NP:
        ok = q.m[i] and q.m[i - 1] and q.m[i + 1] and (q.slots(i) < 2 or i > (p9 + 16 if not cfg.joint else per[8] + 32)) and i > free_at[len(pos) // 4]
        if ok and acc >= ((cfg.kvpace if not cfg.kvp2 or i < p9 + cfg.kvsw else cfg.kvp2) if not cfg.bmi else (4 * cfg.kvpace - 3 * cfg.bmi if len(pos) % 4 == 0 else cfg.bmi)):
            pos.append(i); acc = 0
        acc += max(4, 2 + q.slots(i)) / 4
        i += 1
    assert pos[3 if cfg.split0 else 7] < p9 + 31 and pos[7] < g1 - 2 and pos[-1] < (st1[4] - 2 if cfg.bm != 3 else st1[2] + 3), (pos, p9, st1)
    if "nokv23" in cfg.exp: kv = [("buffer_dummy ;@" + x.split(";@")[1]) if (x.endswith("seg2") or x.endswith("seg3")) else x for x in kv]
    for k, (c, sg) in enumerate(cfg.touch):
        q.put(per[c] + cfg.tpos - 1, f"s_add_u32 s53, s40, {16384*sg}")
        q.put(per[c] + cfg.tpos, f"buffer_load_dword v255, v219, s[{SV if cfg.tkv[k % len(cfg.tkv)] == 'v' else SK}:{(SV if cfg.tkv[k % len(cfg.tkv)] == 'v' else SK)+3}], s53 offen {cfg.tflags}".rstrip())
    q.place(kv, pos)
    q.emit(a)
    a.l = fix(resolve_waits(a.l))
    a("s_mov_b32 s34, 3")
    a(".p2align 6")
    a("L_loop:")
    body0 = len(a.l)
    q = Seq()
    def loopstamp(q, p, pre):
        if cfg.stamps and pre in cfg.only.split(","):
            o = ["s_memtime s[4:5]", "s_memrealtime s[6:7]", "s_waitcnt lgkmcnt(0)"]
            for it in range(3):
                i = len(a.stamps); a.stamps.append(f"{pre}{it}")
                o += [f"s_cmp_eq_u32 s34, {3-it}", f"s_cselect_b32 s{60+4*i}, s4, s{60+4*i}", f"s_cselect_b32 s{62+4*i}, s6, s{62+4*i}"]
            for x in o: q.put(p, x)
    for j in range(2, 10):
        st = attn_tile(cfg, q, j)
        if j == 2: loopstamp(q, st[4] - 1, "ia")
        if j == 6: loopstamp(q, st[4] - 1, "ib")
        if cfg.wl2 and j % 2 == 0:
            q.put(st[3] + 1, f"buffer_load_dword v16, v255, s[4:7], s38 offen {cfg.wl2f}".rstrip())
            q.put(st[3] + 2, f"s_add_u32 s38, s38, {3*1280}")
        if cfg.wpull == 1 and j == 4:
            q.put(st[3] + 1, "buffer_load_dword v16, v255, s[4:7], s38 offen")
            q.put(st[3] + 2, f"s_add_u32 s38, s38, {56*128}")
        if j in (5, 7):
            for x in reversed(stamp_l(a, cfg, f"w{j}a")): q.g[st[4] - 1].insert(0, x)
            for x in stamp_l(a, cfg, f"w{j}b"): q.put(st[4] - 1, x)
        if j == 6:
            for x in reversed(stamp_l(a, cfg, f"d{j}a")): q.g[st[2] + 1].insert(0, x)
            for x in stamp_l(a, cfg, f"d{j}b"): q.put(st[2] + 1, "!" + x)
    if cfg.uni:
        n = len(q.m); cnt = cfg.upi; ps = []
        for k in range(cnt):
            if cfg.ucl:
                p = int((k // cfg.ucl + cfg.uph) * n / (cnt // cfg.ucl)) + 1 if k % cfg.ucl == 0 else ps[-1] + (2 if k & 1 else 3)
                while q.slots(p) >= (2 if k % cfg.ucl == 0 else 3) or any(x.startswith("v_exp") for x in q.g[p]) or "UNIWAIT" in q.g[p] or "UNIWAIT" in q.g[p - 1]: p += 1
            else:
                p = int((k + 0.1) * n / cnt) + 1
                while q.slots(p) >= 2 or "UNIWAIT" in q.g[p] or "UNIWAIT" in q.g[p - 1]: p += 1
            ps.append(p)
        assert ps[-1] < n - 4 and cfg.ipre % 2 == 0 and cnt % 2 == 0
        for k, p in enumerate(ps): q.place(upiece(cfg, k), [p])
        for bi, p in enumerate([i for i in range(n) if "UNIWAIT" in q.g[i]]):
            before = sum(1 for x in ps if x < p)
            m = 2 + bi + 8
            nw = cfg.ipre + 2 * cnt + before - 8 * (m + 1)
            assert cfg.ipre + before <= 8 * (2 + bi - 1 + 4) and nw >= 4, (bi, nw)
            q.g[p][q.g[p].index("UNIWAIT")] = f"s_waitcnt vmcnt({nw}) lgkmcnt(0)"
        IEND = cfg.ipre + 3 * cnt
    if cfg.pad:
        for i in range(0, len(q.m), cfg.pad): q.put(i, "!s_nop 3")
    if "lnobar" in cfg.exp: q.g = [[x for x in gp if x != "s_barrier"] for gp in q.g]
    if "lnodma" in cfg.exp: q.g = [[x for x in gp if kind(x.lstrip("!")) != "vm"] for gp in q.g]
    if "lnods" in cfg.exp: q.g = [[x for x in gp if kind(x.lstrip("!")) != "ds"] for gp in q.g]
    if "lnowait" in cfg.exp: q.g = [[x for x in gp if not (x.startswith("s_waitcnt") and "s_cmp_eq_u32 s34, 3" not in gp)] for gp in q.g]
    if "lnocvt" in cfg.exp: q.g = [[x for x in gp if not x.startswith("v_cvt")] for gp in q.g]
    q.put(-3, "s_sub_u32 s34, s34, 1")
    q.put(-1, "s_cmp_lg_u32 s34, 0"); q.put(-1, "s_cbranch_scc1 L_loop")
    q.emit(a)
    a.l = a.l[:body0] + [x.split(" ;@")[0] for x in a.l[body0:]]
    body = a.l[body0:]
    b = Asm(); b.stamps = a.stamps
    if cfg.uni:
        for gp in range(104, IEND): b(f"buffer_dummy ;@seg{gp//8}" + ("k" if gp >= 120 and gp % 2 == 0 else ""))
    else:
        for gp in range(104, 130 - cfg.lag): b(f"buffer_dummy ;@seg{gp//8}" + ("k" if gp % 8 < 4 else ""))
    q = Seq()
    if "nowo" in cfg.exp: b(f"s_mov_b32 s{SWO+2}, 0")
    for x in stamp_l(b, cfg, "t26"): b(x)
    sts = {j: attn_tile(cfg, q, j, "final") for j in range(26, 30)}
    if cfg.uni:
        rest = [(0, n_) for n_ in range(IEND // 2, 64)] + [(1, n_) for n_ in range(IEND // 2, 64)]
        p = sts[26][0] + 2
        for kv_, n_ in rest:
            d = 4096 * (n_ - IEND // 2)
            lst = [f"s_add_u32 s53, s33, {d}", f"s_and_b32 m0, s53, 0xffff"] + (["s_or_b32 m0, m0, 0x10000"] if kv_ else []) + \
                  [dma(VDA if kv_ else KDA, SV if kv_ else SK, "s53", 0, cfg.kvflags) + f" ;@seg{n_>>2}" + ("k" if not kv_ and n_ >= 60 else "")]
            pp_ = max(p, sts[26][0] + 3)
            while q.slots(pp_) >= 2 and not cfg.ucl: pp_ += 1
            q.place(lst, [pp_]); p = max(p + cfg.urest, pp_ + (5 if not cfg.ucl else (3 if not kv_ and n_ < 63 else 4))); KVEND = pp_
    def wpos(st, half):
        return [st[4*half] + 1, st[4*half+1] + 8 if half == 0 else st[5] + 1, st[4*half+2] + (7 if half == 0 else 1), st[4*half+3] + 1]
    if cfg.wsched == 0:
        for j, (t0, t1) in {26: (0, 1), 27: (2, 3), 28: (4, 5), 29: (10, 6)}.items():
            st = sts[j]
            q.place(wdma(cfg, t0), [st[1] + 8, st[2] + 7, st[3] + 1, st[3] + 5])
            q.place(wdma(cfg, t1), [st[5] + 8, st[6] + 1, st[6] + 5, st[7] + 5])
    elif cfg.wsched >= 3:
        pass
    elif cfg.wsched == 2:
        st = sts[26]
        if cfg.uni and cfg.ucl:
            assert KVEND < st[4] - 3
            q.place(wdma(cfg, 0), [st[4] + 1, st[5] + 1, st[5] + 8, st[7] + 1])
        elif cfg.uni:
            st = sts[27]
            assert KVEND < st[0] - 6
            q.place(wdma(cfg, 0), [st[0] + 1, st[1] + 3, st[2] + 1, st[3] + 1])
            q.place(wdma(cfg, 1), [st[4] + 1, st[5] + 3, st[6] + 1, st[7] + 1])
            st = sts[28]
            q.place(wdma(cfg, 2), [st[0] + 1, st[1] + 1, st[1] + 8, st[2] + 5])
            q.place(wdma(cfg, 5), [st[3] + 3, st[3] + 5, st[3] + 7, st[4] + 1])
            q.place(wdma(cfg, 6), [st[5] + 8, st[6] + 1, st[6] + 5, st[7] + 5])
        else: q.place(wdma(cfg, 0), [st[2] + 7, st[4] + 1, st[5] + 8, st[7] + 1])
        if cfg.wv:
            st = sts[29]
            q.place(wdma(cfg, 6), [st[0] + 5, st[1] + 8, st[2] + 7, st[3] + 5])
            q.place(wdma(cfg, 4), [st[4] + 5, st[4] + 7, st[5] + 3, st[5] + 7])
            q.place(wdma(cfg, 7), [st[6] + 5, st[6] + 7, st[7] + 3, st[7] + 5])
        for j, (t0, t1) in (({27: (1, 5), 28: (2, 6), 29: (3, 7)} if not cfg.wv else {27: (1, 5), 28: (2, 3)}) if not cfg.uni or cfg.ucl else {29: (3, 7)}).items():
            st = sts[j]
            q.place(wdma(cfg, t0), [st[0] + 5, st[1] + 8, st[2] + 7, st[3] + 5])
            q.place(wdma(cfg, t1), [st[5] + 8, st[6] + 1, st[6] + 5, st[7] + 5])
    else:
        st = sts[27]
        q.place(wdma(cfg, 0), [st[5] + 8, st[6] + 1, st[6] + 5, st[7] + 5])
        st = sts[28]
        q.place(wdma(cfg, 1), [st[0] + 5, st[0] + 7, st[1] + 1, st[1] + 3])
        q.place(wdma(cfg, 2), [st[2] + 1, st[2] + 7, st[3] + 1, st[3] + 5])
        q.place(wdma(cfg, 3), [st[5] + 8, st[6] + 1, st[6] + 5, st[7] + 5])
        st = sts[29]
        q.place(wdma(cfg, 4), [st[0] + 5, st[0] + 7, st[1] + 1, st[1] + 3])
        q.place(wdma(cfg, 5), [st[2] + 1, st[2] + 3, st[2] + 5, st[2] + 7])
        q.place(wdma(cfg, 10), [st[3] + 5, st[3] + 7, st[4] + 1, st[4] + 3])
        q.place(wdma(cfg, 6), [st[5] + 8, st[6] + 1, st[6] + 5, st[7] + 5])
    if cfg.sig == "line": q.put(sts[26][3] + 1, "global_load_dword v255, v0, s[46:47] sc1 ;@arr")
    if cfg.tlb:
        so = ["s_mul_i32 s52, s43, 240", "s_mul_i32 s53, s54, 80", "s_add_u32 s52, s52, s53", "s_mul_i32 s52, s52, 1280", "s_lshl_b32 s53, s55, 7", "s_add_u32 s52, s52, s53"]
        st = sts[27]
        for k, x in enumerate(so): q.g[st[4] + 2 + k].insert(0, x)
        sd = srd(SOUT, 58, "s52", 79 * 1280 + 128)
        q.g[st[4] + 8][0:0] = sd[:2]; q.g[st[5]][0:0] = sd[2:]
        q.put(st[5] + 1, f"buffer_load_dword v16, off, s[{SOUT}:{SOUT+3}], 0")
        q.put(st[5] + 3, f"buffer_load_dword v16, off, s[{SO}:{SO+3}], 0")
        q.put(st[5] + 5, f"buffer_load_dword v16, off, s[{SOR}:{SOR+3}], 0")
    if cfg.wsched < 3:
        st = sts[28]
        q.g[st[5] + 8].insert(0, "WAITVM w0")
        q.g[sts[29][4]].insert(0, "WAITVM w1")
        for p, r in zip([st[5] + 8, st[6] + 1, st[6] + 3, st[6] + 5, st[6] + 7, st[7] + 1, st[7] + 1, st[7] + 3], wreads(0)): q.put(p, r)
        k = q.g[st[8] - 2].index("s_waitcnt lgkmcnt(0)"); q.g[st[8] - 2][k] = "s_waitcnt lgkmcnt(8)"
        st = sts[29]
        q.put(st[1] + 7, "s_waitcnt lgkmcnt(10)")
        for p, r in zip([st[4] + 1, st[4] + 5, st[5] + 1, st[5] + 5, st[5] + 8, st[6] + 1, st[6] + 3, st[6] + 5], wreads(1)): q.put(p, r)
        k = q.g[st[7]].index("s_waitcnt lgkmcnt(0)"); q.g[st[7]][k] = "s_waitcnt lgkmcnt(4)"
    st = sts[29]
    for p, r in zip([st[7] + k for k in (1, 1, 3, 5, 7, 8, 8)] + [st[8]], [kread(1, 3, 1, kt, ks) for kt in range(2) for ks in range(4)]):
        if p < st[8]: q.put(p, r)
        else: lastk = r
    for x in stamp_l(b, cfg, "t30"): q.put(len(q.m) - 1, "!" + x)
    if cfg.w3: q.put(len(q.m) - 1, "!L_sec1:")
    job = lambda k: (k >> 1, k & 1, k & 3)
    F = []
    for k in range(8):
        u, tb, sl = job(k)
        F.append(q.add(qk(u, tb, sl=sl)))
        if k < 2: F.append(q.add(pv(2 + k, 1)))
        else:
            u, tb, sl = job(k - 2); F.append(q.add(pv(u, tb, sl=sl)))
    for k in (6, 7):
        u, tb, sl = job(k); F.append(q.add(pv(u, tb, sl=sl)))
    F.append(len(q.m))
    sm_half(q, F[0], 3, 1)
    for k in range(8):
        sm_half(q, F[2 * k + 1], k & 3, 0); sm_half(q, F[2 * k + 2], k & 3, 1)
    q.put(F[0] + 1, lastk)
    v30 = [vread(0, 3, 0, dt, e) for dt in range(8) for e in range(2)]
    v31 = [vread(1, 3, 1, dt, e) for dt in range(8) for e in range(2)]
    if not cfg.split15:
        for p, r in zip([F[0] + k for k in (1, 3, 5, 5, 7)] + [F[1] + k for k in (1, 1, 3, 5, 5, 7)] + [F[2] + k for k in (1, 1, 3, 5, 5)], v30): q.put(p, r)
        q.put(F[1] + 8, "s_waitcnt lgkmcnt(10)")
        for p, r in zip([F[4] + k for k in (1, 1, 3, 5, 5, 7)] + [F[5] + k for k in (1, 1, 3, 5, 5, 7, 8, 8)] + [F[6] + k for k in (1, 1)], v31): q.put(p, r)
        q.put(F[4], "s_waitcnt lgkmcnt(0)")
        q.place(wdma(cfg, 11), [F[2] + 7, F[3] + 1, F[3] + 3, F[3] + 5])
        q.place(wdma(cfg, 7), [F[5] + 3, F[5] + 7, F[6] + 3, F[6] + 5])
    else:
        q.put(F[1] + 8, "WAITVM seg15 lgkmcnt(0)"); q.put(F[1] + 8, "s_barrier")
        for p, r in zip([F[2] + k for k in (1, 1, 3, 5, 5, 7)] + [F[3] + k for k in (1, 1, 3, 5, 5, 7, 8, 8)] + [F[4] + k for k in (1, 1)], v30): q.put(p, r)
        for p, r in zip([F[4] + k for k in (3, 5, 5, 7)] + [F[5] + k for k in (1, 1, 3, 5, 5, 7, 8, 8)] + [F[6] + k for k in (1, 1, 3, 3)], v31): q.put(p, r)
        q.put(F[5] - 1, "s_waitcnt lgkmcnt(3)")
        if cfg.wsched >= 3:
            pass
        elif cfg.wv:
            q.place(wdma(cfg, 10), [F[0] + 5, F[0] + 7, F[1] + 3, F[1] + 7] if cfg.wv == 1 else [F[2] + 4, F[2] + 6, F[3], F[3] + 2])
            q.place(wdma(cfg, 11), [F[4], F[4] + 2, F[4] + 4, F[4] + 6])
        elif cfg.wsched == 2:
            q.place(wdma(cfg, 4), [F[0] + 5, F[0] + 7, F[1] + 3, F[1] + 7])
            q.place(wdma(cfg, 10), [F[2] + 4, F[2] + 6, F[3], F[3] + 2])
            q.place(wdma(cfg, 11), [F[4], F[4] + 2, F[4] + 4, F[4] + 6])
        else:
            q.place(wdma(cfg, 11), [F[0] + 5, F[0] + 7, F[1] + 1, F[1] + 3])
            q.place(wdma(cfg, 7), [F[2], F[2] + 4, F[3] + 2, F[3] + 6])
    q.put(F[7] - 1, "s_waitcnt lgkmcnt(0)"); q.put(F[7] - 1, "s_barrier")
    issued = set(range(12))
    if cfg.wsched < 3:
        q.place(wdma(cfg, 8), [F[7] + 5, F[7] + 7, F[7] + 8, F[8] + 1])
        q.place(wdma(cfg, 9), [F[8] + 7, F[9] + 1, F[9] + 3, F[9] + 5])
    else:
        issued = set()
        free = {0: 0, 4: 0, 8: 0, 9: 0, 1: sts[27][4], 5: sts[27][4], 2: sts[29][4], 6: sts[29][4], 3: F[7], 7: F[7]}
        p = sts[26][4] + 1 + cfg.wdelay
        for t in range(cfg.wn):
            sp = cfg.wp if t < 5 else cfg.wp2
            p = max(p, free[UNIT[t]] + 6)
            ps = []
            for k in range(4):
                pp_ = p
                while t < 5 and q.slots(pp_) >= 2: pp_ += 1
                ps.append(pp_); p = max(p + sp, pp_ + (1 if k < 3 else 6))
            assert ps[-1] < F[18], (t, ps)
            q.place(wdma(cfg, t), ps); issued.add(t)
    if "nost" in cfg.exp: q.g[F[4]].insert(0, f"s_mov_b32 s{SO+2}, 0")
    def onorm(u, store=True):
        o = [f"v_accvgpr_read_b32 v16, a{L_(u)}"]
        if u in cfg.addu:
            t = LA[u]
            o += [f"v_mov_b32 v17, v{t}", f"v_permlane32_swap_b32 v{t}, v17", f"v_add_f32 v{t}, v{t}, v17",
                  f"v_mov_b32 v17, v{t}", f"v_permlane16_swap_b32 v{t}, v17", f"v_add_f32 v{t}, v{t}, v17", f"v_add_f32 v16, v16, v{t}"]
        o += ["v_cmp_ngt_f32 vcc, s36, v16", "v_rcp_f32 v16, v16", "s_or_b64 s[50:51], s[50:51], vcc", "v_mov_b32 v17, v16"]
        for m in range(4):
            t = O_(u, 0) + 4 * m
            o += scale_pack(cfg, O_(u, 2 * m), t, ("v16", "v[16:17]"), cfg.opk == 1 or (cfg.opk == 2 and u == 3))
            if store: o += ostore(u)[m:m + 1]
        if store: o += ostore(u)[4:]
        return o
    def ostore(u):
        return [f"buffer_store_dwordx4 {vr(O_(u,0)+4*m,4)}, v15, s[{SO}:{SO+3}], s30 offen offset:{1024*m} {cfg.oflags}".rstrip() + " ;@ost" for m in range(4)] + ["s_add_u32 s30, s30, 131072"]
    for k, x in enumerate([f"s_mov_b32 s36, {f32(cfg.lthr)}", "s_mov_b64 s[50:51], 0", "s_lshl_b32 s30, s3, 19", "s_lshl_b32 s31, s29, 12", "s_add_u32 s30, s30, s31"]):
        q.g[F[4] + 2 + k].insert(0, x)
    for k in (2, 4, 6, 8, 10, 12, 14, 16):
        for x in stamp_l(b, cfg, f"F{k}"): q.put(F[k] - 1, "!" + x)
    if cfg.epark:
        def epark(t, p0, refill_at):
            q.g[p0].insert(0, f"WAITVM w{t}")
            for k, r in enumerate(wreads(t)): q.put(p0 + 2 * (k // 2), r)
            if refill_at:
                q.place(wdma(cfg, t + 10), refill_at)
                q.g[refill_at[0]].insert(0, f"WAITLG p{t}")
        epark(2, F[7] + 1, [F[10] + 3, F[10] + 5, F[10] + 7, F[11] + 1])
        epark(3, F[9] + 1, [F[11] + 7, F[11] + 8, F[12] + 1, F[12] + 3])
        epark(5, F[11] + 2, [F[13] + 1, F[13] + 3, F[13] + 5, F[13] + 7])
        epark(6, F[13] + 2, [F[14] + 5, F[14] + 7, F[15] + 1, F[15] + 3])
        epark(7, F[14] + 1, [F[16] + 1, F[16] + 3, F[16] + 5, F[16] + 7])
        epark(4, F[15] + 2, [F[17] + 5, F[17] + 6, F[17] + 7, F[17] + 8])
        epark(8, F[16] + 2, None)
        epark(9, F[17] + 1, None)
    if cfg.fsig:
        for t, p0 in ((2, F[13] + 2), (3, F[14] + 1), (4, F[15] + 2), (5, F[16] + 1)):
            q.g[p0].insert(0, f"WAITVM w{t}")
            for k, r in enumerate(wreads(t)): q.put(p0 + 2 * (k // 2), r)
    if cfg.early == 1:
        e = q.stream(onorm(0), F[8] + 4, cap=cfg.ncap)
        e = q.stream(onorm(1), max(e, F[12] + 4), cap=cfg.ncap)
        e = q.stream(onorm(2), max(e, F[16] + 4), cap=cfg.ncap + 2)
    if cfg.early >= 2:
        e = q.stream(onorm(0, False), F[8] + 4, cap=cfg.ncap)
        e = q.stream(onorm(1, False), max(e, F[12] + 4), cap=cfg.ncap)
        e = q.stream(onorm(2, False), max(e, F[16] + 4), cap=cfg.ncap + 2)
        if cfg.early == 3:
            for k, x in enumerate(ostore(0) + ostore(1)): q.put(min(F[16] + 8 + k, F[18] - 1), x if kind(x) == "vm" else "!" + x)
    q.emit(b)
    if cfg.early == 2: b.ext(ostore(0) + ostore(1) + ostore(2))
    if cfg.early == 3: b.ext(ostore(2))
    if not cfg.early: b.ext(onorm(0) + onorm(1) + onorm(2))
    stamp(b, cfg, "loopend")
    if "nowo" in cfg.exp: b(f"s_mov_b32 s{SWO+2}, {WOSZ}")
    def park(t): return [f"WAITVM w{t}"] + wreads(t)
    def refill(t): return with_nop(wdma(cfg, t + 10))
    DU = UNIT[9 if cfg.epark else 2]
    if cfg.fsig:
        on3 = onorm(3)
        k3 = on3.index("s_or_b64 s[50:51], s[50:51], vcc") + 1
        b.ext(on3[:k3])
        if cfg.force_fb: b("s_mov_b64 s[50:51], -1")
        b("s_cmp_lg_u64 s[50:51], 0")
        b("s_cselect_b32 s52, 1, 0")
        b(f"s_add_u32 s53, s40, {16384*DU}")
        b("v_mov_b32 v20, s52")
        b("v_mov_b32 v21, s53")
        b("WAITLG p2")
        b("ds_write_b32 v21, v20")
        b.ext(on3[k3:])
        stamp(b, cfg, "stored")
        b("v_and_b32 v18, 3, v1")
        b("v_lshlrev_b32 v18, 12, v18")
        b(f"v_add_u32 v18, {16384*DU}, v18")
        b("s_waitcnt lgkmcnt(0)")
        b("s_barrier")
        b("ds_read_b32 v20, v18")
        b.ext(refill(3) + refill(4))
        b("s_waitcnt lgkmcnt(0)")
        b("v_cmp_ne_u32 vcc, 0, v20")
        b("s_cmp_eq_u32 s35, 0")
        b("s_cselect_b64 s[52:53], vcc, 0")
        b("s_cmp_lg_u64 s[52:53], 0")
        b("s_cbranch_scc1 L_exact")
        if cfg.fsig == 2: b.ext(park(6) + park(7))
    else:
        if cfg.wsched >= 3:
            DU = UNIT[0] if cfg.wn else UNIT[9]
            late = [t for t in range(10) if t not in issued]
            for t in late[:3]:
                if UNIT[t] != DU: b.ext(with_nop(wdma(cfg, t))); issued.add(t)
            if cfg.wn: b.ext(park(0))
        elif cfg.epark: b.ext(park(10) + park(11))
        else: b.ext(park(2) + park(3))
        b.ext(onorm(3))
        stamp(b, cfg, "stored")
        if cfg.force_fb: b("s_mov_b64 s[50:51], -1")
        b("s_cmp_lg_u64 s[50:51], 0")
        b("s_cselect_b32 s52, 1, 0")
        b(f"s_add_u32 s53, s40, {16384*DU}")
        b("v_mov_b32 v16, s52")
        b("v_mov_b32 v17, s53")
        b("v_and_b32 v18, 3, v1")
        b("v_lshlrev_b32 v18, 12, v18")
        b(f"v_add_u32 v18, {16384*DU}, v18")
        b("s_waitcnt lgkmcnt(0)")
        b("ds_write_b32 v17, v16")
        if cfg.wsched >= 3: pass
        elif cfg.epark: b.ext(refill(8) + park(12) + park(13))
        else: b.ext(refill(3) + park(4) + park(5))
        b("s_waitcnt lgkmcnt(0)")
        b("s_barrier")
        b("ds_read_b32 v20, v18")
        parked = [0] if cfg.wsched >= 3 and cfg.wn else []
        if cfg.wsched >= 3:
            for t in range(1, min(cfg.wn, 6)): b.ext(park(t)); parked.append(t)
        elif cfg.epark: b.ext(refill(10))
        else: b.ext(refill(4) + park(6) + park(7))
        b("s_waitcnt lgkmcnt(0)")
        b("v_cmp_ne_u32 vcc, 0, v20")
        b("s_cmp_eq_u32 s35, 0")
        b("s_cselect_b64 s[52:53], vcc, 0")
        b("s_cmp_lg_u64 s[52:53], 0")
        b("s_cbranch_scc1 L_redo" if cfg.epark else "s_cbranch_scc1 L_exact")
        if not cfg.sigfirst: b.ext(park(8) + park(9) + park(10) + park(11))
    if cfg.sig == "line":
        b("s_lshl_b32 s52, s28, 5")
        b("s_add_u32 s52, s52, s29")
        b("s_lshl_b32 s52, s52, 7")
        b(f"s_add_u32 s52, s52, {FOFF}")
    else:
        b("s_lshl_b32 s52, s28, 2")
        b("s_lshr_b32 s53, s29, 3")
        b("s_add_u32 s52, s52, s53")
        b("s_lshl_b32 s52, s52, 3")
    b("v_mov_b32 v16, s52")
    b("v_mov_b32 v17, 1")
    if cfg.wsched >= 3:
        for t in parked[1:3]: b.ext(refill(t)); issued.add(t + 10)
    elif cfg.epark: b.ext(refill(11))
    elif cfg.pre5: b.ext(refill(5))
    b("WAITVM ost")
    b("s_barrier")
    b("s_cmp_lg_u32 s3, 0")
    b("s_cbranch_scc1 L_nosig")
    b("s_mov_b64 exec, 1")
    if cfg.sig == "line": b("global_store_dword v16, v17, s[48:49] sc1 ;@skip")
    else: b("global_atomic_add v16, v17, s[46:47] sc1 ;@skip")
    b("s_mov_b64 exec, -1")
    b("L_nosig:")
    stamp(b, cfg, "signaled")
    b("s_lshr_b32 s52, s2, 3")
    b("s_cmp_ge_u32 s52, 30")
    b("s_cbranch_scc1 L_fin")
    if cfg.wsched >= 3:
        for t in range(10):
            if t not in issued: b.ext(with_nop(wdma(cfg, t))); issued.add(t)
        for t in parked:
            if t + 10 not in issued: b.ext(refill(t)); issued.add(t + 10)
        prev = None
        for t in range(12):
            if t in parked: continue
            b.ext(park(t))
            if prev is not None: b(f"WAITLG p{prev}"); b.ext(refill(prev))
            prev = t
        b("s_waitcnt lgkmcnt(0)")
        b.ext(refill(prev))
    elif cfg.epark:
        b.ext(refill(9) + refill(12))
    elif cfg.fsig:
        b.ext(refill(2) + ([] if cfg.fsig == 2 else park(6) + park(7)) + park(8) + park(9))
        b("WAITLG p7")
        b.ext(refill(6) + park(10) + park(11) + refill(7))
        b("s_waitcnt lgkmcnt(0)")
        for t in range(8, 12): b.ext(refill(t))
    elif cfg.sigfirst:
        b.ext(refill(2) + ([] if cfg.pre5 else refill(5)) + park(8) + park(9) + refill(6) + park(10) + park(11) + refill(7))
        b("s_waitcnt lgkmcnt(0)")
        for t in range(8, 12): b.ext(refill(t))
    else:
        b("s_waitcnt lgkmcnt(0)")
        b.ext(refill(2))
        for t in range(5, 12): b.ext(refill(t))
    b("s_lshl_b32 s52, s43, 2")
    b("s_add_u32 s52, s52, s3")
    if cfg.sig == "line":
        b("s_lshl_b32 s52, s52, 10")
        b(f"s_add_u32 s52, s52, {FOFF}")
        b("v_and_b32 v16, 7, v1")
        b("v_lshlrev_b32 v16, 7, v16")
        b("v_add_u32 v16, s52, v16")
        pbase = "s[48:49]"
    else:
        b("s_lshl_b32 s52, s52, 3")
        b("v_mov_b32 v16, s52")
        pbase = "s[46:47]"
    prev = 13 if cfg.epark else None
    for t in range(14 if cfg.epark else 12, cfg.R):
        if cfg.epoll and t == max(cfg.epoll, 14 if cfg.epark else 0): b(f"global_load_dword v17, v16, {pbase} sc1 ;@ep")
        b.ext(park(t))
        if prev is not None and prev + 10 < cfg.X:
            b("s_waitcnt lgkmcnt(8)")
            b.ext(refill(prev))
        prev = t
    b("s_waitcnt lgkmcnt(0)")
    if prev + 10 < cfg.X: b.ext(refill(prev))
    stamp(b, cfg, "parked")
    b("s_mov_b32 s34, 0x100000")
    want = 1 if cfg.sig == "line" else 8
    cmpi = "v_cmp_ne_u32 vcc, 1, v17" if cfg.sig == "line" else "v_cmp_gt_u32 vcc, 8, v17"
    if cfg.sig == "line":
        b("WAITVM arr")
        b("v_cmp_gt_u32 vcc, 8, v255")
        b("s_cbranch_vccz L_cleared")
        b("L_wclr:")
        b("global_load_dword v255, v0, s[46:47] sc1 ;@skip")
        b("s_waitcnt vmcnt(0)")
        b("v_cmp_gt_u32 vcc, 8, v255")
        b("s_sub_u32 s34, s34, 1")
        b("s_cselect_b64 vcc, 0, vcc")
        b("s_cbranch_vccnz L_wclr")
        b("s_branch L_poll")
        b("L_cleared:")
    if cfg.epoll:
        b("WAITVM ep")
        b(cmpi)
        b("s_cbranch_vccz L_ready")
    b("L_poll:")
    b(f"global_load_dword v17, v16, {pbase} sc1")
    b("s_waitcnt vmcnt(0)")
    b(cmpi)
    b("s_sub_u32 s34, s34, 1")
    b("s_cselect_b64 vcc, 0, vcc")
    b("s_cbranch_vccnz L_poll")
    b("L_ready:")
    stamp(b, cfg, "polled")
    worder = [x.split(";@")[1] for x in b.l if ";@w" in x and kind(x) == "vm"]
    check_setup(b.l, "tail")
    a.l += fix(resolve_waits(b.l))
    c = Asm(); c.stamps = a.stamps
    for t_ in worder: c(f"buffer_dummy ;@{t_}")
    ACC = lambda i, nt: 32 + 16 * i + 4 * nt
    OFB = [112, 132, 152, 172, 192]
    OF = lambda t, i: OFB[t % cfg.DO] + 4 * i
    def oload(t):
        return [x + f" ;@o{t}" for x in [f"s_add_u32 s30, s41, {t}", "s_lshl_b32 s30, s30, 10", "s_and_b32 s30, s30, 0x7fff"]] + \
            tag([f"buffer_load_dwordx4 {vr(OF(t,i),4)}, v{OAL[i]}, s[{SOR}:{SOR+3}], s30 offen {cfg.orflags}".rstrip() for i in range(5)], f"o{t}")
    for t in range(cfg.DO - 1): c.ext(oload(t))
    if not cfg.tlb:
        c("s_mul_i32 s52, s43, 240")
        c("s_mul_i32 s53, s54, 80")
        c("s_add_u32 s52, s52, s53")
        c("s_mul_i32 s52, s52, 1280")
        c("s_lshl_b32 s53, s55, 7")
        c("s_add_u32 s52, s52, s53")
        c.ext(srd(SOUT, 58, "s52", 79 * 1280 + 128))
    for j in range(1, 4):
        c(f"s_add_u32 s52, s3, {j}")
        c("s_and_b32 s52, s52, 3")
        c("s_mul_i32 s52, s52, 15360")
        c(f"v_add_u32 v{240+j}, s52, v15")
    c("s_mul_i32 s52, s3, 15360")
    c("v_add_u32 v240, s52, v15")
    c("v_mul_u32_u24 v244, 1280, v2")
    c("v_lshl_add_u32 v244, v3, 3, v244")
    nextw = cfg.X
    q = Seq()
    NL = cfg.NL
    for t in range(32 - NL):
        mf = []
        for i in range(5):
            for nt in range(4):
                d = vr(ACC(i, nt), 4)
                mf.append(f"{MF} {d}, {WS(t,nt)}, {vr(OF(t,i),4)}, {'0' if t == 0 else d}")
        q.raw([f"WAITVM o{t} lgkmcnt(0)"] + (stamp_l(c, cfg, f"p{t}") if t in (1, 4, 8, 16, 24) else []))
        g = q.add(mf)
        if t + cfg.DO - 1 < 32: q.place(oload(t + cfg.DO - 1), [g + 4, g + 6, g + 9, g + 12, g + 15])
        tr = t + cfg.R - 1
        if t >= 1 and tr < 32:
            q.g[g].insert(0, f"WAITVM w{tr}")
            for k, r in enumerate(wreads(tr)): q.put(g + 1 + k, r)
        if nextw < 32 and nextw - 10 <= t + cfg.R - 2 and (nextw - cfg.X) * cfg.wev <= t:
            q.place(wdma(cfg, nextw), [g + 10, g + 13, g + 16, g + 18])
            nextw += 1
        if t == 20: q.put(g + 19, "s_barrier")
    assert nextw == 32
    q.raw([f"WAITVM o{32-NL} lgkmcnt(0)"])
    wr = lambda i, j: f"ds_write_b128 v{240+j}, {vr(ACC(i,j),4)} offset:{5120*(j-1)+1024*i}"
    for i in range(5):
        mf = []
        for j in (1, 2, 3, 0):
            d = vr(ACC(i, j), 4)
            for t in range(32 - NL, 32):
                mf.append(f"{MF} {d}, {WS(t,j)}, {vr(OF(t,i),4)}, {d}")
        g = q.add(mf)
        if i == 0:
            for k in range(1, NL): q.g[g + k - 1].append(f"!WAITVM o{32-NL+k}")
        else:
            for j in range(1, 4): q.put(g + 2 + NL * (j - 1), wr(i - 1, j))
    RB = lambda i: 112 + 12 * i if i < 3 else 192 + 12 * (i - 3)
    rd = lambda i: [f"ds_read_b128 {vr(RB(i)+4*j,4)}, v240 offset:{5120*j+1024*i} ;@r{i}" for j in range(3)]
    def fin(i):
        bb = RB(i); ac = ACC(i, 0); o = [f"WAITLG r{i}"]
        for r in range(0, 4, 2):
            o += [f"v_pk_add_f32 {vr(ac+r,2)}, {vr(ac+r,2)}, {vr(bb+r,2)}", f"v_pk_add_f32 {vr(bb+4+r,2)}, {vr(bb+4+r,2)}, {vr(bb+8+r,2)}"]
        for r in range(0, 4, 2):
            o += [f"v_pk_add_f32 {vr(ac+r,2)}, {vr(ac+r,2)}, {vr(bb+4+r,2)}"]
        o += [f"v_cvt_pk_bf16_f32 v{ac}, v{ac}, v{ac+1}", f"v_cvt_pk_bf16_f32 v{ac+1}, v{ac+2}, v{ac+3}",
              f"buffer_store_dwordx2 {vr(ac,2)}, v244, s[{SOUT}:{SOUT+3}], s52 offen {cfg.outflags}".rstrip(), "s_add_u32 s52, s52, %d" % (16 * 1280)]
        return o
    if cfg.fin2:
        assert cfg.DO == 4 and NL == 2
        q.g[g + 1].insert(0, "s_barrier"); q.g[g + 1].insert(0, "s_waitcnt lgkmcnt(0)")
        for k, r in enumerate(rd(0) + rd(1) + rd(2)): q.put(g + 1 + min(k // 2 + (k > 3), 6), r)
        q.raw(stamp_l(c, cfg, "projdone") + ["s_lshl_b32 s52, s3, 5", wr(4, 1), wr(4, 2)])
        q.emit(c)
        c.ext(fin(0)[:5]); c(wr(4, 3)); c.ext(fin(0)[5:] + fin(1))
        c("s_waitcnt lgkmcnt(0)")
        c("s_barrier")
        c.ext(rd(3) + rd(4) + fin(2) + fin(3) + fin(4))
    else:
        q.raw(stamp_l(c, cfg, "projdone") + ["s_nop 1", wr(4, 1), wr(4, 2), "s_nop 1", wr(4, 3)])
        q.emit(c)
        c("s_waitcnt lgkmcnt(0)")
        c("s_barrier")
        for i in range(5): c.ext(rd(i))
        c("s_lshl_b32 s52, s3, 5")
        for i in range(5): c.ext(fin(i))
    check_setup(c.l, "proj")
    a.l += fix(resolve_waits(c.l))
    a("L_fin:")
    if cfg.stamps or cfg.calib:
        a("s_waitcnt vmcnt(0)")
        stamp(a, cfg, "end")
    if cfg.calib:
        a("s_waitcnt lgkmcnt(0)")
        a("s_or_b32 s52, s2, s3")
        a("s_cmp_lg_u32 s52, 0")
        a("s_cbranch_scc1 L_end")
        a(f"s_sub_u32 s52, s{62+4*cfg.cal_j}, s{62+4*cfg.cal_i}")
        a("s_lshl_b32 s52, s52, 2")
        a("s_add_u32 s52, s52, s62")
        a("L_spin:")
        a("s_memrealtime s[56:57]")
        a("s_waitcnt lgkmcnt(0)")
        a("s_sub_u32 s56, s56, s52")
        a(f"s_cmp_lt_i32 s56, {cfg.calib*100}")
        a("s_cbranch_scc1 L_spin")
    if cfg.stamps:
        stamps_out(a, cfg, 64 << 20)
    a("L_end:")
    a("s_endpgm")
    if cfg.w3:
        i0, i1 = a.l.index("L_sec0:"), a.l.index("L_sec1:")
        dead_v = set(("v", r) for r in list(range(128, 160)) + list(range(184, 192)) + list(range(204, 208)) + list(range(220, 224)))
        dead_a = set(("a", r) for r in range(48, 64))
        sec = []; skip = False
        for x in a.l[i0 + 1:i1]:
            if x == "s_and_b32 s52, s2, 31": skip = True
            if skip:
                if x == "L_noarr:": skip = False
                continue
            if x.endswith(":") or x.startswith(".") or x.startswith(";"):
                if x == "L_loop:":
                    z = [f"v_mov_b32 v{r}, 0" for _, r in sorted(dead_v)] + [f"v_accvgpr_write_b32 a{r}, 0" for r in list(range(48, 64)) + list(range(204, 208))]
                    k = sec.index(".p2align 6"); sec[k:k] = z
                    w3body0 = len(sec) + 1
                    x = "L_loop3:"
                sec.append(x); continue
            if x.startswith("s_nop"): continue
            ins = parse(x)
            if ins["k"] == "mfma" and (ins["D"] & dead_v or ins["Dtok"] == "a[204:207]"): continue
            if ins["k"] == "valu" and (ins["wr"] & (dead_v | dead_a) or ins["rd"] & set(("v", r) for r in range(128, 160))): continue
            if x == "s_cbranch_scc1 L_loop": x = "s_cbranch_scc1 L_loop3"
            sec.append(x)
        sec = fix(sec)
        l0 = sec.index("L_loop3:"); l1 = sec.index("s_cbranch_scc1 L_loop3")
        assert check(sec[l0:l1 + 1] * 2, "w3-loop") == 0 and check(sec + a.l[i1:i1 + 40], "w3-exit") == 0 and check(a.l[i0 - 30:i0] + sec, "w3-entry") == 0
        a("L_w3:")
        a.ext(sec)
        a("s_branch L_sec1")
    if cfg.epark:
        a("L_redo:")
        a("s_mov_b32 s35, 1")
        a("s_lshl_b32 s52, s3, 6")
        a("v_or_b32 v0, s52, v1")
        a("s_waitcnt vmcnt(0) lgkmcnt(0)")
        a("s_barrier")
        a("s_branch L_restart")
    a("L_exact:")
    ex0 = len(a.l)
    a("s_mov_b32 s35, 1")
    a(f"s_mov_b32 s{SK+2}, {KVBYTES}")
    a(f"s_mov_b32 s{SV+2}, {KVBYTES}")
    a("s_mov_b32 s33, s40" if not cfg.uni else "s_lshl_b32 s33, s3, 10")
    a("s_waitcnt vmcnt(0) lgkmcnt(0)")
    a("L_exact_loop:")
    a("s_barrier")
    if cfg.uni:
        for n_ in range(4): a.ext(["s_and_b32 m0, s33, 0x3fff", "s_nop 0", dma(KDA, SK, "s33", 0, cfg.kvflags), "s_add_u32 s33, s33, 4096"])
    else:
        a.ext(with_nop(kdma(cfg, 0)))
        a(ADV)
    a("s_waitcnt vmcnt(0)")
    a("s_barrier")
    for th in range(2):
        for kt in range(2):
            for ks in range(4): a(kread(0, 0, th, kt, ks))
        a("s_waitcnt lgkmcnt(0)")
        for u in range(4): a.ext(qk(u, 0, True))
        a("s_nop 7")
        for u in range(4):
            s0 = S_(u, 0)
            for r in range(0, 8, 2):
                a(f"v_max3_f32 v{MTR+u}, v{MTR+u}, v{s0+r}, v{s0+r+1}")
    a(f"s_cmp_lt_u32 s33, {KVBYTES}")
    a("s_cbranch_scc1 L_exact_loop")
    a("s_barrier")
    a("s_mov_b32 s33, s40" if not cfg.uni else "s_lshl_b32 s33, s3, 10")
    a.ext([x.split(" ;@")[0] for x in with_nop(sum([piece(cfg, gp, False) if not cfg.uni else upiece(cfg, gp) for gp in range(NP)], []))])
    a("s_waitcnt vmcnt(0)")
    a("s_barrier")
    a.ext(k0r + v0r)
    a("s_waitcnt lgkmcnt(0)")
    a.ext(k1r)
    for u in range(4): a.ext(qk(u, 0, True))
    a.ext(ones)
    a("s_nop 7")
    a.ext(fix(merge(*[fmax(u) for u in range(4)]) + merge(*[fexp(u, 8 if u < 3 else 4) for u in range(4)])))
    a("s_nop 1")
    a.ext(pv(0, 0, True) + pv(1, 0, True))
    a("s_waitcnt lgkmcnt(0)")
    q = Seq(); st1 = attn_tile(cfg, q, 1, "first")
    if cfg.uni:
        q.place(upiece(cfg, NP), [st1[4] + 1]); q.place(upiece(cfg, NP + 1), [st1[6] + 1])
    x1 = Asm()
    for t_ in ["seg1"]: x1("buffer_dummy ;@seg1")
    q.emit(x1)
    a.l += resolve_waits(x1.l)
    a("s_mov_b32 s34, 3")
    a("s_branch L_loop")
    bad = check(a.l[:ex0], "main") + check(body + body, "attn-loop") + check(a.l[ex0:] + body, "exact")
    assert bad == 0
    return a

HEADER = """; Kernarg layout for this problem (64 bytes, ptrs only, base s[0:1]):
;   offset  56: d_ws      [0, 15.7 MB) attention output O as MFMA fragments, [24 MB, +32 KB) hand-off words
;
;     p = exp2(.), o^T += V^T p^T, row sums by an MFMA with a ones operand.  m is the row maximum of the first key tile; if any
;     wave w contracts over heads 8w..8w+7 once their words are set, partial sums meet in LDS.
; @launch grid=(256,1,1) block=(256,1,1) lds=163840"""

def build(cfg):
    k = NAME + "_kernel"
    out = []
    out.append(HEADER)
    out.append('.amdgcn_target "amdgcn-amd-amdhsa--gfx950"')
    out.append(".text")
    out.append(f".globl {k}\n.p2align 8\n.type {k},@function\n{k}:")
    out.append(gen(cfg).text())
    out.append('.section .rodata,"a"')
    out.append(f""".p2align 6
.amdhsa_kernel {k}
  .amdhsa_next_free_vgpr 512
  .amdhsa_next_free_sgpr 102
  .amdhsa_accum_offset 256
  .amdhsa_group_segment_fixed_size 0
  .amdhsa_kernarg_size 64
  .amdhsa_user_sgpr_count 2
  .amdhsa_user_sgpr_kernarg_segment_ptr 1
  .amdhsa_system_sgpr_workgroup_id_x 1
.end_amdhsa_kernel
""")
    return "\n".join(out)

if __name__ == "__main__":
    cfg = Cfg()
    path = sys.argv[1]
    for kv in sys.argv[2:]:
        k, v = kv.split("=", 1)
        old = getattr(cfg, k)
        setattr(cfg, k, type(old)(eval(v)) if isinstance(old, (bool, int, float, tuple)) else v)
    txt = build(cfg)
    open(path, "w").write(txt)
```

```python
import sys, math, struct
from asmlib import *

NAME = "standalone__mha_block_cached__near_ridge"
def f32(x): return struct.unpack("<I", struct.pack("<f", x))[0]
MF = "v_mfma_f32_16x16x32_bf16"

class Cfg:
    kvflags = "nt"
    oflags = "sc1"
    orflags = "sc1"
    xflags = ""
    bflags = ""
    stamps = False
    only = ""
    qspread = 4
    kvpace = 13.0
    lthr = 2.0 ** 40
    force_fb = False
    rot = 5
    rA = 0
    DO = 4
    NL = 2
    joint = 1
    opk = 2
    qd0 = 3
    qdn = 4
    kvdelay = 0
    trunc = False
    lds_fin = -1
    kvp2 = 0.0
    kvsw = 31
    lds_last = 5
    pad = 0
    prio = 0
    ucl = 0
    uph = 0.3
    fin2 = 1
    mapx = 0
    map3b = 0
    lazy = ()
    c0same = 0
    roff = 5
    fsig = 2
    bm = 0
    bmi = 0
    wv = 2
    jcap = 2
    uni = 0
    ipre = 32
    upi = 30
    urest = 9
    w3 = 1
    wn = 10
    wp = 17
    wp2 = 4
    wdelay = 0
    R = 19
    epark = 0
    addu = ()
    tlb = 0
    fast0 = 1
    c1first = 0
    pre5 = 1
    early = 1
    cwarm = 1
    wl2 = 0
    wl2f = ""
    lag = 4
    split0 = 0
    wsched = 2
    b1 = 24
    bsp = 50
    split15 = 1
    sigfirst = 1
    outflags = ""
    wpull = 0
    epoll = 15
    touch = ()
    tpos = 52
    tl = 16
    tflags = ""
    tkv = "v"
    dmode = "even"
    xs = (0, 0, 0, 0, 0)
    k0at = 5
    X = 29
    wev = 1.0
    ncap = 3
    sig = "line"
    pkmul = False
    qord = 0
    exp = ""
    calib = 0
    cal_i = 0
    cal_j = 0

O_ = lambda u, dt: 32 + 32 * u + 4 * dt
S_ = lambda u, kt: 160 + 8 * u + 4 * kt
P_ = lambda u: 192 + 4 * u
NM = lambda u: 208 + 4 * u
KRA, VRA, KDA, VDA, MTR = 224, 228, 236, 240, 242
WD = 246
XDA, WDA, XRA, WRA = 192, 200, 204, 210
Q_ = lambda u, m: 16 * u + 4 * m
KF = lambda b, kt, ks: 64 + 32 * b + 16 * kt + 4 * ks
VF = lambda b, dt: 128 + 32 * b + 4 * dt
L_ = lambda u: 192 + 4 * u
ONES = 208
WF = lambda b, s, dt: ar([160, 0, 96][b] + 32 * s + 4 * dt, 4)
WF2 = lambda b, s, dt, e: ar([160, 0, 96][b] + 32 * s + 4 * dt + 2 * e, 2)
XF = lambda b, s, u: vr([224, 64, 160][b] + 16 * s + 4 * u, 4, "aav"[b])
SX, SW, SK, SV, SO = 8, 12, 16, 20, 24
SWO, SOR, SOUT = 8, 12, 4
KVBYTES = 262144
XBASE = [(131072, 147456), (65536, 16384), (32768, 49152)]
WWIN = 81920
WOFF = [32768, 0, 16384]
UNIT = [0, 4, 8, 9, 1, 5, 2, 6, 3, 7]
UNIT2 = [0, 4, 9, 5, 6, 8, 1, 2, 3, 7]
UNIT3 = [0, 4, 9, 1, 2, 8, 5, 6, 3, 7]
WRL = [[28, 29, 30, 31], [250, 251, 252, 253], [7, 8, 9, 10]]
OAL = [4, 5, 13, 14, 254]
WBLK = [224, 240, 64, 80, 96, 112, 128, 144, 160, 176, 208, 192, 0, 16, 32, 48]
WBLK2 = [224, 240, 0, 16, 48, 32, 64, 80, 96, 112, 128, 144, 160, 176, 208, 192]
def WS(t, nt, e=None):
    b = WBLK[t % len(WBLK)]
    f = "a" if b >= 0 else "v"
    return vr(abs(b) + 4 * nt, 4, f) if e is None else vr(abs(b) + 4 * nt + 2 * e, 2, f)
def wreads(t):
    u_ = UNIT[t % 10]
    return [f"ds_read_b64_tr_b16 {WS(t,nt,e)}, v{WRL[u_>>2][nt]} offset:{16384*(u_&3)+2048*e} ;@p{t}" for nt in range(4) for e in range(2)]
FOFF = 24 << 20
WOSZ = 1024 * 1280 - 9 * 128
ORSZ = 4 * 131072 + 32768

class Seq:
    def __init__(self): self.m = []; self.g = []
    def add(self, mfmas):
        n = len(self.m); self.m += mfmas; self.g += [[] for _ in mfmas]; return n
    def raw(self, lines):
        self.m.append(None); self.g.append(["!" + x for x in lines]); return len(self.m) - 1
    def put(self, i, x): self.g[i].append(x)
    def slots(self, i):
        n = 0
        for x in self.g[i]:
            k = kind(x.lstrip("!"))
            if k in ("ds", "vm", "valu"): n += 2 if x.lstrip("!").startswith(TRANS) else 1
        return n
    def place(self, lst, vmpos):
        vmpos = list(vmpos); pend = []; last = None
        for x in lst:
            if kind(x) == "vm":
                p = vmpos.pop(0)
                assert not pend or last is None or p - len(pend) > last, (lst, p, last)
                for k, s in enumerate(reversed(pend)): self.g[p - 1 - k].insert(0, s)
                pend = []; self.g[p].append(x); last = p
            else: pend.append(x)
        for k, s in enumerate(pend): self.g[last + 1 + k].insert(0, s)
    def stream(self, lst, start, cap=2, end=None):
        i = start
        for x in lst:
            c = 2 if x.startswith(TRANS) else (0 if kind(x) == "s" else 1)
            while self.slots(i) + c > cap and (end is None or i < end) and i + 1 < len(self.m): i += 1
            self.g[i].append("!" + x)
        return i
    def emit(self, a): emit_gaps(a, self.m, self.g)

def stamp_l(a, cfg, name):
    if (cfg.stamps or cfg.calib) and (cfg.only == "" or name in cfg.only.split(",") or name in ("start", "end")):
        i = len(a.stamps); a.stamps.append(name)
        assert i < 10
        return [f"s_memtime s[{60+4*i}:{61+4*i}]", f"s_memrealtime s[{62+4*i}:{63+4*i}]"]
    return []
def stamp(a, cfg, name): a.ext(stamp_l(a, cfg, name))

def stamps_out(a, cfg, wsoff):
    n = len(a.stamps)
    a.l.insert(0, "; stamps " + str(wsoff >> 20) + " " + " ".join(a.stamps))
    a("s_waitcnt lgkmcnt(0)")
    a(f"s_add_u32 s48, s48, {wsoff}")
    a("s_addc_u32 s49, s49, 0")
    a("s_mov_b32 s50, 0x100000")
    a("s_mov_b32 s51, 0x20000")
    a("s_lshl_b32 s52, s2, 2")
    a("s_add_u32 s52, s52, s3")
    a("s_lshl_b32 s52, s52, 7")
    a("v_mov_b32 v6, s52")
    a("v_cmp_eq_u32 vcc, 0, v1")
    a("s_and_saveexec_b64 s[54:55], vcc")
    for i in range(n):
        a(f"v_mov_b32 v4, s{60+4*i}")
        a(f"v_mov_b32 v5, s{62+4*i}")
        a(f"buffer_store_dwordx2 v[4:5], v6, s[48:51], 0 offen offset:{8*i}")
        a("s_nop 1")
    a("s_getreg_b32 s53, hwreg(HW_REG_XCC_ID)")
    a("v_mov_b32 v4, s53")
    a("buffer_store_dword v4, v6, s[48:51], 0 offen offset:120")
    a("v_mov_b32 v4, 0x5157")
    a(f"v_mov_b32 v5, {n}")
    a("buffer_store_dwordx2 v[4:5], v6, s[48:51], 0 offen offset:112")
    a("s_mov_b64 exec, s[54:55]")

def srd(s, plo, off_s, size):
    return [f"s_add_u32 s{s}, s{plo}, {off_s}", f"s_addc_u32 s{s+1}, s{plo+1}, 0", f"s_mov_b32 s{s+2}, {size}", f"s_mov_b32 s{s+3}, 0x20000"]
def dma(vaddr, sdesc, soff, imm, flags=""):
    o = f" offset:{imm}" if imm else ""
    f = f" {flags}" if flags else ""
    return f"buffer_load_dwordx4 v{vaddr}, s[{sdesc}:{sdesc+3}], {soff} offen{o}{f} lds"
def tag(lst, t):
    return [x + f" ;@{t}" if kind(x) == "vm" else x for x in lst]
def check_setup(lines, name):
    last = {}
    for x in lines:
        if ";@" not in x:
            if kind(x) == "s" and not x.endswith(":") and len(x.split()) > 1 and x.split()[1].rstrip(",") in ("m0", "s42", "s30"): last[x.split()[1].rstrip(",")] = None
            continue
        t = x.split(";@")[1]
        if kind(x) == "s": last[x.split()[1].rstrip(",")] = t
        elif t[0] == "w" and t[1:].isdigit() and not x.startswith("buffer_dummy"):
            assert last.get("m0") == t and last.get("s42") == t, (name, x, last)
        elif t[0] == "o" and t[1:].isdigit() and not x.startswith("buffer_dummy"):
            assert last.get("s30") == t, (name, x, last)
def with_nop(lst):
    o = []
    for x in lst:
        o.append(x)
        if " m0," in x: o.append("s_nop 0")
    return o

def resolve_waits(lines):
    out = []; seq = []; lseq = []
    for x in lines:
        if x.startswith("WAITLG"):
            t = x.split()[1]
            idx = max(i for i, v in enumerate(lseq) if v == t)
            out.append(f"s_waitcnt lgkmcnt({min(len(lseq) - 1 - idx, 15)})")
            continue
        if x.startswith("ds_"): lseq.append(x.split(";@")[1] if ";@" in x else "")
        if x.startswith("WAITVM"):
            p = x.split(None, 2)
            idx = max(i for i, t in enumerate(seq) if t == p[1])
            n = min(len(seq) - 1 - idx, 63)
            out.append(f"s_waitcnt vmcnt({n})" + (" " + p[2] if len(p) > 2 else ""))
            continue
        if not (x.endswith(":") or x.startswith(".") or x.startswith(";")) and kind(x) == "vm" and not x.endswith(";@skip"):
            seq.append(x.split(";@")[1] if ";@" in x else "")
        if not x.startswith("buffer_dummy"): out.append(x.split(" ;@")[0])
    return out

def kdma(cfg, slot, so="s33"):
    return [f"s_add_u32 m0, s40, {16384*slot}"] + [dma(KDA + pp, SK, so, 1024 * pp, cfg.kvflags) for pp in range(4)]
def vdma(cfg, slot, so="s33"):
    return [f"s_add_u32 m0, s40, {65536+16384*slot}"] + [dma(VDA + (pp & 1), SV, so, 1024 * pp, cfg.kvflags) for pp in range(4)]
ADV = "s_add_u32 s33, s33, 16384"
def upiece(cfg, gp):
    sg = gp >> 3
    if gp & 1: return ["s_or_b32 m0, m0, 0x10000", dma(VDA, SV, "s33", 0, cfg.kvflags) + f" ;@seg{sg}", "s_add_u32 s33, s33, 4096"]
    return ["s_and_b32 m0, s33, 0xffff", dma(KDA, SK, "s33", 0, cfg.kvflags) + f" ;@seg{sg}" + ("k" if sg == 15 else "")]
def piece(cfg, gp, setm0, guard=False):
    sg, kv, pp = gp // 8, (gp % 8) // 4, gp % 4
    grp = (vdma if kv else kdma)(cfg, sg & 3)
    o = ([grp[0]] if pp == 0 or setm0 else []) + tag([grp[1 + pp]], f"seg{sg}" + ("k" if kv == 0 else ""))
    if gp % 8 == 7:
        o += [ADV]
        if guard: o += [f"s_cmp_lt_u32 s33, {KVBYTES}", f"s_cselect_b32 s{SK+2}, {KVBYTES}, 0"]
    return o
def wdma(cfg, t):
    return [x + f" ;@w{t}" for x in [f"s_add_u32 s42, s41, {t}", "s_and_b32 s42, s42, 31", "s_mul_i32 s42, s42, 40960", f"s_add_u32 m0, s40, {16384*UNIT[t%10]}"]] + \
        tag([dma(WD + pp, SWO, "s42", 1024 * pp, cfg.bflags) for pp in range(4)], f"w{t}")
def kread(buf, slot, th, kt, ks):
    return f"ds_read_b128 {ar(KF(buf,kt,ks),4)}, v{KRA+ks} offset:{16384*slot+8192*th+4096*kt}"
def vread(buf, slot, th, dt, e):
    return f"ds_read_b64_tr_b16 {ar(VF(buf,dt)+2*e,2)}, v{VRA+dt} offset:{16384*slot+8192*th+4096*e}"

def qk(u, kb, czero=False, sl=None):
    m = []
    for kt in range(2):
        d = vr(S_(u if sl is None else sl, kt), 4)
        for ks in range(4):
            c = ("0" if czero else vr(NM(u), 4)) if ks == 0 else d
            m.append(f"{MF} {d}, {ar(KF(kb,kt,ks),4)}, {ar(Q_(u,ks),4)}, {c}")
    return m
LA = {0: 18, 1: 19}
def pv(u, vb, czero=False, sl=None, lsum=True):
    m = []
    p = vr(P_(u if sl is None else sl), 4)
    for dt in range(8):
        d = vr(O_(u, dt), 4)
        m.append(f"{MF} {d}, {ar(VF(vb,dt),4)}, {p}, {'0' if czero else d}")
    d = ar(L_(u), 4)
    if lsum: m.append(f"{MF} {d}, {ar(ONES,4)}, {p}, {'0' if czero else d}")
    return m
TRUNC = [False]
def ppack(d, s):
    return f"v_perm_b32 v{d}, v{s+1}, v{s}, s39" if TRUNC[0] else f"v_cvt_pk_bf16_f32 v{d}, v{s}, v{s+1}"
def sm_half(q, g0, u, kt, add=False):
    s = S_(u, kt)
    for r in range(4):
        if add: q.put(g0 + 2 * r + 1, f"v_add_f32 v{LA[u]}, v{LA[u]}, v{s+r}")
        q.put(g0 + 2 * r, f"v_exp_f32 v{s+r}, v{s+r}")
        if r & 1: q.put(g0 + 2 * r + 1, ppack(P_(u) + 2 * kt + r // 2, s + r - 1))

def attn_tile(cfg, q, j, mode="loop"):
    kb = vb = j & 1
    slot, th = (j >> 1) & 3, j & 1
    nslot, nth = ((j + 1) >> 1) & 3, (j + 1) & 1
    z = mode == "first"
    addu = cfg.addu if mode == "loop" else ()
    groups = [qk(0, kb), pv(2, vb ^ 1, z), qk(1, kb), pv(3, vb ^ 1, z), qk(2, kb), pv(0, vb, lsum=0 not in addu), qk(3, kb), pv(1, vb, lsum=1 not in addu)]
    st = [q.add(g) for g in groups]; st.append(len(q.m))
    sm_half(q, st[0], 3, 1)
    for u in range(3):
        sm_half(q, st[2 * u + 1], u, 0, u in addu)
        sm_half(q, st[2 * u + 2], u, 1, u in addu)
    sm_half(q, st[7], 3, 0)
    vr_ = [vread(vb, slot, th, dt, e) for dt in range(8) for e in range(2)]
    NV = 6 if 0 in cfg.addu else 0
    if 0 in addu: pos = [st[0] + k for k in (1, 3, 5, 5, 7)] + [st[1] + k for k in (1, 5, 8, 8)] + [st[2] + 5]
    else: pos = [st[0] + k for k in (1, 3, 5, 5, 7)] + [st[1] + k for k in (1, 1, 3, 5, 5, 7, 8)] + [st[2] + k for k in (1, 3, 5, 5)]
    for p, r in zip(pos, vr_[16 - len(pos):]): q.put(p, r)
    mid = st[4] - 1
    if j & 1:
        if mode == "loop": q.put(mid, f"s_waitcnt vmcnt({16-cfg.lag if not cfg.bm else (18 if cfg.bm == 3 else 14)-cfg.lag}) lgkmcnt(0)" if not cfg.uni else "UNIWAIT")
        else: q.put(mid, f"WAITVM seg{(j+1)//2}{'k' if j == 29 and cfg.split15 else ''} lgkmcnt(0)")
        q.put(mid, "s_barrier")
    else:
        q.put(mid, "s_waitcnt lgkmcnt(0)")
    kr_ = [kread(kb ^ 1, nslot, nth, kt, ks) for kt in range(2) for ks in range(4)]
    if 1 in addu: pos = [st[4] + 5] + [st[5] + k for k in (1, 1, 3, 5, 5, 7)] + [st[6] + 1]
    else: pos = [st[4] + k for k in (1, 3, 5, 7)] + [st[5] + k for k in (1, 3, 5, 7)]
    for p, r in zip(pos, kr_): q.put(p, r)
    if NV and mode != "final":
        nvr = [vread(vb ^ 1, nslot, nth, dt, e) for dt in range(8) for e in range(2)][:NV]
        for p, r in zip([st[6] + 3, st[6] + 5, st[6] + 5, st[6] + 7, st[7] + 1, st[7] + 1], nvr): q.put(p, r)
        q.put(st[8] - 2, f"s_waitcnt lgkmcnt({NV})")
    else:
        q.put(st[8] - 2 if j != 29 else st[7], "s_waitcnt lgkmcnt(0)")
    nlast = cfg.lds_last if mode != "final" else (cfg.lds_fin if cfg.lds_fin >= 0 else cfg.lds_last)
    if nlast:
        cand = [i for i in range(st[0], st[8]) if any(x.startswith(("v_cvt", "v_perm")) for x in q.g[i]) and any(x.startswith("ds_read") for x in q.g[i])]
        for k in range(nlast):
            i = cand[(k * len(cand)) // nlast]
            c_ = [x for x in q.g[i] if x.startswith(("v_cvt", "v_perm"))][0]; r_ = [x for x in q.g[i] if x.startswith("ds_read")][0]
            q.g[i].remove(c_); q.g[i].remove(r_); q.g[i] += ["!" + c_, "!" + r_]
    dpos = [st[0] + 1, st[2] + 1, st[4] + 1, st[6] + 1]
    if cfg.bm:
        assert cfg.lag % 4 == 2
        dpos = {1: [st[4] + 1, st[4] + 5, st[5] + 1, st[5] + 5], 2: [st[4] + 1, st[4] + 3, st[4] + 5, st[4] + 7], 3: [st[2] + 7, st[3] + 1, st[3] + 3, st[3] + 5],
                4: [st[4] + 1, st[4] + 2, st[4] + 3, st[4] + 4]}[cfg.bm]
    for k in range(0 if not cfg.uni else 4, 4):
        gp = 4 * j + 26 + k - cfg.lag
        if mode == "first" and k < 2 and not cfg.bm: continue
        if mode == "final":
            if gp < 128: q.place(piece(cfg, gp, True), [[st[0] + 1, st[0] + 5, st[1] + 1, st[1] + 3][k] if cfg.wsched in (0, 2) else dpos[k]])
            continue
        q.place(piece(cfg, gp, False, cfg.lag < 2), [dpos[k]])
    return st

def rowmax_l(t, t2):
    return [f"v_mov_b32 v{t2}, v{t}", "s_nop 1", f"v_permlane32_swap_b32 v{t}, v{t2}", f"v_max_f32 v{t}, v{t}, v{t2}",
            f"v_mov_b32 v{t2}, v{t}", "s_nop 1", f"v_permlane16_swap_b32 v{t}, v{t2}", f"v_max_f32 v{t}, v{t}, v{t2}"]

def scale_pack(cfg, b0, t, mul, pk):
    o = []
    if pk: o += [f"v_pk_mul_f32 {vr(b0+2*i,2)}, {vr(b0+2*i,2)}, {mul[1]}" for i in range(4)]
    else: o += [f"v_mul_f32 v{b0+i}, {mul[0]}, v{b0+i}" for i in range(8)]
    o += [f"v_cvt_pk_bf16_f32 v{t+i}, v{b0+2*i}, v{b0+2*i+1}" for i in range(4)]
    return o

def gen(cfg):
    if cfg.wsched == 2: UNIT[:] = UNIT2 if not cfg.wv else UNIT3
    TRUNC[0] = cfg.trunc
    if cfg.epark: WBLK[:] = WBLK2
    WBLK.extend([-224, -208, -192, -176][:cfg.R - 16])
    assert 112 + 20 * cfg.DO <= 240 - 16 * (cfg.R - 16)
    a = Asm()
    a("s_cmp_ge_u32 s2, 256")
    a("s_cbranch_scc1 L_end")
    a("s_mov_b32 s35, 0")
    if cfg.epark: a("L_restart:")
    stamp(a, cfg, "start")
    a("s_load_dwordx4 s[4:7], s[0:1], 0")
    a("s_load_dwordx4 s[44:47], s[0:1], 16")
    a("v_lshrrev_b32 v2, 6, v0")
    a("v_and_b32 v1, 63, v0")
    a("v_readfirstlane_b32 s3, v2")
    a("s_and_b32 s50, s2, 7")
    a("s_lshr_b32 s51, s2, 3")
    a("s_and_b32 s52, s51, 3")
    a("s_lshr_b32 s53, s51, 2")
    a("s_bfe_u32 s28, s2, 0x10000")
    a("s_lshl2_add_u32 s28, s28, s52")
    a("s_lshr_b32 s54, s50, 1")
    a("s_lshl3_add_u32 s29, s54, s53")
    a("s_add_u32 s52, s52, s53")
    a("s_and_b32 s52, s52, 1")
    a(f"s_mul_i32 s32, s52, {cfg.roff}")
    a("s_add_u32 s54, s54, s50")
    a("s_and_b32 s54, s54, 1")
    a("s_lshl1_add_u32 s32, s54, s32")
    if cfg.mapx:
        a("s_mov_b32 s28, s50")
        a("s_mov_b32 s29, s51")
        a("s_mul_i32 s32, s50, 5")
        a("s_lshr_b32 s32, s32, 2")
        if cfg.mapx == 2:
            a("s_and_b32 s52, s51, 1")
            a("s_mul_i32 s52, s52, 5")
            a("s_add_u32 s32, s32, s52")
            a("s_cmp_ge_u32 s32, 10")
            a("s_cselect_b32 s52, 10, 0")
            a("s_sub_u32 s32, s32, s52")
    if cfg.c0same:
        a("s_mov_b32 s30, %d" % (9 << 7))
        a("s_mov_b32 s31, %d" % (9 << 19))
    else:
        a("s_lshl_b32 s30, s32, 7")
        a("s_lshl_b32 s31, s32, 19")
    a("s_lshl_b32 s40, s3, 12")
    a("s_lshl1_add_u32 s36, s40, %d" % XBASE[0][0])
    a("s_add_u32 s39, s40, %d" % WWIN)
    a("v_lshrrev_b32 v3, 4, v1")
    a("v_lshrrev_b32 v4, 3, v1")
    a("v_and_b32 v5, 7, v1")
    a("v_and_b32 v2, 15, v1")
    a("s_mul_i32 s52, s3, %d" % (64 * 1280))
    a("v_mul_u32_u24 v8, 1280, v4")
    a("v_xor_b32 v9, v3, v5")
    a("v_lshlrev_b32 v9, 4, v9")
    a(f"v_add3_u32 v{XDA}, v9, s52, v8")
    a(f"v_xor_b32 v17, 64, v{XDA}")
    for pp in range(1, 8):
        a(f"v_add_u32 v{XDA+pp}, {10240*pp-1024*(pp&3)}, v{17 if pp & 1 else XDA}")
    a("s_lshl_b32 s52, s3, 17")
    a("v_lshlrev_b32 v8, 13, v3")
    a("v_and_b32 v9, 1, v3")
    a("v_lshrrev_b32 v10, 1, v3")
    a("v_lshl_or_b32 v9, v10, 2, v9")
    a("v_xor_b32 v9, v9, v2")
    a("v_lshlrev_b32 v9, 4, v9")
    a(f"v_add3_u32 v{WDA}, v9, s52, v8")
    a(f"v_xor_b32 v17, 128, v{WDA}")
    for pp in range(1, 4):
        a(f"v_add_u32 v{WDA+pp}, {32768*pp-1024*pp}, v{17 if pp >> 1 else WDA}")
    a("s_mul_i32 s52, s28, 307200")
    a("s_lshl_b32 s53, s29, 8")
    a.ext(srd(SX, 4, "s52", 307200)[2:] + srd(SW, 46, "s53", 640 * 8192 - 31 * 256)[2:])
    a("s_waitcnt lgkmcnt(0)")
    stamp(a, cfg, "kernarg")
    a.ext(srd(SX, 4, "s52", 307200)[:2] + srd(SW, 46, "s53", 0)[:2])

    def qstage(c):
        bf = c % 3
        o = [f"s_mov_b32 m0, s{36+bf}"]
        o += [dma(XDA + pp, SX, "s30", 1024 * pp, cfg.xflags) for pp in range(4)]
        o += [f"s_add_u32 m0, s{36+bf}, 4096"]
        o += [dma(XDA + 4 + pp, SX, "s30", 1024 * pp, cfg.xflags) for pp in range(4)]
        o += [f"s_add_u32 m0, s39, {WOFF[bf]}"]
        o += [dma(WDA + pp, SW, "s31", 1024 * pp, cfg.xflags) for pp in range(4)]
        if not (cfg.c0same and c == 0): o += ["s_add_u32 s32, s32, 1", f"s_cmp_eq_u32 s32, {9 if cfg.c0same else 10}", "s_cselect_b32 s32, 0, s32"]
        o += ["s_lshl_b32 s30, s32, 7", "s_lshl_b32 s31, s32, 19"]
        return tag(o, f"c{c}")
    a.ext(with_nop(qstage(0)))
    a("s_load_dwordx2 s[48:49], s[0:1], 56")
    if cfg.cwarm:
        a("s_getpc_b64 s[54:55]")
        a("L_cbase:")
        a("s_lshl2_add_u32 s52, s51, s3")
        a(f"s_mul_i32 s52, s52, {5 if cfg.w3 else 3}")
        a(f"v_min_u32 v18, {4 if cfg.w3 else 2}, v1")
        a("v_add_u32 v18, s52, v18")
        a("v_lshlrev_b32 v18, 7, v18")
        a("v_min_u32 v18, L_exact-L_cbase, v18")
        a("v_mov_b32 v19, s55")
        a("v_add_co_u32 v18, vcc, s54, v18")
        a("v_addc_co_u32 v19, vcc, 0, v19, vcc")
        a("global_load_dword v20, v[18:19], off")
    a("s_mov_b32 s33, s40" if not cfg.uni else "s_lshl_b32 s33, s3, 10")
    a("s_and_b32 s52, s3, 1")
    a("s_lshl_b32 s52, s52, 13")
    a("s_cmp_ge_u32 s3, 2")
    for bf in range(1, 3):
        a(f"s_mov_b32 s53, {XBASE[bf][0]}")
        a(f"s_cselect_b32 s{36+bf}, {XBASE[bf][1]}, s53")
    for bf in range(1, 3):
        a(f"s_add_u32 s{36+bf}, s{36+bf}, s52")
    a("v_bfe_u32 v6, v1, 2, 2")
    a("v_and_b32 v7, 3, v1")
    if cfg.c1first: a.ext(with_nop(qstage(1)))
    a("s_waitcnt lgkmcnt(0)")
    if cfg.sig == "line":
        a("s_lshl_b32 s52, s28, 5")
        a("s_add_u32 s52, s52, s29")
        a("s_lshl_b32 s52, s52, 7")
        a(f"s_add_u32 s52, s52, {FOFF}")
        a("v_mov_b32 v18, s52")
        a("v_mov_b32 v19, 0")
        a("s_mov_b64 exec, 1")
        a("global_store_dword v18, v19, s[48:49] sc1")
        a("s_mov_b64 exec, -1")
        a("v_and_b32 v0, 31, v1")
        a("v_lshlrev_b32 v0, 3, v0")
    a("s_load_dwordx4 s[56:59], s[0:1], 32")
    a("s_lshl_b32 s52, s28, 5")
    a("s_add_u32 s52, s52, s29")
    a("s_lshl_b32 s52, s52, 18")
    a.ext(srd(SK, 6, "s52", KVBYTES))
    a.ext(srd(SV, 44, "s52", KVBYTES))
    a("s_mul_i32 s52, s28, %d" % (15 * 131072))
    a.ext(srd(SO, 48, "s52", 15 * 131072))
    a("s_load_dwordx2 s[46:47], s[0:1], 48")
    a("v_lshlrev_b32 v10, 8, v3")
    if cfg.uni:
        a("s_lshl_b32 s52, s3, 2")
        a("v_add_u32 v8, s52, v3")
        a("v_xor_b32 v9, v8, v2")
        a(f"v_lshl_add_u32 v{KDA}, v9, 4, v10")
        a("v_and_b32 v8, 7, v8")
        a("v_lshlrev_b32 v8, 1, v8")
        a("v_xor_b32 v9, v8, v2")
        a(f"v_lshl_add_u32 v{VDA}, v9, 4, v10")
    else:
        for pp in range(4):
            a(f"v_add_u32 v9, {4*pp}, v3")
            a("v_xor_b32 v9, v9, v2")
            a(f"v_lshl_add_u32 v{KDA+pp}, v9, 4, v10")
        for pp in range(2):
            a(f"v_add_u32 v9, {4*pp}, v3")
            a("v_lshlrev_b32 v9, 1, v9")
            a("v_xor_b32 v9, v9, v2")
            a(f"v_lshl_add_u32 v{VDA+pp}, v9, 4, v10")
    a("v_lshrrev_b32 v9, 1, v2")
    for s in range(2):
        a(f"v_or_b32 v8, {4*s}, v3")
        a("v_xor_b32 v8, v8, v9")
        a("v_lshlrev_b32 v8, 4, v8")
        a("v_lshl_add_u32 v8, v2, 7, v8")
        for bf in range(3):
            a(f"v_add_u32 v{XRA+2*bf+s}, s{36+bf}, v8")
    a("v_lshrrev_b32 v11, 1, v7")
    a("v_and_b32 v12, 1, v7")
    a("v_lshlrev_b32 v12, 3, v12")
    a("v_and_b32 v9, 1, v6")
    a("v_lshrrev_b32 v10, 1, v6")
    a("v_lshl_or_b32 v9, v10, 2, v9")
    a("v_and_b32 v10, 1, v3")
    a("v_lshl_or_b32 v9, v10, 3, v9")
    a("v_lshl_or_b32 v9, v11, 1, v9")
    a("v_lshl_add_u32 v13, v3, 3, v6")
    a("v_lshl_add_u32 v13, v13, 8, v12")
    a(f"v_add_u32 v13, {WWIN}, v13")
    for dt in range(8):
        a(f"v_xor_b32 v8, {4*(dt>>1)+(dt&1)}, v9")
        a(f"v_lshl_add_u32 v{WRA+dt}, v8, 4, v13")
    a("v_lshl_or_b32 v9, v10, 2, v6")
    a("v_lshl_or_b32 v9, v9, 1, v11")
    a("v_lshl_add_u32 v14, v3, 2, v6")
    a("v_lshl_add_u32 v14, v14, 8, v12")
    a("v_add_u32 v14, 65536, v14")
    for dt in range(8):
        a(f"v_xor_b32 v8, {2*dt}, v9")
        a(f"v_lshl_add_u32 v{VRA+dt}, v8, 4, v14")
    for ks in range(4):
        a(f"v_or_b32 v8, {4*ks}, v3")
        a("v_xor_b32 v8, v8, v2")
        a("v_lshlrev_b32 v8, 4, v8")
        a(f"v_lshl_add_u32 v{KRA+ks}, v2, 8, v8")
    for i in range(4):
        a(f"v_mov_b32 v{MTR+i}, 0xff800000")
    a("v_lshlrev_b32 v15, 4, v1")
    if cfg.touch:
        a(f"v_and_b32 v8, {cfg.tl-1}, v1")
        a(f"v_lshrrev_b32 v9, {int(math.log2(cfg.tl))}, v1")
        a("v_lshlrev_b32 v9, 14, v9")
        a("v_lshl_add_u32 v219, v8, 7, v9")
    a("v_lshlrev_b32 v9, 1, v3")
    a("v_xor_b32 v9, v9, v5")
    a("v_lshlrev_b32 v9, 4, v9")
    a("v_mul_u32_u24 v8, 1280, v4")
    a("v_add_u32 v8, v8, v9")
    for pp in range(4):
        a(f"v_add_u32 v{WD+pp}, {pp*9216}, v8")
    a("v_lshl_add_u32 v14, v3, 2, v6")
    a("v_bfe_u32 v13, v14, 1, 2")
    a("v_lshl_or_b32 v13, v13, 1, v11")
    a("v_lshl_add_u32 v14, v14, 7, v12")
    a("v_add_u32 v14, s40, v14")
    for nt in range(4):
        a(f"s_add_u32 s53, s3, {nt}")
        a("s_and_b32 s53, s53, 3")
        a("s_lshl_b32 s53, s53, 1")
        a("v_xor_b32 v16, s53, v13")
        a(f"v_lshl_add_u32 v{WRL[0][nt]}, v16, 4, v14")
        a(f"v_add_u32 v{WRL[1][nt]}, 65536, v{WRL[0][nt]}")
        a(f"v_add_u32 v{WRL[2][nt]}, 131072, v{WRL[0][nt]}")
    for i in range(5): a(f"v_add_u32 v{OAL[i]}, {131072*i}, v15")
    a("s_min_u32 s51, s51, 29")
    a("s_cmp_ge_u32 s51, 15")
    a("s_cselect_b32 s52, 1, 0")
    a("s_cselect_b32 s53, 15, 0")
    a("s_sub_u32 s53, s51, s53")
    a("s_and_b32 s43, s50, 6")
    a("s_add_u32 s43, s43, s52")
    a("s_mul_i32 s54, s53, 52")
    a("s_lshr_b32 s54, s54, 8")
    a("s_mul_i32 s41, s54, 5")
    a("s_sub_u32 s53, s53, s41")
    a("s_and_b32 s55, s50, 1")
    a("s_mul_i32 s55, s55, 5")
    a("s_add_u32 s55, s55, s53")
    a("s_mul_i32 s52, s52, 3")
    a("s_add_u32 s41, s54, s52")
    a("s_mul_i32 s41, s41, 43")
    a("s_lshr_b32 s41, s41, 3")
    if cfg.rA:
        a(f"s_mul_i32 s53, s53, {cfg.rA}")
        a("s_add_u32 s41, s41, s53")
    if cfg.map3b:
        a("s_mov_b32 s43, s50")
        a("s_mul_i32 s54, s51, 26")
        a("s_lshr_b32 s54, s54, 8")
        a("s_mul_i32 s52, s54, 10")
        a("s_sub_u32 s55, s51, s52")
        a("s_mul_i32 s41, s54, 11")
        a("s_add_u32 s41, s41, s50")
        a("s_mov_b32 s34, 0")
    a("s_and_b32 s41, s41, 31")
    sc = f32(math.log2(math.e) / math.sqrt(128.0))
    if cfg.wpull:
        a("s_mul_i32 s52, s2, 160")
        a(f"s_mul_i32 s53, s3, {14 if cfg.wpull == 1 else 40}")
        a("s_add_u32 s52, s52, s53")
        a("v_add_u32 v218, s52, v1")
        a("v_lshlrev_b32 v218, 7, v218")
        a("v_mov_b32 v16, 0x7fffff80")
        a(f"v_cmp_gt_u32 vcc, {14 if cfg.wpull == 1 else 40}, v1")
        a("v_cndmask_b32 v255, v16, v218, vcc")
    if cfg.wl2:
        a("s_lshr_b32 s52, s2, 3")
        a("s_lshl_b32 s52, s52, 2")
        a("s_add_u32 s52, s52, s3")
        a("s_mul_i32 s52, s52, %d" % (32 * 1280))
        a("s_and_b32 s53, s50, 1")
        a("s_mul_i32 s53, s53, 640")
        a("s_add_u32 s52, s52, s53")
        a("v_mul_u32_u24 v16, 52, v1")
        a("v_lshrrev_b32 v16, 8, v16")
        a("v_mul_u32_u24 v17, 5, v16")
        a("v_sub_u32 v17, v1, v17")
        a("v_mul_u32_u24 v16, 1280, v16")
        a("v_lshl_add_u32 v16, v17, 7, v16")
        a("v_add_u32 v16, s52, v16")
        a("v_mov_b32 v17, 0x7fffff80")
        a("v_cmp_gt_u32 vcc, 15, v1")
        a("v_cndmask_b32 v255, v17, v16, vcc")
    a(f"s_mov_b32 s44, {sc}")
    a(f"s_mov_b32 s45, {sc}")
    if not cfg.c1first: a.ext(with_nop(qstage(1)))
    stamp(a, cfg, "issued")

    def qreads(c):
        bf = rb = c % 3
        o = []
        for s in range(2):
            o.append(f"ds_read_b128 {XF(rb,s,0)}, v{XRA+2*bf+s}")
        for dt in range(8):
            for s in range(2):
                for e in range(2):
                    o.append(f"ds_read_b64_tr_b16 {WF2(rb,s,dt,e)}, v{WRA+dt} offset:{WOFF[bf]+8192*s+1024*e}")
        for u in range(1, 4):
            for s in range(2):
                o.append(f"ds_read_b128 {XF(rb,s,u)}, v{XRA+2*bf+s} offset:{2048*u}")
        return o
    a("WAITVM c0 lgkmcnt(0)")
    a("s_barrier")
    stamp(a, cfg, "landed")
    r0 = qreads(0)
    if cfg.fast0: a.ext(r0[:14])
    else:
        a.ext(r0)
        a.ext(with_nop(qstage(2)))
    wp = ["s_mov_b32 s4, s56", "s_mov_b32 s5, s57", f"s_mov_b32 s6, {4096*1280}", "s_mov_b32 s7, 0x20000", "buffer_load_dword v218, v255, s[4:7], 0 offen"]
    if cfg.wpull == 2: a.ext(wp)
    a("s_waitcnt lgkmcnt(8)" if cfg.fast0 else "s_waitcnt lgkmcnt(0)")
    if cfg.w3:
        a("s_cmp_eq_u32 s3, 3")
        a("s_cbranch_scc1 L_w3")
        if cfg.prio: a(f"s_setprio {cfg.prio}")
        a("L_sec0:")
    q = Seq()
    per = []
    for c in range(10):
        rb = c % 3
        mf = []
        for u in range(4):
            for dt in range(8):
                d = vr(O_(u, dt), 4)
                for s in range(2):
                    mf.append(f"{MF} {d}, {WF(rb,s,dt)}, {XF(rb,s,u)}, {'0' if c == 0 and s == 0 else d}")
        if cfg.joint and c >= 8:
            mf = []
            for u in (2 * (c - 8), 2 * (c - 8) + 1):
                for dt in range(8):
                    d = vr(O_(u, dt), 4)
                    for cc in (8, 9):
                        for s in range(2): mf.append(f"{MF} {d}, {WF(cc%3,s,dt)}, {XF(cc%3,s,u)}, {d}")
        p0 = q.add(mf); per.append(p0)
        for x in stamp_l(a, cfg, f"q{c+1}"): q.put(p0 + 63, "!" + x)
    if cfg.lazy:
        A = dict(zip(range(1, 10), cfg.lazy))
        FR = {0: 22}
        for n in range(1, 10):
            assert A[n] >= 64 * (n - 2) and A[n] + 26 < 64 * n + 3, n
            q.put(A[n], f"WAITVM c{n}"); q.put(A[n], "s_barrier")
            fast = A[n] + 38 > 64 * n
            for i, r in enumerate(qreads(n)): q.put(A[n] + 1 + (i // 2 if fast else (i * 3) // 4), r)
            FR[n] = min(A[n] + (26 if fast else 36), 64 * n - 1)
        DE = 0
        for n in range(10):
            q.put(FR[n], "s_waitcnt lgkmcnt(0)"); q.put(FR[n], "s_barrier")
            if n + 3 < 10:
                p = max(FR[n] + 2, DE + 6)
                ps = [p + (cfg.bsp * i) // 12 for i in range(12)]
                q.place(qstage(n + 3), ps); DE = ps[-1]
                assert DE < A[n + 3] - 20, n
        BQ = {7: DE - cfg.bsp + 3, 8: FR[7], 9: FR[8], 10: FR[9]}
    else:
        BQ = {n: max(cfg.b1 + cfg.bsp * (n - 1), 64 * (n - 2)) for n in range(1, 10)}
        BQ[10] = BQ[9] + 44
        for n in range(1, 11):
            p = BQ[n]
            q.put(p, f"WAITVM c{n} lgkmcnt(0)" if n < 10 else "s_waitcnt lgkmcnt(0)"); q.put(p, "s_barrier")
            if n < 10:
                for i, r in enumerate(qreads(n)): q.put(p + 1 + ((i * 3) // 4 if n < cfg.qd0 else i // cfg.qdn), r)
            if n + 2 < 10:
                q.place(qstage(n + 2), [p + 2 + (cfg.bsp * i) // 12 for i in range(12)])
            assert n == 1 or n == 10 or BQ[n + 1] < 64 * n, n
        q.put(63, "s_waitcnt lgkmcnt(0)")
    if cfg.fast0:
        for i, r in enumerate(r0[14:]): q.put(i // 2, r)
        for dt in range(1, 8):
            issued = min(40, 14 + 2 * (2 * dt - 1)); needed = 2 + 4 * (dt + 1)
            q.g[2 * dt - 1].insert(0, f"s_waitcnt lgkmcnt({min(15, issued - needed)})")
        q.g[15].insert(0, "s_waitcnt lgkmcnt(0)")
        q.place(qstage(2), [4 + i + i // 4 for i in range(12)])
    if cfg.wpull >= 3: q.place(wp, [per[cfg.wpull - 3] + 60])
    sw = ["s_mul_i32 s52, s3, %d" % (1024 * 1280), "s_lshl_b32 s53, s55, 7", "s_add_u32 s52, s52, s53"] + srd(SWO, 56, "s52", WOSZ) + \
         ["s_mul_i32 s52, s43, 15", "s_mul_i32 s53, s54, 5", "s_add_u32 s52, s52, s53", "s_lshl_b32 s52, s52, 17", "s_lshl_b32 s53, s3, 15",
          "s_add_u32 s52, s52, s53"] + srd(SOR, 48, "s52", ORSZ)
    if cfg.wpull == 1 or cfg.wl2: sw += ["s_mov_b32 s4, s56", "s_mov_b32 s5, s57", f"s_mov_b32 s6, {4096*1280}", "s_mov_b32 s7, 0x20000", "s_mov_b32 s38, 0"]
    if cfg.trunc: sw += ["s_mov_b32 s39, 0x07060302"]
    i = per[8] + 2
    k = 0
    while k < len(sw):
        n = 2 if "s_addc" in sw[min(k + 1, len(sw) - 1)] else 1
        for x in sw[k:k + n]: q.put(i, x)
        k += n; i += 2
    p9 = per[9]
    def qepi(u):
        o = []
        for m in range(4):
            t = 16 + 4 * (m & 1)
            o += scale_pack(cfg, O_(u, 2 * m), t, ("s44", "s[44:45]"), cfg.pkmul)
            if m:
                tp = 16 + 4 * ((m - 1) & 1)
                o += [f"v_accvgpr_write_b32 a{Q_(u,m-1)+i}, v{tp+i}" for i in range(4)]
            o += [f"v_permlane16_swap_b32 v{t}, v{t+2}", f"v_permlane16_swap_b32 v{t+1}, v{t+3}"]
        o += [f"v_accvgpr_write_b32 a{Q_(u,3)+i}, v{20+i}" for i in range(4)]
        return o
    q.put(p9 + 31, "WAITVM seg0k" if cfg.split0 else "WAITVM seg0"); q.put(p9 + 31, "s_barrier")
    for x in stamp_l(a, cfg, "b0"): q.put(p9 + 31, "!" + x)
    k0r = [kread(0, 0, 0, kt, ks) for kt in range(2) for ks in range(4)]
    for i, r in enumerate(k0r): q.put(p9 + 32 + 2 * i, r)
    if cfg.joint:
        assert BQ[10] < per[8]
        e = q.stream(qepi(0), per[8] + 32 + 4, cap=cfg.jcap)
        e = q.stream(qepi(1), max(e, p9 + 4), cap=cfg.jcap)
        e = q.stream(qepi(2), max(e, p9 + 32 + 4), cap=cfg.jcap)
    else:
        e = q.stream(qepi(0), p9 + 16 + 4, cap=4)
        e = q.stream(qepi(1), max(e, p9 + 32 + 4), cap=4)
        e = q.stream(qepi(2), max(e, p9 + 48 + 4), cap=4)
    q.put(p9 + 62, "s_waitcnt lgkmcnt(0)")
    lab = q.raw([])
    for x in stamp_l(a, cfg, "g0"): q.put(len(q.m) - 1, "!" + x)
    g0 = q.add(qk(0, 0, True))
    g1 = q.add(qk(1, 0, True))
    g2 = q.add(qk(2, 0, True))
    v0r = [vread(0, 0, 0, dt, e_) for dt in range(8) for e_ in range(2)]
    k1r = [kread(1, 0, 1, kt, ks) for kt in range(2) for ks in range(4)]
    if cfg.split0:
        for i, r in enumerate(k1r): q.put(g0 + i, r)
        q.put(g1 - 1, "!WAITVM seg0"); q.put(g1 - 1, "!s_barrier")
        for i, r in enumerate(v0r): q.put(g1 + i, r)
    else:
        for i, r in enumerate(v0r + k1r): q.put(g0 + i, r)
    e = q.stream(qepi(3), max(e, g0), cap=4)
    def fmax(u):
        s0 = S_(u, 0); t = NM(u)
        o = [f"v_max3_f32 v{t}, v{s0}, v{s0+1}, v{s0+2}", f"v_max3_f32 v{t+1}, v{s0+3}, v{s0+4}, v{s0+5}",
             f"v_max3_f32 v{t}, v{t}, v{s0+6}, v{s0+7}", f"v_max3_f32 v{t}, v{t}, v{t+1}, v{MTR+u}"]
        return o + [x for x in rowmax_l(t, t + 1) if "s_nop" not in x]
    def fexp(u, nexp):
        s0 = S_(u, 0); t = NM(u)
        o = [f"v_sub_f32 v{s0+r}, v{s0+r}, v{t}" for r in range(8)]
        o += [f"v_exp_f32 v{s0+r}, v{s0+r}" for r in range(nexp)]
        o += [f"v_sub_f32 v{NM(u)+i}, 0, v{t}" for i in (1, 2, 3, 0)]
        o += [ppack(P_(u) + r // 2, s0 + r) for r in range(0, nexp, 2)]
        return o
    ones = [f"v_mov_b32 v{LA[u]}, 0" for u in cfg.addu] + ["v_mov_b32 v27, 0x3f803f80"] + [f"v_accvgpr_write_b32 a{ONES+i}, v27" for i in range(4)]
    e = q.stream(merge(fmax(0), fmax(1), ones), max(e, g2 + 1), cap=4)
    for x in stamp_l(a, cfg, "g3"): q.put(len(q.m) - 1, "!" + x)
    if cfg.epark:
        q.put(len(q.m) - 1, "!s_cmp_lg_u32 s35, 0"); q.put(len(q.m) - 1, "!s_cbranch_scc1 L_exact")
    g3 = q.add(qk(3, 0, True))
    e = q.stream(merge(fexp(0, 8), fmax(2)), g3, cap=6)
    q.raw(["s_waitcnt lgkmcnt(0)"])
    for x in stamp_l(a, cfg, "g4"): q.put(len(q.m) - 1, "!" + x)
    g4 = q.add(pv(0, 0, True))
    e = q.stream(merge(fexp(1, 8), fmax(3)), g4, cap=5)
    for x in stamp_l(a, cfg, "g5"): q.put(len(q.m) - 1, "!" + x)
    g5 = q.add(pv(1, 0, True))
    e = q.stream(merge(fexp(2, 8), fexp(3, 4)), g5, cap=7)
    for x in stamp_l(a, cfg, "tile1"): q.raw([x])
    st1 = attn_tile(cfg, q, 1, "first")
    if cfg.sig == "line":
        arr = ["s_and_b32 s52, s2, 31", "s_lshl_b32 s52, s52, 3", "v_mov_b32 v16, s52", "v_mov_b32 v17, 1", "s_cmp_lg_u32 s3, 0", "s_cbranch_scc1 L_noarr",
               "s_mov_b64 exec, 1", "global_atomic_add v16, v17, s[46:47] sc1 ;@skip", "s_mov_b64 exec, -1", "L_noarr:"]
        for x in arr: q.put(st1[8] - 1, "!" + x)
    kv = []
    NP = 32 - cfg.lag if not cfg.uni else cfg.ipre - 2
    if cfg.bm and not cfg.uni: NP = 30 - cfg.lag
    for gp in range(NP): kv += piece(cfg, gp, False) if not cfg.uni else upiece(cfg, gp)
    if cfg.uni:
        q.place(upiece(cfg, NP), [st1[4] + 1]); q.place(upiece(cfg, NP + 1), [st1[6] + 1])
    pos = []
    i = BQ[7] + cfg.bsp + 3 + cfg.kvdelay; acc = 4 * cfg.kvpace
    free_at = [0, BQ[8], BQ[8], BQ[8], BQ[9], BQ[9], BQ[9], BQ[10]]
    if cfg.uni: free_at = [BQ[8], BQ[8], BQ[8], BQ[8], BQ[9], BQ[9], BQ[10], BQ[10]]
    while len(pos) < NP:
        ok = q.m[i] and q.m[i - 1] and q.m[i + 1] and (q.slots(i) < 2 or i > (p9 + 16 if not cfg.joint else per[8] + 32)) and i > free_at[len(pos) // 4]
        if ok and acc >= ((cfg.kvpace if not cfg.kvp2 or i < p9 + cfg.kvsw else cfg.kvp2) if not cfg.bmi else (4 * cfg.kvpace - 3 * cfg.bmi if len(pos) % 4 == 0 else cfg.bmi)):
            pos.append(i); acc = 0
        acc += max(4, 2 + q.slots(i)) / 4
        i += 1
    assert pos[3 if cfg.split0 else 7] < p9 + 31 and pos[7] < g1 - 2 and pos[-1] < (st1[4] - 2 if cfg.bm != 3 else st1[2] + 3), (pos, p9, st1)
    if "nokv23" in cfg.exp: kv = [("buffer_dummy ;@" + x.split(";@")[1]) if (x.endswith("seg2") or x.endswith("seg3")) else x for x in kv]
    for k, (c, sg) in enumerate(cfg.touch):
        q.put(per[c] + cfg.tpos - 1, f"s_add_u32 s53, s40, {16384*sg}")
        q.put(per[c] + cfg.tpos, f"buffer_load_dword v255, v219, s[{SV if cfg.tkv[k % len(cfg.tkv)] == 'v' else SK}:{(SV if cfg.tkv[k % len(cfg.tkv)] == 'v' else SK)+3}], s53 offen {cfg.tflags}".rstrip())
    q.place(kv, pos)
    q.emit(a)
    a.l = fix(resolve_waits(a.l))
    a("s_mov_b32 s34, 3")
    a(".p2align 6")
    a("L_loop:")
    body0 = len(a.l)
    q = Seq()
    def loopstamp(q, p, pre):
        if cfg.stamps and pre in cfg.only.split(","):
            o = ["s_memtime s[4:5]", "s_memrealtime s[6:7]", "s_waitcnt lgkmcnt(0)"]
            for it in range(3):
                i = len(a.stamps); a.stamps.append(f"{pre}{it}")
                o += [f"s_cmp_eq_u32 s34, {3-it}", f"s_cselect_b32 s{60+4*i}, s4, s{60+4*i}", f"s_cselect_b32 s{62+4*i}, s6, s{62+4*i}"]
            for x in o: q.put(p, x)
    for j in range(2, 10):
        st = attn_tile(cfg, q, j)
        if j == 2: loopstamp(q, st[4] - 1, "ia")
        if j == 6: loopstamp(q, st[4] - 1, "ib")
        if cfg.wl2 and j % 2 == 0:
            q.put(st[3] + 1, f"buffer_load_dword v16, v255, s[4:7], s38 offen {cfg.wl2f}".rstrip())
            q.put(st[3] + 2, f"s_add_u32 s38, s38, {3*1280}")
        if cfg.wpull == 1 and j == 4:
            q.put(st[3] + 1, "buffer_load_dword v16, v255, s[4:7], s38 offen")
            q.put(st[3] + 2, f"s_add_u32 s38, s38, {56*128}")
        if j in (5, 7):
            for x in reversed(stamp_l(a, cfg, f"w{j}a")): q.g[st[4] - 1].insert(0, x)
            for x in stamp_l(a, cfg, f"w{j}b"): q.put(st[4] - 1, x)
        if j == 6:
            for x in reversed(stamp_l(a, cfg, f"d{j}a")): q.g[st[2] + 1].insert(0, x)
            for x in stamp_l(a, cfg, f"d{j}b"): q.put(st[2] + 1, "!" + x)
    if cfg.uni:
        n = len(q.m); cnt = cfg.upi; ps = []
        for k in range(cnt):
            if cfg.ucl:
                p = int((k // cfg.ucl + cfg.uph) * n / (cnt // cfg.ucl)) + 1 if k % cfg.ucl == 0 else ps[-1] + (2 if k & 1 else 3)
                while q.slots(p) >= (2 if k % cfg.ucl == 0 else 3) or any(x.startswith("v_exp") for x in q.g[p]) or "UNIWAIT" in q.g[p] or "UNIWAIT" in q.g[p - 1]: p += 1
            else:
                p = int((k + 0.1) * n / cnt) + 1
                while q.slots(p) >= 2 or "UNIWAIT" in q.g[p] or "UNIWAIT" in q.g[p - 1]: p += 1
            ps.append(p)
        assert ps[-1] < n - 4 and cfg.ipre % 2 == 0 and cnt % 2 == 0
        for k, p in enumerate(ps): q.place(upiece(cfg, k), [p])
        for bi, p in enumerate([i for i in range(n) if "UNIWAIT" in q.g[i]]):
            before = sum(1 for x in ps if x < p)
            m = 2 + bi + 8
            nw = cfg.ipre + 2 * cnt + before - 8 * (m + 1)
            assert cfg.ipre + before <= 8 * (2 + bi - 1 + 4) and nw >= 4, (bi, nw)
            q.g[p][q.g[p].index("UNIWAIT")] = f"s_waitcnt vmcnt({nw}) lgkmcnt(0)"
        IEND = cfg.ipre + 3 * cnt
    if cfg.pad:
        for i in range(0, len(q.m), cfg.pad): q.put(i, "!s_nop 3")
    if "lnobar" in cfg.exp: q.g = [[x for x in gp if x != "s_barrier"] for gp in q.g]
    if "lnodma" in cfg.exp: q.g = [[x for x in gp if kind(x.lstrip("!")) != "vm"] for gp in q.g]
    if "lnods" in cfg.exp: q.g = [[x for x in gp if kind(x.lstrip("!")) != "ds"] for gp in q.g]
    if "lnowait" in cfg.exp: q.g = [[x for x in gp if not (x.startswith("s_waitcnt") and "s_cmp_eq_u32 s34, 3" not in gp)] for gp in q.g]
    if "lnocvt" in cfg.exp: q.g = [[x for x in gp if not x.startswith("v_cvt")] for gp in q.g]
    q.put(-3, "s_sub_u32 s34, s34, 1")
    q.put(-1, "s_cmp_lg_u32 s34, 0"); q.put(-1, "s_cbranch_scc1 L_loop")
    q.emit(a)
    a.l = a.l[:body0] + [x.split(" ;@")[0] for x in a.l[body0:]]
    body = a.l[body0:]
    b = Asm(); b.stamps = a.stamps
    if cfg.uni:
        for gp in range(104, IEND): b(f"buffer_dummy ;@seg{gp//8}" + ("k" if gp >= 120 and gp % 2 == 0 else ""))
    else:
        for gp in range(104, 130 - cfg.lag): b(f"buffer_dummy ;@seg{gp//8}" + ("k" if gp % 8 < 4 else ""))
    q = Seq()
    if "nowo" in cfg.exp: b(f"s_mov_b32 s{SWO+2}, 0")
    for x in stamp_l(b, cfg, "t26"): b(x)
    sts = {j: attn_tile(cfg, q, j, "final") for j in range(26, 30)}
    if cfg.uni:
        rest = [(0, n_) for n_ in range(IEND // 2, 64)] + [(1, n_) for n_ in range(IEND // 2, 64)]
        p = sts[26][0] + 2
        for kv_, n_ in rest:
            d = 4096 * (n_ - IEND // 2)
            lst = [f"s_add_u32 s53, s33, {d}", f"s_and_b32 m0, s53, 0xffff"] + (["s_or_b32 m0, m0, 0x10000"] if kv_ else []) + \
                  [dma(VDA if kv_ else KDA, SV if kv_ else SK, "s53", 0, cfg.kvflags) + f" ;@seg{n_>>2}" + ("k" if not kv_ and n_ >= 60 else "")]
            pp_ = max(p, sts[26][0] + 3)
            while q.slots(pp_) >= 2 and not cfg.ucl: pp_ += 1
            q.place(lst, [pp_]); p = max(p + cfg.urest, pp_ + (5 if not cfg.ucl else (3 if not kv_ and n_ < 63 else 4))); KVEND = pp_
    def wpos(st, half):
        return [st[4*half] + 1, st[4*half+1] + 8 if half == 0 else st[5] + 1, st[4*half+2] + (7 if half == 0 else 1), st[4*half+3] + 1]
    if cfg.wsched == 0:
        for j, (t0, t1) in {26: (0, 1), 27: (2, 3), 28: (4, 5), 29: (10, 6)}.items():
            st = sts[j]
            q.place(wdma(cfg, t0), [st[1] + 8, st[2] + 7, st[3] + 1, st[3] + 5])
            q.place(wdma(cfg, t1), [st[5] + 8, st[6] + 1, st[6] + 5, st[7] + 5])
    elif cfg.wsched >= 3:
        pass
    elif cfg.wsched == 2:
        st = sts[26]
        if cfg.uni and cfg.ucl:
            assert KVEND < st[4] - 3
            q.place(wdma(cfg, 0), [st[4] + 1, st[5] + 1, st[5] + 8, st[7] + 1])
        elif cfg.uni:
            st = sts[27]
            assert KVEND < st[0] - 6
            q.place(wdma(cfg, 0), [st[0] + 1, st[1] + 3, st[2] + 1, st[3] + 1])
            q.place(wdma(cfg, 1), [st[4] + 1, st[5] + 3, st[6] + 1, st[7] + 1])
            st = sts[28]
            q.place(wdma(cfg, 2), [st[0] + 1, st[1] + 1, st[1] + 8, st[2] + 5])
            q.place(wdma(cfg, 5), [st[3] + 3, st[3] + 5, st[3] + 7, st[4] + 1])
            q.place(wdma(cfg, 6), [st[5] + 8, st[6] + 1, st[6] + 5, st[7] + 5])
        else: q.place(wdma(cfg, 0), [st[2] + 7, st[4] + 1, st[5] + 8, st[7] + 1])
        if cfg.wv:
            st = sts[29]
            q.place(wdma(cfg, 6), [st[0] + 5, st[1] + 8, st[2] + 7, st[3] + 5])
            q.place(wdma(cfg, 4), [st[4] + 5, st[4] + 7, st[5] + 3, st[5] + 7])
            q.place(wdma(cfg, 7), [st[6] + 5, st[6] + 7, st[7] + 3, st[7] + 5])
        for j, (t0, t1) in (({27: (1, 5), 28: (2, 6), 29: (3, 7)} if not cfg.wv else {27: (1, 5), 28: (2, 3)}) if not cfg.uni or cfg.ucl else {29: (3, 7)}).items():
            st = sts[j]
            q.place(wdma(cfg, t0), [st[0] + 5, st[1] + 8, st[2] + 7, st[3] + 5])
            q.place(wdma(cfg, t1), [st[5] + 8, st[6] + 1, st[6] + 5, st[7] + 5])
    else:
        st = sts[27]
        q.place(wdma(cfg, 0), [st[5] + 8, st[6] + 1, st[6] + 5, st[7] + 5])
        st = sts[28]
        q.place(wdma(cfg, 1), [st[0] + 5, st[0] + 7, st[1] + 1, st[1] + 3])
        q.place(wdma(cfg, 2), [st[2] + 1, st[2] + 7, st[3] + 1, st[3] + 5])
        q.place(wdma(cfg, 3), [st[5] + 8, st[6] + 1, st[6] + 5, st[7] + 5])
        st = sts[29]
        q.place(wdma(cfg, 4), [st[0] + 5, st[0] + 7, st[1] + 1, st[1] + 3])
        q.place(wdma(cfg, 5), [st[2] + 1, st[2] + 3, st[2] + 5, st[2] + 7])
        q.place(wdma(cfg, 10), [st[3] + 5, st[3] + 7, st[4] + 1, st[4] + 3])
        q.place(wdma(cfg, 6), [st[5] + 8, st[6] + 1, st[6] + 5, st[7] + 5])
    if cfg.sig == "line": q.put(sts[26][3] + 1, "global_load_dword v255, v0, s[46:47] sc1 ;@arr")
    if cfg.tlb:
        so = ["s_mul_i32 s52, s43, 240", "s_mul_i32 s53, s54, 80", "s_add_u32 s52, s52, s53", "s_mul_i32 s52, s52, 1280", "s_lshl_b32 s53, s55, 7", "s_add_u32 s52, s52, s53"]
        st = sts[27]
        for k, x in enumerate(so): q.g[st[4] + 2 + k].insert(0, x)
        sd = srd(SOUT, 58, "s52", 79 * 1280 + 128)
        q.g[st[4] + 8][0:0] = sd[:2]; q.g[st[5]][0:0] = sd[2:]
        q.put(st[5] + 1, f"buffer_load_dword v16, off, s[{SOUT}:{SOUT+3}], 0")
        q.put(st[5] + 3, f"buffer_load_dword v16, off, s[{SO}:{SO+3}], 0")
        q.put(st[5] + 5, f"buffer_load_dword v16, off, s[{SOR}:{SOR+3}], 0")
    if cfg.wsched < 3:
        st = sts[28]
        q.g[st[5] + 8].insert(0, "WAITVM w0")
        q.g[sts[29][4]].insert(0, "WAITVM w1")
        for p, r in zip([st[5] + 8, st[6] + 1, st[6] + 3, st[6] + 5, st[6] + 7, st[7] + 1, st[7] + 1, st[7] + 3], wreads(0)): q.put(p, r)
        k = q.g[st[8] - 2].index("s_waitcnt lgkmcnt(0)"); q.g[st[8] - 2][k] = "s_waitcnt lgkmcnt(8)"
        st = sts[29]
        q.put(st[1] + 7, "s_waitcnt lgkmcnt(10)")
        for p, r in zip([st[4] + 1, st[4] + 5, st[5] + 1, st[5] + 5, st[5] + 8, st[6] + 1, st[6] + 3, st[6] + 5], wreads(1)): q.put(p, r)
        k = q.g[st[7]].index("s_waitcnt lgkmcnt(0)"); q.g[st[7]][k] = "s_waitcnt lgkmcnt(4)"
    st = sts[29]
    for p, r in zip([st[7] + k for k in (1, 1, 3, 5, 7, 8, 8)] + [st[8]], [kread(1, 3, 1, kt, ks) for kt in range(2) for ks in range(4)]):
        if p < st[8]: q.put(p, r)
        else: lastk = r
    for x in stamp_l(b, cfg, "t30"): q.put(len(q.m) - 1, "!" + x)
    if cfg.w3: q.put(len(q.m) - 1, "!L_sec1:")
    job = lambda k: (k >> 1, k & 1, k & 3)
    F = []
    for k in range(8):
        u, tb, sl = job(k)
        F.append(q.add(qk(u, tb, sl=sl)))
        if k < 2: F.append(q.add(pv(2 + k, 1)))
        else:
            u, tb, sl = job(k - 2); F.append(q.add(pv(u, tb, sl=sl)))
    for k in (6, 7):
        u, tb, sl = job(k); F.append(q.add(pv(u, tb, sl=sl)))
    F.append(len(q.m))
    sm_half(q, F[0], 3, 1)
    for k in range(8):
        sm_half(q, F[2 * k + 1], k & 3, 0); sm_half(q, F[2 * k + 2], k & 3, 1)
    q.put(F[0] + 1, lastk)
    v30 = [vread(0, 3, 0, dt, e) for dt in range(8) for e in range(2)]
    v31 = [vread(1, 3, 1, dt, e) for dt in range(8) for e in range(2)]
    if not cfg.split15:
        for p, r in zip([F[0] + k for k in (1, 3, 5, 5, 7)] + [F[1] + k for k in (1, 1, 3, 5, 5, 7)] + [F[2] + k for k in (1, 1, 3, 5, 5)], v30): q.put(p, r)
        q.put(F[1] + 8, "s_waitcnt lgkmcnt(10)")
        for p, r in zip([F[4] + k for k in (1, 1, 3, 5, 5, 7)] + [F[5] + k for k in (1, 1, 3, 5, 5, 7, 8, 8)] + [F[6] + k for k in (1, 1)], v31): q.put(p, r)
        q.put(F[4], "s_waitcnt lgkmcnt(0)")
        q.place(wdma(cfg, 11), [F[2] + 7, F[3] + 1, F[3] + 3, F[3] + 5])
        q.place(wdma(cfg, 7), [F[5] + 3, F[5] + 7, F[6] + 3, F[6] + 5])
    else:
        q.put(F[1] + 8, "WAITVM seg15 lgkmcnt(0)"); q.put(F[1] + 8, "s_barrier")
        for p, r in zip([F[2] + k for k in (1, 1, 3, 5, 5, 7)] + [F[3] + k for k in (1, 1, 3, 5, 5, 7, 8, 8)] + [F[4] + k for k in (1, 1)], v30): q.put(p, r)
        for p, r in zip([F[4] + k for k in (3, 5, 5, 7)] + [F[5] + k for k in (1, 1, 3, 5, 5, 7, 8, 8)] + [F[6] + k for k in (1, 1, 3, 3)], v31): q.put(p, r)
        q.put(F[5] - 1, "s_waitcnt lgkmcnt(3)")
        if cfg.wsched >= 3:
            pass
        elif cfg.wv:
            q.place(wdma(cfg, 10), [F[0] + 5, F[0] + 7, F[1] + 3, F[1] + 7] if cfg.wv == 1 else [F[2] + 4, F[2] + 6, F[3], F[3] + 2])
            q.place(wdma(cfg, 11), [F[4], F[4] + 2, F[4] + 4, F[4] + 6])
        elif cfg.wsched == 2:
            q.place(wdma(cfg, 4), [F[0] + 5, F[0] + 7, F[1] + 3, F[1] + 7])
            q.place(wdma(cfg, 10), [F[2] + 4, F[2] + 6, F[3], F[3] + 2])
            q.place(wdma(cfg, 11), [F[4], F[4] + 2, F[4] + 4, F[4] + 6])
        else:
            q.place(wdma(cfg, 11), [F[0] + 5, F[0] + 7, F[1] + 1, F[1] + 3])
            q.place(wdma(cfg, 7), [F[2], F[2] + 4, F[3] + 2, F[3] + 6])
    q.put(F[7] - 1, "s_waitcnt lgkmcnt(0)"); q.put(F[7] - 1, "s_barrier")
    issued = set(range(12))
    if cfg.wsched < 3:
        q.place(wdma(cfg, 8), [F[7] + 5, F[7] + 7, F[7] + 8, F[8] + 1])
        q.place(wdma(cfg, 9), [F[8] + 7, F[9] + 1, F[9] + 3, F[9] + 5])
    else:
        issued = set()
        free = {0: 0, 4: 0, 8: 0, 9: 0, 1: sts[27][4], 5: sts[27][4], 2: sts[29][4], 6: sts[29][4], 3: F[7], 7: F[7]}
        p = sts[26][4] + 1 + cfg.wdelay
        for t in range(cfg.wn):
            sp = cfg.wp if t < 5 else cfg.wp2
            p = max(p, free[UNIT[t]] + 6)
            ps = []
            for k in range(4):
                pp_ = p
                while t < 5 and q.slots(pp_) >= 2: pp_ += 1
                ps.append(pp_); p = max(p + sp, pp_ + (1 if k < 3 else 6))
            assert ps[-1] < F[18], (t, ps)
            q.place(wdma(cfg, t), ps); issued.add(t)
    if "nost" in cfg.exp: q.g[F[4]].insert(0, f"s_mov_b32 s{SO+2}, 0")
    def onorm(u, store=True):
        o = [f"v_accvgpr_read_b32 v16, a{L_(u)}"]
        if u in cfg.addu:
            t = LA[u]
            o += [f"v_mov_b32 v17, v{t}", f"v_permlane32_swap_b32 v{t}, v17", f"v_add_f32 v{t}, v{t}, v17",
                  f"v_mov_b32 v17, v{t}", f"v_permlane16_swap_b32 v{t}, v17", f"v_add_f32 v{t}, v{t}, v17", f"v_add_f32 v16, v16, v{t}"]
        o += ["v_cmp_ngt_f32 vcc, s36, v16", "v_rcp_f32 v16, v16", "s_or_b64 s[50:51], s[50:51], vcc", "v_mov_b32 v17, v16"]
        for m in range(4):
            t = O_(u, 0) + 4 * m
            o += scale_pack(cfg, O_(u, 2 * m), t, ("v16", "v[16:17]"), cfg.opk == 1 or (cfg.opk == 2 and u == 3))
            if store: o += ostore(u)[m:m + 1]
        if store: o += ostore(u)[4:]
        return o
    def ostore(u):
        return [f"buffer_store_dwordx4 {vr(O_(u,0)+4*m,4)}, v15, s[{SO}:{SO+3}], s30 offen offset:{1024*m} {cfg.oflags}".rstrip() + " ;@ost" for m in range(4)] + ["s_add_u32 s30, s30, 131072"]
    for k, x in enumerate([f"s_mov_b32 s36, {f32(cfg.lthr)}", "s_mov_b64 s[50:51], 0", "s_lshl_b32 s30, s3, 19", "s_lshl_b32 s31, s29, 12", "s_add_u32 s30, s30, s31"]):
        q.g[F[4] + 2 + k].insert(0, x)
    for k in (2, 4, 6, 8, 10, 12, 14, 16):
        for x in stamp_l(b, cfg, f"F{k}"): q.put(F[k] - 1, "!" + x)
    if cfg.epark:
        def epark(t, p0, refill_at):
            q.g[p0].insert(0, f"WAITVM w{t}")
            for k, r in enumerate(wreads(t)): q.put(p0 + 2 * (k // 2), r)
            if refill_at:
                q.place(wdma(cfg, t + 10), refill_at)
                q.g[refill_at[0]].insert(0, f"WAITLG p{t}")
        epark(2, F[7] + 1, [F[10] + 3, F[10] + 5, F[10] + 7, F[11] + 1])
        epark(3, F[9] + 1, [F[11] + 7, F[11] + 8, F[12] + 1, F[12] + 3])
        epark(5, F[11] + 2, [F[13] + 1, F[13] + 3, F[13] + 5, F[13] + 7])
        epark(6, F[13] + 2, [F[14] + 5, F[14] + 7, F[15] + 1, F[15] + 3])
        epark(7, F[14] + 1, [F[16] + 1, F[16] + 3, F[16] + 5, F[16] + 7])
        epark(4, F[15] + 2, [F[17] + 5, F[17] + 6, F[17] + 7, F[17] + 8])
        epark(8, F[16] + 2, None)
        epark(9, F[17] + 1, None)
    if cfg.fsig:
        for t, p0 in ((2, F[13] + 2), (3, F[14] + 1), (4, F[15] + 2), (5, F[16] + 1)):
            q.g[p0].insert(0, f"WAITVM w{t}")
            for k, r in enumerate(wreads(t)): q.put(p0 + 2 * (k // 2), r)
    if cfg.early == 1:
        e = q.stream(onorm(0), F[8] + 4, cap=cfg.ncap)
        e = q.stream(onorm(1), max(e, F[12] + 4), cap=cfg.ncap)
        e = q.stream(onorm(2), max(e, F[16] + 4), cap=cfg.ncap + 2)
    if cfg.early >= 2:
        e = q.stream(onorm(0, False), F[8] + 4, cap=cfg.ncap)
        e = q.stream(onorm(1, False), max(e, F[12] + 4), cap=cfg.ncap)
        e = q.stream(onorm(2, False), max(e, F[16] + 4), cap=cfg.ncap + 2)
        if cfg.early == 3:
            for k, x in enumerate(ostore(0) + ostore(1)): q.put(min(F[16] + 8 + k, F[18] - 1), x if kind(x) == "vm" else "!" + x)
    q.emit(b)
    if cfg.early == 2: b.ext(ostore(0) + ostore(1) + ostore(2))
    if cfg.early == 3: b.ext(ostore(2))
    if not cfg.early: b.ext(onorm(0) + onorm(1) + onorm(2))
    stamp(b, cfg, "loopend")
    if "nowo" in cfg.exp: b(f"s_mov_b32 s{SWO+2}, {WOSZ}")
    def park(t): return [f"WAITVM w{t}"] + wreads(t)
    def refill(t): return with_nop(wdma(cfg, t + 10))
    DU = UNIT[9 if cfg.epark else 2]
    if cfg.fsig:
        on3 = onorm(3)
        k3 = on3.index("s_or_b64 s[50:51], s[50:51], vcc") + 1
        b.ext(on3[:k3])
        if cfg.force_fb: b("s_mov_b64 s[50:51], -1")
        b("s_cmp_lg_u64 s[50:51], 0")
        b("s_cselect_b32 s52, 1, 0")
        b(f"s_add_u32 s53, s40, {16384*DU}")
        b("v_mov_b32 v20, s52")
        b("v_mov_b32 v21, s53")
        b("WAITLG p2")
        b("ds_write_b32 v21, v20")
        b.ext(on3[k3:])
        stamp(b, cfg, "stored")
        b("v_and_b32 v18, 3, v1")
        b("v_lshlrev_b32 v18, 12, v18")
        b(f"v_add_u32 v18, {16384*DU}, v18")
        b("s_waitcnt lgkmcnt(0)")
        b("s_barrier")
        b("ds_read_b32 v20, v18")
        b.ext(refill(3) + refill(4))
        b("s_waitcnt lgkmcnt(0)")
        b("v_cmp_ne_u32 vcc, 0, v20")
        b("s_cmp_eq_u32 s35, 0")
        b("s_cselect_b64 s[52:53], vcc, 0")
        b("s_cmp_lg_u64 s[52:53], 0")
        b("s_cbranch_scc1 L_exact")
        if cfg.fsig == 2: b.ext(park(6) + park(7))
    else:
        if cfg.wsched >= 3:
            DU = UNIT[0] if cfg.wn else UNIT[9]
            late = [t for t in range(10) if t not in issued]
            for t in late[:3]:
                if UNIT[t] != DU: b.ext(with_nop(wdma(cfg, t))); issued.add(t)
            if cfg.wn: b.ext(park(0))
        elif cfg.epark: b.ext(park(10) + park(11))
        else: b.ext(park(2) + park(3))
        b.ext(onorm(3))
        stamp(b, cfg, "stored")
        if cfg.force_fb: b("s_mov_b64 s[50:51], -1")
        b("s_cmp_lg_u64 s[50:51], 0")
        b("s_cselect_b32 s52, 1, 0")
        b(f"s_add_u32 s53, s40, {16384*DU}")
        b("v_mov_b32 v16, s52")
        b("v_mov_b32 v17, s53")
        b("v_and_b32 v18, 3, v1")
        b("v_lshlrev_b32 v18, 12, v18")
        b(f"v_add_u32 v18, {16384*DU}, v18")
        b("s_waitcnt lgkmcnt(0)")
        b("ds_write_b32 v17, v16")
        if cfg.wsched >= 3: pass
        elif cfg.epark: b.ext(refill(8) + park(12) + park(13))
        else: b.ext(refill(3) + park(4) + park(5))
        b("s_waitcnt lgkmcnt(0)")
        b("s_barrier")
        b("ds_read_b32 v20, v18")
        parked = [0] if cfg.wsched >= 3 and cfg.wn else []
        if cfg.wsched >= 3:
            for t in range(1, min(cfg.wn, 6)): b.ext(park(t)); parked.append(t)
        elif cfg.epark: b.ext(refill(10))
        else: b.ext(refill(4) + park(6) + park(7))
        b("s_waitcnt lgkmcnt(0)")
        b("v_cmp_ne_u32 vcc, 0, v20")
        b("s_cmp_eq_u32 s35, 0")
        b("s_cselect_b64 s[52:53], vcc, 0")
        b("s_cmp_lg_u64 s[52:53], 0")
        b("s_cbranch_scc1 L_redo" if cfg.epark else "s_cbranch_scc1 L_exact")
        if not cfg.sigfirst: b.ext(park(8) + park(9) + park(10) + park(11))
    if cfg.sig == "line":
        b("s_lshl_b32 s52, s28, 5")
        b("s_add_u32 s52, s52, s29")
        b("s_lshl_b32 s52, s52, 7")
        b(f"s_add_u32 s52, s52, {FOFF}")
    else:
        b("s_lshl_b32 s52, s28, 2")
        b("s_lshr_b32 s53, s29, 3")
        b("s_add_u32 s52, s52, s53")
        b("s_lshl_b32 s52, s52, 3")
    b("v_mov_b32 v16, s52")
    b("v_mov_b32 v17, 1")
    if cfg.wsched >= 3:
        for t in parked[1:3]: b.ext(refill(t)); issued.add(t + 10)
    elif cfg.epark: b.ext(refill(11))
    elif cfg.pre5: b.ext(refill(5))
    b("WAITVM ost")
    b("s_barrier")
    b("s_cmp_lg_u32 s3, 0")
    b("s_cbranch_scc1 L_nosig")
    b("s_mov_b64 exec, 1")
    if cfg.sig == "line": b("global_store_dword v16, v17, s[48:49] sc1 ;@skip")
    else: b("global_atomic_add v16, v17, s[46:47] sc1 ;@skip")
    b("s_mov_b64 exec, -1")
    b("L_nosig:")
    stamp(b, cfg, "signaled")
    b("s_lshr_b32 s52, s2, 3")
    b("s_cmp_ge_u32 s52, 30")
    b("s_cbranch_scc1 L_fin")
    if cfg.wsched >= 3:
        for t in range(10):
            if t not in issued: b.ext(with_nop(wdma(cfg, t))); issued.add(t)
        for t in parked:
            if t + 10 not in issued: b.ext(refill(t)); issued.add(t + 10)
        prev = None
        for t in range(12):
            if t in parked: continue
            b.ext(park(t))
            if prev is not None: b(f"WAITLG p{prev}"); b.ext(refill(prev))
            prev = t
        b("s_waitcnt lgkmcnt(0)")
        b.ext(refill(prev))
    elif cfg.epark:
        b.ext(refill(9) + refill(12))
    elif cfg.fsig:
        b.ext(refill(2) + ([] if cfg.fsig == 2 else park(6) + park(7)) + park(8) + park(9))
        b("WAITLG p7")
        b.ext(refill(6) + park(10) + park(11) + refill(7))
        b("s_waitcnt lgkmcnt(0)")
        for t in range(8, 12): b.ext(refill(t))
    elif cfg.sigfirst:
        b.ext(refill(2) + ([] if cfg.pre5 else refill(5)) + park(8) + park(9) + refill(6) + park(10) + park(11) + refill(7))
        b("s_waitcnt lgkmcnt(0)")
        for t in range(8, 12): b.ext(refill(t))
    else:
        b("s_waitcnt lgkmcnt(0)")
        b.ext(refill(2))
        for t in range(5, 12): b.ext(refill(t))
    b("s_lshl_b32 s52, s43, 2")
    b("s_add_u32 s52, s52, s3")
    if cfg.sig == "line":
        b("s_lshl_b32 s52, s52, 10")
        b(f"s_add_u32 s52, s52, {FOFF}")
        b("v_and_b32 v16, 7, v1")
        b("v_lshlrev_b32 v16, 7, v16")
        b("v_add_u32 v16, s52, v16")
        pbase = "s[48:49]"
    else:
        b("s_lshl_b32 s52, s52, 3")
        b("v_mov_b32 v16, s52")
        pbase = "s[46:47]"
    prev = 13 if cfg.epark else None
    for t in range(14 if cfg.epark else 12, cfg.R):
        if cfg.epoll and t == max(cfg.epoll, 14 if cfg.epark else 0): b(f"global_load_dword v17, v16, {pbase} sc1 ;@ep")
        b.ext(park(t))
        if prev is not None and prev + 10 < cfg.X:
            b("s_waitcnt lgkmcnt(8)")
            b.ext(refill(prev))
        prev = t
    b("s_waitcnt lgkmcnt(0)")
    if prev + 10 < cfg.X: b.ext(refill(prev))
    stamp(b, cfg, "parked")
    b("s_mov_b32 s34, 0x100000")
    want = 1 if cfg.sig == "line" else 8
    cmpi = "v_cmp_ne_u32 vcc, 1, v17" if cfg.sig == "line" else "v_cmp_gt_u32 vcc, 8, v17"
    if cfg.sig == "line":
        b("WAITVM arr")
        b("v_cmp_gt_u32 vcc, 8, v255")
        b("s_cbranch_vccz L_cleared")
        b("L_wclr:")
        b("global_load_dword v255, v0, s[46:47] sc1 ;@skip")
        b("s_waitcnt vmcnt(0)")
        b("v_cmp_gt_u32 vcc, 8, v255")
        b("s_sub_u32 s34, s34, 1")
        b("s_cselect_b64 vcc, 0, vcc")
        b("s_cbranch_vccnz L_wclr")
        b("s_branch L_poll")
        b("L_cleared:")
    if cfg.epoll:
        b("WAITVM ep")
        b(cmpi)
        b("s_cbranch_vccz L_ready")
    b("L_poll:")
    b(f"global_load_dword v17, v16, {pbase} sc1")
    b("s_waitcnt vmcnt(0)")
    b(cmpi)
    b("s_sub_u32 s34, s34, 1")
    b("s_cselect_b64 vcc, 0, vcc")
    b("s_cbranch_vccnz L_poll")
    b("L_ready:")
    stamp(b, cfg, "polled")
    worder = [x.split(";@")[1] for x in b.l if ";@w" in x and kind(x) == "vm"]
    check_setup(b.l, "tail")
    a.l += fix(resolve_waits(b.l))
    c = Asm(); c.stamps = a.stamps
    for t_ in worder: c(f"buffer_dummy ;@{t_}")
    ACC = lambda i, nt: 32 + 16 * i + 4 * nt
    OFB = [112, 132, 152, 172, 192]
    OF = lambda t, i: OFB[t % cfg.DO] + 4 * i
    def oload(t):
        return [x + f" ;@o{t}" for x in [f"s_add_u32 s30, s41, {t}", "s_lshl_b32 s30, s30, 10", "s_and_b32 s30, s30, 0x7fff"]] + \
            tag([f"buffer_load_dwordx4 {vr(OF(t,i),4)}, v{OAL[i]}, s[{SOR}:{SOR+3}], s30 offen {cfg.orflags}".rstrip() for i in range(5)], f"o{t}")
    for t in range(cfg.DO - 1): c.ext(oload(t))
    if not cfg.tlb:
        c("s_mul_i32 s52, s43, 240")
        c("s_mul_i32 s53, s54, 80")
        c("s_add_u32 s52, s52, s53")
        c("s_mul_i32 s52, s52, 1280")
        c("s_lshl_b32 s53, s55, 7")
        c("s_add_u32 s52, s52, s53")
        c.ext(srd(SOUT, 58, "s52", 79 * 1280 + 128))
    for j in range(1, 4):
        c(f"s_add_u32 s52, s3, {j}")
        c("s_and_b32 s52, s52, 3")
        c("s_mul_i32 s52, s52, 15360")
        c(f"v_add_u32 v{240+j}, s52, v15")
    c("s_mul_i32 s52, s3, 15360")
    c("v_add_u32 v240, s52, v15")
    c("v_mul_u32_u24 v244, 1280, v2")
    c("v_lshl_add_u32 v244, v3, 3, v244")
    nextw = cfg.X
    q = Seq()
    NL = cfg.NL
    for t in range(32 - NL):
        mf = []
        for i in range(5):
            for nt in range(4):
                d = vr(ACC(i, nt), 4)
                mf.append(f"{MF} {d}, {WS(t,nt)}, {vr(OF(t,i),4)}, {'0' if t == 0 else d}")
        q.raw([f"WAITVM o{t} lgkmcnt(0)"] + (stamp_l(c, cfg, f"p{t}") if t in (1, 4, 8, 16, 24) else []))
        g = q.add(mf)
        if t + cfg.DO - 1 < 32: q.place(oload(t + cfg.DO - 1), [g + 4, g + 6, g + 9, g + 12, g + 15])
        tr = t + cfg.R - 1
        if t >= 1 and tr < 32:
            q.g[g].insert(0, f"WAITVM w{tr}")
            for k, r in enumerate(wreads(tr)): q.put(g + 1 + k, r)
        if nextw < 32 and nextw - 10 <= t + cfg.R - 2 and (nextw - cfg.X) * cfg.wev <= t:
            q.place(wdma(cfg, nextw), [g + 10, g + 13, g + 16, g + 18])
            nextw += 1
        if t == 20: q.put(g + 19, "s_barrier")
    assert nextw == 32
    q.raw([f"WAITVM o{32-NL} lgkmcnt(0)"])
    wr = lambda i, j: f"ds_write_b128 v{240+j}, {vr(ACC(i,j),4)} offset:{5120*(j-1)+1024*i}"
    for i in range(5):
        mf = []
        for j in (1, 2, 3, 0):
            d = vr(ACC(i, j), 4)
            for t in range(32 - NL, 32):
                mf.append(f"{MF} {d}, {WS(t,j)}, {vr(OF(t,i),4)}, {d}")
        g = q.add(mf)
        if i == 0:
            for k in range(1, NL): q.g[g + k - 1].append(f"!WAITVM o{32-NL+k}")
        else:
            for j in range(1, 4): q.put(g + 2 + NL * (j - 1), wr(i - 1, j))
    RB = lambda i: 112 + 12 * i if i < 3 else 192 + 12 * (i - 3)
    rd = lambda i: [f"ds_read_b128 {vr(RB(i)+4*j,4)}, v240 offset:{5120*j+1024*i} ;@r{i}" for j in range(3)]
    def fin(i):
        bb = RB(i); ac = ACC(i, 0); o = [f"WAITLG r{i}"]
        for r in range(0, 4, 2):
            o += [f"v_pk_add_f32 {vr(ac+r,2)}, {vr(ac+r,2)}, {vr(bb+r,2)}", f"v_pk_add_f32 {vr(bb+4+r,2)}, {vr(bb+4+r,2)}, {vr(bb+8+r,2)}"]
        for r in range(0, 4, 2):
            o += [f"v_pk_add_f32 {vr(ac+r,2)}, {vr(ac+r,2)}, {vr(bb+4+r,2)}"]
        o += [f"v_cvt_pk_bf16_f32 v{ac}, v{ac}, v{ac+1}", f"v_cvt_pk_bf16_f32 v{ac+1}, v{ac+2}, v{ac+3}",
              f"buffer_store_dwordx2 {vr(ac,2)}, v244, s[{SOUT}:{SOUT+3}], s52 offen {cfg.outflags}".rstrip(), "s_add_u32 s52, s52, %d" % (16 * 1280)]
        return o
    if cfg.fin2:
        assert cfg.DO == 4 and NL == 2
        q.g[g + 1].insert(0, "s_barrier"); q.g[g + 1].insert(0, "s_waitcnt lgkmcnt(0)")
        for k, r in enumerate(rd(0) + rd(1) + rd(2)): q.put(g + 1 + min(k // 2 + (k > 3), 6), r)
        q.raw(stamp_l(c, cfg, "projdone") + ["s_lshl_b32 s52, s3, 5", wr(4, 1), wr(4, 2)])
        q.emit(c)
        c.ext(fin(0)[:5]); c(wr(4, 3)); c.ext(fin(0)[5:] + fin(1))
        c("s_waitcnt lgkmcnt(0)")
        c("s_barrier")
        c.ext(rd(3) + rd(4) + fin(2) + fin(3) + fin(4))
    else:
        q.raw(stamp_l(c, cfg, "projdone") + ["s_nop 1", wr(4, 1), wr(4, 2), "s_nop 1", wr(4, 3)])
        q.emit(c)
        c("s_waitcnt lgkmcnt(0)")
        c("s_barrier")
        for i in range(5): c.ext(rd(i))
        c("s_lshl_b32 s52, s3, 5")
        for i in range(5): c.ext(fin(i))
    check_setup(c.l, "proj")
    a.l += fix(resolve_waits(c.l))
    a("L_fin:")
    if cfg.stamps or cfg.calib:
        a("s_waitcnt vmcnt(0)")
        stamp(a, cfg, "end")
    if cfg.calib:
        a("s_waitcnt lgkmcnt(0)")
        a("s_or_b32 s52, s2, s3")
        a("s_cmp_lg_u32 s52, 0")
        a("s_cbranch_scc1 L_end")
        a(f"s_sub_u32 s52, s{62+4*cfg.cal_j}, s{62+4*cfg.cal_i}")
        a("s_lshl_b32 s52, s52, 2")
        a("s_add_u32 s52, s52, s62")
        a("L_spin:")
        a("s_memrealtime s[56:57]")
        a("s_waitcnt lgkmcnt(0)")
        a("s_sub_u32 s56, s56, s52")
        a(f"s_cmp_lt_i32 s56, {cfg.calib*100}")
        a("s_cbranch_scc1 L_spin")
    if cfg.stamps:
        stamps_out(a, cfg, 64 << 20)
    a("L_end:")
    a("s_endpgm")
    if cfg.w3:
        i0, i1 = a.l.index("L_sec0:"), a.l.index("L_sec1:")
        dead_v = set(("v", r) for r in list(range(128, 160)) + list(range(184, 192)) + list(range(204, 208)) + list(range(220, 224)))
        dead_a = set(("a", r) for r in range(48, 64))
        sec = []; skip = False
        for x in a.l[i0 + 1:i1]:
            if x == "s_and_b32 s52, s2, 31": skip = True
            if skip:
                if x == "L_noarr:": skip = False
                continue
            if x.endswith(":") or x.startswith(".") or x.startswith(";"):
                if x == "L_loop:":
                    z = [f"v_mov_b32 v{r}, 0" for _, r in sorted(dead_v)] + [f"v_accvgpr_write_b32 a{r}, 0" for r in list(range(48, 64)) + list(range(204, 208))]
                    k = sec.index(".p2align 6"); sec[k:k] = z
                    w3body0 = len(sec) + 1
                    x = "L_loop3:"
                sec.append(x); continue
            if x.startswith("s_nop"): continue
            ins = parse(x)
            if ins["k"] == "mfma" and (ins["D"] & dead_v or ins["Dtok"] == "a[204:207]"): continue
            if ins["k"] == "valu" and (ins["wr"] & (dead_v | dead_a) or ins["rd"] & set(("v", r) for r in range(128, 160))): continue
            if x == "s_cbranch_scc1 L_loop": x = "s_cbranch_scc1 L_loop3"
            sec.append(x)
        sec = fix(sec)
        l0 = sec.index("L_loop3:"); l1 = sec.index("s_cbranch_scc1 L_loop3")
        assert check(sec[l0:l1 + 1] * 2, "w3-loop") == 0 and check(sec + a.l[i1:i1 + 40], "w3-exit") == 0 and check(a.l[i0 - 30:i0] + sec, "w3-entry") == 0
        a("L_w3:")
        a.ext(sec)
        a("s_branch L_sec1")
    if cfg.epark:
        a("L_redo:")
        a("s_mov_b32 s35, 1")
        a("s_lshl_b32 s52, s3, 6")
        a("v_or_b32 v0, s52, v1")
        a("s_waitcnt vmcnt(0) lgkmcnt(0)")
        a("s_barrier")
        a("s_branch L_restart")
    a("L_exact:")
    ex0 = len(a.l)
    a("s_mov_b32 s35, 1")
    a(f"s_mov_b32 s{SK+2}, {KVBYTES}")
    a(f"s_mov_b32 s{SV+2}, {KVBYTES}")
    a("s_mov_b32 s33, s40" if not cfg.uni else "s_lshl_b32 s33, s3, 10")
    a("s_waitcnt vmcnt(0) lgkmcnt(0)")
    a("L_exact_loop:")
    a("s_barrier")
    if cfg.uni:
        for n_ in range(4): a.ext(["s_and_b32 m0, s33, 0x3fff", "s_nop 0", dma(KDA, SK, "s33", 0, cfg.kvflags), "s_add_u32 s33, s33, 4096"])
    else:
        a.ext(with_nop(kdma(cfg, 0)))
        a(ADV)
    a("s_waitcnt vmcnt(0)")
    a("s_barrier")
    for th in range(2):
        for kt in range(2):
            for ks in range(4): a(kread(0, 0, th, kt, ks))
        a("s_waitcnt lgkmcnt(0)")
        for u in range(4): a.ext(qk(u, 0, True))
        a("s_nop 7")
        for u in range(4):
            s0 = S_(u, 0)
            for r in range(0, 8, 2):
                a(f"v_max3_f32 v{MTR+u}, v{MTR+u}, v{s0+r}, v{s0+r+1}")
    a(f"s_cmp_lt_u32 s33, {KVBYTES}")
    a("s_cbranch_scc1 L_exact_loop")
    a("s_barrier")
    a("s_mov_b32 s33, s40" if not cfg.uni else "s_lshl_b32 s33, s3, 10")
    a.ext([x.split(" ;@")[0] for x in with_nop(sum([piece(cfg, gp, False) if not cfg.uni else upiece(cfg, gp) for gp in range(NP)], []))])
    a("s_waitcnt vmcnt(0)")
    a("s_barrier")
    a.ext(k0r + v0r)
    a("s_waitcnt lgkmcnt(0)")
    a.ext(k1r)
    for u in range(4): a.ext(qk(u, 0, True))
    a.ext(ones)
    a("s_nop 7")
    a.ext(fix(merge(*[fmax(u) for u in range(4)]) + merge(*[fexp(u, 8 if u < 3 else 4) for u in range(4)])))
    a("s_nop 1")
    a.ext(pv(0, 0, True) + pv(1, 0, True))
    a("s_waitcnt lgkmcnt(0)")
    q = Seq(); st1 = attn_tile(cfg, q, 1, "first")
    if cfg.uni:
        q.place(upiece(cfg, NP), [st1[4] + 1]); q.place(upiece(cfg, NP + 1), [st1[6] + 1])
    x1 = Asm()
    for t_ in ["seg1"]: x1("buffer_dummy ;@seg1")
    q.emit(x1)
    a.l += resolve_waits(x1.l)
    a("s_mov_b32 s34, 3")
    a("s_branch L_loop")
    bad = check(a.l[:ex0], "main") + check(body + body, "attn-loop") + check(a.l[ex0:] + body, "exact")
    assert bad == 0
    return a

HEADER = """; Kernarg layout for this problem (64 bytes, ptrs only, base s[0:1]):
;   offset  56: d_ws      [0, 15.7 MB) attention output O as MFMA fragments, [24 MB, +32 KB) hand-off words
;
;     p = exp2(.), o^T += V^T p^T, row sums by an MFMA with a ones operand.  m is the row maximum of the first key tile; if any
;     wave w contracts over heads 8w..8w+7 once their words are set, partial sums meet in LDS.
; @launch grid=(256,1,1) block=(256,1,1) lds=163840"""

def build(cfg):
    k = NAME + "_kernel"
    out = []
    out.append(HEADER)
    out.append('.amdgcn_target "amdgcn-amd-amdhsa--gfx950"')
    out.append(".text")
    out.append(f".globl {k}\n.p2align 8\n.type {k},@function\n{k}:")
    out.append(gen(cfg).text())
    out.append('.section .rodata,"a"')
    out.append(f""".p2align 6
.amdhsa_kernel {k}
  .amdhsa_next_free_vgpr 512
  .amdhsa_next_free_sgpr 102
  .amdhsa_accum_offset 256
  .amdhsa_group_segment_fixed_size 0
  .amdhsa_kernarg_size 64
  .amdhsa_user_sgpr_count 2
  .amdhsa_user_sgpr_kernarg_segment_ptr 1
  .amdhsa_system_sgpr_workgroup_id_x 1
.end_amdhsa_kernel
""")
    return "\n".join(out)

if __name__ == "__main__":
    cfg = Cfg()
    path = sys.argv[1]
    for kv in sys.argv[2:]:
        k, v = kv.split("=", 1)
        old = getattr(cfg, k)
        setattr(cfg, k, type(old)(eval(v)) if isinstance(old, (bool, int, float, tuple)) else v)
    txt = build(cfg)
    open(path, "w").write(txt)
```

```python
import sys, math, struct
from asmlib import *

NAME = "standalone__mha_block_cached__near_ridge"
def f32(x): return struct.unpack("<I", struct.pack("<f", x))[0]
MF = "v_mfma_f32_16x16x32_bf16"

class Cfg:
    kvflags = "nt"
    oflags = "sc1"
    orflags = "sc1"
    xflags = ""
    bflags = ""
    stamps = False
    only = ""
    qspread = 4
    kvpace = 12.0
    lthr = 2.0 ** 40
    force_fb = False
    rot = 5
    rA = 0
    DO = 4
    NL = 2
    joint = 1
    opk = 2
    c1sp = 30
    qs = 1
    c2p = 8
    c2sp = 50
    qd0 = 99
    qdn = 4
    kvdelay = 0
    trunc = False
    lds_fin = -1
    kvp2 = 0.0
    kvsw = 31
    lds_last = 5
    pad = 0
    prio = 0
    ucl = 0
    uph = 0.3
    fin2 = 1
    mapx = 0
    map3b = 0
    lazy = (40, 104, 160, 212, 264, 316, 368, 404, 452)
    c0same = 0
    roff = 5
    fsig = 2
    bm = 0
    bmi = 0
    wv = 2
    jcap = 2
    uni = 0
    ipre = 32
    upi = 30
    urest = 9
    w3 = 1
    wn = 10
    wp = 17
    wp2 = 4
    wdelay = 0
    R = 19
    epark = 0
    addu = ()
    tlb = 0
    fast0 = 1
    c1first = 0
    pre5 = 1
    early = 1
    cwarm = 1
    wl2 = 0
    wl2f = ""
    lag = 4
    split0 = 0
    wsched = 2
    b1 = 24
    bsp = 48
    split15 = 1
    sigfirst = 1
    outflags = ""
    wpull = 0
    epoll = 15
    touch = ()
    tpos = 52
    tl = 16
    tflags = ""
    tkv = "v"
    dmode = "even"
    xs = (0, 0, 0, 0, 0)
    k0at = 5
    X = 29
    wev = 1.0
    ncap = 3
    sig = "line"
    pkmul = False
    qord = 0
    exp = ""
    calib = 0
    cal_i = 0
    cal_j = 0

O_ = lambda u, dt: 32 + 32 * u + 4 * dt
S_ = lambda u, kt: 160 + 8 * u + 4 * kt
P_ = lambda u: 192 + 4 * u
NM = lambda u: 208 + 4 * u
KRA, VRA, KDA, VDA, MTR = 224, 228, 236, 240, 242
WD = 246
XDA, WDA, XRA, WRA = 192, 200, 204, 210
Q_ = lambda u, m: 16 * u + 4 * m
KF = lambda b, kt, ks: 64 + 32 * b + 16 * kt + 4 * ks
VF = lambda b, dt: 128 + 32 * b + 4 * dt
L_ = lambda u: 192 + 4 * u
ONES = 208
WF = lambda b, s, dt: ar([160, 0, 96][b] + 32 * s + 4 * dt, 4)
WF2 = lambda b, s, dt, e: ar([160, 0, 96][b] + 32 * s + 4 * dt + 2 * e, 2)
XF = lambda b, s, u: vr([224, 64, 160][b] + 16 * s + 4 * u, 4, "aav"[b])
SX, SW, SK, SV, SO = 8, 12, 16, 20, 24
SWO, SOR, SOUT = 8, 12, 4
KVBYTES = 262144
XBASE = [(131072, 147456), (65536, 16384), (32768, 49152)]
WWIN = 81920
WOFF = [32768, 0, 16384]
UNIT = [0, 4, 8, 9, 1, 5, 2, 6, 3, 7]
UNIT2 = [0, 4, 9, 5, 6, 8, 1, 2, 3, 7]
UNIT3 = [0, 4, 9, 1, 2, 8, 5, 6, 3, 7]
WRL = [[28, 29, 30, 31], [250, 251, 252, 253], [7, 8, 9, 10]]
OAL = [4, 5, 13, 14, 254]
WBLK = [224, 240, 64, 80, 96, 112, 128, 144, 160, 176, 208, 192, 0, 16, 32, 48]
WBLK2 = [224, 240, 0, 16, 48, 32, 64, 80, 96, 112, 128, 144, 160, 176, 208, 192]
def WS(t, nt, e=None):
    b = WBLK[t % len(WBLK)]
    f = "a" if b >= 0 else "v"
    return vr(abs(b) + 4 * nt, 4, f) if e is None else vr(abs(b) + 4 * nt + 2 * e, 2, f)
def wreads(t):
    u_ = UNIT[t % 10]
    return [f"ds_read_b64_tr_b16 {WS(t,nt,e)}, v{WRL[u_>>2][nt]} offset:{16384*(u_&3)+2048*e} ;@p{t}" for nt in range(4) for e in range(2)]
FOFF = 24 << 20
WOSZ = 1024 * 1280 - 9 * 128
ORSZ = 4 * 131072 + 32768

class Seq:
    def __init__(self): self.m = []; self.g = []
    def add(self, mfmas):
        n = len(self.m); self.m += mfmas; self.g += [[] for _ in mfmas]; return n
    def raw(self, lines):
        self.m.append(None); self.g.append(["!" + x for x in lines]); return len(self.m) - 1
    def put(self, i, x): self.g[i].append(x)
    def slots(self, i):
        n = 0
        for x in self.g[i]:
            k = kind(x.lstrip("!"))
            if k in ("ds", "vm", "valu"): n += 2 if x.lstrip("!").startswith(TRANS) else 1
        return n
    def place(self, lst, vmpos):
        vmpos = list(vmpos); pend = []; last = None
        for x in lst:
            if kind(x) == "vm":
                p = vmpos.pop(0)
                assert not pend or last is None or p - len(pend) > last, (lst, p, last)
                for k, s in enumerate(reversed(pend)): self.g[p - 1 - k].insert(0, s)
                pend = []; self.g[p].append(x); last = p
            else: pend.append(x)
        for k, s in enumerate(pend): self.g[last + 1 + k].insert(0, s)
    def stream(self, lst, start, cap=2, end=None):
        i = start
        for x in lst:
            c = 2 if x.startswith(TRANS) else (0 if kind(x) == "s" else 1)
            while self.slots(i) + c > cap and (end is None or i < end) and i + 1 < len(self.m): i += 1
            self.g[i].append("!" + x)
        return i
    def emit(self, a): emit_gaps(a, self.m, self.g)

def stamp_l(a, cfg, name):
    if (cfg.stamps or cfg.calib) and (cfg.only == "" or name in cfg.only.split(",") or name in ("start", "end")):
        i = len(a.stamps); a.stamps.append(name)
        assert i < 10
        return [f"s_memtime s[{60+4*i}:{61+4*i}]", f"s_memrealtime s[{62+4*i}:{63+4*i}]"]
    return []
def stamp(a, cfg, name): a.ext(stamp_l(a, cfg, name))

def stamps_out(a, cfg, wsoff):
    n = len(a.stamps)
    a.l.insert(0, "; stamps " + str(wsoff >> 20) + " " + " ".join(a.stamps))
    a("s_waitcnt lgkmcnt(0)")
    a(f"s_add_u32 s48, s48, {wsoff}")
    a("s_addc_u32 s49, s49, 0")
    a("s_mov_b32 s50, 0x100000")
    a("s_mov_b32 s51, 0x20000")
    a("s_lshl_b32 s52, s2, 2")
    a("s_add_u32 s52, s52, s3")
    a("s_lshl_b32 s52, s52, 7")
    a("v_mov_b32 v6, s52")
    a("v_cmp_eq_u32 vcc, 0, v1")
    a("s_and_saveexec_b64 s[54:55], vcc")
    for i in range(n):
        a(f"v_mov_b32 v4, s{60+4*i}")
        a(f"v_mov_b32 v5, s{62+4*i}")
        a(f"buffer_store_dwordx2 v[4:5], v6, s[48:51], 0 offen offset:{8*i}")
        a("s_nop 1")
    a("s_getreg_b32 s53, hwreg(HW_REG_XCC_ID)")
    a("v_mov_b32 v4, s53")
    a("buffer_store_dword v4, v6, s[48:51], 0 offen offset:120")
    a("v_mov_b32 v4, 0x5157")
    a(f"v_mov_b32 v5, {n}")
    a("buffer_store_dwordx2 v[4:5], v6, s[48:51], 0 offen offset:112")
    a("s_mov_b64 exec, s[54:55]")

def srd(s, plo, off_s, size):
    return [f"s_add_u32 s{s}, s{plo}, {off_s}", f"s_addc_u32 s{s+1}, s{plo+1}, 0", f"s_mov_b32 s{s+2}, {size}", f"s_mov_b32 s{s+3}, 0x20000"]
def dma(vaddr, sdesc, soff, imm, flags=""):
    o = f" offset:{imm}" if imm else ""
    f = f" {flags}" if flags else ""
    return f"buffer_load_dwordx4 v{vaddr}, s[{sdesc}:{sdesc+3}], {soff} offen{o}{f} lds"
def tag(lst, t):
    return [x + f" ;@{t}" if kind(x) == "vm" and ";@" not in x else x for x in lst]
def check_setup(lines, name):
    last = {}
    for x in lines:
        if ";@" not in x:
            if kind(x) == "s" and not x.endswith(":") and len(x.split()) > 1 and x.split()[1].rstrip(",") in ("m0", "s42", "s30"): last[x.split()[1].rstrip(",")] = None
            continue
        t = x.split(";@")[1]
        if kind(x) == "s": last[x.split()[1].rstrip(",")] = t
        elif t[0] == "w" and t[1:].isdigit() and not x.startswith("buffer_dummy"):
            assert last.get("m0") == t and last.get("s42") == t, (name, x, last)
        elif t[0] == "o" and t[1:].isdigit() and not x.startswith("buffer_dummy"):
            assert last.get("s30") == t, (name, x, last)
def with_nop(lst):
    o = []
    for x in lst:
        o.append(x)
        if " m0," in x: o.append("s_nop 0")
    return o

def resolve_waits(lines):
    out = []; seq = []; lseq = []
    for x in lines:
        if x.startswith("WAITLG"):
            t = x.split()[1]
            idx = max(i for i, v in enumerate(lseq) if v == t)
            out.append(f"s_waitcnt lgkmcnt({min(len(lseq) - 1 - idx, 15)})")
            continue
        if x.startswith("ds_"): lseq.append(x.split(";@")[1] if ";@" in x else "")
        if x.startswith("WAITVM"):
            p = x.split(None, 2)
            idx = max(i for i, t in enumerate(seq) if t == p[1])
            n = min(len(seq) - 1 - idx, 63)
            out.append(f"s_waitcnt vmcnt({n})" + (" " + p[2] if len(p) > 2 else ""))
            continue
        if not (x.endswith(":") or x.startswith(".") or x.startswith(";")) and kind(x) == "vm" and not x.endswith(";@skip"):
            seq.append(x.split(";@")[1] if ";@" in x else "")
        if not x.startswith("buffer_dummy"): out.append(x.split(" ;@")[0])
    return out

def kdma(cfg, slot, so="s33"):
    return [f"s_add_u32 m0, s40, {16384*slot}"] + [dma(KDA + pp, SK, so, 1024 * pp, cfg.kvflags) for pp in range(4)]
def vdma(cfg, slot, so="s33"):
    return [f"s_add_u32 m0, s40, {65536+16384*slot}"] + [dma(VDA + (pp & 1), SV, so, 1024 * pp, cfg.kvflags) for pp in range(4)]
ADV = "s_add_u32 s33, s33, 16384"
def upiece(cfg, gp):
    sg = gp >> 3
    if gp & 1: return ["s_or_b32 m0, m0, 0x10000", dma(VDA, SV, "s33", 0, cfg.kvflags) + f" ;@seg{sg}", "s_add_u32 s33, s33, 4096"]
    return ["s_and_b32 m0, s33, 0xffff", dma(KDA, SK, "s33", 0, cfg.kvflags) + f" ;@seg{sg}" + ("k" if sg == 15 else "")]
def piece(cfg, gp, setm0, guard=False):
    sg, kv, pp = gp // 8, (gp % 8) // 4, gp % 4
    grp = (vdma if kv else kdma)(cfg, sg & 3)
    o = ([grp[0]] if pp == 0 or setm0 else []) + tag([grp[1 + pp]], f"seg{sg}" + ("k" if kv == 0 else ""))
    if gp % 8 == 7:
        o += [ADV]
        if guard: o += [f"s_cmp_lt_u32 s33, {KVBYTES}", f"s_cselect_b32 s{SK+2}, {KVBYTES}, 0"]
    return o
def wdma(cfg, t):
    return [x + f" ;@w{t}" for x in [f"s_add_u32 s42, s41, {t}", "s_and_b32 s42, s42, 31", "s_mul_i32 s42, s42, 40960", f"s_add_u32 m0, s40, {16384*UNIT[t%10]}"]] + \
        tag([dma(WD + pp, SWO, "s42", 1024 * pp, cfg.bflags) for pp in range(4)], f"w{t}")
def kread(buf, slot, th, kt, ks):
    return f"ds_read_b128 {ar(KF(buf,kt,ks),4)}, v{KRA+ks} offset:{16384*slot+8192*th+4096*kt}"
def vread(buf, slot, th, dt, e):
    return f"ds_read_b64_tr_b16 {ar(VF(buf,dt)+2*e,2)}, v{VRA+dt} offset:{16384*slot+8192*th+4096*e}"

def qk(u, kb, czero=False, sl=None):
    m = []
    for kt in range(2):
        d = vr(S_(u if sl is None else sl, kt), 4)
        for ks in range(4):
            c = ("0" if czero else vr(NM(u), 4)) if ks == 0 else d
            m.append(f"{MF} {d}, {ar(KF(kb,kt,ks),4)}, {ar(Q_(u,ks),4)}, {c}")
    return m
LA = {0: 18, 1: 19}
def pv(u, vb, czero=False, sl=None, lsum=True):
    m = []
    p = vr(P_(u if sl is None else sl), 4)
    for dt in range(8):
        d = vr(O_(u, dt), 4)
        m.append(f"{MF} {d}, {ar(VF(vb,dt),4)}, {p}, {'0' if czero else d}")
    d = ar(L_(u), 4)
    if lsum: m.append(f"{MF} {d}, {ar(ONES,4)}, {p}, {'0' if czero else d}")
    return m
TRUNC = [False]
def ppack(d, s):
    return f"v_perm_b32 v{d}, v{s+1}, v{s}, s39" if TRUNC[0] else f"v_cvt_pk_bf16_f32 v{d}, v{s}, v{s+1}"
def sm_half(q, g0, u, kt, add=False):
    s = S_(u, kt)
    for r in range(4):
        if add: q.put(g0 + 2 * r + 1, f"v_add_f32 v{LA[u]}, v{LA[u]}, v{s+r}")
        q.put(g0 + 2 * r, f"v_exp_f32 v{s+r}, v{s+r}")
        if r & 1: q.put(g0 + 2 * r + 1, ppack(P_(u) + 2 * kt + r // 2, s + r - 1))

def attn_tile(cfg, q, j, mode="loop"):
    kb = vb = j & 1
    slot, th = (j >> 1) & 3, j & 1
    nslot, nth = ((j + 1) >> 1) & 3, (j + 1) & 1
    z = mode == "first"
    addu = cfg.addu if mode == "loop" else ()
    groups = [qk(0, kb), pv(2, vb ^ 1, z), qk(1, kb), pv(3, vb ^ 1, z), qk(2, kb), pv(0, vb, lsum=0 not in addu), qk(3, kb), pv(1, vb, lsum=1 not in addu)]
    st = [q.add(g) for g in groups]; st.append(len(q.m))
    sm_half(q, st[0], 3, 1)
    for u in range(3):
        sm_half(q, st[2 * u + 1], u, 0, u in addu)
        sm_half(q, st[2 * u + 2], u, 1, u in addu)
    sm_half(q, st[7], 3, 0)
    vr_ = [vread(vb, slot, th, dt, e) for dt in range(8) for e in range(2)]
    NV = 6 if 0 in cfg.addu else 0
    if 0 in addu: pos = [st[0] + k for k in (1, 3, 5, 5, 7)] + [st[1] + k for k in (1, 5, 8, 8)] + [st[2] + 5]
    else: pos = [st[0] + k for k in (1, 3, 5, 5, 7)] + [st[1] + k for k in (1, 1, 3, 5, 5, 7, 8)] + [st[2] + k for k in (1, 3, 5, 5)]
    for p, r in zip(pos, vr_[16 - len(pos):]): q.put(p, r)
    mid = st[4] - 1
    if j & 1:
        if mode == "loop": q.put(mid, f"s_waitcnt vmcnt({16-cfg.lag if not cfg.bm else (18 if cfg.bm == 3 else 14)-cfg.lag}) lgkmcnt(0)" if not cfg.uni else "UNIWAIT")
        else: q.put(mid, f"WAITVM seg{(j+1)//2}{'k' if j == 29 and cfg.split15 else ''} lgkmcnt(0)")
        q.put(mid, "s_barrier")
    else:
        q.put(mid, "s_waitcnt lgkmcnt(0)")
    kr_ = [kread(kb ^ 1, nslot, nth, kt, ks) for kt in range(2) for ks in range(4)]
    if 1 in addu: pos = [st[4] + 5] + [st[5] + k for k in (1, 1, 3, 5, 5, 7)] + [st[6] + 1]
    else: pos = [st[4] + k for k in (1, 3, 5, 7)] + [st[5] + k for k in (1, 3, 5, 7)]
    for p, r in zip(pos, kr_): q.put(p, r)
    if NV and mode != "final":
        nvr = [vread(vb ^ 1, nslot, nth, dt, e) for dt in range(8) for e in range(2)][:NV]
        for p, r in zip([st[6] + 3, st[6] + 5, st[6] + 5, st[6] + 7, st[7] + 1, st[7] + 1], nvr): q.put(p, r)
        q.put(st[8] - 2, f"s_waitcnt lgkmcnt({NV})")
    else:
        q.put(st[8] - 2 if j != 29 else st[7], "s_waitcnt lgkmcnt(0)")
    nlast = cfg.lds_last if mode != "final" else (cfg.lds_fin if cfg.lds_fin >= 0 else cfg.lds_last)
    if nlast:
        cand = [i for i in range(st[0], st[8]) if any(x.startswith(("v_cvt", "v_perm")) for x in q.g[i]) and any(x.startswith("ds_read") for x in q.g[i])]
        for k in range(nlast):
            i = cand[(k * len(cand)) // nlast]
            c_ = [x for x in q.g[i] if x.startswith(("v_cvt", "v_perm"))][0]; r_ = [x for x in q.g[i] if x.startswith("ds_read")][0]
            q.g[i].remove(c_); q.g[i].remove(r_); q.g[i] += ["!" + c_, "!" + r_]
    dpos = [st[0] + 1, st[2] + 1, st[4] + 1, st[6] + 1]
    if cfg.bm:
        assert cfg.lag % 4 == 2
        dpos = {1: [st[4] + 1, st[4] + 5, st[5] + 1, st[5] + 5], 2: [st[4] + 1, st[4] + 3, st[4] + 5, st[4] + 7], 3: [st[2] + 7, st[3] + 1, st[3] + 3, st[3] + 5],
                4: [st[4] + 1, st[4] + 2, st[4] + 3, st[4] + 4]}[cfg.bm]
    for k in range(0 if not cfg.uni else 4, 4):
        gp = 4 * j + 26 + k - cfg.lag
        if mode == "first" and k < 2 and not cfg.bm: continue
        if mode == "final":
            if gp < 128: q.place(piece(cfg, gp, True), [[st[0] + 1, st[0] + 5, st[1] + 1, st[1] + 3][k] if cfg.wsched in (0, 2) else dpos[k]])
            continue
        q.place(piece(cfg, gp, False, cfg.lag < 2), [dpos[k]])
    return st

def rowmax_l(t, t2):
    return [f"v_mov_b32 v{t2}, v{t}", "s_nop 1", f"v_permlane32_swap_b32 v{t}, v{t2}", f"v_max_f32 v{t}, v{t}, v{t2}",
            f"v_mov_b32 v{t2}, v{t}", "s_nop 1", f"v_permlane16_swap_b32 v{t}, v{t2}", f"v_max_f32 v{t}, v{t}, v{t2}"]

def scale_pack(cfg, b0, t, mul, pk):
    o = []
    if pk: o += [f"v_pk_mul_f32 {vr(b0+2*i,2)}, {vr(b0+2*i,2)}, {mul[1]}" for i in range(4)]
    else: o += [f"v_mul_f32 v{b0+i}, {mul[0]}, v{b0+i}" for i in range(8)]
    o += [f"v_cvt_pk_bf16_f32 v{t+i}, v{b0+2*i}, v{b0+2*i+1}" for i in range(4)]
    return o

def gen(cfg):
    if cfg.wsched == 2: UNIT[:] = UNIT2 if not cfg.wv else UNIT3
    TRUNC[0] = cfg.trunc
    if cfg.epark: WBLK[:] = WBLK2
    WBLK.extend([-224, -208, -192, -176][:cfg.R - 16])
    assert 112 + 20 * cfg.DO <= 240 - 16 * (cfg.R - 16)
    a = Asm()
    a("s_cmp_ge_u32 s2, 256")
    a("s_cbranch_scc1 L_end")
    a("s_mov_b32 s35, 0")
    if cfg.epark: a("L_restart:")
    stamp(a, cfg, "start")
    a("s_load_dwordx4 s[4:7], s[0:1], 0")
    a("s_load_dwordx4 s[44:47], s[0:1], 16")
    a("v_lshrrev_b32 v2, 6, v0")
    a("v_and_b32 v1, 63, v0")
    a("v_readfirstlane_b32 s3, v2")
    a("s_and_b32 s50, s2, 7")
    a("s_lshr_b32 s51, s2, 3")
    a("s_and_b32 s52, s51, 3")
    a("s_lshr_b32 s53, s51, 2")
    a("s_bfe_u32 s28, s2, 0x10000")
    a("s_lshl2_add_u32 s28, s28, s52")
    a("s_lshr_b32 s54, s50, 1")
    a("s_lshl3_add_u32 s29, s54, s53")
    a("s_add_u32 s52, s52, s53")
    a("s_and_b32 s52, s52, 1")
    a(f"s_mul_i32 s32, s52, {cfg.roff}")
    a("s_add_u32 s54, s54, s50")
    a("s_and_b32 s54, s54, 1")
    a("s_lshl1_add_u32 s32, s54, s32")
    if cfg.rot == 4:
        a("s_and_b32 s52, s51, 3")
        a("s_add_u32 s52, s52, s53")
        a("s_and_b32 s52, s52, 3")
        a("s_mul_i32 s52, s52, 5")
        a("s_lshr_b32 s32, s52, 1")
    if cfg.rot == 3:
        a("s_mul_i32 s52, s51, 43")
        a("s_lshr_b32 s52, s52, 7")
        a("s_mul_i32 s52, s52, 3")
        a("s_sub_u32 s52, s51, s52")
        a("s_mul_i32 s52, s52, 7")
        a("s_lshr_b32 s32, s52, 1")
    if cfg.mapx:
        a("s_mov_b32 s28, s50")
        a("s_mov_b32 s29, s51")
        a("s_mul_i32 s32, s50, 5")
        a("s_lshr_b32 s32, s32, 2")
        if cfg.mapx == 2:
            a("s_and_b32 s52, s51, 1")
            a("s_mul_i32 s52, s52, 5")
            a("s_add_u32 s32, s32, s52")
            a("s_cmp_ge_u32 s32, 10")
            a("s_cselect_b32 s52, 10, 0")
            a("s_sub_u32 s32, s32, s52")
    if cfg.c0same:
        a("s_mov_b32 s30, %d" % (9 << 7))
        a("s_mov_b32 s31, %d" % (9 << 19))
    else:
        a("s_lshl_b32 s30, s32, 7")
        a("s_lshl_b32 s31, s32, 19")
    a("s_lshl_b32 s40, s3, 12")
    a("s_lshl1_add_u32 s36, s40, %d" % XBASE[0][0])
    a("s_add_u32 s39, s40, %d" % WWIN)
    a("v_lshrrev_b32 v3, 4, v1")
    a("v_lshrrev_b32 v4, 3, v1")
    a("v_and_b32 v5, 7, v1")
    a("v_and_b32 v2, 15, v1")
    a("s_mul_i32 s52, s3, %d" % (64 * 1280))
    a("v_mul_u32_u24 v8, 1280, v4")
    a("v_xor_b32 v9, v3, v5")
    a("v_lshlrev_b32 v9, 4, v9")
    a(f"v_add3_u32 v{XDA}, v9, s52, v8")
    a(f"v_xor_b32 v17, 64, v{XDA}")
    for pp in range(1, 8):
        a(f"v_add_u32 v{XDA+pp}, {10240*pp-1024*(pp&3)}, v{17 if pp & 1 else XDA}")
    a("s_lshl_b32 s52, s3, 17")
    a("v_lshlrev_b32 v8, 13, v3")
    a("v_and_b32 v9, 1, v3")
    a("v_lshrrev_b32 v10, 1, v3")
    a("v_lshl_or_b32 v9, v10, 2, v9")
    a("v_xor_b32 v9, v9, v2")
    a("v_lshlrev_b32 v9, 4, v9")
    a(f"v_add3_u32 v{WDA}, v9, s52, v8")
    a(f"v_xor_b32 v17, 128, v{WDA}")
    for pp in range(1, 4):
        a(f"v_add_u32 v{WDA+pp}, {32768*pp-1024*pp}, v{17 if pp >> 1 else WDA}")
    a("s_mul_i32 s52, s28, 307200")
    a("s_lshl_b32 s53, s29, 8")
    a.ext(srd(SX, 4, "s52", 307200)[2:] + srd(SW, 46, "s53", 640 * 8192 - 31 * 256)[2:])
    a("s_waitcnt lgkmcnt(0)")
    stamp(a, cfg, "kernarg")
    a.ext(srd(SX, 4, "s52", 307200)[:2] + srd(SW, 46, "s53", 0)[:2])

    def qstage(c):
        bf = c % 3
        o = [f"s_mov_b32 m0, s{36+bf}"]
        o += [dma(XDA + pp, SX, "s30", 1024 * pp, cfg.xflags) for pp in range(4)]
        x2 = [f"s_add_u32 m0, s{36+bf}, 4096"] + [dma(XDA + 4 + pp, SX, "s30", 1024 * pp, cfg.xflags) for pp in range(4)]
        w_ = [f"s_add_u32 m0, s39, {WOFF[bf]}"] + [dma(WDA + pp, SW, "s31", 1024 * pp, cfg.xflags) for pp in range(4)]
        if cfg.qs == 2 and c == 0:
            o = tag(o + w_, "c0a") + x2
        else: o += x2 + w_
        if not (cfg.c0same and c == 0): o += ["s_add_u32 s32, s32, 1", f"s_cmp_eq_u32 s32, {9 if cfg.c0same else 10}\ns_cselect_b32 s32, 0, s32"]
        o += ["s_lshl_b32 s30, s32, 7", "s_lshl_b32 s31, s32, 19"]
        return tag(o, f"c{c}")
    if "lat" in cfg.exp:
        x0 = with_nop(qstage(0))
        a.ext(x0[:3]); a("s_waitcnt vmcnt(0)"); stamp(a, cfg, "l1")
        a.ext(x0[3:4]); a("s_waitcnt vmcnt(0)"); stamp(a, cfg, "l2")
        a.ext(x0[4:15]); a("s_waitcnt vmcnt(0)"); stamp(a, cfg, "l3")
        a.ext(x0[15:16]); a("s_waitcnt vmcnt(0)"); stamp(a, cfg, "l4")
        a.ext(x0[16:]); a("s_waitcnt vmcnt(0)"); stamp(a, cfg, "l5")
    else: a.ext(with_nop(qstage(0)))
    stamp(a, cfg, "c0i")
    a("s_load_dwordx2 s[48:49], s[0:1], 56")
    a("s_load_dwordx4 s[56:59], s[0:1], 32")
    a("s_load_dwordx2 s[46:47], s[0:1], 48")
    if cfg.cwarm:
        a("s_getpc_b64 s[54:55]")
        a("L_cbase:")
        a("s_lshl2_add_u32 s52, s51, s3")
        a(f"s_mul_i32 s52, s52, {5 if cfg.w3 else 3}")
        a(f"v_min_u32 v18, {4 if cfg.w3 else 2}, v1")
        a("v_add_u32 v18, s52, v18")
        a("v_lshlrev_b32 v18, 7, v18")
        a("v_min_u32 v18, L_exact-L_cbase, v18")
        a("v_mov_b32 v19, s55")
        a("v_add_co_u32 v18, vcc, s54, v18")
        a("v_addc_co_u32 v19, vcc, 0, v19, vcc")
        a("global_load_dword v20, v[18:19], off")
    a("s_mov_b32 s33, s40" if not cfg.uni else "s_lshl_b32 s33, s3, 10")
    a("s_and_b32 s52, s3, 1")
    a("s_lshl_b32 s52, s52, 13")
    a("s_cmp_ge_u32 s3, 2")
    for bf in range(1, 3):
        a(f"s_mov_b32 s53, {XBASE[bf][0]}")
        a(f"s_cselect_b32 s{36+bf}, {XBASE[bf][1]}, s53")
    for bf in range(1, 3):
        a(f"s_add_u32 s{36+bf}, s{36+bf}, s52")
    a("v_bfe_u32 v6, v1, 2, 2")
    a("v_and_b32 v7, 3, v1")
    a("v_lshrrev_b32 v9, 1, v2")
    for s in range(2):
        a(f"v_or_b32 v8, {4*s}, v3")
        a("v_xor_b32 v8, v8, v9")
        a("v_lshlrev_b32 v8, 4, v8")
        a("v_lshl_add_u32 v8, v2, 7, v8")
        for bf in range(3):
            a(f"v_add_u32 v{XRA+2*bf+s}, s{36+bf}, v8")
    a("v_lshrrev_b32 v11, 1, v7")
    a("v_and_b32 v12, 1, v7")
    a("v_lshlrev_b32 v12, 3, v12")
    a("v_and_b32 v9, 1, v6")
    a("v_lshrrev_b32 v10, 1, v6")
    a("v_lshl_or_b32 v9, v10, 2, v9")
    a("v_and_b32 v10, 1, v3")
    a("v_lshl_or_b32 v9, v10, 3, v9")
    a("v_lshl_or_b32 v9, v11, 1, v9")
    a("v_lshl_add_u32 v13, v3, 3, v6")
    a("v_lshl_add_u32 v13, v13, 8, v12")
    a(f"v_add_u32 v13, {WWIN}, v13")
    for dt in range(8):
        a(f"v_xor_b32 v8, {4*(dt>>1)+(dt&1)}, v9")
        a(f"v_lshl_add_u32 v{WRA+dt}, v8, 4, v13")
    a_main = a
    if cfg.qs: a = Asm(); a.stamps = a_main.stamps
    if not cfg.qs: a("s_waitcnt lgkmcnt(0)")
    if cfg.sig == "line":
        a("s_lshl_b32 s52, s28, 5")
        a("s_add_u32 s52, s52, s29")
        a("s_lshl_b32 s52, s52, 7")
        a(f"s_add_u32 s52, s52, {FOFF}")
        a("v_mov_b32 v18, s52")
        a("v_mov_b32 v19, 0")
        a("s_mov_b64 exec, 1")
        a("global_store_dword v18, v19, s[48:49] sc1")
        a("s_mov_b64 exec, -1")
        a("v_and_b32 v0, 31, v1")
        a("v_lshlrev_b32 v0, 3, v0")
    stamp(a, cfg, "s1")
    a("s_lshl_b32 s52, s28, 5")
    a("s_add_u32 s52, s52, s29")
    a("s_lshl_b32 s52, s52, 18")
    a.ext(srd(SK, 6, "s52", KVBYTES))
    a.ext(srd(SV, 44, "s52", KVBYTES))
    a("s_mul_i32 s52, s28, %d" % (15 * 131072))
    a.ext(srd(SO, 48, "s52", 15 * 131072))
    a("v_lshlrev_b32 v10, 8, v3")
    if cfg.uni:
        a("s_lshl_b32 s52, s3, 2")
        a("v_add_u32 v8, s52, v3")
        a("v_xor_b32 v9, v8, v2")
        a(f"v_lshl_add_u32 v{KDA}, v9, 4, v10")
        a("v_and_b32 v8, 7, v8")
        a("v_lshlrev_b32 v8, 1, v8")
        a("v_xor_b32 v9, v8, v2")
        a(f"v_lshl_add_u32 v{VDA}, v9, 4, v10")
    else:
        for pp in range(4):
            a(f"v_add_u32 v9, {4*pp}, v3")
            a("v_xor_b32 v9, v9, v2")
            a(f"v_lshl_add_u32 v{KDA+pp}, v9, 4, v10")
        for pp in range(2):
            a(f"v_add_u32 v9, {4*pp}, v3")
            a("v_lshlrev_b32 v9, 1, v9")
            a("v_xor_b32 v9, v9, v2")
            a(f"v_lshl_add_u32 v{VDA+pp}, v9, 4, v10")
    a("v_and_b32 v10, 1, v3")
    a("v_lshl_or_b32 v9, v10, 2, v6")
    a("v_lshl_or_b32 v9, v9, 1, v11")
    a("v_lshl_add_u32 v14, v3, 2, v6")
    a("v_lshl_add_u32 v14, v14, 8, v12")
    a("v_add_u32 v14, 65536, v14")
    for dt in range(8):
        a(f"v_xor_b32 v8, {2*dt}, v9")
        a(f"v_lshl_add_u32 v{VRA+dt}, v8, 4, v14")
    for ks in range(4):
        a(f"v_or_b32 v8, {4*ks}, v3")
        a("v_xor_b32 v8, v8, v2")
        a("v_lshlrev_b32 v8, 4, v8")
        a(f"v_lshl_add_u32 v{KRA+ks}, v2, 8, v8")
    for i in range(4):
        a(f"v_mov_b32 v{MTR+i}, 0xff800000")
    a("v_lshlrev_b32 v15, 4, v1")
    if cfg.touch:
        a(f"v_and_b32 v8, {cfg.tl-1}, v1")
        a(f"v_lshrrev_b32 v9, {int(math.log2(cfg.tl))}, v1")
        a("v_lshlrev_b32 v9, 14, v9")
        a("v_lshl_add_u32 v219, v8, 7, v9")
    a("v_lshlrev_b32 v9, 1, v3")
    a("v_xor_b32 v9, v9, v5")
    a("v_lshlrev_b32 v9, 4, v9")
    a("v_mul_u32_u24 v8, 1280, v4")
    a("v_add_u32 v8, v8, v9")
    for pp in range(4):
        a(f"v_add_u32 v{WD+pp}, {pp*9216}, v8")
    a("v_lshl_add_u32 v14, v3, 2, v6")
    a("v_bfe_u32 v13, v14, 1, 2")
    a("v_lshl_or_b32 v13, v13, 1, v11")
    a("v_lshl_add_u32 v14, v14, 7, v12")
    a("v_add_u32 v14, s40, v14")
    for nt in range(4):
        a(f"s_add_u32 s53, s3, {nt}")
        a("s_and_b32 s53, s53, 3")
        a("s_lshl_b32 s53, s53, 1")
        a("v_xor_b32 v16, s53, v13")
        a(f"v_lshl_add_u32 v{WRL[0][nt]}, v16, 4, v14")
        a(f"v_add_u32 v{WRL[1][nt]}, 65536, v{WRL[0][nt]}")
        a(f"v_add_u32 v{WRL[2][nt]}, 131072, v{WRL[0][nt]}")
    for i in range(5): a(f"v_add_u32 v{OAL[i]}, {131072*i}, v15")
    a("s_min_u32 s51, s51, 29")
    a("s_cmp_ge_u32 s51, 15")
    a("s_cselect_b32 s52, 1, 0")
    a("s_cselect_b32 s53, 15, 0")
    a("s_sub_u32 s53, s51, s53")
    a("s_and_b32 s43, s50, 6")
    a("s_add_u32 s43, s43, s52")
    a("s_mul_i32 s54, s53, 52")
    a("s_lshr_b32 s54, s54, 8")
    a("s_mul_i32 s41, s54, 5")
    a("s_sub_u32 s53, s53, s41")
    a("s_and_b32 s55, s50, 1")
    a("s_mul_i32 s55, s55, 5")
    a("s_add_u32 s55, s55, s53")
    a("s_mul_i32 s52, s52, 3")
    a("s_add_u32 s41, s54, s52")
    a("s_mul_i32 s41, s41, 43")
    a("s_lshr_b32 s41, s41, 3")
    if cfg.rA:
        a(f"s_mul_i32 s53, s53, {cfg.rA}")
        a("s_add_u32 s41, s41, s53")
    if cfg.map3b:
        a("s_mov_b32 s43, s50")
        a("s_mul_i32 s54, s51, 26")
        a("s_lshr_b32 s54, s54, 8")
        a("s_mul_i32 s52, s54, 10")
        a("s_sub_u32 s55, s51, s52")
        a("s_mul_i32 s41, s54, 11")
        a("s_add_u32 s41, s41, s50")
        a("s_mov_b32 s34, 0")
    a("s_and_b32 s41, s41, 31")
    sc = f32(math.log2(math.e) / math.sqrt(128.0))
    if cfg.wpull:
        a("s_mul_i32 s52, s2, 160")
        a(f"s_mul_i32 s53, s3, {14 if cfg.wpull == 1 else 40}")
        a("s_add_u32 s52, s52, s53")
        a("v_add_u32 v218, s52, v1")
        a("v_lshlrev_b32 v218, 7, v218")
        a("v_mov_b32 v16, 0x7fffff80")
        a(f"v_cmp_gt_u32 vcc, {14 if cfg.wpull == 1 else 40}, v1")
        a("v_cndmask_b32 v255, v16, v218, vcc")
    if cfg.wl2:
        a("s_lshr_b32 s52, s2, 3")
        a("s_lshl_b32 s52, s52, 2")
        a("s_add_u32 s52, s52, s3")
        a("s_mul_i32 s52, s52, %d" % (32 * 1280))
        a("s_and_b32 s53, s50, 1")
        a("s_mul_i32 s53, s53, 640")
        a("s_add_u32 s52, s52, s53")
        a("v_mul_u32_u24 v16, 52, v1")
        a("v_lshrrev_b32 v16, 8, v16")
        a("v_mul_u32_u24 v17, 5, v16")
        a("v_sub_u32 v17, v1, v17")
        a("v_mul_u32_u24 v16, 1280, v16")
        a("v_lshl_add_u32 v16, v17, 7, v16")
        a("v_add_u32 v16, s52, v16")
        a("v_mov_b32 v17, 0x7fffff80")
        a("v_cmp_gt_u32 vcc, 15, v1")
        a("v_cndmask_b32 v255, v17, v16, vcc")
    a(f"s_mov_b32 s44, {sc}")
    a(f"s_mov_b32 s45, {sc}")
    setup_late = []
    if cfg.qs:
        k = 0
        while k < len(a.l):
            x = a.l[k]; k += 1
            if x == "s_mov_b64 exec, 1": x = "\n".join([x] + a.l[k:k + 2]); k += 2
            else:
                while k < len(a.l) and (a.l[k].startswith(("s_addc", "s_cselect"))): x += "\n" + a.l[k]; k += 1
            setup_late.append(x)
        a = a_main
    stamp(a, cfg, "setup")
    if not cfg.c1first and cfg.qs != 2: a.ext(with_nop(qstage(1)))
    stamp(a, cfg, "issued")

    def qreads(c):
        bf = rb = c % 3
        o = []
        for s in range(2):
            o.append(f"ds_read_b128 {XF(rb,s,0)}, v{XRA+2*bf+s}")
        for dt in range(8):
            for s in range(2):
                for e in range(2):
                    o.append(f"ds_read_b64_tr_b16 {WF2(rb,s,dt,e)}, v{WRA+dt} offset:{WOFF[bf]+8192*s+1024*e}")
        for u in range(1, 4):
            for s in range(2):
                o.append(f"ds_read_b128 {XF(rb,s,u)}, v{XRA+2*bf+s} offset:{2048*u}")
        return o
    a("WAITVM c0 lgkmcnt(0)" if cfg.qs != 2 else "WAITVM c0a lgkmcnt(0)")
    a("s_barrier")
    stamp(a, cfg, "landed")
    r0 = qreads(0)
    if cfg.fast0: a.ext(r0[:14])
    else:
        a.ext(r0)
        a.ext(with_nop(qstage(2)))
    wp = ["s_mov_b32 s4, s56", "s_mov_b32 s5, s57", f"s_mov_b32 s6, {4096*1280}", "s_mov_b32 s7, 0x20000", "buffer_load_dword v218, v255, s[4:7], 0 offen"]
    if cfg.wpull == 2: a.ext(wp)
    a("s_waitcnt lgkmcnt(8)" if cfg.fast0 else "s_waitcnt lgkmcnt(0)")
    if cfg.w3:
        a("s_cmp_eq_u32 s3, 3")
        a("s_cbranch_scc1 L_w3")
        if cfg.prio: a(f"s_setprio {cfg.prio}")
        a("L_sec0:")
    q = Seq()
    per = []
    for c in range(10):
        rb = c % 3
        mf = []
        for u in range(4):
            for dt in range(8):
                d = vr(O_(u, dt), 4)
                for s in range(2):
                    mf.append(f"{MF} {d}, {WF(rb,s,dt)}, {XF(rb,s,u)}, {'0' if c == 0 and s == 0 else d}")
        if cfg.joint and c >= 8:
            mf = []
            for u in (2 * (c - 8), 2 * (c - 8) + 1):
                for dt in range(8):
                    d = vr(O_(u, dt), 4)
                    for cc in (8, 9):
                        for s in range(2): mf.append(f"{MF} {d}, {WF(cc%3,s,dt)}, {XF(cc%3,s,u)}, {d}")
        p0 = q.add(mf); per.append(p0)
        for x in stamp_l(a, cfg, f"q{c+1}"): q.put(p0 + 63, "!" + x)
    if cfg.lazy:
        A = dict(zip(range(1, 10), cfg.lazy))
        FR = {0: 22 if cfg.qs != 2 else 32}
        for n in range(1, 10):
            assert A[n] >= 64 * (n - 2) and A[n] + 26 < 64 * n + 3, n
            q.put(A[n], f"WAITVM c{n}"); q.put(A[n], "s_barrier")
            fast = A[n] + 38 > 64 * n
            dense = n >= cfg.qd0
            for i, r in enumerate(qreads(n)): q.put(A[n] + 1 + (i // cfg.qdn if dense else (i // 2 if fast else (i * 3) // 4)), r)
            FR[n] = min(A[n] + (18 if dense else (26 if fast else 36)), 64 * n - 1)
        DE = cfg.c2p + (cfg.c2sp * 11) // 12 if cfg.qs else 0
        for n in range(10):
            q.put(FR[n], "s_waitcnt lgkmcnt(0)"); q.put(FR[n], "s_barrier")
            if n + 3 < 10:
                p = max(FR[n] + 2, DE + 5)
                ps = [p + (cfg.bsp * i) // 12 for i in range(12)]
                q.place(qstage(n + 3), ps); DE = ps[-1]
                assert DE < A[n + 3] - 20, n
        BQ = {7: DE - cfg.bsp + 3, 8: FR[7], 9: FR[8], 10: FR[9]}
    else:
        BQ = {n: max(cfg.b1 + cfg.bsp * (n - 1), 64 * (n - 2)) for n in range(1, 10)}
        BQ[10] = BQ[9] + 44
        for n in range(1, 11):
            p = BQ[n]
            q.put(p, f"WAITVM c{n} lgkmcnt(0)" if n < 10 else "s_waitcnt lgkmcnt(0)"); q.put(p, "s_barrier")
            if n < 10:
                for i, r in enumerate(qreads(n)): q.put(p + 1 + ((i * 3) // 4 if n < cfg.qd0 else i // cfg.qdn), r)
            if n + 2 < 10:
                q.place(qstage(n + 2), [p + 2 + (cfg.bsp * i) // 12 for i in range(12)])
            assert n == 1 or n == 10 or BQ[n + 1] < 64 * n, n
        q.put(63, "s_waitcnt lgkmcnt(0)")
    if cfg.fast0:
        for i, r in enumerate(r0[14:]): q.put(i // 2, r)
        for dt in range(1, 8):
            issued = min(40, 14 + 2 * (2 * dt - 1)); needed = 2 + 4 * (dt + 1)
            q.g[2 * dt - 1].insert(0, f"s_waitcnt lgkmcnt({min(15, issued - needed)})")
        q.g[15].insert(0, "s_waitcnt lgkmcnt(0)")
        if cfg.qs == 2:
            late_x = r0[36:]
            for r in late_x:
                for gp in q.g[:16]:
                    if r in gp: gp.remove(r)
            q.g[20].insert(0, "WAITVM c0")
            for k, r in enumerate(late_x): q.put(20 + k // 2, r)
            q.g[31].insert(0, "s_waitcnt lgkmcnt(0)")
            q.place(qstage(1), [1 + (cfg.c1sp * i) // 12 for i in range(12)])
        q.place(qstage(2), [4 + i + i // 4 for i in range(12)] if not cfg.qs else [cfg.c2p + (cfg.c2sp * i) // 12 for i in range(12)])
    i = 66
    for x in setup_late:
        while q.slots(i) >= 2 or "s_barrier" in q.g[i]: i += 1
        q.put(i, "!" + x)
        if kind(x) == "s": i += 1
    assert i < 300, i
    if cfg.wpull >= 3: q.place(wp, [per[cfg.wpull - 3] + 60])
    sw = ["s_mul_i32 s52, s3, %d" % (1024 * 1280), "s_lshl_b32 s53, s55, 7", "s_add_u32 s52, s52, s53"] + srd(SWO, 56, "s52", WOSZ) + \
         ["s_mul_i32 s52, s43, 15", "s_mul_i32 s53, s54, 5", "s_add_u32 s52, s52, s53", "s_lshl_b32 s52, s52, 17", "s_lshl_b32 s53, s3, 15",
          "s_add_u32 s52, s52, s53"] + srd(SOR, 48, "s52", ORSZ)
    if cfg.wpull == 1 or cfg.wl2: sw += ["s_mov_b32 s4, s56", "s_mov_b32 s5, s57", f"s_mov_b32 s6, {4096*1280}", "s_mov_b32 s7, 0x20000", "s_mov_b32 s38, 0"]
    if cfg.trunc: sw += ["s_mov_b32 s39, 0x07060302"]
    i = per[8] + 2
    k = 0
    while k < len(sw):
        n = 2 if "s_addc" in sw[min(k + 1, len(sw) - 1)] else 1
        for x in sw[k:k + n]: q.put(i, x)
        k += n; i += 2
    p9 = per[9]
    def qepi(u):
        o = []
        for m in range(4):
            t = 16 + 4 * (m & 1)
            o += scale_pack(cfg, O_(u, 2 * m), t, ("s44", "s[44:45]"), cfg.pkmul)
            if m:
                tp = 16 + 4 * ((m - 1) & 1)
                o += [f"v_accvgpr_write_b32 a{Q_(u,m-1)+i}, v{tp+i}" for i in range(4)]
            o += [f"v_permlane16_swap_b32 v{t}, v{t+2}", f"v_permlane16_swap_b32 v{t+1}, v{t+3}"]
        o += [f"v_accvgpr_write_b32 a{Q_(u,3)+i}, v{20+i}" for i in range(4)]
        return o
    q.put(p9 + 31, "WAITVM seg0k" if cfg.split0 else "WAITVM seg0"); q.put(p9 + 31, "s_barrier")
    for x in stamp_l(a, cfg, "b0"): q.put(p9 + 31, "!" + x)
    k0r = [kread(0, 0, 0, kt, ks) for kt in range(2) for ks in range(4)]
    for i, r in enumerate(k0r): q.put(p9 + 32 + 2 * i, r)
    if cfg.joint:
        assert BQ[10] < per[8]
        e = q.stream(qepi(0), per[8] + 32 + 4, cap=cfg.jcap)
        e = q.stream(qepi(1), max(e, p9 + 4), cap=cfg.jcap)
        e = q.stream(qepi(2), max(e, p9 + 32 + 4), cap=cfg.jcap)
    else:
        e = q.stream(qepi(0), p9 + 16 + 4, cap=4)
        e = q.stream(qepi(1), max(e, p9 + 32 + 4), cap=4)
        e = q.stream(qepi(2), max(e, p9 + 48 + 4), cap=4)
    q.put(p9 + 62, "s_waitcnt lgkmcnt(0)")
    lab = q.raw([])
    for x in stamp_l(a, cfg, "g0"): q.put(len(q.m) - 1, "!" + x)
    g0 = q.add(qk(0, 0, True))
    g1 = q.add(qk(1, 0, True))
    g2 = q.add(qk(2, 0, True))
    v0r = [vread(0, 0, 0, dt, e_) for dt in range(8) for e_ in range(2)]
    k1r = [kread(1, 0, 1, kt, ks) for kt in range(2) for ks in range(4)]
    if cfg.split0:
        for i, r in enumerate(k1r): q.put(g0 + i, r)
        q.put(g1 - 1, "!WAITVM seg0"); q.put(g1 - 1, "!s_barrier")
        for i, r in enumerate(v0r): q.put(g1 + i, r)
    else:
        for i, r in enumerate(v0r + k1r): q.put(g0 + i, r)
    e = q.stream(qepi(3), max(e, g0), cap=4)
    def fmax(u):
        s0 = S_(u, 0); t = NM(u)
        o = [f"v_max3_f32 v{t}, v{s0}, v{s0+1}, v{s0+2}", f"v_max3_f32 v{t+1}, v{s0+3}, v{s0+4}, v{s0+5}",
             f"v_max3_f32 v{t}, v{t}, v{s0+6}, v{s0+7}", f"v_max3_f32 v{t}, v{t}, v{t+1}, v{MTR+u}"]
        return o + [x for x in rowmax_l(t, t + 1) if "s_nop" not in x]
    def fexp(u, nexp):
        s0 = S_(u, 0); t = NM(u)
        o = [f"v_sub_f32 v{s0+r}, v{s0+r}, v{t}" for r in range(8)]
        o += [f"v_exp_f32 v{s0+r}, v{s0+r}" for r in range(nexp)]
        o += [f"v_sub_f32 v{NM(u)+i}, 0, v{t}" for i in (1, 2, 3, 0)]
        o += [ppack(P_(u) + r // 2, s0 + r) for r in range(0, nexp, 2)]
        return o
    ones = [f"v_mov_b32 v{LA[u]}, 0" for u in cfg.addu] + ["v_mov_b32 v27, 0x3f803f80"] + [f"v_accvgpr_write_b32 a{ONES+i}, v27" for i in range(4)]
    e = q.stream(merge(fmax(0), fmax(1), ones), max(e, g2 + 1), cap=4)
    for x in stamp_l(a, cfg, "g3"): q.put(len(q.m) - 1, "!" + x)
    if cfg.epark:
        q.put(len(q.m) - 1, "!s_cmp_lg_u32 s35, 0"); q.put(len(q.m) - 1, "!s_cbranch_scc1 L_exact")
    g3 = q.add(qk(3, 0, True))
    e = q.stream(merge(fexp(0, 8), fmax(2)), g3, cap=6)
    q.raw(["s_waitcnt lgkmcnt(0)"])
    for x in stamp_l(a, cfg, "g4"): q.put(len(q.m) - 1, "!" + x)
    g4 = q.add(pv(0, 0, True))
    e = q.stream(merge(fexp(1, 8), fmax(3)), g4, cap=5)
    for x in stamp_l(a, cfg, "g5"): q.put(len(q.m) - 1, "!" + x)
    g5 = q.add(pv(1, 0, True))
    e = q.stream(merge(fexp(2, 8), fexp(3, 4)), g5, cap=7)
    for x in stamp_l(a, cfg, "tile1"): q.raw([x])
    st1 = attn_tile(cfg, q, 1, "first")
    if cfg.sig == "line":
        arr = ["s_and_b32 s52, s2, 31", "s_lshl_b32 s52, s52, 3", "v_mov_b32 v16, s52", "v_mov_b32 v17, 1", "s_cmp_lg_u32 s3, 0", "s_cbranch_scc1 L_noarr",
               "s_mov_b64 exec, 1", "global_atomic_add v16, v17, s[46:47] sc1 ;@skip", "s_mov_b64 exec, -1", "L_noarr:"]
        for x in arr: q.put(st1[8] - 1, "!" + x)
    kv = []
    NP = 32 - cfg.lag if not cfg.uni else cfg.ipre - 2
    if cfg.bm and not cfg.uni: NP = 30 - cfg.lag
    for gp in range(NP): kv += piece(cfg, gp, False) if not cfg.uni else upiece(cfg, gp)
    if cfg.uni:
        q.place(upiece(cfg, NP), [st1[4] + 1]); q.place(upiece(cfg, NP + 1), [st1[6] + 1])
    pos = []
    i = BQ[7] + cfg.bsp + 3 + cfg.kvdelay; acc = 4 * cfg.kvpace
    free_at = [0, BQ[8], BQ[8], BQ[8], BQ[9], BQ[9], BQ[9], BQ[10]]
    if cfg.uni: free_at = [BQ[8], BQ[8], BQ[8], BQ[8], BQ[9], BQ[9], BQ[10], BQ[10]]
    while len(pos) < NP:
        ok = q.m[i] and q.m[i - 1] and q.m[i + 1] and (q.slots(i) < 2 or i > (p9 + 16 if not cfg.joint else per[8] + 32)) and i > free_at[len(pos) // 4]
        if ok and acc >= ((cfg.kvpace if not cfg.kvp2 or i < p9 + cfg.kvsw else cfg.kvp2) if not cfg.bmi else (4 * cfg.kvpace - 3 * cfg.bmi if len(pos) % 4 == 0 else cfg.bmi)):
            pos.append(i); acc = 0
        acc += max(4, 2 + q.slots(i)) / 4
        i += 1
    assert pos[3 if cfg.split0 else 7] < p9 + 31 and pos[7] < g1 - 2 and pos[-1] < (st1[4] - 2 if cfg.bm != 3 else st1[2] + 3), (pos, p9, st1)
    if "nokv23" in cfg.exp: kv = [("buffer_dummy ;@" + x.split(";@")[1]) if (x.endswith("seg2") or x.endswith("seg3")) else x for x in kv]
    for k, (c, sg) in enumerate(cfg.touch):
        q.put(per[c] + cfg.tpos - 1, f"s_add_u32 s53, s40, {16384*sg}")
        q.put(per[c] + cfg.tpos, f"buffer_load_dword v255, v219, s[{SV if cfg.tkv[k % len(cfg.tkv)] == 'v' else SK}:{(SV if cfg.tkv[k % len(cfg.tkv)] == 'v' else SK)+3}], s53 offen {cfg.tflags}".rstrip())
    q.place(kv, pos)
    q.emit(a)
    a.l = fix(resolve_waits(a.l))
    a("s_mov_b32 s34, 3")
    a(".p2align 6")
    a("L_loop:")
    body0 = len(a.l)
    q = Seq()
    def loopstamp(q, p, pre):
        if cfg.stamps and pre in cfg.only.split(","):
            o = ["s_memtime s[4:5]", "s_memrealtime s[6:7]", "s_waitcnt lgkmcnt(0)"]
            for it in range(3):
                i = len(a.stamps); a.stamps.append(f"{pre}{it}")
                o += [f"s_cmp_eq_u32 s34, {3-it}", f"s_cselect_b32 s{60+4*i}, s4, s{60+4*i}", f"s_cselect_b32 s{62+4*i}, s6, s{62+4*i}"]
            for x in o: q.put(p, x)
    for j in range(2, 10):
        st = attn_tile(cfg, q, j)
        if j == 2: loopstamp(q, st[4] - 1, "ia")
        if j == 6: loopstamp(q, st[4] - 1, "ib")
        if cfg.wl2 and j % 2 == 0:
            q.put(st[3] + 1, f"buffer_load_dword v16, v255, s[4:7], s38 offen {cfg.wl2f}".rstrip())
            q.put(st[3] + 2, f"s_add_u32 s38, s38, {3*1280}")
        if cfg.wpull == 1 and j == 4:
            q.put(st[3] + 1, "buffer_load_dword v16, v255, s[4:7], s38 offen")
            q.put(st[3] + 2, f"s_add_u32 s38, s38, {56*128}")
        if j in (5, 7):
            for x in reversed(stamp_l(a, cfg, f"w{j}a")): q.g[st[4] - 1].insert(0, x)
            for x in stamp_l(a, cfg, f"w{j}b"): q.put(st[4] - 1, x)
        if j == 6:
            for x in reversed(stamp_l(a, cfg, f"d{j}a")): q.g[st[2] + 1].insert(0, x)
            for x in stamp_l(a, cfg, f"d{j}b"): q.put(st[2] + 1, "!" + x)
    if cfg.uni:
        n = len(q.m); cnt = cfg.upi; ps = []
        for k in range(cnt):
            if cfg.ucl:
                p = int((k // cfg.ucl + cfg.uph) * n / (cnt // cfg.ucl)) + 1 if k % cfg.ucl == 0 else ps[-1] + (2 if k & 1 else 3)
                while q.slots(p) >= (2 if k % cfg.ucl == 0 else 3) or any(x.startswith("v_exp") for x in q.g[p]) or "UNIWAIT" in q.g[p] or "UNIWAIT" in q.g[p - 1]: p += 1
            else:
                p = int((k + 0.1) * n / cnt) + 1
                while q.slots(p) >= 2 or "UNIWAIT" in q.g[p] or "UNIWAIT" in q.g[p - 1]: p += 1
            ps.append(p)
        assert ps[-1] < n - 4 and cfg.ipre % 2 == 0 and cnt % 2 == 0
        for k, p in enumerate(ps): q.place(upiece(cfg, k), [p])
        for bi, p in enumerate([i for i in range(n) if "UNIWAIT" in q.g[i]]):
            before = sum(1 for x in ps if x < p)
            m = 2 + bi + 8
            nw = cfg.ipre + 2 * cnt + before - 8 * (m + 1)
            assert cfg.ipre + before <= 8 * (2 + bi - 1 + 4) and nw >= 4, (bi, nw)
            q.g[p][q.g[p].index("UNIWAIT")] = f"s_waitcnt vmcnt({nw}) lgkmcnt(0)"
        IEND = cfg.ipre + 3 * cnt
    if cfg.pad:
        for i in range(0, len(q.m), cfg.pad): q.put(i, "!s_nop 3")
    if "lnobar" in cfg.exp: q.g = [[x for x in gp if x != "s_barrier"] for gp in q.g]
    if "lnodma" in cfg.exp: q.g = [[x for x in gp if kind(x.lstrip("!")) != "vm"] for gp in q.g]
    if "lnods" in cfg.exp: q.g = [[x for x in gp if kind(x.lstrip("!")) != "ds"] for gp in q.g]
    if "lnowait" in cfg.exp: q.g = [[x for x in gp if not (x.startswith("s_waitcnt") and "s_cmp_eq_u32 s34, 3" not in gp)] for gp in q.g]
    if "lnocvt" in cfg.exp: q.g = [[x for x in gp if not x.startswith("v_cvt")] for gp in q.g]
    q.put(-3, "s_sub_u32 s34, s34, 1")
    q.put(-1, "s_cmp_lg_u32 s34, 0"); q.put(-1, "s_cbranch_scc1 L_loop")
    q.emit(a)
    a.l = a.l[:body0] + [x.split(" ;@")[0] for x in a.l[body0:]]
    body = a.l[body0:]
    b = Asm(); b.stamps = a.stamps
    if cfg.uni:
        for gp in range(104, IEND): b(f"buffer_dummy ;@seg{gp//8}" + ("k" if gp >= 120 and gp % 2 == 0 else ""))
    else:
        for gp in range(104, 130 - cfg.lag): b(f"buffer_dummy ;@seg{gp//8}" + ("k" if gp % 8 < 4 else ""))
    q = Seq()
    if "nowo" in cfg.exp: b(f"s_mov_b32 s{SWO+2}, 0")
    for x in stamp_l(b, cfg, "t26"): b(x)
    sts = {j: attn_tile(cfg, q, j, "final") for j in range(26, 30)}
    if cfg.uni:
        rest = [(0, n_) for n_ in range(IEND // 2, 64)] + [(1, n_) for n_ in range(IEND // 2, 64)]
        p = sts[26][0] + 2
        for kv_, n_ in rest:
            d = 4096 * (n_ - IEND // 2)
            lst = [f"s_add_u32 s53, s33, {d}", f"s_and_b32 m0, s53, 0xffff"] + (["s_or_b32 m0, m0, 0x10000"] if kv_ else []) + \
                  [dma(VDA if kv_ else KDA, SV if kv_ else SK, "s53", 0, cfg.kvflags) + f" ;@seg{n_>>2}" + ("k" if not kv_ and n_ >= 60 else "")]
            pp_ = max(p, sts[26][0] + 3)
            while q.slots(pp_) >= 2 and not cfg.ucl: pp_ += 1
            q.place(lst, [pp_]); p = max(p + cfg.urest, pp_ + (5 if not cfg.ucl else (3 if not kv_ and n_ < 63 else 4))); KVEND = pp_
    def wpos(st, half):
        return [st[4*half] + 1, st[4*half+1] + 8 if half == 0 else st[5] + 1, st[4*half+2] + (7 if half == 0 else 1), st[4*half+3] + 1]
    if cfg.wsched == 0:
        for j, (t0, t1) in {26: (0, 1), 27: (2, 3), 28: (4, 5), 29: (10, 6)}.items():
            st = sts[j]
            q.place(wdma(cfg, t0), [st[1] + 8, st[2] + 7, st[3] + 1, st[3] + 5])
            q.place(wdma(cfg, t1), [st[5] + 8, st[6] + 1, st[6] + 5, st[7] + 5])
    elif cfg.wsched >= 3:
        pass
    elif cfg.wsched == 2:
        st = sts[26]
        if cfg.uni and cfg.ucl:
            assert KVEND < st[4] - 3
            q.place(wdma(cfg, 0), [st[4] + 1, st[5] + 1, st[5] + 8, st[7] + 1])
        elif cfg.uni:
            st = sts[27]
            assert KVEND < st[0] - 6
            q.place(wdma(cfg, 0), [st[0] + 1, st[1] + 3, st[2] + 1, st[3] + 1])
            q.place(wdma(cfg, 1), [st[4] + 1, st[5] + 3, st[6] + 1, st[7] + 1])
            st = sts[28]
            q.place(wdma(cfg, 2), [st[0] + 1, st[1] + 1, st[1] + 8, st[2] + 5])
            q.place(wdma(cfg, 5), [st[3] + 3, st[3] + 5, st[3] + 7, st[4] + 1])
            q.place(wdma(cfg, 6), [st[5] + 8, st[6] + 1, st[6] + 5, st[7] + 5])
        else: q.place(wdma(cfg, 0), [st[2] + 7, st[4] + 1, st[5] + 8, st[7] + 1])
        if cfg.wv:
            st = sts[29]
            q.place(wdma(cfg, 6), [st[0] + 5, st[1] + 8, st[2] + 7, st[3] + 5])
            q.place(wdma(cfg, 4), [st[4] + 5, st[4] + 7, st[5] + 3, st[5] + 7])
            q.place(wdma(cfg, 7), [st[6] + 5, st[6] + 7, st[7] + 3, st[7] + 5])
        for j, (t0, t1) in (({27: (1, 5), 28: (2, 6), 29: (3, 7)} if not cfg.wv else {27: (1, 5), 28: (2, 3)}) if not cfg.uni or cfg.ucl else {29: (3, 7)}).items():
            st = sts[j]
            q.place(wdma(cfg, t0), [st[0] + 5, st[1] + 8, st[2] + 7, st[3] + 5])
            q.place(wdma(cfg, t1), [st[5] + 8, st[6] + 1, st[6] + 5, st[7] + 5])
    else:
        st = sts[27]
        q.place(wdma(cfg, 0), [st[5] + 8, st[6] + 1, st[6] + 5, st[7] + 5])
        st = sts[28]
        q.place(wdma(cfg, 1), [st[0] + 5, st[0] + 7, st[1] + 1, st[1] + 3])
        q.place(wdma(cfg, 2), [st[2] + 1, st[2] + 7, st[3] + 1, st[3] + 5])
        q.place(wdma(cfg, 3), [st[5] + 8, st[6] + 1, st[6] + 5, st[7] + 5])
        st = sts[29]
        q.place(wdma(cfg, 4), [st[0] + 5, st[0] + 7, st[1] + 1, st[1] + 3])
        q.place(wdma(cfg, 5), [st[2] + 1, st[2] + 3, st[2] + 5, st[2] + 7])
        q.place(wdma(cfg, 10), [st[3] + 5, st[3] + 7, st[4] + 1, st[4] + 3])
        q.place(wdma(cfg, 6), [st[5] + 8, st[6] + 1, st[6] + 5, st[7] + 5])
    if cfg.sig == "line": q.put(sts[26][3] + 1, "global_load_dword v255, v0, s[46:47] sc1 ;@arr")
    if cfg.tlb:
        so = ["s_mul_i32 s52, s43, 240", "s_mul_i32 s53, s54, 80", "s_add_u32 s52, s52, s53", "s_mul_i32 s52, s52, 1280", "s_lshl_b32 s53, s55, 7", "s_add_u32 s52, s52, s53"]
        st = sts[27]
        for k, x in enumerate(so): q.g[st[4] + 2 + k].insert(0, x)
        sd = srd(SOUT, 58, "s52", 79 * 1280 + 128)
        q.g[st[4] + 8][0:0] = sd[:2]; q.g[st[5]][0:0] = sd[2:]
        q.put(st[5] + 1, f"buffer_load_dword v16, off, s[{SOUT}:{SOUT+3}], 0")
        q.put(st[5] + 3, f"buffer_load_dword v16, off, s[{SO}:{SO+3}], 0")
        q.put(st[5] + 5, f"buffer_load_dword v16, off, s[{SOR}:{SOR+3}], 0")
    if cfg.wsched < 3:
        st = sts[28]
        q.g[st[5] + 8].insert(0, "WAITVM w0")
        q.g[sts[29][4]].insert(0, "WAITVM w1")
        for p, r in zip([st[5] + 8, st[6] + 1, st[6] + 3, st[6] + 5, st[6] + 7, st[7] + 1, st[7] + 1, st[7] + 3], wreads(0)): q.put(p, r)
        k = q.g[st[8] - 2].index("s_waitcnt lgkmcnt(0)"); q.g[st[8] - 2][k] = "s_waitcnt lgkmcnt(8)"
        st = sts[29]
        q.put(st[1] + 7, "s_waitcnt lgkmcnt(10)")
        for p, r in zip([st[4] + 1, st[4] + 5, st[5] + 1, st[5] + 5, st[5] + 8, st[6] + 1, st[6] + 3, st[6] + 5], wreads(1)): q.put(p, r)
        k = q.g[st[7]].index("s_waitcnt lgkmcnt(0)"); q.g[st[7]][k] = "s_waitcnt lgkmcnt(4)"
    st = sts[29]
    for p, r in zip([st[7] + k for k in (1, 1, 3, 5, 7, 8, 8)] + [st[8]], [kread(1, 3, 1, kt, ks) for kt in range(2) for ks in range(4)]):
        if p < st[8]: q.put(p, r)
        else: lastk = r
    for x in stamp_l(b, cfg, "t30"): q.put(len(q.m) - 1, "!" + x)
    if cfg.w3: q.put(len(q.m) - 1, "!L_sec1:")
    job = lambda k: (k >> 1, k & 1, k & 3)
    F = []
    for k in range(8):
        u, tb, sl = job(k)
        F.append(q.add(qk(u, tb, sl=sl)))
        if k < 2: F.append(q.add(pv(2 + k, 1)))
        else:
            u, tb, sl = job(k - 2); F.append(q.add(pv(u, tb, sl=sl)))
    for k in (6, 7):
        u, tb, sl = job(k); F.append(q.add(pv(u, tb, sl=sl)))
    F.append(len(q.m))
    sm_half(q, F[0], 3, 1)
    for k in range(8):
        sm_half(q, F[2 * k + 1], k & 3, 0); sm_half(q, F[2 * k + 2], k & 3, 1)
    q.put(F[0] + 1, lastk)
    v30 = [vread(0, 3, 0, dt, e) for dt in range(8) for e in range(2)]
    v31 = [vread(1, 3, 1, dt, e) for dt in range(8) for e in range(2)]
    if not cfg.split15:
        for p, r in zip([F[0] + k for k in (1, 3, 5, 5, 7)] + [F[1] + k for k in (1, 1, 3, 5, 5, 7)] + [F[2] + k for k in (1, 1, 3, 5, 5)], v30): q.put(p, r)
        q.put(F[1] + 8, "s_waitcnt lgkmcnt(10)")
        for p, r in zip([F[4] + k for k in (1, 1, 3, 5, 5, 7)] + [F[5] + k for k in (1, 1, 3, 5, 5, 7, 8, 8)] + [F[6] + k for k in (1, 1)], v31): q.put(p, r)
        q.put(F[4], "s_waitcnt lgkmcnt(0)")
        q.place(wdma(cfg, 11), [F[2] + 7, F[3] + 1, F[3] + 3, F[3] + 5])
        q.place(wdma(cfg, 7), [F[5] + 3, F[5] + 7, F[6] + 3, F[6] + 5])
    else:
        q.put(F[1] + 8, "WAITVM seg15 lgkmcnt(0)"); q.put(F[1] + 8, "s_barrier")
        for p, r in zip([F[2] + k for k in (1, 1, 3, 5, 5, 7)] + [F[3] + k for k in (1, 1, 3, 5, 5, 7, 8, 8)] + [F[4] + k for k in (1, 1)], v30): q.put(p, r)
        for p, r in zip([F[4] + k for k in (3, 5, 5, 7)] + [F[5] + k for k in (1, 1, 3, 5, 5, 7, 8, 8)] + [F[6] + k for k in (1, 1, 3, 3)], v31): q.put(p, r)
        q.put(F[5] - 1, "s_waitcnt lgkmcnt(3)")
        if cfg.wsched >= 3:
            pass
        elif cfg.wv:
            q.place(wdma(cfg, 10), [F[0] + 5, F[0] + 7, F[1] + 3, F[1] + 7] if cfg.wv == 1 else [F[2] + 4, F[2] + 6, F[3], F[3] + 2])
            q.place(wdma(cfg, 11), [F[4], F[4] + 2, F[4] + 4, F[4] + 6])
        elif cfg.wsched == 2:
            q.place(wdma(cfg, 4), [F[0] + 5, F[0] + 7, F[1] + 3, F[1] + 7])
            q.place(wdma(cfg, 10), [F[2] + 4, F[2] + 6, F[3], F[3] + 2])
            q.place(wdma(cfg, 11), [F[4], F[4] + 2, F[4] + 4, F[4] + 6])
        else:
            q.place(wdma(cfg, 11), [F[0] + 5, F[0] + 7, F[1] + 1, F[1] + 3])
            q.place(wdma(cfg, 7), [F[2], F[2] + 4, F[3] + 2, F[3] + 6])
    q.put(F[7] - 1, "s_waitcnt lgkmcnt(0)"); q.put(F[7] - 1, "s_barrier")
    issued = set(range(12))
    if cfg.wsched < 3:
        q.place(wdma(cfg, 8), [F[7] + 5, F[7] + 7, F[7] + 8, F[8] + 1])
        q.place(wdma(cfg, 9), [F[8] + 7, F[9] + 1, F[9] + 3, F[9] + 5])
    else:
        issued = set()
        free = {0: 0, 4: 0, 8: 0, 9: 0, 1: sts[27][4], 5: sts[27][4], 2: sts[29][4], 6: sts[29][4], 3: F[7], 7: F[7]}
        p = sts[26][4] + 1 + cfg.wdelay
        for t in range(cfg.wn):
            sp = cfg.wp if t < 5 else cfg.wp2
            p = max(p, free[UNIT[t]] + 6)
            ps = []
            for k in range(4):
                pp_ = p
                while t < 5 and q.slots(pp_) >= 2: pp_ += 1
                ps.append(pp_); p = max(p + sp, pp_ + (1 if k < 3 else 6))
            assert ps[-1] < F[18], (t, ps)
            q.place(wdma(cfg, t), ps); issued.add(t)
    if "nost" in cfg.exp: q.g[F[4]].insert(0, f"s_mov_b32 s{SO+2}, 0")
    def onorm(u, store=True):
        o = [f"v_accvgpr_read_b32 v16, a{L_(u)}"]
        if u in cfg.addu:
            t = LA[u]
            o += [f"v_mov_b32 v17, v{t}", f"v_permlane32_swap_b32 v{t}, v17", f"v_add_f32 v{t}, v{t}, v17",
                  f"v_mov_b32 v17, v{t}", f"v_permlane16_swap_b32 v{t}, v17", f"v_add_f32 v{t}, v{t}, v17", f"v_add_f32 v16, v16, v{t}"]
        o += ["v_cmp_ngt_f32 vcc, s36, v16", "v_rcp_f32 v16, v16", "s_or_b64 s[50:51], s[50:51], vcc", "v_mov_b32 v17, v16"]
        for m in range(4):
            t = O_(u, 0) + 4 * m
            o += scale_pack(cfg, O_(u, 2 * m), t, ("v16", "v[16:17]"), cfg.opk == 1 or (cfg.opk == 2 and u == 3))
            if store: o += ostore(u)[m:m + 1]
        if store: o += ostore(u)[4:]
        return o
    def ostore(u):
        return [f"buffer_store_dwordx4 {vr(O_(u,0)+4*m,4)}, v15, s[{SO}:{SO+3}], s30 offen offset:{1024*m} {cfg.oflags}".rstrip() + " ;@ost" for m in range(4)] + ["s_add_u32 s30, s30, 131072"]
    for k, x in enumerate([f"s_mov_b32 s36, {f32(cfg.lthr)}", "s_mov_b64 s[50:51], 0", "s_lshl_b32 s30, s3, 19", "s_lshl_b32 s31, s29, 12", "s_add_u32 s30, s30, s31"]):
        q.g[F[4] + 2 + k].insert(0, x)
    for k in (2, 4, 6, 8, 10, 12, 14, 16):
        for x in stamp_l(b, cfg, f"F{k}"): q.put(F[k] - 1, "!" + x)
    if cfg.epark:
        def epark(t, p0, refill_at):
            q.g[p0].insert(0, f"WAITVM w{t}")
            for k, r in enumerate(wreads(t)): q.put(p0 + 2 * (k // 2), r)
            if refill_at:
                q.place(wdma(cfg, t + 10), refill_at)
                q.g[refill_at[0]].insert(0, f"WAITLG p{t}")
        epark(2, F[7] + 1, [F[10] + 3, F[10] + 5, F[10] + 7, F[11] + 1])
        epark(3, F[9] + 1, [F[11] + 7, F[11] + 8, F[12] + 1, F[12] + 3])
        epark(5, F[11] + 2, [F[13] + 1, F[13] + 3, F[13] + 5, F[13] + 7])
        epark(6, F[13] + 2, [F[14] + 5, F[14] + 7, F[15] + 1, F[15] + 3])
        epark(7, F[14] + 1, [F[16] + 1, F[16] + 3, F[16] + 5, F[16] + 7])
        epark(4, F[15] + 2, [F[17] + 5, F[17] + 6, F[17] + 7, F[17] + 8])
        epark(8, F[16] + 2, None)
        epark(9, F[17] + 1, None)
    if cfg.fsig:
        for t, p0 in ((2, F[13] + 2), (3, F[14] + 1), (4, F[15] + 2), (5, F[16] + 1)):
            q.g[p0].insert(0, f"WAITVM w{t}")
            for k, r in enumerate(wreads(t)): q.put(p0 + 2 * (k // 2), r)
    if cfg.early == 1:
        e = q.stream(onorm(0), F[8] + 4, cap=cfg.ncap)
        e = q.stream(onorm(1), max(e, F[12] + 4), cap=cfg.ncap)
        e = q.stream(onorm(2), max(e, F[16] + 4), cap=cfg.ncap + 2)
    if cfg.early >= 2:
        e = q.stream(onorm(0, False), F[8] + 4, cap=cfg.ncap)
        e = q.stream(onorm(1, False), max(e, F[12] + 4), cap=cfg.ncap)
        e = q.stream(onorm(2, False), max(e, F[16] + 4), cap=cfg.ncap + 2)
        if cfg.early == 3:
            for k, x in enumerate(ostore(0) + ostore(1)): q.put(min(F[16] + 8 + k, F[18] - 1), x if kind(x) == "vm" else "!" + x)
    q.emit(b)
    if cfg.early == 2: b.ext(ostore(0) + ostore(1) + ostore(2))
    if cfg.early == 3: b.ext(ostore(2))
    if not cfg.early: b.ext(onorm(0) + onorm(1) + onorm(2))
    stamp(b, cfg, "loopend")
    if "nowo" in cfg.exp: b(f"s_mov_b32 s{SWO+2}, {WOSZ}")
    def park(t): return [f"WAITVM w{t}"] + wreads(t)
    def refill(t): return with_nop(wdma(cfg, t + 10))
    DU = UNIT[9 if cfg.epark else 2]
    if cfg.fsig:
        on3 = onorm(3)
        k3 = on3.index("s_or_b64 s[50:51], s[50:51], vcc") + 1
        b.ext(on3[:k3])
        if cfg.force_fb: b("s_mov_b64 s[50:51], -1")
        b("s_cmp_lg_u64 s[50:51], 0")
        b("s_cselect_b32 s52, 1, 0")
        b(f"s_add_u32 s53, s40, {16384*DU}")
        b("v_mov_b32 v20, s52")
        b("v_mov_b32 v21, s53")
        b("WAITLG p2")
        b("ds_write_b32 v21, v20")
        b.ext(on3[k3:])
        stamp(b, cfg, "stored")
        b("v_and_b32 v18, 3, v1")
        b("v_lshlrev_b32 v18, 12, v18")
        b(f"v_add_u32 v18, {16384*DU}, v18")
        b("s_waitcnt lgkmcnt(0)")
        b("s_barrier")
        b("ds_read_b32 v20, v18")
        b.ext(refill(3) + refill(4))
        b("s_waitcnt lgkmcnt(0)")
        b("v_cmp_ne_u32 vcc, 0, v20")
        b("s_cmp_eq_u32 s35, 0")
        b("s_cselect_b64 s[52:53], vcc, 0")
        b("s_cmp_lg_u64 s[52:53], 0")
        b("s_cbranch_scc1 L_exact")
        if cfg.fsig == 2: b.ext(park(6) + park(7))
    else:
        if cfg.wsched >= 3:
            DU = UNIT[0] if cfg.wn else UNIT[9]
            late = [t for t in range(10) if t not in issued]
            for t in late[:3]:
                if UNIT[t] != DU: b.ext(with_nop(wdma(cfg, t))); issued.add(t)
            if cfg.wn: b.ext(park(0))
        elif cfg.epark: b.ext(park(10) + park(11))
        else: b.ext(park(2) + park(3))
        b.ext(onorm(3))
        stamp(b, cfg, "stored")
        if cfg.force_fb: b("s_mov_b64 s[50:51], -1")
        b("s_cmp_lg_u64 s[50:51], 0")
        b("s_cselect_b32 s52, 1, 0")
        b(f"s_add_u32 s53, s40, {16384*DU}")
        b("v_mov_b32 v16, s52")
        b("v_mov_b32 v17, s53")
        b("v_and_b32 v18, 3, v1")
        b("v_lshlrev_b32 v18, 12, v18")
        b(f"v_add_u32 v18, {16384*DU}, v18")
        b("s_waitcnt lgkmcnt(0)")
        b("ds_write_b32 v17, v16")
        if cfg.wsched >= 3: pass
        elif cfg.epark: b.ext(refill(8) + park(12) + park(13))
        else: b.ext(refill(3) + park(4) + park(5))
        b("s_waitcnt lgkmcnt(0)")
        b("s_barrier")
        b("ds_read_b32 v20, v18")
        parked = [0] if cfg.wsched >= 3 and cfg.wn else []
        if cfg.wsched >= 3:
            for t in range(1, min(cfg.wn, 6)): b.ext(park(t)); parked.append(t)
        elif cfg.epark: b.ext(refill(10))
        else: b.ext(refill(4) + park(6) + park(7))
        b("s_waitcnt lgkmcnt(0)")
        b("v_cmp_ne_u32 vcc, 0, v20")
        b("s_cmp_eq_u32 s35, 0")
        b("s_cselect_b64 s[52:53], vcc, 0")
        b("s_cmp_lg_u64 s[52:53], 0")
        b("s_cbranch_scc1 L_redo" if cfg.epark else "s_cbranch_scc1 L_exact")
        if not cfg.sigfirst: b.ext(park(8) + park(9) + park(10) + park(11))
    if cfg.sig == "line":
        b("s_lshl_b32 s52, s28, 5")
        b("s_add_u32 s52, s52, s29")
        b("s_lshl_b32 s52, s52, 7")
        b(f"s_add_u32 s52, s52, {FOFF}")
    else:
        b("s_lshl_b32 s52, s28, 2")
        b("s_lshr_b32 s53, s29, 3")
        b("s_add_u32 s52, s52, s53")
        b("s_lshl_b32 s52, s52, 3")
    b("v_mov_b32 v16, s52")
    b("v_mov_b32 v17, 1")
    if cfg.wsched >= 3:
        for t in parked[1:3]: b.ext(refill(t)); issued.add(t + 10)
    elif cfg.epark: b.ext(refill(11))
    elif cfg.pre5: b.ext(refill(5))
    b("WAITVM ost")
    b("s_barrier")
    b("s_cmp_lg_u32 s3, 0")
    b("s_cbranch_scc1 L_nosig")
    b("s_mov_b64 exec, 1")
    if cfg.sig == "line": b("global_store_dword v16, v17, s[48:49] sc1 ;@skip")
    else: b("global_atomic_add v16, v17, s[46:47] sc1 ;@skip")
    b("s_mov_b64 exec, -1")
    b("L_nosig:")
    stamp(b, cfg, "signaled")
    b("s_lshr_b32 s52, s2, 3")
    b("s_cmp_ge_u32 s52, 30")
    b("s_cbranch_scc1 L_fin")
    if cfg.wsched >= 3:
        for t in range(10):
            if t not in issued: b.ext(with_nop(wdma(cfg, t))); issued.add(t)
        for t in parked:
            if t + 10 not in issued: b.ext(refill(t)); issued.add(t + 10)
        prev = None
        for t in range(12):
            if t in parked: continue
            b.ext(park(t))
            if prev is not None: b(f"WAITLG p{prev}"); b.ext(refill(prev))
            prev = t
        b("s_waitcnt lgkmcnt(0)")
        b.ext(refill(prev))
    elif cfg.epark:
        b.ext(refill(9) + refill(12))
    elif cfg.fsig:
        b.ext(refill(2) + ([] if cfg.fsig == 2 else park(6) + park(7)) + park(8) + park(9))
        b("WAITLG p7")
        b.ext(refill(6) + park(10) + park(11) + refill(7))
        b("s_waitcnt lgkmcnt(0)")
        for t in range(8, 12): b.ext(refill(t))
    elif cfg.sigfirst:
        b.ext(refill(2) + ([] if cfg.pre5 else refill(5)) + park(8) + park(9) + refill(6) + park(10) + park(11) + refill(7))
        b("s_waitcnt lgkmcnt(0)")
        for t in range(8, 12): b.ext(refill(t))
    else:
        b("s_waitcnt lgkmcnt(0)")
        b.ext(refill(2))
        for t in range(5, 12): b.ext(refill(t))
    b("s_lshl_b32 s52, s43, 2")
    b("s_add_u32 s52, s52, s3")
    if cfg.sig == "line":
        b("s_lshl_b32 s52, s52, 10")
        b(f"s_add_u32 s52, s52, {FOFF}")
        b("v_and_b32 v16, 7, v1")
        b("v_lshlrev_b32 v16, 7, v16")
        b("v_add_u32 v16, s52, v16")
        pbase = "s[48:49]"
    else:
        b("s_lshl_b32 s52, s52, 3")
        b("v_mov_b32 v16, s52")
        pbase = "s[46:47]"
    prev = 13 if cfg.epark else None
    for t in range(14 if cfg.epark else 12, cfg.R):
        if cfg.epoll and t == max(cfg.epoll, 14 if cfg.epark else 0): b(f"global_load_dword v17, v16, {pbase} sc1 ;@ep")
        b.ext(park(t))
        if prev is not None and prev + 10 < cfg.X:
            b("s_waitcnt lgkmcnt(8)")
            b.ext(refill(prev))
        prev = t
    b("s_waitcnt lgkmcnt(0)")
    if prev + 10 < cfg.X: b.ext(refill(prev))
    stamp(b, cfg, "parked")
    b("s_mov_b32 s34, 0x100000")
    want = 1 if cfg.sig == "line" else 8
    cmpi = "v_cmp_ne_u32 vcc, 1, v17" if cfg.sig == "line" else "v_cmp_gt_u32 vcc, 8, v17"
    if cfg.sig == "line":
        b("WAITVM arr")
        b("v_cmp_gt_u32 vcc, 8, v255")
        b("s_cbranch_vccz L_cleared")
        b("L_wclr:")
        b("global_load_dword v255, v0, s[46:47] sc1 ;@skip")
        b("s_waitcnt vmcnt(0)")
        b("v_cmp_gt_u32 vcc, 8, v255")
        b("s_sub_u32 s34, s34, 1")
        b("s_cselect_b64 vcc, 0, vcc")
        b("s_cbranch_vccnz L_wclr")
        b("s_branch L_poll")
        b("L_cleared:")
    if cfg.epoll:
        b("WAITVM ep")
        b(cmpi)
        b("s_cbranch_vccz L_ready")
    b("L_poll:")
    b(f"global_load_dword v17, v16, {pbase} sc1")
    b("s_waitcnt vmcnt(0)")
    b(cmpi)
    b("s_sub_u32 s34, s34, 1")
    b("s_cselect_b64 vcc, 0, vcc")
    b("s_cbranch_vccnz L_poll")
    b("L_ready:")
    stamp(b, cfg, "polled")
    worder = [x.split(";@")[1] for x in b.l if ";@w" in x and kind(x) == "vm"]
    check_setup(b.l, "tail")
    a.l += fix(resolve_waits(b.l))
    c = Asm(); c.stamps = a.stamps
    for t_ in worder: c(f"buffer_dummy ;@{t_}")
    ACC = lambda i, nt: 32 + 16 * i + 4 * nt
    OFB = [112, 132, 152, 172, 192]
    OF = lambda t, i: OFB[t % cfg.DO] + 4 * i
    def oload(t):
        return [x + f" ;@o{t}" for x in [f"s_add_u32 s30, s41, {t}", "s_lshl_b32 s30, s30, 10", "s_and_b32 s30, s30, 0x7fff"]] + \
            tag([f"buffer_load_dwordx4 {vr(OF(t,i),4)}, v{OAL[i]}, s[{SOR}:{SOR+3}], s30 offen {cfg.orflags}".rstrip() for i in range(5)], f"o{t}")
    for t in range(cfg.DO - 1): c.ext(oload(t))
    if not cfg.tlb:
        c("s_mul_i32 s52, s43, 240")
        c("s_mul_i32 s53, s54, 80")
        c("s_add_u32 s52, s52, s53")
        c("s_mul_i32 s52, s52, 1280")
        c("s_lshl_b32 s53, s55, 7")
        c("s_add_u32 s52, s52, s53")
        c.ext(srd(SOUT, 58, "s52", 79 * 1280 + 128))
    for j in range(1, 4):
        c(f"s_add_u32 s52, s3, {j}")
        c("s_and_b32 s52, s52, 3")
        c("s_mul_i32 s52, s52, 15360")
        c(f"v_add_u32 v{240+j}, s52, v15")
    c("s_mul_i32 s52, s3, 15360")
    c("v_add_u32 v240, s52, v15")
    c("v_mul_u32_u24 v244, 1280, v2")
    c("v_lshl_add_u32 v244, v3, 3, v244")
    nextw = cfg.X
    q = Seq()
    NL = cfg.NL
    for t in range(32 - NL):
        mf = []
        for i in range(5):
            for nt in range(4):
                d = vr(ACC(i, nt), 4)
                mf.append(f"{MF} {d}, {WS(t,nt)}, {vr(OF(t,i),4)}, {'0' if t == 0 else d}")
        q.raw([f"WAITVM o{t} lgkmcnt(0)"] + (stamp_l(c, cfg, f"p{t}") if t in (1, 4, 8, 16, 24) else []))
        g = q.add(mf)
        if t + cfg.DO - 1 < 32: q.place(oload(t + cfg.DO - 1), [g + 4, g + 6, g + 9, g + 12, g + 15])
        tr = t + cfg.R - 1
        if t >= 1 and tr < 32:
            q.g[g].insert(0, f"WAITVM w{tr}")
            for k, r in enumerate(wreads(tr)): q.put(g + 1 + k, r)
        if nextw < 32 and nextw - 10 <= t + cfg.R - 2 and (nextw - cfg.X) * cfg.wev <= t:
            q.place(wdma(cfg, nextw), [g + 10, g + 13, g + 16, g + 18])
            nextw += 1
        if t == 20: q.put(g + 19, "s_barrier")
    assert nextw == 32
    q.raw([f"WAITVM o{32-NL} lgkmcnt(0)"])
    wr = lambda i, j: f"ds_write_b128 v{240+j}, {vr(ACC(i,j),4)} offset:{5120*(j-1)+1024*i}"
    for i in range(5):
        mf = []
        for j in (1, 2, 3, 0):
            d = vr(ACC(i, j), 4)
            for t in range(32 - NL, 32):
                mf.append(f"{MF} {d}, {WS(t,j)}, {vr(OF(t,i),4)}, {d}")
        g = q.add(mf)
        if i == 0:
            for k in range(1, NL): q.g[g + k - 1].append(f"!WAITVM o{32-NL+k}")
        else:
            for j in range(1, 4): q.put(g + 2 + NL * (j - 1), wr(i - 1, j))
    RB = lambda i: 112 + 12 * i if i < 3 else 192 + 12 * (i - 3)
    rd = lambda i: [f"ds_read_b128 {vr(RB(i)+4*j,4)}, v240 offset:{5120*j+1024*i} ;@r{i}" for j in range(3)]
    def fin(i):
        bb = RB(i); ac = ACC(i, 0); o = [f"WAITLG r{i}"]
        for r in range(0, 4, 2):
            o += [f"v_pk_add_f32 {vr(ac+r,2)}, {vr(ac+r,2)}, {vr(bb+r,2)}", f"v_pk_add_f32 {vr(bb+4+r,2)}, {vr(bb+4+r,2)}, {vr(bb+8+r,2)}"]
        for r in range(0, 4, 2):
            o += [f"v_pk_add_f32 {vr(ac+r,2)}, {vr(ac+r,2)}, {vr(bb+4+r,2)}"]
        o += [f"v_cvt_pk_bf16_f32 v{ac}, v{ac}, v{ac+1}", f"v_cvt_pk_bf16_f32 v{ac+1}, v{ac+2}, v{ac+3}",
              f"buffer_store_dwordx2 {vr(ac,2)}, v244, s[{SOUT}:{SOUT+3}], s52 offen {cfg.outflags}".rstrip(), "s_add_u32 s52, s52, %d" % (16 * 1280)]
        return o
    if cfg.fin2:
        assert cfg.DO == 4 and NL == 2
        q.g[g + 1].insert(0, "s_barrier"); q.g[g + 1].insert(0, "s_waitcnt lgkmcnt(0)")
        for k, r in enumerate(rd(0) + rd(1) + rd(2)): q.put(g + 1 + min(k // 2 + (k > 3), 6), r)
        q.raw(stamp_l(c, cfg, "projdone") + ["s_lshl_b32 s52, s3, 5", wr(4, 1), wr(4, 2)])
        q.emit(c)
        c.ext(fin(0)[:5]); c(wr(4, 3)); c.ext(fin(0)[5:] + fin(1))
        c("s_waitcnt lgkmcnt(0)")
        c("s_barrier")
        c.ext(rd(3) + rd(4) + fin(2) + fin(3) + fin(4))
    else:
        q.raw(stamp_l(c, cfg, "projdone") + ["s_nop 1", wr(4, 1), wr(4, 2), "s_nop 1", wr(4, 3)])
        q.emit(c)
        c("s_waitcnt lgkmcnt(0)")
        c("s_barrier")
        for i in range(5): c.ext(rd(i))
        c("s_lshl_b32 s52, s3, 5")
        for i in range(5): c.ext(fin(i))
    check_setup(c.l, "proj")
    a.l += fix(resolve_waits(c.l))
    a("L_fin:")
    if cfg.stamps or cfg.calib:
        a("s_waitcnt vmcnt(0)")
        stamp(a, cfg, "end")
    if cfg.calib:
        a("s_waitcnt lgkmcnt(0)")
        a("s_or_b32 s52, s2, s3")
        a("s_cmp_lg_u32 s52, 0")
        a("s_cbranch_scc1 L_end")
        a(f"s_sub_u32 s52, s{62+4*cfg.cal_j}, s{62+4*cfg.cal_i}")
        a("s_lshl_b32 s52, s52, 2")
        a("s_add_u32 s52, s52, s62")
        a("L_spin:")
        a("s_memrealtime s[56:57]")
        a("s_waitcnt lgkmcnt(0)")
        a("s_sub_u32 s56, s56, s52")
        a(f"s_cmp_lt_i32 s56, {cfg.calib*100}")
        a("s_cbranch_scc1 L_spin")
    if cfg.stamps:
        stamps_out(a, cfg, 64 << 20)
    a("L_end:")
    a("s_endpgm")
    if cfg.w3:
        i0, i1 = a.l.index("L_sec0:"), a.l.index("L_sec1:")
        dead_v = set(("v", r) for r in list(range(128, 160)) + list(range(184, 192)) + list(range(204, 208)) + list(range(220, 224)))
        dead_a = set(("a", r) for r in range(48, 64))
        sec = []; skip = False
        for x in a.l[i0 + 1:i1]:
            if x == "s_and_b32 s52, s2, 31": skip = True
            if skip:
                if x == "L_noarr:": skip = False
                continue
            if x.endswith(":") or x.startswith(".") or x.startswith(";"):
                if x == "L_loop:":
                    z = [f"v_mov_b32 v{r}, 0" for _, r in sorted(dead_v)] + [f"v_accvgpr_write_b32 a{r}, 0" for r in list(range(48, 64)) + list(range(204, 208))]
                    k = sec.index(".p2align 6"); sec[k:k] = z
                    w3body0 = len(sec) + 1
                    x = "L_loop3:"
                sec.append(x); continue
            if x.startswith("s_nop"): continue
            ins = parse(x)
            if ins["k"] == "mfma" and (ins["D"] & dead_v or ins["Dtok"] == "a[204:207]"): continue
            if ins["k"] == "valu" and (ins["wr"] & (dead_v | dead_a) or ins["rd"] & set(("v", r) for r in range(128, 160))): continue
            if x == "s_cbranch_scc1 L_loop": x = "s_cbranch_scc1 L_loop3"
            sec.append(x)
        sec = fix(sec)
        l0 = sec.index("L_loop3:"); l1 = sec.index("s_cbranch_scc1 L_loop3")
        assert check(sec[l0:l1 + 1] * 2, "w3-loop") == 0 and check(sec + a.l[i1:i1 + 40], "w3-exit") == 0 and check(a.l[i0 - 30:i0] + sec, "w3-entry") == 0
        a("L_w3:")
        a.ext(sec)
        a("s_branch L_sec1")
    if cfg.epark:
        a("L_redo:")
        a("s_mov_b32 s35, 1")
        a("s_lshl_b32 s52, s3, 6")
        a("v_or_b32 v0, s52, v1")
        a("s_waitcnt vmcnt(0) lgkmcnt(0)")
        a("s_barrier")
        a("s_branch L_restart")
    a("L_exact:")
    ex0 = len(a.l)
    a("s_mov_b32 s35, 1")
    a(f"s_mov_b32 s{SK+2}, {KVBYTES}")
    a(f"s_mov_b32 s{SV+2}, {KVBYTES}")
    a("s_mov_b32 s33, s40" if not cfg.uni else "s_lshl_b32 s33, s3, 10")
    a("s_waitcnt vmcnt(0) lgkmcnt(0)")
    a("L_exact_loop:")
    a("s_barrier")
    if cfg.uni:
        for n_ in range(4): a.ext(["s_and_b32 m0, s33, 0x3fff", "s_nop 0", dma(KDA, SK, "s33", 0, cfg.kvflags), "s_add_u32 s33, s33, 4096"])
    else:
        a.ext(with_nop(kdma(cfg, 0)))
        a(ADV)
    a("s_waitcnt vmcnt(0)")
    a("s_barrier")
    for th in range(2):
        for kt in range(2):
            for ks in range(4): a(kread(0, 0, th, kt, ks))
        a("s_waitcnt lgkmcnt(0)")
        for u in range(4): a.ext(qk(u, 0, True))
        a("s_nop 7")
        for u in range(4):
            s0 = S_(u, 0)
            for r in range(0, 8, 2):
                a(f"v_max3_f32 v{MTR+u}, v{MTR+u}, v{s0+r}, v{s0+r+1}")
    a(f"s_cmp_lt_u32 s33, {KVBYTES}")
    a("s_cbranch_scc1 L_exact_loop")
    a("s_barrier")
    a("s_mov_b32 s33, s40" if not cfg.uni else "s_lshl_b32 s33, s3, 10")
    a.ext([x.split(" ;@")[0] for x in with_nop(sum([piece(cfg, gp, False) if not cfg.uni else upiece(cfg, gp) for gp in range(NP)], []))])
    a("s_waitcnt vmcnt(0)")
    a("s_barrier")
    a.ext(k0r + v0r)
    a("s_waitcnt lgkmcnt(0)")
    a.ext(k1r)
    for u in range(4): a.ext(qk(u, 0, True))
    a.ext(ones)
    a("s_nop 7")
    a.ext(fix(merge(*[fmax(u) for u in range(4)]) + merge(*[fexp(u, 8 if u < 3 else 4) for u in range(4)])))
    a("s_nop 1")
    a.ext(pv(0, 0, True) + pv(1, 0, True))
    a("s_waitcnt lgkmcnt(0)")
    q = Seq(); st1 = attn_tile(cfg, q, 1, "first")
    if cfg.uni:
        q.place(upiece(cfg, NP), [st1[4] + 1]); q.place(upiece(cfg, NP + 1), [st1[6] + 1])
    x1 = Asm()
    for t_ in ["seg1"]: x1("buffer_dummy ;@seg1")
    q.emit(x1)
    a.l += resolve_waits(x1.l)
    a("s_mov_b32 s34, 3")
    a("s_branch L_loop")
    bad = check(a.l[:ex0], "main") + check(body + body, "attn-loop") + check(a.l[ex0:] + body, "exact")
    assert bad == 0
    return a

HEADER = """; Kernarg layout for this problem (64 bytes, ptrs only, base s[0:1]):
;   offset  56: d_ws      [0, 15.7 MB) attention output O as MFMA fragments, [24 MB, +32 KB) hand-off words
;
;     p = exp2(.), o^T += V^T p^T, row sums by an MFMA with a ones operand.  m is the row maximum of the first key tile; if any
;     wave w contracts over heads 8w..8w+7 once their words are set, partial sums meet in LDS.
; @launch grid=(256,1,1) block=(256,1,1) lds=163840"""

def build(cfg):
    k = NAME + "_kernel"
    out = []
    out.append(HEADER)
    out.append('.amdgcn_target "amdgcn-amd-amdhsa--gfx950"')
    out.append(".text")
    out.append(f".globl {k}\n.p2align 8\n.type {k},@function\n{k}:")
    out.append(gen(cfg).text())
    out.append('.section .rodata,"a"')
    out.append(f""".p2align 6
.amdhsa_kernel {k}
  .amdhsa_next_free_vgpr 512
  .amdhsa_next_free_sgpr 102
  .amdhsa_accum_offset 256
  .amdhsa_group_segment_fixed_size 0
  .amdhsa_kernarg_size 64
  .amdhsa_user_sgpr_count 2
  .amdhsa_user_sgpr_kernarg_segment_ptr 1
  .amdhsa_system_sgpr_workgroup_id_x 1
.end_amdhsa_kernel
""")
    return "\n".join(out)

if __name__ == "__main__":
    cfg = Cfg()
    path = sys.argv[1]
    for kv in sys.argv[2:]:
        k, v = kv.split("=", 1)
        old = getattr(cfg, k)
        setattr(cfg, k, type(old)(eval(v)) if isinstance(old, (bool, int, float, tuple)) else v)
    txt = build(cfg)
    open(path, "w").write(txt)
```

```python
import sys, math, struct
from asmlib import *

NAME = "standalone__mha_block_cached__near_ridge"
def f32(x): return struct.unpack("<I", struct.pack("<f", x))[0]
MF = "v_mfma_f32_16x16x32_bf16"

class Cfg:
    kvflags = "nt"
    oflags = "sc1"
    orflags = "sc1"
    xflags = ""
    bflags = ""
    stamps = False
    only = ""
    qspread = 4
    kvpace = 12.0
    lthr = 2.0 ** 40
    force_fb = False
    rot = 5
    rA = 0
    DO = 4
    NL = 2
    joint = 1
    opk = 2
    mfrom = 4
    c0mix = 0
    swarm = 0
    ssig = 0
    c1sp = 30
    qs = 1
    c2p = 8
    c2sp = 50
    qd0 = 99
    qdn = 4
    kvdelay = 0
    trunc = False
    lds_fin = -1
    kvp2 = 0.0
    kvsw = 31
    lds_last = 5
    pad = 0
    prio = 0
    ucl = 0
    uph = 0.3
    fin2 = 1
    mapx = 0
    map3b = 0
    lazy = (40, 104, 150, 190, 243, 292, 341, 390, 448)
    c0same = 0
    roff = 5
    fsig = 2
    bm = 0
    bmi = 0
    wv = 2
    jcap = 2
    uni = 0
    ipre = 32
    upi = 30
    urest = 9
    w3 = 1
    wn = 10
    wp = 17
    wp2 = 4
    wdelay = 0
    R = 19
    epark = 0
    addu = ()
    tlb = 0
    fast0 = 1
    c1first = 0
    pre5 = 1
    early = 1
    cwarm = 1
    wl2 = 0
    wl2f = ""
    lag = 4
    split0 = 0
    wsched = 2
    b1 = 24
    bsp = 48
    split15 = 1
    sigfirst = 1
    outflags = ""
    wpull = 0
    epoll = 15
    touch = ()
    tpos = 52
    tl = 16
    tflags = ""
    tkv = "v"
    dmode = "even"
    xs = (0, 0, 0, 0, 0)
    k0at = 5
    X = 29
    wev = 1.0
    ncap = 3
    sig = "line"
    pkmul = False
    qord = 0
    exp = ""
    calib = 0
    cal_i = 0
    cal_j = 0

O_ = lambda u, dt: 32 + 32 * u + 4 * dt
S_ = lambda u, kt: 160 + 8 * u + 4 * kt
P_ = lambda u: 192 + 4 * u
NM = lambda u: 208 + 4 * u
KRA, VRA, KDA, VDA, MTR = 224, 228, 236, 240, 242
WD = 246
XDA, WDA, XRA, WRA = 192, 200, 204, 210
Q_ = lambda u, m: 16 * u + 4 * m
KF = lambda b, kt, ks: 64 + 32 * b + 16 * kt + 4 * ks
VF = lambda b, dt: 128 + 32 * b + 4 * dt
L_ = lambda u: 192 + 4 * u
ONES = 208
WF = lambda b, s, dt: ar([160, 0, 96][b] + 32 * s + 4 * dt, 4)
WF2 = lambda b, s, dt, e: ar([160, 0, 96][b] + 32 * s + 4 * dt + 2 * e, 2)
XF = lambda b, s, u: vr([224, 64, 160][b] + 16 * s + 4 * u, 4, "aav"[b])
SX, SW, SK, SV, SO = 8, 12, 16, 20, 24
SWO, SOR, SOUT = 8, 12, 4
KVBYTES = 262144
XBASE = [(131072, 147456), (65536, 16384), (32768, 49152)]
WWIN = 81920
WOFF = [32768, 0, 16384]
UNIT = [0, 4, 8, 9, 1, 5, 2, 6, 3, 7]
UNIT2 = [0, 4, 9, 5, 6, 8, 1, 2, 3, 7]
UNIT3 = [0, 4, 9, 1, 2, 8, 5, 6, 3, 7]
WRL = [[28, 29, 30, 31], [250, 251, 252, 253], [7, 8, 9, 10]]
OAL = [4, 5, 13, 14, 254]
WBLK = [224, 240, 64, 80, 96, 112, 128, 144, 160, 176, 208, 192, 0, 16, 32, 48]
WBLK2 = [224, 240, 0, 16, 48, 32, 64, 80, 96, 112, 128, 144, 160, 176, 208, 192]
def WS(t, nt, e=None):
    b = WBLK[t % len(WBLK)]
    f = "a" if b >= 0 else "v"
    return vr(abs(b) + 4 * nt, 4, f) if e is None else vr(abs(b) + 4 * nt + 2 * e, 2, f)
def wreads(t):
    u_ = UNIT[t % 10]
    return [f"ds_read_b64_tr_b16 {WS(t,nt,e)}, v{WRL[u_>>2][nt]} offset:{16384*(u_&3)+2048*e} ;@p{t}" for nt in range(4) for e in range(2)]
FOFF = 24 << 20
WOSZ = 1024 * 1280 - 9 * 128
ORSZ = 4 * 131072 + 32768

class Seq:
    def __init__(self): self.m = []; self.g = []
    def add(self, mfmas):
        n = len(self.m); self.m += mfmas; self.g += [[] for _ in mfmas]; return n
    def raw(self, lines):
        self.m.append(None); self.g.append(["!" + x for x in lines]); return len(self.m) - 1
    def put(self, i, x): self.g[i].append(x)
    def slots(self, i):
        n = 0
        for x in self.g[i]:
            k = kind(x.lstrip("!"))
            if k in ("ds", "vm", "valu"): n += 2 if x.lstrip("!").startswith(TRANS) else 1
        return n
    def place(self, lst, vmpos):
        vmpos = list(vmpos); pend = []; last = None
        for x in lst:
            if kind(x) == "vm":
                p = vmpos.pop(0)
                assert not pend or last is None or p - len(pend) > last, (lst, p, last)
                for k, s in enumerate(reversed(pend)): self.g[p - 1 - k].insert(0, s)
                pend = []; self.g[p].append(x); last = p
            else: pend.append(x)
        for k, s in enumerate(pend): self.g[last + 1 + k].insert(0, s)
    def stream(self, lst, start, cap=2, end=None):
        i = start
        for x in lst:
            c = 2 if x.startswith(TRANS) else (0 if kind(x) == "s" else 1)
            while self.slots(i) + c > cap and (end is None or i < end) and i + 1 < len(self.m): i += 1
            self.g[i].append("!" + x)
        return i
    def emit(self, a): emit_gaps(a, self.m, self.g)

def stamp_l(a, cfg, name):
    if (cfg.stamps or cfg.calib) and (cfg.only == "" or name in cfg.only.split(",") or name in ("start", "end")):
        i = len(a.stamps); a.stamps.append(name)
        assert i < 10
        return [f"s_memtime s[{60+4*i}:{61+4*i}]", f"s_memrealtime s[{62+4*i}:{63+4*i}]"]
    return []
def stamp(a, cfg, name): a.ext(stamp_l(a, cfg, name))

def stamps_out(a, cfg, wsoff):
    n = len(a.stamps)
    a.l.insert(0, "; stamps " + str(wsoff >> 20) + " " + " ".join(a.stamps))
    a("s_waitcnt lgkmcnt(0)")
    a(f"s_add_u32 s48, s48, {wsoff}")
    a("s_addc_u32 s49, s49, 0")
    a("s_mov_b32 s50, 0x100000")
    a("s_mov_b32 s51, 0x20000")
    a("s_lshl_b32 s52, s2, 2")
    a("s_add_u32 s52, s52, s3")
    a("s_lshl_b32 s52, s52, 7")
    a("v_mov_b32 v6, s52")
    a("v_cmp_eq_u32 vcc, 0, v1")
    a("s_and_saveexec_b64 s[54:55], vcc")
    for i in range(n):
        a(f"v_mov_b32 v4, s{60+4*i}")
        a(f"v_mov_b32 v5, s{62+4*i}")
        a(f"buffer_store_dwordx2 v[4:5], v6, s[48:51], 0 offen offset:{8*i}")
        a("s_nop 1")
    a("s_getreg_b32 s53, hwreg(HW_REG_XCC_ID)")
    a("v_mov_b32 v4, s53")
    a("buffer_store_dword v4, v6, s[48:51], 0 offen offset:120")
    a("v_mov_b32 v4, 0x5157")
    a(f"v_mov_b32 v5, {n}")
    a("buffer_store_dwordx2 v[4:5], v6, s[48:51], 0 offen offset:112")
    a("s_mov_b64 exec, s[54:55]")

def srd(s, plo, off_s, size):
    return [f"s_add_u32 s{s}, s{plo}, {off_s}", f"s_addc_u32 s{s+1}, s{plo+1}, 0", f"s_mov_b32 s{s+2}, {size}", f"s_mov_b32 s{s+3}, 0x20000"]
def dma(vaddr, sdesc, soff, imm, flags=""):
    o = f" offset:{imm}" if imm else ""
    f = f" {flags}" if flags else ""
    return f"buffer_load_dwordx4 v{vaddr}, s[{sdesc}:{sdesc+3}], {soff} offen{o}{f} lds"
def tag(lst, t):
    return [x + f" ;@{t}" if kind(x) == "vm" and ";@" not in x else x for x in lst]
def check_setup(lines, name):
    last = {}
    for x in lines:
        if ";@" not in x:
            if kind(x) == "s" and not x.endswith(":") and len(x.split()) > 1 and x.split()[1].rstrip(",") in ("m0", "s42", "s30"): last[x.split()[1].rstrip(",")] = None
            continue
        t = x.split(";@")[1]
        if kind(x) == "s": last[x.split()[1].rstrip(",")] = t
        elif t[0] == "w" and t[1:].isdigit() and not x.startswith("buffer_dummy"):
            assert last.get("m0") == t and last.get("s42") == t, (name, x, last)
        elif t[0] == "o" and t[1:].isdigit() and not x.startswith("buffer_dummy"):
            assert last.get("s30") == t, (name, x, last)
def with_nop(lst):
    o = []
    for x in lst:
        o.append(x)
        if " m0," in x: o.append("s_nop 0")
    return o

def resolve_waits(lines):
    out = []; seq = []; lseq = []
    for x in lines:
        if x.startswith("WAITLG"):
            t = x.split()[1]
            idx = max(i for i, v in enumerate(lseq) if v == t)
            out.append(f"s_waitcnt lgkmcnt({min(len(lseq) - 1 - idx, 15)})")
            continue
        if x.startswith("ds_"): lseq.append(x.split(";@")[1] if ";@" in x else "")
        if x.startswith("WAITVM"):
            p = x.split(None, 2)
            idx = max(i for i, t in enumerate(seq) if t == p[1])
            n = min(len(seq) - 1 - idx, 63)
            out.append(f"s_waitcnt vmcnt({n})" + (" " + p[2] if len(p) > 2 else ""))
            continue
        if not (x.endswith(":") or x.startswith(".") or x.startswith(";")) and kind(x) == "vm" and not x.endswith(";@skip"):
            seq.append(x.split(";@")[1] if ";@" in x else "")
        if not x.startswith("buffer_dummy"): out.append(x.split(" ;@")[0])
    return out

def kdma(cfg, slot, so="s33"):
    return [f"s_add_u32 m0, s40, {16384*slot}"] + [dma(KDA + pp, SK, so, 1024 * pp, cfg.kvflags) for pp in range(4)]
def vdma(cfg, slot, so="s33"):
    return [f"s_add_u32 m0, s40, {65536+16384*slot}"] + [dma(VDA + (pp & 1), SV, so, 1024 * pp, cfg.kvflags) for pp in range(4)]
ADV = "s_add_u32 s33, s33, 16384"
def upiece(cfg, gp):
    sg = gp >> 3
    if gp & 1: return ["s_or_b32 m0, m0, 0x10000", dma(VDA, SV, "s33", 0, cfg.kvflags) + f" ;@seg{sg}", "s_add_u32 s33, s33, 4096"]
    return ["s_and_b32 m0, s33, 0xffff", dma(KDA, SK, "s33", 0, cfg.kvflags) + f" ;@seg{sg}" + ("k" if sg == 15 else "")]
def piece(cfg, gp, setm0, guard=False):
    sg, kv, pp = gp // 8, (gp % 8) // 4, gp % 4
    grp = (vdma if kv else kdma)(cfg, sg & 3)
    o = ([grp[0]] if pp == 0 or setm0 else []) + tag([grp[1 + pp]], f"seg{sg}" + ("k" if kv == 0 else ""))
    if gp % 8 == 7:
        o += [ADV]
        if guard: o += [f"s_cmp_lt_u32 s33, {KVBYTES}", f"s_cselect_b32 s{SK+2}, {KVBYTES}, 0"]
    return o
def wdma(cfg, t):
    return [x + f" ;@w{t}" for x in [f"s_add_u32 s42, s41, {t}", "s_and_b32 s42, s42, 31", "s_mul_i32 s42, s42, 40960", f"s_add_u32 m0, s40, {16384*UNIT[t%10]}"]] + \
        tag([dma(WD + pp, SWO, "s42", 1024 * pp, cfg.bflags) for pp in range(4)], f"w{t}")
def kread(buf, slot, th, kt, ks):
    return f"ds_read_b128 {ar(KF(buf,kt,ks),4)}, v{KRA+ks} offset:{16384*slot+8192*th+4096*kt}"
def vread(buf, slot, th, dt, e):
    return f"ds_read_b64_tr_b16 {ar(VF(buf,dt)+2*e,2)}, v{VRA+dt} offset:{16384*slot+8192*th+4096*e}"

def qk(u, kb, czero=False, sl=None):
    m = []
    for kt in range(2):
        d = vr(S_(u if sl is None else sl, kt), 4)
        for ks in range(4):
            c = ("0" if czero else vr(NM(u), 4)) if ks == 0 else d
            m.append(f"{MF} {d}, {ar(KF(kb,kt,ks),4)}, {ar(Q_(u,ks),4)}, {c}")
    return m
LA = {0: 18, 1: 19}
def pv(u, vb, czero=False, sl=None, lsum=True):
    m = []
    p = vr(P_(u if sl is None else sl), 4)
    for dt in range(8):
        d = vr(O_(u, dt), 4)
        m.append(f"{MF} {d}, {ar(VF(vb,dt),4)}, {p}, {'0' if czero else d}")
    d = ar(L_(u), 4)
    if lsum: m.append(f"{MF} {d}, {ar(ONES,4)}, {p}, {'0' if czero else d}")
    return m
TRUNC = [False]
def ppack(d, s):
    return f"v_perm_b32 v{d}, v{s+1}, v{s}, s39" if TRUNC[0] else f"v_cvt_pk_bf16_f32 v{d}, v{s}, v{s+1}"
def sm_half(q, g0, u, kt, add=False):
    s = S_(u, kt)
    for r in range(4):
        if add: q.put(g0 + 2 * r + 1, f"v_add_f32 v{LA[u]}, v{LA[u]}, v{s+r}")
        q.put(g0 + 2 * r, f"v_exp_f32 v{s+r}, v{s+r}")
        if r & 1: q.put(g0 + 2 * r + 1, ppack(P_(u) + 2 * kt + r // 2, s + r - 1))

def attn_tile(cfg, q, j, mode="loop"):
    kb = vb = j & 1
    slot, th = (j >> 1) & 3, j & 1
    nslot, nth = ((j + 1) >> 1) & 3, (j + 1) & 1
    z = mode == "first"
    addu = cfg.addu if mode == "loop" else ()
    groups = [qk(0, kb), pv(2, vb ^ 1, z), qk(1, kb), pv(3, vb ^ 1, z), qk(2, kb), pv(0, vb, lsum=0 not in addu), qk(3, kb), pv(1, vb, lsum=1 not in addu)]
    st = [q.add(g) for g in groups]; st.append(len(q.m))
    sm_half(q, st[0], 3, 1)
    for u in range(3):
        sm_half(q, st[2 * u + 1], u, 0, u in addu)
        sm_half(q, st[2 * u + 2], u, 1, u in addu)
    sm_half(q, st[7], 3, 0)
    vr_ = [vread(vb, slot, th, dt, e) for dt in range(8) for e in range(2)]
    NV = 6 if 0 in cfg.addu else 0
    if 0 in addu: pos = [st[0] + k for k in (1, 3, 5, 5, 7)] + [st[1] + k for k in (1, 5, 8, 8)] + [st[2] + 5]
    else: pos = [st[0] + k for k in (1, 3, 5, 5, 7)] + [st[1] + k for k in (1, 1, 3, 5, 5, 7, 8)] + [st[2] + k for k in (1, 3, 5, 5)]
    for p, r in zip(pos, vr_[16 - len(pos):]): q.put(p, r)
    mid = st[4] - 1
    if j & 1:
        if mode == "loop": q.put(mid, f"s_waitcnt vmcnt({16-cfg.lag if not cfg.bm else (18 if cfg.bm == 3 else 14)-cfg.lag}) lgkmcnt(0)" if not cfg.uni else "UNIWAIT")
        else: q.put(mid, f"WAITVM seg{(j+1)//2}{'k' if j == 29 and cfg.split15 else ''} lgkmcnt(0)")
        q.put(mid, "s_barrier")
    else:
        q.put(mid, "s_waitcnt lgkmcnt(0)")
    kr_ = [kread(kb ^ 1, nslot, nth, kt, ks) for kt in range(2) for ks in range(4)]
    if 1 in addu: pos = [st[4] + 5] + [st[5] + k for k in (1, 1, 3, 5, 5, 7)] + [st[6] + 1]
    else: pos = [st[4] + k for k in (1, 3, 5, 7)] + [st[5] + k for k in (1, 3, 5, 7)]
    for p, r in zip(pos, kr_): q.put(p, r)
    if NV and mode != "final":
        nvr = [vread(vb ^ 1, nslot, nth, dt, e) for dt in range(8) for e in range(2)][:NV]
        for p, r in zip([st[6] + 3, st[6] + 5, st[6] + 5, st[6] + 7, st[7] + 1, st[7] + 1], nvr): q.put(p, r)
        q.put(st[8] - 2, f"s_waitcnt lgkmcnt({NV})")
    else:
        q.put(st[8] - 2 if j != 29 else st[7], "s_waitcnt lgkmcnt(0)")
    nlast = cfg.lds_last if mode != "final" else (cfg.lds_fin if cfg.lds_fin >= 0 else cfg.lds_last)
    if nlast:
        cand = [i for i in range(st[0], st[8]) if any(x.startswith(("v_cvt", "v_perm")) for x in q.g[i]) and any(x.startswith("ds_read") for x in q.g[i])]
        for k in range(nlast):
            i = cand[(k * len(cand)) // nlast]
            c_ = [x for x in q.g[i] if x.startswith(("v_cvt", "v_perm"))][0]; r_ = [x for x in q.g[i] if x.startswith("ds_read")][0]
            q.g[i].remove(c_); q.g[i].remove(r_); q.g[i] += ["!" + c_, "!" + r_]
    dpos = [st[0] + 1, st[2] + 1, st[4] + 1, st[6] + 1]
    if cfg.bm:
        assert cfg.lag % 4 == 2
        dpos = {1: [st[4] + 1, st[4] + 5, st[5] + 1, st[5] + 5], 2: [st[4] + 1, st[4] + 3, st[4] + 5, st[4] + 7], 3: [st[2] + 7, st[3] + 1, st[3] + 3, st[3] + 5],
                4: [st[4] + 1, st[4] + 2, st[4] + 3, st[4] + 4]}[cfg.bm]
    for k in range(0 if not cfg.uni else 4, 4):
        gp = 4 * j + 26 + k - cfg.lag
        if mode == "first" and k < 2 and not cfg.bm: continue
        if mode == "final":
            if gp < 128: q.place(piece(cfg, gp, True), [[st[0] + 1, st[0] + 5, st[1] + 1, st[1] + 3][k] if cfg.wsched in (0, 2) else dpos[k]])
            continue
        q.place(piece(cfg, gp, False, cfg.lag < 2), [dpos[k]])
    return st

def rowmax_l(t, t2):
    return [f"v_mov_b32 v{t2}, v{t}", "s_nop 1", f"v_permlane32_swap_b32 v{t}, v{t2}", f"v_max_f32 v{t}, v{t}, v{t2}",
            f"v_mov_b32 v{t2}, v{t}", "s_nop 1", f"v_permlane16_swap_b32 v{t}, v{t2}", f"v_max_f32 v{t}, v{t}, v{t2}"]

def scale_pack(cfg, b0, t, mul, pk):
    o = []
    if pk: o += [f"v_pk_mul_f32 {vr(b0+2*i,2)}, {vr(b0+2*i,2)}, {mul[1]}" for i in range(4)]
    else: o += [f"v_mul_f32 v{b0+i}, {mul[0]}, v{b0+i}" for i in range(8)]
    o += [f"v_cvt_pk_bf16_f32 v{t+i}, v{b0+2*i}, v{b0+2*i+1}" for i in range(4)]
    return o

def gen(cfg):
    if cfg.wsched == 2: UNIT[:] = UNIT2 if not cfg.wv else UNIT3
    TRUNC[0] = cfg.trunc
    if cfg.epark: WBLK[:] = WBLK2
    WBLK.extend([-224, -208, -192, -176][:cfg.R - 16])
    assert 112 + 20 * cfg.DO <= 240 - 16 * (cfg.R - 16)
    a = Asm()
    a("s_cmp_ge_u32 s2, 256")
    a("s_cbranch_scc1 L_end")
    a("s_mov_b32 s35, 0")
    if cfg.epark: a("L_restart:")
    stamp(a, cfg, "start")
    a("s_load_dwordx4 s[4:7], s[0:1], 0")
    a("s_load_dwordx4 s[44:47], s[0:1], 16")
    a("v_lshrrev_b32 v2, 6, v0")
    a("v_and_b32 v1, 63, v0")
    a("v_readfirstlane_b32 s3, v2")
    a("s_and_b32 s50, s2, 7")
    a("s_lshr_b32 s51, s2, 3")
    a("s_and_b32 s52, s51, 3")
    a("s_lshr_b32 s53, s51, 2")
    a("s_bfe_u32 s28, s2, 0x10000")
    a("s_lshl2_add_u32 s28, s28, s52")
    a("s_lshr_b32 s54, s50, 1")
    a("s_lshl3_add_u32 s29, s54, s53")
    a("s_add_u32 s52, s52, s53")
    a("s_and_b32 s52, s52, 1")
    a(f"s_mul_i32 s32, s52, {cfg.roff}")
    a("s_add_u32 s54, s54, s50")
    a("s_and_b32 s54, s54, 1")
    a("s_lshl1_add_u32 s32, s54, s32")
    if cfg.rot == 4:
        a("s_and_b32 s52, s51, 3")
        a("s_add_u32 s52, s52, s53")
        a("s_and_b32 s52, s52, 3")
        a("s_mul_i32 s52, s52, 5")
        a("s_lshr_b32 s32, s52, 1")
    if cfg.rot == 3:
        a("s_mul_i32 s52, s51, 43")
        a("s_lshr_b32 s52, s52, 7")
        a("s_mul_i32 s52, s52, 3")
        a("s_sub_u32 s52, s51, s52")
        a("s_mul_i32 s52, s52, 7")
        a("s_lshr_b32 s32, s52, 1")
    if cfg.mapx:
        a("s_mov_b32 s28, s50")
        a("s_mov_b32 s29, s51")
        a("s_mul_i32 s32, s50, 5")
        a("s_lshr_b32 s32, s32, 2")
        if cfg.mapx == 2:
            a("s_and_b32 s52, s51, 1")
            a("s_mul_i32 s52, s52, 5")
            a("s_add_u32 s32, s32, s52")
            a("s_cmp_ge_u32 s32, 10")
            a("s_cselect_b32 s52, 10, 0")
            a("s_sub_u32 s32, s32, s52")
    if cfg.c0same:
        a("s_mov_b32 s30, %d" % (9 << 7))
        a("s_mov_b32 s31, %d" % (9 << 19))
    else:
        a("s_lshl_b32 s30, s32, 7")
        a("s_lshl_b32 s31, s32, 19")
    a("s_lshl_b32 s40, s3, 12")
    a("s_lshl1_add_u32 s36, s40, %d" % XBASE[0][0])
    a("s_add_u32 s39, s40, %d" % WWIN)
    a("v_lshrrev_b32 v3, 4, v1")
    a("v_lshrrev_b32 v4, 3, v1")
    a("v_and_b32 v5, 7, v1")
    a("v_and_b32 v2, 15, v1")
    a("s_mul_i32 s52, s3, %d" % (64 * 1280))
    a("v_mul_u32_u24 v8, 1280, v4")
    a("v_xor_b32 v9, v3, v5")
    a("v_lshlrev_b32 v9, 4, v9")
    a(f"v_add3_u32 v{XDA}, v9, s52, v8")
    a(f"v_xor_b32 v17, 64, v{XDA}")
    for pp in range(1, 8):
        a(f"v_add_u32 v{XDA+pp}, {10240*pp-1024*(pp&3)}, v{17 if pp & 1 else XDA}")
    a("s_lshl_b32 s52, s3, 17")
    a("v_lshlrev_b32 v8, 13, v3")
    a("v_and_b32 v9, 1, v3")
    a("v_lshrrev_b32 v10, 1, v3")
    a("v_lshl_or_b32 v9, v10, 2, v9")
    a("v_xor_b32 v9, v9, v2")
    a("v_lshlrev_b32 v9, 4, v9")
    a(f"v_add3_u32 v{WDA}, v9, s52, v8")
    a(f"v_xor_b32 v17, 128, v{WDA}")
    for pp in range(1, 4):
        a(f"v_add_u32 v{WDA+pp}, {32768*pp-1024*pp}, v{17 if pp >> 1 else WDA}")
    a("s_mul_i32 s52, s28, 307200")
    a("s_lshl_b32 s53, s29, 8")
    a.ext(srd(SX, 4, "s52", 307200)[2:] + srd(SW, 46, "s53", 640 * 8192 - 31 * 256)[2:])
    a("s_waitcnt lgkmcnt(0)")
    stamp(a, cfg, "kernarg")
    a.ext(srd(SX, 4, "s52", 307200)[:2] + srd(SW, 46, "s53", 0)[:2])

    def qstage(c):
        bf = c % 3
        o = [f"s_mov_b32 m0, s{36+bf}"]
        o += [dma(XDA + pp, SX, "s30", 1024 * pp, cfg.xflags) for pp in range(4)]
        x2 = [f"s_add_u32 m0, s{36+bf}, 4096"] + [dma(XDA + 4 + pp, SX, "s30", 1024 * pp, cfg.xflags) for pp in range(4)]
        w_ = [f"s_add_u32 m0, s39, {WOFF[bf]}"] + [dma(WDA + pp, SW, "s31", 1024 * pp, cfg.xflags) for pp in range(4)]
        if cfg.c0mix and c == 0:
            o = o[:2] + w_[:2] + [o[0]] + o[2:] + x2 + [w_[0]] + w_[2:]
        elif cfg.qs == 2 and c == 0:
            o = tag(o + w_, "c0a") + x2
        else: o += x2 + w_
        if not (cfg.c0same and c == 0): o += ["s_add_u32 s32, s32, 1", f"s_cmp_eq_u32 s32, {9 if cfg.c0same else 10}\ns_cselect_b32 s32, 0, s32"]
        o += ["s_lshl_b32 s30, s32, 7", "s_lshl_b32 s31, s32, 19"]
        return tag(o, f"c{c}")
    if "lat" in cfg.exp:
        x0 = with_nop(qstage(0))
        a.ext(x0[:3]); a("s_waitcnt vmcnt(0)"); stamp(a, cfg, "l1")
        a.ext(x0[3:4]); a("s_waitcnt vmcnt(0)"); stamp(a, cfg, "l2")
        a.ext(x0[4:15]); a("s_waitcnt vmcnt(0)"); stamp(a, cfg, "l3")
        a.ext(x0[15:16]); a("s_waitcnt vmcnt(0)"); stamp(a, cfg, "l4")
        a.ext(x0[16:]); a("s_waitcnt vmcnt(0)"); stamp(a, cfg, "l5")
    else: a.ext(with_nop(qstage(0)))
    stamp(a, cfg, "c0i")
    a("s_load_dwordx2 s[48:49], s[0:1], 56")
    a("s_load_dwordx4 s[56:59], s[0:1], 32")
    a("s_load_dwordx2 s[46:47], s[0:1], 48")
    if cfg.cwarm:
        a("s_getpc_b64 s[54:55]")
        a("L_cbase:")
        a("s_lshl2_add_u32 s52, s51, s3")
        a(f"s_mul_i32 s52, s52, {5 if cfg.w3 else 3}")
        a(f"v_min_u32 v18, {4 if cfg.w3 else 2}, v1")
        a("v_add_u32 v18, s52, v18")
        a("v_lshlrev_b32 v18, 7, v18")
        a("v_min_u32 v18, L_exact-L_cbase, v18")
        a("v_mov_b32 v19, s55")
        a("v_add_co_u32 v18, vcc, s54, v18")
        a("v_addc_co_u32 v19, vcc, 0, v19, vcc")
        a("global_load_dword v20, v[18:19], off")
    a("s_mov_b32 s33, s40" if not cfg.uni else "s_lshl_b32 s33, s3, 10")
    a("s_and_b32 s52, s3, 1")
    a("s_lshl_b32 s52, s52, 13")
    a("s_cmp_ge_u32 s3, 2")
    for bf in range(1, 3):
        a(f"s_mov_b32 s53, {XBASE[bf][0]}")
        a(f"s_cselect_b32 s{36+bf}, {XBASE[bf][1]}, s53")
    for bf in range(1, 3):
        a(f"s_add_u32 s{36+bf}, s{36+bf}, s52")
    a("v_bfe_u32 v6, v1, 2, 2")
    a("v_and_b32 v7, 3, v1")
    a("v_lshrrev_b32 v9, 1, v2")
    for s in range(2):
        a(f"v_or_b32 v8, {4*s}, v3")
        a("v_xor_b32 v8, v8, v9")
        a("v_lshlrev_b32 v8, 4, v8")
        a("v_lshl_add_u32 v8, v2, 7, v8")
        for bf in range(3):
            a(f"v_add_u32 v{XRA+2*bf+s}, s{36+bf}, v8")
    a("v_lshrrev_b32 v11, 1, v7")
    a("v_and_b32 v12, 1, v7")
    a("v_lshlrev_b32 v12, 3, v12")
    a("v_and_b32 v9, 1, v6")
    a("v_lshrrev_b32 v10, 1, v6")
    a("v_lshl_or_b32 v9, v10, 2, v9")
    a("v_and_b32 v10, 1, v3")
    a("v_lshl_or_b32 v9, v10, 3, v9")
    a("v_lshl_or_b32 v9, v11, 1, v9")
    a("v_lshl_add_u32 v13, v3, 3, v6")
    a("v_lshl_add_u32 v13, v13, 8, v12")
    a(f"v_add_u32 v13, {WWIN}, v13")
    for dt in range(8):
        a(f"v_xor_b32 v8, {4*(dt>>1)+(dt&1)}, v9")
        a(f"v_lshl_add_u32 v{WRA+dt}, v8, 4, v13")
    a_main = a
    if cfg.qs: a = Asm(); a.stamps = a_main.stamps
    if not cfg.qs: a("s_waitcnt lgkmcnt(0)")
    if cfg.sig == "line":
        a("s_lshl_b32 s52, s28, 5")
        a("s_add_u32 s52, s52, s29")
        a("s_lshl_b32 s52, s52, 7")
        a(f"s_add_u32 s52, s52, {FOFF}")
        a("v_mov_b32 v18, s52")
        a("v_mov_b32 v19, 0")
        a("s_mov_b64 exec, 1")
        a("global_store_dword v18, v19, s[48:49] sc1")
        a("s_mov_b64 exec, -1")
        a("v_and_b32 v0, 31, v1")
        a("v_lshlrev_b32 v0, 3, v0")
    stamp(a, cfg, "s1")
    a("s_lshl_b32 s52, s28, 5")
    a("s_add_u32 s52, s52, s29")
    a("s_lshl_b32 s52, s52, 18")
    a.ext(srd(SK, 6, "s52", KVBYTES))
    a.ext(srd(SV, 44, "s52", KVBYTES))
    a("s_mul_i32 s52, s28, %d" % (15 * 131072))
    a.ext(srd(SO, 48, "s52", 15 * 131072))
    a("v_lshlrev_b32 v10, 8, v3")
    if cfg.uni:
        a("s_lshl_b32 s52, s3, 2")
        a("v_add_u32 v8, s52, v3")
        a("v_xor_b32 v9, v8, v2")
        a(f"v_lshl_add_u32 v{KDA}, v9, 4, v10")
        a("v_and_b32 v8, 7, v8")
        a("v_lshlrev_b32 v8, 1, v8")
        a("v_xor_b32 v9, v8, v2")
        a(f"v_lshl_add_u32 v{VDA}, v9, 4, v10")
    else:
        for pp in range(4):
            a(f"v_add_u32 v9, {4*pp}, v3")
            a("v_xor_b32 v9, v9, v2")
            a(f"v_lshl_add_u32 v{KDA+pp}, v9, 4, v10")
        for pp in range(2):
            a(f"v_add_u32 v9, {4*pp}, v3")
            a("v_lshlrev_b32 v9, 1, v9")
            a("v_xor_b32 v9, v9, v2")
            a(f"v_lshl_add_u32 v{VDA+pp}, v9, 4, v10")
    a("v_and_b32 v10, 1, v3")
    a("v_lshl_or_b32 v9, v10, 2, v6")
    a("v_lshl_or_b32 v9, v9, 1, v11")
    a("v_lshl_add_u32 v14, v3, 2, v6")
    a("v_lshl_add_u32 v14, v14, 8, v12")
    a("v_add_u32 v14, 65536, v14")
    for dt in range(8):
        a(f"v_xor_b32 v8, {2*dt}, v9")
        a(f"v_lshl_add_u32 v{VRA+dt}, v8, 4, v14")
    for ks in range(4):
        a(f"v_or_b32 v8, {4*ks}, v3")
        a("v_xor_b32 v8, v8, v2")
        a("v_lshlrev_b32 v8, 4, v8")
        a(f"v_lshl_add_u32 v{KRA+ks}, v2, 8, v8")
    for i in range(4):
        a(f"v_mov_b32 v{MTR+i}, 0xff800000")
    a("v_lshlrev_b32 v15, 4, v1")
    if cfg.touch:
        a(f"v_and_b32 v8, {cfg.tl-1}, v1")
        a(f"v_lshrrev_b32 v9, {int(math.log2(cfg.tl))}, v1")
        a("v_lshlrev_b32 v9, 14, v9")
        a("v_lshl_add_u32 v219, v8, 7, v9")
    a("v_lshlrev_b32 v9, 1, v3")
    a("v_xor_b32 v9, v9, v5")
    a("v_lshlrev_b32 v9, 4, v9")
    a("v_mul_u32_u24 v8, 1280, v4")
    a("v_add_u32 v8, v8, v9")
    for pp in range(4):
        a(f"v_add_u32 v{WD+pp}, {pp*9216}, v8")
    a("v_lshl_add_u32 v14, v3, 2, v6")
    a("v_bfe_u32 v13, v14, 1, 2")
    a("v_lshl_or_b32 v13, v13, 1, v11")
    a("v_lshl_add_u32 v14, v14, 7, v12")
    a("v_add_u32 v14, s40, v14")
    for nt in range(4):
        a(f"s_add_u32 s53, s3, {nt}")
        a("s_and_b32 s53, s53, 3")
        a("s_lshl_b32 s53, s53, 1")
        a("v_xor_b32 v16, s53, v13")
        a(f"v_lshl_add_u32 v{WRL[0][nt]}, v16, 4, v14")
        a(f"v_add_u32 v{WRL[1][nt]}, 65536, v{WRL[0][nt]}")
        a(f"v_add_u32 v{WRL[2][nt]}, 131072, v{WRL[0][nt]}")
    for i in range(5): a(f"v_add_u32 v{OAL[i]}, {131072*i}, v15")
    a("s_min_u32 s51, s51, 29")
    a("s_cmp_ge_u32 s51, 15")
    a("s_cselect_b32 s52, 1, 0")
    a("s_cselect_b32 s53, 15, 0")
    a("s_sub_u32 s53, s51, s53")
    a("s_and_b32 s43, s50, 6")
    a("s_add_u32 s43, s43, s52")
    a("s_mul_i32 s54, s53, 52")
    a("s_lshr_b32 s54, s54, 8")
    a("s_mul_i32 s41, s54, 5")
    a("s_sub_u32 s53, s53, s41")
    a("s_and_b32 s55, s50, 1")
    a("s_mul_i32 s55, s55, 5")
    a("s_add_u32 s55, s55, s53")
    a("s_mul_i32 s52, s52, 3")
    a("s_add_u32 s41, s54, s52")
    a("s_mul_i32 s41, s41, 43")
    a("s_lshr_b32 s41, s41, 3")
    if cfg.rA:
        a(f"s_mul_i32 s53, s53, {cfg.rA}")
        a("s_add_u32 s41, s41, s53")
    if cfg.map3b:
        a("s_mov_b32 s43, s50")
        a("s_mul_i32 s54, s51, 26")
        a("s_lshr_b32 s54, s54, 8")
        a("s_mul_i32 s52, s54, 10")
        a("s_sub_u32 s55, s51, s52")
        a("s_mul_i32 s41, s54, 11")
        a("s_add_u32 s41, s41, s50")
        a("s_mov_b32 s34, 0")
    a("s_and_b32 s41, s41, 31")
    sc = f32(math.log2(math.e) / math.sqrt(128.0))
    if cfg.wpull:
        a("s_mul_i32 s52, s2, 160")
        a(f"s_mul_i32 s53, s3, {14 if cfg.wpull == 1 else 40}")
        a("s_add_u32 s52, s52, s53")
        a("v_add_u32 v218, s52, v1")
        a("v_lshlrev_b32 v218, 7, v218")
        a("v_mov_b32 v16, 0x7fffff80")
        a(f"v_cmp_gt_u32 vcc, {14 if cfg.wpull == 1 else 40}, v1")
        a("v_cndmask_b32 v255, v16, v218, vcc")
    if cfg.wl2:
        a("s_lshr_b32 s52, s2, 3")
        a("s_lshl_b32 s52, s52, 2")
        a("s_add_u32 s52, s52, s3")
        a("s_mul_i32 s52, s52, %d" % (32 * 1280))
        a("s_and_b32 s53, s50, 1")
        a("s_mul_i32 s53, s53, 640")
        a("s_add_u32 s52, s52, s53")
        a("v_mul_u32_u24 v16, 52, v1")
        a("v_lshrrev_b32 v16, 8, v16")
        a("v_mul_u32_u24 v17, 5, v16")
        a("v_sub_u32 v17, v1, v17")
        a("v_mul_u32_u24 v16, 1280, v16")
        a("v_lshl_add_u32 v16, v17, 7, v16")
        a("v_add_u32 v16, s52, v16")
        a("v_mov_b32 v17, 0x7fffff80")
        a("v_cmp_gt_u32 vcc, 15, v1")
        a("v_cndmask_b32 v255, v17, v16, vcc")
    a(f"s_mov_b32 s44, {sc}")
    a(f"s_mov_b32 s45, {sc}")
    setup_late = []
    if cfg.qs:
        k = 0
        while k < len(a.l):
            x = a.l[k]; k += 1
            if x == "s_mov_b64 exec, 1": x = "\n".join([x] + a.l[k:k + 2]); k += 2
            else:
                while k < len(a.l) and (a.l[k].startswith(("s_addc", "s_cselect"))): x += "\n" + a.l[k]; k += 1
            setup_late.append(x)
        a = a_main
    stamp(a, cfg, "setup")
    if not cfg.c1first and cfg.qs != 2: a.ext(with_nop(qstage(1)))
    stamp(a, cfg, "issued")

    def qreads(c):
        bf = rb = c % 3
        o = []
        for s in range(2):
            o.append(f"ds_read_b128 {XF(rb,s,0)}, v{XRA+2*bf+s}")
        for dt in range(8):
            for s in range(2):
                for e in range(2):
                    o.append(f"ds_read_b64_tr_b16 {WF2(rb,s,dt,e)}, v{WRA+dt} offset:{WOFF[bf]+8192*s+1024*e}")
        for u in range(1, 4):
            for s in range(2):
                o.append(f"ds_read_b128 {XF(rb,s,u)}, v{XRA+2*bf+s} offset:{2048*u}")
        return o
    a("WAITVM c0 lgkmcnt(0)" if cfg.qs != 2 else "WAITVM c0a lgkmcnt(0)")
    a("s_barrier")
    stamp(a, cfg, "landed")
    r0 = qreads(0)
    if cfg.fast0: a.ext(r0[:14])
    else:
        a.ext(r0)
        a.ext(with_nop(qstage(2)))
    wp = ["s_mov_b32 s4, s56", "s_mov_b32 s5, s57", f"s_mov_b32 s6, {4096*1280}", "s_mov_b32 s7, 0x20000", "buffer_load_dword v218, v255, s[4:7], 0 offen"]
    if cfg.wpull == 2: a.ext(wp)
    a("s_waitcnt lgkmcnt(8)" if cfg.fast0 else "s_waitcnt lgkmcnt(0)")
    if cfg.w3:
        a("s_cmp_eq_u32 s3, 3")
        a("s_cbranch_scc1 L_w3")
        if cfg.prio: a(f"s_setprio {cfg.prio}")
        a("L_sec0:")
    q = Seq()
    per = []
    for c in range(10):
        rb = c % 3
        mf = []
        for u in range(4):
            for dt in range(8):
                d = vr(O_(u, dt), 4)
                for s in range(2):
                    mf.append(f"{MF} {d}, {WF(rb,s,dt)}, {XF(rb,s,u)}, {'0' if c == 0 and s == 0 else d}")
        if cfg.joint and c >= 8:
            mf = []
            for u in (2 * (c - 8), 2 * (c - 8) + 1):
                for dt in range(8):
                    d = vr(O_(u, dt), 4)
                    for cc in (8, 9):
                        for s in range(2): mf.append(f"{MF} {d}, {WF(cc%3,s,dt)}, {XF(cc%3,s,u)}, {d}")
        p0 = q.add(mf); per.append(p0)
        for x in stamp_l(a, cfg, f"q{c+1}"): q.put(p0 + 63, "!" + x)
    if cfg.lazy:
        A = dict(zip(range(1, 10), cfg.lazy))
        FR = {0: 22 if cfg.qs != 2 else 32}
        for n in range(1, 10):
            assert A[n] >= 64 * (n - 2) and A[n] + 26 < 64 * n + 3, n
            q.put(A[n], f"WAITVM c{n}" + (" lgkmcnt(0)" if n >= cfg.mfrom else "")); q.put(A[n], "s_barrier")
            fast = A[n] + 38 > 64 * n
            dense = n >= cfg.qd0
            for i, r in enumerate(qreads(n)): q.put(A[n] + 1 + (i // cfg.qdn if dense else (i // 2 if fast else (i * 3) // 4)), r)
            FR[n] = min(A[n] + (18 if dense else (26 if fast else 36)), 64 * n - 1)
        DE = cfg.c2p + (cfg.c2sp * 11) // 12 if cfg.qs else 0
        for n in range(10):
            if cfg.mfrom <= n + 1 <= 9:
                assert A[n + 1] < 64 * n and A[n + 1] >= A[n] + 34, n
                FR[n] = A[n + 1]
            else:
                q.put(FR[n], "s_waitcnt lgkmcnt(0)"); q.put(FR[n], "s_barrier")
            if n + 3 < 10:
                p = max(FR[n] + 2, DE + 5)
                ps = [p + (cfg.bsp * i) // 12 for i in range(12)]
                q.place(qstage(n + 3), ps); DE = ps[-1]
                assert DE < A[n + 3] - 20, n
        BQ = {7: DE - cfg.bsp + 3, 8: FR[7], 9: FR[8], 10: FR[9]}
    else:
        BQ = {n: max(cfg.b1 + cfg.bsp * (n - 1), 64 * (n - 2)) for n in range(1, 10)}
        BQ[10] = BQ[9] + 44
        for n in range(1, 11):
            p = BQ[n]
            q.put(p, f"WAITVM c{n} lgkmcnt(0)" if n < 10 else "s_waitcnt lgkmcnt(0)"); q.put(p, "s_barrier")
            if n < 10:
                for i, r in enumerate(qreads(n)): q.put(p + 1 + ((i * 3) // 4 if n < cfg.qd0 else i // cfg.qdn), r)
            if n + 2 < 10:
                q.place(qstage(n + 2), [p + 2 + (cfg.bsp * i) // 12 for i in range(12)])
            assert n == 1 or n == 10 or BQ[n + 1] < 64 * n, n
        q.put(63, "s_waitcnt lgkmcnt(0)")
    if cfg.fast0:
        for i, r in enumerate(r0[14:]): q.put(i // 2, r)
        for dt in range(1, 8):
            issued = min(40, 14 + 2 * (2 * dt - 1)); needed = 2 + 4 * (dt + 1)
            q.g[2 * dt - 1].insert(0, f"s_waitcnt lgkmcnt({min(15, issued - needed)})")
        q.g[15].insert(0, "s_waitcnt lgkmcnt(0)")
        if cfg.qs == 2:
            late_x = r0[36:]
            for r in late_x:
                for gp in q.g[:16]:
                    if r in gp: gp.remove(r)
            q.g[20].insert(0, "WAITVM c0")
            for k, r in enumerate(late_x): q.put(20 + k // 2, r)
            q.g[31].insert(0, "s_waitcnt lgkmcnt(0)")
            q.place(qstage(1), [1 + (cfg.c1sp * i) // 12 for i in range(12)])
        q.place(qstage(2), [4 + i + i // 4 for i in range(12)] if not cfg.qs else [cfg.c2p + (cfg.c2sp * i) // 12 for i in range(12)])
    i = 66
    for x in setup_late:
        while q.slots(i) >= 2 or "s_barrier" in q.g[i]: i += 1
        q.put(i, "!" + x)
        if kind(x) == "s": i += 1
    assert i < 300, i
    if cfg.wpull >= 3: q.place(wp, [per[cfg.wpull - 3] + 60])
    sw = ["s_mul_i32 s52, s3, %d" % (1024 * 1280), "s_lshl_b32 s53, s55, 7", "s_add_u32 s52, s52, s53"] + srd(SWO, 56, "s52", WOSZ) + \
         ["s_mul_i32 s52, s43, 15", "s_mul_i32 s53, s54, 5", "s_add_u32 s52, s52, s53", "s_lshl_b32 s52, s52, 17", "s_lshl_b32 s53, s3, 15",
          "s_add_u32 s52, s52, s53"] + srd(SOR, 48, "s52", ORSZ)
    if cfg.wpull == 1 or cfg.wl2: sw += ["s_mov_b32 s4, s56", "s_mov_b32 s5, s57", f"s_mov_b32 s6, {4096*1280}", "s_mov_b32 s7, 0x20000", "s_mov_b32 s38, 0"]
    if cfg.trunc: sw += ["s_mov_b32 s39, 0x07060302"]
    i = per[8] + 2
    k = 0
    while k < len(sw):
        n = 2 if "s_addc" in sw[min(k + 1, len(sw) - 1)] else 1
        for x in sw[k:k + n]: q.put(i, x)
        k += n; i += 2
    p9 = per[9]
    def qepi(u):
        o = []
        for m in range(4):
            t = 16 + 4 * (m & 1)
            o += scale_pack(cfg, O_(u, 2 * m), t, ("s44", "s[44:45]"), cfg.pkmul)
            if m:
                tp = 16 + 4 * ((m - 1) & 1)
                o += [f"v_accvgpr_write_b32 a{Q_(u,m-1)+i}, v{tp+i}" for i in range(4)]
            o += [f"v_permlane16_swap_b32 v{t}, v{t+2}", f"v_permlane16_swap_b32 v{t+1}, v{t+3}"]
        o += [f"v_accvgpr_write_b32 a{Q_(u,3)+i}, v{20+i}" for i in range(4)]
        return o
    q.put(p9 + 31, "WAITVM seg0k" if cfg.split0 else "WAITVM seg0"); q.put(p9 + 31, "s_barrier")
    for x in stamp_l(a, cfg, "b0"): q.put(p9 + 31, "!" + x)
    k0r = [kread(0, 0, 0, kt, ks) for kt in range(2) for ks in range(4)]
    for i, r in enumerate(k0r): q.put(p9 + 32 + 2 * i, r)
    if cfg.joint:
        assert BQ[10] < per[8]
        e = q.stream(qepi(0), per[8] + 32 + 4, cap=cfg.jcap)
        e = q.stream(qepi(1), max(e, p9 + 4), cap=cfg.jcap)
        e = q.stream(qepi(2), max(e, p9 + 32 + 4), cap=cfg.jcap)
    else:
        e = q.stream(qepi(0), p9 + 16 + 4, cap=4)
        e = q.stream(qepi(1), max(e, p9 + 32 + 4), cap=4)
        e = q.stream(qepi(2), max(e, p9 + 48 + 4), cap=4)
    q.put(p9 + 62, "s_waitcnt lgkmcnt(0)")
    lab = q.raw([])
    for x in stamp_l(a, cfg, "g0"): q.put(len(q.m) - 1, "!" + x)
    g0 = q.add(qk(0, 0, True))
    g1 = q.add(qk(1, 0, True))
    g2 = q.add(qk(2, 0, True))
    v0r = [vread(0, 0, 0, dt, e_) for dt in range(8) for e_ in range(2)]
    k1r = [kread(1, 0, 1, kt, ks) for kt in range(2) for ks in range(4)]
    if cfg.split0:
        for i, r in enumerate(k1r): q.put(g0 + i, r)
        q.put(g1 - 1, "!WAITVM seg0"); q.put(g1 - 1, "!s_barrier")
        for i, r in enumerate(v0r): q.put(g1 + i, r)
    else:
        for i, r in enumerate(v0r + k1r): q.put(g0 + i, r)
    e = q.stream(qepi(3), max(e, g0), cap=4)
    def fmax(u):
        s0 = S_(u, 0); t = NM(u)
        o = [f"v_max3_f32 v{t}, v{s0}, v{s0+1}, v{s0+2}", f"v_max3_f32 v{t+1}, v{s0+3}, v{s0+4}, v{s0+5}",
             f"v_max3_f32 v{t}, v{t}, v{s0+6}, v{s0+7}", f"v_max3_f32 v{t}, v{t}, v{t+1}, v{MTR+u}"]
        return o + [x for x in rowmax_l(t, t + 1) if "s_nop" not in x]
    def fexp(u, nexp):
        s0 = S_(u, 0); t = NM(u)
        o = [f"v_sub_f32 v{s0+r}, v{s0+r}, v{t}" for r in range(8)]
        o += [f"v_exp_f32 v{s0+r}, v{s0+r}" for r in range(nexp)]
        o += [f"v_sub_f32 v{NM(u)+i}, 0, v{t}" for i in (1, 2, 3, 0)]
        o += [ppack(P_(u) + r // 2, s0 + r) for r in range(0, nexp, 2)]
        return o
    ones = [f"v_mov_b32 v{LA[u]}, 0" for u in cfg.addu] + ["v_mov_b32 v27, 0x3f803f80"] + [f"v_accvgpr_write_b32 a{ONES+i}, v27" for i in range(4)]
    e = q.stream(merge(fmax(0), fmax(1), ones), max(e, g2 + 1), cap=4)
    for x in stamp_l(a, cfg, "g3"): q.put(len(q.m) - 1, "!" + x)
    if cfg.epark:
        q.put(len(q.m) - 1, "!s_cmp_lg_u32 s35, 0"); q.put(len(q.m) - 1, "!s_cbranch_scc1 L_exact")
    g3 = q.add(qk(3, 0, True))
    e = q.stream(merge(fexp(0, 8), fmax(2)), g3, cap=6)
    q.raw(["s_waitcnt lgkmcnt(0)"])
    for x in stamp_l(a, cfg, "g4"): q.put(len(q.m) - 1, "!" + x)
    g4 = q.add(pv(0, 0, True))
    e = q.stream(merge(fexp(1, 8), fmax(3)), g4, cap=5)
    for x in stamp_l(a, cfg, "g5"): q.put(len(q.m) - 1, "!" + x)
    g5 = q.add(pv(1, 0, True))
    e = q.stream(merge(fexp(2, 8), fexp(3, 4)), g5, cap=7)
    for x in stamp_l(a, cfg, "tile1"): q.raw([x])
    st1 = attn_tile(cfg, q, 1, "first")
    if cfg.sig == "line":
        arr = ["s_and_b32 s52, s2, 31", "s_lshl_b32 s52, s52, 3", "v_mov_b32 v16, s52", "v_mov_b32 v17, 1", "s_cmp_lg_u32 s3, 0", "s_cbranch_scc1 L_noarr",
               "s_mov_b64 exec, 1", "global_atomic_add v16, v17, s[46:47] sc1 ;@skip", "s_mov_b64 exec, -1", "L_noarr:"]
        for x in arr: q.put(st1[8] - 1, "!" + x)
    kv = []
    NP = 32 - cfg.lag if not cfg.uni else cfg.ipre - 2
    if cfg.bm and not cfg.uni: NP = 30 - cfg.lag
    for gp in range(NP): kv += piece(cfg, gp, False) if not cfg.uni else upiece(cfg, gp)
    if cfg.uni:
        q.place(upiece(cfg, NP), [st1[4] + 1]); q.place(upiece(cfg, NP + 1), [st1[6] + 1])
    pos = []
    i = BQ[7] + cfg.bsp + 3 + cfg.kvdelay; acc = 4 * cfg.kvpace
    free_at = [0, BQ[8], BQ[8], BQ[8], BQ[9], BQ[9], BQ[9], BQ[10]]
    if cfg.uni: free_at = [BQ[8], BQ[8], BQ[8], BQ[8], BQ[9], BQ[9], BQ[10], BQ[10]]
    while len(pos) < NP:
        ok = q.m[i] and q.m[i - 1] and q.m[i + 1] and (q.slots(i) < 2 or i > (p9 + 16 if not cfg.joint else per[8] + 32)) and i > free_at[len(pos) // 4]
        if ok and acc >= ((cfg.kvpace if not cfg.kvp2 or i < p9 + cfg.kvsw else cfg.kvp2) if not cfg.bmi else (4 * cfg.kvpace - 3 * cfg.bmi if len(pos) % 4 == 0 else cfg.bmi)):
            pos.append(i); acc = 0
        acc += max(4, 2 + q.slots(i)) / 4
        i += 1
    assert pos[3 if cfg.split0 else 7] < p9 + 31 and pos[7] < g1 - 2 and pos[-1] < (st1[4] - 2 if cfg.bm != 3 else st1[2] + 3), (pos, p9, st1)
    if "nokv23" in cfg.exp: kv = [("buffer_dummy ;@" + x.split(";@")[1]) if (x.endswith("seg2") or x.endswith("seg3")) else x for x in kv]
    for k, (c, sg) in enumerate(cfg.touch):
        q.put(per[c] + cfg.tpos - 1, f"s_add_u32 s53, s40, {16384*sg}")
        q.put(per[c] + cfg.tpos, f"buffer_load_dword v255, v219, s[{SV if cfg.tkv[k % len(cfg.tkv)] == 'v' else SK}:{(SV if cfg.tkv[k % len(cfg.tkv)] == 'v' else SK)+3}], s53 offen {cfg.tflags}".rstrip())
    q.place(kv, pos)
    q.emit(a)
    a.l = fix(resolve_waits(a.l))
    a("s_mov_b32 s34, 3")
    a(".p2align 6")
    a("L_loop:")
    body0 = len(a.l)
    q = Seq()
    def loopstamp(q, p, pre):
        if cfg.stamps and pre in cfg.only.split(","):
            o = ["s_memtime s[4:5]", "s_memrealtime s[6:7]", "s_waitcnt lgkmcnt(0)"]
            for it in range(3):
                i = len(a.stamps); a.stamps.append(f"{pre}{it}")
                o += [f"s_cmp_eq_u32 s34, {3-it}", f"s_cselect_b32 s{60+4*i}, s4, s{60+4*i}", f"s_cselect_b32 s{62+4*i}, s6, s{62+4*i}"]
            for x in o: q.put(p, x)
    for j in range(2, 10):
        st = attn_tile(cfg, q, j)
        if j == 2: loopstamp(q, st[4] - 1, "ia")
        if j == 6: loopstamp(q, st[4] - 1, "ib")
        if cfg.wl2 and j % 2 == 0:
            q.put(st[3] + 1, f"buffer_load_dword v16, v255, s[4:7], s38 offen {cfg.wl2f}".rstrip())
            q.put(st[3] + 2, f"s_add_u32 s38, s38, {3*1280}")
        if cfg.wpull == 1 and j == 4:
            q.put(st[3] + 1, "buffer_load_dword v16, v255, s[4:7], s38 offen")
            q.put(st[3] + 2, f"s_add_u32 s38, s38, {56*128}")
        if j in (5, 7):
            for x in reversed(stamp_l(a, cfg, f"w{j}a")): q.g[st[4] - 1].insert(0, x)
            for x in stamp_l(a, cfg, f"w{j}b"): q.put(st[4] - 1, x)
        if j == 6:
            for x in reversed(stamp_l(a, cfg, f"d{j}a")): q.g[st[2] + 1].insert(0, x)
            for x in stamp_l(a, cfg, f"d{j}b"): q.put(st[2] + 1, "!" + x)
    if cfg.uni:
        n = len(q.m); cnt = cfg.upi; ps = []
        for k in range(cnt):
            if cfg.ucl:
                p = int((k // cfg.ucl + cfg.uph) * n / (cnt // cfg.ucl)) + 1 if k % cfg.ucl == 0 else ps[-1] + (2 if k & 1 else 3)
                while q.slots(p) >= (2 if k % cfg.ucl == 0 else 3) or any(x.startswith("v_exp") for x in q.g[p]) or "UNIWAIT" in q.g[p] or "UNIWAIT" in q.g[p - 1]: p += 1
            else:
                p = int((k + 0.1) * n / cnt) + 1
                while q.slots(p) >= 2 or "UNIWAIT" in q.g[p] or "UNIWAIT" in q.g[p - 1]: p += 1
            ps.append(p)
        assert ps[-1] < n - 4 and cfg.ipre % 2 == 0 and cnt % 2 == 0
        for k, p in enumerate(ps): q.place(upiece(cfg, k), [p])
        for bi, p in enumerate([i for i in range(n) if "UNIWAIT" in q.g[i]]):
            before = sum(1 for x in ps if x < p)
            m = 2 + bi + 8
            nw = cfg.ipre + 2 * cnt + before - 8 * (m + 1)
            assert cfg.ipre + before <= 8 * (2 + bi - 1 + 4) and nw >= 4, (bi, nw)
            q.g[p][q.g[p].index("UNIWAIT")] = f"s_waitcnt vmcnt({nw}) lgkmcnt(0)"
        IEND = cfg.ipre + 3 * cnt
    if cfg.pad:
        for i in range(0, len(q.m), cfg.pad): q.put(i, "!s_nop 3")
    if "lnobar" in cfg.exp: q.g = [[x for x in gp if x != "s_barrier"] for gp in q.g]
    if "lnodma" in cfg.exp: q.g = [[x for x in gp if kind(x.lstrip("!")) != "vm"] for gp in q.g]
    if "lnods" in cfg.exp: q.g = [[x for x in gp if kind(x.lstrip("!")) != "ds"] for gp in q.g]
    if "lnowait" in cfg.exp: q.g = [[x for x in gp if not (x.startswith("s_waitcnt") and "s_cmp_eq_u32 s34, 3" not in gp)] for gp in q.g]
    if "lnocvt" in cfg.exp: q.g = [[x for x in gp if not x.startswith("v_cvt")] for gp in q.g]
    q.put(-3, "s_sub_u32 s34, s34, 1")
    q.put(-1, "s_cmp_lg_u32 s34, 0"); q.put(-1, "s_cbranch_scc1 L_loop")
    q.emit(a)
    a.l = a.l[:body0] + [x.split(" ;@")[0] for x in a.l[body0:]]
    body = a.l[body0:]
    b = Asm(); b.stamps = a.stamps
    if cfg.uni:
        for gp in range(104, IEND): b(f"buffer_dummy ;@seg{gp//8}" + ("k" if gp >= 120 and gp % 2 == 0 else ""))
    else:
        for gp in range(104, 130 - cfg.lag): b(f"buffer_dummy ;@seg{gp//8}" + ("k" if gp % 8 < 4 else ""))
    q = Seq()
    if "nowo" in cfg.exp: b(f"s_mov_b32 s{SWO+2}, 0")
    for x in stamp_l(b, cfg, "t26"): b(x)
    sts = {j: attn_tile(cfg, q, j, "final") for j in range(26, 30)}
    if cfg.uni:
        rest = [(0, n_) for n_ in range(IEND // 2, 64)] + [(1, n_) for n_ in range(IEND // 2, 64)]
        p = sts[26][0] + 2
        for kv_, n_ in rest:
            d = 4096 * (n_ - IEND // 2)
            lst = [f"s_add_u32 s53, s33, {d}", f"s_and_b32 m0, s53, 0xffff"] + (["s_or_b32 m0, m0, 0x10000"] if kv_ else []) + \
                  [dma(VDA if kv_ else KDA, SV if kv_ else SK, "s53", 0, cfg.kvflags) + f" ;@seg{n_>>2}" + ("k" if not kv_ and n_ >= 60 else "")]
            pp_ = max(p, sts[26][0] + 3)
            while q.slots(pp_) >= 2 and not cfg.ucl: pp_ += 1
            q.place(lst, [pp_]); p = max(p + cfg.urest, pp_ + (5 if not cfg.ucl else (3 if not kv_ and n_ < 63 else 4))); KVEND = pp_
    def wpos(st, half):
        return [st[4*half] + 1, st[4*half+1] + 8 if half == 0 else st[5] + 1, st[4*half+2] + (7 if half == 0 else 1), st[4*half+3] + 1]
    if cfg.wsched == 0:
        for j, (t0, t1) in {26: (0, 1), 27: (2, 3), 28: (4, 5), 29: (10, 6)}.items():
            st = sts[j]
            q.place(wdma(cfg, t0), [st[1] + 8, st[2] + 7, st[3] + 1, st[3] + 5])
            q.place(wdma(cfg, t1), [st[5] + 8, st[6] + 1, st[6] + 5, st[7] + 5])
    elif cfg.wsched >= 3:
        pass
    elif cfg.wsched == 2:
        st = sts[26]
        if cfg.uni and cfg.ucl:
            assert KVEND < st[4] - 3
            q.place(wdma(cfg, 0), [st[4] + 1, st[5] + 1, st[5] + 8, st[7] + 1])
        elif cfg.uni:
            st = sts[27]
            assert KVEND < st[0] - 6
            q.place(wdma(cfg, 0), [st[0] + 1, st[1] + 3, st[2] + 1, st[3] + 1])
            q.place(wdma(cfg, 1), [st[4] + 1, st[5] + 3, st[6] + 1, st[7] + 1])
            st = sts[28]
            q.place(wdma(cfg, 2), [st[0] + 1, st[1] + 1, st[1] + 8, st[2] + 5])
            q.place(wdma(cfg, 5), [st[3] + 3, st[3] + 5, st[3] + 7, st[4] + 1])
            q.place(wdma(cfg, 6), [st[5] + 8, st[6] + 1, st[6] + 5, st[7] + 5])
        else: q.place(wdma(cfg, 0), [st[2] + 7, st[4] + 1, st[5] + 8, st[7] + 1])
        if cfg.wv:
            st = sts[29]
            q.place(wdma(cfg, 6), [st[0] + 5, st[1] + 8, st[2] + 7, st[3] + 5])
            q.place(wdma(cfg, 4), [st[4] + 5, st[4] + 7, st[5] + 3, st[5] + 7])
            q.place(wdma(cfg, 7), [st[6] + 5, st[6] + 7, st[7] + 3, st[7] + 5])
        for j, (t0, t1) in (({27: (1, 5), 28: (2, 6), 29: (3, 7)} if not cfg.wv else {27: (1, 5), 28: (2, 3)}) if not cfg.uni or cfg.ucl else {29: (3, 7)}).items():
            st = sts[j]
            q.place(wdma(cfg, t0), [st[0] + 5, st[1] + 8, st[2] + 7, st[3] + 5])
            q.place(wdma(cfg, t1), [st[5] + 8, st[6] + 1, st[6] + 5, st[7] + 5])
    else:
        st = sts[27]
        q.place(wdma(cfg, 0), [st[5] + 8, st[6] + 1, st[6] + 5, st[7] + 5])
        st = sts[28]
        q.place(wdma(cfg, 1), [st[0] + 5, st[0] + 7, st[1] + 1, st[1] + 3])
        q.place(wdma(cfg, 2), [st[2] + 1, st[2] + 7, st[3] + 1, st[3] + 5])
        q.place(wdma(cfg, 3), [st[5] + 8, st[6] + 1, st[6] + 5, st[7] + 5])
        st = sts[29]
        q.place(wdma(cfg, 4), [st[0] + 5, st[0] + 7, st[1] + 1, st[1] + 3])
        q.place(wdma(cfg, 5), [st[2] + 1, st[2] + 3, st[2] + 5, st[2] + 7])
        q.place(wdma(cfg, 10), [st[3] + 5, st[3] + 7, st[4] + 1, st[4] + 3])
        q.place(wdma(cfg, 6), [st[5] + 8, st[6] + 1, st[6] + 5, st[7] + 5])
    if cfg.sig == "line": q.put(sts[26][3] + 1, "global_load_dword v255, v0, s[46:47] sc1 ;@arr")
    if cfg.tlb:
        so = ["s_mul_i32 s52, s43, 240", "s_mul_i32 s53, s54, 80", "s_add_u32 s52, s52, s53", "s_mul_i32 s52, s52, 1280", "s_lshl_b32 s53, s55, 7", "s_add_u32 s52, s52, s53"]
        st = sts[27]
        for k, x in enumerate(so): q.g[st[4] + 2 + k].insert(0, x)
        sd = srd(SOUT, 58, "s52", 79 * 1280 + 128)
        q.g[st[4] + 8][0:0] = sd[:2]; q.g[st[5]][0:0] = sd[2:]
        q.put(st[5] + 1, f"buffer_load_dword v16, off, s[{SOUT}:{SOUT+3}], 0")
        q.put(st[5] + 3, f"buffer_load_dword v16, off, s[{SO}:{SO+3}], 0")
        q.put(st[5] + 5, f"buffer_load_dword v16, off, s[{SOR}:{SOR+3}], 0")
    if cfg.wsched < 3:
        st = sts[28]
        q.g[st[5] + 8].insert(0, "WAITVM w0")
        q.g[sts[29][4]].insert(0, "WAITVM w1")
        for p, r in zip([st[5] + 8, st[6] + 1, st[6] + 3, st[6] + 5, st[6] + 7, st[7] + 1, st[7] + 1, st[7] + 3], wreads(0)): q.put(p, r)
        k = q.g[st[8] - 2].index("s_waitcnt lgkmcnt(0)"); q.g[st[8] - 2][k] = "s_waitcnt lgkmcnt(8)"
        st = sts[29]
        q.put(st[1] + 7, "s_waitcnt lgkmcnt(10)")
        for p, r in zip([st[4] + 1, st[4] + 5, st[5] + 1, st[5] + 5, st[5] + 8, st[6] + 1, st[6] + 3, st[6] + 5], wreads(1)): q.put(p, r)
        k = q.g[st[7]].index("s_waitcnt lgkmcnt(0)"); q.g[st[7]][k] = "s_waitcnt lgkmcnt(4)"
    st = sts[29]
    for p, r in zip([st[7] + k for k in (1, 1, 3, 5, 7, 8, 8)] + [st[8]], [kread(1, 3, 1, kt, ks) for kt in range(2) for ks in range(4)]):
        if p < st[8]: q.put(p, r)
        else: lastk = r
    for x in stamp_l(b, cfg, "t30"): q.put(len(q.m) - 1, "!" + x)
    if cfg.w3: q.put(len(q.m) - 1, "!L_sec1:")
    job = lambda k: (k >> 1, k & 1, k & 3)
    F = []
    for k in range(8):
        u, tb, sl = job(k)
        F.append(q.add(qk(u, tb, sl=sl)))
        if k < 2: F.append(q.add(pv(2 + k, 1)))
        else:
            u, tb, sl = job(k - 2); F.append(q.add(pv(u, tb, sl=sl)))
    for k in (6, 7):
        u, tb, sl = job(k); F.append(q.add(pv(u, tb, sl=sl)))
    F.append(len(q.m))
    sm_half(q, F[0], 3, 1)
    for k in range(8):
        sm_half(q, F[2 * k + 1], k & 3, 0); sm_half(q, F[2 * k + 2], k & 3, 1)
    q.put(F[0] + 1, lastk)
    v30 = [vread(0, 3, 0, dt, e) for dt in range(8) for e in range(2)]
    v31 = [vread(1, 3, 1, dt, e) for dt in range(8) for e in range(2)]
    if not cfg.split15:
        for p, r in zip([F[0] + k for k in (1, 3, 5, 5, 7)] + [F[1] + k for k in (1, 1, 3, 5, 5, 7)] + [F[2] + k for k in (1, 1, 3, 5, 5)], v30): q.put(p, r)
        q.put(F[1] + 8, "s_waitcnt lgkmcnt(10)")
        for p, r in zip([F[4] + k for k in (1, 1, 3, 5, 5, 7)] + [F[5] + k for k in (1, 1, 3, 5, 5, 7, 8, 8)] + [F[6] + k for k in (1, 1)], v31): q.put(p, r)
        q.put(F[4], "s_waitcnt lgkmcnt(0)")
        q.place(wdma(cfg, 11), [F[2] + 7, F[3] + 1, F[3] + 3, F[3] + 5])
        q.place(wdma(cfg, 7), [F[5] + 3, F[5] + 7, F[6] + 3, F[6] + 5])
    else:
        q.put(F[1] + 8, "WAITVM seg15 lgkmcnt(0)"); q.put(F[1] + 8, "s_barrier")
        for p, r in zip([F[2] + k for k in (1, 1, 3, 5, 5, 7)] + [F[3] + k for k in (1, 1, 3, 5, 5, 7, 8, 8)] + [F[4] + k for k in (1, 1)], v30): q.put(p, r)
        for p, r in zip([F[4] + k for k in (3, 5, 5, 7)] + [F[5] + k for k in (1, 1, 3, 5, 5, 7, 8, 8)] + [F[6] + k for k in (1, 1, 3, 3)], v31): q.put(p, r)
        q.put(F[5] - 1, "s_waitcnt lgkmcnt(3)")
        if cfg.wsched >= 3:
            pass
        elif cfg.wv:
            q.place(wdma(cfg, 10), [F[0] + 5, F[0] + 7, F[1] + 3, F[1] + 7] if cfg.wv == 1 else [F[2] + 4, F[2] + 6, F[3], F[3] + 2])
            q.place(wdma(cfg, 11), [F[4], F[4] + 2, F[4] + 4, F[4] + 6])
        elif cfg.wsched == 2:
            q.place(wdma(cfg, 4), [F[0] + 5, F[0] + 7, F[1] + 3, F[1] + 7])
            q.place(wdma(cfg, 10), [F[2] + 4, F[2] + 6, F[3], F[3] + 2])
            q.place(wdma(cfg, 11), [F[4], F[4] + 2, F[4] + 4, F[4] + 6])
        else:
            q.place(wdma(cfg, 11), [F[0] + 5, F[0] + 7, F[1] + 1, F[1] + 3])
            q.place(wdma(cfg, 7), [F[2], F[2] + 4, F[3] + 2, F[3] + 6])
    q.put(F[7] - 1, "s_waitcnt lgkmcnt(0)"); q.put(F[7] - 1, "s_barrier")
    issued = set(range(12))
    if cfg.wsched < 3:
        q.place(wdma(cfg, 8), [F[7] + 5, F[7] + 7, F[7] + 8, F[8] + 1])
        q.place(wdma(cfg, 9), [F[8] + 7, F[9] + 1, F[9] + 3, F[9] + 5])
    else:
        issued = set()
        free = {0: 0, 4: 0, 8: 0, 9: 0, 1: sts[27][4], 5: sts[27][4], 2: sts[29][4], 6: sts[29][4], 3: F[7], 7: F[7]}
        p = sts[26][4] + 1 + cfg.wdelay
        for t in range(cfg.wn):
            sp = cfg.wp if t < 5 else cfg.wp2
            p = max(p, free[UNIT[t]] + 6)
            ps = []
            for k in range(4):
                pp_ = p
                while t < 5 and q.slots(pp_) >= 2: pp_ += 1
                ps.append(pp_); p = max(p + sp, pp_ + (1 if k < 3 else 6))
            assert ps[-1] < F[18], (t, ps)
            q.place(wdma(cfg, t), ps); issued.add(t)
    if "nost" in cfg.exp: q.g[F[4]].insert(0, f"s_mov_b32 s{SO+2}, 0")
    def onorm(u, store=True):
        o = [f"v_accvgpr_read_b32 v16, a{L_(u)}"]
        if u in cfg.addu:
            t = LA[u]
            o += [f"v_mov_b32 v17, v{t}", f"v_permlane32_swap_b32 v{t}, v17", f"v_add_f32 v{t}, v{t}, v17",
                  f"v_mov_b32 v17, v{t}", f"v_permlane16_swap_b32 v{t}, v17", f"v_add_f32 v{t}, v{t}, v17", f"v_add_f32 v16, v16, v{t}"]
        o += ["v_cmp_ngt_f32 vcc, s36, v16", "v_rcp_f32 v16, v16", "s_or_b64 s[50:51], s[50:51], vcc", "v_mov_b32 v17, v16"]
        for m in range(4):
            t = O_(u, 0) + 4 * m
            o += scale_pack(cfg, O_(u, 2 * m), t, ("v16", "v[16:17]"), cfg.opk == 1 or (cfg.opk == 2 and u == 3))
            if store: o += ostore(u)[m:m + 1]
        if store: o += ostore(u)[4:]
        return o
    def ostore(u):
        return [f"buffer_store_dwordx4 {vr(O_(u,0)+4*m,4)}, v15, s[{SO}:{SO+3}], s30 offen offset:{1024*m} {cfg.oflags}".rstrip() + " ;@ost" for m in range(4)] + ["s_add_u32 s30, s30, 131072"]
    for k, x in enumerate([f"s_mov_b32 s36, {f32(cfg.lthr)}", "s_mov_b64 s[50:51], 0", "s_lshl_b32 s30, s3, 19", "s_lshl_b32 s31, s29, 12", "s_add_u32 s30, s30, s31"]):
        q.g[F[4] + 2 + k].insert(0, x)
    for k in (2, 4, 6, 8, 10, 12, 14, 16):
        for x in stamp_l(b, cfg, f"F{k}"): q.put(F[k] - 1, "!" + x)
    if cfg.epark:
        def epark(t, p0, refill_at):
            q.g[p0].insert(0, f"WAITVM w{t}")
            for k, r in enumerate(wreads(t)): q.put(p0 + 2 * (k // 2), r)
            if refill_at:
                q.place(wdma(cfg, t + 10), refill_at)
                q.g[refill_at[0]].insert(0, f"WAITLG p{t}")
        epark(2, F[7] + 1, [F[10] + 3, F[10] + 5, F[10] + 7, F[11] + 1])
        epark(3, F[9] + 1, [F[11] + 7, F[11] + 8, F[12] + 1, F[12] + 3])
        epark(5, F[11] + 2, [F[13] + 1, F[13] + 3, F[13] + 5, F[13] + 7])
        epark(6, F[13] + 2, [F[14] + 5, F[14] + 7, F[15] + 1, F[15] + 3])
        epark(7, F[14] + 1, [F[16] + 1, F[16] + 3, F[16] + 5, F[16] + 7])
        epark(4, F[15] + 2, [F[17] + 5, F[17] + 6, F[17] + 7, F[17] + 8])
        epark(8, F[16] + 2, None)
        epark(9, F[17] + 1, None)
    if cfg.fsig:
        for t, p0 in ((2, F[13] + 2), (3, F[14] + 1), (4, F[15] + 2), (5, F[16] + 1)):
            q.g[p0].insert(0, f"WAITVM w{t}")
            for k, r in enumerate(wreads(t)): q.put(p0 + 2 * (k // 2), r)
    if cfg.early == 1:
        e = q.stream(onorm(0), F[8] + 4, cap=cfg.ncap)
        e = q.stream(onorm(1), max(e, F[12] + 4), cap=cfg.ncap)
        e = q.stream(onorm(2), max(e, F[16] + 4), cap=cfg.ncap + 2)
    if cfg.early >= 2:
        e = q.stream(onorm(0, False), F[8] + 4, cap=cfg.ncap)
        e = q.stream(onorm(1, False), max(e, F[12] + 4), cap=cfg.ncap)
        e = q.stream(onorm(2, False), max(e, F[16] + 4), cap=cfg.ncap + 2)
        if cfg.early == 3:
            for k, x in enumerate(ostore(0) + ostore(1)): q.put(min(F[16] + 8 + k, F[18] - 1), x if kind(x) == "vm" else "!" + x)
    q.emit(b)
    if cfg.early == 2: b.ext(ostore(0) + ostore(1) + ostore(2))
    if cfg.early == 3: b.ext(ostore(2))
    if not cfg.early: b.ext(onorm(0) + onorm(1) + onorm(2))
    stamp(b, cfg, "loopend")
    if "nowo" in cfg.exp: b(f"s_mov_b32 s{SWO+2}, {WOSZ}")
    def park(t): return [f"WAITVM w{t}"] + wreads(t)
    def refill(t): return with_nop(wdma(cfg, t + 10))
    DU = UNIT[9 if cfg.epark else 2]
    if cfg.fsig:
        on3 = onorm(3)
        k3 = on3.index("s_or_b64 s[50:51], s[50:51], vcc") + 1
        b.ext(on3[:k3])
        if cfg.force_fb: b("s_mov_b64 s[50:51], -1")
        b("s_cmp_lg_u64 s[50:51], 0")
        b("s_cselect_b32 s52, 1, 0")
        b(f"s_add_u32 s53, s40, {16384*DU}")
        b("v_mov_b32 v20, s52")
        b("v_mov_b32 v21, s53")
        b("WAITLG p2")
        b("ds_write_b32 v21, v20")
        b.ext(on3[k3:])
        stamp(b, cfg, "stored")
        b("v_and_b32 v18, 3, v1")
        b("v_lshlrev_b32 v18, 12, v18")
        b(f"v_add_u32 v18, {16384*DU}, v18")
        b("s_waitcnt lgkmcnt(0)")
        b("s_barrier")
        b("ds_read_b32 v20, v18")
        b.ext(refill(3) + refill(4))
        b("s_waitcnt lgkmcnt(0)")
        b("v_cmp_ne_u32 vcc, 0, v20")
        b("s_cmp_eq_u32 s35, 0")
        b("s_cselect_b64 s[52:53], vcc, 0")
        b("s_cmp_lg_u64 s[52:53], 0")
        b("s_cbranch_scc1 L_exact")
        if cfg.swarm:
            b("s_lshl2_add_u32 s52, s43, s3")
            b("s_lshl_b32 s52, s52, 10")
            b(f"s_add_u32 s52, s52, {FOFF}")
            b("s_add_u32 s30, s48, s52")
            b("s_addc_u32 s31, s49, 0")
            for k in range(8): b(f"s_load_dword s36, s[30:31], {128*k} glc")
        if cfg.fsig == 2: b.ext(park(6) + park(7))
    else:
        if cfg.wsched >= 3:
            DU = UNIT[0] if cfg.wn else UNIT[9]
            late = [t for t in range(10) if t not in issued]
            for t in late[:3]:
                if UNIT[t] != DU: b.ext(with_nop(wdma(cfg, t))); issued.add(t)
            if cfg.wn: b.ext(park(0))
        elif cfg.epark: b.ext(park(10) + park(11))
        else: b.ext(park(2) + park(3))
        b.ext(onorm(3))
        stamp(b, cfg, "stored")
        if cfg.force_fb: b("s_mov_b64 s[50:51], -1")
        b("s_cmp_lg_u64 s[50:51], 0")
        b("s_cselect_b32 s52, 1, 0")
        b(f"s_add_u32 s53, s40, {16384*DU}")
        b("v_mov_b32 v16, s52")
        b("v_mov_b32 v17, s53")
        b("v_and_b32 v18, 3, v1")
        b("v_lshlrev_b32 v18, 12, v18")
        b(f"v_add_u32 v18, {16384*DU}, v18")
        b("s_waitcnt lgkmcnt(0)")
        b("ds_write_b32 v17, v16")
        if cfg.wsched >= 3: pass
        elif cfg.epark: b.ext(refill(8) + park(12) + park(13))
        else: b.ext(refill(3) + park(4) + park(5))
        b("s_waitcnt lgkmcnt(0)")
        b("s_barrier")
        b("ds_read_b32 v20, v18")
        parked = [0] if cfg.wsched >= 3 and cfg.wn else []
        if cfg.wsched >= 3:
            for t in range(1, min(cfg.wn, 6)): b.ext(park(t)); parked.append(t)
        elif cfg.epark: b.ext(refill(10))
        else: b.ext(refill(4) + park(6) + park(7))
        b("s_waitcnt lgkmcnt(0)")
        b("v_cmp_ne_u32 vcc, 0, v20")
        b("s_cmp_eq_u32 s35, 0")
        b("s_cselect_b64 s[52:53], vcc, 0")
        b("s_cmp_lg_u64 s[52:53], 0")
        b("s_cbranch_scc1 L_redo" if cfg.epark else "s_cbranch_scc1 L_exact")
        if not cfg.sigfirst: b.ext(park(8) + park(9) + park(10) + park(11))
    if cfg.sig == "line":
        b("s_lshl_b32 s52, s28, 5")
        b("s_add_u32 s52, s52, s29")
        b("s_lshl_b32 s52, s52, 7")
        b(f"s_add_u32 s52, s52, {FOFF}")
    else:
        b("s_lshl_b32 s52, s28, 2")
        b("s_lshr_b32 s53, s29, 3")
        b("s_add_u32 s52, s52, s53")
        b("s_lshl_b32 s52, s52, 3")
    b("v_mov_b32 v16, s52")
    b("v_mov_b32 v17, 1")
    if cfg.wsched >= 3:
        for t in parked[1:3]: b.ext(refill(t)); issued.add(t + 10)
    elif cfg.epark: b.ext(refill(11))
    elif cfg.pre5: b.ext(refill(5))
    b("WAITVM ost")
    b("s_barrier")
    b("s_cmp_lg_u32 s3, 0")
    b("s_cbranch_scc1 L_nosig")
    if cfg.ssig:
        b("s_mov_b32 s53, 1")
        b("s_atomic_or s53, s[48:49], s52")
    else:
        b("s_mov_b64 exec, 1")
        if cfg.sig == "line": b("global_store_dword v16, v17, s[48:49] sc1 ;@skip")
        else: b("global_atomic_add v16, v17, s[46:47] sc1 ;@skip")
        b("s_mov_b64 exec, -1")
    b("L_nosig:")
    stamp(b, cfg, "signaled")
    b("s_lshr_b32 s52, s2, 3")
    b("s_cmp_ge_u32 s52, 30")
    b("s_cbranch_scc1 L_fin")
    if cfg.wsched >= 3:
        for t in range(10):
            if t not in issued: b.ext(with_nop(wdma(cfg, t))); issued.add(t)
        for t in parked:
            if t + 10 not in issued: b.ext(refill(t)); issued.add(t + 10)
        prev = None
        for t in range(12):
            if t in parked: continue
            b.ext(park(t))
            if prev is not None: b(f"WAITLG p{prev}"); b.ext(refill(prev))
            prev = t
        b("s_waitcnt lgkmcnt(0)")
        b.ext(refill(prev))
    elif cfg.epark:
        b.ext(refill(9) + refill(12))
    elif cfg.fsig:
        b.ext(refill(2) + ([] if cfg.fsig == 2 else park(6) + park(7)) + park(8) + park(9))
        b("WAITLG p7")
        b.ext(refill(6) + park(10) + park(11) + refill(7))
        b("s_waitcnt lgkmcnt(0)")
        for t in range(8, 12): b.ext(refill(t))
    elif cfg.sigfirst:
        b.ext(refill(2) + ([] if cfg.pre5 else refill(5)) + park(8) + park(9) + refill(6) + park(10) + park(11) + refill(7))
        b("s_waitcnt lgkmcnt(0)")
        for t in range(8, 12): b.ext(refill(t))
    else:
        b("s_waitcnt lgkmcnt(0)")
        b.ext(refill(2))
        for t in range(5, 12): b.ext(refill(t))
    b("s_lshl_b32 s52, s43, 2")
    b("s_add_u32 s52, s52, s3")
    if cfg.sig == "line":
        b("s_lshl_b32 s52, s52, 10")
        b(f"s_add_u32 s52, s52, {FOFF}")
        b("v_and_b32 v16, 7, v1")
        b("v_lshlrev_b32 v16, 7, v16")
        b("v_add_u32 v16, s52, v16")
        pbase = "s[48:49]"
    else:
        b("s_lshl_b32 s52, s52, 3")
        b("v_mov_b32 v16, s52")
        pbase = "s[46:47]"
    prev = 13 if cfg.epark else None
    for t in range(14 if cfg.epark else 12, cfg.R):
        if cfg.epoll and t == max(cfg.epoll, 14 if cfg.epark else 0): b(f"global_load_dword v17, v16, {pbase} sc1 ;@ep")
        b.ext(park(t))
        if prev is not None and prev + 10 < cfg.X:
            b("s_waitcnt lgkmcnt(8)")
            b.ext(refill(prev))
        prev = t
    b("s_waitcnt lgkmcnt(0)")
    if prev + 10 < cfg.X: b.ext(refill(prev))
    stamp(b, cfg, "parked")
    b("s_mov_b32 s34, 0x100000")
    want = 1 if cfg.sig == "line" else 8
    cmpi = "v_cmp_ne_u32 vcc, 1, v17" if cfg.sig == "line" else "v_cmp_gt_u32 vcc, 8, v17"
    if cfg.sig == "line":
        b("WAITVM arr")
        b("v_cmp_gt_u32 vcc, 8, v255")
        b("s_cbranch_vccz L_cleared")
        b("L_wclr:")
        b("global_load_dword v255, v0, s[46:47] sc1 ;@skip")
        b("s_waitcnt vmcnt(0)")
        b("v_cmp_gt_u32 vcc, 8, v255")
        b("s_sub_u32 s34, s34, 1")
        b("s_cselect_b64 vcc, 0, vcc")
        b("s_cbranch_vccnz L_wclr")
        b("s_branch L_poll")
        b("L_cleared:")
    if cfg.epoll:
        b("WAITVM ep")
        b(cmpi)
        b("s_cbranch_vccz L_ready")
    b("L_poll:")
    b(f"global_load_dword v17, v16, {pbase} sc1")
    b("s_waitcnt vmcnt(0)")
    b(cmpi)
    b("s_sub_u32 s34, s34, 1")
    b("s_cselect_b64 vcc, 0, vcc")
    b("s_cbranch_vccnz L_poll")
    b("L_ready:")
    stamp(b, cfg, "polled")
    worder = [x.split(";@")[1] for x in b.l if ";@w" in x and kind(x) == "vm"]
    check_setup(b.l, "tail")
    a.l += fix(resolve_waits(b.l))
    c = Asm(); c.stamps = a.stamps
    for t_ in worder: c(f"buffer_dummy ;@{t_}")
    ACC = lambda i, nt: 32 + 16 * i + 4 * nt
    OFB = [112, 132, 152, 172, 192]
    OF = lambda t, i: OFB[t % cfg.DO] + 4 * i
    def oload(t):
        return [x + f" ;@o{t}" for x in [f"s_add_u32 s30, s41, {t}", "s_lshl_b32 s30, s30, 10", "s_and_b32 s30, s30, 0x7fff"]] + \
            tag([f"buffer_load_dwordx4 {vr(OF(t,i),4)}, v{OAL[i]}, s[{SOR}:{SOR+3}], s30 offen {cfg.orflags}".rstrip() for i in range(5)], f"o{t}")
    for t in range(cfg.DO - 1): c.ext(oload(t))
    if not cfg.tlb:
        c("s_mul_i32 s52, s43, 240")
        c("s_mul_i32 s53, s54, 80")
        c("s_add_u32 s52, s52, s53")
        c("s_mul_i32 s52, s52, 1280")
        c("s_lshl_b32 s53, s55, 7")
        c("s_add_u32 s52, s52, s53")
        c.ext(srd(SOUT, 58, "s52", 79 * 1280 + 128))
    for j in range(1, 4):
        c(f"s_add_u32 s52, s3, {j}")
        c("s_and_b32 s52, s52, 3")
        c("s_mul_i32 s52, s52, 15360")
        c(f"v_add_u32 v{240+j}, s52, v15")
    c("s_mul_i32 s52, s3, 15360")
    c("v_add_u32 v240, s52, v15")
    c("v_mul_u32_u24 v244, 1280, v2")
    c("v_lshl_add_u32 v244, v3, 3, v244")
    nextw = cfg.X
    q = Seq()
    NL = cfg.NL
    for t in range(32 - NL):
        mf = []
        for i in range(5):
            for nt in range(4):
                d = vr(ACC(i, nt), 4)
                mf.append(f"{MF} {d}, {WS(t,nt)}, {vr(OF(t,i),4)}, {'0' if t == 0 else d}")
        q.raw([f"WAITVM o{t} lgkmcnt(0)"] + (stamp_l(c, cfg, f"p{t}") if t in (1, 4, 8, 16, 24) else []))
        g = q.add(mf)
        if t + cfg.DO - 1 < 32: q.place(oload(t + cfg.DO - 1), [g + 4, g + 6, g + 9, g + 12, g + 15])
        tr = t + cfg.R - 1
        if t >= 1 and tr < 32:
            q.g[g].insert(0, f"WAITVM w{tr}")
            for k, r in enumerate(wreads(tr)): q.put(g + 1 + k, r)
        if nextw < 32 and nextw - 10 <= t + cfg.R - 2 and (nextw - cfg.X) * cfg.wev <= t:
            q.place(wdma(cfg, nextw), [g + 10, g + 13, g + 16, g + 18])
            nextw += 1
        if t == 20: q.put(g + 19, "s_barrier")
    assert nextw == 32
    q.raw([f"WAITVM o{32-NL} lgkmcnt(0)"])
    wr = lambda i, j: f"ds_write_b128 v{240+j}, {vr(ACC(i,j),4)} offset:{5120*(j-1)+1024*i}"
    for i in range(5):
        mf = []
        for j in (1, 2, 3, 0):
            d = vr(ACC(i, j), 4)
            for t in range(32 - NL, 32):
                mf.append(f"{MF} {d}, {WS(t,j)}, {vr(OF(t,i),4)}, {d}")
        g = q.add(mf)
        if i == 0:
            for k in range(1, NL): q.g[g + k - 1].append(f"!WAITVM o{32-NL+k}")
        else:
            for j in range(1, 4): q.put(g + 2 + NL * (j - 1), wr(i - 1, j))
    RB = lambda i: 112 + 12 * i if i < 3 else 192 + 12 * (i - 3)
    rd = lambda i: [f"ds_read_b128 {vr(RB(i)+4*j,4)}, v240 offset:{5120*j+1024*i} ;@r{i}" for j in range(3)]
    def fin(i):
        bb = RB(i); ac = ACC(i, 0); o = [f"WAITLG r{i}"]
        for r in range(0, 4, 2):
            o += [f"v_pk_add_f32 {vr(ac+r,2)}, {vr(ac+r,2)}, {vr(bb+r,2)}", f"v_pk_add_f32 {vr(bb+4+r,2)}, {vr(bb+4+r,2)}, {vr(bb+8+r,2)}"]
        for r in range(0, 4, 2):
            o += [f"v_pk_add_f32 {vr(ac+r,2)}, {vr(ac+r,2)}, {vr(bb+4+r,2)}"]
        o += [f"v_cvt_pk_bf16_f32 v{ac}, v{ac}, v{ac+1}", f"v_cvt_pk_bf16_f32 v{ac+1}, v{ac+2}, v{ac+3}",
              f"buffer_store_dwordx2 {vr(ac,2)}, v244, s[{SOUT}:{SOUT+3}], s52 offen {cfg.outflags}".rstrip(), "s_add_u32 s52, s52, %d" % (16 * 1280)]
        return o
    if cfg.fin2:
        assert cfg.DO == 4 and NL == 2
        q.g[g + 1].insert(0, "s_barrier"); q.g[g + 1].insert(0, "s_waitcnt lgkmcnt(0)")
        for k, r in enumerate(rd(0) + rd(1) + rd(2)): q.put(g + 1 + min(k // 2 + (k > 3), 6), r)
        q.raw(stamp_l(c, cfg, "projdone") + ["s_lshl_b32 s52, s3, 5", wr(4, 1), wr(4, 2)])
        q.emit(c)
        c.ext(fin(0)[:5]); c(wr(4, 3)); c.ext(fin(0)[5:] + fin(1))
        c("s_waitcnt lgkmcnt(0)")
        c("s_barrier")
        c.ext(rd(3) + rd(4) + fin(2) + fin(3) + fin(4))
    else:
        q.raw(stamp_l(c, cfg, "projdone") + ["s_nop 1", wr(4, 1), wr(4, 2), "s_nop 1", wr(4, 3)])
        q.emit(c)
        c("s_waitcnt lgkmcnt(0)")
        c("s_barrier")
        for i in range(5): c.ext(rd(i))
        c("s_lshl_b32 s52, s3, 5")
        for i in range(5): c.ext(fin(i))
    check_setup(c.l, "proj")
    a.l += fix(resolve_waits(c.l))
    a("L_fin:")
    if cfg.stamps or cfg.calib:
        a("s_waitcnt vmcnt(0)")
        stamp(a, cfg, "end")
    if cfg.calib:
        a("s_waitcnt lgkmcnt(0)")
        a("s_or_b32 s52, s2, s3")
        a("s_cmp_lg_u32 s52, 0")
        a("s_cbranch_scc1 L_end")
        a(f"s_sub_u32 s52, s{62+4*cfg.cal_j}, s{62+4*cfg.cal_i}")
        a("s_lshl_b32 s52, s52, 2")
        a("s_add_u32 s52, s52, s62")
        a("L_spin:")
        a("s_memrealtime s[56:57]")
        a("s_waitcnt lgkmcnt(0)")
        a("s_sub_u32 s56, s56, s52")
        a(f"s_cmp_lt_i32 s56, {cfg.calib*100}")
        a("s_cbranch_scc1 L_spin")
    if cfg.stamps:
        stamps_out(a, cfg, 64 << 20)
    a("L_end:")
    a("s_endpgm")
    if cfg.w3:
        i0, i1 = a.l.index("L_sec0:"), a.l.index("L_sec1:")
        dead_v = set(("v", r) for r in list(range(128, 160)) + list(range(184, 192)) + list(range(204, 208)) + list(range(220, 224)))
        dead_a = set(("a", r) for r in range(48, 64))
        sec = []; skip = False
        for x in a.l[i0 + 1:i1]:
            if x == "s_and_b32 s52, s2, 31": skip = True
            if skip:
                if x == "L_noarr:": skip = False
                continue
            if x.endswith(":") or x.startswith(".") or x.startswith(";"):
                if x == "L_loop:":
                    z = [f"v_mov_b32 v{r}, 0" for _, r in sorted(dead_v)] + [f"v_accvgpr_write_b32 a{r}, 0" for r in list(range(48, 64)) + list(range(204, 208))]
                    k = sec.index(".p2align 6"); sec[k:k] = z
                    w3body0 = len(sec) + 1
                    x = "L_loop3:"
                sec.append(x); continue
            if x.startswith("s_nop"): continue
            ins = parse(x)
            if ins["k"] == "mfma" and (ins["D"] & dead_v or ins["Dtok"] == "a[204:207]"): continue
            if ins["k"] == "valu" and (ins["wr"] & (dead_v | dead_a) or ins["rd"] & set(("v", r) for r in range(128, 160))): continue
            if x == "s_cbranch_scc1 L_loop": x = "s_cbranch_scc1 L_loop3"
            sec.append(x)
        sec = fix(sec)
        l0 = sec.index("L_loop3:"); l1 = sec.index("s_cbranch_scc1 L_loop3")
        assert check(sec[l0:l1 + 1] * 2, "w3-loop") == 0 and check(sec + a.l[i1:i1 + 40], "w3-exit") == 0 and check(a.l[i0 - 30:i0] + sec, "w3-entry") == 0
        a("L_w3:")
        a.ext(sec)
        a("s_branch L_sec1")
    if cfg.epark:
        a("L_redo:")
        a("s_mov_b32 s35, 1")
        a("s_lshl_b32 s52, s3, 6")
        a("v_or_b32 v0, s52, v1")
        a("s_waitcnt vmcnt(0) lgkmcnt(0)")
        a("s_barrier")
        a("s_branch L_restart")
    a("L_exact:")
    ex0 = len(a.l)
    a("s_mov_b32 s35, 1")
    a(f"s_mov_b32 s{SK+2}, {KVBYTES}")
    a(f"s_mov_b32 s{SV+2}, {KVBYTES}")
    a("s_mov_b32 s33, s40" if not cfg.uni else "s_lshl_b32 s33, s3, 10")
    a("s_waitcnt vmcnt(0) lgkmcnt(0)")
    a("L_exact_loop:")
    a("s_barrier")
    if cfg.uni:
        for n_ in range(4): a.ext(["s_and_b32 m0, s33, 0x3fff", "s_nop 0", dma(KDA, SK, "s33", 0, cfg.kvflags), "s_add_u32 s33, s33, 4096"])
    else:
        a.ext(with_nop(kdma(cfg, 0)))
        a(ADV)
    a("s_waitcnt vmcnt(0)")
    a("s_barrier")
    for th in range(2):
        for kt in range(2):
            for ks in range(4): a(kread(0, 0, th, kt, ks))
        a("s_waitcnt lgkmcnt(0)")
        for u in range(4): a.ext(qk(u, 0, True))
        a("s_nop 7")
        for u in range(4):
            s0 = S_(u, 0)
            for r in range(0, 8, 2):
                a(f"v_max3_f32 v{MTR+u}, v{MTR+u}, v{s0+r}, v{s0+r+1}")
    a(f"s_cmp_lt_u32 s33, {KVBYTES}")
    a("s_cbranch_scc1 L_exact_loop")
    a("s_barrier")
    a("s_mov_b32 s33, s40" if not cfg.uni else "s_lshl_b32 s33, s3, 10")
    a.ext([x.split(" ;@")[0] for x in with_nop(sum([piece(cfg, gp, False) if not cfg.uni else upiece(cfg, gp) for gp in range(NP)], []))])
    a("s_waitcnt vmcnt(0)")
    a("s_barrier")
    a.ext(k0r + v0r)
    a("s_waitcnt lgkmcnt(0)")
    a.ext(k1r)
    for u in range(4): a.ext(qk(u, 0, True))
    a.ext(ones)
    a("s_nop 7")
    a.ext(fix(merge(*[fmax(u) for u in range(4)]) + merge(*[fexp(u, 8 if u < 3 else 4) for u in range(4)])))
    a("s_nop 1")
    a.ext(pv(0, 0, True) + pv(1, 0, True))
    a("s_waitcnt lgkmcnt(0)")
    q = Seq(); st1 = attn_tile(cfg, q, 1, "first")
    if cfg.uni:
        q.place(upiece(cfg, NP), [st1[4] + 1]); q.place(upiece(cfg, NP + 1), [st1[6] + 1])
    x1 = Asm()
    for t_ in ["seg1"]: x1("buffer_dummy ;@seg1")
    q.emit(x1)
    a.l += resolve_waits(x1.l)
    a("s_mov_b32 s34, 3")
    a("s_branch L_loop")
    bad = check(a.l[:ex0], "main") + check(body + body, "attn-loop") + check(a.l[ex0:] + body, "exact")
    assert bad == 0
    return a

HEADER = """; Kernarg layout for this problem (64 bytes, ptrs only, base s[0:1]):
;   offset  56: d_ws      [0, 15.7 MB) attention output O as MFMA fragments, [24 MB, +32 KB) hand-off words
;
;     p = exp2(.), o^T += V^T p^T, row sums by an MFMA with a ones operand.  m is the row maximum of the first key tile; if any
;     wave w contracts over heads 8w..8w+7 once their words are set, partial sums meet in LDS.
; @launch grid=(256,1,1) block=(256,1,1) lds=163840"""

def build(cfg):
    k = NAME + "_kernel"
    out = []
    out.append(HEADER)
    out.append('.amdgcn_target "amdgcn-amd-amdhsa--gfx950"')
    out.append(".text")
    out.append(f".globl {k}\n.p2align 8\n.type {k},@function\n{k}:")
    out.append(gen(cfg).text())
    out.append('.section .rodata,"a"')
    out.append(f""".p2align 6
.amdhsa_kernel {k}
  .amdhsa_next_free_vgpr 512
  .amdhsa_next_free_sgpr 102
  .amdhsa_accum_offset 256
  .amdhsa_group_segment_fixed_size 0
  .amdhsa_kernarg_size 64
  .amdhsa_user_sgpr_count 2
  .amdhsa_user_sgpr_kernarg_segment_ptr 1
  .amdhsa_system_sgpr_workgroup_id_x 1
.end_amdhsa_kernel
""")
    return "\n".join(out)

if __name__ == "__main__":
    cfg = Cfg()
    path = sys.argv[1]
    for kv in sys.argv[2:]:
        k, v = kv.split("=", 1)
        old = getattr(cfg, k)
        setattr(cfg, k, type(old)(eval(v)) if isinstance(old, (bool, int, float, tuple)) else v)
    txt = build(cfg)
    open(path, "w").write(txt)
```
